```python
import torch

def _softmax(x, axis=-1):
    return torch.softmax(x, dim=axis)
def _gelu(x):
    return torch.nn.functional.gelu(x, approximate="tanh")
def _silu(x):
    return torch.nn.functional.silu(x)
def _sigmoid(x):
    return torch.sigmoid(x)
def _layernorm(x, axis=-1, eps=1e-5):
    m = x.mean(dim=axis, keepdim=True)
    v = x.var(dim=axis, keepdim=True, unbiased=False)
    return (x - m) / torch.sqrt(v + eps)
def _scatter_add(tgt, idx, src, axis=0):
    return tgt.clone().index_add_(axis, idx, src)
def _segment_sum(src, seg, n):
    out = torch.zeros((n,) + src.shape[1:], dtype=src.dtype)
    return out.index_add_(0, seg, src)
def _pad(x, pw):
    flat = tuple(v for pair in reversed(pw) for v in pair)
    return torch.nn.functional.pad(x, flat)

kernel_name = 'gated_mix__ssm_conv_s4d__dense_activation_silu__prompt'

def setup_inputs():

    _w = (lambda a: (lambda t: t.to(torch.bfloat16) if t.is_floating_point() else t)(torch.as_tensor(a)))
    def _A_setup():
        Bsz, L, D, N = 1, 2048, 512, 128
        return {
            "u": _w((lambda *s: torch.randn(*s, dtype=torch.bfloat16) * 0.05)(Bsz, L, D)),
            "log_A_real": _w((lambda *s: torch.randn(*s, dtype=torch.bfloat16) * 6.4)(D, N) * 0.5),
            "A_imag": _w((lambda *s: torch.randn(*s, dtype=torch.bfloat16) * 0.05)(D, N) * 3.14),
            "C_real": _w((lambda *s: torch.randn(*s, dtype=torch.bfloat16) * 0.2)(D, N) / N ** 0.5),
            "C_imag": _w((lambda *s: torch.randn(*s, dtype=torch.bfloat16) * 0.2)(D, N) / N ** 0.5),
            "log_dt": _w((lambda *s: torch.randn(*s, dtype=torch.bfloat16) * 0.05)(D) * 0.5 - 4.0),
            "D_skip": _w((lambda *s: torch.randn(*s, dtype=torch.bfloat16) * 0.05)(D)),
        }
    _A_in = _A_setup()

    def _B_setup():
        B, S, D, F = 1, 2048, 512, 1792
        return {
            "x": _w((lambda *s: torch.randn(*s, dtype=torch.bfloat16) * 0.05)(B, S, D)),
            "w1": _w((lambda *s: torch.randn(*s, dtype=torch.bfloat16) * 6.4)(D, F) * (D ** -0.5)),
            "w2": _w((lambda *s: torch.randn(*s, dtype=torch.bfloat16) * 0.2)(F, D) * (F ** -0.5)),
        }
    _B_in = _B_setup()

    return {
        "A_u": _A_in["u"],
        "A_log_A_real": _A_in["log_A_real"],
        "A_A_imag": _A_in["A_imag"],
        "A_C_real": _A_in["C_real"],
        "A_C_imag": _A_in["C_imag"],
        "A_log_dt": _A_in["log_dt"],
        "A_D_skip": _A_in["D_skip"],
        "B_x": _B_in["x"],
        "B_w1": _B_in["w1"],
        "B_w2": _B_in["w2"],
        "gate_w": _w((lambda *s: torch.randn(*s, dtype=torch.bfloat16) * 0.05)(512) * 16.0),
    }

def reference(A_u, A_log_A_real, A_A_imag, A_C_real, A_C_imag, A_log_dt, A_D_skip, B_x, B_w1, B_w2, gate_w):
    def _A_ref(u, log_A_real, A_imag, C_real, C_imag, log_dt, D_skip):
        L = u.shape[1]
        dt = torch.exp(log_dt)
        A = -torch.exp(log_A_real) + 1j * A_imag
        C = (C_real + 1j * C_imag) * dt[:, None]
        pos = (lambda x, dt: x.to(dt))(torch.arange(L), log_dt.dtype)
        P = torch.exp((A * dt[:, None])[:, :, None] * pos[None, None, :])
        K = 2.0 * torch.einsum("dn,dnl->dl", C, P).real
        L2 = 2 * L
        u_t = (lambda x, *d: x.permute(*d))(u, 0, 2, 1)
        Kf = (lambda x, *a, **k: torch.fft.rfft(x.float(), *a, **k))(K, L2)
        Uf = (lambda x, *a, **k: torch.fft.rfft(x.float(), *a, **k))(u_t, L2)
        y = (lambda x, *a, **k: torch.fft.irfft(x, *a, **k).to(torch.bfloat16))(Uf * Kf[None, :, :], L2)[:, :, :L]
        y = (lambda x, *d: x.permute(*d))(y, 0, 2, 1)
        return y + u * D_skip[None, None, :]

    def _B_ref(x, w1, w2):
        h = torch.einsum("bsd,df->bsf", x, w1)
        h = _silu(h)
        out = torch.einsum("bsf,fd->bsd", h, w2)
        return out

    x = A_u
    g = _sigmoid((x * gate_w).sum(-1, keepdims=True))
    a = _A_ref(x, A_log_A_real, A_A_imag, A_C_real, A_C_imag, A_log_dt, A_D_skip)
    b = _B_ref(x, B_w1, B_w2)
    return g * a + (1 - g) * b
```

```python
class Asm:
    def __init__(self):
        self.lines = []
        self._lab = 0
    def __call__(self, s):
        for l in s.split("\n"):
            l = l.strip()
            if l:
                self.lines.append("  " + l)
    def label(self, name):
        self.lines.append(name + ":")
    def newlabel(self, base="L"):
        self._lab += 1
        return f"{base}_{self._lab}"
    def comment(self, s):
        self.lines.append("  ; " + s)
    def raw(self, s):
        self.lines.append(s)
    def text(self):
        return "\n".join(self.lines) + "\n"

def vr(a, n=None):
    if n is None or n == 1:
        return f"v{a}"
    return f"v[{a}:{a+n-1}]"
def sr(a, n=None):
    if n is None or n == 1:
        return f"s{a}"
    return f"s[{a}:{a+n-1}]"

def kernel_header(A, name):
    A.raw(".text")
    A.raw(f".globl {name}")
    A.raw(".p2align 8")
    A.raw(f".type {name},@function")
    A.raw(f"{name}:")

def kernel_desc(A, name, vgpr, sgpr=102):
    acc = (vgpr + 3) // 4 * 4
    A.raw('.section .rodata,"a"')
    A.raw(".p2align 6")
    A.raw(f".amdhsa_kernel {name}")
    A.raw(f"  .amdhsa_next_free_vgpr {vgpr}")
    A.raw(f"  .amdhsa_next_free_sgpr {sgpr}")
    A.raw(f"  .amdhsa_accum_offset {acc}")
    A.raw("  .amdhsa_group_segment_fixed_size 0")
    A.raw("  .amdhsa_kernarg_size 112")
    A.raw("  .amdhsa_user_sgpr_count 2")
    A.raw("  .amdhsa_user_sgpr_kernarg_segment_ptr 1")
    A.raw("  .amdhsa_system_sgpr_workgroup_id_x 1")
    A.raw(".end_amdhsa_kernel")
```

```python
from parts import *
import parts
G2_WD = 2
G2_HV = 4
G2_AR = 6
G2_RW = 8
G2_RR = 11
G2_OV = 12
G2_AV = 13
G2_GV = 15
G2_G = 26
G2_AP = 32
G2_AF = 40
G2_ACC = 64
G2_H = 128
S_RT, S_CT, S_WL, S_WR_, S_HL, S_HR, S_M2, S_OO, S_AO = 76, 77, 78, 79, 80, 81, 82, 83, 84

def g2_setup(A):
    w = S_WAVE
    if parts.MAP == 0:
        A(f"s_and_b32 s{S_RT}, s{S_J}, 3")
        A(f"s_lshl_b32 s{S_T0}, s{S_XCD}, 2")
        A(f"s_add_u32 s{S_RT}, s{S_RT}, s{S_T0}")
        A(f"s_lshr_b32 s{S_CT}, s{S_J}, 2")
        A(f"s_mul_i32 s{S_HL}, s{w}, 28")
        A(f"s_add_u32 s{S_HR}, s{S_HL}, 14")
    else:
        A(f"s_and_b32 s{S_RT}, s{S_J}, 7")
        A(f"s_and_b32 s{S_T0}, s{S_XCD}, 6")
        A(f"s_lshl_b32 s{S_T0}, s{S_T0}, 2")
        A(f"s_add_u32 s{S_RT}, s{S_RT}, s{S_T0}")
        A(f"s_and_b32 s{S_T0}, s{S_XCD}, 1")
        A(f"s_lshl_b32 s{S_CT}, s{S_T0}, 2")
        A(f"s_lshr_b32 s{S_T1}, s{S_J}, 3")
        A(f"s_add_u32 s{S_CT}, s{S_CT}, s{S_T1}")
        A(f"s_mul_i32 s{S_T0}, s{S_T0}, 56")
        A(f"s_mul_i32 s{S_T1}, s{w}, 14")
        A(f"s_add_u32 s{S_HL}, s{S_T0}, s{S_T1}")
        A(f"s_sub_u32 s{S_T0}, 56, s{S_T0}")
        A(f"s_add_u32 s{S_HR}, s{S_T0}, s{S_T1}")
    A(f"s_lshl_b32 s{S_T0}, s{S_CT}, 7")
    A(f"s_lshl_b32 s{S_WL}, s{S_HL}, 14")
    A(f"s_add_u32 s{S_WL}, s{S_WL}, s{S_T0}")
    A(f"s_lshl_b32 s{S_WR_}, s{S_HR}, 14")
    A(f"s_add_u32 s{S_WR_}, s{S_WR_}, s{S_T0}")
    A(f"s_mul_i32 s{S_T0}, s{S_RT}, 224")
    A(f"s_add_u32 s{S_HL}, s{S_HL}, s{S_T0}")
    A(f"s_lshl_b32 s{S_HL}, s{S_HL}, 10")
    A(f"s_add_u32 s{S_HR}, s{S_HR}, s{S_T0}")
    A(f"s_lshl_b32 s{S_HR}, s{S_HR}, 10")
    A(f"s_lshl_b32 s{S_M2}, s{w}, 15")
    A("v_lshrrev_b32 v30, 3, v1")
    A("v_and_b32 v31, 7, v1")
    A("v_bfe_u32 v32, v1, 4, 1")
    A("v_lshlrev_b32 v32, 2, v32")
    A("v_xor_b32 v31, v31, v32")
    A("v_lshlrev_b32 v30, 10, v30")
    A(f"v_lshl_add_u32 v{G2_WD}, v31, 4, v30")
    A(f"v_add_u32 v{G2_WD+1}, {8192-1024}, v{G2_WD}")
    A(f"s_and_b32 s{S_T0}, s{w}, 1")
    A(f"s_mul_i32 s{S_T0}, s{S_T0}, {112*1024}")
    A(f"s_sub_u32 s{S_T1}, {112*1024}, s{S_T0}")
    A("v_lshlrev_b32 v30, 4, v1")
    A(f"v_add_u32 v{G2_HV}, s{S_T0}, v30")
    A(f"v_add_u32 v{G2_HV+1}, s{S_T1}, v30")

def g2_setup2(A):
    w = S_WAVE
    A("v_lshrrev_b32 v31, 5, v1")
    A("v_bfe_u32 v32, v1, 2, 2")
    A("v_bfe_u32 v33, v1, 4, 1")
    A("v_bfe_u32 v34, v1, 1, 1")
    A("v_lshl_add_u32 v33, v33, 1, v34")
    A("v_bfe_u32 v34, v1, 3, 1")
    A(f"s_lshr_b32 s{S_T0}, s{w}, 1")
    A(f"v_xor_b32 v34, s{S_T0}, v34")
    A("v_lshl_add_u32 v33, v34, 2, v33")
    A("v_lshl_add_u32 v32, v31, 2, v32")
    A("v_lshlrev_b32 v32, 7, v32")
    A("v_lshl_add_u32 v32, v33, 4, v32")
    A("v_and_b32 v34, 1, v1")
    A("v_lshl_add_u32 v32, v34, 3, v32")
    A(f"v_add_u32 v{G2_AR}, s{S_M2}, v32")
    A(f"v_xor_b32 v{G2_AR+1}, 64, v{G2_AR}")
    A("v_lshlrev_b32 v30, 4, v1")
    for t in range(1, 4):
        A(f"s_xor_b32 s{S_T0}, s{w}, {t}")
        A(f"s_lshl_b32 s{S_T0}, s{S_T0}, 15")
        A(f"s_add_u32 s{S_T0}, s{S_T0}, {16384 + (t-1)*4096}")
        A(f"v_add_u32 v{G2_RW+t-1}, s{S_T0}, v30")
    A(f"s_add_u32 s{S_T0}, s{S_M2}, 16384")
    A(f"v_add_u32 v{G2_RR}, s{S_T0}, v30")
    A(f"s_lshl_b32 s{S_T0}, s{S_RT}, 1")
    A(f"s_and_b32 s{S_T1}, s{w}, 1")
    A(f"s_add_u32 s{S_T0}, s{S_T0}, s{S_T1}")
    A(f"s_lshl_b32 s{S_OO}, s{S_CT}, 1")
    A(f"s_lshr_b32 s{S_T1}, s{w}, 1")
    A(f"s_add_u32 s{S_T1}, s{S_OO}, s{S_T1}")
    A(f"s_lshl_b32 s{S_OO}, s{S_T0}, 15")
    A(f"s_lshl_b32 s{S_AO}, s{S_T1}, 6")
    A(f"s_add_u32 s{S_OO}, s{S_OO}, s{S_AO}")
    A(f"s_lshl_b32 s{S_AO}, s{S_T1}, 17")
    A(f"s_lshl_b32 s{S_T1}, s{S_T0}, 7")
    A(f"s_add_u32 s{S_AO}, s{S_AO}, s{S_T1}")
    A(f"s_add_u32 s{S_AO}, s{S_AO}, {WS_A}")
    A("v_and_b32 v30, 31, v1")
    A("v_lshlrev_b32 v32, 10, v30")
    A(f"v_lshl_add_u32 v{G2_OV}, v31, 4, v32")
    A("v_lshlrev_b32 v32, 14, v31")
    A(f"v_lshl_add_u32 v{G2_AV}, v30, 2, v32")
    A(f"v_add_u32 v{G2_AV+1}, 8192, v{G2_AV}")
    A(f"s_lshl_b32 s{S_T0}, s{S_T0}, 8")
    A(f"s_add_u32 s{S_T0}, s{S_T0}, {WS_G}")
    A(f"v_lshlrev_b32 v30, 3, v30")
    A(f"v_add_u32 v{G2_GV}, s{S_T0}, v30")

def g2_w_loads(i, DEP):
    slot = i % DEP
    base, k = (S_WL, i) if i < 14 else (S_WR_, i - 14)
    return [f"s_add_u32 m0, s{S_M2}, {slot*2048}",
            f"s_add_u32 s{S_T1}, s{base}, {k*16384}",
            f"buffer_load_dwordx4 v{G2_WD}, s[{S_W2}:{S_W2+3}], s{S_T1} offen lds",
            f"buffer_load_dwordx4 v{G2_WD+1}, s[{S_W2}:{S_W2+3}], s{S_T1} offen offset:1024 lds"]

def g2_h_loads(i, DEP, fl=""):
    slot = i % DEP
    base, k = (S_HL, i) if i < 14 else (S_HR, i - 14)
    r = G2_H + slot * 8
    return [f"s_add_u32 s{S_T0}, s{base}, {k*1024}",
            f"buffer_load_dwordx4 {vr(r,4)}, v{G2_HV}, s[{S_WS}:{S_WS+3}], s{S_T0} offen {fl}",
            f"buffer_load_dwordx4 {vr(r+4,4)}, v{G2_HV+1}, s[{S_WS}:{S_WS+3}], s{S_T0} offen {fl}"]

def g2_ag_loads(fl=""):
    out = []
    for q in range(4):
        out.append(f"s_add_u32 s{S_T0}, s{S_AO}, {q*32768}")
        for i in range(2):
            out.append(f"buffer_load_dword v{G2_AP+2*q+i}, v{G2_AV+i}, s[{S_WS}:{S_WS+3}], s{S_T0} offen {fl}")
    out.append(f"buffer_load_dwordx2 {vr(G2_G,2)}, v{G2_GV}, s[{S_WS}:{S_WS+3}], 0 offen {fl}")
    return out

def g2_reads(i, DEP):
    slot = i % DEP
    fr = G2_AF + (i % 2) * 8
    return [f"ds_read_b64_tr_b16 {vr(fr+4*a+2*x,2)}, v{G2_AR+a} offset:{slot*2048+x*1024}" for a in range(2) for x in range(2)]

def g2_mfmas(i, DEP):
    fr = G2_AF + (i % 2) * 8
    h = G2_H + (i % DEP) * 8
    out = []
    for t in (3, 2, 1, 0):
        a, b = t >> 1, t & 1
        acc = G2_ACC + t * 16
        c = "0" if i == 0 else vr(acc, 16)
        out.append(f"v_mfma_f32_32x32x16_bf16 {vr(acc,16)}, {vr(fr+4*a,4)}, {vr(h+4*b,4)}, {c}")
    return out

def g2_main(A, DEP=8, NS=28):
    issued = 0
    for i in range(DEP - 1):
        for x in g2_w_loads(i, DEP) + g2_h_loads(i, DEP): A(x)
    issued = DEP - 1
    extra = 0
    A(f"s_waitcnt vmcnt({(issued-1)*4})")
    for r in g2_reads(0, DEP): A(r)
    for i in range(NS):
        fill = []
        if i + 1 < NS:
            A(f"s_waitcnt vmcnt({(issued-(i+2))*4+extra}) lgkmcnt(0)")
            fill += g2_reads(i + 1, DEP)
        else:
            A("s_waitcnt lgkmcnt(0)")
        if issued < NS:
            fill += g2_w_loads(issued, DEP) + g2_h_loads(issued, DEP)
            issued += 1
        elif extra == 0:
            fill += g2_ag_loads()
            extra = 9
        interleave(A, g2_mfmas(i, DEP), fill)

def g2_reduce_write(A):
    A("s_nop 7")
    for t in (3, 2, 1):
        for q in range(4):
            A(f"ds_write_b128 v{G2_RW+t-1}, {vr(G2_ACC+t*16+4*q,4)} offset:{q*1024}")

def g2_final(A):
    R = G2_H
    for t in range(3):
        for q in range(4):
            A(f"ds_read_b128 {vr(R+t*16+4*q,4)}, v{G2_RR} offset:{t*4096+q*1024}")
    U = R + 48
    A("s_waitcnt vmcnt(0)")
    for k in range(8):
        A(f"v_lshlrev_b32 v{U+2*k}, 16, v{G2_AP+k}")
        A(f"v_and_b32 v{U+2*k+1}, 0xffff0000, v{G2_AP+k}")
    for k in range(8):
        A(f"v_pk_mul_f32 {vr(U+2*k,2)}, {vr(U+2*k,2)}, {vr(G2_G,2)} op_sel:[0,0] op_sel_hi:[1,0]")
    for t in range(3):
        A(f"s_waitcnt lgkmcnt({8-4*t})")
        for k in range(8):
            A(f"v_pk_add_f32 {vr(G2_ACC+2*k,2)}, {vr(G2_ACC+2*k,2)}, {vr(R+t*16+2*k,2)}")
    for k in range(8):
        A(f"v_pk_fma_f32 {vr(U+2*k,2)}, {vr(G2_ACC+2*k,2)}, {vr(G2_G,2)}, {vr(U+2*k,2)} op_sel:[0,1,0] op_sel_hi:[1,1,1]")
    for k in range(8):
        A(f"v_cvt_pk_bf16_f32 v{G2_AF+k}, v{U+2*k}, v{U+2*k+1}")
    A("s_nop 1")
    for h in range(2):
        A(f"v_permlane32_swap_b32 v{G2_AF+4*h}, v{G2_AF+4*h+2}")
        A(f"v_permlane32_swap_b32 v{G2_AF+4*h+1}, v{G2_AF+4*h+3}")
    A("s_nop 1")
    for h in range(2):
        A(f"buffer_store_dwordx4 {vr(G2_AF+4*h,4)}, v{G2_OV}, s[{S_OUT}:{S_OUT+3}], s{S_OO} offen offset:{32*h}")
```

```python
from asmlib import *
MAP = 1

L, D, F, N = 2048, 512, 1792, 128
WS_H    = 0
WS_UT   = 8 << 20
WS_A    = 10 << 20
WS_G    = 12 << 20
WS_FLAG = (12 << 20) + 65536
WS_BYTES = 16 << 20
WS_TS = 15 << 20
TS = False
S_TS = 86
LDS_TOTAL = 163840
LDS_SSM = 131072
LDS_K   = LDS_SSM
K_STRIDE = 4544
LDS_U   = LDS_SSM + 9088
U_STRIDE = 4160
LDS_STG = LDS_SSM + 17408
LDS_TAB = LDS_SSM + 9216
TAB_STRIDE = 4352
LDS_MISC = LDS_SSM + 26624
LDS_GFLAG = LDS_MISC
LDS_SFLAG = LDS_MISC + 16
LDS_SPILL = LDS_MISC + 64
LDS_DUMMY = LDS_MISC + 512

S_X, S_W1, S_W2, S_WS, S_OUT = 4, 8, 12, 16, 20
S_XCD, S_J, S_WAVE = 24, 25, 26
P_U, P_LA, P_AI, P_CR, P_CI, P_LDT, P_DSK = 36, 38, 40, 42, 44, 46, 48
P_W1, P_W2, P_GW, P_OUT, P_DBG, P_WS = 52, 54, 56, 58, 60, 62

def srd(A, s, p, nbytes):
    A(f"s_mov_b32 s{s}, s{p}")
    A(f"s_and_b32 s{s+1}, s{p+1}, 0xffff")
    A(f"s_mov_b32 s{s+2}, {nbytes}")
    A(f"s_mov_b32 s{s+3}, 0x20000")

def prologue(A, exit_label):
    A(f"s_cmp_ge_u32 s2, 256")
    A(f"s_cbranch_scc1 {exit_label}")
    A("s_load_dwordx16 s[36:51], s[0:1], 0")
    A("s_load_dwordx8 s[52:59], s[0:1], 64")
    A("s_load_dwordx4 s[60:63], s[0:1], 96")
    A("v_lshrrev_b32 v2, 6, v0")
    A("v_and_b32 v1, 63, v0")
    A(f"v_readfirstlane_b32 s{S_WAVE}, v2")
    A(f"s_and_b32 s{S_XCD}, s2, 7")
    A(f"s_lshr_b32 s{S_J}, s2, 3")

def init_lds_flags(A):
    A("v_and_b32 v2, 7, v1")
    A("v_lshlrev_b32 v2, 2, v2")
    A(f"v_add_u32 v2, {LDS_MISC}, v2")
    A("v_mov_b32 v3, 0")
    A("ds_write_b32 v2, v3")

def sw_arrive(A, vown, vtmp, epoch):
    A(f"v_mov_b32 v{vtmp}, {epoch}")
    A(f"ds_write_b32 v{vown}, v{vtmp}")

def sw_poll_issue(A, vrd, vtmp):
    A(f"ds_read_b32 v{vtmp}, v{vrd}")

def sw_wait(A, vrd, vtmp, epoch, issued=False):
    lab = A.newlabel("SW")
    done = A.newlabel("SWD")
    if issued:
        A("s_waitcnt lgkmcnt(0)")
        A(f"v_cmp_gt_u32 vcc, {epoch}, v{vtmp}")
        A(f"s_cbranch_vccz {done}")
    A.label(lab)
    A(f"ds_read_b32 v{vtmp}, v{vrd}")
    A("s_waitcnt lgkmcnt(0)")
    A(f"v_cmp_gt_u32 vcc, {epoch}, v{vtmp}")
    A(f"s_cbranch_vccnz {lab}")
    if issued:
        A.label(done)

G1_XD, G1_WD = 2, 6
G1_XR = 10
G1_WR = 18
G_FOWN, G_FRD, G_FT = 22, 23, 24
G1_ACC = 64
G1_FR = 128
G1_TMP = 160
S_RB, S_CB, S_XO, S_WO, S_M0X, S_T0, S_T1, S_HO = 64, 65, 66, 67, 68, 69, 70, 71
S_C1, S_CL = 72, 74

def g1_setup(A):
    w = S_WAVE
    if MAP == 0:
        A(f"s_and_b32 s{S_RB}, s{S_J}, 1")
        A(f"s_lshl_b32 s{S_T0}, s{S_XCD}, 1")
        A(f"s_add_u32 s{S_RB}, s{S_RB}, s{S_T0}")
        A(f"s_lshr_b32 s{S_CB}, s{S_J}, 1")
    else:
        A(f"s_and_b32 s{S_RB}, s{S_J}, 3")
        A(f"s_and_b32 s{S_T0}, s{S_XCD}, 6")
        A(f"s_lshl_b32 s{S_T0}, s{S_T0}, 1")
        A(f"s_add_u32 s{S_RB}, s{S_RB}, s{S_T0}")
        A(f"s_and_b32 s{S_T0}, s{S_XCD}, 1")
        A(f"s_mul_i32 s{S_T0}, s{S_T0}, 7")
        A(f"s_lshr_b32 s{S_CB}, s{S_J}, 2")
        A(f"s_add_u32 s{S_CB}, s{S_CB}, s{S_T0}")
    A("v_lshrrev_b32 v30, 3, v1")
    A("v_and_b32 v31, 7, v1")
    A("v_lshrrev_b32 v32, 4, v1")
    A("v_xor_b32 v33, v31, v32")
    A("v_xor_b32 v34, 4, v33")
    A("v_lshlrev_b32 v30, 10, v30")
    A(f"v_lshl_add_u32 v{G1_XD}, v33, 4, v30")
    A(f"v_lshl_add_u32 v{G1_XD+1}, v34, 4, v30")
    A(f"v_add_u32 v{G1_XD+1}, {8192-1024}, v{G1_XD+1}")
    A(f"v_add_u32 v{G1_XD+2}, {2*(8192-1024)}, v{G1_XD}")
    A(f"v_add_u32 v{G1_XD+3}, {2*(8192-1024)}, v{G1_XD+1}")
    A(f"s_lshl_b32 s{S_XO}, s{S_RB}, 17")
    A(f"s_lshl_b32 s{S_T0}, s{w}, 15")
    A(f"s_add_u32 s{S_XO}, s{S_XO}, s{S_T0}")
    A("v_and_b32 v31, 15, v1")
    A("v_lshlrev_b32 v33, 2, v32")
    A("v_xor_b32 v31, v31, v33")
    A(f"v_mul_u32_u24 v33, {2*F}, v32")
    A(f"v_lshl_add_u32 v{G1_WD}, v31, 4, v33")
    for i in range(1, 4):
        A(f"v_add_u32 v{G1_WD+i}, {i*(4*2*F-1024)}, v{G1_WD}")
    A(f"s_mul_i32 s{S_WO}, s{w}, {16*2*F}")
    A(f"s_lshl_b32 s{S_T0}, s{S_CB}, 8")
    A(f"s_add_u32 s{S_WO}, s{S_WO}, s{S_T0}")
    A(f"s_lshl_b32 s{S_M0X}, s{w}, 12")

def g1_setup2(A):
    w = S_WAVE
    A("v_and_b32 v30, 31, v1")
    A("v_lshrrev_b32 v31, 5, v1")
    A("v_lshrrev_b32 v32, 1, v30")
    A("v_and_b32 v32, 7, v32")
    A("v_xor_b32 v32, v32, v31")
    A(f"s_lshr_b32 s{S_T0}, s{w}, 1")
    A(f"s_lshl_b32 s{S_T0}, s{S_T0}, 13")
    A(f"v_lshlrev_b32 v30, 7, v30")
    A(f"v_add_u32 v30, s{S_T0}, v30")
    for s in range(4):
        A(f"v_xor_b32 v33, {2*s}, v32")
        A(f"v_lshl_add_u32 v{G1_XR+s}, v33, 4, v30")
        A(f"v_add_u32 v{G1_XR+4+s}, 0x10000, v{G1_XR+s}")
    A("v_bfe_u32 v32, v1, 2, 2")
    A("v_bfe_u32 v33, v1, 4, 1")
    A("v_bfe_u32 v34, v1, 1, 1")
    A("v_lshl_add_u32 v33, v33, 1, v34")
    A(f"s_and_b32 s{S_T0}, s{w}, 1")
    A(f"s_lshl_b32 s{S_T0}, s{S_T0}, 3")
    A(f"v_add_u32 v33, s{S_T0}, v33")
    A("v_lshlrev_b32 v34, 2, v32")
    A("v_xor_b32 v33, v33, v34")
    A("v_lshl_add_u32 v32, v31, 3, v32")
    A("v_lshlrev_b32 v32, 8, v32")
    A("v_lshl_add_u32 v32, v33, 4, v32")
    A("v_and_b32 v34, 1, v1")
    A("v_lshl_add_u32 v32, v34, 3, v32")
    A(f"v_add_u32 v{G1_WR}, 16384, v32")
    A(f"v_xor_b32 v{G1_WR+1}, 64, v{G1_WR}")
    A(f"v_add_u32 v{G1_WR+2}, 0x10000, v{G1_WR}")
    A(f"v_add_u32 v{G1_WR+3}, 0x10000, v{G1_WR+1}")
    gflag_setup(A)
    A(f"s_mov_b32 s{S_C1}, 1.0")
    A(f"s_mov_b32 s{S_C1+1}, 1.0")
    A(f"s_mov_b32 s{S_CL}, 0xbfb8aa3b")
    A(f"s_mov_b32 s{S_CL+1}, 0xbfb8aa3b")

def gflag_setup(A):
    A(f"s_lshl_b32 s{S_T0}, s{S_WAVE}, 2")
    A(f"s_add_u32 s{S_T0}, s{S_T0}, {LDS_GFLAG}")
    A(f"v_mov_b32 v{G_FOWN}, s{S_T0}")
    A(f"v_and_b32 v{G_FRD}, 3, v1")
    A(f"v_lshlrev_b32 v{G_FRD}, 2, v{G_FRD}")
    A(f"v_add_u32 v{G_FRD}, {LDS_GFLAG}, v{G_FRD}")

def g1_dma_list(c):
    slot = c % 4
    out = []
    if NODMA: return ['s_nop 0']*12
    out.append(f"s_add_u32 m0, s{S_M0X}, {slot*32768}")
    out.append(f"s_add_u32 s{S_T1}, s{S_XO}, {c*128}")
    for i in range(4):
        out.append(f"buffer_load_dwordx4 v{G1_XD+i}, s[{S_X}:{S_X+3}], s{S_T1} offen offset:{i*1024} lds")
    out.append(f"s_add_u32 m0, s{S_M0X}, {slot*32768+16384}")
    out.append(f"s_add_u32 s{S_T1}, s{S_WO}, {c*64*2*F}")
    for i in range(4):
        out.append(f"buffer_load_dwordx4 v{G1_WD+i}, s[{S_W1}:{S_W1+3}], s{S_T1} offen offset:{i*1024} lds")
    return out

NOREAD = False
NOMFMA = False
NODMA = False
def g1_reads(t):
    if NOREAD: return []
    c, s = divmod(t, 4)
    slot = c % 4
    hi, lo = slot // 2, (slot % 2) * 32768
    fr = G1_FR + (t % 2) * 16
    out = []
    for a in range(2):
        for x in range(2):
            out.append(f"ds_read_b64_tr_b16 {vr(fr+4*a+2*x,2)}, v{G1_WR+2*hi+a} offset:{lo+(16*s+4*x)*256}")
    for b in range(2):
        out.append(f"ds_read_b128 {vr(fr+8+4*b,4)}, v{G1_XR+4*hi+s} offset:{lo+b*4096}")
    return out

def g1_mfmas(t):
    if NOMFMA: return ['s_nop 0']*4
    fr = G1_FR + (t % 2) * 16
    out = []
    for a in range(2):
        for b in range(2):
            acc = G1_ACC + (2*a+b)*16
            c = "0" if t == 0 else vr(acc, 16)
            out.append(f"v_mfma_f32_32x32x16_bf16 {vr(acc,16)}, {vr(fr+4*a,4)}, {vr(fr+8+4*b,4)}, {c}")
    return out

def interleave(A, mf, fill):
    n = len(mf)
    k = 0
    for i, m in enumerate(mf):
        A(m)
        tgt = (len(fill) * (i + 1) + n - 1) // n
        while k < tgt:
            A(fill[k]); k += 1

def g1_main(A, ep0=0):
    A("s_waitcnt vmcnt(24)")
    sw_arrive(A, G_FOWN, G_FT, ep0 + 1)
    sw_wait(A, G_FRD, G_FT, ep0 + 1)
    for r in g1_reads(0): A(r)
    pend = []
    for t in range(32):
        c, s = divmod(t, 4)
        if s == 3 and c < 7:
            outstanding = (min(c + 3, 7) - (c + 1)) * 8
            assert not pend
            A(f"s_waitcnt vmcnt({outstanding}) lgkmcnt(0)")
            sw_arrive(A, G_FOWN, G_FT, ep0 + c + 2)
            sw_poll_issue(A, G_FRD, G_FT + 1)
            mf = g1_mfmas(t)
            A(mf[0]); A(mf[1])
            sw_wait(A, G_FRD, G_FT + 1, ep0 + c + 2, issued=True)
            interleave(A, mf[2:], g1_reads(t + 1))
            if c + 4 < 8:
                pend = g1_dma_list(c + 4)
        else:
            A("s_waitcnt lgkmcnt(0)")
            fill = g1_reads(t + 1) if t < 31 else []
            if pend:
                k = {0: 4, 1: 4, 2: 4}[s]
                k = len(pend) if s == 2 else k
                fill = fill + pend[:k]
                pend = pend[k:]
            interleave(A, g1_mfmas(t), fill)
    return ep0 + 8

def silu_pairs(A, regs, tmp):
    n = len(regs)
    for i, (s, d) in enumerate(regs):
        A(f"v_pk_mul_f32 {vr(tmp+2*i,2)}, {vr(s,2)}, s[{S_CL}:{S_CL+1}]")
    for i in range(n):
        A(f"v_exp_f32 v{tmp+2*i}, v{tmp+2*i}")
        A(f"v_exp_f32 v{tmp+2*i+1}, v{tmp+2*i+1}")
    for i in range(n):
        A(f"v_pk_add_f32 {vr(tmp+2*i,2)}, {vr(tmp+2*i,2)}, s[{S_C1}:{S_C1+1}]")
    for i in range(n):
        A(f"v_rcp_f32 v{tmp+2*i}, v{tmp+2*i}")
        A(f"v_rcp_f32 v{tmp+2*i+1}, v{tmp+2*i+1}")
    for i, (s, d) in enumerate(regs):
        A(f"v_pk_mul_f32 {vr(tmp+2*i,2)}, {vr(tmp+2*i,2)}, {vr(s,2)}")
    for i, (s, d) in enumerate(regs):
        A(f"v_cvt_pk_bf16_f32 v{d}, v{tmp+2*i}, v{tmp+2*i+1}")

def g1_epilogue(A, flags=""):
    w = S_WAVE
    A(f"s_lshl_b32 s{S_HO}, s{S_RB}, 2")
    A(f"s_and_b32 s{S_T0}, s{w}, 2")
    A(f"s_add_u32 s{S_HO}, s{S_HO}, s{S_T0}")
    A(f"s_mul_i32 s{S_HO}, s{S_HO}, 112")
    A(f"s_lshl_b32 s{S_T0}, s{S_CB}, 3")
    A(f"s_add_u32 s{S_HO}, s{S_HO}, s{S_T0}")
    A(f"s_and_b32 s{S_T0}, s{w}, 1")
    A(f"s_lshl_b32 s{S_T0}, s{S_T0}, 2")
    A(f"s_add_u32 s{S_HO}, s{S_HO}, s{S_T0}")
    A(f"s_lshl_b32 s{S_HO}, s{S_HO}, 10")
    A(f"s_add_u32 s{S_T1}, s{S_HO}, {112*1024}")
    A("v_lshlrev_b32 v30, 4, v1")
    A("s_nop 4")
    k = 0
    for a in range(2):
        for b in range(2):
            acc = G1_ACC + (2*a+b)*16
            for fh in range(2):
                dst = G1_FR + (k % 8) * 4
                k += 1
                silu_pairs(A, [(acc + 8*fh + 2*i, dst + i) for i in range(4)], G1_TMP)
                so = S_HO if b == 0 else S_T1
                A(f"buffer_store_dwordx4 {vr(dst,4)}, v30, s[{S_WS}:{S_WS+3}], s{so} offen offset:{(2*a+fh)*1024} {flags}")


def ts(A, i):
    if TS:
        A(f"s_memtime s[{S_TS+2*i}:{S_TS+2*i+1}]")
def ts_real(A, i):
    if TS:
        A(f"s_memrealtime s[{S_TS+2*i}:{S_TS+2*i+1}]")
def ts_dump(A, kidx, wave8):
    if not TS: return
    A("s_waitcnt vmcnt(0) lgkmcnt(0)")
    A(f"s_memtime s[{S_TS+12}:{S_TS+13}]")
    A(f"s_memrealtime s[{S_TS+14}:{S_TS+15}]")
    A("s_waitcnt lgkmcnt(0)")
    for i in range(8):
        A(f"v_mov_b32 v{8+i}, s{S_TS+2*i}")
    A(f"s_lshl_b32 s{S_TS}, s2, 3")
    A(f"s_add_u32 s{S_TS}, s{S_TS}, s{wave8}")
    A(f"s_lshl_b32 s{S_TS}, s{S_TS}, 5")
    A(f"s_add_u32 s{S_TS}, s{S_TS}, {WS_TS + kidx*65536}")
    A("v_mov_b32 v2, 0")
    A(f"buffer_store_dwordx4 v[8:11], v2, s[{S_WS}:{S_WS+3}], s{S_TS} offen")
    A(f"buffer_store_dwordx4 v[12:15], v2, s[{S_WS}:{S_WS+3}], s{S_TS} offen offset:16")
```

```python
from parts import *
import parts
LDS_XCH  = LDS_SSM + 27648
LDS_HEAD = LDS_MISC + 64
LDS_CARR = LDS_MISC + 320
LDS_DUM  = LDS_MISC + 608
assert LDS_DUM + 416 <= LDS_XCH
S_FOWN, S_FRD, S_FT = 22, 23, 24
Q_PAIR, Q_C, Q_NH, Q_T0, Q_T1, Q_LDT, Q_DSK, Q_TAB = 64, 65, 66, 67, 68, 69, 70, 71
Q_EX = 72
LOG2E = "0x3fb8aa3b"
INV2PI = "0x3e22f983"

class Lg:
    def __init__(self, A): self.A = A; self.n = 0; self.done = 0
    def op(self, s): self.A(s); self.n += 1; return self.n
    def wait(self, idn):
        if idn <= self.done: return
        k = min(self.n - idn, 15)
        self.A(f"s_waitcnt lgkmcnt({k})"); self.done = self.n - k
    def all(self): self.wait(self.n)

def s_setup(A):
    w = S_WAVE
    A(f"s_lshl_b32 s{Q_PAIR}, s{S_XCD}, 5")
    A(f"s_add_u32 s{Q_PAIR}, s{Q_PAIR}, s{S_J}")
    A(f"s_lshr_b32 s{Q_C}, s{w}, 1")
    A(f"s_and_b32 s{Q_NH}, s{w}, 1")
    A(f"s_lshl_b32 s{Q_T0}, s{w}, 2")
    A(f"s_add_u32 s{Q_T0}, s{Q_T0}, {LDS_SFLAG}")
    A(f"v_mov_b32 v{S_FOWN}, s{Q_T0}")
    A(f"v_and_b32 v{S_FRD}, 3, v1")
    A(f"v_lshlrev_b32 v{S_FRD}, 2, v{S_FRD}")
    A(f"v_add_u32 v{S_FRD}, {LDS_SFLAG}, v{S_FRD}")

def s_barrier(A, ep):
    A("s_waitcnt lgkmcnt(0)")
    sw_arrive(A, S_FOWN, S_FT, ep)
    sw_wait(A, S_FRD, S_FT, ep)

def kg_loads(A):
    A(f"s_lshl_b32 s{Q_T0}, s{Q_PAIR}, 9")
    A(f"s_lshl_b32 s{Q_T1}, s{S_WAVE}, 7")
    A(f"s_add_u32 s{Q_T0}, s{Q_T0}, s{Q_T1}")
    A(f"v_lshl_add_u32 v6, v1, 1, s{Q_T0}")
    for i, p in enumerate((P_LA, P_AI, P_CR, P_CI)):
        A(f"global_load_ushort v{2+i}, v6, s[{p}:{p+1}]")
    A(f"s_lshl_b32 s{Q_T0}, s{Q_PAIR}, 2")
    A(f"s_load_dword s{Q_LDT}, s[{P_LDT}:{P_LDT+1}], s{Q_T0}")
    A(f"s_load_dword s{Q_DSK}, s[{P_DSK}:{P_DSK+1}], s{Q_T0}")

def tr_issue(A):
    A("v_lshrrev_b32 v8, 3, v1")
    A("v_and_b32 v9, 7, v1")
    A("v_lshlrev_b32 v10, 10, v8")
    A("v_lshl_add_u32 v10, v9, 4, v10")
    A(f"s_lshl_b32 s{Q_T0}, s{S_J}, 16")
    A(f"s_lshl_b32 s{Q_T1}, s{S_XCD}, 7")
    A(f"s_add_u32 s{Q_T0}, s{Q_T0}, s{Q_T1}")
    for i in range(8):
        A(f"s_mov_b32 m0, {LDS_K + i*1024}")
        A(f"s_add_u32 s{Q_T1}, s{Q_T0}, {i*8192}")
        A(f"buffer_load_dwordx4 v10, s[{S_X}:{S_X+3}], s{Q_T1} offen lds")

def tr_finish(A, fl, later=0):
    R = 128
    A("v_lshrrev_b32 v11, 4, v1")
    A("v_bfe_u32 v12, v1, 2, 2")
    A("v_lshl_add_u32 v12, v11, 3, v12")
    A("v_lshlrev_b32 v12, 7, v12")
    A("v_and_b32 v13, 3, v1")
    A("v_lshl_add_u32 v12, v13, 3, v12")
    A(f"v_add_u32 v12, {LDS_K}, v12")
    A("v_and_b32 v13, 15, v1")
    A("v_xor_b32 v14, v11, v9")
    A("v_lshlrev_b32 v13, 7, v13")
    A("v_lshl_add_u32 v13, v14, 4, v13")
    A(f"v_add_u32 v13, {LDS_K}, v13")
    A("v_xor_b32 v14, 64, v13")
    A("v_xor_b32 v15, v9, v8")
    A("v_lshlrev_b32 v16, 7, v8")
    A("v_lshl_add_u32 v15, v15, 4, v16")
    A(f"v_add_u32 v15, {LDS_K}, v15")
    A("v_lshlrev_b32 v16, 12, v8")
    A("v_lshl_add_u32 v16, v9, 4, v16")
    A(f"s_lshl_b32 s{Q_T0}, s{S_XCD}, 18")
    A(f"s_lshl_b32 s{Q_T1}, s{S_J}, 7")
    A(f"s_add_u32 s{Q_T0}, s{Q_T0}, s{Q_T1}")
    A(f"s_add_u32 s{Q_T0}, s{Q_T0}, {WS_UT}")
    A(f"s_waitcnt vmcnt({later})")
    for a in range(4):
        for hf in range(2):
            for x in range(2):
                A(f"ds_read_b64_tr_b16 {vr(R+(2*a+hf)*4+2*x,2)}, v12 offset:{hf*4096+x*512+a*32}")
    A("s_waitcnt lgkmcnt(0)")
    for a in range(4):
        for hf in range(2):
            A(f"ds_write_b128 v{13+hf}, {vr(R+(2*a+hf)*4,4)} offset:{a*2048}")
    for i in range(8):
        A(f"ds_read_b128 {vr(R+32+4*i,4)}, v15 offset:{i*1024}")
    for i in range(8):
        A(f"s_waitcnt lgkmcnt({7-i})")
        A(f"s_add_u32 s{Q_T1}, s{Q_T0}, {i*32768}")
        A(f"buffer_store_dwordx4 {vr(R+32+4*i,4)}, v16, s[{S_WS}:{S_WS+3}], s{Q_T1} offen {fl}")

def gate_issue(A):
    R = 128
    A("v_lshlrev_b32 v8, 4, v1")
    A(f"global_load_dwordx4 {vr(R+32,4)}, v8, s[{P_GW}:{P_GW+1}]")
    A(f"s_lshl_b32 s{Q_T0}, s{Q_PAIR}, 13")
    A(f"s_add_u32 s{Q_T1}, s{Q_T0}, 4096")
    for i in range(8):
        A(f"buffer_load_dwordx4 {vr(R+4*i,4)}, v8, s[{S_X}:{S_X+3}], s{Q_T0 + i//4} offen offset:{(i%4)*1024}")

def gate_finish(A, fl, later=0):
    R = 128; S = 168
    A(f"s_waitcnt vmcnt({later})")
    for k in range(4):
        for i in range(8):
            c = "0" if k == 0 else f"v{S+i}"
            A(f"v_dot2_f32_bf16 v{S+i}, v{R+4*i+k}, v{R+32+k}, {c}")
    for sh in ("row_shr:1", "row_shr:2", "row_shr:4", "row_shr:8"):
        for i in range(8):
            A(f"v_add_f32_dpp v{S+i}, v{S+i}, v{S+i} {sh} row_mask:0xf bank_mask:0xf bound_ctrl:1")
    for sh in ("row_bcast:15 row_mask:0xa", "row_bcast:31 row_mask:0xc"):
        for i in range(8):
            A(f"v_add_f32_dpp v{S+i}, v{S+i}, v{S+i} {sh} bank_mask:0xf")
    A("v_mov_b32 v9, 0")
    for i in range(8):
        A(f"v_readlane_b32 s{Q_EX+4+i}, v{S+i}, 63")
    A("s_nop 3")
    for i in range(8):
        A(f"v_writelane_b32 v9, s{Q_EX+4+i}, {i}")
    A("v_cvt_pk_bf16_f32 v9, v9, v9")
    A("v_lshlrev_b32 v9, 16, v9")
    A(f"v_mul_f32 v9, 0xbfb8aa3b, v9")
    A("v_exp_f32 v9, v9")
    A("s_nop 0")
    A("v_add_f32 v9, 1.0, v9")
    A("v_rcp_f32 v9, v9")
    A("s_nop 0")
    A("v_cvt_pk_bf16_f32 v10, v9, v9")
    A("v_lshlrev_b32 v10, 16, v10")
    A("v_sub_f32 v11, 1.0, v10")
    A("v_cvt_pk_bf16_f32 v11, v11, v11")
    A("v_lshlrev_b32 v11, 16, v11")
    A("v_lshlrev_b32 v8, 3, v1")
    A(f"s_lshl_b32 s{Q_T0}, s{Q_PAIR}, 6")
    A(f"s_add_u32 s{Q_T0}, s{Q_T0}, {WS_G}")
    A("s_mov_b64 exec, 0xff")
    A(f"buffer_store_dwordx2 v[10:11], v8, s[{S_WS}:{S_WS+3}], s{Q_T0} offen {fl}")
    A("s_mov_b64 exec, -1")

def cmul_list(A, items):
    for d, a, b in items:
        A(f"v_pk_mul_f32 {vr(d,2)}, {vr(a,2)}, {vr(b,2)} op_sel:[0,0] op_sel_hi:[1,0]")
    for d, a, b in items:
        A(f"v_pk_fma_f32 {vr(d,2)}, {vr(a,2)}, {vr(b,2)}, {vr(d,2)} op_sel:[1,1,0] op_sel_hi:[0,1,1] neg_lo:[1,0,0]")

KB, KA, KD = 64, 96, 40
def kgen(A, later=0):
    w = S_WAVE
    VW, VB, VA = 26, 27, 28
    E1, E8, E256, C0, E2, E4 = 128, 130, 132, 134, 136, 138
    LO = 140
    E32 = 156
    G = 160
    CV = 200
    A(f"s_mul_i32 s{Q_TAB}, s{w}, {TAB_STRIDE}")
    A(f"s_add_u32 s{Q_TAB}, s{Q_TAB}, {LDS_TAB}")
    A(f"v_lshl_add_u32 v{VW}, v1, 2, s{Q_TAB}")
    A("v_and_b32 v8, 15, v1")
    A("v_lshrrev_b32 v9, 5, v1")
    A(f"v_lshl_add_u32 v9, v9, 4, s{Q_TAB}")
    A("v_mov_b32 v10, 272")
    A(f"v_mad_u32_u24 v{VB}, v8, v10, v9")
    A("v_and_b32 v11, 7, v1")
    A("v_lshlrev_b32 v11, 2, v11")
    A("v_mov_b32 v12, 0xcbaaa988")
    A("v_lshrrev_b32 v11, v11, v12")
    A("v_and_b32 v11, 15, v11")
    A("v_and_b32 v12, 24, v1")
    A("v_cmp_eq_u32 vcc, 8, v12")
    A(f"s_mov_b32 s{Q_EX}, 0x0000ffff")
    A(f"s_mov_b32 s{Q_EX+1}, 0x0000ffff")
    A(f"s_mov_b32 s{Q_EX+2}, 0xffff0000")
    A(f"s_mov_b32 s{Q_EX+3}, 0xffff0000")
    A("v_cndmask_b32 v11, v8, v11, vcc")
    A(f"v_mad_u32_u24 v{VA}, v11, v10, v9")
    A("s_waitcnt lgkmcnt(0)")
    A(f"s_lshl_b32 s{Q_T0}, s{Q_C}, 4")
    A(f"s_lshr_b32 s{Q_LDT}, s{Q_LDT}, s{Q_T0}")
    A(f"s_lshl_b32 s{Q_LDT}, s{Q_LDT}, 16")
    A(f"s_lshr_b32 s{Q_DSK}, s{Q_DSK}, s{Q_T0}")
    A(f"s_lshl_b32 s{Q_DSK}, s{Q_DSK}, 16")
    A(f"v_mov_b32 v10, {LOG2E}")
    A(f"v_mul_f32 v8, s{Q_LDT}, v10")
    A("v_exp_f32 v8, v8")
    A(f"s_waitcnt vmcnt({later})")
    for i in range(4): A(f"v_lshlrev_b32 v{2+i}, 16, v{2+i}")
    A("v_mul_f32 v2, v10, v2")
    A("v_exp_f32 v2, v2")
    A("v_cvt_pk_bf16_f32 v8, v8, v8")
    A("v_lshlrev_b32 v8, 16, v8")
    A("v_cvt_pk_bf16_f32 v2, v2, v2")
    A("v_lshlrev_b32 v2, 16, v2")
    A("v_mul_f32 v2, v2, v8")
    A("v_mul_f32 v3, v3, v8")
    A("v_mul_f32 v2, 0xbfb8aa3b, v2")
    A(f"v_mul_f32 v3, {INV2PI}, v3")
    A("v_add_f32 v8, v8, v8")
    A(f"v_mul_f32 v{C0}, v4, v8")
    A(f"v_mul_f32 v{C0+1}, v5, v8")
    A("v_mul_f32 v10, 8.0, v2".replace("8.0", "0x41000000"))
    A("v_mul_f32 v11, 0x41000000, v3")
    A("v_mul_f32 v12, 0x43800000, v2")
    A("v_mul_f32 v13, 0x43800000, v3")
    for r in (11, 3, 13): A(f"v_fract_f32 v{r}, v{r}")
    for (m, f, e) in ((10, 11, E8), (2, 3, E1), (12, 13, E256)):
        A(f"v_exp_f32 v{m}, v{m}")
        A(f"v_cos_f32 v{e}, v{f}")
        A(f"v_sin_f32 v{e+1}, v{f}")
    for (m, e) in ((10, E8), (2, E1), (12, E256)):
        A(f"v_pk_mul_f32 {vr(e,2)}, {vr(e,2)}, {vr(m,2)} op_sel:[0,0] op_sel_hi:[1,0]")
    cvi = [0]
    def put(src, slot, neg=False):
        t = CV + cvi[0] % 8; cvi[0] += 1
        A(f"v_cvt_pk_bf16_f32 v{t}, v{src}, {'-' if neg else ''}v{src+1}")
        A(f"ds_write_b32 v{VW}, v{t} offset:{slot*272}")
    def frag_reads(dst, va, half):
        A(f"s_mov_b64 exec, s[{Q_EX+2*half}:{Q_EX+2*half+1}]")
        for ks in range(8):
            A(f"ds_read_b128 {vr(dst+4*ks,4)}, v{va} offset:{ks*32}")
        A("s_mov_b64 exec, -1")
    L = lambda st, k: LO + 8 * st + 2 * k
    A(f"v_mov_b32 v{L(0,0)}, 1.0"); A(f"v_mov_b32 v{L(0,0)+1}, 0")
    A(f"v_mov_b32 v{L(0,1)}, v{E8}"); A(f"v_mov_b32 v{L(0,1)+1}, v{E8+1}")
    cmul_list(A, [(L(0,2), E8, E8), (E2, E1, E1), (G+2, C0, E1), (G+16, C0, E8)])
    cmul_list(A, [(L(0,3), L(0,2), E8), (E32, L(0,2), L(0,2)), (E4, E2, E2), (G+4, C0, E2), (G+6, G+2, E2)])
    for it in range(8):
        st = it % 2
        if it < 7:
            cmul_list(A, [(L(1-st, k), L(st, k), E32) for k in range(4)])
        for k in range(4): put(L(st, k), (4 * it + k) % 16)
        if it == 3: frag_reads(KB, VB, 0)
    frag_reads(KB, VB, 1)
    Gp = lambda p: C0 if p == 0 else G + 2 * p
    cmul_list(A, [(Gp(4 + p), Gp(p), E4) for p in range(4)])
    H = G + 18
    cmul_list(A, [(H + 2 * i, Gp(2 * i), E256) for i in range(5)])
    for p in range(8): put(Gp(p), p, True)
    for i in range(5): put(H + 2 * i, 8 + i, True)
    frag_reads(KA, VA, 0)
    P5 = G + 2; P7 = G + 8
    cmul_list(A, [(P5 + 2 * i, H + 4 * i, E256) for i in range(3)])
    cmul_list(A, [(P7 + 2 * i, P5 + 2 * i, E256) for i in range(3)])
    for i in range(3): put(P5 + 2 * i, i, True)
    prev = (P7, P7 + 4)
    for b in range(4):
        cur = (H + 4 * (b % 2), H + 4 * (b % 2) + 2)
        cmul_list(A, [(cur[0], prev[0], E256), (cur[1], prev[1], E256)])
        if b == 0:
            for i in range(3): put(P7 + 2 * i, 4 + i, True)
        else:
            put(prev[0], 8 + 2 * (b - 1), True); put(prev[1], 9 + 2 * (b - 1), True)
        prev = cur
    put(prev[0], 14, True); put(prev[1], 15, True)
    frag_reads(KA, VA, 1)
    for ks in range(8):
        A(f"s_waitcnt lgkmcnt({7-ks})")
        c = "0" if ks == 0 else vr(KD, 16)
        A(f"v_mfma_f32_32x32x16_bf16 {vr(KD,16)}, {vr(KA+4*ks,4)}, {vr(KB+4*ks,4)}, {c}")

def kgen_exchange_write(A):
    t2 = LDS_TAB + 2 * TAB_STRIDE; t3 = LDS_TAB + 3 * TAB_STRIDE
    A(f"s_mul_i32 s{Q_T0}, s{Q_C}, {t3-LDS_XCH}")
    A(f"s_add_u32 s{Q_T0}, s{Q_T0}, {LDS_XCH}")
    A(f"s_mul_i32 s{Q_T1}, s{Q_C}, {t2-LDS_XCH-3072}")
    A(f"s_add_u32 s{Q_T1}, s{Q_T1}, {LDS_XCH+3072}")
    A(f"v_lshl_add_u32 v26, v1, 4, s{Q_T0}")
    A(f"v_lshl_add_u32 v27, v1, 4, s{Q_T1}")
    A(f"s_mul_i32 s{Q_T0}, s{Q_C}, {K_STRIDE}")
    A(f"s_add_u32 s{Q_T0}, s{Q_T0}, {LDS_K}")
    A("v_and_b32 v8, 31, v1")
    A("v_lshrrev_b32 v9, 5, v1")
    A(f"v_lshl_add_u32 v8, v8, 4, s{Q_T0}")
    A(f"v_lshl_add_u32 v10, v1, 3, s{Q_T0}")
    A("v_mov_b32 v12, 0"); A("v_mov_b32 v13, 0")
    A("s_nop 1")
    l1 = A.newlabel("KX"); l2 = A.newlabel("KX")
    A(f"s_cmp_eq_u32 s{Q_NH}, 0")
    A(f"s_cbranch_scc0 {l1}")
    A(f"ds_write_b128 v27, {vr(KD+12,4)}")
    A(f"s_branch {l2}")
    A.label(l1)
    for q in range(3): A(f"ds_write_b128 v26, {vr(KD+4*q,4)} offset:{q*1024}")
    A.label(l2)

def kgen_final(A):
    X = 64
    l1 = A.newlabel("KF"); l2 = A.newlabel("KF")
    A(f"s_cmp_eq_u32 s{Q_NH}, 0")
    A(f"s_cbranch_scc0 {l1}")
    for q in range(3): A(f"ds_read_b128 {vr(X+4*q,4)}, v26 offset:{q*1024}")
    A("ds_write_b64 v10, v[12:13]")
    A("v_cmp_eq_u32 vcc, 0, v1")
    A(f"v_mov_b32 v11, s{Q_DSK}")
    A("v_lshl_add_u32 v14, v9, 3, v8")
    A("v_lshl_add_u32 v15, v9, 9, v8")
    A("v_cndmask_b32 v11, 0, v11, vcc")
    A(f"v_add_f32 v{KD}, v{KD}, v11")
    A("s_waitcnt lgkmcnt(1)")
    for k in range(6): A(f"v_pk_add_f32 {vr(KD+2*k,2)}, {vr(KD+2*k,2)}, {vr(X+2*k,2)}")
    for k in range(4): A(f"v_cvt_pk_bf16_f32 v{X+k}, v{KD+2*k}, v{KD+2*k+1}")
    a, b, c = KD + 8, KD + 9, KD + 10
    for k, (p, q) in enumerate(((a, a), (a, b), (b, b), (c, c))): A(f"v_cvt_pk_bf16_f32 v{X+4+k}, v{p}, v{q}")
    A(f"ds_write_b64 v14, {vr(X,2)} offset:448")
    A(f"ds_write_b64 v14, {vr(X+2,2)} offset:960")
    A(f"ds_write_b128 v15, {vr(X+4,4)} offset:1472")
    A(f"s_branch {l2}")
    A.label(l1)
    A(f"ds_read_b128 {vr(X,4)}, v27")
    A(f"s_mul_i32 s{Q_T0}, s{Q_C}, {U_STRIDE}")
    A(f"s_add_u32 s{Q_T0}, s{Q_T0}, {LDS_U}")
    A("v_and_b32 v11, 15, v1")
    A(f"v_lshl_add_u32 v11, v11, 2, s{Q_T0}")
    A("ds_write_b32 v11, v12")
    A("v_and_b32 v11, 1, v1")
    A("v_cmp_eq_u32 vcc, 1, v11")
    A("v_lshl_add_u32 v15, v9, 10, v8")
    A("s_waitcnt lgkmcnt(1)")
    for k in range(2): A(f"v_pk_add_f32 {vr(KD+12+2*k,2)}, {vr(KD+12+2*k,2)}, {vr(X+2*k,2)}")
    for k in range(2):
        a, b = KD + 12 + 2 * k, KD + 13 + 2 * k
        A(f"v_cndmask_b32 v11, v{a}, v{b}, vcc")
        A(f"v_cvt_pk_bf16_f32 v{X+4*k}, v{a}, v{a}")
        A(f"v_cvt_pk_bf16_f32 v{X+4*k+1}, v{a}, v{a}")
        A(f"v_cvt_pk_bf16_f32 v{X+4*k+2}, v11, v{b}")
        A(f"v_cvt_pk_bf16_f32 v{X+4*k+3}, v{b}, v{b}")
        A(f"ds_write_b128 v15, {vr(X+4*k,4)} offset:{2496+512*k}")
    A.label(l2)

UL = 56
def ut_issue(A, fl):
    A(f"s_lshl_b32 s{Q_T0}, s{Q_PAIR}, 13")
    A(f"s_lshl_b32 s{Q_T1}, s{S_WAVE}, 11")
    A(f"s_add_u32 s{Q_T0}, s{Q_T0}, s{Q_T1}")
    A(f"s_add_u32 s{Q_T0}, s{Q_T0}, {WS_UT}")
    A("v_lshlrev_b32 v16, 4, v1")
    for i in range(2):
        A(f"buffer_load_dwordx4 {vr(UL+4*i,4)}, v16, s[{S_WS}:{S_WS+3}], s{Q_T0} offen offset:{i*1024} {fl}")

def ut_write(A):
    A(f"s_mul_i32 s{Q_T0}, s{Q_C}, {U_STRIDE}")
    A(f"s_lshl_b32 s{Q_T1}, s{Q_NH}, 11")
    A(f"s_add_u32 s{Q_T0}, s{Q_T0}, s{Q_T1}")
    A(f"s_add_u32 s{Q_T0}, s{Q_T0}, {LDS_U+64}")
    A(f"v_add_u32 v16, s{Q_T0}, v16")
    A("s_waitcnt vmcnt(0)")
    for i in range(2):
        A(f"ds_write_b128 v16, {vr(UL+4*i,4)} offset:{i*1024}")

def carry_zero(A):
    A("v_min_u32 v8, 35, v1")
    A(f"v_lshlrev_b32 v8, 3, v8")
    A(f"v_add_u32 v8, {LDS_CARR}, v8")
    A("v_mov_b32 v10, 0"); A("v_mov_b32 v11, 0")
    A("ds_write_b64 v8, v[10:11]")

def k_dump(A):
    A(f"s_mul_i32 s{Q_T0}, s{Q_C}, {K_STRIDE}")
    A(f"s_lshl_b32 s{Q_T1}, s{Q_NH}, 11")
    A(f"s_add_u32 s{Q_T0}, s{Q_T0}, s{Q_T1}")
    A(f"s_add_u32 s{Q_T0}, s{Q_T0}, {LDS_K+448}")
    A(f"v_lshl_add_u32 v8, v1, 4, s{Q_T0}")
    A("ds_read_b128 v[64:67], v8")
    A("ds_read_b128 v[68:71], v8 offset:1024")
    A(f"s_lshl_b32 s{Q_T0}, s{Q_PAIR}, 13")
    A(f"s_lshl_b32 s{Q_T1}, s{S_WAVE}, 11")
    A(f"s_add_u32 s{Q_T0}, s{Q_T0}, s{Q_T1}")
    A(f"s_add_u32 s{Q_T0}, s{Q_T0}, {13<<20}")
    A("v_lshlrev_b32 v8, 4, v1")
    A("s_waitcnt lgkmcnt(0)")
    A(f"buffer_store_dwordx4 v[64:67], v8, s[{S_WS}:{S_WS+3}], s{Q_T0} offen")
    A(f"buffer_store_dwordx4 v[68:71], v8, s[{S_WS}:{S_WS+3}], s{Q_T0} offen offset:1024")
    A("s_waitcnt vmcnt(0)")

CA, CACC, CB, CT_ = 128, 64, 40, 2
VAa, VBa, VST, VHD, VCR = 26, 27, 28, 29, 30
def conv_setup(A):
    A("v_lshrrev_b32 v8, 5, v1")
    A("v_bfe_u32 v9, v1, 2, 2")
    A("v_bfe_u32 v10, v1, 4, 1")
    A("v_and_b32 v11, 3, v1")
    A("v_lshl_add_u32 v12, v10, 2, v11")
    A("v_sub_u32 v12, v12, v8")
    A("v_lshlrev_b32 v12, 3, v12")
    A("v_sub_u32 v12, v12, v9")
    A(f"s_mul_i32 s{Q_T0}, s{Q_C}, {K_STRIDE}")
    A(f"s_add_u32 s{Q_T0}, s{Q_T0}, {LDS_K+88}")
    A(f"v_lshl_add_u32 v{VAa}, v12, 3, s{Q_T0}")
    A("v_lshl_add_u32 v12, v8, 1, v10")
    A("v_lshl_add_u32 v12, v12, 2, v9")
    A("v_add_u32 v12, v12, v11")
    A(f"s_mul_i32 s{Q_T0}, s{Q_C}, {U_STRIDE}")
    A(f"s_add_u32 s{Q_T0}, s{Q_T0}, {LDS_U+8}")
    A(f"v_lshl_add_u32 v{VBa}, v12, 3, s{Q_T0}")
    A(f"s_lshl_b32 s{Q_T0}, s{Q_C}, 1")
    A(f"s_add_u32 s{Q_T0}, s{Q_T0}, {LDS_STG}")
    A(f"v_lshl_add_u32 v{VST}, v1, 2, s{Q_T0}")
    A("v_lshlrev_b32 v12, 2, v1")
    A(f"v_add_u32 v13, {LDS_DUM}, v12")
    A(f"s_lshl_b32 s{Q_T0}, s{Q_C}, 7")
    A(f"s_add_u32 s{Q_T0}, s{Q_T0}, {LDS_HEAD}")
    A(f"v_add_u32 v12, s{Q_T0}, v12")
    A("v_cmp_gt_u32 vcc, 4, v1")
    A(f"s_mul_i32 s{Q_T0}, s{Q_C}, 144")
    A(f"s_add_u32 s{Q_T0}, s{Q_T0}, {LDS_CARR}")
    A(f"v_cndmask_b32 v{VHD}, v13, v12, vcc")
    A("v_cmp_eq_u32 vcc, 63, v1")
    A(f"v_mov_b32 v12, s{Q_T0}")
    A("s_nop 0")
    A(f"v_cndmask_b32 v{VCR}, v13, v12, vcc")

def conv_epi(T, acc):
    D = lambda q, e: acc + 4 * q + e
    Z2 = [CT_ + q for q in range(4)]; Z1 = [CT_ + 4 + q for q in range(4)]; Y = [CT_ + 8 + q for q in range(4)]
    out = []
    def level(dst, src, base):
        for q in range(4):
            if q == 0:
                out.append((0, f"v_add_f32_dpp v{dst[0]}, v{src[0]}, v{base[0]} wave_shr:1 row_mask:0xf bank_mask:0xf bound_ctrl:1"))
            else:
                out.append((0, f"v_add_f32_dpp v{dst[q]}, v{src[q-1]}, v{base[q]} wave_ror:1 row_mask:0xf bank_mask:0xf"))
                out.append((0, f"v_add_f32_dpp v{dst[q]}, v{src[q]}, v{base[q]} wave_shr:1 row_mask:0xf bank_mask:0xf"))
    level(Z2, [D(q, 3) for q in range(4)], [D(q, 2) for q in range(4)])
    level(Z1, Z2, [D(q, 1) for q in range(4)])
    level(Y, Z1, [D(q, 0) for q in range(4)])
    P = CT_ + 12
    out.append((0, f"v_cvt_pk_bf16_f32 v{P}, v{Y[0]}, v{Y[1]}"))
    out.append((0, f"v_cvt_pk_bf16_f32 v{P+1}, v{Y[2]}, v{Y[3]}"))
    out.append((1, f"ds_write_b32 v{VHD}, v{Y[0]} offset:{T*16}"))
    if T < 7:
        for k, r in enumerate((Z1[3], Z2[3], D(3, 3))):
            out.append((1, f"ds_write_b32 v{VCR}, v{r} offset:{(T+1)*16+4*k}"))
    for q in range(4):
        op = "ds_write_b16_d16_hi" if q & 1 else "ds_write_b16"
        out.append((1, f"{op} v{VST}, v{P+q//2} offset:{T*1024+q*256}"))
    return out

def conv_body(A, tiles, LOOK=5, PER=5):
    lg = Lg(A)
    mf = []
    for s in range(32):
        for ti, T in enumerate(tiles):
            if s <= 4 * T + 3: mf.append((ti, T, s))
    loads = []; first = {}
    lastB = {}
    for m, (ti, T, s) in enumerate(mf):
        for key in (("B", s), ("A", 4 * T - s + 3)):
            if key not in first: first[key] = m; loads.append(key)
        lastB[s] = m
    ids = {}
    def issue(key):
        k, i = key
        for x in range(2):
            if k == "A": idn = lg.op(f"ds_read_b64_tr_b16 {vr(CA+4*i+2*x,2)}, v{VAa} offset:{128*i+32*(1-x)}")
            else: idn = lg.op(f"ds_read_b64_tr_b16 {vr(CB+4*(i%4)+2*x,2)}, v{VBa} offset:{128*i+32*x}")
        ids[key] = idn
    li = 0
    fill = []; fill_at = []
    started = set()
    for m, (ti, T, s) in enumerate(mf):
        while li < len(loads) and first[loads[li]] <= m + LOOK:
            k, i = loads[li]
            if k == "B" and i >= 4 and lastB[i - 4] >= m: break
            if lg.n - lg.done > 12 and first[loads[li]] > m: break
            issue(loads[li]); li += 1
        lg.wait(max(ids[("B", s)], ids[("A", 4 * T - s + 3)]))
        acc = CACC + 16 * ti
        c = vr(acc, 16) if ti in started else "0"
        started.add(ti)
        A(f"v_mfma_f32_32x32x16_bf16 {vr(acc,16)}, {vr(CA+4*(4*T-s+3),4)}, {vr(CB+4*(s%4),4)}, {c}")
        if s == 4 * T + 3:
            fill_at.append((m + 2, conv_epi(T, acc)))
        if fill_at and fill_at[0][0] <= m and not fill:
            fill = fill_at.pop(0)[1]
        for _ in range(PER):
            if fill:
                isl, ins = fill.pop(0)
                if isl: lg.op(ins)
                else: A(ins)
    rest = fill
    for isl, ins in rest: A(ins)
    A("s_nop 7"); A("s_nop 3")
    for _, e in fill_at:
        for isl, ins in e: A(ins)

def conv(A):
    l1 = A.newlabel("CV"); l2 = A.newlabel("CV")
    A(f"s_cmp_eq_u32 s{Q_NH}, 0")
    A(f"s_cbranch_scc0 {l1}")
    conv_body(A, [0, 3, 4, 7])
    A(f"s_branch {l2}")
    A.label(l1)
    conv_body(A, [1, 2, 5, 6])
    A.label(l2)

def conv_final(A, fl):
    w = S_WAVE
    A("v_bfe_u32 v8, v1, 3, 1")
    A("v_bfe_u32 v9, v1, 2, 1")
    A("v_and_b32 v10, 3, v1")
    A(f"v_lshl_add_u32 v8, v8, 2, s{w}")
    A("v_lshl_add_u32 v11, v8, 2, v10")
    A("v_lshlrev_b32 v11, 2, v11")
    A("v_lshl_add_u32 v12, v9, 7, v11")
    A("v_mul_u32_u24 v13, 144, v9")
    A("v_add_u32 v13, v13, v11")
    A(f"v_add_u32 v12, {LDS_HEAD}, v12")
    A(f"v_add_u32 v13, {LDS_CARR}, v13")
    A("ds_read_b32 v12, v12")
    A("ds_read_b32 v13, v13")
    A("v_lshl_add_u32 v8, v8, 8, v10")
    A("v_lshl_add_u32 v8, v8, 1, v9")
    A("v_lshlrev_b32 v8, 1, v8")
    A(f"v_add_u32 v8, {LDS_STG}, v8")
    A(f"s_lshl_b32 s{Q_T1}, s{w}, 10")
    A(f"s_add_u32 s{Q_T0}, s{Q_T1}, {LDS_STG}")
    A(f"v_lshl_add_u32 v9, v1, 4, s{Q_T0}")
    A("v_lshlrev_b32 v10, 4, v1")
    A(f"s_lshl_b32 s{Q_T0}, s{Q_PAIR}, 13")
    A(f"s_add_u32 s{Q_T0}, s{Q_T0}, s{Q_T1}")
    A(f"s_add_u32 s{Q_T0}, s{Q_T0}, {WS_A}")
    A(f"s_add_u32 s{Q_T1}, s{Q_T0}, 4096")
    A("s_waitcnt lgkmcnt(0)")
    A("v_add_f32 v12, v12, v13")
    A("v_cvt_pk_bf16_f32 v12, v12, v12")
    A("ds_write_b16 v8, v12")
    A("ds_read_b128 v[64:67], v9")
    A("ds_read_b128 v[68:71], v9 offset:4096")
    A("s_waitcnt lgkmcnt(1)")
    A(f"buffer_store_dwordx4 v[64:67], v10, s[{S_WS}:{S_WS+3}], s{Q_T0} offen {fl}")
    A("s_waitcnt lgkmcnt(0)")
    A(f"buffer_store_dwordx4 v[68:71], v10, s[{S_WS}:{S_WS+3}], s{Q_T1} offen {fl}")
```

```python
import sys; sys.path.insert(0, "gen")
import parts
parts.TS = True
KDUMP = False
for a in sys.argv[2:]: exec(a)
from g2 import *
from ssm import *
A = Asm()
A.raw("; @launch kernel=k1_kernel grid=(256,1,1) block=(512,1,1) lds=163840")
A.raw("; @launch kernel=k2_kernel grid=(256,1,1) block=(256,1,1) lds=163840")
A.raw("; @launch kernel=k3_kernel grid=(256,1,1) block=(256,1,1) lds=163840")
A.raw('.amdgcn_target "amdgcn-amd-amdhsa--gfx950"')
kernel_header(A, "k1_kernel")
ts_real(A,0); ts(A,1)
prologue(A, "K1_END")
init_lds_flags(A)
A("s_waitcnt lgkmcnt(0)")
srd(A, S_X, P_U, L*D*2); srd(A, S_W1, P_W1, D*F*2); srd(A, S_WS, P_WS, WS_BYTES)
A("s_barrier")
A(f"s_cmp_ge_u32 s{S_WAVE}, 4")
A("s_cbranch_scc1 K1_SSM")
A(f"s_cmp_ge_u32 s{S_J}, 28")
A("s_cbranch_scc1 K1_END")
g1_setup(A)
for c in range(4):
    for x in g1_dma_list(c): A(x)
g1_setup2(A)
ts(A,2)
g1_main(A)
ts(A,3)
g1_epilogue(A)
ts(A,4)
ts_dump(A,0,S_WAVE)
A("s_endpgm")
A.label("K1_SSM")
A(f"s_mov_b32 s85, s{S_WAVE}")
A(f"s_sub_u32 s{S_WAVE}, s{S_WAVE}, 4")
s_setup(A)
A(f"s_cmp_eq_u32 s{S_WAVE}, 1")
A("s_cbranch_scc1 K1_GATE")
A(f"s_cmp_eq_u32 s{S_WAVE}, 0")
A("s_cbranch_scc0 K1_END")
tr_issue(A); ts(A,2); tr_finish(A, ""); ts(A,3)
ts_dump(A,0,85)
A("s_endpgm")
A.label("K1_GATE")
gate_issue(A); ts(A,2); gate_finish(A, ""); ts(A,3)
ts_dump(A,0,85)
A.label("K1_END")
A("s_endpgm")
kernel_header(A, "k2_kernel")
ts_real(A,0); ts(A,1)
prologue(A, "K2_END")
init_lds_flags(A)
carry_zero(A)
s_setup(A)
A("s_waitcnt lgkmcnt(0)")
srd(A, S_WS, P_WS, WS_BYTES)
kg_loads(A)
ut_issue(A, "")
A("s_barrier")
kgen(A, later=2)
ts(A,2)
kgen_exchange_write(A)
s_barrier(A, 1)
kgen_final(A)
ut_write(A)
conv_setup(A)
s_barrier(A, 2)
ts(A,3)
if KDUMP: k_dump(A)
conv(A)
ts(A,4)
s_barrier(A, 3)
conv_final(A, "")
ts(A,5)
ts_dump(A,1,S_WAVE)
A.label("K2_END")
A("s_endpgm")
kernel_header(A, "k3_kernel")
ts_real(A,0); ts(A,1)
prologue(A, "K3_END")
g2_setup(A)
A("s_waitcnt lgkmcnt(0)")
srd(A, S_W2, P_W2, D*F*2); srd(A, S_WS, P_WS, WS_BYTES); srd(A, S_OUT, P_OUT, L*D*2)
g2_setup2(A)
ts(A,2)
g2_main(A)
ts(A,3)
g2_reduce_write(A)
A("s_waitcnt lgkmcnt(0)")
A("s_barrier")
ts(A,4)
g2_final(A)
ts(A,5)
ts_dump(A,2,S_WAVE)
A.label("K3_END")
A("s_endpgm")
kernel_desc(A, "k1_kernel", 256)
kernel_desc(A, "k2_kernel", 256)
kernel_desc(A, "k3_kernel", 256)
open(sys.argv[1], "w").write(A.text())
```

```python
from asmlib import *
MAP = 1

L, D, F, N = 2048, 512, 1792, 128
WS_H    = 0
WS_UT   = 8 << 20
WS_A    = 10 << 20
WS_G    = 12 << 20
WS_FLAG = (12 << 20) + 65536
WS_BYTES = 16 << 20
WS_TS = 15 << 20
TS = False
S_TS = 86
LDS_TOTAL = 163840
LDS_SSM = 131072
LDS_K   = LDS_SSM
K_STRIDE = 4544
LDS_U   = LDS_SSM + 9088
U_STRIDE = 4160
LDS_STG = LDS_SSM + 17408
LDS_TAB = LDS_SSM + 9216
TAB_STRIDE = 4352
LDS_MISC = LDS_SSM + 26624
LDS_GFLAG = LDS_MISC
LDS_SFLAG = LDS_MISC + 16
LDS_SPILL = LDS_MISC + 64
LDS_DUMMY = LDS_MISC + 512

S_X, S_W1, S_W2, S_WS, S_OUT = 4, 8, 12, 16, 20
S_XCD, S_J, S_WAVE = 24, 25, 26
P_U, P_LA, P_AI, P_CR, P_CI, P_LDT, P_DSK = 36, 38, 40, 42, 44, 46, 48
P_W1, P_W2, P_GW, P_OUT, P_DBG, P_WS = 52, 54, 56, 58, 60, 62

def srd(A, s, p, nbytes):
    A(f"s_mov_b32 s{s}, s{p}")
    A(f"s_and_b32 s{s+1}, s{p+1}, 0xffff")
    A(f"s_mov_b32 s{s+2}, {nbytes}")
    A(f"s_mov_b32 s{s+3}, 0x20000")

def prologue(A, exit_label):
    A(f"s_cmp_ge_u32 s2, 256")
    A(f"s_cbranch_scc1 {exit_label}")
    A("s_load_dwordx16 s[36:51], s[0:1], 0")
    A("s_load_dwordx8 s[52:59], s[0:1], 64")
    A("s_load_dwordx4 s[60:63], s[0:1], 96")
    A("v_lshrrev_b32 v2, 6, v0")
    A("v_and_b32 v1, 63, v0")
    A(f"v_readfirstlane_b32 s{S_WAVE}, v2")
    A(f"s_and_b32 s{S_XCD}, s2, 7")
    A(f"s_lshr_b32 s{S_J}, s2, 3")

def init_lds_flags(A):
    A("v_and_b32 v2, 7, v1")
    A("v_lshlrev_b32 v2, 2, v2")
    A(f"v_add_u32 v2, {LDS_MISC}, v2")
    A("v_mov_b32 v3, 0")
    A("ds_write_b32 v2, v3")

def sw_arrive(A, vown, vtmp, epoch):
    A(f"v_mov_b32 v{vtmp}, {epoch}")
    A(f"ds_write_b32 v{vown}, v{vtmp}")

def sw_poll_issue(A, vrd, vtmp):
    A(f"ds_read_b32 v{vtmp}, v{vrd}")

def sw_wait(A, vrd, vtmp, epoch, issued=False, sleep=0):
    lab = A.newlabel("SW")
    done = A.newlabel("SWD")
    if issued:
        A("s_waitcnt lgkmcnt(0)")
        A(f"v_cmp_gt_u32 vcc, {epoch}, v{vtmp}")
        A(f"s_cbranch_vccz {done}")
    if sleep and not issued:
        A(f"ds_read_b32 v{vtmp}, v{vrd}")
        A("s_waitcnt lgkmcnt(0)")
        A(f"v_cmp_gt_u32 vcc, {epoch}, v{vtmp}")
        A(f"s_cbranch_vccz {done}")
        issued = True
    A.label(lab)
    if sleep: A(f"s_sleep {sleep}")
    A(f"ds_read_b32 v{vtmp}, v{vrd}")
    A("s_waitcnt lgkmcnt(0)")
    A(f"v_cmp_gt_u32 vcc, {epoch}, v{vtmp}")
    A(f"s_cbranch_vccnz {lab}")
    if issued:
        A.label(done)

G1_XD, G1_WD = 2, 6
G1_XR = 10
G1_WR = 18
G_FOWN, G_FRD, G_FT = 22, 23, 24
G1_ACC = 64
G1_FR = 128
G1_TMP = 160
S_RB, S_CB, S_XO, S_WO, S_M0X, S_T0, S_T1, S_HO = 64, 65, 66, 67, 68, 69, 70, 71
S_C1, S_CL = 72, 74

def g1_setup(A):
    w = S_WAVE
    if MAP == 0:
        A(f"s_and_b32 s{S_RB}, s{S_J}, 1")
        A(f"s_lshl_b32 s{S_T0}, s{S_XCD}, 1")
        A(f"s_add_u32 s{S_RB}, s{S_RB}, s{S_T0}")
        A(f"s_lshr_b32 s{S_CB}, s{S_J}, 1")
    else:
        A(f"s_and_b32 s{S_RB}, s{S_J}, 3")
        A(f"s_and_b32 s{S_T0}, s{S_XCD}, 6")
        A(f"s_lshl_b32 s{S_T0}, s{S_T0}, 1")
        A(f"s_add_u32 s{S_RB}, s{S_RB}, s{S_T0}")
        A(f"s_and_b32 s{S_T0}, s{S_XCD}, 1")
        A(f"s_mul_i32 s{S_T0}, s{S_T0}, 7")
        A(f"s_lshr_b32 s{S_CB}, s{S_J}, 2")
        A(f"s_add_u32 s{S_CB}, s{S_CB}, s{S_T0}")
    A("v_lshrrev_b32 v30, 3, v1")
    A("v_and_b32 v31, 7, v1")
    A("v_lshrrev_b32 v32, 4, v1")
    A("v_xor_b32 v33, v31, v32")
    A("v_xor_b32 v34, 4, v33")
    A("v_lshlrev_b32 v30, 10, v30")
    A(f"v_lshl_add_u32 v{G1_XD}, v33, 4, v30")
    A(f"v_lshl_add_u32 v{G1_XD+1}, v34, 4, v30")
    A(f"v_add_u32 v{G1_XD+1}, {8192-1024}, v{G1_XD+1}")
    A(f"v_add_u32 v{G1_XD+2}, {2*(8192-1024)}, v{G1_XD}")
    A(f"v_add_u32 v{G1_XD+3}, {2*(8192-1024)}, v{G1_XD+1}")
    A(f"s_lshl_b32 s{S_XO}, s{S_RB}, 17")
    A(f"s_lshl_b32 s{S_T0}, s{w}, 15")
    A(f"s_add_u32 s{S_XO}, s{S_XO}, s{S_T0}")
    A("v_and_b32 v31, 15, v1")
    A("v_lshlrev_b32 v33, 2, v32")
    A("v_xor_b32 v31, v31, v33")
    A(f"v_mul_u32_u24 v33, {2*F}, v32")
    A(f"v_lshl_add_u32 v{G1_WD}, v31, 4, v33")
    for i in range(1, 4):
        A(f"v_add_u32 v{G1_WD+i}, {i*(4*2*F-1024)}, v{G1_WD}")
    A(f"s_mul_i32 s{S_WO}, s{w}, {16*2*F}")
    A(f"s_lshl_b32 s{S_T0}, s{S_CB}, 8")
    A(f"s_add_u32 s{S_WO}, s{S_WO}, s{S_T0}")
    A(f"s_lshl_b32 s{S_M0X}, s{w}, 12")

def g1_setup2(A):
    w = S_WAVE
    A("v_and_b32 v30, 31, v1")
    A("v_lshrrev_b32 v31, 5, v1")
    A("v_lshrrev_b32 v32, 1, v30")
    A("v_and_b32 v32, 7, v32")
    A("v_xor_b32 v32, v32, v31")
    A(f"s_lshr_b32 s{S_T0}, s{w}, 1")
    A(f"s_lshl_b32 s{S_T0}, s{S_T0}, 13")
    A(f"v_lshlrev_b32 v30, 7, v30")
    A(f"v_add_u32 v30, s{S_T0}, v30")
    for s in range(4):
        A(f"v_xor_b32 v33, {2*s}, v32")
        A(f"v_lshl_add_u32 v{G1_XR+s}, v33, 4, v30")
        A(f"v_add_u32 v{G1_XR+4+s}, 0x10000, v{G1_XR+s}")
    A("v_bfe_u32 v32, v1, 2, 2")
    A("v_bfe_u32 v33, v1, 4, 1")
    A("v_bfe_u32 v34, v1, 1, 1")
    A("v_lshl_add_u32 v33, v33, 1, v34")
    A(f"s_and_b32 s{S_T0}, s{w}, 1")
    A(f"s_lshl_b32 s{S_T0}, s{S_T0}, 3")
    A(f"v_add_u32 v33, s{S_T0}, v33")
    A("v_lshlrev_b32 v34, 2, v32")
    A("v_xor_b32 v33, v33, v34")
    A("v_lshl_add_u32 v32, v31, 3, v32")
    A("v_lshlrev_b32 v32, 8, v32")
    A("v_lshl_add_u32 v32, v33, 4, v32")
    A("v_and_b32 v34, 1, v1")
    A("v_lshl_add_u32 v32, v34, 3, v32")
    A(f"v_add_u32 v{G1_WR}, 16384, v32")
    A(f"v_xor_b32 v{G1_WR+1}, 64, v{G1_WR}")
    A(f"v_add_u32 v{G1_WR+2}, 0x10000, v{G1_WR}")
    A(f"v_add_u32 v{G1_WR+3}, 0x10000, v{G1_WR+1}")
    gflag_setup(A)
    A(f"s_mov_b32 s{S_C1}, 1.0")
    A(f"s_mov_b32 s{S_C1+1}, 1.0")
    A(f"s_mov_b32 s{S_CL}, 0xbfb8aa3b")
    A(f"s_mov_b32 s{S_CL+1}, 0xbfb8aa3b")

def gflag_setup(A):
    A(f"s_lshl_b32 s{S_T0}, s{S_WAVE}, 2")
    A(f"s_add_u32 s{S_T0}, s{S_T0}, {LDS_GFLAG}")
    A(f"v_mov_b32 v{G_FOWN}, s{S_T0}")
    A(f"v_and_b32 v{G_FRD}, 3, v1")
    A(f"v_lshlrev_b32 v{G_FRD}, 2, v{G_FRD}")
    A(f"v_add_u32 v{G_FRD}, {LDS_GFLAG}, v{G_FRD}")

def g1_dma_list(c):
    slot = c % 4
    out = []
    if NODMA: return ['s_nop 0']*12
    out.append(f"s_add_u32 m0, s{S_M0X}, {slot*32768}")
    out.append(f"s_add_u32 s{S_T1}, s{S_XO}, {c*128}")
    for i in range(4):
        out.append(f"buffer_load_dwordx4 v{G1_XD+i}, s[{S_X}:{S_X+3}], s{S_T1} offen offset:{i*1024} lds")
    out.append(f"s_add_u32 m0, s{S_M0X}, {slot*32768+16384}")
    out.append(f"s_add_u32 s{S_T1}, s{S_WO}, {c*64*2*F}")
    for i in range(4):
        out.append(f"buffer_load_dwordx4 v{G1_WD+i}, s[{S_W1}:{S_W1+3}], s{S_T1} offen offset:{i*1024} lds")
    return out

NOREAD = False
NOMFMA = False
NODMA = False
def g1_reads(t):
    if NOREAD: return []
    c, s = divmod(t, 4)
    slot = c % 4
    hi, lo = slot // 2, (slot % 2) * 32768
    fr = G1_FR + (t % 2) * 16
    out = []
    for a in range(2):
        for x in range(2):
            out.append(f"ds_read_b64_tr_b16 {vr(fr+4*a+2*x,2)}, v{G1_WR+2*hi+a} offset:{lo+(16*s+4*x)*256}")
    for b in range(2):
        out.append(f"ds_read_b128 {vr(fr+8+4*b,4)}, v{G1_XR+4*hi+s} offset:{lo+b*4096}")
    return out

def g1_mfmas(t):
    if NOMFMA: return ['s_nop 0']*4
    fr = G1_FR + (t % 2) * 16
    out = []
    for a in range(2):
        for b in range(2):
            acc = G1_ACC + (2*a+b)*16
            c = "0" if t == 0 else vr(acc, 16)
            out.append(f"v_mfma_f32_32x32x16_bf16 {vr(acc,16)}, {vr(fr+4*a,4)}, {vr(fr+8+4*b,4)}, {c}")
    return out

def interleave(A, mf, fill):
    n = len(mf)
    k = 0
    for i, m in enumerate(mf):
        A(m)
        tgt = (len(fill) * (i + 1) + n - 1) // n
        while k < tgt:
            A(fill[k]); k += 1

def g1_main(A, ep0=0):
    A("s_waitcnt vmcnt(24)")
    sw_arrive(A, G_FOWN, G_FT, ep0 + 1)
    sw_wait(A, G_FRD, G_FT, ep0 + 1)
    for r in g1_reads(0): A(r)
    pend = []
    for t in range(32):
        c, s = divmod(t, 4)
        if s == 3 and c < 7:
            outstanding = (min(c + 3, 7) - (c + 1)) * 8
            assert not pend
            A(f"s_waitcnt vmcnt({outstanding}) lgkmcnt(0)")
            sw_arrive(A, G_FOWN, G_FT, ep0 + c + 2)
            sw_poll_issue(A, G_FRD, G_FT + 1)
            mf = g1_mfmas(t)
            A(mf[0]); A(mf[1])
            sw_wait(A, G_FRD, G_FT + 1, ep0 + c + 2, issued=True)
            interleave(A, mf[2:], g1_reads(t + 1))
            if c + 4 < 8:
                pend = g1_dma_list(c + 4)
        else:
            A("s_waitcnt lgkmcnt(0)")
            fill = g1_reads(t + 1) if t < 31 else []
            if pend:
                k = {0: 4, 1: 4, 2: 4}[s]
                k = len(pend) if s == 2 else k
                fill = fill + pend[:k]
                pend = pend[k:]
            interleave(A, g1_mfmas(t), fill)
    return ep0 + 8

def silu_pairs(A, regs, tmp):
    n = len(regs)
    for i, (s, d) in enumerate(regs):
        A(f"v_pk_mul_f32 {vr(tmp+2*i,2)}, {vr(s,2)}, s[{S_CL}:{S_CL+1}]")
    for i in range(n):
        A(f"v_exp_f32 v{tmp+2*i}, v{tmp+2*i}")
        A(f"v_exp_f32 v{tmp+2*i+1}, v{tmp+2*i+1}")
    for i in range(n):
        A(f"v_pk_add_f32 {vr(tmp+2*i,2)}, {vr(tmp+2*i,2)}, s[{S_C1}:{S_C1+1}]")
    for i in range(n):
        A(f"v_rcp_f32 v{tmp+2*i}, v{tmp+2*i}")
        A(f"v_rcp_f32 v{tmp+2*i+1}, v{tmp+2*i+1}")
    for i, (s, d) in enumerate(regs):
        A(f"v_pk_mul_f32 {vr(tmp+2*i,2)}, {vr(tmp+2*i,2)}, {vr(s,2)}")
    for i, (s, d) in enumerate(regs):
        A(f"v_cvt_pk_bf16_f32 v{d}, v{tmp+2*i}, v{tmp+2*i+1}")

def g1_epilogue(A, flags=""):
    w = S_WAVE
    A(f"s_lshl_b32 s{S_HO}, s{S_RB}, 2")
    A(f"s_and_b32 s{S_T0}, s{w}, 2")
    A(f"s_add_u32 s{S_HO}, s{S_HO}, s{S_T0}")
    A(f"s_mul_i32 s{S_HO}, s{S_HO}, 112")
    A(f"s_lshl_b32 s{S_T0}, s{S_CB}, 3")
    A(f"s_add_u32 s{S_HO}, s{S_HO}, s{S_T0}")
    A(f"s_and_b32 s{S_T0}, s{w}, 1")
    A(f"s_lshl_b32 s{S_T0}, s{S_T0}, 2")
    A(f"s_add_u32 s{S_HO}, s{S_HO}, s{S_T0}")
    A(f"s_lshl_b32 s{S_HO}, s{S_HO}, 10")
    A(f"s_add_u32 s{S_T1}, s{S_HO}, {112*1024}")
    A("v_lshlrev_b32 v30, 4, v1")
    A("s_nop 4")
    k = 0
    for a in range(2):
        for b in range(2):
            acc = G1_ACC + (2*a+b)*16
            for fh in range(2):
                dst = G1_FR + (k % 8) * 4
                k += 1
                silu_pairs(A, [(acc + 8*fh + 2*i, dst + i) for i in range(4)], G1_TMP)
                so = S_HO if b == 0 else S_T1
                A(f"buffer_store_dwordx4 {vr(dst,4)}, v30, s[{S_WS}:{S_WS+3}], s{so} offen offset:{(2*a+fh)*1024} {flags}")


def ts(A, i):
    if TS:
        A(f"s_memtime s[{S_TS+2*i}:{S_TS+2*i+1}]")
def ts_real(A, i):
    if TS:
        A(f"s_memrealtime s[{S_TS+2*i}:{S_TS+2*i+1}]")
def ts_dump(A, kidx, wave8):
    if not TS: return
    A("s_waitcnt vmcnt(0) lgkmcnt(0)")
    A(f"s_memtime s[{S_TS+12}:{S_TS+13}]")
    A(f"s_memrealtime s[{S_TS+14}:{S_TS+15}]")
    A("s_waitcnt lgkmcnt(0)")
    for i in range(8):
        A(f"v_mov_b32 v{8+i}, s{S_TS+2*i}")
    A(f"s_lshl_b32 s{S_TS}, s2, 3")
    A(f"s_add_u32 s{S_TS}, s{S_TS}, s{wave8}")
    A(f"s_lshl_b32 s{S_TS}, s{S_TS}, 5")
    A(f"s_add_u32 s{S_TS}, s{S_TS}, {WS_TS + kidx*65536}")
    A("v_mov_b32 v2, 0")
    A(f"buffer_store_dwordx4 v[8:11], v2, s[{S_WS}:{S_WS+3}], s{S_TS} offen")
    A(f"buffer_store_dwordx4 v[12:15], v2, s[{S_WS}:{S_WS+3}], s{S_TS} offen offset:16")
```

```python
from parts import *
import parts
LDS_XCH  = LDS_SSM + 27648
LDS_HEAD = LDS_MISC + 64
LDS_CARR = LDS_MISC + 320
LDS_DUM  = LDS_MISC + 608
assert LDS_DUM + 416 <= LDS_XCH
S_FOWN, S_FRD, S_FT = 22, 23, 24
Q_PAIR, Q_C, Q_NH, Q_T0, Q_T1, Q_LDT, Q_DSK, Q_TAB = 64, 65, 66, 67, 68, 69, 70, 71
Q_EX = 72
LOG2E = "0x3fb8aa3b"
INV2PI = "0x3e22f983"

class Lg:
    def __init__(self, A): self.A = A; self.n = 0; self.done = 0
    def op(self, s): self.A(s); self.n += 1; return self.n
    def wait(self, idn):
        if idn <= self.done: return
        k = min(self.n - idn, 15)
        self.A(f"s_waitcnt lgkmcnt({k})"); self.done = self.n - k
    def all(self): self.wait(self.n)

def s_setup(A):
    w = S_WAVE
    A(f"s_lshl_b32 s{Q_PAIR}, s{S_XCD}, 5")
    A(f"s_add_u32 s{Q_PAIR}, s{Q_PAIR}, s{S_J}")
    A(f"s_lshr_b32 s{Q_C}, s{w}, 1")
    A(f"s_and_b32 s{Q_NH}, s{w}, 1")
    A(f"s_lshl_b32 s{Q_T0}, s{w}, 2")
    A(f"s_add_u32 s{Q_T0}, s{Q_T0}, {LDS_SFLAG}")
    A(f"v_mov_b32 v{S_FOWN}, s{Q_T0}")
    A(f"v_and_b32 v{S_FRD}, 3, v1")
    A(f"v_lshlrev_b32 v{S_FRD}, 2, v{S_FRD}")
    A(f"v_add_u32 v{S_FRD}, {LDS_SFLAG}, v{S_FRD}")

def s_barrier(A, ep):
    A("s_waitcnt lgkmcnt(0)")
    sw_arrive(A, S_FOWN, S_FT, ep)
    sw_wait(A, S_FRD, S_FT, ep, sleep=1)

def kg_loads(A):
    A(f"s_lshl_b32 s{Q_T0}, s{Q_PAIR}, 9")
    A(f"s_lshl_b32 s{Q_T1}, s{S_WAVE}, 7")
    A(f"s_add_u32 s{Q_T0}, s{Q_T0}, s{Q_T1}")
    A(f"v_lshl_add_u32 v6, v1, 1, s{Q_T0}")
    for i, p in enumerate((P_LA, P_AI, P_CR, P_CI)):
        A(f"global_load_ushort v{2+i}, v6, s[{p}:{p+1}]")
    A(f"s_lshl_b32 s{Q_T0}, s{Q_PAIR}, 2")
    A(f"s_load_dword s{Q_LDT}, s[{P_LDT}:{P_LDT+1}], s{Q_T0}")
    A(f"s_load_dword s{Q_DSK}, s[{P_DSK}:{P_DSK+1}], s{Q_T0}")

def tr_issue(A):
    A("v_lshrrev_b32 v8, 3, v1")
    A("v_and_b32 v9, 7, v1")
    A("v_lshlrev_b32 v10, 10, v8")
    A("v_lshl_add_u32 v10, v9, 4, v10")
    A(f"s_lshl_b32 s{Q_T0}, s{S_J}, 16")
    A(f"s_lshl_b32 s{Q_T1}, s{S_XCD}, 7")
    A(f"s_add_u32 s{Q_T0}, s{Q_T0}, s{Q_T1}")
    for i in range(8):
        A(f"s_mov_b32 m0, {LDS_K + i*1024}")
        A(f"s_add_u32 s{Q_T1}, s{Q_T0}, {i*8192}")
        A(f"buffer_load_dwordx4 v10, s[{S_X}:{S_X+3}], s{Q_T1} offen lds")

def tr_finish(A, fl, later=0, hook=None):
    R = 128
    A("v_lshrrev_b32 v11, 4, v1")
    A("v_bfe_u32 v12, v1, 2, 2")
    A("v_lshl_add_u32 v12, v11, 3, v12")
    A("v_lshlrev_b32 v12, 7, v12")
    A("v_and_b32 v13, 3, v1")
    A("v_lshl_add_u32 v12, v13, 3, v12")
    A(f"v_add_u32 v12, {LDS_K}, v12")
    A("v_and_b32 v13, 15, v1")
    A("v_xor_b32 v14, v11, v9")
    A("v_lshlrev_b32 v13, 7, v13")
    A("v_lshl_add_u32 v13, v14, 4, v13")
    A(f"v_add_u32 v13, {LDS_K}, v13")
    A("v_xor_b32 v14, 64, v13")
    A("v_xor_b32 v15, v9, v8")
    A("v_lshlrev_b32 v16, 7, v8")
    A("v_lshl_add_u32 v15, v15, 4, v16")
    A(f"v_add_u32 v15, {LDS_K}, v15")
    A("v_lshlrev_b32 v16, 12, v8")
    A("v_lshl_add_u32 v16, v9, 4, v16")
    A(f"s_lshl_b32 s{Q_T0}, s{S_XCD}, 18")
    A(f"s_lshl_b32 s{Q_T1}, s{S_J}, 7")
    A(f"s_add_u32 s{Q_T0}, s{Q_T0}, s{Q_T1}")
    A(f"s_add_u32 s{Q_T0}, s{Q_T0}, {WS_UT}")
    if hook: hook()
    A(f"s_waitcnt vmcnt({later})")
    for a in range(4):
        for hf in range(2):
            for x in range(2):
                A(f"ds_read_b64_tr_b16 {vr(R+(2*a+hf)*4+2*x,2)}, v12 offset:{hf*4096+x*512+a*32}")
    A("s_waitcnt lgkmcnt(0)")
    for a in range(4):
        for hf in range(2):
            A(f"ds_write_b128 v{13+hf}, {vr(R+(2*a+hf)*4,4)} offset:{a*2048}")
    for i in range(8):
        A(f"ds_read_b128 {vr(R+32+4*i,4)}, v15 offset:{i*1024}")
    for i in range(8):
        A(f"s_waitcnt lgkmcnt({7-i})")
        A(f"s_add_u32 s{Q_T1}, s{Q_T0}, {i*32768}")
        A(f"buffer_store_dwordx4 {vr(R+32+4*i,4)}, v16, s[{S_WS}:{S_WS+3}], s{Q_T1} offen {fl}")

def gate_issue(A):
    R = 128
    A("v_lshlrev_b32 v8, 4, v1")
    A(f"global_load_dwordx4 {vr(R+32,4)}, v8, s[{P_GW}:{P_GW+1}]")
    A(f"s_lshl_b32 s{Q_T0}, s{Q_PAIR}, 13")
    A(f"s_add_u32 s{Q_T1}, s{Q_T0}, 4096")
    for i in range(8):
        A(f"buffer_load_dwordx4 {vr(R+4*i,4)}, v8, s[{S_X}:{S_X+3}], s{Q_T0 + i//4} offen offset:{(i%4)*1024}")

def gate_finish(A, fl, later=0):
    R = 128; S = 168
    A(f"s_waitcnt vmcnt({later})")
    for k in range(4):
        for i in range(8):
            c = "0" if k == 0 else f"v{S+i}"
            A(f"v_dot2_f32_bf16 v{S+i}, v{R+4*i+k}, v{R+32+k}, {c}")
    for sh in ("row_shr:1", "row_shr:2", "row_shr:4", "row_shr:8"):
        for i in range(8):
            A(f"v_add_f32_dpp v{S+i}, v{S+i}, v{S+i} {sh} row_mask:0xf bank_mask:0xf bound_ctrl:1")
    for sh in ("row_bcast:15 row_mask:0xa", "row_bcast:31 row_mask:0xc"):
        for i in range(8):
            A(f"v_add_f32_dpp v{S+i}, v{S+i}, v{S+i} {sh} bank_mask:0xf")
    A("v_mov_b32 v9, 0")
    for i in range(8):
        A(f"v_readlane_b32 s{Q_EX+4+i}, v{S+i}, 63")
    A("s_nop 3")
    for i in range(8):
        A(f"v_writelane_b32 v9, s{Q_EX+4+i}, {i}")
    A("v_cvt_pk_bf16_f32 v9, v9, v9")
    A("v_lshlrev_b32 v9, 16, v9")
    A(f"v_mul_f32 v9, 0xbfb8aa3b, v9")
    A("v_exp_f32 v9, v9")
    A("s_nop 0")
    A("v_add_f32 v9, 1.0, v9")
    A("v_rcp_f32 v9, v9")
    A("s_nop 0")
    A("v_cvt_pk_bf16_f32 v10, v9, v9")
    A("v_lshlrev_b32 v10, 16, v10")
    A("v_sub_f32 v11, 1.0, v10")
    A("v_cvt_pk_bf16_f32 v11, v11, v11")
    A("v_lshlrev_b32 v11, 16, v11")
    A("v_lshlrev_b32 v8, 3, v1")
    A(f"s_lshl_b32 s{Q_T0}, s{Q_PAIR}, 6")
    A(f"s_add_u32 s{Q_T0}, s{Q_T0}, {WS_G}")
    A("s_mov_b64 exec, 0xff")
    A(f"buffer_store_dwordx2 v[10:11], v8, s[{S_WS}:{S_WS+3}], s{Q_T0} offen {fl}")
    A("s_mov_b64 exec, -1")

def cmul_list(A, items):
    for d, a, b in items:
        A(f"v_pk_mul_f32 {vr(d,2)}, {vr(a,2)}, {vr(b,2)} op_sel:[0,0] op_sel_hi:[1,0]")
    for d, a, b in items:
        A(f"v_pk_fma_f32 {vr(d,2)}, {vr(a,2)}, {vr(b,2)}, {vr(d,2)} op_sel:[1,1,0] op_sel_hi:[0,1,1] neg_lo:[1,0,0]")

KB, KA, KD = 64, 96, 40
def kgen(A, later=0, hook=None):
    w = S_WAVE
    VW, VB, VA = 26, 27, 28
    E1, E8, E256, C0, E2, E4 = 128, 130, 132, 134, 136, 138
    LO = 140
    E32 = 156
    G = 160
    CV = 200
    A(f"s_mul_i32 s{Q_TAB}, s{w}, {TAB_STRIDE}")
    A(f"s_add_u32 s{Q_TAB}, s{Q_TAB}, {LDS_TAB}")
    A(f"v_lshl_add_u32 v{VW}, v1, 2, s{Q_TAB}")
    A("v_and_b32 v8, 15, v1")
    A("v_lshrrev_b32 v9, 5, v1")
    A(f"v_lshl_add_u32 v9, v9, 4, s{Q_TAB}")
    A("v_mov_b32 v10, 272")
    A(f"v_mad_u32_u24 v{VB}, v8, v10, v9")
    A("v_and_b32 v11, 7, v1")
    A("v_lshlrev_b32 v11, 2, v11")
    A("v_mov_b32 v12, 0xcbaaa988")
    A("v_lshrrev_b32 v11, v11, v12")
    A("v_and_b32 v11, 15, v11")
    A("v_and_b32 v12, 24, v1")
    A("v_cmp_eq_u32 vcc, 8, v12")
    A(f"s_mov_b32 s{Q_EX}, 0x0000ffff")
    A(f"s_mov_b32 s{Q_EX+1}, 0x0000ffff")
    A(f"s_mov_b32 s{Q_EX+2}, 0xffff0000")
    A(f"s_mov_b32 s{Q_EX+3}, 0xffff0000")
    A("v_cndmask_b32 v11, v8, v11, vcc")
    A(f"v_mad_u32_u24 v{VA}, v11, v10, v9")
    A("s_waitcnt lgkmcnt(0)")
    A(f"s_lshl_b32 s{Q_T0}, s{Q_C}, 4")
    A(f"s_lshr_b32 s{Q_LDT}, s{Q_LDT}, s{Q_T0}")
    A(f"s_lshl_b32 s{Q_LDT}, s{Q_LDT}, 16")
    A(f"s_lshr_b32 s{Q_DSK}, s{Q_DSK}, s{Q_T0}")
    A(f"s_lshl_b32 s{Q_DSK}, s{Q_DSK}, 16")
    A(f"v_mov_b32 v10, {LOG2E}")
    A(f"v_mul_f32 v8, s{Q_LDT}, v10")
    A("v_exp_f32 v8, v8")
    if later is not None: A(f"s_waitcnt vmcnt({later})")
    for i in range(4): A(f"v_lshlrev_b32 v{2+i}, 16, v{2+i}")
    A("v_mul_f32 v2, v10, v2")
    A("v_exp_f32 v2, v2")
    A("v_cvt_pk_bf16_f32 v8, v8, v8")
    A("v_lshlrev_b32 v8, 16, v8")
    A("v_cvt_pk_bf16_f32 v2, v2, v2")
    A("v_lshlrev_b32 v2, 16, v2")
    A("v_mul_f32 v2, v2, v8")
    A("v_mul_f32 v3, v3, v8")
    A("v_mul_f32 v2, 0xbfb8aa3b, v2")
    A(f"v_mul_f32 v3, {INV2PI}, v3")
    A("v_add_f32 v8, v8, v8")
    A(f"v_mul_f32 v{C0}, v4, v8")
    A(f"v_mul_f32 v{C0+1}, v5, v8")
    A("v_mul_f32 v10, 8.0, v2".replace("8.0", "0x41000000"))
    A("v_mul_f32 v11, 0x41000000, v3")
    A("v_mul_f32 v12, 0x43800000, v2")
    A("v_mul_f32 v13, 0x43800000, v3")
    for r in (11, 3, 13): A(f"v_fract_f32 v{r}, v{r}")
    for (m, f, e) in ((10, 11, E8), (2, 3, E1), (12, 13, E256)):
        A(f"v_exp_f32 v{m}, v{m}")
        A(f"v_cos_f32 v{e}, v{f}")
        A(f"v_sin_f32 v{e+1}, v{f}")
    for (m, e) in ((10, E8), (2, E1), (12, E256)):
        A(f"v_pk_mul_f32 {vr(e,2)}, {vr(e,2)}, {vr(m,2)} op_sel:[0,0] op_sel_hi:[1,0]")
    cvi = [0]
    def put(src, slot, neg=False):
        t = CV + cvi[0] % 8; cvi[0] += 1
        A(f"v_cvt_pk_bf16_f32 v{t}, v{src}, {'-' if neg else ''}v{src+1}")
        A(f"ds_write_b32 v{VW}, v{t} offset:{slot*272}")
    def frag_reads(dst, va, half):
        A(f"s_mov_b64 exec, s[{Q_EX+2*half}:{Q_EX+2*half+1}]")
        for ks in range(8):
            A(f"ds_read_b128 {vr(dst+4*ks,4)}, v{va} offset:{ks*32}")
        A("s_mov_b64 exec, -1")
    L = lambda st, k: LO + 8 * st + 2 * k
    A(f"v_mov_b32 v{L(0,0)}, 1.0"); A(f"v_mov_b32 v{L(0,0)+1}, 0")
    A(f"v_mov_b32 v{L(0,1)}, v{E8}"); A(f"v_mov_b32 v{L(0,1)+1}, v{E8+1}")
    cmul_list(A, [(L(0,2), E8, E8), (E2, E1, E1), (G+2, C0, E1), (G+16, C0, E8)])
    cmul_list(A, [(L(0,3), L(0,2), E8), (E32, L(0,2), L(0,2)), (E4, E2, E2), (G+4, C0, E2), (G+6, G+2, E2)])
    for it in range(8):
        st = it % 2
        if it < 7:
            cmul_list(A, [(L(1-st, k), L(st, k), E32) for k in range(4)])
        for k in range(4): put(L(st, k), (4 * it + k) % 16)
        if it == 3: frag_reads(KB, VB, 0)
    frag_reads(KB, VB, 1)
    if hook: hook()
    Gp = lambda p: C0 if p == 0 else G + 2 * p
    cmul_list(A, [(Gp(4 + p), Gp(p), E4) for p in range(4)])
    H = G + 18
    cmul_list(A, [(H + 2 * i, Gp(2 * i), E256) for i in range(5)])
    for p in range(8): put(Gp(p), p, True)
    for i in range(5): put(H + 2 * i, 8 + i, True)
    frag_reads(KA, VA, 0)
    P5 = G + 2; P7 = G + 8
    cmul_list(A, [(P5 + 2 * i, H + 4 * i, E256) for i in range(3)])
    cmul_list(A, [(P7 + 2 * i, P5 + 2 * i, E256) for i in range(3)])
    for i in range(3): put(P5 + 2 * i, i, True)
    prev = (P7, P7 + 4)
    for b in range(4):
        cur = (H + 4 * (b % 2), H + 4 * (b % 2) + 2)
        cmul_list(A, [(cur[0], prev[0], E256), (cur[1], prev[1], E256)])
        if b == 0:
            for i in range(3): put(P7 + 2 * i, 4 + i, True)
        else:
            put(prev[0], 8 + 2 * (b - 1), True); put(prev[1], 9 + 2 * (b - 1), True)
        prev = cur
    put(prev[0], 14, True); put(prev[1], 15, True)
    frag_reads(KA, VA, 1)
    for ks in range(8):
        A(f"s_waitcnt lgkmcnt({7-ks})")
        c = "0" if ks == 0 else vr(KD, 16)
        A(f"v_mfma_f32_32x32x16_bf16 {vr(KD,16)}, {vr(KA+4*ks,4)}, {vr(KB+4*ks,4)}, {c}")

def kgen_exchange_write(A):
    t2 = LDS_TAB + 2 * TAB_STRIDE; t3 = LDS_TAB + 3 * TAB_STRIDE
    A(f"s_mul_i32 s{Q_T0}, s{Q_C}, {t3-LDS_XCH}")
    A(f"s_add_u32 s{Q_T0}, s{Q_T0}, {LDS_XCH}")
    A(f"s_mul_i32 s{Q_T1}, s{Q_C}, {t2-LDS_XCH-3072}")
    A(f"s_add_u32 s{Q_T1}, s{Q_T1}, {LDS_XCH+3072}")
    A(f"v_lshl_add_u32 v26, v1, 4, s{Q_T0}")
    A(f"v_lshl_add_u32 v27, v1, 4, s{Q_T1}")
    A(f"s_mul_i32 s{Q_T0}, s{Q_C}, {K_STRIDE}")
    A(f"s_add_u32 s{Q_T0}, s{Q_T0}, {LDS_K}")
    A("v_and_b32 v8, 31, v1")
    A("v_lshrrev_b32 v9, 5, v1")
    A(f"v_lshl_add_u32 v8, v8, 4, s{Q_T0}")
    A(f"v_lshl_add_u32 v10, v1, 3, s{Q_T0}")
    A("v_mov_b32 v12, 0"); A("v_mov_b32 v13, 0")
    A("s_nop 1")
    l1 = A.newlabel("KX"); l2 = A.newlabel("KX")
    A(f"s_cmp_eq_u32 s{Q_NH}, 0")
    A(f"s_cbranch_scc0 {l1}")
    A(f"ds_write_b128 v27, {vr(KD+12,4)}")
    A(f"s_branch {l2}")
    A.label(l1)
    for q in range(3): A(f"ds_write_b128 v26, {vr(KD+4*q,4)} offset:{q*1024}")
    A.label(l2)

def kgen_final(A):
    X = 64
    l1 = A.newlabel("KF"); l2 = A.newlabel("KF")
    A(f"s_cmp_eq_u32 s{Q_NH}, 0")
    A(f"s_cbranch_scc0 {l1}")
    for q in range(3): A(f"ds_read_b128 {vr(X+4*q,4)}, v26 offset:{q*1024}")
    A("ds_write_b64 v10, v[12:13]")
    A("v_cmp_eq_u32 vcc, 0, v1")
    A(f"v_mov_b32 v11, s{Q_DSK}")
    A("v_lshl_add_u32 v14, v9, 3, v8")
    A("v_lshl_add_u32 v15, v9, 9, v8")
    A("v_cndmask_b32 v11, 0, v11, vcc")
    A(f"v_add_f32 v{KD}, v{KD}, v11")
    A("s_waitcnt lgkmcnt(1)")
    for k in range(6): A(f"v_pk_add_f32 {vr(KD+2*k,2)}, {vr(KD+2*k,2)}, {vr(X+2*k,2)}")
    for k in range(4): A(f"v_cvt_pk_bf16_f32 v{X+k}, v{KD+2*k}, v{KD+2*k+1}")
    a, b, c = KD + 8, KD + 9, KD + 10
    for k, (p, q) in enumerate(((a, a), (a, b), (b, b), (c, c))): A(f"v_cvt_pk_bf16_f32 v{X+4+k}, v{p}, v{q}")
    A(f"ds_write_b64 v14, {vr(X,2)} offset:448")
    A(f"ds_write_b64 v14, {vr(X+2,2)} offset:960")
    A(f"ds_write_b128 v15, {vr(X+4,4)} offset:1472")
    A(f"s_branch {l2}")
    A.label(l1)
    A(f"ds_read_b128 {vr(X,4)}, v27")
    A(f"s_mul_i32 s{Q_T0}, s{Q_C}, {U_STRIDE}")
    A(f"s_add_u32 s{Q_T0}, s{Q_T0}, {LDS_U}")
    A("v_and_b32 v11, 15, v1")
    A(f"v_lshl_add_u32 v11, v11, 2, s{Q_T0}")
    A("ds_write_b32 v11, v12")
    A("v_and_b32 v11, 1, v1")
    A("v_cmp_eq_u32 vcc, 1, v11")
    A("v_lshl_add_u32 v15, v9, 10, v8")
    A("s_waitcnt lgkmcnt(1)")
    for k in range(2): A(f"v_pk_add_f32 {vr(KD+12+2*k,2)}, {vr(KD+12+2*k,2)}, {vr(X+2*k,2)}")
    for k in range(2):
        a, b = KD + 12 + 2 * k, KD + 13 + 2 * k
        A(f"v_cndmask_b32 v11, v{a}, v{b}, vcc")
        A(f"v_cvt_pk_bf16_f32 v{X+4*k}, v{a}, v{a}")
        A(f"v_cvt_pk_bf16_f32 v{X+4*k+1}, v{a}, v{a}")
        A(f"v_cvt_pk_bf16_f32 v{X+4*k+2}, v11, v{b}")
        A(f"v_cvt_pk_bf16_f32 v{X+4*k+3}, v{b}, v{b}")
        A(f"ds_write_b128 v15, {vr(X+4*k,4)} offset:{2496+512*k}")
    A.label(l2)

UL = 56
def ut_issue(A, fl):
    A(f"s_lshl_b32 s{Q_T0}, s{Q_PAIR}, 13")
    A(f"s_lshl_b32 s{Q_T1}, s{S_WAVE}, 11")
    A(f"s_add_u32 s{Q_T0}, s{Q_T0}, s{Q_T1}")
    A(f"s_add_u32 s{Q_T0}, s{Q_T0}, {WS_UT}")
    A("v_lshlrev_b32 v16, 4, v1")
    for i in range(2):
        A(f"buffer_load_dwordx4 {vr(UL+4*i,4)}, v16, s[{S_WS}:{S_WS+3}], s{Q_T0} offen offset:{i*1024} {fl}")

def ut_write(A):
    A(f"s_mul_i32 s{Q_T0}, s{Q_C}, {U_STRIDE}")
    A(f"s_lshl_b32 s{Q_T1}, s{Q_NH}, 11")
    A(f"s_add_u32 s{Q_T0}, s{Q_T0}, s{Q_T1}")
    A(f"s_add_u32 s{Q_T0}, s{Q_T0}, {LDS_U+64}")
    A(f"v_add_u32 v16, s{Q_T0}, v16")
    A("s_waitcnt vmcnt(0)")
    for i in range(2):
        A(f"ds_write_b128 v16, {vr(UL+4*i,4)} offset:{i*1024}")

def carry_zero(A):
    A("v_min_u32 v8, 35, v1")
    A(f"v_lshlrev_b32 v8, 3, v8")
    A(f"v_add_u32 v8, {LDS_CARR}, v8")
    A("v_mov_b32 v10, 0"); A("v_mov_b32 v11, 0")
    A("ds_write_b64 v8, v[10:11]")

def k_dump(A):
    A(f"s_mul_i32 s{Q_T0}, s{Q_C}, {K_STRIDE}")
    A(f"s_lshl_b32 s{Q_T1}, s{Q_NH}, 11")
    A(f"s_add_u32 s{Q_T0}, s{Q_T0}, s{Q_T1}")
    A(f"s_add_u32 s{Q_T0}, s{Q_T0}, {LDS_K+448}")
    A(f"v_lshl_add_u32 v8, v1, 4, s{Q_T0}")
    A("ds_read_b128 v[64:67], v8")
    A("ds_read_b128 v[68:71], v8 offset:1024")
    A(f"s_lshl_b32 s{Q_T0}, s{Q_PAIR}, 13")
    A(f"s_lshl_b32 s{Q_T1}, s{S_WAVE}, 11")
    A(f"s_add_u32 s{Q_T0}, s{Q_T0}, s{Q_T1}")
    A(f"s_add_u32 s{Q_T0}, s{Q_T0}, {13<<20}")
    A("v_lshlrev_b32 v8, 4, v1")
    A("s_waitcnt lgkmcnt(0)")
    A(f"buffer_store_dwordx4 v[64:67], v8, s[{S_WS}:{S_WS+3}], s{Q_T0} offen")
    A(f"buffer_store_dwordx4 v[68:71], v8, s[{S_WS}:{S_WS+3}], s{Q_T0} offen offset:1024")
    A("s_waitcnt vmcnt(0)")

CA, CACC, CB, CT_ = 128, 64, 40, 2
VAa, VBa, VST, VHD, VCR = 26, 27, 28, 29, 30
def conv_setup(A):
    A("v_lshrrev_b32 v8, 5, v1")
    A("v_bfe_u32 v9, v1, 2, 2")
    A("v_bfe_u32 v10, v1, 4, 1")
    A("v_and_b32 v11, 3, v1")
    A("v_lshl_add_u32 v12, v10, 2, v11")
    A("v_sub_u32 v12, v12, v8")
    A("v_lshlrev_b32 v12, 3, v12")
    A("v_sub_u32 v12, v12, v9")
    A(f"s_mul_i32 s{Q_T0}, s{Q_C}, {K_STRIDE}")
    A(f"s_add_u32 s{Q_T0}, s{Q_T0}, {LDS_K+88}")
    A(f"v_lshl_add_u32 v{VAa}, v12, 3, s{Q_T0}")
    A("v_lshl_add_u32 v12, v8, 1, v10")
    A("v_lshl_add_u32 v12, v12, 2, v9")
    A("v_add_u32 v12, v12, v11")
    A(f"s_mul_i32 s{Q_T0}, s{Q_C}, {U_STRIDE}")
    A(f"s_add_u32 s{Q_T0}, s{Q_T0}, {LDS_U+8}")
    A(f"v_lshl_add_u32 v{VBa}, v12, 3, s{Q_T0}")
    A(f"s_lshl_b32 s{Q_T0}, s{Q_C}, 1")
    A(f"s_add_u32 s{Q_T0}, s{Q_T0}, {LDS_STG}")
    A(f"v_lshl_add_u32 v{VST}, v1, 2, s{Q_T0}")
    A("v_lshlrev_b32 v12, 2, v1")
    A(f"v_add_u32 v13, {LDS_DUM}, v12")
    A(f"s_lshl_b32 s{Q_T0}, s{Q_C}, 7")
    A(f"s_add_u32 s{Q_T0}, s{Q_T0}, {LDS_HEAD}")
    A(f"v_add_u32 v12, s{Q_T0}, v12")
    A("v_cmp_gt_u32 vcc, 4, v1")
    A(f"s_mul_i32 s{Q_T0}, s{Q_C}, 144")
    A(f"s_add_u32 s{Q_T0}, s{Q_T0}, {LDS_CARR}")
    A(f"v_cndmask_b32 v{VHD}, v13, v12, vcc")
    A("v_cmp_eq_u32 vcc, 63, v1")
    A(f"v_mov_b32 v12, s{Q_T0}")
    A("s_nop 0")
    A(f"v_cndmask_b32 v{VCR}, v13, v12, vcc")

def conv_epi(T, acc):
    D = lambda q, e: acc + 4 * q + e
    Z2 = [CT_ + q for q in range(4)]; Z1 = [CT_ + 4 + q for q in range(4)]; Y = [CT_ + 8 + q for q in range(4)]
    out = []
    def level(dst, src, base):
        for q in range(4):
            if q == 0:
                out.append((0, f"v_add_f32_dpp v{dst[0]}, v{src[0]}, v{base[0]} wave_shr:1 row_mask:0xf bank_mask:0xf bound_ctrl:1"))
            else:
                out.append((0, f"v_add_f32_dpp v{dst[q]}, v{src[q-1]}, v{base[q]} wave_ror:1 row_mask:0xf bank_mask:0xf"))
                out.append((0, f"v_add_f32_dpp v{dst[q]}, v{src[q]}, v{base[q]} wave_shr:1 row_mask:0xf bank_mask:0xf"))
    level(Z2, [D(q, 3) for q in range(4)], [D(q, 2) for q in range(4)])
    level(Z1, Z2, [D(q, 1) for q in range(4)])
    level(Y, Z1, [D(q, 0) for q in range(4)])
    P = CT_ + 12
    out.append((0, f"v_cvt_pk_bf16_f32 v{P}, v{Y[0]}, v{Y[1]}"))
    out.append((0, f"v_cvt_pk_bf16_f32 v{P+1}, v{Y[2]}, v{Y[3]}"))
    out.append((1, f"ds_write_b32 v{VHD}, v{Y[0]} offset:{T*16}"))
    if T < 7:
        for k, r in enumerate((Z1[3], Z2[3], D(3, 3))):
            out.append((1, f"ds_write_b32 v{VCR}, v{r} offset:{(T+1)*16+4*k}"))
    for q in range(4):
        op = "ds_write_b16_d16_hi" if q & 1 else "ds_write_b16"
        out.append((1, f"{op} v{VST}, v{P+q//2} offset:{T*1024+q*256}"))
    return out

def conv_body(A, tiles, LOOK=5, PER=5):
    lg = Lg(A)
    mf = []
    for s in range(32):
        for ti, T in enumerate(tiles):
            if s <= 4 * T + 3: mf.append((ti, T, s))
    loads = []; first = {}
    lastB = {}
    for m, (ti, T, s) in enumerate(mf):
        for key in (("B", s), ("A", 4 * T - s + 3)):
            if key not in first: first[key] = m; loads.append(key)
        lastB[s] = m
    ids = {}
    def issue(key):
        k, i = key
        for x in range(2):
            if k == "A": idn = lg.op(f"ds_read_b64_tr_b16 {vr(CA+4*i+2*x,2)}, v{VAa} offset:{128*i+32*(1-x)}")
            else: idn = lg.op(f"ds_read_b64_tr_b16 {vr(CB+4*(i%4)+2*x,2)}, v{VBa} offset:{128*i+32*x}")
        ids[key] = idn
    li = 0
    fill = []; fill_at = []
    started = set()
    for m, (ti, T, s) in enumerate(mf):
        while li < len(loads) and first[loads[li]] <= m + LOOK:
            k, i = loads[li]
            if k == "B" and i >= 4 and lastB[i - 4] >= m: break
            if lg.n - lg.done > 12 and first[loads[li]] > m: break
            issue(loads[li]); li += 1
        lg.wait(max(ids[("B", s)], ids[("A", 4 * T - s + 3)]))
        acc = CACC + 16 * ti
        c = vr(acc, 16) if ti in started else "0"
        started.add(ti)
        A(f"v_mfma_f32_32x32x16_bf16 {vr(acc,16)}, {vr(CA+4*(4*T-s+3),4)}, {vr(CB+4*(s%4),4)}, {c}")
        if s == 4 * T + 3:
            fill_at.append((m + 2, conv_epi(T, acc)))
        if fill_at and fill_at[0][0] <= m and not fill:
            fill = fill_at.pop(0)[1]
        for _ in range(PER):
            if fill:
                isl, ins = fill.pop(0)
                if isl: lg.op(ins)
                else: A(ins)
    rest = fill
    for isl, ins in rest: A(ins)
    A("s_nop 7"); A("s_nop 3")
    for _, e in fill_at:
        for isl, ins in e: A(ins)

def conv(A):
    l1 = A.newlabel("CV"); l2 = A.newlabel("CV")
    A(f"s_cmp_eq_u32 s{Q_NH}, 0")
    A(f"s_cbranch_scc0 {l1}")
    conv_body(A, [0, 3, 4, 7])
    A(f"s_branch {l2}")
    A.label(l1)
    conv_body(A, [1, 2, 5, 6])
    A.label(l2)

def conv_final(A, fl):
    w = S_WAVE
    A("v_bfe_u32 v8, v1, 3, 1")
    A("v_bfe_u32 v9, v1, 2, 1")
    A("v_and_b32 v10, 3, v1")
    A(f"v_lshl_add_u32 v8, v8, 2, s{w}")
    A("v_lshl_add_u32 v11, v8, 2, v10")
    A("v_lshlrev_b32 v11, 2, v11")
    A("v_lshl_add_u32 v12, v9, 7, v11")
    A("v_mul_u32_u24 v13, 144, v9")
    A("v_add_u32 v13, v13, v11")
    A(f"v_add_u32 v12, {LDS_HEAD}, v12")
    A(f"v_add_u32 v13, {LDS_CARR}, v13")
    A("ds_read_b32 v12, v12")
    A("ds_read_b32 v13, v13")
    A("v_lshl_add_u32 v8, v8, 8, v10")
    A("v_lshl_add_u32 v8, v8, 1, v9")
    A("v_lshlrev_b32 v8, 1, v8")
    A(f"v_add_u32 v8, {LDS_STG}, v8")
    A(f"s_lshl_b32 s{Q_T1}, s{w}, 10")
    A(f"s_add_u32 s{Q_T0}, s{Q_T1}, {LDS_STG}")
    A(f"v_lshl_add_u32 v9, v1, 4, s{Q_T0}")
    A("v_lshlrev_b32 v10, 4, v1")
    A(f"s_lshl_b32 s{Q_T0}, s{Q_PAIR}, 13")
    A(f"s_add_u32 s{Q_T0}, s{Q_T0}, s{Q_T1}")
    A(f"s_add_u32 s{Q_T0}, s{Q_T0}, {WS_A}")
    A(f"s_add_u32 s{Q_T1}, s{Q_T0}, 4096")
    A("s_waitcnt lgkmcnt(0)")
    A("v_add_f32 v12, v12, v13")
    A("v_cvt_pk_bf16_f32 v12, v12, v12")
    A("ds_write_b16 v8, v12")
    A("ds_read_b128 v[64:67], v9")
    A("ds_read_b128 v[68:71], v9 offset:4096")
    A("s_waitcnt lgkmcnt(1)")
    A(f"buffer_store_dwordx4 v[64:67], v10, s[{S_WS}:{S_WS+3}], s{Q_T0} offen {fl}")
    A("s_waitcnt lgkmcnt(0)")
    A(f"buffer_store_dwordx4 v[68:71], v10, s[{S_WS}:{S_WS+3}], s{Q_T1} offen {fl}")

def ut_all(A, fl):
    R = 128
    A(f"s_lshl_b32 s{Q_T0}, s{Q_PAIR}, 13")
    A(f"s_add_u32 s{Q_T0}, s{Q_T0}, {WS_UT}")
    A(f"s_add_u32 s{Q_T1}, s{Q_T0}, 4096")
    A("v_lshlrev_b32 v16, 4, v1")
    for i in range(8):
        A(f"buffer_load_dwordx4 {vr(R+4*i,4)}, v16, s[{S_WS}:{S_WS+3}], s{Q_T0+i//4} offen offset:{(i%4)*1024} {fl}")
    A(f"v_add_u32 v16, {LDS_U+64}, v16")
def ut_all_write(A):
    R = 128
    for i in range(8):
        A(f"s_waitcnt vmcnt({7-i})")
        A(f"ds_write_b128 v16, {vr(R+4*i,4)} offset:{(i//4)*U_STRIDE+(i%4)*1024}")
```

```python
import sys; sys.path.insert(0, "gen")
import parts
from parts import *
from ssm import *
import ssm

class Opt: pass
O = Opt()
O.TS = False
O.ROT = (2, 1, 0, 0)
O.LOOK = 3
O.KDUMP = False
O.SPRIO = 3
O.CPRIO = 0
O.GPRIO = 1
O.CODEPF = False
O.HST = "sc1"
O.SPIN = 100000
O.SLP = 4
O.NOSSM = False
O.TSE = False
O.TSC = None
O.NOW2 = False
O.ARR = 2
O.DPOS = 2
O.NPRE = 8
for a in sys.argv[2:]: exec("O." + a)
parts.TS = O.TS

FS = 8
F_UT, F_G, F_A, F_H = 0, 256 << FS, 512 << FS, 1536 << FS
F_EP = 2560 << FS
assert WS_FLAG + F_EP + 256 <= (13 << 20)
VTOK = 44
STOK = 32
LDS_HOK = LDS_MISC + 40
LDS_READY = LDS_MISC + 32
LDS_AG = LDS_SSM
S_DBG = 28
S_W8 = 27
S_SPIN = 85

parts_ts = ts
if O.TSC:
    def ts(A, i):
        if i < 2: parts_ts(A, i)

class Vm:
    def __init__(self, A): self.A = A; self.n = 0; self.done = 0
    def op(self, s):
        self.A(s)
        if s.startswith("buffer_") or s.startswith("global_"): self.n += 1
        return self.n
    def cnt(self, idn):
        k = min(self.n - idn, 63); self.done = max(self.done, self.n - k); return k
    def wait(self, idn, extra=""):
        if idn <= self.done:
            if extra: self.A(f"s_waitcnt {extra}")
            return
        self.A(f"s_waitcnt vmcnt({self.cnt(idn)}) {extra}")

def il(A, vm, mf, fill, front=0):
    n = len(mf); k = 0
    rest = len(fill) - front
    for i, m in enumerate(mf):
        A(m)
        tgt = min(front, 3 * (i + 1))
        if tgt == front:
            i0 = max((front + 2) // 3 - 1, 0)
            tgt = front + (rest * (i - i0 + 1) + (n - i0) - 1) // (n - i0)
        while k < min(tgt, len(fill)):
            vm.op(fill[k]); k += 1
    while k < len(fill):
        vm.op(fill[k]); k += 1

def poll(A, vaddr, vt, tok, name):
    l = A.newlabel(name); d = A.newlabel(name)
    A(f"s_mov_b32 s{S_SPIN}, {O.SPIN}")
    A.label(l)
    A(f"buffer_load_dword v{vt}, v{vaddr}, s[{S_WS}:{S_WS+3}], 0 offen sc1")
    A("s_waitcnt vmcnt(0)")
    A(f"v_cmp_ne_u32 vcc, v{tok}, v{vt}")
    A(f"s_cbranch_vccz {d}")
    A(f"s_sleep {O.SLP}")
    A(f"s_sub_u32 s{S_SPIN}, s{S_SPIN}, 1")
    A(f"s_cbranch_scc0 {l}")
    A.label(d)

def token_get(A, va, tok):
    l = A.newlabel("RW"); d = A.newlabel("RW")
    A(f"v_mov_b32 v{va}, {LDS_READY}")
    A.label(l)
    A(f"ds_read_b64 {vr(tok,2)}, v{va}")
    A("s_waitcnt lgkmcnt(0)")
    A(f"v_cmp_ne_u32 vcc, 1, v{tok+1}")
    A(f"s_cbranch_vccz {d}")
    A("s_sleep 1")
    A(f"s_branch {l}")
    A.label(d)

def flag_store(A, soff, va, vt):
    A(f"v_mov_b32 v{va}, 0")
    A("s_mov_b64 exec, 1")
    A(f"buffer_store_dword v{vt}, v{va}, s[{S_WS}:{S_WS+3}], s{soff} offen sc1")
    A("s_mov_b64 exec, -1")

WD, HV, AR, RW, RR, OV, FV, AGV = 26, 28, 30, 34, 35, 38, 39, 40
TMP = 48
W2R = 160
ACC = 64
S_RT, S_CT, S_WL, S_WR_, S_HL, S_HR, S_M2, S_OO, S_C0, S_HF = 76, 77, 78, 79, 80, 81, 82, 83, 84, 32

def tile_ids(A, rt, ct, t0, t1):
    A(f"s_lshr_b32 s{rt}, s{S_J}, 2")
    A(f"s_and_b32 s{t0}, s{S_XCD}, 6")
    A(f"s_lshl_b32 s{t0}, s{t0}, 2")
    A(f"s_add_u32 s{rt}, s{rt}, s{t0}")
    A(f"s_and_b32 s{t0}, s{S_XCD}, 1")
    A(f"s_lshl_b32 s{ct}, s{t0}, 2")
    A(f"s_and_b32 s{t1}, s{S_J}, 3")
    A(f"s_add_u32 s{ct}, s{ct}, s{t1}")

def g2_setup(A):
    w = S_WAVE
    tile_ids(A, S_RT, S_CT, S_T0, S_T1)
    A(f"s_mul_i32 s{S_T0}, s{S_T0}, 56")
    A(f"s_mul_i32 s{S_T1}, s{w}, 14")
    A(f"s_add_u32 s{S_HL}, s{S_T0}, s{S_T1}")
    A(f"s_sub_u32 s{S_T0}, 56, s{S_T0}")
    A(f"s_add_u32 s{S_HR}, s{S_T0}, s{S_T1}")
    A(f"s_lshl_b32 s{S_T0}, s{S_CT}, 7")
    A(f"s_lshl_b32 s{S_WL}, s{S_HL}, 14")
    A(f"s_add_u32 s{S_WL}, s{S_WL}, s{S_T0}")
    A(f"s_lshl_b32 s{S_WR_}, s{S_HR}, 14")
    A(f"s_add_u32 s{S_WR_}, s{S_WR_}, s{S_T0}")
    A(f"s_mul_i32 s{S_T0}, s{S_RT}, 224")
    A(f"s_add_u32 s{S_HL}, s{S_HL}, s{S_T0}")
    A(f"s_lshl_b32 s{S_HL}, s{S_HL}, 10")
    A(f"s_add_u32 s{S_HR}, s{S_HR}, s{S_T0}")
    A(f"s_lshl_b32 s{S_HR}, s{S_HR}, 10")
    A(f"s_lshl_b32 s{S_M2}, s{w}, 13")
    T = TMP
    A(f"v_lshrrev_b32 v{T}, 3, v1")
    A(f"v_and_b32 v{T+1}, 7, v1")
    A(f"v_bfe_u32 v{T+2}, v1, 4, 1")
    A(f"v_lshlrev_b32 v{T+2}, 2, v{T+2}")
    A(f"v_xor_b32 v{T+1}, v{T+1}, v{T+2}")
    A(f"v_lshlrev_b32 v{T}, 10, v{T}")
    A(f"v_lshl_add_u32 v{WD}, v{T+1}, 4, v{T}")
    A(f"v_add_u32 v{WD+1}, {8192-1024}, v{WD}")

def g2_setup2(A):
    w = S_WAVE; T = TMP
    A(f"s_and_b32 s{S_T0}, s{w}, 1")
    A(f"s_mul_i32 s{S_T0}, s{S_T0}, {112*1024}")
    A(f"s_sub_u32 s{S_T1}, {112*1024}, s{S_T0}")
    A(f"v_lshlrev_b32 v{T}, 4, v1")
    A(f"v_add_u32 v{HV}, s{S_T0}, v{T}")
    A(f"v_add_u32 v{HV+1}, s{S_T1}, v{T}")
    A(f"v_add_u32 v{RW}, s{S_M2}, v{T}")
    for t in range(1, 4):
        A(f"s_xor_b32 s{S_T0}, s{S_M2}, {t<<13}")
        A(f"v_add_u32 v{RR+t-1}, s{S_T0}, v{T}")
    A(f"s_mul_i32 s{S_T0}, s{w}, 2560")
    A(f"s_add_u32 s{S_T0}, s{S_T0}, {LDS_AG}")
    A(f"v_add_u32 v{AGV}, s{S_T0}, v{T}")
    A(f"v_lshrrev_b32 v{T+1}, 5, v1")
    A(f"v_bfe_u32 v{T+2}, v1, 2, 2")
    A(f"v_bfe_u32 v{T+3}, v1, 4, 1")
    A(f"v_bfe_u32 v{T+4}, v1, 1, 1")
    A(f"v_lshl_add_u32 v{T+3}, v{T+3}, 1, v{T+4}")
    A(f"v_bfe_u32 v{T+4}, v1, 3, 1")
    A(f"s_lshr_b32 s{S_T0}, s{w}, 1")
    A(f"v_xor_b32 v{T+4}, s{S_T0}, v{T+4}")
    A(f"v_lshl_add_u32 v{T+3}, v{T+4}, 2, v{T+3}")
    A(f"v_lshl_add_u32 v{T+2}, v{T+1}, 2, v{T+2}")
    A(f"v_lshlrev_b32 v{T+2}, 7, v{T+2}")
    A(f"v_lshl_add_u32 v{T+2}, v{T+3}, 4, v{T+2}")
    A(f"v_and_b32 v{T+4}, 1, v1")
    A(f"v_lshl_add_u32 v{T+2}, v{T+4}, 3, v{T+2}")
    A(f"v_add_u32 v{AR}, s{S_M2}, v{T+2}")
    A(f"v_xor_b32 v{AR+1}, 64, v{AR}")
    A(f"v_add_u32 v{AR+2}, 0x10000, v{AR}")
    A(f"v_add_u32 v{AR+3}, 0x10000, v{AR+1}")
    A(f"s_lshl_b32 s{S_T0}, s{S_RT}, 1")
    A(f"s_and_b32 s{S_T1}, s{w}, 1")
    A(f"s_add_u32 s{S_T0}, s{S_T0}, s{S_T1}")
    A(f"s_lshl_b32 s{S_OO}, s{S_T0}, 15")
    A(f"s_lshl_b32 s{S_T0}, s{S_CT}, 7")
    A(f"s_add_u32 s{S_OO}, s{S_OO}, s{S_T0}")
    A(f"s_and_b32 s{S_T0}, s{w}, 2")
    A(f"s_lshl_b32 s{S_T0}, s{S_T0}, 5")
    A(f"s_add_u32 s{S_OO}, s{S_OO}, s{S_T0}")
    A(f"v_and_b32 v{T}, 31, v1")
    A(f"v_lshlrev_b32 v{T+2}, 10, v{T}")
    A(f"v_lshl_add_u32 v{OV}, v{T+1}, 4, v{T+2}")
    A(f"s_lshl_b32 s{S_T0}, s{S_RT}, {5+FS}")
    A(f"s_add_u32 s{S_T0}, s{S_T0}, {WS_FLAG+F_H}")
    A(f"v_min_u32 v{T}, 27, v1")
    A(f"v_lshl_add_u32 v{FV}, v{T}, {FS}, s{S_T0}")

def ring(i): return (i // 4) * 32768 + (i % 4) * 2048
def w2_dma(ks):
    slot = ks % 16 if ks < 16 else ks - 16
    base, k = (S_WL, ks) if ks < 14 else (S_WR_, ks - 14)
    return [f"s_add_u32 m0, s{S_M2}, {ring(slot)}",
            f"s_add_u32 s{S_T1}, s{base}, {k*16384}",
            f"buffer_load_dwordx4 v{WD}, s[{S_W2}:{S_W2+3}], s{S_T1} offen lds",
            f"buffer_load_dwordx4 v{WD+1}, s[{S_W2}:{S_W2+3}], s{S_T1} offen offset:1024 lds"]
def w2_read(ks, dst):
    slot = ks if ks < 16 else ks - 16
    o = ring(slot); hi = o >> 16; o &= 0xffff
    return [f"ds_read_b64_tr_b16 {vr(dst+4*a+2*x,2)}, v{AR+2*hi+a} offset:{o+x*1024}" for a in range(2) for x in range(2)]
def h_load(ks, r):
    base, k = (S_HL, ks) if ks < 14 else (S_HR, ks - 14)
    return [f"s_add_u32 s{S_T0}, s{base}, {k*1024}",
            f"buffer_load_dwordx4 {vr(r,4)}, v{HV}, s[{S_WS}:{S_WS+3}], s{S_T0} offen sc1",
            f"buffer_load_dwordx4 {vr(r+4,4)}, v{HV+1}, s[{S_WS}:{S_WS+3}], s{S_T0} offen sc1"]

def chunk_dma(cc):
    if cc >= 8:
        return sum((w2_dma(4 * (cc - 8) + i) for i in range(4)), [])
    slot = cc % 4
    out = [f"s_add_u32 s{S_HO}, s{S_C0}, {cc}", f"s_and_b32 s{S_HO}, s{S_HO}, 7",
           f"s_lshl_b32 s{S_T1}, s{S_HO}, 7", f"s_add_u32 m0, s{S_M0X}, {slot*32768}", f"s_add_u32 s{S_T1}, s{S_T1}, s{S_XO}"]
    for i in range(4):
        out.append(f"buffer_load_dwordx4 v{G1_XD+i}, s[{S_X}:{S_X+3}], s{S_T1} offen offset:{i*1024} lds")
    out += [f"s_mul_i32 s{S_T1}, s{S_HO}, {64*2*F}", f"s_add_u32 m0, s{S_M0X}, {slot*32768+16384}", f"s_add_u32 s{S_T1}, s{S_T1}, s{S_WO}"]
    for i in range(4):
        out.append(f"buffer_load_dwordx4 v{G1_WD+i}, s[{S_W1}:{S_W1+3}], s{S_T1} offen offset:{i*1024} lds")
    return out

def split_groups(lst, n):
    units = []; cur = []
    for x in lst:
        cur.append(x)
        if x.startswith("buffer_"): units.append(cur); cur = []
    g = [[] for _ in range(n)]
    for i, u in enumerate(units): g[i * n // len(units)] += u
    return g

def g1_main(A, vm, cid):
    ARR = O.ARR
    vm.wait(cid[0])
    sw_arrive(A, G_FOWN, G_FT, 1)
    sw_wait(A, G_FRD, G_FT, 1)
    for r in g1_reads(0): A(r)
    grp = [[], [], [], []]
    g3 = split_groups(chunk_dma(3), 3)
    for c in range(8):
        if O.TSC and c in O.TSC: parts_ts(A, 2 + O.TSC.index(c))
        for s in range(4):
            t = 4 * c + s
            mf = g1_mfmas(t)
            if s == 3:
                if c == 0: cid[3] = vm.n
                else: cid[c + 2] = max(cid.get(c + 2, 0), vm.n)
                sw_wait(A, G_FRD, G_FT + 1, c + 2, issued=True)
                grp = split_groups(chunk_dma(c + 3), 4) if (c >= 1 and not (O.NOW2 and c + 3 >= 8)) else [[], [], [], []]
            pre = []
            if s == ARR:
                if c < 7: vm.wait(cid[c + 1], "lgkmcnt(0)")
                else: A("s_waitcnt lgkmcnt(0)")
                pre = [f"v_mov_b32 v{G_FT}, {c+2}", f"ds_write_b32 v{G_FOWN}, v{G_FT}"]
            elif s != 3: A("s_waitcnt lgkmcnt(0)")
            rd = g1_reads(t + 1) if t < 31 else []
            dm = grp[(s + 1) % 4] if c >= 1 else (g3[s] if s < 3 else [])
            post = [f"ds_read_b32 v{G_FT+1}, v{G_FRD}"] if s == 2 else []
            A(mf[0])
            for x in pre + rd[:3]: A(x)
            A(mf[1])
            for x in rd[3:]: A(x)
            if O.DPOS == 1:
                for x in dm: vm.op(x)
            A(mf[2])
            if O.DPOS == 2:
                for x in dm: vm.op(x)
            if O.DPOS == 3:
                h = split_groups(dm, 2) if dm else [[], []]
                for x in h[0]: vm.op(x)
            for x in post: A(x)
            A(mf[3])
            if O.DPOS == 3:
                for x in h[1]: vm.op(x)
    rest = grp[1] + grp[2] + grp[3]
    sw_arrive(A, G_FOWN, G_FT, 10)
    return 10, rest

def g1_epi(A, vm, cid, rest):
    w = S_WAVE
    A(f"s_lshl_b32 s{S_HO}, s{S_RB}, 2")
    A(f"s_and_b32 s{S_T0}, s{w}, 2")
    A(f"s_add_u32 s{S_HO}, s{S_HO}, s{S_T0}")
    A(f"s_lshl_b32 s{S_HF}, s{S_HO}, 6")
    A(f"s_mul_i32 s{S_HO}, s{S_HO}, 112")
    A(f"s_lshl_b32 s{S_T0}, s{S_CB}, 3")
    A(f"s_add_u32 s{S_HO}, s{S_HO}, s{S_T0}")
    A(f"s_add_u32 s{S_HF}, s{S_HF}, s{S_T0}")
    A(f"s_and_b32 s{S_T0}, s{w}, 1")
    A(f"s_lshl_b32 s{S_T0}, s{S_T0}, 2")
    A(f"s_add_u32 s{S_HO}, s{S_HO}, s{S_T0}")
    A(f"s_add_u32 s{S_HF}, s{S_HF}, s{S_T0}")
    A(f"s_lshl_b32 s{S_HF}, s{S_HF}, {FS-2}")
    A(f"s_add_u32 s{S_HF}, s{S_HF}, {WS_FLAG+F_H}")
    A(f"s_lshl_b32 s{S_HO}, s{S_HO}, 10")
    A(f"s_add_u32 s{S_XO}, s{S_HO}, {112*1024}")
    A(f"v_lshlrev_b32 v{TMP+8}, 4, v1")
    lg = split_groups(rest, 3) if rest else [[], [], []]
    p = 0
    for a in range(2):
        for b in range(2):
            acc = G1_ACC + (2*a+b)*16
            for fh in range(2):
                dst = G1_FR + p * 4
                if p < 3:
                    for x in lg[p]: vm.op(x)
                    cid[10] = vm.n
                silu_pairs(A, [(acc + 8*fh + 2*i, dst + i) for i in range(4)], TMP)
                so = S_HO if b == 0 else S_XO
                last = vm.op(f"buffer_store_dwordx4 {vr(dst,4)}, v{TMP+8}, s[{S_WS}:{S_WS+3}], s{so} offen offset:{(2*a+fh)*1024} {O.HST}")
                if 2 <= p <= 7:
                    vm.wait(cid[8 + (2*(p-2)) // 4])
                    for ks in (2*(p-2), 2*(p-2)+1):
                        for x in w2_read(ks, W2R + 8*ks): A(x)
                p += 1
    if O.TSE: ts(A, 5)
    token_get(A, TMP, VTOK)
    sw_wait(A, G_FRD, G_FT, 10)
    order = list(range(12, 28))
    for ks in order[:O.NPRE]:
        for x in w2_dma(ks): vm.op(x)
    vm.wait(last)
    flag_store(A, S_HF, TMP, VTOK); vm.n += 1
    ts(A, 3)
    for ks in order[O.NPRE:]:
        for x in w2_dma(ks): vm.op(x)

def g2_idle_prefetch(A):
    vm = Vm(A)
    ids = {}
    for ks in range(16):
        for x in w2_dma(ks): vm.op(x)
        ids[ks] = vm.n
    g2_setup2(A)
    for p in range(6):
        vm.wait(ids[2*p+1])
        for ks in (2*p, 2*p+1):
            for x in w2_read(ks, W2R + 8*ks): A(x)
        A("s_waitcnt lgkmcnt(0)")
        for ks in (16 + 2*p, 17 + 2*p):
            for x in w2_dma(ks): vm.op(x)

def g2_main(A):
    vm = Vm(A)
    free = [128, 136, 144, 152, 48, 56, 2, 10]
    hreg = {}; hid = {}
    nxt = 0
    def issue():
        nonlocal nxt
        r = free.pop(0); hreg[nxt] = r
        l = h_load(nxt, r); nxt += 1
        return l
    while free:
        k = nxt
        for x in issue(): vm.op(x)
        hid[k] = vm.n
    AF = [W2R, W2R + 8]
    for i in range(28):
        fr = W2R + 8 * i if i < 12 else AF[i % 2]
        vm.wait(hid[i], "lgkmcnt(0)" if i >= 12 else "")
        mf = []
        for t in (3, 2, 1, 0):
            a, b = t >> 1, t & 1
            acc = ACC + t * 16
            c = "0" if i == 0 else vr(acc, 16)
            mf.append(f"v_mfma_f32_32x32x16_bf16 {vr(acc,16)}, {vr(fr+4*a,4)}, {vr(hreg[i]+4*b,4)}, {c}")
        fill = []
        if 12 <= i + 1 < 28: fill += w2_read(i + 1, AF[(i + 1) % 2])
        nf = len(fill)
        if i >= 1:
            free.append(hreg[i - 1])
            if 2 <= i - 1 < 12 and O.HMORE: free.append(W2R + 8 * (i - 1))
        newk = []
        while free and nxt < 28:
            newk.append(nxt); fill += issue()
        n0 = vm.n
        il(A, vm, mf, fill, front=nf)
        for j, k in enumerate(newk): hid[k] = n0 + 2 * (j + 1)
O.HMORE = getattr(O, "HMORE", False)

ROFF = [0, 4096, 32768]
def g2_tail(A, ep):
    A("s_nop 7")
    for t in (3, 2, 1):
        for q in range(4):
            A(f"ds_write_b128 v{RW}, {vr(ACC+t*16+4*q,4)} offset:{ROFF[t-1]+q*1024}")
    A("s_waitcnt lgkmcnt(0)")
    sw_arrive(A, G_FOWN, G_FT, ep)
    A(f"v_mov_b32 v{TMP}, s{S_WAVE}")
    A(f"v_lshl_add_u32 v{TMP}, v{TMP}, 2, {LDS_SFLAG}".replace(f", {LDS_SFLAG}", f", v{TMP+1}") if False else f"v_lshlrev_b32 v{TMP}, 2, v{TMP}")
    A(f"v_add_u32 v{TMP}, {LDS_SFLAG}, v{TMP}")
    sw_wait(A, TMP, G_FT, 100, sleep=1)
    R = 128; U = R + 48; AP = R + 64; G = R + 72
    A(f"ds_read_b128 {vr(AP,4)}, v{AGV}")
    A(f"ds_read_b128 {vr(AP+4,4)}, v{AGV} offset:1024")
    A(f"v_lshrrev_b32 v{TMP+1}, 1, v{AGV}") if False else None
    A(f"v_lshlrev_b32 v{TMP+1}, 3, v1")
    A(f"v_sub_u32 v{TMP+1}, v{AGV}, v{TMP+1}")
    A(f"ds_read_b64 {vr(G,2)}, v{TMP+1} offset:2048")
    sw_wait(A, G_FRD, G_FT, ep)
    if not O.TSE: ts(A, 5)
    for t in range(3):
        for q in range(4):
            A(f"ds_read_b128 {vr(R+t*16+4*q,4)}, v{RR+t} offset:{ROFF[t]+q*1024}")
    for k in range(8):
        A(f"v_lshlrev_b32 v{U+2*k}, 16, v{AP+k}")
        A(f"v_and_b32 v{U+2*k+1}, 0xffff0000, v{AP+k}")
    for k in range(8):
        A(f"v_pk_mul_f32 {vr(U+2*k,2)}, {vr(U+2*k,2)}, {vr(G,2)} op_sel:[0,0] op_sel_hi:[1,0]")
    for t in range(3):
        A(f"s_waitcnt lgkmcnt({8-4*t})")
        for k in range(8):
            A(f"v_pk_add_f32 {vr(ACC+2*k,2)}, {vr(ACC+2*k,2)}, {vr(R+t*16+2*k,2)}")
    for k in range(8):
        A(f"v_pk_fma_f32 {vr(U+2*k,2)}, {vr(ACC+2*k,2)}, {vr(G,2)}, {vr(U+2*k,2)} op_sel:[0,1,0] op_sel_hi:[1,1,1]")
    P = TMP
    for k in range(8):
        A(f"v_cvt_pk_bf16_f32 v{P+k}, v{U+2*k}, v{U+2*k+1}")
    A("s_nop 1")
    for h in range(2):
        A(f"v_permlane32_swap_b32 v{P+4*h}, v{P+4*h+2}")
        A(f"v_permlane32_swap_b32 v{P+4*h+1}, v{P+4*h+3}")
    A("s_nop 1")
    for h in range(2):
        A(f"buffer_store_dwordx4 {vr(P+4*h,4)}, v{OV}, s[{S_OUT}:{S_OUT+3}], s{S_OO} offen offset:{32*h}")

def ag_fetch(A):
    w = S_WAVE
    RT, CT = Q_EX, Q_EX + 1
    tile_ids(A, RT, CT, Q_T0, Q_T1)
    TT, DB = Q_EX + 2, Q_EX + 3
    A(f"s_lshl_b32 s{TT}, s{RT}, 1")
    A(f"s_add_u32 s{TT}, s{TT}, s{Q_NH}")
    A(f"s_lshl_b32 s{DB}, s{CT}, 1")
    A(f"s_add_u32 s{DB}, s{DB}, s{Q_C}")
    A(f"s_bfe_u32 s{Q_T0}, s{RT}, 0x20002")
    A(f"s_lshl_b32 s{Q_T0}, s{Q_T0}, {8+FS}")
    A(f"s_lshl_b32 s{Q_T1}, s{DB}, {4+FS}")
    A(f"s_add_u32 s{Q_T0}, s{Q_T0}, s{Q_T1}")
    A(f"s_add_u32 s{Q_T0}, s{Q_T0}, {WS_FLAG+F_A}")
    A(f"v_lshl_add_u32 v8, v1, {FS}, s{Q_T0}")
    A(f"s_lshl_b32 s{Q_T0}, s{TT}, {2+FS}")
    A(f"s_add_u32 s{Q_T0}, s{Q_T0}, {WS_FLAG+F_G}")
    A("v_and_b32 v9, 3, v1")
    A(f"v_lshl_add_u32 v9, v9, {FS}, s{Q_T0}")
    A("v_cmp_gt_u32 vcc, 16, v1")
    A("v_and_b32 v10, 31, v1")
    A("v_lshrrev_b32 v11, 5, v1")
    A("v_cndmask_b32 v8, v9, v8, vcc")
    A("v_lshlrev_b32 v11, 14, v11")
    A("v_lshl_add_u32 v12, v10, 2, v11")
    A("v_add_u32 v13, 8192, v12")
    A(f"s_lshl_b32 s{Q_T0}, s{TT}, 8")
    A(f"s_add_u32 s{Q_T0}, s{Q_T0}, {WS_G}")
    A(f"v_lshl_add_u32 v14, v10, 3, s{Q_T0}")
    A(f"s_lshl_b32 s{Q_T0}, s{DB}, 17")
    A(f"s_lshl_b32 s{Q_T1}, s{TT}, 7")
    A(f"s_add_u32 s{Q_T0}, s{Q_T0}, s{Q_T1}")
    A(f"s_add_u32 s{Q_T0}, s{Q_T0}, {WS_A}")
    A(f"s_mul_i32 s{Q_T1}, s{w}, 2560")
    A(f"s_add_u32 s{Q_T1}, s{Q_T1}, {LDS_AG}")
    A(f"v_lshl_add_u32 v15, v1, 4, s{Q_T1}")
    A(f"v_lshl_add_u32 v16, v1, 3, s{Q_T1}")
    poll(A, 8, 9, STOK, "PA")
    for q in range(4):
        for i in range(2):
            A(f"buffer_load_dword v{64+2*q+i}, v{12+i}, s[{S_WS}:{S_WS+3}], s{Q_T0} offen sc1")
        if q < 3: A(f"s_add_u32 s{Q_T0}, s{Q_T0}, 32768")
    A(f"buffer_load_dwordx2 v[72:73], v14, s[{S_WS}:{S_WS+3}], 0 offen sc1")
    A("s_waitcnt vmcnt(0)")
    A("ds_write_b128 v15, v[64:67]")
    A("ds_write_b128 v15, v[68:71] offset:1024")
    A("ds_write_b64 v16, v[72:73] offset:2048")
    A("s_waitcnt lgkmcnt(0)")
    sw_arrive(A, S_FOWN, S_FT, 100)

KN = "gated_mix__ssm_conv_s4d__dense_activation_silu__prompt_kernel"
A = Asm()
A.raw("; @launch grid=(256,1,1) block=(512,1,1) lds=163840")
A.raw('.amdgcn_target "amdgcn-amd-amdhsa--gfx950"')
kernel_header(A, KN)
ts_real(A, 0); ts(A, 1)
prologue(A, "K_END")
A(f"s_mov_b32 s{S_W8}, s{S_WAVE}")
A("v_and_b32 v2, 15, v1")
A("v_lshlrev_b32 v2, 2, v2")
A(f"v_add_u32 v2, {LDS_MISC}, v2")
A("v_mov_b32 v3, 0")
A("ds_write_b32 v2, v3")
A(f"s_cmp_ge_u32 s{S_WAVE}, 4")
A("s_cbranch_scc1 K_SSM")
if O.GPRIO: A(f"s_setprio {O.GPRIO}")
g2_setup(A)
A(f"s_cmp_ge_u32 s{S_J}, 28")
A("s_cbranch_scc1 K_IDLE")
g1_setup(A)
a, b, c, d = O.ROT
A(f"s_and_b32 s{S_C0}, s{S_J}, 3"); A(f"s_mul_i32 s{S_C0}, s{S_C0}, {a}")
A(f"s_lshr_b32 s{S_T0}, s{S_J}, 2"); A(f"s_mul_i32 s{S_T0}, s{S_T0}, {b}"); A(f"s_add_u32 s{S_C0}, s{S_C0}, s{S_T0}")
if c: A(f"s_lshr_b32 s{S_T0}, s{S_XCD}, 1"); A(f"s_mul_i32 s{S_T0}, s{S_T0}, {c}"); A(f"s_add_u32 s{S_C0}, s{S_C0}, s{S_T0}")
if d: A(f"s_and_b32 s{S_T0}, s{S_XCD}, 1"); A(f"s_mul_i32 s{S_T0}, s{S_T0}, {d}"); A(f"s_add_u32 s{S_C0}, s{S_C0}, s{S_T0}")
A("s_waitcnt lgkmcnt(0)")
srd(A, S_X, P_U, L*D*2); srd(A, S_W1, P_W1, D*F*2)
vm = Vm(A); cid = {}
for x in chunk_dma(0): vm.op(x)
cid[0] = vm.n
srd(A, S_W2, P_W2, D*F*2); srd(A, S_WS, P_WS, WS_BYTES); srd(A, S_OUT, P_OUT, L*D*2)
A("s_barrier")
for x in chunk_dma(1): vm.op(x)
cid[1] = vm.n
g1_setup2(A)
g2_setup2(A)
for cc in range(2, O.LOOK):
    for x in chunk_dma(cc): vm.op(x)
    cid[cc] = vm.n
ep, rest = g1_main(A, vm, cid)
ts(A, 2)
g1_epi(A, vm, cid, rest)
A("s_branch K_G2")
A.label("K_IDLE")
A("s_waitcnt lgkmcnt(0)")
srd(A, S_W2, P_W2, D*F*2); srd(A, S_WS, P_WS, WS_BYTES); srd(A, S_OUT, P_OUT, L*D*2)
A("s_barrier")
gflag_setup(A)
g2_idle_prefetch(A)
ts(A, 2)
token_get(A, TMP, VTOK)
A("s_waitcnt vmcnt(0)")
ts(A, 3)
A.label("K_G2")
A(f"v_mov_b32 v{TMP+1}, {LDS_HOK}")
A(f"s_cmp_eq_u32 s{S_WAVE}, 0")
A("s_cbranch_scc0 K_HW")
poll(A, FV, TMP, VTOK, "PH")
A(f"ds_write_b32 v{TMP+1}, v{VTOK+1}")
A("s_branch K_HD")
A.label("K_HW")
sw_wait(A, TMP + 1, TMP, 1, sleep=1)
A.label("K_HD")
ts(A, 4)
g2_main(A)
g2_tail(A, ep + 1)
ts_dump(A, 0, S_W8)
A("s_endpgm")
A.label("K_SSM")
if O.SPRIO: A(f"s_setprio {O.SPRIO}")
A(f"s_sub_u32 s{S_WAVE}, s{S_WAVE}, 4")
s_setup(A)
carry_zero(A)
A("s_waitcnt lgkmcnt(0)")
srd(A, S_X, P_U, L*D*2); srd(A, S_WS, P_WS, WS_BYTES)
A(f"s_cmp_eq_u32 s{S_WAVE}, 0")
A("s_cbranch_scc0 K_S1")
A(f"s_add_u32 s{Q_EX+4}, s{P_WS}, {WS_FLAG+F_EP}")
A(f"s_addc_u32 s{Q_EX+5}, s{P_WS+1}, 0")
A(f"s_load_dword s{Q_EX+6}, s[{Q_EX+4}:{Q_EX+5}], 0")
tr_issue(A); kg_loads(A)
A("s_barrier")
def tokpub():
    A("s_waitcnt lgkmcnt(0)")
    A(f"s_mul_i32 s{Q_EX+6}, s{Q_EX+6}, 0x9e3779b1")
    A(f"s_add_u32 s{Q_EX+6}, s{Q_EX+6}, 0x7f4a7c15")
    A(f"v_mov_b32 v{STOK}, s{Q_EX+6}")
    A(f"v_mov_b32 v{STOK+1}, 1")
    A(f"v_mov_b32 v17, {LDS_READY}")
    A(f"ds_write_b64 v17, {vr(STOK,2)}")
tr_finish(A, "sc1", later=0, hook=tokpub)
A(f"s_lshl_b32 s{S_HF}, s{Q_PAIR}, {FS}")
A(f"s_add_u32 s{S_HF}, s{S_HF}, {WS_FLAG+F_UT}")
A("s_branch K_KG")
A.label("K_S1")
A(f"s_cmp_eq_u32 s{S_WAVE}, 1")
A("s_cbranch_scc0 K_S2")
gate_issue(A); kg_loads(A)
A("s_barrier")
gate_finish(A, "sc1", later=0)
A(f"s_lshl_b32 s{S_HF}, s{Q_PAIR}, {FS}")
A(f"s_add_u32 s{S_HF}, s{S_HF}, {WS_FLAG+F_G}")
A("s_branch K_KG")
A.label("K_S2")
kg_loads(A)
A("s_barrier")
A("s_waitcnt vmcnt(0)")
A.label("K_KG")
ts(A, 2)
if O.NOSSM:
    token_get(A, 8, STOK)
    A(f"s_cmp_ge_u32 s{S_WAVE}, 2")
    A("s_cbranch_scc1 K_NF0")
    A("s_waitcnt vmcnt(0)")
    flag_store(A, S_HF, 8, STOK)
    A.label("K_NF0")
    ts(A, 3)
    sw_arrive(A, S_FOWN, S_FT, 100)
    A("s_branch K_EP")
def kghook():
    token_get(A, 8, STOK)
    A(f"s_cmp_ge_u32 s{S_WAVE}, 2")
    A("s_cbranch_scc1 K_NF")
    A("s_waitcnt vmcnt(0)")
    flag_store(A, S_HF, 8, STOK)
    A.label("K_NF")
kgen(A, later=None, hook=kghook)
kgen_exchange_write(A)
s_barrier(A, 1)
kgen_final(A)
ts(A, 3)
A(f"s_cmp_eq_u32 s{S_WAVE}, 3")
A("s_cbranch_scc0 K_NU")
A(f"s_lshl_b32 s{Q_T0}, s{S_XCD}, {5+FS}")
A(f"s_add_u32 s{Q_T0}, s{Q_T0}, {WS_FLAG+F_UT}")
A("v_and_b32 v8, 31, v1")
A(f"v_lshl_add_u32 v8, v8, {FS}, s{Q_T0}")
poll(A, 8, 9, STOK, "PU")
ut_all(A, "sc1")
ut_all_write(A)
A.label("K_NU")
conv_setup(A)
s_barrier(A, 2)
ts(A, 4)
if O.KDUMP: k_dump(A)
if O.CPRIO != O.SPRIO: A(f"s_setprio {O.CPRIO}")
conv(A)
if O.CPRIO != O.SPRIO: A(f"s_setprio {O.SPRIO}")
s_barrier(A, 3)
conv_final(A, "sc1")
A(f"s_lshl_b32 s{Q_EX}, s{Q_PAIR}, {FS}")
A(f"s_lshl_b32 s{Q_T0}, s{S_WAVE}, {8+FS}")
A(f"s_add_u32 s{Q_EX}, s{Q_EX}, s{Q_T0}")
A(f"s_add_u32 s{Q_EX}, s{Q_EX}, {WS_FLAG+F_A}")
A("s_waitcnt vmcnt(0)")
flag_store(A, Q_EX, 8, STOK)
ts(A, 5)
ag_fetch(A)
A.label("K_EP")
A(f"s_or_b32 s{Q_T0}, s2, s{S_WAVE}")
A(f"s_cmp_eq_u32 s{Q_T0}, 0")
A("s_cbranch_scc0 K_NE")
for i in range(4):
    A(f"v_lshlrev_b32 v8, {FS}, v1")
    A(f"v_add_u32 v8, {WS_FLAG+F_UT+(64<<FS)*i}, v8")
    poll(A, 8, 9, STOK, "PE")
A(f"s_mov_b32 s{Q_T0}, {WS_FLAG+F_EP}")
flag_store(A, Q_T0, 8, STOK)
A.label("K_NE")
ts_dump(A, 0, S_W8)
A.label("K_END")
A("s_endpgm")
kernel_desc(A, KN, 256)
open(sys.argv[1], "w").write(A.text())
```

```python
import sys; sys.path.insert(0, "gen")
import parts
from parts import *
from ssm import *
import ssm

class Opt: pass
O = Opt()
O.TS = False
O.ROT = (2, 1, 0, 0)
O.LOOK = 3
O.KDUMP = False
O.SPRIO = 3
O.CPRIO = 0
O.GPRIO = 1
O.CODEPF = False
O.HST = "sc1"
O.SPIN = 100000
O.SLP = 4
O.NOSSM = False
O.TSE = False
O.TSC = None
O.NOW2 = False
O.ARR = 2
O.DPOS = 2
O.NPRE = 8
O.DIAG = None
for a in sys.argv[2:]: exec("O." + a)
parts.TS = O.TS

FS = 8
F_UT, F_G, F_A, F_H = 0, 256 << FS, 512 << FS, 1536 << FS
F_EP = 2560 << FS
assert WS_FLAG + F_EP + 256 <= (13 << 20)
VTOK = 44
STOK = 32
LDS_HOK = LDS_MISC + 40
LDS_READY = LDS_MISC + 32
LDS_AG = LDS_SSM
S_DBG = 28
S_W8 = 27
S_SPIN = 85

parts_ts = ts
if O.TSC:
    def ts(A, i):
        if i < 2: parts_ts(A, i)

class Vm:
    def __init__(self, A): self.A = A; self.n = 0; self.done = 0
    def op(self, s):
        self.A(s)
        if s.startswith("buffer_") or s.startswith("global_"): self.n += 1
        return self.n
    def cnt(self, idn):
        k = min(self.n - idn, 63); self.done = max(self.done, self.n - k); return k
    def wait(self, idn, extra=""):
        if idn <= self.done:
            if extra: self.A(f"s_waitcnt {extra}")
            return
        self.A(f"s_waitcnt vmcnt({self.cnt(idn)}) {extra}")

def il(A, vm, mf, fill, front=0):
    n = len(mf); k = 0
    rest = len(fill) - front
    for i, m in enumerate(mf):
        A(m)
        tgt = min(front, 3 * (i + 1))
        if tgt == front:
            i0 = max((front + 2) // 3 - 1, 0)
            tgt = front + (rest * (i - i0 + 1) + (n - i0) - 1) // (n - i0)
        while k < min(tgt, len(fill)):
            vm.op(fill[k]); k += 1
    while k < len(fill):
        vm.op(fill[k]); k += 1

def poll(A, vaddr, vt, tok, name):
    l = A.newlabel(name); d = A.newlabel(name)
    A(f"s_mov_b32 s{S_SPIN}, {O.SPIN}")
    A.label(l)
    A(f"buffer_load_dword v{vt}, v{vaddr}, s[{S_WS}:{S_WS+3}], 0 offen sc1")
    A("s_waitcnt vmcnt(0)")
    A(f"v_cmp_ne_u32 vcc, v{tok}, v{vt}")
    A(f"s_cbranch_vccz {d}")
    A(f"s_sleep {O.SLP}")
    A(f"s_sub_u32 s{S_SPIN}, s{S_SPIN}, 1")
    A(f"s_cbranch_scc0 {l}")
    A.label(d)

def token_get(A, va, tok):
    l = A.newlabel("RW"); d = A.newlabel("RW")
    A(f"v_mov_b32 v{va}, {LDS_READY}")
    A.label(l)
    A(f"ds_read_b64 {vr(tok,2)}, v{va}")
    A("s_waitcnt lgkmcnt(0)")
    A(f"v_cmp_ne_u32 vcc, 1, v{tok+1}")
    A(f"s_cbranch_vccz {d}")
    A("s_sleep 1")
    A(f"s_branch {l}")
    A.label(d)

def flag_store(A, soff, va, vt):
    A(f"v_mov_b32 v{va}, 0")
    A("s_mov_b64 exec, 1")
    A(f"buffer_store_dword v{vt}, v{va}, s[{S_WS}:{S_WS+3}], s{soff} offen sc1")
    A("s_mov_b64 exec, -1")

WD, HV, AR, RW, RR, OV, FV, AGV = 26, 28, 30, 34, 35, 38, 39, 40
TMP = 48
W2R = 160
ACC = 64
S_RT, S_CT, S_WL, S_WR_, S_HL, S_HR, S_M2, S_OO, S_C0, S_HF = 76, 77, 78, 79, 80, 81, 82, 83, 84, 32

def tile_ids(A, rt, ct, t0, t1):
    A(f"s_lshr_b32 s{rt}, s{S_J}, 2")
    A(f"s_and_b32 s{t0}, s{S_XCD}, 6")
    A(f"s_lshl_b32 s{t0}, s{t0}, 2")
    A(f"s_add_u32 s{rt}, s{rt}, s{t0}")
    A(f"s_and_b32 s{t0}, s{S_XCD}, 1")
    A(f"s_lshl_b32 s{ct}, s{t0}, 2")
    A(f"s_and_b32 s{t1}, s{S_J}, 3")
    A(f"s_add_u32 s{ct}, s{ct}, s{t1}")

def g2_setup(A):
    w = S_WAVE
    tile_ids(A, S_RT, S_CT, S_T0, S_T1)
    A(f"s_mul_i32 s{S_T0}, s{S_T0}, 56")
    A(f"s_mul_i32 s{S_T1}, s{w}, 14")
    A(f"s_add_u32 s{S_HL}, s{S_T0}, s{S_T1}")
    A(f"s_sub_u32 s{S_T0}, 56, s{S_T0}")
    A(f"s_add_u32 s{S_HR}, s{S_T0}, s{S_T1}")
    A(f"s_lshl_b32 s{S_T0}, s{S_CT}, 7")
    A(f"s_lshl_b32 s{S_WL}, s{S_HL}, 14")
    A(f"s_add_u32 s{S_WL}, s{S_WL}, s{S_T0}")
    A(f"s_lshl_b32 s{S_WR_}, s{S_HR}, 14")
    A(f"s_add_u32 s{S_WR_}, s{S_WR_}, s{S_T0}")
    A(f"s_mul_i32 s{S_T0}, s{S_RT}, 224")
    A(f"s_add_u32 s{S_HL}, s{S_HL}, s{S_T0}")
    A(f"s_lshl_b32 s{S_HL}, s{S_HL}, 10")
    A(f"s_add_u32 s{S_HR}, s{S_HR}, s{S_T0}")
    A(f"s_lshl_b32 s{S_HR}, s{S_HR}, 10")
    A(f"s_lshl_b32 s{S_M2}, s{w}, 13")
    T = TMP
    A(f"v_lshrrev_b32 v{T}, 3, v1")
    A(f"v_and_b32 v{T+1}, 7, v1")
    A(f"v_bfe_u32 v{T+2}, v1, 4, 1")
    A(f"v_lshlrev_b32 v{T+2}, 2, v{T+2}")
    A(f"v_xor_b32 v{T+1}, v{T+1}, v{T+2}")
    A(f"v_lshlrev_b32 v{T}, 10, v{T}")
    A(f"v_lshl_add_u32 v{WD}, v{T+1}, 4, v{T}")
    A(f"v_add_u32 v{WD+1}, {8192-1024}, v{WD}")

def g2_setup2(A):
    w = S_WAVE; T = TMP
    A(f"s_and_b32 s{S_T0}, s{w}, 1")
    A(f"s_mul_i32 s{S_T0}, s{S_T0}, {112*1024}")
    A(f"s_sub_u32 s{S_T1}, {112*1024}, s{S_T0}")
    A(f"v_lshlrev_b32 v{T}, 4, v1")
    A(f"v_add_u32 v{HV}, s{S_T0}, v{T}")
    A(f"v_add_u32 v{HV+1}, s{S_T1}, v{T}")
    A(f"v_add_u32 v{RW}, s{S_M2}, v{T}")
    for t in range(1, 4):
        A(f"s_xor_b32 s{S_T0}, s{S_M2}, {t<<13}")
        A(f"v_add_u32 v{RR+t-1}, s{S_T0}, v{T}")
    A(f"s_mul_i32 s{S_T0}, s{w}, 2560")
    A(f"s_add_u32 s{S_T0}, s{S_T0}, {LDS_AG}")
    A(f"v_add_u32 v{AGV}, s{S_T0}, v{T}")
    A(f"v_lshrrev_b32 v{T+1}, 5, v1")
    A(f"v_bfe_u32 v{T+2}, v1, 2, 2")
    A(f"v_bfe_u32 v{T+3}, v1, 4, 1")
    A(f"v_bfe_u32 v{T+4}, v1, 1, 1")
    A(f"v_lshl_add_u32 v{T+3}, v{T+3}, 1, v{T+4}")
    A(f"v_bfe_u32 v{T+4}, v1, 3, 1")
    A(f"s_lshr_b32 s{S_T0}, s{w}, 1")
    A(f"v_xor_b32 v{T+4}, s{S_T0}, v{T+4}")
    A(f"v_lshl_add_u32 v{T+3}, v{T+4}, 2, v{T+3}")
    A(f"v_lshl_add_u32 v{T+2}, v{T+1}, 2, v{T+2}")
    A(f"v_lshlrev_b32 v{T+2}, 7, v{T+2}")
    A(f"v_lshl_add_u32 v{T+2}, v{T+3}, 4, v{T+2}")
    A(f"v_and_b32 v{T+4}, 1, v1")
    A(f"v_lshl_add_u32 v{T+2}, v{T+4}, 3, v{T+2}")
    A(f"v_add_u32 v{AR}, s{S_M2}, v{T+2}")
    A(f"v_xor_b32 v{AR+1}, 64, v{AR}")
    A(f"v_add_u32 v{AR+2}, 0x10000, v{AR}")
    A(f"v_add_u32 v{AR+3}, 0x10000, v{AR+1}")
    A(f"s_lshl_b32 s{S_T0}, s{S_RT}, 1")
    A(f"s_and_b32 s{S_T1}, s{w}, 1")
    A(f"s_add_u32 s{S_T0}, s{S_T0}, s{S_T1}")
    A(f"s_lshl_b32 s{S_OO}, s{S_T0}, 15")
    A(f"s_lshl_b32 s{S_T0}, s{S_CT}, 7")
    A(f"s_add_u32 s{S_OO}, s{S_OO}, s{S_T0}")
    A(f"s_and_b32 s{S_T0}, s{w}, 2")
    A(f"s_lshl_b32 s{S_T0}, s{S_T0}, 5")
    A(f"s_add_u32 s{S_OO}, s{S_OO}, s{S_T0}")
    A(f"v_and_b32 v{T}, 31, v1")
    A(f"v_lshlrev_b32 v{T+2}, 10, v{T}")
    A(f"v_lshl_add_u32 v{OV}, v{T+1}, 4, v{T+2}")
    A(f"s_lshl_b32 s{S_T0}, s{S_RT}, {5+FS}")
    A(f"s_add_u32 s{S_T0}, s{S_T0}, {WS_FLAG+F_H}")
    A(f"v_min_u32 v{T}, 27, v1")
    A(f"v_lshl_add_u32 v{FV}, v{T}, {FS}, s{S_T0}")

def ring(i): return (i // 4) * 32768 + (i % 4) * 2048
def w2_dma(ks):
    slot = ks % 16 if ks < 16 else ks - 16
    base, k = (S_WL, ks) if ks < 14 else (S_WR_, ks - 14)
    return [f"s_add_u32 m0, s{S_M2}, {ring(slot)}",
            f"s_add_u32 s{S_T1}, s{base}, {k*16384}",
            f"buffer_load_dwordx4 v{WD}, s[{S_W2}:{S_W2+3}], s{S_T1} offen lds",
            f"buffer_load_dwordx4 v{WD+1}, s[{S_W2}:{S_W2+3}], s{S_T1} offen offset:1024 lds"]
def w2_read(ks, dst):
    slot = ks if ks < 16 else ks - 16
    o = ring(slot); hi = o >> 16; o &= 0xffff
    return [f"ds_read_b64_tr_b16 {vr(dst+4*a+2*x,2)}, v{AR+2*hi+a} offset:{o+x*1024}" for a in range(2) for x in range(2)]
def h_load(ks, r):
    base, k = (S_HL, ks) if ks < 14 else (S_HR, ks - 14)
    return [f"s_add_u32 s{S_T0}, s{base}, {k*1024}",
            f"buffer_load_dwordx4 {vr(r,4)}, v{HV}, s[{S_WS}:{S_WS+3}], s{S_T0} offen sc1",
            f"buffer_load_dwordx4 {vr(r+4,4)}, v{HV+1}, s[{S_WS}:{S_WS+3}], s{S_T0} offen sc1"]

def chunk_dma(cc):
    if cc >= 8:
        return sum((w2_dma(4 * (cc - 8) + i) for i in range(4)), [])
    slot = cc % 4
    out = [f"s_add_u32 s{S_HO}, s{S_C0}, {cc}", f"s_and_b32 s{S_HO}, s{S_HO}, 7",
           f"s_lshl_b32 s{S_T1}, s{S_HO}, 7", f"s_add_u32 m0, s{S_M0X}, {slot*32768}", f"s_add_u32 s{S_T1}, s{S_T1}, s{S_XO}"]
    for i in range(4):
        out.append(f"buffer_load_dwordx4 v{G1_XD+i}, s[{S_X}:{S_X+3}], s{S_T1} offen offset:{i*1024} lds")
    out += [f"s_mul_i32 s{S_T1}, s{S_HO}, {64*2*F}", f"s_add_u32 m0, s{S_M0X}, {slot*32768+16384}", f"s_add_u32 s{S_T1}, s{S_T1}, s{S_WO}"]
    for i in range(4):
        out.append(f"buffer_load_dwordx4 v{G1_WD+i}, s[{S_W1}:{S_W1+3}], s{S_T1} offen offset:{i*1024} lds")
    return out

def split_groups(lst, n):
    units = []; cur = []
    for x in lst:
        cur.append(x)
        if x.startswith("buffer_"): units.append(cur); cur = []
    g = [[] for _ in range(n)]
    for i, u in enumerate(units): g[i * n // len(units)] += u
    return g

def g1_main(A, vm, cid):
    ARR = O.ARR
    vm.wait(cid[0])
    sw_arrive(A, G_FOWN, G_FT, 1)
    sw_wait(A, G_FRD, G_FT, 1)
    for r in g1_reads(0): A(r)
    grp = [[], [], [], []]
    g3 = split_groups(chunk_dma(3), 3)
    for c in range(8):
        if O.TSC and c in O.TSC: parts_ts(A, 2 + O.TSC.index(c))
        for s in range(4):
            t = 4 * c + s
            mf = g1_mfmas(t)
            if s == 3:
                if c == 0: cid[3] = vm.n
                else: cid[c + 2] = max(cid.get(c + 2, 0), vm.n)
                sw_wait(A, G_FRD, G_FT + 1, c + 2, issued=True)
                grp = split_groups(chunk_dma(c + 3), 4) if (c >= 1 and not (O.NOW2 and c + 3 >= 8)) else [[], [], [], []]
            pre = []
            if s == ARR:
                if c < 7: vm.wait(cid[c + 1], "lgkmcnt(0)")
                else: A("s_waitcnt lgkmcnt(0)")
                pre = [f"v_mov_b32 v{G_FT}, {c+2}", f"ds_write_b32 v{G_FOWN}, v{G_FT}"]
            elif s != 3: A("s_waitcnt lgkmcnt(0)")
            rd = g1_reads(t + 1) if t < 31 else []
            dm = grp[(s + 1) % 4] if c >= 1 else (g3[s] if s < 3 else [])
            post = [f"ds_read_b32 v{G_FT+1}, v{G_FRD}"] if s == 2 else []
            A(mf[0])
            for x in pre + rd[:3]: A(x)
            A(mf[1])
            for x in rd[3:]: A(x)
            if O.DPOS == 1:
                for x in dm: vm.op(x)
            A(mf[2])
            if O.DPOS == 2:
                for x in dm: vm.op(x)
            if O.DPOS == 3:
                h = split_groups(dm, 2) if dm else [[], []]
                for x in h[0]: vm.op(x)
            for x in post: A(x)
            A(mf[3])
            if O.DPOS == 3:
                for x in h[1]: vm.op(x)
    rest = grp[1] + grp[2] + grp[3]
    sw_arrive(A, G_FOWN, G_FT, 10)
    return 10, rest

def g1_epi(A, vm, cid, rest):
    w = S_WAVE
    A(f"s_lshl_b32 s{S_HO}, s{S_RB}, 2")
    A(f"s_and_b32 s{S_T0}, s{w}, 2")
    A(f"s_add_u32 s{S_HO}, s{S_HO}, s{S_T0}")
    A(f"s_lshl_b32 s{S_HF}, s{S_HO}, 6")
    A(f"s_mul_i32 s{S_HO}, s{S_HO}, 112")
    A(f"s_lshl_b32 s{S_T0}, s{S_CB}, 3")
    A(f"s_add_u32 s{S_HO}, s{S_HO}, s{S_T0}")
    A(f"s_add_u32 s{S_HF}, s{S_HF}, s{S_T0}")
    A(f"s_and_b32 s{S_T0}, s{w}, 1")
    A(f"s_lshl_b32 s{S_T0}, s{S_T0}, 2")
    A(f"s_add_u32 s{S_HO}, s{S_HO}, s{S_T0}")
    A(f"s_add_u32 s{S_HF}, s{S_HF}, s{S_T0}")
    A(f"s_lshl_b32 s{S_HF}, s{S_HF}, {FS-2}")
    A(f"s_add_u32 s{S_HF}, s{S_HF}, {WS_FLAG+F_H}")
    A(f"s_lshl_b32 s{S_HO}, s{S_HO}, 10")
    A(f"s_add_u32 s{S_XO}, s{S_HO}, {112*1024}")
    A(f"v_lshlrev_b32 v{TMP+8}, 4, v1")
    lg = split_groups(rest, 3) if rest else [[], [], []]
    p = 0
    for a in range(2):
        for b in range(2):
            acc = G1_ACC + (2*a+b)*16
            for fh in range(2):
                dst = G1_FR + p * 4
                if p < 3:
                    for x in lg[p]: vm.op(x)
                    cid[10] = vm.n
                silu_pairs(A, [(acc + 8*fh + 2*i, dst + i) for i in range(4)], TMP)
                so = S_HO if b == 0 else S_XO
                last = vm.op(f"buffer_store_dwordx4 {vr(dst,4)}, v{TMP+8}, s[{S_WS}:{S_WS+3}], s{so} offen offset:{(2*a+fh)*1024} {O.HST}")
                if 2 <= p <= 7:
                    vm.wait(cid[8 + (2*(p-2)) // 4])
                    for ks in (2*(p-2), 2*(p-2)+1):
                        for x in w2_read(ks, W2R + 8*ks): A(x)
                p += 1
    if O.TSE: ts(A, 5)
    token_get(A, TMP, VTOK)
    sw_wait(A, G_FRD, G_FT, 10)
    order = list(range(12, 28))
    for ks in order[:O.NPRE]:
        for x in w2_dma(ks): vm.op(x)
    vm.wait(last)
    flag_store(A, S_HF, TMP, VTOK); vm.n += 1
    ts(A, 3)
    for ks in order[O.NPRE:]:
        for x in w2_dma(ks): vm.op(x)

def g2_idle_prefetch(A):
    vm = Vm(A)
    ids = {}
    for ks in range(16):
        for x in w2_dma(ks): vm.op(x)
        ids[ks] = vm.n
    g2_setup2(A)
    for p in range(6):
        vm.wait(ids[2*p+1])
        for ks in (2*p, 2*p+1):
            for x in w2_read(ks, W2R + 8*ks): A(x)
        A("s_waitcnt lgkmcnt(0)")
        for ks in (16 + 2*p, 17 + 2*p):
            for x in w2_dma(ks): vm.op(x)

def g2_main(A):
    vm = Vm(A)
    free = [128, 136, 144, 152, 48, 56, 2, 10]
    hreg = {}; hid = {}
    nxt = 0
    def issue():
        nonlocal nxt
        r = free.pop(0); hreg[nxt] = r
        l = h_load(nxt, r); nxt += 1
        return l
    while free:
        k = nxt
        for x in issue(): vm.op(x)
        hid[k] = vm.n
    AF = [W2R, W2R + 8]
    for i in range(28):
        fr = W2R + 8 * i if i < 12 else AF[i % 2]
        vm.wait(hid[i], "lgkmcnt(0)" if i >= 12 else "")
        mf = []
        for t in (3, 2, 1, 0):
            a, b = t >> 1, t & 1
            acc = ACC + t * 16
            c = "0" if i == 0 else vr(acc, 16)
            mf.append(f"v_mfma_f32_32x32x16_bf16 {vr(acc,16)}, {vr(fr+4*a,4)}, {vr(hreg[i]+4*b,4)}, {c}")
        fill = []
        if 12 <= i + 1 < 28: fill += w2_read(i + 1, AF[(i + 1) % 2])
        nf = len(fill)
        if i >= 1:
            free.append(hreg[i - 1])
            if 2 <= i - 1 < 12 and O.HMORE: free.append(W2R + 8 * (i - 1))
        newk = []
        while free and nxt < 28:
            newk.append(nxt); fill += issue()
        n0 = vm.n
        il(A, vm, mf, fill, front=nf)
        for j, k in enumerate(newk): hid[k] = n0 + 2 * (j + 1)
O.HMORE = getattr(O, "HMORE", False)

ROFF = [0, 4096, 32768]
def g2_tail(A, ep):
    A("s_nop 7")
    for t in (3, 2, 1):
        for q in range(4):
            A(f"ds_write_b128 v{RW}, {vr(ACC+t*16+4*q,4)} offset:{ROFF[t-1]+q*1024}")
    A("s_waitcnt lgkmcnt(0)")
    sw_arrive(A, G_FOWN, G_FT, ep)
    A(f"v_mov_b32 v{TMP}, s{S_WAVE}")
    A(f"v_lshl_add_u32 v{TMP}, v{TMP}, 2, {LDS_SFLAG}".replace(f", {LDS_SFLAG}", f", v{TMP+1}") if False else f"v_lshlrev_b32 v{TMP}, 2, v{TMP}")
    A(f"v_add_u32 v{TMP}, {LDS_SFLAG}, v{TMP}")
    sw_wait(A, TMP, G_FT, 100, sleep=1)
    R = 128; U = R + 48; AP = R + 64; G = R + 72
    A(f"ds_read_b128 {vr(AP,4)}, v{AGV}")
    A(f"ds_read_b128 {vr(AP+4,4)}, v{AGV} offset:1024")
    A(f"v_lshrrev_b32 v{TMP+1}, 1, v{AGV}") if False else None
    A(f"v_lshlrev_b32 v{TMP+1}, 3, v1")
    A(f"v_sub_u32 v{TMP+1}, v{AGV}, v{TMP+1}")
    A(f"ds_read_b64 {vr(G,2)}, v{TMP+1} offset:2048")
    sw_wait(A, G_FRD, G_FT, ep)
    if not O.TSE: ts(A, 5)
    for t in range(3):
        for q in range(4):
            A(f"ds_read_b128 {vr(R+t*16+4*q,4)}, v{RR+t} offset:{ROFF[t]+q*1024}")
    for k in range(8):
        A(f"v_lshlrev_b32 v{U+2*k}, 16, v{AP+k}")
        A(f"v_and_b32 v{U+2*k+1}, 0xffff0000, v{AP+k}")
    for k in range(8):
        A(f"v_pk_mul_f32 {vr(U+2*k,2)}, {vr(U+2*k,2)}, {vr(G,2)} op_sel:[0,0] op_sel_hi:[1,0]")
    for t in range(3):
        A(f"s_waitcnt lgkmcnt({8-4*t})")
        for k in range(8):
            A(f"v_pk_add_f32 {vr(ACC+2*k,2)}, {vr(ACC+2*k,2)}, {vr(R+t*16+2*k,2)}")
    for k in range(8):
        A(f"v_pk_fma_f32 {vr(U+2*k,2)}, {vr(ACC+2*k,2)}, {vr(G,2)}, {vr(U+2*k,2)} op_sel:[0,1,0] op_sel_hi:[1,1,1]")
    P = TMP
    for k in range(8):
        A(f"v_cvt_pk_bf16_f32 v{P+k}, v{U+2*k}, v{U+2*k+1}")
    A("s_nop 1")
    for h in range(2):
        A(f"v_permlane32_swap_b32 v{P+4*h}, v{P+4*h+2}")
        A(f"v_permlane32_swap_b32 v{P+4*h+1}, v{P+4*h+3}")
    A("s_nop 1")
    for h in range(2):
        A(f"buffer_store_dwordx4 {vr(P+4*h,4)}, v{OV}, s[{S_OUT}:{S_OUT+3}], s{S_OO} offen offset:{32*h}")

def ag_fetch(A):
    w = S_WAVE
    RT, CT = Q_EX, Q_EX + 1
    tile_ids(A, RT, CT, Q_T0, Q_T1)
    TT, DB = Q_EX + 2, Q_EX + 3
    A(f"s_lshl_b32 s{TT}, s{RT}, 1")
    A(f"s_add_u32 s{TT}, s{TT}, s{Q_NH}")
    A(f"s_lshl_b32 s{DB}, s{CT}, 1")
    A(f"s_add_u32 s{DB}, s{DB}, s{Q_C}")
    A(f"s_bfe_u32 s{Q_T0}, s{RT}, 0x20002")
    A(f"s_lshl_b32 s{Q_T0}, s{Q_T0}, {8+FS}")
    A(f"s_lshl_b32 s{Q_T1}, s{DB}, {4+FS}")
    A(f"s_add_u32 s{Q_T0}, s{Q_T0}, s{Q_T1}")
    A(f"s_add_u32 s{Q_T0}, s{Q_T0}, {WS_FLAG+F_A}")
    A(f"v_lshl_add_u32 v8, v1, {FS}, s{Q_T0}")
    A(f"s_lshl_b32 s{Q_T0}, s{TT}, {2+FS}")
    A(f"s_add_u32 s{Q_T0}, s{Q_T0}, {WS_FLAG+F_G}")
    A("v_and_b32 v9, 3, v1")
    A(f"v_lshl_add_u32 v9, v9, {FS}, s{Q_T0}")
    A("v_cmp_gt_u32 vcc, 16, v1")
    A("v_and_b32 v10, 31, v1")
    A("v_lshrrev_b32 v11, 5, v1")
    A("v_cndmask_b32 v8, v9, v8, vcc")
    A("v_lshlrev_b32 v11, 14, v11")
    A("v_lshl_add_u32 v12, v10, 2, v11")
    A("v_add_u32 v13, 8192, v12")
    A(f"s_lshl_b32 s{Q_T0}, s{TT}, 8")
    A(f"s_add_u32 s{Q_T0}, s{Q_T0}, {WS_G}")
    A(f"v_lshl_add_u32 v14, v10, 3, s{Q_T0}")
    A(f"s_lshl_b32 s{Q_T0}, s{DB}, 17")
    A(f"s_lshl_b32 s{Q_T1}, s{TT}, 7")
    A(f"s_add_u32 s{Q_T0}, s{Q_T0}, s{Q_T1}")
    A(f"s_add_u32 s{Q_T0}, s{Q_T0}, {WS_A}")
    A(f"s_mul_i32 s{Q_T1}, s{w}, 2560")
    A(f"s_add_u32 s{Q_T1}, s{Q_T1}, {LDS_AG}")
    A(f"v_lshl_add_u32 v15, v1, 4, s{Q_T1}")
    A(f"v_lshl_add_u32 v16, v1, 3, s{Q_T1}")
    poll(A, 8, 9, STOK, "PA")
    for q in range(4):
        for i in range(2):
            A(f"buffer_load_dword v{64+2*q+i}, v{12+i}, s[{S_WS}:{S_WS+3}], s{Q_T0} offen sc1")
        if q < 3: A(f"s_add_u32 s{Q_T0}, s{Q_T0}, 32768")
    A(f"buffer_load_dwordx2 v[72:73], v14, s[{S_WS}:{S_WS+3}], 0 offen sc1")
    A("s_waitcnt vmcnt(0)")
    A("ds_write_b128 v15, v[64:67]")
    A("ds_write_b128 v15, v[68:71] offset:1024")
    A("ds_write_b64 v16, v[72:73] offset:2048")
    A("s_waitcnt lgkmcnt(0)")
    sw_arrive(A, S_FOWN, S_FT, 100)

KN = "gated_mix__ssm_conv_s4d__dense_activation_silu__prompt_kernel"
A = Asm()
A.raw("; @launch grid=(256,1,1) block=(512,1,1) lds=163840")
A.raw('.amdgcn_target "amdgcn-amd-amdhsa--gfx950"')
kernel_header(A, KN)
ts_real(A, 0); ts(A, 1)
prologue(A, "K_END")
A(f"s_mov_b32 s{S_W8}, s{S_WAVE}")
A("v_and_b32 v2, 15, v1")
A("v_lshlrev_b32 v2, 2, v2")
A(f"v_add_u32 v2, {LDS_MISC}, v2")
A("v_mov_b32 v3, 0")
A("ds_write_b32 v2, v3")
A(f"s_cmp_ge_u32 s{S_WAVE}, 4")
A("s_cbranch_scc1 K_SSM")
if O.GPRIO: A(f"s_setprio {O.GPRIO}")
g2_setup(A)
A(f"s_cmp_ge_u32 s{S_J}, 28")
A("s_cbranch_scc1 K_IDLE")
g1_setup(A)
a, b, c, d = O.ROT
A(f"s_and_b32 s{S_C0}, s{S_J}, 3"); A(f"s_mul_i32 s{S_C0}, s{S_C0}, {a}")
A(f"s_lshr_b32 s{S_T0}, s{S_J}, 2"); A(f"s_mul_i32 s{S_T0}, s{S_T0}, {b}"); A(f"s_add_u32 s{S_C0}, s{S_C0}, s{S_T0}")
if c: A(f"s_lshr_b32 s{S_T0}, s{S_XCD}, 1"); A(f"s_mul_i32 s{S_T0}, s{S_T0}, {c}"); A(f"s_add_u32 s{S_C0}, s{S_C0}, s{S_T0}")
if d: A(f"s_and_b32 s{S_T0}, s{S_XCD}, 1"); A(f"s_mul_i32 s{S_T0}, s{S_T0}, {d}"); A(f"s_add_u32 s{S_C0}, s{S_C0}, s{S_T0}")
A("s_waitcnt lgkmcnt(0)")
srd(A, S_X, P_U, L*D*2); srd(A, S_W1, P_W1, D*F*2)
vm = Vm(A); cid = {}
for x in chunk_dma(0): vm.op(x)
cid[0] = vm.n
srd(A, S_W2, P_W2, D*F*2); srd(A, S_WS, P_WS, WS_BYTES); srd(A, S_OUT, P_OUT, L*D*2)
A("s_barrier")
for x in chunk_dma(1): vm.op(x)
cid[1] = vm.n
g1_setup2(A)
g2_setup2(A)
for cc in range(2, O.LOOK):
    for x in chunk_dma(cc): vm.op(x)
    cid[cc] = vm.n
ep, rest = g1_main(A, vm, cid)
ts(A, 2)
g1_epi(A, vm, cid, rest)
A("s_branch K_G2")
A.label("K_IDLE")
A("s_waitcnt lgkmcnt(0)")
srd(A, S_W2, P_W2, D*F*2); srd(A, S_WS, P_WS, WS_BYTES); srd(A, S_OUT, P_OUT, L*D*2)
A("s_barrier")
gflag_setup(A)
g2_idle_prefetch(A)
ts(A, 2)
token_get(A, TMP, VTOK)
A("s_waitcnt vmcnt(0)")
ts(A, 3)
A.label("K_G2")
A(f"v_mov_b32 v{TMP+1}, {LDS_HOK}")
A(f"s_cmp_eq_u32 s{S_WAVE}, 0")
A("s_cbranch_scc0 K_HW")
poll(A, FV, TMP, VTOK, "PH")
A(f"ds_write_b32 v{TMP+1}, v{VTOK+1}")
A("s_branch K_HD")
A.label("K_HW")
sw_wait(A, TMP + 1, TMP, 1, sleep=1)
A.label("K_HD")
ts(A, 4)
g2_main(A)
g2_tail(A, ep + 1)
def diag(k):
    A("s_waitcnt vmcnt(0) lgkmcnt(0)")
    A(f"s_memtime s[{S_TS+12}:{S_TS+13}]")
    A("s_waitcnt lgkmcnt(0)")
    A(f"s_sub_u32 s64, s{S_TS+2*k}, s{S_TS+2}")
    A(f"s_cmp_ge_u32 s{S_J}, 28")
    A("s_cselect_b32 s64, 0, s64")
    A("v_mov_b32 v2, 128")
    A("v_mov_b32 v3, s64")
    A("s_mov_b64 exec, 1")
    A(f"global_atomic_add v2, v3, s[{P_DBG}:{P_DBG+1}] sc1")
    for lab, first in (("DG0", True), ("DG1", False)):
        A("s_mov_b32 s66, 1000000")
        if first: A("s_mov_b32 s67, 3200")
        A.label(lab)
        A("s_memrealtime s[64:65]")
        A("s_waitcnt lgkmcnt(0)")
        A(f"s_sub_u32 s64, s64, s{S_TS}")
        A("s_cmp_ge_u32 s64, s67")
        A(f"s_cbranch_scc1 {lab}X")
        A("s_sub_u32 s66, s66, 1")
        A(f"s_cbranch_scc0 {lab}")
        A.label(lab + "X")
        if first:
            A("s_waitcnt vmcnt(0)")
            A(f"global_load_dword v3, v2, s[{P_DBG}:{P_DBG+1}] sc1")
            A("s_waitcnt vmcnt(0)")
            A("v_readfirstlane_b32 s67, v3")
            A("s_lshr_b32 s67, s67, 11")
            A("s_add_u32 s67, s67, 3500")
if O.DIAG is not None: diag(O.DIAG)
else: ts_dump(A, 0, S_W8)
A("s_endpgm")
A.label("K_SSM")
if O.SPRIO: A(f"s_setprio {O.SPRIO}")
A(f"s_sub_u32 s{S_WAVE}, s{S_WAVE}, 4")
s_setup(A)
carry_zero(A)
A("s_waitcnt lgkmcnt(0)")
srd(A, S_X, P_U, L*D*2); srd(A, S_WS, P_WS, WS_BYTES)
A(f"s_cmp_eq_u32 s{S_WAVE}, 0")
A("s_cbranch_scc0 K_S1")
A(f"s_add_u32 s{Q_EX+4}, s{P_WS}, {WS_FLAG+F_EP}")
A(f"s_addc_u32 s{Q_EX+5}, s{P_WS+1}, 0")
A(f"s_load_dword s{Q_EX+6}, s[{Q_EX+4}:{Q_EX+5}], 0")
tr_issue(A); kg_loads(A)
A("s_barrier")
def tokpub():
    A("s_waitcnt lgkmcnt(0)")
    A(f"s_mul_i32 s{Q_EX+6}, s{Q_EX+6}, 0x9e3779b1")
    A(f"s_add_u32 s{Q_EX+6}, s{Q_EX+6}, 0x7f4a7c15")
    A(f"v_mov_b32 v{STOK}, s{Q_EX+6}")
    A(f"v_mov_b32 v{STOK+1}, 1")
    A(f"v_mov_b32 v17, {LDS_READY}")
    A(f"ds_write_b64 v17, {vr(STOK,2)}")
tr_finish(A, "sc1", later=0, hook=tokpub)
A(f"s_lshl_b32 s{S_HF}, s{Q_PAIR}, {FS}")
A(f"s_add_u32 s{S_HF}, s{S_HF}, {WS_FLAG+F_UT}")
A("s_branch K_KG")
A.label("K_S1")
A(f"s_cmp_eq_u32 s{S_WAVE}, 1")
A("s_cbranch_scc0 K_S2")
gate_issue(A); kg_loads(A)
A("s_barrier")
gate_finish(A, "sc1", later=0)
A(f"s_lshl_b32 s{S_HF}, s{Q_PAIR}, {FS}")
A(f"s_add_u32 s{S_HF}, s{S_HF}, {WS_FLAG+F_G}")
A("s_branch K_KG")
A.label("K_S2")
kg_loads(A)
A("s_barrier")
A("s_waitcnt vmcnt(0)")
A.label("K_KG")
ts(A, 2)
if O.NOSSM:
    token_get(A, 8, STOK)
    A(f"s_cmp_ge_u32 s{S_WAVE}, 2")
    A("s_cbranch_scc1 K_NF0")
    A("s_waitcnt vmcnt(0)")
    flag_store(A, S_HF, 8, STOK)
    A.label("K_NF0")
    ts(A, 3)
    sw_arrive(A, S_FOWN, S_FT, 100)
    A("s_branch K_EP")
def kghook():
    token_get(A, 8, STOK)
    A(f"s_cmp_ge_u32 s{S_WAVE}, 2")
    A("s_cbranch_scc1 K_NF")
    A("s_waitcnt vmcnt(0)")
    flag_store(A, S_HF, 8, STOK)
    A.label("K_NF")
kgen(A, later=None, hook=kghook)
kgen_exchange_write(A)
s_barrier(A, 1)
kgen_final(A)
ts(A, 3)
A(f"s_cmp_eq_u32 s{S_WAVE}, 3")
A("s_cbranch_scc0 K_NU")
A(f"s_lshl_b32 s{Q_T0}, s{S_XCD}, {5+FS}")
A(f"s_add_u32 s{Q_T0}, s{Q_T0}, {WS_FLAG+F_UT}")
A("v_and_b32 v8, 31, v1")
A(f"v_lshl_add_u32 v8, v8, {FS}, s{Q_T0}")
poll(A, 8, 9, STOK, "PU")
ut_all(A, "sc1")
ut_all_write(A)
A.label("K_NU")
conv_setup(A)
s_barrier(A, 2)
ts(A, 4)
if O.KDUMP: k_dump(A)
if O.CPRIO != O.SPRIO: A(f"s_setprio {O.CPRIO}")
conv(A)
if O.CPRIO != O.SPRIO: A(f"s_setprio {O.SPRIO}")
s_barrier(A, 3)
conv_final(A, "sc1")
A(f"s_lshl_b32 s{Q_EX}, s{Q_PAIR}, {FS}")
A(f"s_lshl_b32 s{Q_T0}, s{S_WAVE}, {8+FS}")
A(f"s_add_u32 s{Q_EX}, s{Q_EX}, s{Q_T0}")
A(f"s_add_u32 s{Q_EX}, s{Q_EX}, {WS_FLAG+F_A}")
A("s_waitcnt vmcnt(0)")
flag_store(A, Q_EX, 8, STOK)
ts(A, 5)
ag_fetch(A)
A.label("K_EP")
A(f"s_or_b32 s{Q_T0}, s2, s{S_WAVE}")
A(f"s_cmp_eq_u32 s{Q_T0}, 0")
A("s_cbranch_scc0 K_NE")
for i in range(4):
    A(f"v_lshlrev_b32 v8, {FS}, v1")
    A(f"v_add_u32 v8, {WS_FLAG+F_UT+(64<<FS)*i}, v8")
    poll(A, 8, 9, STOK, "PE")
A(f"s_mov_b32 s{Q_T0}, {WS_FLAG+F_EP}")
flag_store(A, Q_T0, 8, STOK)
A.label("K_NE")
if O.DIAG is None: ts_dump(A, 0, S_W8)
A.label("K_END")
A("s_endpgm")
kernel_desc(A, KN, 256)
open(sys.argv[1], "w").write(A.text())
```

```python
from parts import *
import parts
LDS_XCH  = LDS_SSM + 27648
LDS_HEAD = LDS_MISC + 64
LDS_CARR = LDS_MISC + 320
LDS_DUM  = LDS_MISC + 608
assert LDS_DUM + 416 <= LDS_XCH
S_FOWN, S_FRD, S_FT = 22, 23, 24
Q_PAIR, Q_C, Q_NH, Q_T0, Q_T1, Q_LDT, Q_DSK, Q_TAB = 64, 65, 66, 67, 68, 69, 70, 71
Q_EX = 72
LOG2E = "0x3fb8aa3b"
INV2PI = "0x3e22f983"

class Lg:
    def __init__(self, A): self.A = A; self.n = 0; self.done = 0
    def op(self, s): self.A(s); self.n += 1; return self.n
    def wait(self, idn):
        if idn <= self.done: return
        k = min(self.n - idn, 15)
        self.A(f"s_waitcnt lgkmcnt({k})"); self.done = self.n - k
    def all(self): self.wait(self.n)

def s_setup(A):
    w = S_WAVE
    A(f"s_lshl_b32 s{Q_PAIR}, s{S_XCD}, 5")
    A(f"s_add_u32 s{Q_PAIR}, s{Q_PAIR}, s{S_J}")
    A(f"s_lshr_b32 s{Q_C}, s{w}, 1")
    A(f"s_and_b32 s{Q_NH}, s{w}, 1")
    A(f"s_lshl_b32 s{Q_T0}, s{w}, 2")
    A(f"s_add_u32 s{Q_T0}, s{Q_T0}, {LDS_SFLAG}")
    A(f"v_mov_b32 v{S_FOWN}, s{Q_T0}")
    A(f"v_and_b32 v{S_FRD}, 3, v1")
    A(f"v_lshlrev_b32 v{S_FRD}, 2, v{S_FRD}")
    A(f"v_add_u32 v{S_FRD}, {LDS_SFLAG}, v{S_FRD}")

def s_barrier(A, ep):
    A("s_waitcnt lgkmcnt(0)")
    sw_arrive(A, S_FOWN, S_FT, ep)
    sw_wait(A, S_FRD, S_FT, ep, sleep=1)

def kg_loads(A):
    A(f"s_lshl_b32 s{Q_T0}, s{Q_PAIR}, 9")
    A(f"s_lshl_b32 s{Q_T1}, s{S_WAVE}, 7")
    A(f"s_add_u32 s{Q_T0}, s{Q_T0}, s{Q_T1}")
    A(f"v_lshl_add_u32 v6, v1, 1, s{Q_T0}")
    for i, p in enumerate((P_LA, P_AI, P_CR, P_CI)):
        A(f"global_load_ushort v{2+i}, v6, s[{p}:{p+1}]")
    A(f"s_lshl_b32 s{Q_T0}, s{Q_PAIR}, 2")
    A(f"s_load_dword s{Q_LDT}, s[{P_LDT}:{P_LDT+1}], s{Q_T0}")
    A(f"s_load_dword s{Q_DSK}, s[{P_DSK}:{P_DSK+1}], s{Q_T0}")

def tr_issue(A):
    A("v_lshrrev_b32 v8, 3, v1")
    A("v_and_b32 v9, 7, v1")
    A("v_lshlrev_b32 v10, 10, v8")
    A("v_lshl_add_u32 v10, v9, 4, v10")
    A(f"s_lshl_b32 s{Q_T0}, s{S_J}, 16")
    A(f"s_lshl_b32 s{Q_T1}, s{S_XCD}, 7")
    A(f"s_add_u32 s{Q_T0}, s{Q_T0}, s{Q_T1}")
    for i in range(8):
        A(f"s_mov_b32 m0, {LDS_K + i*1024}")
        A(f"s_add_u32 s{Q_T1}, s{Q_T0}, {i*8192}")
        A(f"buffer_load_dwordx4 v10, s[{S_X}:{S_X+3}], s{Q_T1} offen lds")

def tr_finish(A, fl, later=0, hook=None):
    R = 128
    A("v_lshrrev_b32 v11, 4, v1")
    A("v_bfe_u32 v12, v1, 2, 2")
    A("v_lshl_add_u32 v12, v11, 3, v12")
    A("v_lshlrev_b32 v12, 7, v12")
    A("v_and_b32 v13, 3, v1")
    A("v_lshl_add_u32 v12, v13, 3, v12")
    A(f"v_add_u32 v12, {LDS_K}, v12")
    A("v_and_b32 v13, 15, v1")
    A("v_xor_b32 v14, v11, v9")
    A("v_lshlrev_b32 v13, 7, v13")
    A("v_lshl_add_u32 v13, v14, 4, v13")
    A(f"v_add_u32 v13, {LDS_K}, v13")
    A("v_xor_b32 v14, 64, v13")
    A("v_xor_b32 v15, v9, v8")
    A("v_lshlrev_b32 v16, 7, v8")
    A("v_lshl_add_u32 v15, v15, 4, v16")
    A(f"v_add_u32 v15, {LDS_K}, v15")
    A("v_lshlrev_b32 v16, 12, v8")
    A("v_lshl_add_u32 v16, v9, 4, v16")
    A(f"s_lshl_b32 s{Q_T0}, s{S_XCD}, 18")
    A(f"s_lshl_b32 s{Q_T1}, s{S_J}, 7")
    A(f"s_add_u32 s{Q_T0}, s{Q_T0}, s{Q_T1}")
    A(f"s_add_u32 s{Q_T0}, s{Q_T0}, {WS_UT}")
    if hook: hook()
    A(f"s_waitcnt vmcnt({later})")
    for a in range(4):
        for hf in range(2):
            for x in range(2):
                A(f"ds_read_b64_tr_b16 {vr(R+(2*a+hf)*4+2*x,2)}, v12 offset:{hf*4096+x*512+a*32}")
    A("s_waitcnt lgkmcnt(0)")
    for a in range(4):
        for hf in range(2):
            A(f"ds_write_b128 v{13+hf}, {vr(R+(2*a+hf)*4,4)} offset:{a*2048}")
    for i in range(8):
        A(f"ds_read_b128 {vr(R+32+4*i,4)}, v15 offset:{i*1024}")
    for i in range(8):
        A(f"s_waitcnt lgkmcnt({7-i})")
        A(f"s_add_u32 s{Q_T1}, s{Q_T0}, {i*32768}")
        A(f"buffer_store_dwordx4 {vr(R+32+4*i,4)}, v16, s[{S_WS}:{S_WS+3}], s{Q_T1} offen {fl}")

def gate_issue(A):
    R = 128
    A("v_lshlrev_b32 v8, 4, v1")
    A(f"global_load_dwordx4 {vr(R+32,4)}, v8, s[{P_GW}:{P_GW+1}]")
    A(f"s_lshl_b32 s{Q_T0}, s{Q_PAIR}, 13")
    A(f"s_add_u32 s{Q_T1}, s{Q_T0}, 4096")
    for i in range(8):
        A(f"buffer_load_dwordx4 {vr(R+4*i,4)}, v8, s[{S_X}:{S_X+3}], s{Q_T0 + i//4} offen offset:{(i%4)*1024}")

def gate_finish(A, fl, later=0):
    R = 128; S = 168
    A(f"s_waitcnt vmcnt({later})")
    for k in range(4):
        for i in range(8):
            c = "0" if k == 0 else f"v{S+i}"
            A(f"v_dot2_f32_bf16 v{S+i}, v{R+4*i+k}, v{R+32+k}, {c}")
    for sh in ("row_shr:1", "row_shr:2", "row_shr:4", "row_shr:8"):
        for i in range(8):
            A(f"v_add_f32_dpp v{S+i}, v{S+i}, v{S+i} {sh} row_mask:0xf bank_mask:0xf bound_ctrl:1")
    for sh in ("row_bcast:15 row_mask:0xa", "row_bcast:31 row_mask:0xc"):
        for i in range(8):
            A(f"v_add_f32_dpp v{S+i}, v{S+i}, v{S+i} {sh} bank_mask:0xf")
    A("v_mov_b32 v9, 0")
    for i in range(8):
        A(f"v_readlane_b32 s{Q_EX+4+i}, v{S+i}, 63")
    A("s_nop 3")
    for i in range(8):
        A(f"v_writelane_b32 v9, s{Q_EX+4+i}, {i}")
    A("v_cvt_pk_bf16_f32 v9, v9, v9")
    A("v_lshlrev_b32 v9, 16, v9")
    A(f"v_mul_f32 v9, 0xbfb8aa3b, v9")
    A("v_exp_f32 v9, v9")
    A("s_nop 0")
    A("v_add_f32 v9, 1.0, v9")
    A("v_rcp_f32 v9, v9")
    A("s_nop 0")
    A("v_cvt_pk_bf16_f32 v10, v9, v9")
    A("v_lshlrev_b32 v10, 16, v10")
    A("v_sub_f32 v11, 1.0, v10")
    A("v_cvt_pk_bf16_f32 v11, v11, v11")
    A("v_lshlrev_b32 v11, 16, v11")
    A("v_lshlrev_b32 v8, 3, v1")
    A(f"s_lshl_b32 s{Q_T0}, s{Q_PAIR}, 6")
    A(f"s_add_u32 s{Q_T0}, s{Q_T0}, {WS_G}")
    A("s_mov_b64 exec, 0xff")
    A(f"buffer_store_dwordx2 v[10:11], v8, s[{S_WS}:{S_WS+3}], s{Q_T0} offen {fl}")
    A("s_mov_b64 exec, -1")

def cmul_list(A, items):
    for d, a, b in items:
        A(f"v_pk_mul_f32 {vr(d,2)}, {vr(a,2)}, {vr(b,2)} op_sel:[0,0] op_sel_hi:[1,0]")
    for d, a, b in items:
        A(f"v_pk_fma_f32 {vr(d,2)}, {vr(a,2)}, {vr(b,2)}, {vr(d,2)} op_sel:[1,1,0] op_sel_hi:[0,1,1] neg_lo:[1,0,0]")

KG2 = False; KLO = "pk"; KHI = "sc"
def kgen_tables2(A, hook, VW, VB, VA, E1, E8, E256, C0, E2, E4, LO, E32, G, CV):
    NG = 208
    WB = [VW, 212, 213, 214]
    for k in range(1, 4): A(f"v_add_u32 v{WB[k]}, {k*4*272}, v{VW}")
    neg = {}
    def cm(mode, items):
        out = []
        if mode == "pk":
            for d, a, b in items: out.append(f"v_pk_mul_f32 {vr(d,2)}, {vr(a,2)}, {vr(b,2)} op_sel:[0,0] op_sel_hi:[1,0]")
            for d, a, b in items: out.append(f"v_pk_fma_f32 {vr(d,2)}, {vr(a,2)}, {vr(b,2)}, {vr(d,2)} op_sel:[1,1,0] op_sel_hi:[0,1,1] neg_lo:[1,0,0]")
            return out
        for d, a, b in items:
            out.append(f"v_mul_f32 v{d}, v{a}, v{b}"); out.append(f"v_mul_f32 v{d+1}, v{a}, v{b+1}")
        for d, a, b in items:
            if b in neg: out.append(f"v_fmac_f32 v{d}, v{a+1}, v{neg[b]}")
            else: out.append(f"v_fma_f32 v{d}, -v{a+1}, v{b+1}, v{d}")
            out.append(f"v_fmac_f32 v{d+1}, v{a+1}, v{b}")
        return out
    def mkneg(b):
        neg[b] = NG + len(neg); A(f"v_xor_b32 v{neg[b]}, 0x80000000, v{b+1}")
    cvi = [0]
    def put(lst, ng):
        cv = []; wr = []; t = []
        for src, slot in lst:
            r = CV + cvi[0] % 8; cvi[0] += 1; t.append((r, slot))
            cv.append(f"v_cvt_pk_bf16_f32 v{r}, v{src}, {'-' if ng else ''}v{src+1}")
        while t:
            r, sl = t.pop(0)
            if t and t[0][1] // 4 == sl // 4:
                r2, s2 = t.pop(0)
                wr.append(f"ds_write2_b32 v{WB[sl//4]}, v{r}, v{r2} offset0:{(sl%4)*68} offset1:{(s2%4)*68}")
            else: wr.append(f"ds_write_b32 v{VW}, v{r} offset:{sl*272}")
        return cv, wr
    def emit(cv, wr, mul):
        for x in cv: A(x)
        n = len(wr); m = len(mul); k = 0
        for q, x in enumerate(mul):
            A(x)
            while k < n and (k + 1) * m <= (q + 1) * (n + 1): A(wr[k]); k += 1
        for x in wr[k:]: A(x)
    def frag_reads(dst, va, half):
        A(f"s_mov_b64 exec, s[{Q_EX+2*half}:{Q_EX+2*half+1}]")
        for ks in range(8):
            A(f"ds_read_b128 {vr(dst+4*ks,4)}, v{va} offset:{ks*32}")
        A("s_mov_b64 exec, -1")
    L = lambda st, k: LO + 8 * st + 2 * k
    A(f"v_mov_b32 v{L(0,0)}, 1.0"); A(f"v_mov_b32 v{L(0,0)+1}, 0")
    A(f"v_mov_b32 v{L(0,1)}, v{E8}"); A(f"v_mov_b32 v{L(0,1)+1}, v{E8+1}")
    for x in cm(KLO, [(L(0,2), E8, E8), (E2, E1, E1), (G+2, C0, E1), (G+16, C0, E8)]): A(x)
    for x in cm(KLO, [(L(0,3), L(0,2), E8), (E32, L(0,2), L(0,2)), (E4, E2, E2), (G+4, C0, E2), (G+6, G+2, E2)]): A(x)
    if KLO == "sc": mkneg(E32)
    if KHI == "sc": mkneg(E4); mkneg(E256)
    Gp = lambda p: C0 if p == 0 else G + 2 * p
    H = G + 18
    for it in range(8):
        st = it % 2
        mul = cm(KLO, [(L(1-st, k), L(st, k), E32) for k in range(4)]) if it < 7 else cm(KHI, [(Gp(4 + p), Gp(p), E4) for p in range(4)])
        cv, wr = put([(L(st, k), (4 * it + k) % 16) for k in range(4)], False)
        emit(cv, wr, mul)
        if it == 3: frag_reads(KB, VB, 0)
    frag_reads(KB, VB, 1)
    if hook: hook()
    P5 = LO; P7 = LO + 6
    hm = cm(KHI, [(H + 2 * i, Gp(2 * i), E256) for i in range(5)])
    cv, wr = put([(Gp(p), p) for p in range(8)], True)
    emit(cv, wr, hm)
    cv, wr = put([(H + 2 * i, 8 + i) for i in range(5)], True)
    emit(cv, wr, cm(KHI, [(P5 + 2 * i, H + 4 * i, E256) for i in range(3)]))
    frag_reads(KA, VA, 0)
    cv, wr = put([(P5 + 2 * i, i) for i in range(3)], True)
    emit(cv, wr, cm(KHI, [(P7 + 2 * i, P5 + 2 * i, E256) for i in range(3)]))
    prev = (P7, P7 + 4)
    for b in range(4):
        cur = (H + 4 * (b % 2), H + 4 * (b % 2) + 2)
        if b == 0: cv, wr = put([(P7 + 2 * i, 4 + i) for i in range(3)], True)
        else: cv, wr = put([(prev[0], 8 + 2 * (b - 1)), (prev[1], 9 + 2 * (b - 1))], True)
        emit(cv, wr, cm(KHI, [(cur[0], prev[0], E256), (cur[1], prev[1], E256)]))
        prev = cur
    cv, wr = put([(prev[0], 14), (prev[1], 15)], True)
    emit(cv, wr, [])
    frag_reads(KA, VA, 1)

KB, KA, KD = 64, 96, 40
def kgen(A, later=0, hook=None, hookA=None, pre=None):
    w = S_WAVE
    VW, VB, VA = 26, 27, 28
    E1, E8, E256, C0, E2, E4 = 128, 130, 132, 134, 136, 138
    LO = 140
    E32 = 156
    G = 160
    CV = 200
    A(f"s_mul_i32 s{Q_TAB}, s{w}, {TAB_STRIDE}")
    A(f"s_add_u32 s{Q_TAB}, s{Q_TAB}, {LDS_TAB}")
    A(f"v_lshl_add_u32 v{VW}, v1, 2, s{Q_TAB}")
    A("v_and_b32 v8, 15, v1")
    A("v_lshrrev_b32 v9, 5, v1")
    A(f"v_lshl_add_u32 v9, v9, 4, s{Q_TAB}")
    A("v_mov_b32 v10, 272")
    A(f"v_mad_u32_u24 v{VB}, v8, v10, v9")
    A("v_and_b32 v11, 7, v1")
    A("v_lshlrev_b32 v11, 2, v11")
    A("v_mov_b32 v12, 0xcbaaa988")
    A("v_lshrrev_b32 v11, v11, v12")
    A("v_and_b32 v11, 15, v11")
    A("v_and_b32 v12, 24, v1")
    A("v_cmp_eq_u32 vcc, 8, v12")
    A(f"s_mov_b32 s{Q_EX}, 0x0000ffff")
    A(f"s_mov_b32 s{Q_EX+1}, 0x0000ffff")
    A(f"s_mov_b32 s{Q_EX+2}, 0xffff0000")
    A(f"s_mov_b32 s{Q_EX+3}, 0xffff0000")
    A("v_cndmask_b32 v11, v8, v11, vcc")
    A(f"v_mad_u32_u24 v{VA}, v11, v10, v9")
    if pre: pre()
    A("s_waitcnt lgkmcnt(0)")
    A(f"s_lshl_b32 s{Q_T0}, s{Q_C}, 4")
    A(f"s_lshr_b32 s{Q_LDT}, s{Q_LDT}, s{Q_T0}")
    A(f"s_lshl_b32 s{Q_LDT}, s{Q_LDT}, 16")
    A(f"s_lshr_b32 s{Q_DSK}, s{Q_DSK}, s{Q_T0}")
    A(f"s_lshl_b32 s{Q_DSK}, s{Q_DSK}, 16")
    A(f"v_mov_b32 v10, {LOG2E}")
    A(f"v_mul_f32 v8, s{Q_LDT}, v10")
    A("v_exp_f32 v8, v8")
    if later is not None: A(f"s_waitcnt vmcnt({later})")
    if hookA: hookA()
    for i in range(4): A(f"v_lshlrev_b32 v{2+i}, 16, v{2+i}")
    A("v_mul_f32 v2, v10, v2")
    A("v_exp_f32 v2, v2")
    A("v_cvt_pk_bf16_f32 v8, v8, v8")
    A("v_lshlrev_b32 v8, 16, v8")
    A("v_cvt_pk_bf16_f32 v2, v2, v2")
    A("v_lshlrev_b32 v2, 16, v2")
    A("v_mul_f32 v2, v2, v8")
    A("v_mul_f32 v3, v3, v8")
    A("v_mul_f32 v2, 0xbfb8aa3b, v2")
    A(f"v_mul_f32 v3, {INV2PI}, v3")
    A("v_add_f32 v8, v8, v8")
    A(f"v_mul_f32 v{C0}, v4, v8")
    A(f"v_mul_f32 v{C0+1}, v5, v8")
    A("v_mul_f32 v10, 8.0, v2".replace("8.0", "0x41000000"))
    A("v_mul_f32 v11, 0x41000000, v3")
    A("v_mul_f32 v12, 0x43800000, v2")
    A("v_mul_f32 v13, 0x43800000, v3")
    for r in (11, 3, 13): A(f"v_fract_f32 v{r}, v{r}")
    for (m, f, e) in ((10, 11, E8), (2, 3, E1), (12, 13, E256)):
        A(f"v_exp_f32 v{m}, v{m}")
        A(f"v_cos_f32 v{e}, v{f}")
        A(f"v_sin_f32 v{e+1}, v{f}")
    for (m, e) in ((10, E8), (2, E1), (12, E256)):
        A(f"v_pk_mul_f32 {vr(e,2)}, {vr(e,2)}, {vr(m,2)} op_sel:[0,0] op_sel_hi:[1,0]")
    if KG2:
        kgen_tables2(A, hook, VW, VB, VA, E1, E8, E256, C0, E2, E4, LO, E32, G, CV)
    else:
        cvi = [0]
        def put(src, slot, neg=False):
            t = CV + cvi[0] % 8; cvi[0] += 1
            A(f"v_cvt_pk_bf16_f32 v{t}, v{src}, {'-' if neg else ''}v{src+1}")
            A(f"ds_write_b32 v{VW}, v{t} offset:{slot*272}")
        def frag_reads(dst, va, half):
            A(f"s_mov_b64 exec, s[{Q_EX+2*half}:{Q_EX+2*half+1}]")
            for ks in range(8):
                A(f"ds_read_b128 {vr(dst+4*ks,4)}, v{va} offset:{ks*32}")
            A("s_mov_b64 exec, -1")
        L = lambda st, k: LO + 8 * st + 2 * k
        A(f"v_mov_b32 v{L(0,0)}, 1.0"); A(f"v_mov_b32 v{L(0,0)+1}, 0")
        A(f"v_mov_b32 v{L(0,1)}, v{E8}"); A(f"v_mov_b32 v{L(0,1)+1}, v{E8+1}")
        cmul_list(A, [(L(0,2), E8, E8), (E2, E1, E1), (G+2, C0, E1), (G+16, C0, E8)])
        cmul_list(A, [(L(0,3), L(0,2), E8), (E32, L(0,2), L(0,2)), (E4, E2, E2), (G+4, C0, E2), (G+6, G+2, E2)])
        for it in range(8):
            st = it % 2
            if it < 7:
                cmul_list(A, [(L(1-st, k), L(st, k), E32) for k in range(4)])
            for k in range(4): put(L(st, k), (4 * it + k) % 16)
            if it == 3: frag_reads(KB, VB, 0)
        frag_reads(KB, VB, 1)
        if hook: hook()
        Gp = lambda p: C0 if p == 0 else G + 2 * p
        cmul_list(A, [(Gp(4 + p), Gp(p), E4) for p in range(4)])
        H = G + 18
        cmul_list(A, [(H + 2 * i, Gp(2 * i), E256) for i in range(5)])
        for p in range(8): put(Gp(p), p, True)
        for i in range(5): put(H + 2 * i, 8 + i, True)
        frag_reads(KA, VA, 0)
        P5 = G + 2; P7 = G + 8
        cmul_list(A, [(P5 + 2 * i, H + 4 * i, E256) for i in range(3)])
        cmul_list(A, [(P7 + 2 * i, P5 + 2 * i, E256) for i in range(3)])
        for i in range(3): put(P5 + 2 * i, i, True)
        prev = (P7, P7 + 4)
        for b in range(4):
            cur = (H + 4 * (b % 2), H + 4 * (b % 2) + 2)
            cmul_list(A, [(cur[0], prev[0], E256), (cur[1], prev[1], E256)])
            if b == 0:
                for i in range(3): put(P7 + 2 * i, 4 + i, True)
            else:
                put(prev[0], 8 + 2 * (b - 1), True); put(prev[1], 9 + 2 * (b - 1), True)
            prev = cur
        put(prev[0], 14, True); put(prev[1], 15, True)
        frag_reads(KA, VA, 1)
    for ks in range(8):
        A(f"s_waitcnt lgkmcnt({7-ks})")
        c = "0" if ks == 0 else vr(KD, 16)
        A(f"v_mfma_f32_32x32x16_bf16 {vr(KD,16)}, {vr(KA+4*ks,4)}, {vr(KB+4*ks,4)}, {c}")

def kgen_exchange_write(A):
    t2 = LDS_TAB + 2 * TAB_STRIDE; t3 = LDS_TAB + 3 * TAB_STRIDE
    A(f"s_mul_i32 s{Q_T0}, s{Q_C}, {t3-LDS_XCH}")
    A(f"s_add_u32 s{Q_T0}, s{Q_T0}, {LDS_XCH}")
    A(f"s_mul_i32 s{Q_T1}, s{Q_C}, {t2-LDS_XCH-3072}")
    A(f"s_add_u32 s{Q_T1}, s{Q_T1}, {LDS_XCH+3072}")
    A(f"v_lshl_add_u32 v26, v1, 4, s{Q_T0}")
    A(f"v_lshl_add_u32 v27, v1, 4, s{Q_T1}")
    A(f"s_mul_i32 s{Q_T0}, s{Q_C}, {K_STRIDE}")
    A(f"s_add_u32 s{Q_T0}, s{Q_T0}, {LDS_K}")
    A("v_and_b32 v8, 31, v1")
    A("v_lshrrev_b32 v9, 5, v1")
    A(f"v_lshl_add_u32 v8, v8, 4, s{Q_T0}")
    A(f"v_lshl_add_u32 v10, v1, 3, s{Q_T0}")
    A("v_mov_b32 v12, 0"); A("v_mov_b32 v13, 0")
    A("s_nop 1")
    l1 = A.newlabel("KX"); l2 = A.newlabel("KX")
    A(f"s_cmp_eq_u32 s{Q_NH}, 0")
    A(f"s_cbranch_scc0 {l1}")
    A(f"ds_write_b128 v27, {vr(KD+12,4)}")
    A(f"s_branch {l2}")
    A.label(l1)
    for q in range(3): A(f"ds_write_b128 v26, {vr(KD+4*q,4)} offset:{q*1024}")
    A.label(l2)

def kgen_final(A):
    X = 64
    l1 = A.newlabel("KF"); l2 = A.newlabel("KF")
    A(f"s_cmp_eq_u32 s{Q_NH}, 0")
    A(f"s_cbranch_scc0 {l1}")
    for q in range(3): A(f"ds_read_b128 {vr(X+4*q,4)}, v26 offset:{q*1024}")
    A("ds_write_b64 v10, v[12:13]")
    A("v_cmp_eq_u32 vcc, 0, v1")
    A(f"v_mov_b32 v11, s{Q_DSK}")
    A("v_lshl_add_u32 v14, v9, 3, v8")
    A("v_lshl_add_u32 v15, v9, 9, v8")
    A("v_cndmask_b32 v11, 0, v11, vcc")
    A(f"v_add_f32 v{KD}, v{KD}, v11")
    A("s_waitcnt lgkmcnt(1)")
    for k in range(6): A(f"v_pk_add_f32 {vr(KD+2*k,2)}, {vr(KD+2*k,2)}, {vr(X+2*k,2)}")
    for k in range(4): A(f"v_cvt_pk_bf16_f32 v{X+k}, v{KD+2*k}, v{KD+2*k+1}")
    a, b, c = KD + 8, KD + 9, KD + 10
    for k, (p, q) in enumerate(((a, a), (a, b), (b, b), (c, c))): A(f"v_cvt_pk_bf16_f32 v{X+4+k}, v{p}, v{q}")
    A(f"ds_write_b64 v14, {vr(X,2)} offset:448")
    A(f"ds_write_b64 v14, {vr(X+2,2)} offset:960")
    A(f"ds_write_b128 v15, {vr(X+4,4)} offset:1472")
    A(f"s_branch {l2}")
    A.label(l1)
    A(f"ds_read_b128 {vr(X,4)}, v27")
    A(f"s_mul_i32 s{Q_T0}, s{Q_C}, {U_STRIDE}")
    A(f"s_add_u32 s{Q_T0}, s{Q_T0}, {LDS_U}")
    A("v_and_b32 v11, 15, v1")
    A(f"v_lshl_add_u32 v11, v11, 2, s{Q_T0}")
    A("ds_write_b32 v11, v12")
    A("v_and_b32 v11, 1, v1")
    A("v_cmp_eq_u32 vcc, 1, v11")
    A("v_lshl_add_u32 v15, v9, 10, v8")
    A("s_waitcnt lgkmcnt(1)")
    for k in range(2): A(f"v_pk_add_f32 {vr(KD+12+2*k,2)}, {vr(KD+12+2*k,2)}, {vr(X+2*k,2)}")
    for k in range(2):
        a, b = KD + 12 + 2 * k, KD + 13 + 2 * k
        A(f"v_cndmask_b32 v11, v{a}, v{b}, vcc")
        A(f"v_cvt_pk_bf16_f32 v{X+4*k}, v{a}, v{a}")
        A(f"v_cvt_pk_bf16_f32 v{X+4*k+1}, v{a}, v{a}")
        A(f"v_cvt_pk_bf16_f32 v{X+4*k+2}, v11, v{b}")
        A(f"v_cvt_pk_bf16_f32 v{X+4*k+3}, v{b}, v{b}")
        A(f"ds_write_b128 v15, {vr(X+4*k,4)} offset:{2496+512*k}")
    A.label(l2)

UL = 56
def ut_issue(A, fl):
    A(f"s_lshl_b32 s{Q_T0}, s{Q_PAIR}, 13")
    A(f"s_lshl_b32 s{Q_T1}, s{S_WAVE}, 11")
    A(f"s_add_u32 s{Q_T0}, s{Q_T0}, s{Q_T1}")
    A(f"s_add_u32 s{Q_T0}, s{Q_T0}, {WS_UT}")
    A("v_lshlrev_b32 v16, 4, v1")
    for i in range(2):
        A(f"buffer_load_dwordx4 {vr(UL+4*i,4)}, v16, s[{S_WS}:{S_WS+3}], s{Q_T0} offen offset:{i*1024} {fl}")

def ut_write(A):
    A(f"s_mul_i32 s{Q_T0}, s{Q_C}, {U_STRIDE}")
    A(f"s_lshl_b32 s{Q_T1}, s{Q_NH}, 11")
    A(f"s_add_u32 s{Q_T0}, s{Q_T0}, s{Q_T1}")
    A(f"s_add_u32 s{Q_T0}, s{Q_T0}, {LDS_U+64}")
    A(f"v_add_u32 v16, s{Q_T0}, v16")
    A("s_waitcnt vmcnt(0)")
    for i in range(2):
        A(f"ds_write_b128 v16, {vr(UL+4*i,4)} offset:{i*1024}")

def carry_zero(A):
    A("v_min_u32 v8, 35, v1")
    A(f"v_lshlrev_b32 v8, 3, v8")
    A(f"v_add_u32 v8, {LDS_CARR}, v8")
    A("v_mov_b32 v10, 0"); A("v_mov_b32 v11, 0")
    A("ds_write_b64 v8, v[10:11]")

def k_dump(A):
    A(f"s_mul_i32 s{Q_T0}, s{Q_C}, {K_STRIDE}")
    A(f"s_lshl_b32 s{Q_T1}, s{Q_NH}, 11")
    A(f"s_add_u32 s{Q_T0}, s{Q_T0}, s{Q_T1}")
    A(f"s_add_u32 s{Q_T0}, s{Q_T0}, {LDS_K+448}")
    A(f"v_lshl_add_u32 v8, v1, 4, s{Q_T0}")
    A("ds_read_b128 v[64:67], v8")
    A("ds_read_b128 v[68:71], v8 offset:1024")
    A(f"s_lshl_b32 s{Q_T0}, s{Q_PAIR}, 13")
    A(f"s_lshl_b32 s{Q_T1}, s{S_WAVE}, 11")
    A(f"s_add_u32 s{Q_T0}, s{Q_T0}, s{Q_T1}")
    A(f"s_add_u32 s{Q_T0}, s{Q_T0}, {13<<20}")
    A("v_lshlrev_b32 v8, 4, v1")
    A("s_waitcnt lgkmcnt(0)")
    A(f"buffer_store_dwordx4 v[64:67], v8, s[{S_WS}:{S_WS+3}], s{Q_T0} offen")
    A(f"buffer_store_dwordx4 v[68:71], v8, s[{S_WS}:{S_WS+3}], s{Q_T0} offen offset:1024")
    A("s_waitcnt vmcnt(0)")

CA, CACC, CB, CT_ = 128, 64, 40, 2
VAa, VBa, VST, VHD, VCR = 26, 27, 28, 29, 30
def conv_setup(A):
    A("v_lshrrev_b32 v8, 5, v1")
    A("v_bfe_u32 v9, v1, 2, 2")
    A("v_bfe_u32 v10, v1, 4, 1")
    A("v_and_b32 v11, 3, v1")
    A("v_lshl_add_u32 v12, v10, 2, v11")
    A("v_sub_u32 v12, v12, v8")
    A("v_lshlrev_b32 v12, 3, v12")
    A("v_sub_u32 v12, v12, v9")
    A(f"s_mul_i32 s{Q_T0}, s{Q_C}, {K_STRIDE}")
    A(f"s_add_u32 s{Q_T0}, s{Q_T0}, {LDS_K+88}")
    A(f"v_lshl_add_u32 v{VAa}, v12, 3, s{Q_T0}")
    A("v_lshl_add_u32 v12, v8, 1, v10")
    A("v_lshl_add_u32 v12, v12, 2, v9")
    A("v_add_u32 v12, v12, v11")
    A(f"s_mul_i32 s{Q_T0}, s{Q_C}, {U_STRIDE}")
    A(f"s_add_u32 s{Q_T0}, s{Q_T0}, {LDS_U+8}")
    A(f"v_lshl_add_u32 v{VBa}, v12, 3, s{Q_T0}")
    A(f"s_lshl_b32 s{Q_T0}, s{Q_C}, 1")
    A(f"s_add_u32 s{Q_T0}, s{Q_T0}, {LDS_STG}")
    A(f"v_lshl_add_u32 v{VST}, v1, 2, s{Q_T0}")
    A("v_lshlrev_b32 v12, 2, v1")
    A(f"v_add_u32 v13, {LDS_DUM}, v12")
    A(f"s_lshl_b32 s{Q_T0}, s{Q_C}, 7")
    A(f"s_add_u32 s{Q_T0}, s{Q_T0}, {LDS_HEAD}")
    A(f"v_add_u32 v12, s{Q_T0}, v12")
    A("v_cmp_gt_u32 vcc, 4, v1")
    A(f"s_mul_i32 s{Q_T0}, s{Q_C}, 144")
    A(f"s_add_u32 s{Q_T0}, s{Q_T0}, {LDS_CARR}")
    A(f"v_cndmask_b32 v{VHD}, v13, v12, vcc")
    A("v_cmp_eq_u32 vcc, 63, v1")
    A(f"v_mov_b32 v12, s{Q_T0}")
    A("s_nop 0")
    A(f"v_cndmask_b32 v{VCR}, v13, v12, vcc")

def conv_epi(T, acc):
    D = lambda q, e: acc + 4 * q + e
    Z2 = [CT_ + q for q in range(4)]; Z1 = [CT_ + 4 + q for q in range(4)]; Y = [CT_ + 8 + q for q in range(4)]
    out = []
    def level(dst, src, base):
        for q in range(4):
            if q == 0:
                out.append((0, f"v_add_f32_dpp v{dst[0]}, v{src[0]}, v{base[0]} wave_shr:1 row_mask:0xf bank_mask:0xf bound_ctrl:1"))
            else:
                out.append((0, f"v_add_f32_dpp v{dst[q]}, v{src[q-1]}, v{base[q]} wave_ror:1 row_mask:0xf bank_mask:0xf"))
                out.append((0, f"v_add_f32_dpp v{dst[q]}, v{src[q]}, v{base[q]} wave_shr:1 row_mask:0xf bank_mask:0xf"))
    level(Z2, [D(q, 3) for q in range(4)], [D(q, 2) for q in range(4)])
    level(Z1, Z2, [D(q, 1) for q in range(4)])
    level(Y, Z1, [D(q, 0) for q in range(4)])
    P = CT_ + 12
    out.append((0, f"v_cvt_pk_bf16_f32 v{P}, v{Y[0]}, v{Y[1]}"))
    out.append((0, f"v_cvt_pk_bf16_f32 v{P+1}, v{Y[2]}, v{Y[3]}"))
    out.append((1, f"ds_write_b32 v{VHD}, v{Y[0]} offset:{T*16}"))
    if T < 7:
        for k, r in enumerate((Z1[3], Z2[3], D(3, 3))):
            out.append((1, f"ds_write_b32 v{VCR}, v{r} offset:{(T+1)*16+4*k}"))
    for q in range(4):
        op = "ds_write_b16_d16_hi" if q & 1 else "ds_write_b16"
        out.append((1, f"{op} v{VST}, v{P+q//2} offset:{T*1024+q*256}"))
    return out

def conv_body(A, tiles, LOOK=5, PER=5, inj=None):
    lg = Lg(A)
    mf = []
    for s in range(32):
        for ti, T in enumerate(tiles):
            if s <= 4 * T + 3: mf.append((ti, T, s))
    loads = []; first = {}
    lastB = {}
    for m, (ti, T, s) in enumerate(mf):
        for key in (("B", s), ("A", 4 * T - s + 3)):
            if key not in first: first[key] = m; loads.append(key)
        lastB[s] = m
    ids = {}
    def issue(key):
        k, i = key
        for x in range(2):
            if k == "A": idn = lg.op(f"ds_read_b64_tr_b16 {vr(CA+4*i+2*x,2)}, v{VAa} offset:{128*i+32*(1-x)}")
            else: idn = lg.op(f"ds_read_b64_tr_b16 {vr(CB+4*(i%4)+2*x,2)}, v{VBa} offset:{128*i+32*x}")
        ids[key] = idn
    li = 0
    fill = []; fill_at = []
    started = set()
    for m, (ti, T, s) in enumerate(mf):
        while li < len(loads) and first[loads[li]] <= m + LOOK:
            k, i = loads[li]
            if k == "B" and i >= 4 and lastB[i - 4] >= m: break
            if lg.n - lg.done > 12 and first[loads[li]] > m: break
            issue(loads[li]); li += 1
        lg.wait(max(ids[("B", s)], ids[("A", 4 * T - s + 3)]))
        acc = CACC + 16 * ti
        c = vr(acc, 16) if ti in started else "0"
        started.add(ti)
        A(f"v_mfma_f32_32x32x16_bf16 {vr(acc,16)}, {vr(CA+4*(4*T-s+3),4)}, {vr(CB+4*(s%4),4)}, {c}")
        if inj and m == inj[0]:
            for ins in inj[1]:
                if ins.startswith("ds_"): lg.op(ins)
                else: A(ins)
        if s == 4 * T + 3:
            fill_at.append((m + 2, conv_epi(T, acc)))
        if fill_at and fill_at[0][0] <= m and not fill:
            fill = fill_at.pop(0)[1]
        for _ in range(PER):
            if fill:
                isl, ins = fill.pop(0)
                if isl: lg.op(ins)
                else: A(ins)
    rest = fill
    for isl, ins in rest: A(ins)
    A("s_nop 7"); A("s_nop 3")
    for _, e in fill_at:
        for isl, ins in e: A(ins)

def conv(A, inj=None):
    l1 = A.newlabel("CV"); l2 = A.newlabel("CV")
    A(f"s_cmp_eq_u32 s{Q_NH}, 0")
    A(f"s_cbranch_scc0 {l1}")
    conv_body(A, [0, 3, 4, 7], inj=inj)
    A(f"s_branch {l2}")
    A.label(l1)
    conv_body(A, [1, 2, 5, 6], inj=inj)
    A.label(l2)

def conv_final(A, fl):
    w = S_WAVE
    A("v_bfe_u32 v8, v1, 3, 1")
    A("v_bfe_u32 v9, v1, 2, 1")
    A("v_and_b32 v10, 3, v1")
    A(f"v_lshl_add_u32 v8, v8, 2, s{w}")
    A("v_lshl_add_u32 v11, v8, 2, v10")
    A("v_lshlrev_b32 v11, 2, v11")
    A("v_lshl_add_u32 v12, v9, 7, v11")
    A("v_mul_u32_u24 v13, 144, v9")
    A("v_add_u32 v13, v13, v11")
    A(f"v_add_u32 v12, {LDS_HEAD}, v12")
    A(f"v_add_u32 v13, {LDS_CARR}, v13")
    A("ds_read_b32 v12, v12")
    A("ds_read_b32 v13, v13")
    A("v_lshl_add_u32 v8, v8, 8, v10")
    A("v_lshl_add_u32 v8, v8, 1, v9")
    A("v_lshlrev_b32 v8, 1, v8")
    A(f"v_add_u32 v8, {LDS_STG}, v8")
    A(f"s_lshl_b32 s{Q_T1}, s{w}, 10")
    A(f"s_add_u32 s{Q_T0}, s{Q_T1}, {LDS_STG}")
    A(f"v_lshl_add_u32 v9, v1, 4, s{Q_T0}")
    A("v_lshlrev_b32 v10, 4, v1")
    A(f"s_lshl_b32 s{Q_T0}, s{Q_PAIR}, 13")
    A(f"s_add_u32 s{Q_T0}, s{Q_T0}, s{Q_T1}")
    A(f"s_add_u32 s{Q_T0}, s{Q_T0}, {WS_A}")
    A(f"s_add_u32 s{Q_T1}, s{Q_T0}, 4096")
    A("s_waitcnt lgkmcnt(0)")
    A("v_add_f32 v12, v12, v13")
    A("v_cvt_pk_bf16_f32 v12, v12, v12")
    A("ds_write_b16 v8, v12")
    A("ds_read_b128 v[64:67], v9")
    A("ds_read_b128 v[68:71], v9 offset:4096")
    A("s_waitcnt lgkmcnt(1)")
    A(f"buffer_store_dwordx4 v[64:67], v10, s[{S_WS}:{S_WS+3}], s{Q_T0} offen {fl}")
    A("s_waitcnt lgkmcnt(0)")
    A(f"buffer_store_dwordx4 v[68:71], v10, s[{S_WS}:{S_WS+3}], s{Q_T1} offen {fl}")

def ut_all(A, fl):
    R = 128
    A(f"s_lshl_b32 s{Q_T0}, s{Q_PAIR}, 13")
    A(f"s_add_u32 s{Q_T0}, s{Q_T0}, {WS_UT}")
    A(f"s_add_u32 s{Q_T1}, s{Q_T0}, 4096")
    A("v_lshlrev_b32 v16, 4, v1")
    for i in range(8):
        A(f"buffer_load_dwordx4 {vr(R+4*i,4)}, v16, s[{S_WS}:{S_WS+3}], s{Q_T0+i//4} offen offset:{(i%4)*1024} {fl}")
    A(f"v_add_u32 v16, {LDS_U+64}, v16")
def ut_all_write(A):
    R = 128
    for i in range(8):
        A(f"s_waitcnt vmcnt({7-i})")
        A(f"ds_write_b128 v16, {vr(R+4*i,4)} offset:{(i//4)*U_STRIDE+(i%4)*1024}")
```

```python
import sys; sys.path.insert(0, "gen")
import parts
from parts import *
import ssm
from ssm import *

class Opt: pass
O = Opt()
O.TS = False
O.ROT = (0, 0, 2, 1)
O.SPRIO = 3; O.CPRIO = 0; O.GPRIO = 1; O.TPRIO = 3
O.CODEPF = True
O.SPIN = 100000
O.SLP = 4; O.HSLP = 1
O.TSC = None; O.TSG = "a"; O.TSS = "a"
O.ARR = 1
O.DEPTH = 14
O.PUBM = 12
O.SLOW = False
O.DIAG = None
O.HFS = 8
O.HLD = "sc1"; O.HST = "sc1"; O.GHOLD = False; O.VERD = False; O.NA = 4; O.PFD = 2; O.NOPK = True; O.KG2 = True; O.KLO = "pk"; O.KHI = "sc"; O.LFIN = 7; O.TOUCH = False; O.PST = "sc1"; O.AFIRST = False; O.XFL = ""; O.W1FL = ""; O.W2FL = ""; O.TFL = "nt"; O.UFL = ""; O.PDLY = 0; O.LOOK = 4; O.PFL = 99; O.L3 = "i"; O.IPRIO = 3; O.TAILK = 0
O.X2 = ""
O.PAW = 2
for a in sys.argv[2:]: exec("O." + a)
parts.TS = O.TS
ssm.KG2 = O.KG2; ssm.KLO = O.KLO; ssm.KHI = O.KHI
parts.gflag_setup = lambda A: None

LF = LDS_SSM + 31744
L_GL, L_GD, L_SB, L_SL, L_RDY, L_HOK, L_VERD = LF, LF + 16, LF + 32, LF + 48, LF + 64, LF + 72, LF + 76
L_DUMMY = LF + 128
ssm.LDS_SFLAG = L_SB
FS = 8
F_HERE, F_UT, F_G, F_A, F_H, F_P, F_EP = [WS_FLAG + (x << FS) for x in (0, 256, 384, 512, 1536, 2560, 3584)]
assert F_EP + 256 <= (13 << 20)
WS_P = 16 << 20
WS_BYTES = 20 << 20
STOK = 32
S_W8, S_SPIN, S_HF = 27, 85, 32

parts_ts = ts
def tsg(A, i, mode="a"):
    if O.TSC: return
    if O.TSG in mode: parts_ts(A, i)
def tss(A, i, mode="a"):
    if O.TSS in mode: parts_ts(A, i)

class Vm:
    def __init__(self, A): self.A = A; self.n = 0; self.done = 0
    def op(self, s):
        self.A(s)
        if s.startswith("buffer_") or s.startswith("global_"): self.n += 1
        return self.n
    def cnt(self, idn):
        k = min(self.n - idn, 63); self.done = max(self.done, self.n - k); return k
    def wait(self, idn, extra=""):
        if idn <= self.done:
            if extra: self.A(f"s_waitcnt {extra}")
            return
        self.A(f"s_waitcnt vmcnt({self.cnt(idn)}) {extra}")

def poll(A, vaddr, vt, tok, name, slp=None, mask=False):
    l = A.newlabel(name); d = A.newlabel(name)
    A(f"s_mov_b32 s{S_SPIN}, {O.SPIN}")
    A.label(l)
    A(f"buffer_load_dword v{vt}, v{vaddr}, s[{S_WS}:{S_WS+3}], 0 offen sc1")
    A("s_waitcnt vmcnt(0)")
    if mask:
        A(f"v_and_b32 v{vt+1}, -16, v{vt}")
        A(f"v_cmp_ne_u32 vcc, v{tok}, v{vt+1}")
    else:
        A(f"v_cmp_ne_u32 vcc, v{tok}, v{vt}")
    A(f"s_cbranch_vccz {d}")
    A(f"s_sleep {O.SLP if slp is None else slp}")
    A(f"s_sub_u32 s{S_SPIN}, s{S_SPIN}, 1")
    A(f"s_cbranch_scc0 {l}")
    A.label(d)

def lwait(A, vaddr, off, vt, val, issued=False, sleep=1):
    lab = A.newlabel("LW"); done = A.newlabel("LWD")
    if not issued: A(f"ds_read_b32 v{vt}, v{vaddr} offset:{off}")
    A("s_waitcnt lgkmcnt(0)")
    A(f"v_cmp_gt_u32 vcc, {val}, v{vt}")
    A(f"s_cbranch_vccz {done}")
    A.label(lab)
    if sleep: A(f"s_sleep {sleep}")
    A(f"ds_read_b32 v{vt}, v{vaddr} offset:{off}")
    A("s_waitcnt lgkmcnt(0)")
    A(f"v_cmp_gt_u32 vcc, {val}, v{vt}")
    A(f"s_cbranch_vccnz {lab}")
    A.label(done)

def token_get(A, va, tok):
    l = A.newlabel("RW"); d = A.newlabel("RW")
    A(f"v_mov_b32 v{va}, {L_RDY}")
    A.label(l)
    A(f"ds_read_b64 {vr(tok,2)}, v{va}")
    A("s_waitcnt lgkmcnt(0)")
    A(f"v_cmp_ne_u32 vcc, 1, v{tok+1}")
    A(f"s_cbranch_vccz {d}")
    A("s_sleep 1")
    A(f"s_branch {l}")
    A.label(d)

def flag_store(A, soff, va, vt, fl="sc1"):
    A(f"v_mov_b32 v{va}, 0")
    A("s_mov_b64 exec, 1")
    A(f"buffer_store_dword v{vt}, v{va}, s[{S_WS}:{S_WS+3}], s{soff} offen {fl}")
    A("s_mov_b64 exec, -1")

def rot_c0(A, dst, t0):
    a, b, c, d = O.ROT
    A(f"s_mov_b32 s{dst}, 0")
    if a: A(f"s_and_b32 s{t0}, s{S_J}, 3"); A(f"s_mul_i32 s{dst}, s{t0}, {a}")
    if b: A(f"s_lshr_b32 s{t0}, s{S_J}, 2"); A(f"s_mul_i32 s{t0}, s{t0}, {b}"); A(f"s_add_u32 s{dst}, s{dst}, s{t0}")
    if c: A(f"s_lshr_b32 s{t0}, s{S_XCD}, 1"); A(f"s_mul_i32 s{t0}, s{t0}, {c}"); A(f"s_add_u32 s{dst}, s{dst}, s{t0}")
    if d: A(f"s_and_b32 s{t0}, s{S_XCD}, 1"); A(f"s_mul_i32 s{t0}, s{t0}, {d}"); A(f"s_add_u32 s{dst}, s{dst}, s{t0}")

GOWN, GRD, GT, HV, AR, RW, FV, VTOK, GX = 50, 51, 52, 54, 56, 58, 59, 60, 62
ACCA, ACCB, AF, PK, HR0 = 64, 96, 128, 168, 184
OV, RX, TV = 55, 63, 49
S_OO, S_PO, S_P1, S_PF = 76, 77, 78, 79
L_T = LDS_SSM
STMP = 160
S_HL, S_HR, S_C0 = 80, 81, 84

def g_flags_setup(A):
    A(f"s_lshl_b32 s{S_T0}, s{S_WAVE}, 2")
    A(f"s_add_u32 s{S_T0}, s{S_T0}, {LF}")
    A(f"v_mov_b32 v{GOWN}, s{S_T0}")
    A(f"v_and_b32 v{GRD}, 3, v1")
    A(f"v_lshlrev_b32 v{GRD}, 2, v{GRD}")
    A(f"v_add_u32 v{GRD}, {LF}, v{GRD}")

def g2_setup(A):
    w = S_WAVE; T = 30
    A(f"s_and_b32 s{S_T0}, s{S_XCD}, 6")
    A(f"s_lshl_b32 s{S_T0}, s{S_T0}, 1")
    A(f"s_and_b32 s{S_T1}, s{S_J}, 3")
    A(f"s_add_u32 s{S_T0}, s{S_T0}, s{S_T1}")
    A(f"s_and_b32 s{S_T1}, s{S_XCD}, 1")
    A(f"s_lshl_b32 s{S_HF}, s{S_T0}, 1")
    A(f"s_add_u32 s{S_HF}, s{S_HF}, s{S_T1}")
    A(f"s_lshl_b32 s{S_HF}, s{S_HF}, {5+O.HFS}")
    A(f"s_add_u32 s{S_HF}, s{S_HF}, {F_H}")
    A(f"v_min_u32 v{T}, 27, v1")
    A(f"v_lshl_add_u32 v{FV}, v{T}, {O.HFS}, s{S_HF}")
    A(f"s_lshl_b32 s{S_T0}, s{S_T0}, 2")
    A(f"s_and_b32 s{S_HR}, s{w}, 1")
    A(f"s_add_u32 s{S_T0}, s{S_T0}, s{S_HR}")
    A(f"s_lshl_b32 s{S_OO}, s{S_T1}, 1")
    A(f"s_add_u32 s{S_OO}, s{S_OO}, s{S_T0}")
    A(f"s_xor_b32 s{S_HL}, s{S_OO}, 2")
    A(f"s_mul_i32 s{S_HL}, s{S_HL}, 112")
    A(f"s_mul_i32 s{S_HR}, s{S_OO}, 112")
    A(f"s_lshl_b32 s{S_T1}, s{S_T1}, 1")
    A(f"s_lshr_b32 s{S_T0}, s{w}, 1")
    A(f"s_add_u32 s{S_T1}, s{S_T1}, s{S_T0}")
    A(f"s_mul_i32 s{S_T1}, s{S_T1}, 28")
    A(f"s_add_u32 s{S_HL}, s{S_HL}, s{S_T1}")
    A(f"s_add_u32 s{S_HR}, s{S_HR}, s{S_T1}")
    A(f"s_lshl_b32 s{S_HL}, s{S_HL}, 10")
    A(f"s_lshl_b32 s{S_HR}, s{S_HR}, 10")
    A(f"s_lshl_b32 s{S_OO}, s{S_OO}, 15")
    A(f"s_lshr_b32 s{S_T1}, s{S_J}, 2")
    A(f"s_lshl_b32 s{S_T1}, s{S_T1}, 1")
    A(f"s_add_u32 s{S_T1}, s{S_T1}, s{S_T0}")
    A(f"s_lshl_b32 s{S_T1}, s{S_T1}, 6")
    A(f"s_add_u32 s{S_OO}, s{S_OO}, s{S_T1}")
    A(f"v_lshlrev_b32 v{HV}, 4, v1")
    A(f"s_lshl_b32 s{S_T1}, s{w}, 15")
    A(f"v_add_u32 v{RW}, s{S_T1}, v{HV}")
    A(f"v_xor_b32 v{RX}, 0x10000, v{RW}")
    A(f"s_lshl_b32 s{S_T1}, s{w}, 12")
    A(f"s_add_u32 s{S_T1}, s{S_T1}, {L_T}")
    A(f"v_add_u32 v{TV}, s{S_T1}, v{HV}")
    A(f"v_lshrrev_b32 v{T+1}, 5, v1")
    A(f"v_and_b32 v{T}, 31, v1")
    A(f"v_lshlrev_b32 v{T}, 10, v{T}")
    A(f"v_lshl_add_u32 v{OV}, v{T+1}, 4, v{T}")
    A(f"v_bfe_u32 v{T+2}, v1, 2, 2")
    A(f"v_bfe_u32 v{T+3}, v1, 4, 1")
    A(f"v_bfe_u32 v{T+4}, v1, 1, 1")
    A(f"v_lshl_add_u32 v{T+3}, v{T+3}, 1, v{T+4}")
    A(f"v_bfe_u32 v{T+4}, v1, 3, 1")
    A(f"v_xor_b32 v{T+4}, s{S_T0}, v{T+4}")
    A(f"v_lshl_add_u32 v{T+3}, v{T+4}, 2, v{T+3}")
    A(f"v_lshl_add_u32 v{T+2}, v{T+1}, 2, v{T+2}")
    A(f"v_lshlrev_b32 v{T+2}, 7, v{T+2}")
    A(f"v_lshl_add_u32 v{T+2}, v{T+3}, 4, v{T+2}")
    A(f"v_and_b32 v{T+4}, 1, v1")
    A(f"v_lshl_add_u32 v{T+2}, v{T+4}, 3, v{T+2}")
    A(f"s_lshl_b32 s{S_T0}, s{S_T0}, 16")
    A(f"v_add_u32 v{AR}, s{S_T0}, v{T+2}")
    A(f"v_xor_b32 v{AR+1}, 64, v{AR}")

def w2_read(i):
    k = i % 28; dst = AF + 8 * (i % O.NA)
    o = (k // 14) * 32768 + 4096 + (k % 14) * 2048
    return [f"ds_read_b64_tr_b16 {vr(dst+4*a+2*x,2)}, v{AR+a} offset:{o+x*1024}" for a in range(2) for x in range(2)]
def h_load(i):
    base, k = (S_HL, i) if i < 28 else (S_HR, i - 28)
    pre = [f"s_add_u32 s{S_T0}, s{base}, {k*1024}"] if k % 4 == 0 else []
    return pre + [f"buffer_load_dwordx4 {vr(HR0+4*(i%O.DEPTH),4)}, v{HV}, s[{S_WS}:{S_WS+3}], s{S_T0} offen offset:{(k%4)*1024} {O.HLD}"]

def g_chunk_dma(cc):
    slot = cc % 4
    out = [f"s_add_u32 s{S_HO}, s{S_C0}, {cc}", f"s_and_b32 s{S_HO}, s{S_HO}, 7",
           f"s_lshl_b32 s{S_T1}, s{S_HO}, 7", f"s_add_u32 m0, s{S_M0X}, {slot*32768}", f"s_add_u32 s{S_T1}, s{S_T1}, s{S_XO}"]
    for i in range(4):
        out.append(f"buffer_load_dwordx4 v{G1_XD+i}, s[{S_X}:{S_X+3}], s{S_T1} offen offset:{i*1024} {O.XFL} lds")
    out += [f"s_mul_i32 s{S_T1}, s{S_HO}, {64*2*F}", f"s_add_u32 m0, s{S_M0X}, {slot*32768+16384}", f"s_add_u32 s{S_T1}, s{S_T1}, s{S_WO}"]
    for i in range(4):
        out.append(f"buffer_load_dwordx4 v{G1_WD+i}, s[{S_W1}:{S_W1+3}], s{S_T1} offen offset:{i*1024} {O.W1FL} lds")
    return out

def g1_main(A, vm, cid):
    vm.wait(cid[0])
    A(f"v_mov_b32 v{GT}, 1"); A(f"ds_write_b32 v{GOWN}, v{GT}")
    lwait(A, GRD, 0, GT + 1, 1, sleep=0)
    for r in g1_reads(0): A(r)
    for c in range(8):
        if O.TSC and c in O.TSC: parts_ts(A, 2 + O.TSC.index(c))
        off = 0 if c + 1 < O.LOOK else 48
        for s in range(4):
            t = 4 * c + s
            mf = g1_mfmas(t)
            pre = []
            if s == 3:
                if c < 7: lwait(A, GRD, off, GT + 1, c + 2, issued=True, sleep=0)
                else: A("s_waitcnt lgkmcnt(0)")
                pre = [f"v_mov_b32 v{GT}, {c+1}", f"ds_write_b32 v{GOWN}, v{GT} offset:16"]
            elif s == O.ARR and c + 1 < O.LOOK:
                vm.wait(cid[c + 1], "lgkmcnt(0)")
                pre = [f"v_mov_b32 v{GT}, {c+2}", f"ds_write_b32 v{GOWN}, v{GT}"]
            else: A("s_waitcnt lgkmcnt(0)")
            rd = g1_reads(t + 1) if t < 31 else []
            post = [f"ds_read_b32 v{GT+1}, v{GRD} offset:{off}"] if (s == 2 and c < 7) else []
            A(mf[0])
            for x in rd[:3]: A(x)
            A(mf[1])
            for x in rd[3:]: A(x)
            A(mf[2])
            for x in pre + post: A(x)
            if c == 0 and O.LOOK == 4 and O.L3 == "i":
                for x in split_groups(g_chunk_dma(3), 4)[s]: vm.op(x)
                cid[3] = vm.n
            A(mf[3])

def silu_np(A, regs, tmp):
    n = len(regs)
    for i, (s, d) in enumerate(regs):
        for e in range(2): A(f"v_mul_f32 v{tmp+2*i+e}, s{S_CL}, v{s+e}")
    for i in range(2 * n): A(f"v_exp_f32 v{tmp+i}, v{tmp+i}")
    for i in range(2 * n): A(f"v_add_f32 v{tmp+i}, 1.0, v{tmp+i}")
    for i in range(2 * n): A(f"v_rcp_f32 v{tmp+i}, v{tmp+i}")
    for i, (s, d) in enumerate(regs):
        for e in range(2): A(f"v_mul_f32 v{tmp+2*i+e}, v{tmp+2*i+e}, v{s+e}")
    for i, (s, d) in enumerate(regs):
        A(f"v_cvt_pk_bf16_f32 v{d}, v{tmp+2*i}, v{tmp+2*i+1}")

def split_groups(lst, n):
    units = []; cur = []
    for x in lst:
        cur.append(x)
        if x.startswith("buffer_"): units.append(cur); cur = []
    g = [[] for _ in range(n)]
    for i, u in enumerate(units): g[i * n // len(units)] += u
    return g

def g1_epi(A):
    w = S_WAVE
    if O.VERD:
        A(f"v_mov_b32 v{GX}, {L_RDY}")
        A(f"ds_read_b32 v{GT}, v{GX} offset:{L_VERD-L_RDY}")
    A(f"s_lshl_b32 s{S_HO}, s{S_RB}, 2")
    A(f"s_and_b32 s{S_T0}, s{w}, 2")
    A(f"s_add_u32 s{S_HO}, s{S_HO}, s{S_T0}")
    A(f"s_mul_i32 s{S_T1}, s{S_T0}, 7")
    A(f"s_mul_i32 s{S_HO}, s{S_HO}, 112")
    A(f"s_lshl_b32 s{S_T0}, s{S_CB}, 3")
    A(f"s_add_u32 s{S_HO}, s{S_HO}, s{S_T0}")
    A(f"s_and_b32 s{S_T0}, s{w}, 1")
    A(f"s_add_u32 s{S_T1}, s{S_T1}, s{S_T0}")
    A(f"s_lshl_b32 s{S_T0}, s{S_T0}, 2")
    A(f"s_add_u32 s{S_HO}, s{S_HO}, s{S_T0}")
    A(f"s_lshr_b32 s{S_T0}, s{S_J}, 2")
    A(f"s_lshl_b32 s{S_T0}, s{S_T0}, 1")
    A(f"s_add_u32 s{S_T1}, s{S_T1}, s{S_T0}")
    A(f"s_lshl_b32 s{S_T1}, s{S_T1}, {O.HFS}")
    A(f"s_add_u32 s{S_HF}, s{S_HF}, s{S_T1}")
    A(f"s_lshl_b32 s{S_HO}, s{S_HO}, 10")
    A(f"s_add_u32 s{S_XO}, s{S_HO}, {112*1024}")
    st = []
    p = 0
    for a in range(2):
        for b in range(2):
            acc = G1_ACC + (2*a+b)*16
            for fh in range(2):
                dst = G1_FR + p * 4
                (silu_np if O.NOPK else silu_pairs)(A, [(acc + 8*fh + 2*i, dst + i) for i in range(4)], STMP)
                so = S_HO if b == 0 else S_XO
                st.append(f"buffer_store_dwordx4 {vr(dst,4)}, v{HV}, s[{S_WS}:{S_WS+3}], s{so} offen offset:{(2*a+fh)*1024}")
                A(st[-1] + " " + O.HST)
                p += 1
    tsg(A, 5, "e")
    if not O.VERD:
        token_get(A, GX, VTOK)
        A("s_waitcnt vmcnt(0)")
        flag_store(A, S_HF, GT, VTOK, O.HST)
        return
    lwait(A, GX, L_VERD - L_RDY, GT, 1, issued=True)
    A(f"ds_read_b64 {vr(VTOK,2)}, v{GX}")
    A(f"v_cmp_eq_u32 vcc, {1 if not O.SLOW else 7}, v{GT}")
    A("s_waitcnt vmcnt(0) lgkmcnt(0)")
    A("s_cbranch_vccz G_SLOW")
    flag_store(A, S_HF, GT, VTOK, O.HST)
    A("s_branch G_FD")
    A.label("G_SLOW")
    for x in st: A(x + " sc1")
    A("s_waitcnt vmcnt(0)")
    flag_store(A, S_HF, GT, VTOK)
    A.label("G_FD")

def g2_main(A):
    vm = Vm(A); lg = Lg(A)
    hid = {}; wid = {}
    assert HR0 + 4 * O.DEPTH <= 256 and AF + 8 * O.NA <= PK
    for i in range(O.DEPTH):
        for x in h_load(i): vm.op(x)
        hid[i] = vm.n
    for i in range(O.PFD): wid[i] = 0
    send = []
    for t in range(2):
        for hf in range(2):
            send += [f"v_cvt_pk_bf16_f32 v{PK+8*t+4*hf+k}, v{ACCA+16*t+8*hf+2*k}, v{ACCA+16*t+8*hf+2*k+1}" for k in range(4)]
            send.append(f"ds_write_b128 v{RW}, {vr(PK+8*t+4*hf,4)} offset:{2048*t+1024*hf}")
    send += [f"v_mov_b32 v{GT+1}, 9", f"ds_write_b32 v{GOWN}, v{GT+1} offset:16"]
    if O.TS and O.TSG == "a" and not O.TSC: send.append(f"s_memtime s[{S_TS+10}:{S_TS+11}]")
    st = (1, 14, 28, 42)
    for i in range(56):
        if O.TS and O.TSG == "s" and i in st: parts_ts(A, 2 + st.index(i))
        k = min(lg.n - wid[i], 15)
        need_l = wid[i] > lg.done
        if need_l: lg.done = lg.n - k
        vm.wait(hid[i], f"lgkmcnt({k})" if need_l else "")
        fr = AF + 8 * (i % O.NA); hr = HR0 + 4 * (i % O.DEPTH)
        acc0 = ACCA if i < 28 else ACCB
        g = [[], []]
        if i + O.PFD < 56:
            rd = w2_read(i + O.PFD); g[0] += rd[:2]; g[1] += rd[2:]
        nl = i - 1 + O.DEPTH
        if i >= 1 and nl < 56: g[0] += h_load(nl)
        if i >= 29:
            for gi in range(2):
                for _ in range(3):
                    if send: g[gi].append(send.pop(0))
        for m, t in enumerate((1, 0)):
            acc = acc0 + 16 * t
            c = "0" if i % 28 == 0 else vr(acc, 16)
            A(f"v_mfma_f32_32x32x16_bf16 {vr(acc,16)}, {vr(fr+4*t,4)}, {vr(hr,4)}, {c}" if "m" not in O.X2 else "s_nop 0")
            if i == 29 and m == 0: A("s_nop 1")
            for x in g[m]:
                if x.startswith("ds_"): lg.op(x)
                else:
                    vm.op(x)
                    if x.startswith("buffer_load"): hid[nl] = vm.n
        if i + O.PFD < 56: wid[i + O.PFD] = lg.n
    T, R, GM = 2, 18, 34
    A(f"ds_read_b32 v{GT+1}, v{GRD} offset:32")
    A(f"v_mov_b32 v{GT}, 10")
    A(f"v_xor_b32 v{GX}, 8, v{GOWN}")
    A(f"s_lshl_b32 s{S_T0}, s{S_WAVE}, 8")
    A(f"s_add_u32 s{S_T0}, s{S_T0}, {L_T+16384}")
    A(f"v_lshl_add_u32 v{GM+1}, v1, 2, s{S_T0}")
    lwait(A, GRD, 32, GT + 1, 50, issued=True)
    A("s_nop 1")
    for q in range(4):
        A(f"ds_write_b128 v{RW}, {vr(ACCB+16+4*q,4)} offset:{q*1024}")
    A(f"ds_write_b32 v{GOWN}, v{GT} offset:16")
    lwait(A, GOWN, 32, GT + 1, 100)
    A(f"ds_read_b32 v{GM}, v{GM+1}")
    for q in range(4):
        A(f"ds_read_b128 {vr(T+4*q,4)}, v{TV} offset:{q*1024}")
    lwait(A, GX, 16, GT + 1, 10, sleep=0)
    for q in range(4):
        A(f"ds_read_b128 {vr(R+4*q,4)}, v{RX} offset:{q*1024}")
    for k in range(8):
        A(f"v_pk_fma_f32 {vr(T+2*k,2)}, {vr(ACCB+2*k,2)}, {vr(GM,2)}, {vr(T+2*k,2)} op_sel:[0,0,0] op_sel_hi:[1,0,1]")
    for q in range(4):
        A(f"s_waitcnt lgkmcnt({3-q})")
        for k in (2*q, 2*q+1):
            A(f"v_pk_fma_f32 {vr(T+2*k,2)}, {vr(R+2*k,2)}, {vr(GM,2)}, {vr(T+2*k,2)} op_sel:[0,0,0] op_sel_hi:[1,0,1]")
    for k in range(8):
        A(f"v_cvt_pk_bf16_f32 v{PK+k}, v{T+2*k}, v{T+2*k+1}")
    A("s_nop 1")
    for h in range(2):
        A(f"v_permlane32_swap_b32 v{PK+4*h}, v{PK+4*h+2}")
        A(f"v_permlane32_swap_b32 v{PK+4*h+1}, v{PK+4*h+3}")
    A("s_nop 1")
    for h in range(2):
        A(f"buffer_store_dwordx4 {vr(PK+4*h,4)}, v{OV}, s[{S_OUT}:{S_OUT+3}], s{S_OO} offen offset:{32*h}")

def idle_tr_issue(A):
    A("v_lshrrev_b32 v8, 3, v1")
    A("v_and_b32 v9, 7, v1")
    A("v_lshlrev_b32 v10, 10, v8")
    A("v_lshl_add_u32 v10, v9, 4, v10")
    A(f"s_sub_u32 s64, s{S_J}, 28")
    A(f"s_lshl_b32 s64, s64, 2")
    A(f"s_add_u32 s64, s64, s{S_WAVE}")
    A(f"s_lshl_b32 s65, s64, 17")
    A(f"s_lshl_b32 s{S_T1}, s{S_XCD}, 7")
    A(f"s_add_u32 s65, s65, s{S_T1}")
    A(f"s_lshl_b32 s66, s{S_WAVE}, 15")
def idle_tr_dma(A):
    for i in range(16):
        A(f"s_add_u32 m0, s66, {i*1024}")
        A(f"s_add_u32 s{S_T1}, s65, {i*8192}")
        A(f"buffer_load_dwordx4 v10, s[{S_X}:{S_X+3}], s{S_T1} offen {O.UFL} lds")
def idle_tr_finish(A):
    R = 128
    A("v_lshrrev_b32 v11, 4, v1")
    A("v_bfe_u32 v12, v1, 2, 2")
    A("v_lshl_add_u32 v12, v11, 3, v12")
    A("v_lshlrev_b32 v12, 7, v12")
    A("v_and_b32 v13, 3, v1")
    A("v_lshl_add_u32 v12, v13, 3, v12")
    A(f"v_add_u32 v12, s66, v12")
    A("v_bfe_u32 v13, v1, 1, 3")
    A("v_lshlrev_b32 v13, 13, v13")
    A("v_and_b32 v14, 1, v1")
    A("v_lshl_add_u32 v13, v14, 6, v13")
    A("v_lshl_add_u32 v16, v11, 4, v13")
    A(f"s_lshl_b32 s67, s{S_XCD}, 18")
    A(f"s_lshl_b32 s{S_T1}, s64, 9")
    A(f"s_add_u32 s67, s67, s{S_T1}")
    A(f"s_add_u32 s67, s67, {WS_UT}")
    for p in range(4):
        Rk = R + 16 * p
        A(f"s_waitcnt vmcnt(12)")
        for a in range(4):
            for x in range(2):
                A(f"ds_read_b64_tr_b16 {vr(Rk+4*a+2*x,2)}, v12 offset:{p*4096+x*512+a*32}")
        for a in range(4):
            A(f"s_waitcnt lgkmcnt({6-2*a})")
            A(f"s_add_u32 s{S_T1}, s67, {a*65536}")
            A(f"buffer_store_dwordx4 {vr(Rk+4*a,4)}, v16, s[{S_WS}:{S_WS+3}], s{S_T1} offen offset:{p*128} sc1")
def ut2(A):
    R = 128
    A(f"s_lshl_b32 s{Q_T0}, s{Q_PAIR}, 13")
    A(f"s_add_u32 s{Q_T0}, s{Q_T0}, {WS_UT}")
    A(f"s_add_u32 s{Q_T1}, s{Q_T0}, 4096")
    A("v_lshlrev_b32 v16, 4, v1")
    for i in range(8):
        A(f"buffer_load_dwordx4 {vr(R+4*i,4)}, v16, s[{S_WS}:{S_WS+3}], s{Q_T0+i//4} offen offset:{(i%4)*1024} sc1")
    A("v_bfe_u32 v16, v1, 2, 1")
    A(f"v_mul_u32_u24 v16, {U_STRIDE}, v16")
    A("v_lshrrev_b32 v17, 3, v1")
    A("v_lshl_add_u32 v16, v17, 6, v16")
    A("v_and_b32 v17, 3, v1")
    A("v_lshl_add_u32 v16, v17, 4, v16")
    A(f"v_add_u32 v16, {LDS_U+64}, v16")
    for i in range(8):
        A(f"s_waitcnt vmcnt({7-i})")
        A(f"ds_write_b128 v16, {vr(R+4*i,4)} offset:{i*512}")
def idle_gate_issue(A):
    R = 64
    A(f"global_load_dwordx4 {vr(44,4)}, v{HV}, s[{P_GW}:{P_GW+1}]")
    A(f"s_lshl_b32 s68, s{S_XCD}, 4")
    A(f"s_add_u32 s68, s68, s64")
    A(f"s_lshl_b32 s65, s68, 14")
    for i in range(16):
        if i % 4 == 0: A(f"s_add_u32 s{S_T1}, s65, {i*1024}")
        A(f"buffer_load_dwordx4 {vr(R+4*i,4)}, v{HV}, s[{S_X}:{S_X+3}], s{S_T1} offen offset:{(i%4)*1024}")
def idle_gate_finish(A):
    R = 64; S = 2
    A("s_waitcnt vmcnt(0)")
    for k in range(4):
        for i in range(16):
            c = "0" if k == 0 else f"v{S+i}"
            A(f"v_dot2_f32_bf16 v{S+i}, v{R+4*i+k}, v{44+k}, {c}")
    for sh in ("row_shr:1", "row_shr:2", "row_shr:4", "row_shr:8"):
        for i in range(16):
            A(f"v_add_f32_dpp v{S+i}, v{S+i}, v{S+i} {sh} row_mask:0xf bank_mask:0xf bound_ctrl:1")
    for sh in ("row_bcast:15 row_mask:0xa", "row_bcast:31 row_mask:0xc"):
        for i in range(16):
            A(f"v_add_f32_dpp v{S+i}, v{S+i}, v{S+i} {sh} bank_mask:0xf")
    A("v_mov_b32 v20, 0")
    for h in range(2):
        for i in range(8): A(f"v_readlane_b32 s{38+i}, v{S+8*h+i}, 63")
        A("s_nop 3")
        for i in range(8): A(f"v_writelane_b32 v20, s{38+i}, {8*h+i}")
    A("v_cvt_pk_bf16_f32 v20, v20, v20")
    A("v_lshlrev_b32 v20, 16, v20")
    A("v_mul_f32 v20, 0xbfb8aa3b, v20")
    A("v_exp_f32 v20, v20")
    A("s_nop 0")
    A("v_add_f32 v20, 1.0, v20")
    A("v_rcp_f32 v20, v20")
    A("s_nop 0")
    A("v_cvt_pk_bf16_f32 v22, v20, v20")
    A("v_lshlrev_b32 v22, 16, v22")
    A("v_sub_f32 v23, 1.0, v22")
    A("v_cvt_pk_bf16_f32 v23, v23, v23")
    A("v_lshlrev_b32 v23, 16, v23")
    A("v_lshlrev_b32 v21, 3, v1")
    A(f"s_lshl_b32 s65, s68, 7")
    A(f"s_add_u32 s65, s65, {WS_G}")
    A("s_mov_b64 exec, 0xffff")
    A(f"buffer_store_dwordx2 v[22:23], v21, s[{S_WS}:{S_WS+3}], s65 offen sc1")
    A("s_mov_b64 exec, -1")

LX, LW, L2D, LSA, LGD, LV = 16, 56, 60, 62, 63, 20
K_XO, K_WO, K_M0, K_C0, K_W2, K_M2, K_T0, K_T1 = 76, 77, 78, 79, 80, 81, 82, 83
def loader_setup(A):
    lw = Q_NH
    A(f"s_and_b32 s{K_XO}, s{S_J}, 3")
    A(f"s_and_b32 s{K_T0}, s{S_XCD}, 6")
    A(f"s_lshl_b32 s{K_T0}, s{K_T0}, 1")
    A(f"s_add_u32 s{K_XO}, s{K_XO}, s{K_T0}")
    A(f"s_lshl_b32 s{K_XO}, s{K_XO}, 1")
    A(f"s_add_u32 s{K_XO}, s{K_XO}, s{lw}")
    A(f"s_lshl_b32 s{K_XO}, s{K_XO}, 16")
    A(f"s_and_b32 s{K_T0}, s{S_XCD}, 1")
    A(f"s_mul_i32 s{K_WO}, s{K_T0}, 7")
    A(f"s_lshr_b32 s{K_T1}, s{S_J}, 2")
    A(f"s_add_u32 s{K_WO}, s{K_WO}, s{K_T1}")
    A(f"s_lshl_b32 s{K_WO}, s{K_WO}, 8")
    A(f"s_lshl_b32 s{K_W2}, s{K_T1}, 7")
    A(f"s_mul_i32 s{K_T1}, s{lw}, {32*2*F}")
    A(f"s_add_u32 s{K_WO}, s{K_WO}, s{K_T1}")
    A(f"s_lshl_b32 s{K_M0}, s{lw}, 13")
    A(f"s_mul_i32 s{K_T0}, s{K_T0}, {56*16384}")
    A(f"s_add_u32 s{K_W2}, s{K_W2}, s{K_T0}")
    A(f"s_mul_i32 s{K_T0}, s{lw}, {7*16384}")
    A(f"s_add_u32 s{K_W2}, s{K_W2}, s{K_T0}")
    A(f"s_mul_i32 s{K_M2}, s{lw}, {7*2048}")
    rot_c0(A, K_C0, K_T0)
    A("v_lshrrev_b32 v34, 3, v1")
    A("v_and_b32 v35, 7, v1")
    A("v_lshrrev_b32 v36, 4, v1")
    A("v_xor_b32 v37, v35, v36")
    A("v_xor_b32 v38, 4, v37")
    A("v_lshlrev_b32 v34, 10, v34")
    A(f"v_lshl_add_u32 v{LX}, v37, 4, v34")
    A(f"v_lshl_add_u32 v{LX+1}, v38, 4, v34")
    A(f"v_add_u32 v{LX+1}, {8192-1024}, v{LX+1}")
    A(f"v_add_u32 v{LX+2}, {2*(8192-1024)}, v{LX}")
    A(f"v_add_u32 v{LX+3}, {2*(8192-1024)}, v{LX+1}")
    A("v_and_b32 v37, 1, v36")
    A("v_lshlrev_b32 v37, 2, v37")
    A("v_xor_b32 v37, v35, v37")
    A(f"v_lshl_add_u32 v{L2D}, v37, 4, v34")
    A(f"v_add_u32 v{L2D+1}, {8192-1024}, v{L2D}")
    A("v_and_b32 v35, 15, v1")
    A("v_lshlrev_b32 v37, 2, v36")
    A("v_xor_b32 v35, v35, v37")
    A(f"v_mul_u32_u24 v37, {2*F}, v36")
    A(f"v_lshl_add_u32 v{LW}, v35, 4, v37")
    for i in range(1, 4):
        A(f"v_add_u32 v{LW+i}, {i*(4*2*F-1024)}, v{LW}")
    A(f"s_lshl_b32 s{K_T0}, s{lw}, 3")
    A(f"s_add_u32 s{K_T0}, s{K_T0}, {L_SL}")
    A(f"s_cmp_eq_u32 s{Q_C}, 1")
    A(f"s_cselect_b32 s{K_T0}, s{K_T0}, {L_DUMMY}")
    A(f"v_mov_b32 v{LSA}, s{K_T0}")
    A(f"v_subrev_u32 v{LGD}, {L_SB-L_GD}, v{S_FRD}")
def l_chunk(A, cc):
    slot = cc % 4
    A(f"s_add_u32 s{K_T0}, s{K_C0}, {cc}"); A(f"s_and_b32 s{K_T0}, s{K_T0}, 7")
    A(f"s_lshl_b32 s{K_T1}, s{K_T0}, 7"); A(f"s_add_u32 s{K_T1}, s{K_T1}, s{K_XO}")
    A(f"s_mul_i32 s{K_T0}, s{K_T0}, {64*2*F}"); A(f"s_add_u32 s{K_T0}, s{K_T0}, s{K_WO}")
    for q in range(2):
        A(f"s_add_u32 m0, s{K_M0}, {slot*32768+q*4096}")
        if q: A(f"s_add_u32 s{K_T1}, s{K_T1}, 32768")
        else: A("s_nop 0")
        for i in range(4):
            A(f"buffer_load_dwordx4 v{LX+i}, s[{S_X}:{S_X+3}], s{K_T1} offen offset:{i*1024} {O.XFL} lds")
        A(f"s_add_u32 m0, s{K_M0}, {slot*32768+16384+q*4096}")
        if q: A(f"s_add_u32 s{K_T0}, s{K_T0}, {16*2*F}")
        else: A("s_nop 0")
        for i in range(4):
            A(f"buffer_load_dwordx4 v{LW+i}, s[{S_W1}:{S_W1+3}], s{K_T0} offen offset:{i*1024} {O.W1FL} lds")
def l_pub(A, n, val):
    A(f"v_mov_b32 v{LV}, {val}"); A(f"v_mov_b32 v{LV+1}, {val}")
    A(f"s_waitcnt vmcnt({n})")
    A(f"ds_write_b64 v{LSA}, {vr(LV,2)}")
def loader(A, fin):
    A(f"s_cmp_ge_u32 s{S_J}, 28")
    A("s_cbranch_scc1 S_LW1")
    if O.LOOK == 3: l_chunk(A, 3)
    for c in range(4, 8):
        lwait(A, LGD, 0, 31, c - 3)
        l_chunk(A, c)
        if c > O.LOOK: l_pub(A, 16, c)
        if c == 7 and O.TOUCH:
            A(f"s_lshr_b32 s{K_T0}, s{K_XO}, 16")
            A(f"s_mul_i32 s{K_T0}, s{K_T0}, 224")
            A(f"s_and_b32 s{K_T1}, s{S_XCD}, 1")
            A(f"s_mul_i32 s{K_T1}, s{K_T1}, 56")
            A(f"s_add_u32 s{K_T0}, s{K_T0}, s{K_T1}")
            A(f"s_lshr_b32 s{K_T1}, s{S_J}, 2")
            A(f"s_lshl_b32 s{K_T1}, s{K_T1}, 3")
            A(f"s_add_u32 s{K_T0}, s{K_T0}, s{K_T1}")
            A(f"s_lshl_b32 s{K_T0}, s{K_T0}, 10")
            A(f"v_lshlrev_b32 v{LX}, 7, v1")
            A(f"s_add_u32 s{K_T1}, s{K_T0}, {112*1024}")
            A(f"buffer_load_dword v{LX+1}, v{LX}, s[{S_WS}:{S_WS+3}], s{K_T0} offen {O.TFL}")
            A(f"buffer_load_dword v{LX+2}, v{LX}, s[{S_WS}:{S_WS+3}], s{K_T1} offen {O.TFL}")
        if c == O.LFIN:
            A.label("S_LW1")
            fin()
            A(f"s_cmp_ge_u32 s{S_J}, 28")
            A("s_cbranch_scc1 S_LW2")
    A.label("S_LW2")
    for s in range(4):
        lwait(A, LGD, 0, 31, 5 + s)
        for k in range(7):
            A(f"s_add_u32 m0, s{K_M2}, {s*32768+4096+k*2048}")
            A(f"s_add_u32 s{K_T0}, s{K_W2}, {(14*s+k)*16384}")
            A(f"buffer_load_dwordx4 v{L2D}, s[{S_W2}:{S_W2+3}], s{K_T0} offen {O.W2FL} lds")
            A(f"buffer_load_dwordx4 v{L2D+1}, s[{S_W2}:{S_W2+3}], s{K_T0} offen offset:1024 {O.W2FL} lds")
        if s == 0: l_pub(A, 16 if O.TOUCH else 14, 8)

def s_tail(A):
    w = S_WAVE
    RT, CT, TT, DB = Q_EX, Q_EX + 1, Q_EX + 2, Q_EX + 3
    PK, AP, G, PP, T = 128, 136, 144, 148, 160
    SO_P, SO_PF, SO_A, SO_O = 76, 77, 78, 79
    A(f"s_lshl_b32 s80, s{Q_PAIR}, {FS}")
    A(f"s_lshl_b32 s{Q_T0}, s{w}, {8+FS}")
    A(f"s_add_u32 s80, s80, s{Q_T0}")
    A(f"s_add_u32 s80, s80, {F_A}")
    A(f"s_and_b32 s{RT}, s{S_XCD}, 6")
    A(f"s_lshl_b32 s{RT}, s{RT}, 1")
    A(f"s_and_b32 s{Q_T0}, s{S_J}, 3")
    A(f"s_add_u32 s{RT}, s{RT}, s{Q_T0}")
    A(f"s_lshl_b32 s{RT}, s{RT}, 1")
    A(f"s_and_b32 s{Q_T0}, s{S_XCD}, 1")
    A(f"s_add_u32 s{RT}, s{RT}, s{Q_T0}")
    A(f"s_lshr_b32 s{CT}, s{S_J}, 2")
    A(f"s_lshl_b32 s{TT}, s{RT}, 1")
    A(f"s_add_u32 s{TT}, s{TT}, s{Q_NH}")
    A(f"s_lshl_b32 s{DB}, s{CT}, 1")
    A(f"s_add_u32 s{DB}, s{DB}, s{Q_C}")
    A(f"s_bfe_u32 s{Q_T0}, s{RT}, 0x20002")
    A(f"s_lshl_b32 s{Q_T0}, s{Q_T0}, {8+FS}")
    A(f"s_lshl_b32 s{Q_T1}, s{DB}, {4+FS}")
    A(f"s_add_u32 s{Q_T0}, s{Q_T0}, s{Q_T1}")
    A(f"s_add_u32 s{Q_T0}, s{Q_T0}, {F_A}")
    A(f"v_lshl_add_u32 v2, v1, {FS}, s{Q_T0}")
    A(f"s_lshl_b32 s{Q_T0}, s{TT}, {1+FS}")
    A(f"s_add_u32 s{Q_T0}, s{Q_T0}, {F_G}")
    A("v_and_b32 v3, 1, v1")
    A(f"v_lshl_add_u32 v3, v3, {FS}, s{Q_T0}")
    A("v_cmp_gt_u32 vcc, 16, v1")
    A("v_and_b32 v10, 31, v1")
    A("v_lshrrev_b32 v11, 5, v1")
    A("v_cndmask_b32 v2, v3, v2, vcc")
    A("v_lshlrev_b32 v4, 14, v11")
    A("v_lshl_add_u32 v12, v10, 2, v4")
    A("v_add_u32 v13, 8192, v12")
    A(f"s_lshl_b32 s{Q_T0}, s{TT}, 8")
    A(f"s_add_u32 s{Q_T0}, s{Q_T0}, {WS_G}")
    A(f"v_lshl_add_u32 v14, v10, 3, s{Q_T0}")
    A(f"s_lshl_b32 s{SO_A}, s{DB}, 17")
    A(f"s_lshl_b32 s{Q_T1}, s{TT}, 7")
    A(f"s_add_u32 s{SO_A}, s{SO_A}, s{Q_T1}")
    A(f"s_add_u32 s{SO_A}, s{SO_A}, {WS_A}")
    A("v_lshlrev_b32 v16, 4, v1")
    A(f"s_lshl_b32 s{Q_T0}, s{w}, 12")
    A(f"s_add_u32 s{Q_T0}, s{Q_T0}, {L_T}")
    A(f"v_add_u32 v18, s{Q_T0}, v16")
    A(f"s_lshl_b32 s{Q_T0}, s{w}, 8")
    A(f"s_add_u32 s{Q_T0}, s{Q_T0}, {L_T+16384}")
    A(f"v_lshl_add_u32 v19, v1, 2, s{Q_T0}")
    A(f"s_lshl_b32 s{Q_T0}, s2, 2")
    A(f"s_add_u32 s{Q_T0}, s{Q_T0}, s{w}")
    A(f"s_lshl_b32 s{SO_P}, s{Q_T0}, 12")
    A(f"s_add_u32 s{SO_P}, s{SO_P}, {WS_P}")
    A(f"s_xor_b32 s{SO_O}, s{SO_P}, {4<<12}")
    A(f"s_lshl_b32 s{Q_T0}, s{Q_NH}, 15")
    A(f"s_lshl_b32 s{Q_T1}, s{Q_C}, 11")
    A(f"s_add_u32 s{Q_T0}, s{Q_T0}, s{Q_T1}")
    A(f"v_add_u32 v17, s{Q_T0}, v16")
    A(f"v_xor_b32 v15, {0x10000+2048}, v17")
    A(f"s_lshl_b32 s{Q_T0}, s{Q_NH}, 2")
    A(f"s_add_u32 s{Q_T0}, s{Q_T0}, {L_GD}")
    A("v_and_b32 v5, 1, v1")
    A(f"v_lshl_add_u32 v5, v5, 3, s{Q_T0}")
    for k in range(8): A(f"v_mov_b32 v{97+2*k}, v{STOK}")
    A("s_waitcnt vmcnt(0)")
    flag_store(A, 80, 8, STOK)
    tss(A, 5, "a"); tss(A, 2, "t")
    def ag():
        poll(A, 2, 9, STOK, "PA")
        for q in range(4):
            for i in range(2):
                A(f"buffer_load_dword v{AP+2*q+i}, v{12+i}, s[{S_WS}:{S_WS+3}], s{SO_A} offen sc1")
            if q < 3: A(f"s_add_u32 s{SO_A}, s{SO_A}, 32768")
        A(f"buffer_load_dwordx2 {vr(G,2)}, v14, s[{S_WS}:{S_WS+3}], 0 offen sc1")
    def ag2():
        for k in range(8):
            A(f"v_lshlrev_b32 v{T+2*k}, 16, v{AP+k}")
            A(f"v_and_b32 v{T+2*k+1}, 0xffff0000, v{AP+k}")
        for k in range(16):
            A(f"v_mul_f32 v{T+k}, v{G}, v{T+k}")
        A(f"ds_write_b32 v19, v{G+1}")
    if O.AFIRST:
        ag(); A("s_waitcnt vmcnt(0)"); ag2()
        tss(A, 3, "t")
    lwait(A, 5, 0, 31, 9, sleep=1)
    tss(A, 4 if O.AFIRST else 3, "t")
    for h in range(2):
        A(f"ds_read_b128 {vr(64+4*h,4)}, v17 offset:{1024*h}")
        A(f"ds_read_b128 {vr(72+4*h,4)}, v15 offset:{1024*h}")
    A(f"v_mov_b32 v{S_FT}, 50")
    for h in range(2):
        A(f"s_waitcnt lgkmcnt({2-2*h})")
        if h == 1: A(f"ds_write_b32 v{S_FOWN}, v{S_FT}")
        for k in range(4):
            r = 64 + 4 * h + k
            A(f"v_lshlrev_b32 v80, 16, v{r}")
            A(f"v_lshlrev_b32 v81, 16, v{r+8}")
            A(f"v_and_b32 v82, 0xffff0000, v{r}")
            A(f"v_and_b32 v83, 0xffff0000, v{r+8}")
            A("v_add_f32 v80, v80, v81")
            A("v_add_f32 v82, v82, v83")
            A(f"v_cvt_pk_bf16_f32 v{96+8*h+2*k}, v80, v82")
            if k % 2 == 1:
                q = 2 * h + k // 2
                A(f"buffer_store_dwordx4 {vr(96+4*q,4)}, v16, s[{S_WS}:{S_WS+3}], s{SO_P} offen offset:{1024*q} {O.PST}")
    if not O.AFIRST:
        ag()
        tss(A, 4, "t")
    A(f"s_mov_b32 s{S_SPIN}, {O.SPIN}")
    A.label("S_PL")
    for q in range(4):
        A(f"buffer_load_dwordx4 {vr(112+4*q,4)}, v16, s[{S_WS}:{S_WS+3}], s{SO_O} offen offset:{1024*q} sc1")
    if not O.AFIRST:
        A(f"s_cmp_eq_u32 s{S_SPIN}, {O.SPIN}")
        A("s_cbranch_scc0 S_PM")
        A("s_waitcnt vmcnt(4)")
        ag2()
        A.label("S_PM")
    A("s_waitcnt vmcnt(0)")
    for k in range(4):
        A(f"v_xor_b32 v{80+k}, v{STOK}, v{113+4*k}")
        A(f"v_xor_b32 v{84+k}, v{STOK}, v{115+4*k}")
    A("v_or3_b32 v80, v80, v81, v82")
    A("v_or3_b32 v83, v83, v84, v85")
    A("v_or3_b32 v80, v80, v86, v87")
    A("v_or_b32 v80, v80, v83")
    A("v_cmp_ne_u32 vcc, 0, v80")
    A("s_cbranch_vccz S_PD")
    A("s_sleep 1")
    A(f"s_sub_u32 s{S_SPIN}, s{S_SPIN}, 1")
    A("s_cbranch_scc0 S_PL")
    A.label("S_PD")
    tss(A, 5, "t")
    for q in range(4):
        for k in range(2):
            r = 112 + 4 * q + 2 * k
            A(f"v_lshlrev_b32 v{80+2*k}, 16, v{r}")
            A(f"v_and_b32 v{81+2*k}, 0xffff0000, v{r}")
        for k in range(4):
            A(f"v_fmac_f32 v{T+4*q+k}, v{G+1}, v{80+k}")
        A(f"ds_write_b128 v18, {vr(T+4*q,4)} offset:{q*1024}")
    sw_arrive(A, S_FOWN, S_FT, 100)
    A("s_waitcnt lgkmcnt(0)")

def diag(A, k, role):
    A("s_waitcnt vmcnt(0) lgkmcnt(0)")
    A(f"s_memtime s[{S_TS+12}:{S_TS+13}]")
    A("s_waitcnt lgkmcnt(0)")
    A(f"s_sub_u32 s64, s{S_TS+2*k}, s{S_TS+2}")
    A(f"s_cmp_ge_u32 s{S_J}, 28")
    A("s_cselect_b32 s64, 0, s64")
    A("v_mov_b32 v2, 128"); A("v_mov_b32 v3, s64")
    A("s_mov_b64 exec, 1")
    A(f"global_atomic_add v2, v3, s[{P_DBG}:{P_DBG+1}] sc1")
    for lab, first in (("DG0", True), ("DG1", False)):
        A("s_mov_b32 s66, 1000000")
        if first: A("s_mov_b32 s67, 3200")
        A.label(lab)
        A("s_memrealtime s[64:65]")
        A("s_waitcnt lgkmcnt(0)")
        A(f"s_sub_u32 s64, s64, s{S_TS}")
        A("s_cmp_ge_u32 s64, s67")
        A(f"s_cbranch_scc1 {lab}X")
        A("s_sub_u32 s66, s66, 1")
        A(f"s_cbranch_scc0 {lab}")
        A.label(lab + "X")
        if first:
            A("s_waitcnt vmcnt(0)")
            A(f"global_load_dword v3, v2, s[{P_DBG}:{P_DBG+1}] sc1")
            A("s_waitcnt vmcnt(0)")
            A("v_readfirstlane_b32 s67, v3")
            A("s_lshr_b32 s67, s67, 11")
            A("s_add_u32 s67, s67, 3500")
def fin(A, role):
    if O.DIAG is None: ts_dump(A, 0, S_W8)
    elif O.DIAG[0] == role: diag(A, O.DIAG[1], role)

KN = "gated_mix__ssm_conv_s4d__dense_activation_silu__prompt_kernel"
A = Asm()
A.raw("; @launch grid=(256,1,1) block=(512,1,1) lds=163840")
A.raw('.amdgcn_target "amdgcn-amd-amdhsa--gfx950"')
kernel_header(A, KN)
ts_real(A, 0); parts_ts(A, 1)
prologue(A, "K_END")
A(f"s_mov_b32 s{S_W8}, s{S_WAVE}")
A("v_and_b32 v2, 31, v1")
A("v_lshlrev_b32 v2, 2, v2")
A(f"v_add_u32 v2, {LF}, v2")
A("v_mov_b32 v3, 0")
A("ds_write_b32 v2, v3")
A(f"s_cmp_ge_u32 s{S_WAVE}, 4")
A("s_cbranch_scc1 K_SSM")
if O.GPRIO: A(f"s_setprio {O.GPRIO}")
A(f"s_cmp_ge_u32 s{S_J}, 28")
A("s_cbranch_scc1 K_IDLE")
g1_setup(A)
rot_c0(A, S_C0, S_T0)
A("s_waitcnt lgkmcnt(0)")
srd(A, S_X, P_U, L*D*2); srd(A, S_W1, P_W1, D*F*2)
vm = Vm(A); cid = {}
for x in g_chunk_dma(0): vm.op(x)
cid[0] = vm.n
A("s_barrier")
for x in g_chunk_dma(1): vm.op(x)
cid[1] = vm.n
srd(A, S_WS, P_WS, WS_BYTES); srd(A, S_OUT, P_OUT, L*D*2)
g1_setup2(A); g_flags_setup(A); g2_setup(A)
for x in g_chunk_dma(2): vm.op(x)
cid[2] = vm.n
if O.LOOK == 4 and O.L3 == "u":
    for x in g_chunk_dma(3): vm.op(x)
    cid[3] = vm.n
if O.GHOLD: lwait(A, GRD, 32, GT, 1, sleep=4)
g1_main(A, vm, cid)
tsg(A, 2, "ae")
g1_epi(A)
tsg(A, 3, "ae")
A.label("K_G2")
lwait(A, GRD, 48, GT, 12)
for i in range(O.PFD):
    for x in w2_read(i): A(x)
A(f"v_mov_b32 v{GX}, {L_HOK}")
A(f"s_cmp_eq_u32 s{S_WAVE}, 0")
A("s_cbranch_scc0 K_HW")
poll(A, FV, GT, VTOK, "PH", slp=O.HSLP)
A(f"ds_write_b32 v{GX}, v{VTOK+1}")
A("s_waitcnt lgkmcnt(1)")
A("s_branch K_HD")
A.label("K_HW")
lwait(A, GX, 0, GT, 1)
A.label("K_HD")
tsg(A, 4, "ae"); tsg(A, 1, "s")
g2_main(A)
A("s_waitcnt lgkmcnt(0)")
fin(A, "G")
A("s_endpgm")
A.label("K_IDLE")
if O.IPRIO != O.GPRIO: A(f"s_setprio {O.IPRIO}")
idle_tr_issue(A)
if O.CODEPF:
    A("s_getpc_b64 s[72:73]")
    A.label("K_PC")
    A(f"s_sub_u32 s72, s72, K_PC-{KN}")
    A("s_subb_u32 s73, s73, 0")
    A(f"v_lshl_add_u32 v20, s64, 5, v1")
    A("v_lshlrev_b32 v20, 7, v20")
    A(f"v_min_u32 v20, K_END-{KN}, v20")
    A("s_mov_b64 exec, 0xffffffff")
    A("global_load_dword v21, v20, s[72:73]")
    A("s_mov_b64 exec, -1")
A("s_waitcnt lgkmcnt(0)")
srd(A, S_X, P_U, L*D*2)
idle_tr_dma(A)
A("s_barrier")
srd(A, S_WS, P_WS, WS_BYTES); srd(A, S_OUT, P_OUT, L*D*2)
idle_tr_finish(A)
g_flags_setup(A); g2_setup(A)
tsg(A, 2, "ae")
token_get(A, GX, VTOK)
A(f"s_lshl_b32 s68, s{S_XCD}, 4")
A(f"s_add_u32 s68, s68, s64")
A(f"s_lshl_b32 s65, s68, {FS}")
A(f"s_add_u32 s65, s65, {F_UT}")
A("s_waitcnt vmcnt(0)")
flag_store(A, 65, GT, VTOK)
tsg(A, 3, "ae")
A(f"v_mov_b32 v{GT}, 8")
A(f"ds_write_b32 v{GOWN}, v{GT} offset:16")
if O.IPRIO != O.GPRIO: A(f"s_setprio {O.GPRIO}")
idle_gate_issue(A)
idle_gate_finish(A)
A(f"s_lshl_b32 s65, s68, {FS}")
A(f"s_add_u32 s65, s65, {F_G}")
A("s_waitcnt vmcnt(0)")
flag_store(A, 65, GT, VTOK)
A("s_branch K_G2")
A.label("K_SSM")
if O.SPRIO: A(f"s_setprio {O.SPRIO}")
A(f"s_sub_u32 s{S_WAVE}, s{S_WAVE}, 4")
s_setup(A)
carry_zero(A)
A("s_getreg_b32 s31, hwreg(HW_REG_XCC_ID)")
A(f"s_lshl_b32 s{Q_T0}, s{Q_PAIR}, 9")
A(f"s_lshl_b32 s{Q_T1}, s{S_WAVE}, 7")
A(f"s_add_u32 s{Q_T0}, s{Q_T0}, s{Q_T1}")
A(f"v_lshl_add_u32 v6, v1, 1, s{Q_T0}")
A(f"s_lshl_b32 s{Q_T0}, s{Q_PAIR}, 2")
A("s_waitcnt lgkmcnt(0)")
for i, p in enumerate((P_LA, P_AI, P_CR, P_CI)):
    A(f"global_load_ushort v{2+i}, v6, s[{p}:{p+1}]")
A(f"s_load_dword s{Q_LDT}, s[{P_LDT}:{P_LDT+1}], s{Q_T0}")
A(f"s_load_dword s{Q_DSK}, s[{P_DSK}:{P_DSK+1}], s{Q_T0}")
A(f"s_add_u32 s28, s{P_WS}, {F_EP}")
A(f"s_addc_u32 s29, s{P_WS+1}, 0")
A(f"s_cmp_eq_u32 s{S_WAVE}, 1")
A("s_cbranch_scc0 S_NT")
A("s_load_dword s30, s[28:29], 0")
A.label("S_NT")
A("s_barrier")
def pre():
    srd(A, S_X, P_U, L*D*2); srd(A, S_W1, P_W1, D*F*2); srd(A, S_W2, P_W2, D*F*2)
    srd(A, S_WS, P_WS, WS_BYTES)
    loader_setup(A)
def tokpub():
    tss(A, 2, "ak")
    A(f"s_cmp_eq_u32 s{S_WAVE}, 1")
    A("s_cbranch_scc0 S_NP")
    A("s_mul_i32 s30, s30, 0x9e3779a1")
    A("s_add_u32 s30, s30, 0x7f4a7c10")
    A("s_and_b32 s30, s30, -16")
    A("s_and_b32 s31, s31, 15")
    A("s_or_b32 s31, s31, s30")
    A(f"v_mov_b32 v{STOK}, s30")
    A(f"v_mov_b32 v{STOK+1}, 1")
    A(f"v_mov_b32 v34, {L_RDY}")
    A(f"ds_write_b64 v34, {vr(STOK,2)}")
    A(f"v_mov_b32 v35, s31")
    A(f"s_lshl_b32 s28, s2, {FS}")
    A(f"s_add_u32 s28, s28, {F_HERE}")
    flag_store(A, 28, 36, 35)
    A.label("S_NP")
kgen(A, later=0, hookA=tokpub, pre=pre, hook=lambda: tss(A, 3, "k"))
tss(A, 4, "k")
kgen_exchange_write(A)
A("s_waitcnt lgkmcnt(0)")
sw_arrive(A, S_FOWN, S_FT, 1)
def kfin():
    sw_wait(A, S_FRD, S_FT, 1, sleep=1)
    kgen_final(A)
    token_get(A, 8, STOK)
tss(A, 3, "a")
A(f"s_cmp_eq_u32 s{Q_C}, 1")
A("s_cbranch_scc1 S_LD")
kfin()
tss(A, 5, "k")
A(f"s_cmp_eq_u32 s{S_WAVE}, 1")
A("s_cbranch_scc1 S_VD")
A(f"s_lshl_b32 s{Q_T0}, s{S_XCD}, {4+FS}")
A(f"s_add_u32 s{Q_T0}, s{Q_T0}, {F_UT}")
A("v_and_b32 v8, 15, v1")
A(f"v_lshl_add_u32 v8, v8, {FS}, s{Q_T0}")
poll(A, 8, 9, STOK, "PU")
ut2(A)
A("s_branch S_CV")
A.label("S_VD")
if O.VERD:
    A(f"s_and_b32 s{Q_T0}, s2, 31")
    A(f"s_lshl_b32 s{Q_T0}, s{Q_T0}, {FS}")
    A(f"s_add_u32 s{Q_T0}, s{Q_T0}, {F_HERE}")
    A("v_and_b32 v8, 7, v1")
    A(f"v_lshl_add_u32 v8, v8, {5+FS}, s{Q_T0}")
    poll(A, 8, 9, STOK, "PV", mask=True)
    A("v_cmp_ne_u32 vcc, s31, v9")
    A("s_cmp_eq_u64 vcc, 0")
    A(f"s_cselect_b32 s{Q_T0}, 1, 2")
    A(f"v_mov_b32 v9, s{Q_T0}")
    A(f"v_mov_b32 v8, {L_VERD}")
    A("ds_write_b32 v8, v9")
A("s_cmp_eq_u32 s2, 0")
A("s_cbranch_scc0 S_CV")
for i in range(4):
    A(f"v_lshlrev_b32 v8, {FS}, v1")
    A(f"v_add_u32 v8, {F_HERE+(64<<FS)*i}, v8")
    poll(A, 8, 9, STOK, "PE", mask=True)
A(f"s_mov_b32 s{Q_T0}, {F_EP}")
flag_store(A, Q_T0, 8, STOK)
A("s_branch S_CV")
A.label("S_LD")
loader(A, kfin)
A.label("S_CV")
conv_setup(A)
A(f"v_mov_b32 v{LV}, 12"); A(f"v_mov_b32 v{LV+1}, 12")
s_barrier(A, 2)
tss(A, 4, "a")
if O.CPRIO != O.SPRIO: A(f"s_setprio {O.CPRIO}")
conv(A, inj=(O.PUBM, ["s_waitcnt vmcnt(0)", f"ds_write_b64 v{LSA}, {vr(LV,2)}"]))
if O.CPRIO != O.TPRIO: A(f"s_setprio {O.TPRIO}")
s_barrier(A, 3)
conv_final(A, "sc1")
s_tail(A)
fin(A, "S")
A.label("K_END")
A("s_endpgm")
kernel_desc(A, KN, 256)
open(sys.argv[1], "w").write(A.text())
```

```python
import sys; sys.path.insert(0, "gen")
import parts
from parts import *
import ssm
from ssm import *

class Opt: pass
O = Opt()
O.TS = False
O.ROT = (0, 0, 2, 1)
O.SPRIO = 3; O.CPRIO = 0; O.GPRIO = 1; O.TPRIO = 3
O.CODEPF = True
O.SPIN = 100000
O.SLP = 4; O.HSLP = 1
O.TSC = None; O.TSG = "a"; O.TSS = "a"
O.ARR = 1
O.DEPTH = 14
O.PUBM = 12
O.SLOW = False
O.DIAG = None
O.HFS = 8
O.HLD = "sc1"; O.HST = "sc1"; O.GHOLD = False; O.VERD = False; O.NA = 4; O.PFD = 2; O.NOPK = True; O.KG2 = True; O.KLO = "pk"; O.KHI = "sc"; O.LFIN = 7; O.TOUCH = False; O.PST = "sc1"; O.AFIRST = False; O.XFL = ""; O.W1FL = ""; O.W2FL = ""; O.TFL = "nt"; O.UFL = ""; O.PDLY = 0; O.LOOK = 4; O.PFL = 99; O.L3 = "i"; O.IPRIO = 3; O.TAILK = 0
O.X2 = ""
O.W2S = None
O.W2P = ((), (), (), ()); O.PFL2 = ""; O.UOWN = False
O.LA = 1; O.RSP = (2, 4, 6); O.PPOS = 0
O.DSL = (6, 7, 8, 10, 11, 12, 14, 15)
O.PAW = 2
for a in sys.argv[2:]: exec("O." + a)
parts.TS = O.TS
ssm.KG2 = O.KG2; ssm.KLO = O.KLO; ssm.KHI = O.KHI
parts.gflag_setup = lambda A: None

LF = LDS_SSM + 31744
L_GL, L_GD, L_SB, L_SL, L_RDY, L_HOK, L_VERD = LF, LF + 16, LF + 32, LF + 48, LF + 64, LF + 72, LF + 76
L_DUMMY = LF + 128
ssm.LDS_SFLAG = L_SB
FS = 8
F_HERE, F_UT, F_G, F_A, F_H, F_P, F_EP = [WS_FLAG + (x << FS) for x in (0, 256, 384, 512, 1536, 2560, 3584)]
assert F_EP + 256 <= (13 << 20)
WS_P = 16 << 20
WS_BYTES = 20 << 20
STOK = 32
S_W8, S_SPIN, S_HF = 27, 85, 32

parts_ts = ts
def tsg(A, i, mode="a"):
    if O.TSC: return
    if O.TSG in mode: parts_ts(A, i)
def tss(A, i, mode="a"):
    if O.TSS in mode: parts_ts(A, i)

class Vm:
    def __init__(self, A): self.A = A; self.n = 0; self.done = 0
    def op(self, s):
        self.A(s)
        if s.startswith("buffer_") or s.startswith("global_"): self.n += 1
        return self.n
    def cnt(self, idn):
        k = min(self.n - idn, 63); self.done = max(self.done, self.n - k); return k
    def wait(self, idn, extra=""):
        if idn <= self.done:
            if extra: self.A(f"s_waitcnt {extra}")
            return
        self.A(f"s_waitcnt vmcnt({self.cnt(idn)}) {extra}")

def poll(A, vaddr, vt, tok, name, slp=None, mask=False):
    l = A.newlabel(name); d = A.newlabel(name)
    A(f"s_mov_b32 s{S_SPIN}, {O.SPIN}")
    A.label(l)
    A(f"buffer_load_dword v{vt}, v{vaddr}, s[{S_WS}:{S_WS+3}], 0 offen sc1")
    A("s_waitcnt vmcnt(0)")
    if mask:
        A(f"v_and_b32 v{vt+1}, -16, v{vt}")
        A(f"v_cmp_ne_u32 vcc, v{tok}, v{vt+1}")
    else:
        A(f"v_cmp_ne_u32 vcc, v{tok}, v{vt}")
    A(f"s_cbranch_vccz {d}")
    A(f"s_sleep {O.SLP if slp is None else slp}")
    A(f"s_sub_u32 s{S_SPIN}, s{S_SPIN}, 1")
    A(f"s_cbranch_scc0 {l}")
    A.label(d)

def lwait(A, vaddr, off, vt, val, issued=False, sleep=1):
    lab = A.newlabel("LW"); done = A.newlabel("LWD")
    if not issued: A(f"ds_read_b32 v{vt}, v{vaddr} offset:{off}")
    A("s_waitcnt lgkmcnt(0)")
    A(f"v_cmp_gt_u32 vcc, {val}, v{vt}")
    A(f"s_cbranch_vccz {done}")
    A.label(lab)
    if sleep: A(f"s_sleep {sleep}")
    A(f"ds_read_b32 v{vt}, v{vaddr} offset:{off}")
    A("s_waitcnt lgkmcnt(0)")
    A(f"v_cmp_gt_u32 vcc, {val}, v{vt}")
    A(f"s_cbranch_vccnz {lab}")
    A.label(done)

def token_get(A, va, tok):
    l = A.newlabel("RW"); d = A.newlabel("RW")
    A(f"v_mov_b32 v{va}, {L_RDY}")
    A.label(l)
    A(f"ds_read_b64 {vr(tok,2)}, v{va}")
    A("s_waitcnt lgkmcnt(0)")
    A(f"v_cmp_ne_u32 vcc, 1, v{tok+1}")
    A(f"s_cbranch_vccz {d}")
    A("s_sleep 1")
    A(f"s_branch {l}")
    A.label(d)

def flag_store(A, soff, va, vt, fl="sc1"):
    A(f"v_mov_b32 v{va}, 0")
    A("s_mov_b64 exec, 1")
    A(f"buffer_store_dword v{vt}, v{va}, s[{S_WS}:{S_WS+3}], s{soff} offen {fl}")
    A("s_mov_b64 exec, -1")

def rot_c0(A, dst, t0):
    a, b, c, d = O.ROT
    A(f"s_mov_b32 s{dst}, 0")
    if a: A(f"s_and_b32 s{t0}, s{S_J}, 3"); A(f"s_mul_i32 s{dst}, s{t0}, {a}")
    if b: A(f"s_lshr_b32 s{t0}, s{S_J}, 2"); A(f"s_mul_i32 s{t0}, s{t0}, {b}"); A(f"s_add_u32 s{dst}, s{dst}, s{t0}")
    if c: A(f"s_lshr_b32 s{t0}, s{S_XCD}, 1"); A(f"s_mul_i32 s{t0}, s{t0}, {c}"); A(f"s_add_u32 s{dst}, s{dst}, s{t0}")
    if d: A(f"s_and_b32 s{t0}, s{S_XCD}, 1"); A(f"s_mul_i32 s{t0}, s{t0}, {d}"); A(f"s_add_u32 s{dst}, s{dst}, s{t0}")

GOWN, GRD, GT, HV, AR, RW, FV, VTOK, GX = 50, 51, 52, 54, 56, 58, 59, 60, 62
ACCA, ACCB, AF, PK, HR0 = 64, 96, 128, 168, 184
OV, RX, TV = 55, 63, 49
S_OO, S_PO, S_P1, S_PF = 76, 77, 78, 79
L_T = LDS_SSM
STMP = 160
S_HL, S_HR, S_C0 = 80, 81, 84

def g_flags_setup(A):
    A(f"s_lshl_b32 s{S_T0}, s{S_WAVE}, 2")
    A(f"s_add_u32 s{S_T0}, s{S_T0}, {LF}")
    A(f"v_mov_b32 v{GOWN}, s{S_T0}")
    A(f"v_and_b32 v{GRD}, 3, v1")
    A(f"v_lshlrev_b32 v{GRD}, 2, v{GRD}")
    A(f"v_add_u32 v{GRD}, {LF}, v{GRD}")

def g2_setup(A):
    w = S_WAVE; T = 30
    A(f"s_and_b32 s{S_T0}, s{S_XCD}, 6")
    A(f"s_lshl_b32 s{S_T0}, s{S_T0}, 1")
    A(f"s_and_b32 s{S_T1}, s{S_J}, 3")
    A(f"s_add_u32 s{S_T0}, s{S_T0}, s{S_T1}")
    A(f"s_and_b32 s{S_T1}, s{S_XCD}, 1")
    A(f"s_lshl_b32 s{S_HF}, s{S_T0}, 1")
    A(f"s_add_u32 s{S_HF}, s{S_HF}, s{S_T1}")
    A(f"s_lshl_b32 s{S_HF}, s{S_HF}, {5+O.HFS}")
    A(f"s_add_u32 s{S_HF}, s{S_HF}, {F_H}")
    A(f"v_min_u32 v{T}, 27, v1")
    A(f"v_lshl_add_u32 v{FV}, v{T}, {O.HFS}, s{S_HF}")
    A(f"s_lshl_b32 s{S_T0}, s{S_T0}, 2")
    A(f"s_and_b32 s{S_HR}, s{w}, 1")
    A(f"s_add_u32 s{S_T0}, s{S_T0}, s{S_HR}")
    A(f"s_lshl_b32 s{S_OO}, s{S_T1}, 1")
    A(f"s_add_u32 s{S_OO}, s{S_OO}, s{S_T0}")
    A(f"s_xor_b32 s{S_HL}, s{S_OO}, 2")
    A(f"s_mul_i32 s{S_HL}, s{S_HL}, 112")
    A(f"s_mul_i32 s{S_HR}, s{S_OO}, 112")
    A(f"s_lshl_b32 s{S_T1}, s{S_T1}, 1")
    A(f"s_lshr_b32 s{S_T0}, s{w}, 1")
    A(f"s_add_u32 s{S_T1}, s{S_T1}, s{S_T0}")
    A(f"s_mul_i32 s{S_T1}, s{S_T1}, 28")
    A(f"s_add_u32 s{S_HL}, s{S_HL}, s{S_T1}")
    A(f"s_add_u32 s{S_HR}, s{S_HR}, s{S_T1}")
    A(f"s_lshl_b32 s{S_HL}, s{S_HL}, 10")
    A(f"s_lshl_b32 s{S_HR}, s{S_HR}, 10")
    A(f"s_lshl_b32 s{S_OO}, s{S_OO}, 15")
    A(f"s_lshr_b32 s{S_T1}, s{S_J}, 2")
    A(f"s_lshl_b32 s{S_T1}, s{S_T1}, 1")
    A(f"s_add_u32 s{S_T1}, s{S_T1}, s{S_T0}")
    A(f"s_lshl_b32 s{S_T1}, s{S_T1}, 6")
    A(f"s_add_u32 s{S_OO}, s{S_OO}, s{S_T1}")
    A(f"v_lshlrev_b32 v{HV}, 4, v1")
    A(f"s_lshl_b32 s{S_T1}, s{w}, 15")
    A(f"v_add_u32 v{RW}, s{S_T1}, v{HV}")
    A(f"v_xor_b32 v{RX}, 0x10000, v{RW}")
    A(f"s_lshl_b32 s{S_T1}, s{w}, 12")
    A(f"s_add_u32 s{S_T1}, s{S_T1}, {L_T}")
    A(f"v_add_u32 v{TV}, s{S_T1}, v{HV}")
    A(f"v_lshrrev_b32 v{T+1}, 5, v1")
    A(f"v_and_b32 v{T}, 31, v1")
    A(f"v_lshlrev_b32 v{T}, 10, v{T}")
    A(f"v_lshl_add_u32 v{OV}, v{T+1}, 4, v{T}")
    A(f"v_bfe_u32 v{T+2}, v1, 2, 2")
    A(f"v_bfe_u32 v{T+3}, v1, 4, 1")
    A(f"v_bfe_u32 v{T+4}, v1, 1, 1")
    A(f"v_lshl_add_u32 v{T+3}, v{T+3}, 1, v{T+4}")
    A(f"v_bfe_u32 v{T+4}, v1, 3, 1")
    A(f"v_xor_b32 v{T+4}, s{S_T0}, v{T+4}")
    A(f"v_lshl_add_u32 v{T+3}, v{T+4}, 2, v{T+3}")
    A(f"v_lshl_add_u32 v{T+2}, v{T+1}, 2, v{T+2}")
    A(f"v_lshlrev_b32 v{T+2}, 7, v{T+2}")
    A(f"v_lshl_add_u32 v{T+2}, v{T+3}, 4, v{T+2}")
    A(f"v_and_b32 v{T+4}, 1, v1")
    A(f"v_lshl_add_u32 v{T+2}, v{T+4}, 3, v{T+2}")
    A(f"s_lshl_b32 s{S_T0}, s{S_T0}, 16")
    A(f"v_add_u32 v{AR}, s{S_T0}, v{T+2}")
    A(f"v_xor_b32 v{AR+1}, 64, v{AR}")

def w2_read(i):
    k = i % 28; dst = AF + 8 * (i % O.NA)
    o = (k // 14) * 32768 + 4096 + (k % 14) * 2048
    return [f"ds_read_b64_tr_b16 {vr(dst+4*a+2*x,2)}, v{AR+a} offset:{o+x*1024}" for a in range(2) for x in range(2)]
def h_load(i):
    base, k = (S_HL, i) if i < 28 else (S_HR, i - 28)
    pre = [f"s_add_u32 s{S_T0}, s{base}, {k*1024}"] if k % 4 == 0 else []
    return pre + [f"buffer_load_dwordx4 {vr(HR0+4*(i%O.DEPTH),4)}, v{HV}, s[{S_WS}:{S_WS+3}], s{S_T0} offen offset:{(k%4)*1024} {O.HLD}"]

def g_chunk_dma(cc):
    slot = cc % 4
    out = [f"s_add_u32 s{S_HO}, s{S_C0}, {cc}", f"s_and_b32 s{S_HO}, s{S_HO}, 7",
           f"s_lshl_b32 s{S_T1}, s{S_HO}, 7", f"s_add_u32 m0, s{S_M0X}, {slot*32768}", f"s_add_u32 s{S_T1}, s{S_T1}, s{S_XO}"]
    for i in range(4):
        out.append(f"buffer_load_dwordx4 v{G1_XD+i}, s[{S_X}:{S_X+3}], s{S_T1} offen offset:{i*1024} {O.XFL} lds")
    out += [f"s_mul_i32 s{S_T1}, s{S_HO}, {64*2*F}", f"s_add_u32 m0, s{S_M0X}, {slot*32768+16384}", f"s_add_u32 s{S_T1}, s{S_T1}, s{S_WO}"]
    for i in range(4):
        out.append(f"buffer_load_dwordx4 v{G1_WD+i}, s[{S_W1}:{S_W1+3}], s{S_T1} offen offset:{i*1024} {O.W1FL} lds")
    return out

def g1_main(A, vm, cid):
    vm.wait(cid[0])
    A(f"v_mov_b32 v{GT}, 1"); A(f"ds_write_b32 v{GOWN}, v{GT}")
    lwait(A, GRD, 0, GT + 1, 1, sleep=0)
    for r in g1_reads(0): A(r)
    for c in range(8):
        if O.TSC and c in O.TSC: parts_ts(A, 2 + O.TSC.index(c))
        off = 0 if c + 1 < O.LOOK else 48
        own = 4 <= c + 3 < O.LOOK
        units = [u for u in split_groups(g_chunk_dma(c + 3), 8)] if own else []
        slots = O.DSL
        for s in range(4):
            t = 4 * c + s
            mf = g1_mfmas(t)
            pre = []
            if s == 3:
                if c < 7: lwait(A, GRD, off, GT + 1, c + 2, issued=True, sleep=0)
                else: A("s_waitcnt lgkmcnt(0)")
                pre = [f"v_mov_b32 v{GT}, {c+1}", f"ds_write_b32 v{GOWN}, v{GT} offset:16"]
            elif s == O.ARR and c + 1 < O.LOOK:
                vm.wait(cid[c + 1], "lgkmcnt(0)")
                pre = [f"v_mov_b32 v{GT}, {c+2}", f"ds_write_b32 v{GOWN}, v{GT}"]
            else: A("s_waitcnt lgkmcnt(0)")
            if own and s == 1: lwait(A, GRD, 16, GX, c, issued=True, sleep=0)
            rd = g1_reads(t + 1) if t < 31 else []
            post = [f"ds_read_b32 v{GT+1}, v{GRD} offset:{off}"] if (s == 2 and c < 7) else []
            if own and s == 0: post.append(f"ds_read_b32 v{GX}, v{GRD} offset:16")
            def dm(g):
                if own:
                    for _ in range(slots.count(4 * s + g)):
                        for x in units.pop(0): vm.op(x)
                    if not units: cid[c + 3] = vm.n if c + 3 not in cid else cid[c + 3]
            A(mf[0])
            for x in rd[:3]: A(x)
            dm(0)
            A(mf[1])
            for x in rd[3:]: A(x)
            dm(1)
            A(mf[2])
            for x in pre + post: A(x)
            if c == 0 and O.LOOK >= 4 and O.L3 == "i":
                for x in split_groups(g_chunk_dma(3), 4)[s]: vm.op(x)
                cid[3] = vm.n
            dm(2)
            A(mf[3])
            dm(3)
        assert not units

def g1_fr(lst, t, ns):
    import re
    o = G1_FR + (t % 2) * 16; n = G1_FR + (t % ns) * 16
    def f(m):
        a, b = int(m.group(1)), int(m.group(2))
        if o <= a < o + 16: return f"v[{a-o+n}:{b-o+n}]"
        return m.group(0)
    return [re.sub(r"v\[(\d+):(\d+)\]", f, x) for x in lst]

def lchk(A, vaddr, off, vt, val):
    lab = A.newlabel("LW"); done = A.newlabel("LWD")
    A(f"v_cmp_gt_u32 vcc, {val}, v{vt}")
    A(f"s_cbranch_vccz {done}")
    A.label(lab)
    A(f"ds_read_b32 v{vt}, v{vaddr} offset:{off}")
    A("s_waitcnt lgkmcnt(0)")
    A(f"v_cmp_gt_u32 vcc, {val}, v{vt}")
    A(f"s_cbranch_vccnz {lab}")
    A.label(done)

def g1_main2(A, vm, cid):
    LA = O.LA; NS = LA + 1
    lg = Lg(A); rid = {}
    vm.wait(cid[0])
    A(f"v_mov_b32 v{GT}, 1"); A(f"ds_write_b32 v{GOWN}, v{GT}")
    lwait(A, GRD, 0, GT + 1, 1, sleep=0)
    for t in range(LA):
        for r in g1_fr(g1_reads(t), t, NS): rid[t] = lg.op(r)
    sc = 4 - LA
    for c in range(8):
        if O.TSC and c in O.TSC: parts_ts(A, 2 + O.TSC.index(c))
        off = 0 if c + 1 < O.LOOK else 48
        own = 4 <= c + 3 < O.LOOK
        units = [u for u in split_groups(g_chunk_dma(c + 3), 8)] if own else []
        for s in range(4):
            t = 4 * c + s
            mf = g1_fr(g1_mfmas(t), t, NS)
            need = rid[t]
            if s == sc and c < 7: need = max(need, pid)
            if own and s == 1: need = max(need, did)
            first = []; pre = []
            if s == O.ARR and c + 1 < O.LOOK:
                vm.wait(cid[c + 1])
                first += [f"ds_write_b32 v{GOWN}, v{GT}"]
                A(f"v_mov_b32 v{GT}, {c+2}")
            lg.wait(need)
            if s == sc and c < 7: lchk(A, GRD, off, GT + 1, c + 2)
            if own and s == 1: lchk(A, GRD, 16, GX, c)
            if s == 3: pre = [f"v_mov_b32 v{GT}, {c+1}", f"ds_write_b32 v{GOWN}, v{GT} offset:16"]
            rd = g1_fr(g1_reads(t + LA), t + LA, NS) if t + LA < 32 else []
            def dm(g):
                if own:
                    for _ in range(O.DSL.count(4 * s + g)):
                        for x in units.pop(0): vm.op(x)
                    if not units and c + 3 not in cid: cid[c + 3] = vm.n
            def em(x):
                if x.startswith("ds_"): return lg.op(x)
                A(x)
            sp = O.RSP
            A(mf[0])
            for x in first + pre: em(x)
            if s == sc - 1 and c < 7 and O.PPOS == 0: pid = lg.op(f"ds_read_b32 v{GT+1}, v{GRD} offset:{off}")
            if own and s == 0: did = lg.op(f"ds_read_b32 v{GX}, v{GRD} offset:16")
            for x in rd[:sp[0]]: rid[t + LA] = lg.op(x)
            dm(0)
            A(mf[1])
            for x in rd[sp[0]:sp[1]]: rid[t + LA] = lg.op(x)
            dm(1)
            A(mf[2])
            if s == sc - 1 and c < 7 and O.PPOS == 2: pid = lg.op(f"ds_read_b32 v{GT+1}, v{GRD} offset:{off}")
            for x in rd[sp[1]:sp[2]]: rid[t + LA] = lg.op(x)
            if c == 0 and O.LOOK >= 4 and O.L3 == "i":
                for x in split_groups(g_chunk_dma(3), 4)[s]: vm.op(x)
                cid[3] = vm.n
            dm(2)
            A(mf[3])
            for x in rd[sp[2]:]: rid[t + LA] = lg.op(x)
            dm(3)
        assert not units

def silu_np(A, regs, tmp):
    n = len(regs)
    for i, (s, d) in enumerate(regs):
        for e in range(2): A(f"v_mul_f32 v{tmp+2*i+e}, s{S_CL}, v{s+e}")
    for i in range(2 * n): A(f"v_exp_f32 v{tmp+i}, v{tmp+i}")
    for i in range(2 * n): A(f"v_add_f32 v{tmp+i}, 1.0, v{tmp+i}")
    for i in range(2 * n): A(f"v_rcp_f32 v{tmp+i}, v{tmp+i}")
    for i, (s, d) in enumerate(regs):
        for e in range(2): A(f"v_mul_f32 v{tmp+2*i+e}, v{tmp+2*i+e}, v{s+e}")
    for i, (s, d) in enumerate(regs):
        A(f"v_cvt_pk_bf16_f32 v{d}, v{tmp+2*i}, v{tmp+2*i+1}")

def split_groups(lst, n):
    units = []; cur = []
    for x in lst:
        cur.append(x)
        if x.startswith("buffer_"): units.append(cur); cur = []
    g = [[] for _ in range(n)]
    for i, u in enumerate(units): g[i * n // len(units)] += u
    return g

def g1_epi(A):
    w = S_WAVE
    if O.VERD:
        A(f"v_mov_b32 v{GX}, {L_RDY}")
        A(f"ds_read_b32 v{GT}, v{GX} offset:{L_VERD-L_RDY}")
    A(f"s_lshl_b32 s{S_HO}, s{S_RB}, 2")
    A(f"s_and_b32 s{S_T0}, s{w}, 2")
    A(f"s_add_u32 s{S_HO}, s{S_HO}, s{S_T0}")
    A(f"s_mul_i32 s{S_T1}, s{S_T0}, 7")
    A(f"s_mul_i32 s{S_HO}, s{S_HO}, 112")
    A(f"s_lshl_b32 s{S_T0}, s{S_CB}, 3")
    A(f"s_add_u32 s{S_HO}, s{S_HO}, s{S_T0}")
    A(f"s_and_b32 s{S_T0}, s{w}, 1")
    A(f"s_add_u32 s{S_T1}, s{S_T1}, s{S_T0}")
    A(f"s_lshl_b32 s{S_T0}, s{S_T0}, 2")
    A(f"s_add_u32 s{S_HO}, s{S_HO}, s{S_T0}")
    A(f"s_lshr_b32 s{S_T0}, s{S_J}, 2")
    A(f"s_lshl_b32 s{S_T0}, s{S_T0}, 1")
    A(f"s_add_u32 s{S_T1}, s{S_T1}, s{S_T0}")
    A(f"s_lshl_b32 s{S_T1}, s{S_T1}, {O.HFS}")
    A(f"s_add_u32 s{S_HF}, s{S_HF}, s{S_T1}")
    A(f"s_lshl_b32 s{S_HO}, s{S_HO}, 10")
    A(f"s_add_u32 s{S_XO}, s{S_HO}, {112*1024}")
    st = []
    p = 0
    for a in range(2):
        for b in range(2):
            acc = G1_ACC + (2*a+b)*16
            for fh in range(2):
                dst = G1_FR + p * 4
                (silu_np if O.NOPK else silu_pairs)(A, [(acc + 8*fh + 2*i, dst + i) for i in range(4)], STMP)
                so = S_HO if b == 0 else S_XO
                st.append(f"buffer_store_dwordx4 {vr(dst,4)}, v{HV}, s[{S_WS}:{S_WS+3}], s{so} offen offset:{(2*a+fh)*1024}")
                A(st[-1] + " " + O.HST)
                p += 1
    tsg(A, 5, "e")
    if not O.VERD:
        token_get(A, GX, VTOK)
        A("s_waitcnt vmcnt(0)")
        flag_store(A, S_HF, GT, VTOK, O.HST)
        return
    lwait(A, GX, L_VERD - L_RDY, GT, 1, issued=True)
    A(f"ds_read_b64 {vr(VTOK,2)}, v{GX}")
    A(f"v_cmp_eq_u32 vcc, {1 if not O.SLOW else 7}, v{GT}")
    A("s_waitcnt vmcnt(0) lgkmcnt(0)")
    A("s_cbranch_vccz G_SLOW")
    flag_store(A, S_HF, GT, VTOK, O.HST)
    A("s_branch G_FD")
    A.label("G_SLOW")
    for x in st: A(x + " sc1")
    A("s_waitcnt vmcnt(0)")
    flag_store(A, S_HF, GT, VTOK)
    A.label("G_FD")

def g2_main(A):
    vm = Vm(A); lg = Lg(A)
    hid = {}; wid = {}
    assert HR0 + 4 * O.DEPTH <= 256 and AF + 8 * O.NA <= PK
    for i in range(O.DEPTH):
        for x in h_load(i): vm.op(x)
        hid[i] = vm.n
    for i in range(O.PFD): wid[i] = 0
    send = []
    for t in range(2):
        for hf in range(2):
            send += [f"v_cvt_pk_bf16_f32 v{PK+8*t+4*hf+k}, v{ACCA+16*t+8*hf+2*k}, v{ACCA+16*t+8*hf+2*k+1}" for k in range(4)]
            send.append(f"ds_write_b128 v{RW}, {vr(PK+8*t+4*hf,4)} offset:{2048*t+1024*hf}")
    send += [f"v_mov_b32 v{GT+1}, 9", f"ds_write_b32 v{GOWN}, v{GT+1} offset:16"]
    if O.TS and O.TSG == "a" and not O.TSC: send.append(f"s_memtime s[{S_TS+10}:{S_TS+11}]")
    st = (1, 14, 28, 42)
    for i in range(56):
        if O.TS and O.TSG == "s" and i in st: parts_ts(A, 2 + st.index(i))
        k = min(lg.n - wid[i], 15)
        need_l = wid[i] > lg.done
        if need_l: lg.done = lg.n - k
        vm.wait(hid[i], f"lgkmcnt({k})" if need_l else "")
        fr = AF + 8 * (i % O.NA); hr = HR0 + 4 * (i % O.DEPTH)
        acc0 = ACCA if i < 28 else ACCB
        g = [[], []]
        if i + O.PFD < 56:
            rd = w2_read(i + O.PFD); g[0] += rd[:2]; g[1] += rd[2:]
        nl = i - 1 + O.DEPTH
        if i >= 1 and nl < 56: g[0] += h_load(nl)
        if i >= 29:
            for gi in range(2):
                for _ in range(3):
                    if send: g[gi].append(send.pop(0))
        for m, t in enumerate((1, 0)):
            acc = acc0 + 16 * t
            c = "0" if i % 28 == 0 else vr(acc, 16)
            A(f"v_mfma_f32_32x32x16_bf16 {vr(acc,16)}, {vr(fr+4*t,4)}, {vr(hr,4)}, {c}" if "m" not in O.X2 else "s_nop 0")
            if i == 29 and m == 0: A("s_nop 1")
            for x in g[m]:
                if x.startswith("ds_"): lg.op(x)
                else:
                    vm.op(x)
                    if x.startswith("buffer_load"): hid[nl] = vm.n
        if i + O.PFD < 56: wid[i + O.PFD] = lg.n
    T, R, GM = 2, 18, 34
    A(f"ds_read_b32 v{GT+1}, v{GRD} offset:32")
    A(f"v_mov_b32 v{GT}, 10")
    A(f"v_xor_b32 v{GX}, 8, v{GOWN}")
    A(f"s_lshl_b32 s{S_T0}, s{S_WAVE}, 8")
    A(f"s_add_u32 s{S_T0}, s{S_T0}, {L_T+16384}")
    A(f"v_lshl_add_u32 v{GM+1}, v1, 2, s{S_T0}")
    lwait(A, GRD, 32, GT + 1, 50, issued=True)
    A("s_nop 1")
    for q in range(4):
        A(f"ds_write_b128 v{RW}, {vr(ACCB+16+4*q,4)} offset:{q*1024}")
    A(f"ds_write_b32 v{GOWN}, v{GT} offset:16")
    lwait(A, GOWN, 32, GT + 1, 100)
    A(f"ds_read_b32 v{GM}, v{GM+1}")
    for q in range(4):
        A(f"ds_read_b128 {vr(T+4*q,4)}, v{TV} offset:{q*1024}")
    lwait(A, GX, 16, GT + 1, 10, sleep=0)
    for q in range(4):
        A(f"ds_read_b128 {vr(R+4*q,4)}, v{RX} offset:{q*1024}")
    for k in range(8):
        A(f"v_pk_fma_f32 {vr(T+2*k,2)}, {vr(ACCB+2*k,2)}, {vr(GM,2)}, {vr(T+2*k,2)} op_sel:[0,0,0] op_sel_hi:[1,0,1]")
    for q in range(4):
        A(f"s_waitcnt lgkmcnt({3-q})")
        for k in (2*q, 2*q+1):
            A(f"v_pk_fma_f32 {vr(T+2*k,2)}, {vr(R+2*k,2)}, {vr(GM,2)}, {vr(T+2*k,2)} op_sel:[0,0,0] op_sel_hi:[1,0,1]")
    for k in range(8):
        A(f"v_cvt_pk_bf16_f32 v{PK+k}, v{T+2*k}, v{T+2*k+1}")
    A("s_nop 1")
    for h in range(2):
        A(f"v_permlane32_swap_b32 v{PK+4*h}, v{PK+4*h+2}")
        A(f"v_permlane32_swap_b32 v{PK+4*h+1}, v{PK+4*h+3}")
    A("s_nop 1")
    for h in range(2):
        A(f"buffer_store_dwordx4 {vr(PK+4*h,4)}, v{OV}, s[{S_OUT}:{S_OUT+3}], s{S_OO} offen offset:{32*h}")

def idle_tr_issue(A):
    A("v_lshrrev_b32 v8, 3, v1")
    A("v_and_b32 v9, 7, v1")
    A("v_lshlrev_b32 v10, 10, v8")
    A("v_lshl_add_u32 v10, v9, 4, v10")
    A(f"s_sub_u32 s64, s{S_J}, 28")
    A(f"s_lshl_b32 s64, s64, 2")
    A(f"s_add_u32 s64, s64, s{S_WAVE}")
    if O.UOWN:
        A(f"s_and_b32 s33, s64, 1")
        A(f"s_lshl_b32 s{S_T1}, s{S_XCD}, 1")
        A(f"s_add_u32 s33, s33, s{S_T1}")
        A(f"s_lshr_b32 s34, s64, 1")
    else:
        A(f"s_mov_b32 s33, s64")
        A(f"s_mov_b32 s34, s{S_XCD}")
    A(f"s_lshl_b32 s65, s33, 17")
    A(f"s_lshl_b32 s{S_T1}, s34, 7")
    A(f"s_add_u32 s65, s65, s{S_T1}")
    A(f"s_lshl_b32 s66, s{S_WAVE}, 15")
def idle_tr_dma(A):
    for i in range(16):
        A(f"s_add_u32 m0, s66, {i*1024}")
        A(f"s_add_u32 s{S_T1}, s65, {i*8192}")
        A(f"buffer_load_dwordx4 v10, s[{S_X}:{S_X+3}], s{S_T1} offen {O.UFL} lds")
def w2_touch(A, qs, dst):
    for q in qs:
        A(f"s_lshr_b32 s{S_T1}, s{S_XCD}, 1")
        A(f"s_add_u32 s{S_T1}, s{S_T1}, {q}")
        A(f"s_and_b32 s{S_T1}, s{S_T1}, 3")
        A(f"s_and_b32 s{S_T0}, s{S_XCD}, 1")
        A(f"s_lshl_b32 s{S_T0}, s{S_T0}, 2")
        A(f"s_add_u32 s{S_T1}, s{S_T1}, s{S_T0}")
        A(f"s_mul_i32 s{S_T1}, s{S_T1}, 229376")
        for i in range(2):
            A(f"buffer_load_dword v{dst}, v{24+i}, s[{S_W2}:{S_W2+3}], s{S_T1} offen {O.PFL2}")
def w2_touch_setup(A):
    A("s_mul_i32 s67, s64, 112")
    A("v_add_u32 v24, s67, v1")
    A("v_min_u32 v25, 47, v1")
    A("v_add3_u32 v25, v25, s67, 64")
    A("v_lshlrev_b32 v24, 7, v24")
    A("v_lshlrev_b32 v25, 7, v25")
def idle_tr_finish(A, extra=0):
    R = 128
    A("v_lshrrev_b32 v11, 4, v1")
    A("v_bfe_u32 v12, v1, 2, 2")
    A("v_lshl_add_u32 v12, v11, 3, v12")
    A("v_lshlrev_b32 v12, 7, v12")
    A("v_and_b32 v13, 3, v1")
    A("v_lshl_add_u32 v12, v13, 3, v12")
    A(f"v_add_u32 v12, s66, v12")
    A("v_bfe_u32 v13, v1, 1, 3")
    A("v_lshlrev_b32 v13, 13, v13")
    A("v_and_b32 v14, 1, v1")
    A("v_lshl_add_u32 v13, v14, 6, v13")
    A("v_lshl_add_u32 v16, v11, 4, v13")
    A(f"s_lshl_b32 s67, s34, 18")
    A(f"s_lshl_b32 s{S_T1}, s33, 9")
    A(f"s_add_u32 s67, s67, s{S_T1}")
    A(f"s_add_u32 s67, s67, {WS_UT}")
    for p in range(4):
        Rk = R + 16 * p
        A(f"s_waitcnt vmcnt({12+extra})")
        for a in range(4):
            for x in range(2):
                A(f"ds_read_b64_tr_b16 {vr(Rk+4*a+2*x,2)}, v12 offset:{p*4096+x*512+a*32}")
        for a in range(4):
            A(f"s_waitcnt lgkmcnt({6-2*a})")
            A(f"s_add_u32 s{S_T1}, s67, {a*65536}")
            A(f"buffer_store_dwordx4 {vr(Rk+4*a,4)}, v16, s[{S_WS}:{S_WS+3}], s{S_T1} offen offset:{p*128} sc1")
def ut2(A):
    R = 128
    A(f"s_lshl_b32 s{Q_T0}, s{Q_PAIR}, 13")
    A(f"s_add_u32 s{Q_T0}, s{Q_T0}, {WS_UT}")
    A(f"s_add_u32 s{Q_T1}, s{Q_T0}, 4096")
    A("v_lshlrev_b32 v16, 4, v1")
    for i in range(8):
        A(f"buffer_load_dwordx4 {vr(R+4*i,4)}, v16, s[{S_WS}:{S_WS+3}], s{Q_T0+i//4} offen offset:{(i%4)*1024} sc1")
    A("v_bfe_u32 v16, v1, 2, 1")
    A(f"v_mul_u32_u24 v16, {U_STRIDE}, v16")
    A("v_lshrrev_b32 v17, 3, v1")
    A("v_lshl_add_u32 v16, v17, 6, v16")
    A("v_and_b32 v17, 3, v1")
    A("v_lshl_add_u32 v16, v17, 4, v16")
    A(f"v_add_u32 v16, {LDS_U+64}, v16")
    for i in range(8):
        A(f"s_waitcnt vmcnt({7-i})")
        A(f"ds_write_b128 v16, {vr(R+4*i,4)} offset:{i*512}")
def idle_gate_issue(A):
    R = 64
    A(f"global_load_dwordx4 {vr(44,4)}, v{HV}, s[{P_GW}:{P_GW+1}]")
    A(f"s_lshl_b32 s68, s{S_XCD}, 4")
    A(f"s_add_u32 s68, s68, s64")
    A(f"s_lshl_b32 s65, s68, 14")
    for i in range(16):
        if i % 4 == 0: A(f"s_add_u32 s{S_T1}, s65, {i*1024}")
        A(f"buffer_load_dwordx4 {vr(R+4*i,4)}, v{HV}, s[{S_X}:{S_X+3}], s{S_T1} offen offset:{(i%4)*1024}")
def idle_gate_finish(A, extra=0):
    R = 64; S = 2
    A(f"s_waitcnt vmcnt({extra})")
    for k in range(4):
        for i in range(16):
            c = "0" if k == 0 else f"v{S+i}"
            A(f"v_dot2_f32_bf16 v{S+i}, v{R+4*i+k}, v{44+k}, {c}")
    for sh in ("row_shr:1", "row_shr:2", "row_shr:4", "row_shr:8"):
        for i in range(16):
            A(f"v_add_f32_dpp v{S+i}, v{S+i}, v{S+i} {sh} row_mask:0xf bank_mask:0xf bound_ctrl:1")
    for sh in ("row_bcast:15 row_mask:0xa", "row_bcast:31 row_mask:0xc"):
        for i in range(16):
            A(f"v_add_f32_dpp v{S+i}, v{S+i}, v{S+i} {sh} bank_mask:0xf")
    A("v_mov_b32 v20, 0")
    for h in range(2):
        for i in range(8): A(f"v_readlane_b32 s{38+i}, v{S+8*h+i}, 63")
        A("s_nop 3")
        for i in range(8): A(f"v_writelane_b32 v20, s{38+i}, {8*h+i}")
    A("v_cvt_pk_bf16_f32 v20, v20, v20")
    A("v_lshlrev_b32 v20, 16, v20")
    A("v_mul_f32 v20, 0xbfb8aa3b, v20")
    A("v_exp_f32 v20, v20")
    A("s_nop 0")
    A("v_add_f32 v20, 1.0, v20")
    A("v_rcp_f32 v20, v20")
    A("s_nop 0")
    A("v_cvt_pk_bf16_f32 v22, v20, v20")
    A("v_lshlrev_b32 v22, 16, v22")
    A("v_sub_f32 v23, 1.0, v22")
    A("v_cvt_pk_bf16_f32 v23, v23, v23")
    A("v_lshlrev_b32 v23, 16, v23")
    A("v_lshlrev_b32 v21, 3, v1")
    A(f"s_lshl_b32 s65, s68, 7")
    A(f"s_add_u32 s65, s65, {WS_G}")
    A("s_mov_b64 exec, 0xffff")
    A(f"buffer_store_dwordx2 v[22:23], v21, s[{S_WS}:{S_WS+3}], s65 offen sc1")
    A("s_mov_b64 exec, -1")

LX, LW, L2D, LSA, LGD, LV = 16, 56, 60, 62, 63, 20
K_XO, K_WO, K_M0, K_C0, K_W2, K_M2, K_T0, K_T1 = 76, 77, 78, 79, 80, 81, 82, 83
def loader_setup(A):
    lw = Q_NH
    A(f"s_and_b32 s{K_XO}, s{S_J}, 3")
    A(f"s_and_b32 s{K_T0}, s{S_XCD}, 6")
    A(f"s_lshl_b32 s{K_T0}, s{K_T0}, 1")
    A(f"s_add_u32 s{K_XO}, s{K_XO}, s{K_T0}")
    A(f"s_lshl_b32 s{K_XO}, s{K_XO}, 1")
    A(f"s_add_u32 s{K_XO}, s{K_XO}, s{lw}")
    A(f"s_lshl_b32 s{K_XO}, s{K_XO}, 16")
    A(f"s_and_b32 s{K_T0}, s{S_XCD}, 1")
    A(f"s_mul_i32 s{K_WO}, s{K_T0}, 7")
    A(f"s_lshr_b32 s{K_T1}, s{S_J}, 2")
    A(f"s_add_u32 s{K_WO}, s{K_WO}, s{K_T1}")
    A(f"s_lshl_b32 s{K_WO}, s{K_WO}, 8")
    A(f"s_lshl_b32 s{K_W2}, s{K_T1}, 7")
    A(f"s_mul_i32 s{K_T1}, s{lw}, {32*2*F}")
    A(f"s_add_u32 s{K_WO}, s{K_WO}, s{K_T1}")
    A(f"s_lshl_b32 s{K_M0}, s{lw}, 13")
    A(f"s_mul_i32 s{K_T0}, s{K_T0}, {56*16384}")
    A(f"s_add_u32 s{K_W2}, s{K_W2}, s{K_T0}")
    A(f"s_mul_i32 s{K_T0}, s{lw}, {7*16384}")
    A(f"s_add_u32 s{K_W2}, s{K_W2}, s{K_T0}")
    A(f"s_mul_i32 s{K_M2}, s{lw}, {7*2048}")
    rot_c0(A, K_C0, K_T0)
    A("v_lshrrev_b32 v34, 3, v1")
    A("v_and_b32 v35, 7, v1")
    A("v_lshrrev_b32 v36, 4, v1")
    A("v_xor_b32 v37, v35, v36")
    A("v_xor_b32 v38, 4, v37")
    A("v_lshlrev_b32 v34, 10, v34")
    A(f"v_lshl_add_u32 v{LX}, v37, 4, v34")
    A(f"v_lshl_add_u32 v{LX+1}, v38, 4, v34")
    A(f"v_add_u32 v{LX+1}, {8192-1024}, v{LX+1}")
    A(f"v_add_u32 v{LX+2}, {2*(8192-1024)}, v{LX}")
    A(f"v_add_u32 v{LX+3}, {2*(8192-1024)}, v{LX+1}")
    A("v_and_b32 v37, 1, v36")
    A("v_lshlrev_b32 v37, 2, v37")
    A("v_xor_b32 v37, v35, v37")
    A(f"v_lshl_add_u32 v{L2D}, v37, 4, v34")
    A(f"v_add_u32 v{L2D+1}, {8192-1024}, v{L2D}")
    A("v_and_b32 v35, 15, v1")
    A("v_lshlrev_b32 v37, 2, v36")
    A("v_xor_b32 v35, v35, v37")
    A(f"v_mul_u32_u24 v37, {2*F}, v36")
    A(f"v_lshl_add_u32 v{LW}, v35, 4, v37")
    for i in range(1, 4):
        A(f"v_add_u32 v{LW+i}, {i*(4*2*F-1024)}, v{LW}")
    A(f"s_lshl_b32 s{K_T0}, s{lw}, 3")
    A(f"s_add_u32 s{K_T0}, s{K_T0}, {L_SL}")
    A(f"s_cmp_eq_u32 s{Q_C}, 1")
    A(f"s_cselect_b32 s{K_T0}, s{K_T0}, {L_DUMMY}")
    A(f"v_mov_b32 v{LSA}, s{K_T0}")
    A(f"v_subrev_u32 v{LGD}, {L_SB-L_GD}, v{S_FRD}")
def l_chunk(A, cc):
    slot = cc % 4
    if "d" in O.X2: return
    A(f"s_add_u32 s{K_T0}, s{K_C0}, {cc}"); A(f"s_and_b32 s{K_T0}, s{K_T0}, 7")
    A(f"s_lshl_b32 s{K_T1}, s{K_T0}, 7"); A(f"s_add_u32 s{K_T1}, s{K_T1}, s{K_XO}")
    A(f"s_mul_i32 s{K_T0}, s{K_T0}, {64*2*F}"); A(f"s_add_u32 s{K_T0}, s{K_T0}, s{K_WO}")
    for q in range(2):
        A(f"s_add_u32 m0, s{K_M0}, {slot*32768+q*4096}")
        if q: A(f"s_add_u32 s{K_T1}, s{K_T1}, 32768")
        else: A("s_nop 0")
        for i in range(4):
            if "x" in O.X2: continue
            A(f"buffer_load_dwordx4 v{LX+i}, s[{S_X}:{S_X+3}], s{K_T1} offen offset:{i*1024} {O.XFL} lds")
        A(f"s_add_u32 m0, s{K_M0}, {slot*32768+16384+q*4096}")
        if q: A(f"s_add_u32 s{K_T0}, s{K_T0}, {16*2*F}")
        else: A("s_nop 0")
        for i in range(4):
            if "w" in O.X2: continue
            A(f"buffer_load_dwordx4 v{LW+i}, s[{S_W1}:{S_W1+3}], s{K_T0} offen offset:{i*1024} {O.W1FL} lds")
def l_pub(A, n, val):
    A(f"v_mov_b32 v{LV}, {val}"); A(f"v_mov_b32 v{LV+1}, {val}")
    A(f"s_waitcnt vmcnt({n})")
    A(f"ds_write_b64 v{LSA}, {vr(LV,2)}")
def loader(A, fin):
    A(f"s_cmp_ge_u32 s{S_J}, 28")
    A("s_cbranch_scc1 S_LW1")
    if O.LOOK == 3: l_chunk(A, 3)
    if O.LOOK == 8:
        A.label("S_LW1")
        fin()
    for c in range(max(4, O.LOOK), 8):
        lwait(A, LGD, 0, 31, c - 3)
        l_chunk(A, c)
        if c > O.LOOK: l_pub(A, 0 if "d" in O.X2 else 8 if ("x" in O.X2 or "w" in O.X2) else 16, c)
        if c == 7 and O.TOUCH:
            A(f"s_lshr_b32 s{K_T0}, s{K_XO}, 16")
            A(f"s_mul_i32 s{K_T0}, s{K_T0}, 224")
            A(f"s_and_b32 s{K_T1}, s{S_XCD}, 1")
            A(f"s_mul_i32 s{K_T1}, s{K_T1}, 56")
            A(f"s_add_u32 s{K_T0}, s{K_T0}, s{K_T1}")
            A(f"s_lshr_b32 s{K_T1}, s{S_J}, 2")
            A(f"s_lshl_b32 s{K_T1}, s{K_T1}, 3")
            A(f"s_add_u32 s{K_T0}, s{K_T0}, s{K_T1}")
            A(f"s_lshl_b32 s{K_T0}, s{K_T0}, 10")
            A(f"v_lshlrev_b32 v{LX}, 7, v1")
            A(f"s_add_u32 s{K_T1}, s{K_T0}, {112*1024}")
            A(f"buffer_load_dword v{LX+1}, v{LX}, s[{S_WS}:{S_WS+3}], s{K_T0} offen {O.TFL}")
            A(f"buffer_load_dword v{LX+2}, v{LX}, s[{S_WS}:{S_WS+3}], s{K_T1} offen {O.TFL}")
        if c == O.LFIN:
            A.label("S_LW1")
            fin()
            A(f"s_cmp_ge_u32 s{S_J}, 28")
            A("s_cbranch_scc1 S_LW2")
    A.label("S_LW2")
    if "v" in O.X2: l_pub(A, 0, 8)
    for s in range(4):
        lwait(A, LGD, 0, 31, 5 + s if "v" not in O.X2 else 8)
        if s == 0 and "v" in O.X2: pass
        for k in range(7):
            A(f"s_add_u32 m0, s{K_M2}, {s*32768+4096+k*2048}")
            A(f"s_add_u32 s{K_T0}, s{K_W2}, {(14*s+k)*16384}")
            A(f"buffer_load_dwordx4 v{L2D}, s[{S_W2}:{S_W2+3}], s{K_T0} offen {O.W2FL} lds")
            A(f"buffer_load_dwordx4 v{L2D+1}, s[{S_W2}:{S_W2+3}], s{K_T0} offen offset:1024 {O.W2FL} lds")
        if s == 0: l_pub(A, 16 if O.TOUCH else 14, 8)

def s_tail(A):
    w = S_WAVE
    RT, CT, TT, DB = Q_EX, Q_EX + 1, Q_EX + 2, Q_EX + 3
    PK, AP, G, PP, T = 128, 136, 144, 148, 160
    SO_P, SO_PF, SO_A, SO_O = 76, 77, 78, 79
    A(f"s_lshl_b32 s80, s{Q_PAIR}, {FS}")
    A(f"s_lshl_b32 s{Q_T0}, s{w}, {8+FS}")
    A(f"s_add_u32 s80, s80, s{Q_T0}")
    A(f"s_add_u32 s80, s80, {F_A}")
    A(f"s_and_b32 s{RT}, s{S_XCD}, 6")
    A(f"s_lshl_b32 s{RT}, s{RT}, 1")
    A(f"s_and_b32 s{Q_T0}, s{S_J}, 3")
    A(f"s_add_u32 s{RT}, s{RT}, s{Q_T0}")
    A(f"s_lshl_b32 s{RT}, s{RT}, 1")
    A(f"s_and_b32 s{Q_T0}, s{S_XCD}, 1")
    A(f"s_add_u32 s{RT}, s{RT}, s{Q_T0}")
    A(f"s_lshr_b32 s{CT}, s{S_J}, 2")
    A(f"s_lshl_b32 s{TT}, s{RT}, 1")
    A(f"s_add_u32 s{TT}, s{TT}, s{Q_NH}")
    A(f"s_lshl_b32 s{DB}, s{CT}, 1")
    A(f"s_add_u32 s{DB}, s{DB}, s{Q_C}")
    A(f"s_bfe_u32 s{Q_T0}, s{RT}, 0x20002")
    A(f"s_lshl_b32 s{Q_T0}, s{Q_T0}, {8+FS}")
    A(f"s_lshl_b32 s{Q_T1}, s{DB}, {4+FS}")
    A(f"s_add_u32 s{Q_T0}, s{Q_T0}, s{Q_T1}")
    A(f"s_add_u32 s{Q_T0}, s{Q_T0}, {F_A}")
    A(f"v_lshl_add_u32 v2, v1, {FS}, s{Q_T0}")
    A(f"s_lshl_b32 s{Q_T0}, s{TT}, {1+FS}")
    A(f"s_add_u32 s{Q_T0}, s{Q_T0}, {F_G}")
    A("v_and_b32 v3, 1, v1")
    A(f"v_lshl_add_u32 v3, v3, {FS}, s{Q_T0}")
    A("v_cmp_gt_u32 vcc, 16, v1")
    A("v_and_b32 v10, 31, v1")
    A("v_lshrrev_b32 v11, 5, v1")
    A("v_cndmask_b32 v2, v3, v2, vcc")
    A("v_lshlrev_b32 v4, 14, v11")
    A("v_lshl_add_u32 v12, v10, 2, v4")
    A("v_add_u32 v13, 8192, v12")
    A(f"s_lshl_b32 s{Q_T0}, s{TT}, 8")
    A(f"s_add_u32 s{Q_T0}, s{Q_T0}, {WS_G}")
    A(f"v_lshl_add_u32 v14, v10, 3, s{Q_T0}")
    A(f"s_lshl_b32 s{SO_A}, s{DB}, 17")
    A(f"s_lshl_b32 s{Q_T1}, s{TT}, 7")
    A(f"s_add_u32 s{SO_A}, s{SO_A}, s{Q_T1}")
    A(f"s_add_u32 s{SO_A}, s{SO_A}, {WS_A}")
    A("v_lshlrev_b32 v16, 4, v1")
    A(f"s_lshl_b32 s{Q_T0}, s{w}, 12")
    A(f"s_add_u32 s{Q_T0}, s{Q_T0}, {L_T}")
    A(f"v_add_u32 v18, s{Q_T0}, v16")
    A(f"s_lshl_b32 s{Q_T0}, s{w}, 8")
    A(f"s_add_u32 s{Q_T0}, s{Q_T0}, {L_T+16384}")
    A(f"v_lshl_add_u32 v19, v1, 2, s{Q_T0}")
    A(f"s_lshl_b32 s{Q_T0}, s2, 2")
    A(f"s_add_u32 s{Q_T0}, s{Q_T0}, s{w}")
    A(f"s_lshl_b32 s{SO_P}, s{Q_T0}, 12")
    A(f"s_add_u32 s{SO_P}, s{SO_P}, {WS_P}")
    A(f"s_xor_b32 s{SO_O}, s{SO_P}, {4<<12}")
    A(f"s_lshl_b32 s{Q_T0}, s{Q_NH}, 15")
    A(f"s_lshl_b32 s{Q_T1}, s{Q_C}, 11")
    A(f"s_add_u32 s{Q_T0}, s{Q_T0}, s{Q_T1}")
    A(f"v_add_u32 v17, s{Q_T0}, v16")
    A(f"v_xor_b32 v15, {0x10000+2048}, v17")
    A(f"s_lshl_b32 s{Q_T0}, s{Q_NH}, 2")
    A(f"s_add_u32 s{Q_T0}, s{Q_T0}, {L_GD}")
    A("v_and_b32 v5, 1, v1")
    A(f"v_lshl_add_u32 v5, v5, 3, s{Q_T0}")
    for k in range(8): A(f"v_mov_b32 v{97+2*k}, v{STOK}")
    A("s_waitcnt vmcnt(0)")
    flag_store(A, 80, 8, STOK)
    tss(A, 5, "a"); tss(A, 2, "t")
    def ag():
        poll(A, 2, 9, STOK, "PA")
        for q in range(4):
            for i in range(2):
                A(f"buffer_load_dword v{AP+2*q+i}, v{12+i}, s[{S_WS}:{S_WS+3}], s{SO_A} offen sc1")
            if q < 3: A(f"s_add_u32 s{SO_A}, s{SO_A}, 32768")
        A(f"buffer_load_dwordx2 {vr(G,2)}, v14, s[{S_WS}:{S_WS+3}], 0 offen sc1")
    def ag2():
        for k in range(8):
            A(f"v_lshlrev_b32 v{T+2*k}, 16, v{AP+k}")
            A(f"v_and_b32 v{T+2*k+1}, 0xffff0000, v{AP+k}")
        for k in range(16):
            A(f"v_mul_f32 v{T+k}, v{G}, v{T+k}")
        A(f"ds_write_b32 v19, v{G+1}")
    if O.AFIRST:
        ag(); A("s_waitcnt vmcnt(0)"); ag2()
        tss(A, 3, "t")
    lwait(A, 5, 0, 31, 9, sleep=1)
    tss(A, 4 if O.AFIRST else 3, "t")
    for h in range(2):
        A(f"ds_read_b128 {vr(64+4*h,4)}, v17 offset:{1024*h}")
        A(f"ds_read_b128 {vr(72+4*h,4)}, v15 offset:{1024*h}")
    A(f"v_mov_b32 v{S_FT}, 50")
    for h in range(2):
        A(f"s_waitcnt lgkmcnt({2-2*h})")
        if h == 1: A(f"ds_write_b32 v{S_FOWN}, v{S_FT}")
        for k in range(4):
            r = 64 + 4 * h + k
            A(f"v_lshlrev_b32 v80, 16, v{r}")
            A(f"v_lshlrev_b32 v81, 16, v{r+8}")
            A(f"v_and_b32 v82, 0xffff0000, v{r}")
            A(f"v_and_b32 v83, 0xffff0000, v{r+8}")
            A("v_add_f32 v80, v80, v81")
            A("v_add_f32 v82, v82, v83")
            A(f"v_cvt_pk_bf16_f32 v{96+8*h+2*k}, v80, v82")
            if k % 2 == 1:
                q = 2 * h + k // 2
                A(f"buffer_store_dwordx4 {vr(96+4*q,4)}, v16, s[{S_WS}:{S_WS+3}], s{SO_P} offen offset:{1024*q} {O.PST}")
    if not O.AFIRST:
        ag()
        tss(A, 4, "t")
    A(f"s_mov_b32 s{S_SPIN}, {O.SPIN}")
    A.label("S_PL")
    for q in range(4):
        A(f"buffer_load_dwordx4 {vr(112+4*q,4)}, v16, s[{S_WS}:{S_WS+3}], s{SO_O} offen offset:{1024*q} sc1")
    if not O.AFIRST:
        A(f"s_cmp_eq_u32 s{S_SPIN}, {O.SPIN}")
        A("s_cbranch_scc0 S_PM")
        A("s_waitcnt vmcnt(4)")
        ag2()
        A.label("S_PM")
    A("s_waitcnt vmcnt(0)")
    for k in range(4):
        A(f"v_xor_b32 v{80+k}, v{STOK}, v{113+4*k}")
        A(f"v_xor_b32 v{84+k}, v{STOK}, v{115+4*k}")
    A("v_or3_b32 v80, v80, v81, v82")
    A("v_or3_b32 v83, v83, v84, v85")
    A("v_or3_b32 v80, v80, v86, v87")
    A("v_or_b32 v80, v80, v83")
    A("v_cmp_ne_u32 vcc, 0, v80")
    A("s_cbranch_vccz S_PD")
    A("s_sleep 1")
    A(f"s_sub_u32 s{S_SPIN}, s{S_SPIN}, 1")
    A("s_cbranch_scc0 S_PL")
    A.label("S_PD")
    tss(A, 5, "t")
    for q in range(4):
        for k in range(2):
            r = 112 + 4 * q + 2 * k
            A(f"v_lshlrev_b32 v{80+2*k}, 16, v{r}")
            A(f"v_and_b32 v{81+2*k}, 0xffff0000, v{r}")
        for k in range(4):
            A(f"v_fmac_f32 v{T+4*q+k}, v{G+1}, v{80+k}")
        A(f"ds_write_b128 v18, {vr(T+4*q,4)} offset:{q*1024}")
    sw_arrive(A, S_FOWN, S_FT, 100)
    A("s_waitcnt lgkmcnt(0)")

def diag(A, k, role):
    A("s_waitcnt vmcnt(0) lgkmcnt(0)")
    A(f"s_memtime s[{S_TS+12}:{S_TS+13}]")
    A("s_waitcnt lgkmcnt(0)")
    A(f"s_sub_u32 s64, s{S_TS+2*k}, s{S_TS+2}")
    A(f"s_cmp_ge_u32 s{S_J}, 28")
    A("s_cselect_b32 s64, 0, s64")
    A("v_mov_b32 v2, 128"); A("v_mov_b32 v3, s64")
    A("s_mov_b64 exec, 1")
    A(f"global_atomic_add v2, v3, s[{P_DBG}:{P_DBG+1}] sc1")
    for lab, first in (("DG0", True), ("DG1", False)):
        A("s_mov_b32 s66, 1000000")
        if first: A("s_mov_b32 s67, 3200")
        A.label(lab)
        A("s_memrealtime s[64:65]")
        A("s_waitcnt lgkmcnt(0)")
        A(f"s_sub_u32 s64, s64, s{S_TS}")
        A("s_cmp_ge_u32 s64, s67")
        A(f"s_cbranch_scc1 {lab}X")
        A("s_sub_u32 s66, s66, 1")
        A(f"s_cbranch_scc0 {lab}")
        A.label(lab + "X")
        if first:
            A("s_waitcnt vmcnt(0)")
            A(f"global_load_dword v3, v2, s[{P_DBG}:{P_DBG+1}] sc1")
            A("s_waitcnt vmcnt(0)")
            A("v_readfirstlane_b32 s67, v3")
            A("s_lshr_b32 s67, s67, 11")
            A("s_add_u32 s67, s67, 3500")
def fin(A, role):
    if O.DIAG is None: ts_dump(A, 0, S_W8)
    elif O.DIAG[0] == role: diag(A, O.DIAG[1], role)

KN = "gated_mix__ssm_conv_s4d__dense_activation_silu__prompt_kernel"
A = Asm()
A.raw("; @launch grid=(256,1,1) block=(512,1,1) lds=163840")
A.raw('.amdgcn_target "amdgcn-amd-amdhsa--gfx950"')
kernel_header(A, KN)
ts_real(A, 0); parts_ts(A, 1)
prologue(A, "K_END")
A(f"s_mov_b32 s{S_W8}, s{S_WAVE}")
A("v_and_b32 v2, 31, v1")
A("v_lshlrev_b32 v2, 2, v2")
A(f"v_add_u32 v2, {LF}, v2")
A("v_mov_b32 v3, 0")
A("ds_write_b32 v2, v3")
A(f"s_cmp_ge_u32 s{S_WAVE}, 4")
A("s_cbranch_scc1 K_SSM")
if O.GPRIO: A(f"s_setprio {O.GPRIO}")
A(f"s_cmp_ge_u32 s{S_J}, 28")
A("s_cbranch_scc1 K_IDLE")
g1_setup(A)
rot_c0(A, S_C0, S_T0)
A("s_waitcnt lgkmcnt(0)")
srd(A, S_X, P_U, L*D*2); srd(A, S_W1, P_W1, D*F*2)
vm = Vm(A); cid = {}
for x in g_chunk_dma(0): vm.op(x)
cid[0] = vm.n
A("s_barrier")
for x in g_chunk_dma(1): vm.op(x)
cid[1] = vm.n
srd(A, S_WS, P_WS, WS_BYTES); srd(A, S_OUT, P_OUT, L*D*2)
g1_setup2(A); g_flags_setup(A); g2_setup(A)
for x in g_chunk_dma(2): vm.op(x)
cid[2] = vm.n
if O.LOOK >= 4 and O.L3 == "u":
    for x in g_chunk_dma(3): vm.op(x)
    cid[3] = vm.n
if "L" in O.X2:
    parts_ts(A, 2)
    for k in sorted(cid)[:3]:
        vm.wait(cid[k]); parts_ts(A, 3 + k)
if O.GHOLD: lwait(A, GRD, 32, GT, 1, sleep=4)
(g1_main if O.LA == 1 else g1_main2)(A, vm, cid)
tsg(A, 2, "ae")
g1_epi(A)
tsg(A, 3, "ae")
A.label("K_G2")
lwait(A, GRD, 48, GT, 12)
for i in range(O.PFD):
    for x in w2_read(i): A(x)
A(f"v_mov_b32 v{GX}, {L_HOK}")
A(f"s_cmp_eq_u32 s{S_WAVE}, 0")
A("s_cbranch_scc0 K_HW")
poll(A, FV, GT, VTOK, "PH", slp=O.HSLP)
A(f"ds_write_b32 v{GX}, v{VTOK+1}")
A("s_waitcnt lgkmcnt(1)")
A("s_branch K_HD")
A.label("K_HW")
lwait(A, GX, 0, GT, 1)
A.label("K_HD")
tsg(A, 4, "ae"); tsg(A, 1, "s")
g2_main(A)
A("s_waitcnt lgkmcnt(0)")
fin(A, "G")
A("s_endpgm")
A.label("K_IDLE")
if O.IPRIO != O.GPRIO: A(f"s_setprio {O.IPRIO}")
idle_tr_issue(A)
if O.CODEPF:
    A("s_getpc_b64 s[72:73]")
    A.label("K_PC")
    A(f"s_sub_u32 s72, s72, K_PC-{KN}")
    A("s_subb_u32 s73, s73, 0")
    A(f"v_lshl_add_u32 v20, s64, 5, v1")
    A("v_lshlrev_b32 v20, 7, v20")
    A(f"v_min_u32 v20, K_END-{KN}, v20")
    A("s_mov_b64 exec, 0xffffffff")
    A("global_load_dword v21, v20, s[72:73]")
    A("s_mov_b64 exec, -1")
A("s_waitcnt lgkmcnt(0)")
srd(A, S_X, P_U, L*D*2)
if any(O.W2P): srd(A, S_W2, P_W2, D*F*2); w2_touch_setup(A)
w2_touch(A, O.W2P[0], 26)
idle_tr_dma(A)
A("s_barrier")
w2_touch(A, O.W2P[1], 26)
srd(A, S_WS, P_WS, WS_BYTES); srd(A, S_OUT, P_OUT, L*D*2)
idle_tr_finish(A, 2 * len(O.W2P[1]))
g_flags_setup(A); g2_setup(A)
tsg(A, 2, "ae")
token_get(A, GX, VTOK)
A(f"s_lshl_b32 s68, s34, 4")
A(f"s_add_u32 s68, s68, s33")
A(f"s_lshl_b32 s65, s68, {FS}")
A(f"s_add_u32 s65, s65, {F_UT}")
A("s_waitcnt vmcnt(0)")
flag_store(A, 65, GT, VTOK)
tsg(A, 3, "ae")
A(f"v_mov_b32 v{GT}, 8")
A(f"ds_write_b32 v{GOWN}, v{GT} offset:16")
if O.IPRIO != O.GPRIO: A(f"s_setprio {O.GPRIO}")
w2_touch(A, O.W2P[2], 26)
idle_gate_issue(A)
w2_touch(A, O.W2P[3], 26)
idle_gate_finish(A, 2 * len(O.W2P[3]))
A(f"s_lshl_b32 s65, s68, {FS}")
A(f"s_add_u32 s65, s65, {F_G}")
A("s_waitcnt vmcnt(0)")
flag_store(A, 65, GT, VTOK)
A("s_branch K_G2")
A.label("K_SSM")
if O.SPRIO: A(f"s_setprio {O.SPRIO}")
A(f"s_sub_u32 s{S_WAVE}, s{S_WAVE}, 4")
s_setup(A)
carry_zero(A)
A("s_getreg_b32 s31, hwreg(HW_REG_XCC_ID)")
A(f"s_lshl_b32 s{Q_T0}, s{Q_PAIR}, 9")
A(f"s_lshl_b32 s{Q_T1}, s{S_WAVE}, 7")
A(f"s_add_u32 s{Q_T0}, s{Q_T0}, s{Q_T1}")
A(f"v_lshl_add_u32 v6, v1, 1, s{Q_T0}")
A(f"s_lshl_b32 s{Q_T0}, s{Q_PAIR}, 2")
A("s_waitcnt lgkmcnt(0)")
for i, p in enumerate((P_LA, P_AI, P_CR, P_CI)):
    A(f"global_load_ushort v{2+i}, v6, s[{p}:{p+1}]")
A(f"s_load_dword s{Q_LDT}, s[{P_LDT}:{P_LDT+1}], s{Q_T0}")
A(f"s_load_dword s{Q_DSK}, s[{P_DSK}:{P_DSK+1}], s{Q_T0}")
A(f"s_add_u32 s28, s{P_WS}, {F_EP}")
A(f"s_addc_u32 s29, s{P_WS+1}, 0")
A(f"s_cmp_eq_u32 s{S_WAVE}, 1")
A("s_cbranch_scc0 S_NT")
A("s_load_dword s30, s[28:29], 0")
A.label("S_NT")
A("s_barrier")
if O.W2S is not None:
    srd(A, S_W2, P_W2, D*F*2)
    A(f"s_lshr_b32 s{Q_T0}, s{S_XCD}, 1")
    A(f"s_and_b32 s{Q_T1}, s{S_XCD}, 1")
    A(f"s_lshl_b32 s{Q_T1}, s{Q_T1}, 2")
    A(f"s_add_u32 s{Q_T0}, s{Q_T0}, s{Q_T1}")
    A(f"s_lshl_b32 s{Q_T0}, s{Q_T0}, 5")
    A(f"s_add_u32 s{Q_T0}, s{Q_T0}, s{S_J}")
    A(f"s_mul_i32 s{Q_T0}, s{Q_T0}, 7168")
    A(f"s_mul_i32 s{Q_T1}, s{S_WAVE}, 1792")
    A(f"s_add_u32 s{Q_T0}, s{Q_T0}, s{Q_T1}")
    A("v_min_u32 v39, 13, v1")
    A("v_lshlrev_b32 v39, 7, v39")
    A(f"buffer_load_dword v39, v39, s[{S_W2}:{S_W2+3}], s{Q_T0} offen {O.PFL2}")
def pre():
    srd(A, S_X, P_U, L*D*2); srd(A, S_W1, P_W1, D*F*2); srd(A, S_W2, P_W2, D*F*2)
    srd(A, S_WS, P_WS, WS_BYTES)
    loader_setup(A)
def tokpub():
    tss(A, 2, "ak")
    A(f"s_cmp_eq_u32 s{S_WAVE}, 1")
    A("s_cbranch_scc0 S_NP")
    A("s_mul_i32 s30, s30, 0x9e3779a1")
    A("s_add_u32 s30, s30, 0x7f4a7c10")
    A("s_and_b32 s30, s30, -16")
    A("s_and_b32 s31, s31, 15")
    A("s_or_b32 s31, s31, s30")
    A(f"v_mov_b32 v{STOK}, s30")
    A(f"v_mov_b32 v{STOK+1}, 1")
    A(f"v_mov_b32 v34, {L_RDY}")
    A(f"ds_write_b64 v34, {vr(STOK,2)}")
    A(f"v_mov_b32 v35, s31")
    A(f"s_lshl_b32 s28, s2, {FS}")
    A(f"s_add_u32 s28, s28, {F_HERE}")
    flag_store(A, 28, 36, 35)
    A.label("S_NP")
kgen(A, later=0 if O.W2S is None else 1, hookA=tokpub, pre=pre, hook=lambda: tss(A, 3, "k"))
tss(A, 4, "k")
kgen_exchange_write(A)
A("s_waitcnt lgkmcnt(0)")
sw_arrive(A, S_FOWN, S_FT, 1)
def kfin():
    sw_wait(A, S_FRD, S_FT, 1, sleep=1)
    kgen_final(A)
    token_get(A, 8, STOK)
tss(A, 3, "a")
A(f"s_cmp_eq_u32 s{Q_C}, 1")
A("s_cbranch_scc1 S_LD")
kfin()
tss(A, 5, "k")
A(f"s_cmp_eq_u32 s{S_WAVE}, 1")
A("s_cbranch_scc1 S_VD")
A(f"s_lshl_b32 s{Q_T0}, s{S_XCD}, {4+FS}")
A(f"s_add_u32 s{Q_T0}, s{Q_T0}, {F_UT}")
A("v_and_b32 v8, 15, v1")
A(f"v_lshl_add_u32 v8, v8, {FS}, s{Q_T0}")
poll(A, 8, 9, STOK, "PU")
ut2(A)
A("s_branch S_CV")
A.label("S_VD")
if O.VERD:
    A(f"s_and_b32 s{Q_T0}, s2, 31")
    A(f"s_lshl_b32 s{Q_T0}, s{Q_T0}, {FS}")
    A(f"s_add_u32 s{Q_T0}, s{Q_T0}, {F_HERE}")
    A("v_and_b32 v8, 7, v1")
    A(f"v_lshl_add_u32 v8, v8, {5+FS}, s{Q_T0}")
    poll(A, 8, 9, STOK, "PV", mask=True)
    A("v_cmp_ne_u32 vcc, s31, v9")
    A("s_cmp_eq_u64 vcc, 0")
    A(f"s_cselect_b32 s{Q_T0}, 1, 2")
    A(f"v_mov_b32 v9, s{Q_T0}")
    A(f"v_mov_b32 v8, {L_VERD}")
    A("ds_write_b32 v8, v9")
A("s_cmp_eq_u32 s2, 0")
A("s_cbranch_scc0 S_CV")
for i in range(4):
    A(f"v_lshlrev_b32 v8, {FS}, v1")
    A(f"v_add_u32 v8, {F_HERE+(64<<FS)*i}, v8")
    poll(A, 8, 9, STOK, "PE", mask=True)
A(f"s_mov_b32 s{Q_T0}, {F_EP}")
flag_store(A, Q_T0, 8, STOK)
A("s_branch S_CV")
A.label("S_LD")
loader(A, kfin)
A.label("S_CV")
conv_setup(A)
A(f"v_mov_b32 v{LV}, 12"); A(f"v_mov_b32 v{LV+1}, 12")
s_barrier(A, 2)
tss(A, 4, "a")
if O.CPRIO != O.SPRIO: A(f"s_setprio {O.CPRIO}")
conv(A, inj=(O.PUBM, ["s_waitcnt vmcnt(0)", f"ds_write_b64 v{LSA}, {vr(LV,2)}"]))
if O.CPRIO != O.TPRIO: A(f"s_setprio {O.TPRIO}")
s_barrier(A, 3)
conv_final(A, "sc1")
s_tail(A)
fin(A, "S")
A.label("K_END")
A("s_endpgm")
kernel_desc(A, KN, 256)
open(sys.argv[1], "w").write(A.text())
```

```python
import sys; sys.path.insert(0, "gen")
import parts
from parts import *
import ssm
from ssm import *

class Opt: pass
O = Opt()
O.TS = False
O.ROT = (0, 0, 2, 1)
O.SPRIO = 3; O.CPRIO = 0; O.GPRIO = 1; O.TPRIO = 3
O.CODEPF = True
O.SPIN = 100000
O.SLP = 4; O.HSLP = 1
O.TSC = None; O.TSG = "a"; O.TSS = "a"
O.ARR = 1
O.DEPTH = 14
O.PUBM = 12
O.SLOW = False
O.DIAG = None
O.HFS = 8
O.HLD = "sc1"; O.HST = "sc1"; O.GHOLD = False; O.VERD = False; O.NA = 4; O.PFD = 2; O.NOPK = True; O.KG2 = True; O.KLO = "pk"; O.KHI = "sc"; O.LFIN = 7; O.TOUCH = False; O.PST = "sc1"; O.AFIRST = False; O.XFL = ""; O.W1FL = ""; O.W2FL = ""; O.TFL = "nt"; O.UFL = ""; O.PDLY = 0; O.LOOK = 4; O.PFL = 99; O.L3 = "i"; O.IPRIO = 3; O.TAILK = 0
O.X2 = ""; O.ST = (1, 14, 28, 42)
O.HAB = False; O.BS = 8; O.FA = 6; O.PW = False; O.TCH = ""; O.TR = 2; O.W2H = False; O.APS = 3; O.XF = 0; O.RSLP = 0; O.XQ = None; O.XR = 2; O.TL3 = False; O.ASTEP = 48
O.GW2 = False; O.GW2N = 3; O.W2AF = 0; O.UW = 3
O.TL2 = False; O.PSTEP = 52; O.SPG = 3; O.POLW = 3; O.ASLP = 8
O.GPRE = 1
O.DL = False; O.LPRIO = 3; O.LSLP = 1; O.LDLY = 0
O.W2S = None
O.W2P = ((), (), (), ()); O.PFL2 = ""; O.UOWN = False
O.LA = 1; O.RSP = (2, 4, 6); O.PPOS = 0
O.DSL = (6, 7, 8, 10, 11, 12, 14, 15)
O.PAW = 2
for a in sys.argv[2:]: exec("O." + a)
parts.TS = O.TS
ssm.KG2 = O.KG2; ssm.KLO = O.KLO; ssm.KHI = O.KHI
parts.gflag_setup = lambda A: None

LF = LDS_SSM + 31744
L_GL, L_GD, L_SB, L_SL, L_RDY, L_HOK, L_VERD = LF, LF + 16, LF + 32, LF + 48, LF + 64, LF + 72, LF + 76
L_AOK = LF + 80
L_DUMMY = LF + 128
ssm.LDS_SFLAG = L_SB
FS = 8
F_HERE, F_UT, F_G, F_A, F_H, F_P, F_EP = [WS_FLAG + (x << FS) for x in (0, 256, 384, 512, 1536, 2560, 3584)]
assert F_EP + 256 <= (13 << 20)
WS_P = 16 << 20
WS_BYTES = (24 if O.TL3 else 20) << 20
WS_A2 = 20 << 20
STOK = 32
S_W8, S_SPIN, S_HF = 27, 85, 32

parts_ts = ts
def tsg(A, i, mode="a"):
    if O.TSC: return
    if O.TSG in mode: parts_ts(A, i)
def tss(A, i, mode="a"):
    if O.TSS in mode: parts_ts(A, i)

class Vm:
    def __init__(self, A): self.A = A; self.n = 0; self.done = 0
    def op(self, s):
        self.A(s)
        if s.startswith("buffer_") or s.startswith("global_"): self.n += 1
        return self.n
    def cnt(self, idn):
        k = min(self.n - idn, 63); self.done = max(self.done, self.n - k); return k
    def wait(self, idn, extra=""):
        if idn <= self.done:
            if extra: self.A(f"s_waitcnt {extra}")
            return
        self.A(f"s_waitcnt vmcnt({self.cnt(idn)}) {extra}")

def poll(A, vaddr, vt, tok, name, slp=None, mask=False):
    l = A.newlabel(name); d = A.newlabel(name)
    A(f"s_mov_b32 s{S_SPIN}, {O.SPIN}")
    A.label(l)
    A(f"buffer_load_dword v{vt}, v{vaddr}, s[{S_WS}:{S_WS+3}], 0 offen sc1")
    A("s_waitcnt vmcnt(0)")
    if mask:
        A(f"v_and_b32 v{vt+1}, -16, v{vt}")
        A(f"v_cmp_ne_u32 vcc, v{tok}, v{vt+1}")
    else:
        A(f"v_cmp_ne_u32 vcc, v{tok}, v{vt}")
    A(f"s_cbranch_vccz {d}")
    A(f"s_sleep {O.SLP if slp is None else slp}")
    A(f"s_sub_u32 s{S_SPIN}, s{S_SPIN}, 1")
    A(f"s_cbranch_scc0 {l}")
    A.label(d)

def lwait(A, vaddr, off, vt, val, issued=False, sleep=1):
    lab = A.newlabel("LW"); done = A.newlabel("LWD")
    if not issued: A(f"ds_read_b32 v{vt}, v{vaddr} offset:{off}")
    A("s_waitcnt lgkmcnt(0)")
    A(f"v_cmp_gt_u32 vcc, {val}, v{vt}")
    A(f"s_cbranch_vccz {done}")
    A.label(lab)
    if sleep: A(f"s_sleep {sleep}")
    A(f"ds_read_b32 v{vt}, v{vaddr} offset:{off}")
    A("s_waitcnt lgkmcnt(0)")
    A(f"v_cmp_gt_u32 vcc, {val}, v{vt}")
    A(f"s_cbranch_vccnz {lab}")
    A.label(done)

def token_get(A, va, tok):
    l = A.newlabel("RW"); d = A.newlabel("RW")
    A(f"v_mov_b32 v{va}, {L_RDY}")
    A.label(l)
    A(f"ds_read_b64 {vr(tok,2)}, v{va}")
    A("s_waitcnt lgkmcnt(0)")
    A(f"v_cmp_ne_u32 vcc, 1, v{tok+1}")
    A(f"s_cbranch_vccz {d}")
    A("s_sleep 1")
    A(f"s_branch {l}")
    A.label(d)

def flag_store(A, soff, va, vt, fl="sc1"):
    A(f"v_mov_b32 v{va}, 0")
    A("s_mov_b64 exec, 1")
    A(f"buffer_store_dword v{vt}, v{va}, s[{S_WS}:{S_WS+3}], s{soff} offen {fl}")
    A("s_mov_b64 exec, -1")

def rot_c0(A, dst, t0):
    a, b, c, d = O.ROT
    A(f"s_mov_b32 s{dst}, 0")
    if a: A(f"s_and_b32 s{t0}, s{S_J}, 3"); A(f"s_mul_i32 s{dst}, s{t0}, {a}")
    if b: A(f"s_lshr_b32 s{t0}, s{S_J}, 2"); A(f"s_mul_i32 s{t0}, s{t0}, {b}"); A(f"s_add_u32 s{dst}, s{dst}, s{t0}")
    if c: A(f"s_lshr_b32 s{t0}, s{S_XCD}, 1"); A(f"s_mul_i32 s{t0}, s{t0}, {c}"); A(f"s_add_u32 s{dst}, s{dst}, s{t0}")
    if d: A(f"s_and_b32 s{t0}, s{S_XCD}, 1"); A(f"s_mul_i32 s{t0}, s{t0}, {d}"); A(f"s_add_u32 s{dst}, s{dst}, s{t0}")

GOWN, GRD, GT, HV, AR, RW, FV, VTOK, GX = 50, 51, 52, 54, 56, 58, 59, 60, 62
ACCA, ACCB, AF, PK, HR0 = 64, 96, 128, 168, 184
OV, RX, TV = 55, 63, 49
FVB = 48
S_OO, S_PO, S_P1, S_PF = 76, 77, 78, 79
L_T = LDS_SSM
STMP = 160
S_HL, S_HR, S_C0 = 80, 81, 84

def g_flags_setup(A):
    A(f"s_lshl_b32 s{S_T0}, s{S_WAVE}, 2")
    A(f"s_add_u32 s{S_T0}, s{S_T0}, {LF}")
    A(f"v_mov_b32 v{GOWN}, s{S_T0}")
    A(f"v_and_b32 v{GRD}, 3, v1")
    A(f"v_lshlrev_b32 v{GRD}, 2, v{GRD}")
    A(f"v_add_u32 v{GRD}, {LF}, v{GRD}")

def g2_setup(A):
    w = S_WAVE; T = 30
    A(f"s_and_b32 s{S_T0}, s{S_XCD}, 6")
    A(f"s_lshl_b32 s{S_T0}, s{S_T0}, 1")
    A(f"s_and_b32 s{S_T1}, s{S_J}, 3")
    A(f"s_add_u32 s{S_T0}, s{S_T0}, s{S_T1}")
    A(f"s_and_b32 s{S_T1}, s{S_XCD}, 1")
    A(f"s_lshl_b32 s{S_HF}, s{S_T0}, 1")
    A(f"s_add_u32 s{S_HF}, s{S_HF}, s{S_T1}")
    A(f"s_lshl_b32 s{S_HF}, s{S_HF}, {5+O.HFS}")
    A(f"s_add_u32 s{S_HF}, s{S_HF}, {F_H}")
    A(f"v_min_u32 v{T}, 27, v1")
    A(f"v_lshl_add_u32 v{FV}, v{T}, {O.HFS}, s{S_HF}")
    if O.HAB:
        A(f"s_and_b32 s{S_HR}, s{w}, 1")
        A(f"s_lshl_b32 s{S_HR}, s{S_HR}, 1")
        A(f"s_lshr_b32 s{S_HL}, s{w}, 1")
        A(f"s_add_u32 s{S_HR}, s{S_HR}, s{S_HL}")
        A(f"s_mul_i32 s{S_HR}, s{S_HR}, 7")
        A(f"v_min_u32 v{T}, 6, v1")
        A(f"v_add_u32 v{T}, s{S_HR}, v{T}")
        A(f"v_lshl_add_u32 v{FV if O.PW else FVB}, v{T}, {O.HFS}, s{S_HF}")
        A(f"v_add_u32 v{FVB}, {F_P-F_H}, v{FV if O.PW else FVB}")
    A(f"s_lshl_b32 s{S_T0}, s{S_T0}, 2")
    A(f"s_and_b32 s{S_HR}, s{w}, 1")
    A(f"s_add_u32 s{S_T0}, s{S_T0}, s{S_HR}")
    A(f"s_lshl_b32 s{S_OO}, s{S_T1}, 1")
    A(f"s_add_u32 s{S_OO}, s{S_OO}, s{S_T0}")
    A(f"s_xor_b32 s{S_HL}, s{S_OO}, 2")
    A(f"s_mul_i32 s{S_HL}, s{S_HL}, 112")
    A(f"s_mul_i32 s{S_HR}, s{S_OO}, 112")
    A(f"s_lshl_b32 s{S_T1}, s{S_T1}, 1")
    A(f"s_lshr_b32 s{S_T0}, s{w}, 1")
    A(f"s_add_u32 s{S_T1}, s{S_T1}, s{S_T0}")
    A(f"s_mul_i32 s{S_T1}, s{S_T1}, 28")
    A(f"s_add_u32 s{S_HL}, s{S_HL}, s{S_T1}")
    A(f"s_add_u32 s{S_HR}, s{S_HR}, s{S_T1}")
    A(f"s_lshl_b32 s{S_HL}, s{S_HL}, 10")
    A(f"s_lshl_b32 s{S_HR}, s{S_HR}, 10")
    A(f"s_lshl_b32 s{S_OO}, s{S_OO}, 15")
    A(f"s_lshr_b32 s{S_T1}, s{S_J}, 2")
    A(f"s_lshl_b32 s{S_T1}, s{S_T1}, 1")
    A(f"s_add_u32 s{S_T1}, s{S_T1}, s{S_T0}")
    A(f"s_lshl_b32 s{S_T1}, s{S_T1}, 6")
    A(f"s_add_u32 s{S_OO}, s{S_OO}, s{S_T1}")
    A(f"v_lshlrev_b32 v{HV}, 4, v1")
    A(f"s_lshl_b32 s{S_T1}, s{w}, 15")
    A(f"v_add_u32 v{RW}, s{S_T1}, v{HV}")
    A(f"v_xor_b32 v{RX}, 0x10000, v{RW}")
    A(f"s_lshl_b32 s{S_T1}, s{w}, 12")
    A(f"s_add_u32 s{S_T1}, s{S_T1}, {L_T}")
    A(f"v_add_u32 v{TV}, s{S_T1}, v{HV}")
    A(f"v_lshrrev_b32 v{T+1}, 5, v1")
    A(f"v_and_b32 v{T}, 31, v1")
    A(f"v_lshlrev_b32 v{T}, 10, v{T}")
    A(f"v_lshl_add_u32 v{OV}, v{T+1}, 4, v{T}")
    A(f"v_bfe_u32 v{T+2}, v1, 2, 2")
    A(f"v_bfe_u32 v{T+3}, v1, 4, 1")
    A(f"v_bfe_u32 v{T+4}, v1, 1, 1")
    A(f"v_lshl_add_u32 v{T+3}, v{T+3}, 1, v{T+4}")
    A(f"v_bfe_u32 v{T+4}, v1, 3, 1")
    A(f"v_xor_b32 v{T+4}, s{S_T0}, v{T+4}")
    A(f"v_lshl_add_u32 v{T+3}, v{T+4}, 2, v{T+3}")
    A(f"v_lshl_add_u32 v{T+2}, v{T+1}, 2, v{T+2}")
    A(f"v_lshlrev_b32 v{T+2}, 7, v{T+2}")
    A(f"v_lshl_add_u32 v{T+2}, v{T+3}, 4, v{T+2}")
    A(f"v_and_b32 v{T+4}, 1, v1")
    A(f"v_lshl_add_u32 v{T+2}, v{T+4}, 3, v{T+2}")
    A(f"s_lshl_b32 s{S_T0}, s{S_T0}, 16")
    A(f"v_add_u32 v{AR}, s{S_T0}, v{T+2}")
    A(f"v_xor_b32 v{AR+1}, 64, v{AR}")

def w2_read(i):
    k = i % 28; dst = AF + 8 * (i % O.NA)
    o = (k // 14) * 32768 + 4096 + (k % 14) * 2048
    return [f"ds_read_b64_tr_b16 {vr(dst+4*a+2*x,2)}, v{AR+a} offset:{o+x*1024}" for a in range(2) for x in range(2)]
HQ = {}
def h_load(i):
    base, k = (S_HL, i) if i < 28 else (S_HR, i - 28)
    pre = [f"s_add_u32 s{S_T0}, s{base}, {k*1024}"] if k % 4 == 0 else []
    return pre + [f"buffer_load_dwordx4 {vr(HQ[i],4)}, v{HV}, s[{S_WS}:{S_WS+3}], s{S_T0} offen offset:{(k%4)*1024} {O.HLD}"]

def g_chunk_dma(cc):
    slot = cc % 4
    out = [f"s_add_u32 s{S_HO}, s{S_C0}, {cc}", f"s_and_b32 s{S_HO}, s{S_HO}, 7",
           f"s_lshl_b32 s{S_T1}, s{S_HO}, 7", f"s_add_u32 m0, s{S_M0X}, {slot*32768}", f"s_add_u32 s{S_T1}, s{S_T1}, s{S_XO}"]
    for i in range(4):
        out.append(f"buffer_load_dwordx4 v{G1_XD+i}, s[{S_X}:{S_X+3}], s{S_T1} offen offset:{i*1024} {O.XFL} lds")
    out += [f"s_mul_i32 s{S_T1}, s{S_HO}, {64*2*F}", f"s_add_u32 m0, s{S_M0X}, {slot*32768+16384}", f"s_add_u32 s{S_T1}, s{S_T1}, s{S_WO}"]
    for i in range(4):
        out.append(f"buffer_load_dwordx4 v{G1_WD+i}, s[{S_W1}:{S_W1+3}], s{S_T1} offen offset:{i*1024} {O.W1FL} lds")
    return out

VW2, S_W2O, S_W2M = 22, 78, 79
def gw2_setup(A):
    w = S_WAVE
    srd(A, S_W2, P_W2, D*F*2)
    A("v_lshrrev_b32 v30, 3, v1")
    A("v_and_b32 v31, 7, v1")
    A("v_bfe_u32 v32, v1, 4, 1")
    A("v_lshlrev_b32 v32, 2, v32")
    A("v_xor_b32 v31, v31, v32")
    A("v_lshlrev_b32 v30, 10, v30")
    A(f"v_lshl_add_u32 v{VW2}, v31, 4, v30")
    A(f"s_and_b32 s{S_T0}, s{S_XCD}, 1")
    A(f"s_lshl_b32 s{S_T0}, s{S_T0}, 3")
    A(f"s_and_b32 s{S_T1}, s{w}, 1")
    A(f"s_add_u32 s{S_T0}, s{S_T0}, s{S_T1}")
    A(f"s_mul_i32 s{S_W2O}, s{S_T0}, {7*16384}")
    A(f"s_mul_i32 s{S_W2M}, s{S_T1}, {7*2048}")
    A(f"s_lshr_b32 s{S_T0}, s{S_J}, 2")
    A(f"s_lshl_b32 s{S_T0}, s{S_T0}, 7")
    A(f"s_add_u32 s{S_W2O}, s{S_W2O}, s{S_T0}")
    A(f"s_lshr_b32 s{S_T0}, s{w}, 1")
    A(f"s_lshl_b32 s{S_T1}, s{S_T0}, 13")
    A(f"s_add_u32 s{S_W2O}, s{S_W2O}, s{S_T1}")
    A(f"s_lshl_b32 s{S_T1}, s{S_T0}, 10")
    A(f"s_add_u32 s{S_W2M}, s{S_W2M}, s{S_T1}")
def gw2_dma(sl):
    out = []
    for k in range(7):
        out += [f"s_add_u32 m0, s{S_W2M}, {sl*32768+4096+k*2048}", f"s_add_u32 s{S_T1}, s{S_W2O}, {(14*sl+k)*16384}",
                f"buffer_load_dwordx4 v{VW2}, s[{S_W2}:{S_W2+3}], s{S_T1} offen {O.W2FL} lds"]
    return out

def g1_main(A, vm, cid):
    vm.wait(cid[0])
    A(f"v_mov_b32 v{GT}, 1"); A(f"ds_write_b32 v{GOWN}, v{GT}")
    lwait(A, GRD, 0, GT + 1, 1, sleep=0)
    for r in g1_reads(0): A(r)
    for c in range(8):
        if O.TSC and c in O.TSC: parts_ts(A, 2 + O.TSC.index(c))
        off = 0 if c + 1 < O.LOOK else 48
        own = 4 <= c + 3 < O.LOOK
        units = [u for u in split_groups(g_chunk_dma(c + 3), 8)] if own else []
        slots = O.DSL
        for s in range(4):
            t = 4 * c + s
            mf = g1_mfmas(t)
            pre = []
            if s == 3:
                if c < 7: lwait(A, GRD, off, GT + 1, c + 2, issued=True, sleep=0)
                else: A("s_waitcnt lgkmcnt(0)")
                pre = [f"v_mov_b32 v{GT}, {c+1}", f"ds_write_b32 v{GOWN}, v{GT} offset:16"]
            elif s == O.ARR and c + 1 < O.LOOK:
                vm.wait(cid[c + 1], "lgkmcnt(0)")
                pre = [f"v_mov_b32 v{GT}, {c+2}", f"ds_write_b32 v{GOWN}, v{GT}"]
            else: A("s_waitcnt lgkmcnt(0)")
            if own and s == 1: lwait(A, GRD, 16, GX, c, issued=True, sleep=0)
            rd = g1_reads(t + 1) if t < 31 else []
            post = [f"ds_read_b32 v{GT+1}, v{GRD} offset:{off}"] if (s == 2 and c < 7) else []
            if own and s == 0: post.append(f"ds_read_b32 v{GX}, v{GRD} offset:16")
            def dm(g):
                if own:
                    for _ in range(slots.count(4 * s + g)):
                        for x in units.pop(0): vm.op(x)
                    if not units: cid[c + 3] = vm.n if c + 3 not in cid else cid[c + 3]
            A(mf[0])
            for x in rd[:3]: A(x)
            dm(0)
            A(mf[1])
            for x in rd[3:]: A(x)
            dm(1)
            A(mf[2])
            for x in pre + post: A(x)
            if c == 0 and O.LOOK >= 4 and O.L3 == "i":
                for x in split_groups(g_chunk_dma(3), 4)[s]: vm.op(x)
                cid[3] = vm.n
            dm(2)
            A(mf[3])
            dm(3)
        assert not units

_g1_reads = g1_reads
def g1_reads(t):
    out = _g1_reads(t)
    if O.HAB:
        c, s_ = divmod(t, 4); lo = ((c % 4) % 2) * 32768
        out[5] = out[5].replace(f"offset:{lo+4096}", f"offset:{lo+8192}")
    return out
def hab_setup(A):
    A(f"s_and_b32 s{S_T0}, s{S_XCD}, 1")
    A(f"s_xor_b32 s{S_T0}, s{S_T0}, 1")
    A(f"s_lshl_b32 s{S_T0}, s{S_T0}, 16")
    A(f"s_xor_b32 s{S_XO}, s{S_XO}, s{S_T0}")
def hab_setup2(A):
    A(f"s_lshr_b32 s{S_T0}, s{S_WAVE}, 1")
    A(f"s_lshl_b32 s{S_T0}, s{S_T0}, 12")
    for k in range(8): A(f"v_subrev_u32 v{G1_XR+k}, s{S_T0}, v{G1_XR+k}")

def g1_fr(lst, t, ns):
    import re
    o = G1_FR + (t % 2) * 16; n = G1_FR + (t % ns) * 16
    def f(m):
        a, b = int(m.group(1)), int(m.group(2))
        if o <= a < o + 16: return f"v[{a-o+n}:{b-o+n}]"
        return m.group(0)
    return [re.sub(r"v\[(\d+):(\d+)\]", f, x) for x in lst]

def lchk(A, vaddr, off, vt, val):
    lab = A.newlabel("LW"); done = A.newlabel("LWD")
    A(f"v_cmp_gt_u32 vcc, {val}, v{vt}")
    A(f"s_cbranch_vccz {done}")
    A.label(lab)
    A(f"ds_read_b32 v{vt}, v{vaddr} offset:{off}")
    A("s_waitcnt lgkmcnt(0)")
    A(f"v_cmp_gt_u32 vcc, {val}, v{vt}")
    A(f"s_cbranch_vccnz {lab}")
    A.label(done)

def g1_main2(A, vm, cid):
    LA = O.LA; NS = LA + 1
    lg = Lg(A); rid = {}
    vm.wait(cid[0])
    A(f"v_mov_b32 v{GT}, 1"); A(f"ds_write_b32 v{GOWN}, v{GT}")
    lwait(A, GRD, 0, GT + 1, 1, sleep=0)
    for t in range(LA):
        for r in g1_fr(g1_reads(t), t, NS): rid[t] = lg.op(r)
    sc = 4 - LA
    for c in range(8):
        if O.TSC and c in O.TSC: parts_ts(A, 2 + O.TSC.index(c))
        off = 0 if c + 1 < O.LOOK else 48
        own = 4 <= c + 3 < O.LOOK
        units = [u for u in split_groups(g_chunk_dma(c + 3), 8)] if own else []
        if O.GW2 and c >= 5 and c - 5 < O.GW2N:
            own = True; units = split_groups(gw2_dma(c - 5), 7) + [[]]
        for s in range(4):
            t = 4 * c + s
            mf = g1_fr(g1_mfmas(t), t, NS)
            need = rid[t]
            if s == sc and c < 7: need = max(need, pid)
            if own and s == 1: need = max(need, did)
            first = []; pre = []
            if s == O.ARR and c + 1 < O.LOOK:
                vm.wait(cid[c + 1])
                first += [f"ds_write_b32 v{GOWN}, v{GT}"]
                A(f"v_mov_b32 v{GT}, {c+2}")
            lg.wait(need)
            if s == sc and c < 7: lchk(A, GRD, off, GT + 1, c + 2)
            if own and s == 1: lchk(A, GRD, 16, GX, c)
            if s == 3: pre = [f"v_mov_b32 v{GT}, {c+1}", f"ds_write_b32 v{GOWN}, v{GT} offset:16"]
            rd = g1_fr(g1_reads(t + LA), t + LA, NS) if t + LA < 32 else []
            def dm(g):
                if own:
                    for _ in range(O.DSL.count(4 * s + g)):
                        for x in units.pop(0): vm.op(x)
                    if not units and c + 3 not in cid: cid[c + 3] = vm.n
            def em(x):
                if x.startswith("ds_"): return lg.op(x)
                A(x)
            sp = O.RSP
            A(mf[0])
            for x in first + pre: em(x)
            if s == sc - 1 and c < 7 and O.PPOS == 0: pid = lg.op(f"ds_read_b32 v{GT+1}, v{GRD} offset:{off}")
            if own and s == 0: did = lg.op(f"ds_read_b32 v{GX}, v{GRD} offset:16")
            for x in rd[:sp[0]]: rid[t + LA] = lg.op(x)
            dm(0)
            A(mf[1])
            for x in rd[sp[0]:sp[1]]: rid[t + LA] = lg.op(x)
            dm(1)
            A(mf[2])
            if s == sc - 1 and c < 7 and O.PPOS == 2: pid = lg.op(f"ds_read_b32 v{GT+1}, v{GRD} offset:{off}")
            for x in rd[sp[1]:sp[2]]: rid[t + LA] = lg.op(x)
            if c == 0 and O.LOOK >= 4 and O.L3 == "i":
                for x in split_groups(g_chunk_dma(3), 4)[s]: vm.op(x)
                cid[3] = vm.n
            dm(2)
            A(mf[3])
            for x in rd[sp[2]:]: rid[t + LA] = lg.op(x)
            dm(3)
        assert not units

def silu_np(A, regs, tmp):
    n = len(regs)
    for i, (s, d) in enumerate(regs):
        for e in range(2): A(f"v_mul_f32 v{tmp+2*i+e}, s{S_CL}, v{s+e}")
    for i in range(2 * n): A(f"v_exp_f32 v{tmp+i}, v{tmp+i}")
    for i in range(2 * n): A(f"v_add_f32 v{tmp+i}, 1.0, v{tmp+i}")
    for i in range(2 * n): A(f"v_rcp_f32 v{tmp+i}, v{tmp+i}")
    for i, (s, d) in enumerate(regs):
        for e in range(2): A(f"v_mul_f32 v{tmp+2*i+e}, v{tmp+2*i+e}, v{s+e}")
    for i, (s, d) in enumerate(regs):
        A(f"v_cvt_pk_bf16_f32 v{d}, v{tmp+2*i}, v{tmp+2*i+1}")

def split_groups(lst, n):
    units = []; cur = []
    for x in lst:
        cur.append(x)
        if x.startswith("buffer_"): units.append(cur); cur = []
    g = [[] for _ in range(n)]
    for i, u in enumerate(units): g[i * n // len(units)] += u
    return g

def g1_epi(A):
    w = S_WAVE
    if O.VERD:
        A(f"v_mov_b32 v{GX}, {L_RDY}")
        A(f"ds_read_b32 v{GT}, v{GX} offset:{L_VERD-L_RDY}")
    A(f"s_lshl_b32 s{S_HO}, s{S_RB}, 2")
    A(f"s_and_b32 s{S_T0}, s{w}, 2")
    A(f"s_add_u32 s{S_HO}, s{S_HO}, s{S_T0}")
    A(f"s_mul_i32 s{S_T1}, s{S_T0}, 7")
    A(f"s_mul_i32 s{S_HO}, s{S_HO}, 112")
    A(f"s_lshl_b32 s{S_T0}, s{S_CB}, 3")
    A(f"s_add_u32 s{S_HO}, s{S_HO}, s{S_T0}")
    A(f"s_and_b32 s{S_T0}, s{w}, 1")
    A(f"s_add_u32 s{S_T1}, s{S_T1}, s{S_T0}")
    A(f"s_lshl_b32 s{S_T0}, s{S_T0}, 2")
    A(f"s_add_u32 s{S_HO}, s{S_HO}, s{S_T0}")
    A(f"s_lshr_b32 s{S_T0}, s{S_J}, 2")
    A(f"s_lshl_b32 s{S_T0}, s{S_T0}, 1")
    A(f"s_add_u32 s{S_T1}, s{S_T1}, s{S_T0}")
    A(f"s_lshl_b32 s{S_T1}, s{S_T1}, {O.HFS}")
    A(f"s_add_u32 s{S_HF}, s{S_HF}, s{S_T1}")
    A(f"s_lshl_b32 s{S_HO}, s{S_HO}, 10")
    A(f"s_add_u32 s{S_XO}, s{S_HO}, {112*1024}")
    if O.HAB:
        A(f"s_lshr_b32 s{S_T0}, s{w}, 1")
        A(f"s_mul_i32 s{S_T0}, s{S_T0}, {112*1024}")
        A(f"s_sub_u32 s{S_XO}, s{S_HO}, s{S_T0}")
        A(f"s_and_b32 s{S_T0}, s{S_XCD}, 1")
        A(f"s_mul_i32 s{S_T0}, s{S_T0}, {224*1024}")
        A(f"s_add_u32 s{S_HO}, s{S_XO}, {224*1024}")
        A(f"s_sub_u32 s{S_HO}, s{S_HO}, s{S_T0}")
        A(f"s_add_u32 s{S_XO}, s{S_XO}, s{S_T0}")
        token_get(A, GX, VTOK)
    st = []
    p = 0
    for a, b in ([(0,0),(1,0),(0,1),(1,1)] if O.HAB else [(0,0),(0,1),(1,0),(1,1)]):
        if True:
            acc = G1_ACC + (2*a+b)*16
            for fh in range(2):
                dst = G1_FR + p * 4
                (silu_np if O.NOPK else silu_pairs)(A, [(acc + 8*fh + 2*i, dst + i) for i in range(4)], STMP)
                so = S_HO if b == 0 else S_XO
                st.append(f"buffer_store_dwordx4 {vr(dst,4)}, v{HV}, s[{S_WS}:{S_WS+3}], s{so} offen offset:{(2*a+fh)*1024}")
                if O.HAB and p == O.FA:
                    A(f"s_waitcnt vmcnt({p-4})")
                    flag_store(A, S_HF, GT, VTOK, O.HST)
                    tsg(A, 3, "h")
                    A(f"s_add_u32 s{S_HF}, s{S_HF}, {F_P-F_H}")
                A(st[-1] + " " + O.HST)
                p += 1
    tsg(A, 5, "e")
    if O.GW2:
        token_get(A, GX, VTOK)
        lwait(A, GRD, 16, GT, 8, sleep=0)
        n = 0
        if O.W2AF == 0:
            for sl in range(O.GW2N, 4):
                for x in gw2_dma(sl): A(x)
                n += 7
        A(f"s_waitcnt vmcnt({n})")
        flag_store(A, S_HF, GT, VTOK, O.HST)
        if O.W2AF == 1:
            for sl in range(O.GW2N, 4):
                for x in gw2_dma(sl): A(x)
        return
    if not O.VERD:
        if not O.HAB: token_get(A, GX, VTOK)
        A("s_waitcnt vmcnt(0)")
        flag_store(A, S_HF, GT, VTOK, O.HST)
        return
    lwait(A, GX, L_VERD - L_RDY, GT, 1, issued=True)
    A(f"ds_read_b64 {vr(VTOK,2)}, v{GX}")
    A(f"v_cmp_eq_u32 vcc, {1 if not O.SLOW else 7}, v{GT}")
    A("s_waitcnt vmcnt(0) lgkmcnt(0)")
    A("s_cbranch_vccz G_SLOW")
    flag_store(A, S_HF, GT, VTOK, O.HST)
    A("s_branch G_FD")
    A.label("G_SLOW")
    for x in st: A(x + " sc1")
    A("s_waitcnt vmcnt(0)")
    flag_store(A, S_HF, GT, VTOK)
    A.label("G_FD")

def g2_main(A):
    vm = Vm(A); lg = Lg(A)
    hid = {}; wid = {}
    assert HR0 + 4 * O.DEPTH <= 256 and AF + 8 * O.NA <= PK
    sched = {}; free = [HR0 + 4 * k for k in range(O.DEPTH)]; nx = 0
    for stp in range(0, 56):
        if stp >= 1: free.append(HQ[stp - 1])
        if O.XQ and stp == O.XQ[0]: free += [2 + 4 * k for k in range(8)]
        if O.XQ and stp == O.XQ[1]: free += [ACCA + 4 * k for k in range(8)]
        sched[stp] = []
        while nx < 56 and free and len(sched[stp]) < (O.DEPTH if stp == 0 else O.XR):
            HQ[nx] = free.pop(0); sched[stp].append(nx); nx += 1; lasts = stp
    for i in sched[0]:
        for x in h_load(i): vm.op(x)
        hid[i] = vm.n
    for i in range(O.PFD): wid[i] = 0
    send = []
    for t in range(2):
        for hf in range(2):
            send += [f"v_cvt_pk_bf16_f32 v{PK+8*t+4*hf+k}, v{ACCA+16*t+8*hf+2*k}, v{ACCA+16*t+8*hf+2*k+1}" for k in range(4)]
            send.append(f"ds_write_b128 v{RW}, {vr(PK+8*t+4*hf,4)} offset:{2048*t+1024*hf}")
    send += [f"v_mov_b32 v{GT+1}, 9", f"ds_write_b32 v{GOWN}, v{GT+1} offset:16"]
    if O.TS and O.TSG == "a" and not O.TSC: send.append(f"s_memtime s[{S_TS+10}:{S_TS+11}]")
    st = O.ST
    PR = 224
    pld = [f"buffer_load_dwordx4 {vr(PR+4*q,4)}, v{HV}, s[{S_WS}:{S_WS+3}], s{S_PO} offen offset:{1024*q} sc1" for q in range(4)]
    AL, GL_, VA0, SA0, SG0 = 240, 36, 38, 64, 68
    ald = []
    if O.TL3:
        A(f"s_lshr_b32 s{SG0}, s{S_OO}, 15")
        A(f"s_lshl_b32 s{SG0}, s{SG0}, 8")
        A(f"s_bfe_u32 s{SA0}, s{S_OO}, 0x40006")
        A(f"s_lshl_b32 s{SA0}, s{SA0}, 18")
        A(f"s_add_u32 s{SA0}, s{SA0}, s{SG0}")
        A(f"s_add_u32 s{SA0}, s{SA0}, {WS_A2}")
        A(f"s_add_u32 s{SG0}, s{SG0}, {WS_G}")
        for q in range(1, 4): A(f"s_add_u32 s{SA0+q}, s{SA0}, {q*65536}")
        A(f"v_and_b32 v{VA0+2}, 31, v1")
        A(f"v_lshlrev_b32 v{VA0+2}, 3, v{VA0+2}")
        A(f"v_lshrrev_b32 v{VA0}, 5, v1")
        A(f"v_lshl_add_u32 v{VA0}, v{VA0}, 15, v{VA0+2}")
        A(f"v_add_u32 v{VA0+1}, 16384, v{VA0}")
        ald = [f"buffer_load_dwordx2 {vr(GL_,2)}, v{VA0+2}, s[{S_WS}:{S_WS+3}], s{SG0} offen sc1"]
        ald += [f"buffer_load_dwordx2 {vr(AL+4*q+2*e,2)}, v{VA0+e}, s[{S_WS}:{S_WS+3}], s{SA0+q} offen sc1" for q in range(4) for e in range(2)]
    if O.TL2 or O.TL3:
        assert HR0 + 4 * O.DEPTH <= PR and O.PSTEP > lasts
        A(f"s_xor_b32 s{S_PO}, s2, 1")
        A(f"s_lshl_b32 s{S_PO}, s{S_PO}, 2")
        A(f"s_add_u32 s{S_PO}, s{S_PO}, s{S_WAVE}")
        A(f"s_lshl_b32 s{S_PO}, s{S_PO}, 12")
        A(f"s_add_u32 s{S_PO}, s{S_PO}, {WS_P}")
    for i in range(56):
        if O.TS and O.TSG == "s" and i in st: parts_ts(A, 2 + st.index(i))
        k = min(lg.n - wid[i], 15)
        need_l = wid[i] > lg.done
        if need_l: lg.done = lg.n - k
        vm.wait(hid[i], f"lgkmcnt({k})" if need_l else "")
        if O.HAB and 28 in sched[i]:
            vm.wait(bid)
            A(f"v_cmp_ne_u32 vcc, v{VTOK}, v{GT}")
            A("s_cbranch_vccz G_BD")
            poll(A, FVB, GT, VTOK, "PB", slp=O.HSLP)
            A.label("G_BD")
        fr = AF + 8 * (i % O.NA); hr = HQ[i]
        acc0 = ACCA if i < 28 else ACCB
        g = [[], []]
        if i + O.PFD < 56:
            rd = w2_read(i + O.PFD); g[0] += rd[:2]; g[1] += rd[2:]
        own = {}
        for q, nl in enumerate(sched[i] if i else []):
            hl = h_load(nl); own[hl[-1]] = nl
            g[min(q, 1)] += hl
        if i >= 29:
            for gi in range(2):
                for _ in range(O.SPG):
                    if send and not (O.XQ and O.XF and send[0].startswith("ds_write_b32") and (i, gi) < (lasts, 1)): g[gi].append(send.pop(0))
        if (O.TL2 or O.TL3) and i == O.PSTEP:
            g[1] += pld
        if O.TL3 and O.ASTEP <= i:
            q = i - O.ASTEP
            if O.APS == 3: g[0] += ald[3*q:3*q+2]; g[1] += ald[3*q+2:3*q+3]
            else: g[1] += ald[q:q+1]
        for m, t in enumerate((1, 0)):
            acc = acc0 + 16 * t
            c = "0" if i % 28 == 0 else vr(acc, 16)
            A(f"v_mfma_f32_32x32x16_bf16 {vr(acc,16)}, {vr(fr+4*t,4)}, {vr(hr,4)}, {c}" if "m" not in O.X2 else "s_nop 0")
            if i == 29 and m == 0: A("s_nop 1")
            for x in g[m]:
                if x.startswith("ds_"): lg.op(x)
                else:
                    vm.op(x)
                    if x in own: hid[own[x]] = vm.n
        if O.HAB and i == O.BS: bid = vm.op(f"buffer_load_dword v{GT}, v{FVB}, s[{S_WS}:{S_WS+3}], 0 offen sc1")
        if i + O.PFD < 56: wid[i + O.PFD] = lg.n
    T, R, GM = 2, 18, 34
    A(f"ds_read_b32 v{GT+1}, v{GRD} offset:32")
    A(f"v_mov_b32 v{GT}, 10")
    A(f"v_xor_b32 v{GX}, 8, v{GOWN}")
    A(f"s_lshl_b32 s{S_T0}, s{S_WAVE}, 8")
    A(f"s_add_u32 s{S_T0}, s{S_T0}, {L_T+16384}")
    A(f"v_lshl_add_u32 v{GM+1}, v1, 2, s{S_T0}")
    lwait(A, GRD, 32, GT + 1, 50, issued=True)
    A("s_nop 1")
    for q in range(4):
        A(f"ds_write_b128 v{RW}, {vr(ACCB+16+4*q,4)} offset:{q*1024}")
    A(f"ds_write_b32 v{GOWN}, v{GT} offset:16")
    if O.TL3:
        if O.PSTEP >= 56:
            for x in pld: A(x)
        tsg(A, 2, "f")
        lwait(A, GX, 16, GT + 1, 10, sleep=0)
        for q in range(4):
            A(f"ds_read_b128 {vr(R+4*q,4)}, v{RX} offset:{q*1024}")
        A(f"s_mov_b32 s{S_SPIN}, {O.SPIN}")
        def chk(name, tg, lds_, first):
            A(f"s_waitcnt vmcnt({first})")
            A.label(name + "L")
            acc = None
            tg = list(tg)
            if len(tg) % 2: A(f"v_xor_b32 v{GM}, v{VTOK}, v{tg.pop()}"); acc = GM
            for k in range(0, len(tg), 2):
                A(f"v_xor_b32 v{44+(k&2)}, v{VTOK}, v{tg[k]}")
                A(f"v_xor_b32 v{45+(k&2)}, v{VTOK}, v{tg[k+1]}")
                if acc: A(f"v_or3_b32 v{GM}, v{GM}, v{44+(k&2)}, v{45+(k&2)}")
                else: A(f"v_or_b32 v{GM}, v{44+(k&2)}, v{45+(k&2)}"); acc = GM
            A(f"v_cmp_ne_u32 vcc, 0, v{GM}")
            A(f"s_cbranch_vccz {name}D")
            for x in lds_: A(x)
            A(f"s_sub_u32 s{S_SPIN}, s{S_SPIN}, 1")
            A("s_waitcnt vmcnt(0)")
            A(f"s_cbranch_scc0 {name}L")
            A.label(name + "D")
        assert O.PSTEP >= O.ASTEP + 9 // O.APS
        chk("G_A", [AL + 1 + 2 * k for k in range(8)] + [GL_ + 1], ald, 4)
        for k in range(8):
            A(f"v_and_b32 v{AL+2*k+1}, 0xffff0000, v{AL+2*k}")
            A(f"v_lshlrev_b32 v{AL+2*k}, 16, v{AL+2*k}")
        for k in range(8):
            A(f"v_pk_mul_f32 {vr(T+2*k,2)}, {vr(AL+2*k,2)}, {vr(GL_,2)} op_sel:[0,0] op_sel_hi:[1,0]")
        A(f"v_sub_f32 v{GL_}, 1.0, v{GL_}")
        A(f"v_cvt_pk_bf16_f32 v{GL_}, v{GL_}, v{GL_}")
        A(f"v_lshlrev_b32 v{GL_}, 16, v{GL_}")
        A("s_waitcnt lgkmcnt(0)")
        for k in range(8):
            A(f"v_pk_add_f32 {vr(ACCB+2*k,2)}, {vr(ACCB+2*k,2)}, {vr(R+2*k,2)}")
        for k in range(8):
            A(f"v_pk_fma_f32 {vr(T+2*k,2)}, {vr(ACCB+2*k,2)}, {vr(GL_,2)}, {vr(T+2*k,2)} op_sel:[0,0,0] op_sel_hi:[1,0,1]")
        tsg(A, 3, "f")
        chk("G_P", [PR + 1 + 2 * k for k in range(8)], pld, 0)
        tsg(A, 4, "f")
        for k in range(8):
            A(f"v_and_b32 v{PR+2*k+1}, 0xffff0000, v{PR+2*k}")
            A(f"v_lshlrev_b32 v{PR+2*k}, 16, v{PR+2*k}")
        for k in range(8):
            A(f"v_pk_fma_f32 {vr(T+2*k,2)}, {vr(PR+2*k,2)}, {vr(GL_,2)}, {vr(T+2*k,2)} op_sel:[0,0,0] op_sel_hi:[1,0,1]")
        g2_out(A, T)
        tsg(A, 5, "f")
        return
    if O.TL2:
        if O.PSTEP >= 56:
            for x in pld: A(x)
        tsg(A, 2, "f")
        lwait(A, GX, 16, GT + 1, 10, sleep=0)
        for q in range(4):
            A(f"ds_read_b128 {vr(R+4*q,4)}, v{RX} offset:{q*1024}")
        A(f"ds_read_b32 v{GT+1}, v{GOWN} offset:32")
        for q in range(4):
            A(f"s_waitcnt lgkmcnt({4-q})")
            for k in (2*q, 2*q+1):
                A(f"v_pk_add_f32 {vr(ACCB+2*k,2)}, {vr(ACCB+2*k,2)}, {vr(R+2*k,2)}")
        lwait(A, GOWN, 32, GT + 1, 100, issued=True)
        tsg(A, 3, "f")
        A(f"ds_read_b32 v{GM}, v{GM+1}")
        for q in range(4):
            A(f"ds_read_b128 {vr(T+4*q,4)}, v{TV} offset:{q*1024}")
        A(f"s_mov_b32 s{S_SPIN}, {O.SPIN}")
        A.label("G_PL")
        A("s_waitcnt vmcnt(0)")
        for k in range(4):
            A(f"v_xor_b32 v{R+k}, v{VTOK}, v{PR+1+4*k}")
            A(f"v_xor_b32 v{R+4+k}, v{VTOK}, v{PR+3+4*k}")
        A(f"v_or3_b32 v{R}, v{R}, v{R+1}, v{R+2}")
        A(f"v_or3_b32 v{R+3}, v{R+3}, v{R+4}, v{R+5}")
        A(f"v_or3_b32 v{R}, v{R}, v{R+6}, v{R+7}")
        A(f"v_or_b32 v{R}, v{R}, v{R+3}")
        A(f"v_cmp_ne_u32 vcc, 0, v{R}")
        A("s_cbranch_vccz G_PD")
        for x in pld: A(x)
        A(f"s_sub_u32 s{S_SPIN}, s{S_SPIN}, 1")
        A("s_cbranch_scc0 G_PL")
        A("s_waitcnt vmcnt(0)")
        A.label("G_PD")
        tsg(A, 4, "f")
        for k in range(8):
            A(f"v_and_b32 v{PR+2*k+1}, 0xffff0000, v{PR+2*k}")
            A(f"v_lshlrev_b32 v{PR+2*k}, 16, v{PR+2*k}")
        for k in range(8):
            A(f"v_pk_add_f32 {vr(ACCB+2*k,2)}, {vr(ACCB+2*k,2)}, {vr(PR+2*k,2)}")
        A("s_waitcnt lgkmcnt(0)")
        for k in range(8):
            A(f"v_pk_fma_f32 {vr(T+2*k,2)}, {vr(ACCB+2*k,2)}, {vr(GM,2)}, {vr(T+2*k,2)} op_sel:[0,0,0] op_sel_hi:[1,0,1]")
        g2_out(A, T)
        tsg(A, 5, "f")
        return
    lwait(A, GOWN, 32, GT + 1, 100)
    A(f"ds_read_b32 v{GM}, v{GM+1}")
    for q in range(4):
        A(f"ds_read_b128 {vr(T+4*q,4)}, v{TV} offset:{q*1024}")
    lwait(A, GX, 16, GT + 1, 10, sleep=0)
    for q in range(4):
        A(f"ds_read_b128 {vr(R+4*q,4)}, v{RX} offset:{q*1024}")
    for k in range(8):
        A(f"v_pk_fma_f32 {vr(T+2*k,2)}, {vr(ACCB+2*k,2)}, {vr(GM,2)}, {vr(T+2*k,2)} op_sel:[0,0,0] op_sel_hi:[1,0,1]")
    for q in range(4):
        A(f"s_waitcnt lgkmcnt({3-q})")
        for k in (2*q, 2*q+1):
            A(f"v_pk_fma_f32 {vr(T+2*k,2)}, {vr(R+2*k,2)}, {vr(GM,2)}, {vr(T+2*k,2)} op_sel:[0,0,0] op_sel_hi:[1,0,1]")
    g2_out(A, T)
def g2_out(A, T):
    for k in range(8):
        A(f"v_cvt_pk_bf16_f32 v{PK+k}, v{T+2*k}, v{T+2*k+1}")
    A("s_nop 1")
    for h in range(2):
        A(f"v_permlane32_swap_b32 v{PK+4*h}, v{PK+4*h+2}")
        A(f"v_permlane32_swap_b32 v{PK+4*h+1}, v{PK+4*h+3}")
    A("s_nop 1")
    for h in range(2):
        A(f"buffer_store_dwordx4 {vr(PK+4*h,4)}, v{OV}, s[{S_OUT}:{S_OUT+3}], s{S_OO} offen offset:{32*h}")

def idle_tr_issue(A):
    A("v_lshrrev_b32 v8, 3, v1")
    A("v_and_b32 v9, 7, v1")
    A("v_lshlrev_b32 v10, 10, v8")
    A("v_lshl_add_u32 v10, v9, 4, v10")
    A(f"s_sub_u32 s64, s{S_J}, 28")
    A(f"s_lshl_b32 s64, s64, 2")
    A(f"s_add_u32 s64, s64, s{S_WAVE}")
    if O.UOWN:
        A(f"s_and_b32 s33, s64, 1")
        A(f"s_lshl_b32 s{S_T1}, s{S_XCD}, 1")
        A(f"s_add_u32 s33, s33, s{S_T1}")
        A(f"s_lshr_b32 s34, s64, 1")
    else:
        A(f"s_mov_b32 s33, s64")
        A(f"s_mov_b32 s34, s{S_XCD}")
    A(f"s_lshl_b32 s65, s33, 17")
    A(f"s_lshl_b32 s{S_T1}, s34, 7")
    A(f"s_add_u32 s65, s65, s{S_T1}")
    A(f"s_lshl_b32 s66, s{S_WAVE}, 15")
def idle_tr_dma(A):
    for i in range(16):
        A(f"s_add_u32 m0, s66, {i*1024}")
        A(f"s_add_u32 s{S_T1}, s65, {i*8192}")
        A(f"buffer_load_dwordx4 v10, s[{S_X}:{S_X+3}], s{S_T1} offen {O.UFL} lds")
def w2_touch(A, qs, dst):
    for q in qs:
        A(f"s_lshr_b32 s{S_T1}, s{S_XCD}, 1")
        A(f"s_add_u32 s{S_T1}, s{S_T1}, {q}")
        A(f"s_and_b32 s{S_T1}, s{S_T1}, 3")
        A(f"s_and_b32 s{S_T0}, s{S_XCD}, 1")
        A(f"s_lshl_b32 s{S_T0}, s{S_T0}, 2")
        A(f"s_add_u32 s{S_T1}, s{S_T1}, s{S_T0}")
        A(f"s_mul_i32 s{S_T1}, s{S_T1}, 229376")
        for i in range(2):
            A(f"buffer_load_dword v{dst}, v{24+i}, s[{S_W2}:{S_W2+3}], s{S_T1} offen {O.PFL2}")
def w2_touch_setup(A):
    A("s_mul_i32 s67, s64, 112")
    A("v_add_u32 v24, s67, v1")
    A("v_min_u32 v25, 47, v1")
    A("v_add3_u32 v25, v25, s67, 64")
    A("v_lshlrev_b32 v24, 7, v24")
    A("v_lshlrev_b32 v25, 7, v25")
def idle_tr_finish(A, extra=0):
    R = 128
    A("v_lshrrev_b32 v11, 4, v1")
    A("v_bfe_u32 v12, v1, 2, 2")
    A("v_lshl_add_u32 v12, v11, 3, v12")
    A("v_lshlrev_b32 v12, 7, v12")
    A("v_and_b32 v13, 3, v1")
    A("v_lshl_add_u32 v12, v13, 3, v12")
    A(f"v_add_u32 v12, s66, v12")
    A("v_bfe_u32 v13, v1, 1, 3")
    A("v_lshlrev_b32 v13, 13, v13")
    A("v_and_b32 v14, 1, v1")
    A("v_lshl_add_u32 v13, v14, 6, v13")
    A("v_lshl_add_u32 v16, v11, 4, v13")
    A(f"s_lshl_b32 s67, s34, 18")
    A(f"s_lshl_b32 s{S_T1}, s33, 9")
    A(f"s_add_u32 s67, s67, s{S_T1}")
    A(f"s_add_u32 s67, s67, {WS_UT}")
    for p in range(4):
        Rk = R + 16 * p
        A(f"s_waitcnt vmcnt({12+extra})")
        for a in range(4):
            for x in range(2):
                A(f"ds_read_b64_tr_b16 {vr(Rk+4*a+2*x,2)}, v12 offset:{p*4096+x*512+a*32}")
        for a in range(4):
            A(f"s_waitcnt lgkmcnt({6-2*a})")
            A(f"s_add_u32 s{S_T1}, s67, {a*65536}")
            A(f"buffer_store_dwordx4 {vr(Rk+4*a,4)}, v16, s[{S_WS}:{S_WS+3}], s{S_T1} offen offset:{p*128} sc1")
def ut2(A, part=None):
    R = 128
    if part == 1:
        for i in range(8):
            A(f"s_waitcnt vmcnt({7-i})")
            A(f"ds_write_b128 v16, {vr(R+4*i,4)} offset:{i*512}")
        return
    A(f"s_lshl_b32 s{Q_T0}, s{Q_PAIR}, 13")
    A(f"s_add_u32 s{Q_T0}, s{Q_T0}, {WS_UT}")
    A(f"s_add_u32 s{Q_T1}, s{Q_T0}, 4096")
    A("v_lshlrev_b32 v16, 4, v1")
    for i in range(8):
        A(f"buffer_load_dwordx4 {vr(R+4*i,4)}, v16, s[{S_WS}:{S_WS+3}], s{Q_T0+i//4} offen offset:{(i%4)*1024} sc1")
    A("v_bfe_u32 v16, v1, 2, 1")
    A(f"v_mul_u32_u24 v16, {U_STRIDE}, v16")
    A("v_lshrrev_b32 v17, 3, v1")
    A("v_lshl_add_u32 v16, v17, 6, v16")
    A("v_and_b32 v17, 3, v1")
    A("v_lshl_add_u32 v16, v17, 4, v16")
    A(f"v_add_u32 v16, {LDS_U+64}, v16")
    if part == 0: return
    for i in range(8):
        A(f"s_waitcnt vmcnt({7-i})")
        A(f"ds_write_b128 v16, {vr(R+4*i,4)} offset:{i*512}")
def idle_gate_issue(A):
    R = 64
    A(f"global_load_dwordx4 {vr(44,4)}, v{HV}, s[{P_GW}:{P_GW+1}]")
    A(f"s_lshl_b32 s68, s{S_XCD}, 4")
    A(f"s_add_u32 s68, s68, s64")
    A(f"s_lshl_b32 s65, s68, 14")
    for i in range(16):
        if i % 4 == 0: A(f"s_add_u32 s{S_T1}, s65, {i*1024}")
        A(f"buffer_load_dwordx4 {vr(R+4*i,4)}, v{HV}, s[{S_X}:{S_X+3}], s{S_T1} offen offset:{(i%4)*1024}")
def idle_gate_finish(A, extra=0):
    R = 64; S = 2
    A(f"s_waitcnt vmcnt({extra})")
    for k in range(4):
        for i in range(16):
            c = "0" if k == 0 else f"v{S+i}"
            A(f"v_dot2_f32_bf16 v{S+i}, v{R+4*i+k}, v{44+k}, {c}")
    for sh in ("row_shr:1", "row_shr:2", "row_shr:4", "row_shr:8"):
        for i in range(16):
            A(f"v_add_f32_dpp v{S+i}, v{S+i}, v{S+i} {sh} row_mask:0xf bank_mask:0xf bound_ctrl:1")
    for sh in ("row_bcast:15 row_mask:0xa", "row_bcast:31 row_mask:0xc"):
        for i in range(16):
            A(f"v_add_f32_dpp v{S+i}, v{S+i}, v{S+i} {sh} bank_mask:0xf")
    A("v_mov_b32 v20, 0")
    for h in range(2):
        for i in range(8): A(f"v_readlane_b32 s{38+i}, v{S+8*h+i}, 63")
        A("s_nop 3")
        for i in range(8): A(f"v_writelane_b32 v20, s{38+i}, {8*h+i}")
    A("v_cvt_pk_bf16_f32 v20, v20, v20")
    A("v_lshlrev_b32 v20, 16, v20")
    A("v_mul_f32 v20, 0xbfb8aa3b, v20")
    A("v_exp_f32 v20, v20")
    A("s_nop 0")
    A("v_add_f32 v20, 1.0, v20")
    A("v_rcp_f32 v20, v20")
    A("s_nop 0")
    A("v_cvt_pk_bf16_f32 v22, v20, v20")
    A("v_lshlrev_b32 v22, 16, v22")
    if O.TL3: A(f"v_mov_b32 v23, v{VTOK}")
    else:
        A("v_sub_f32 v23, 1.0, v22")
        A("v_cvt_pk_bf16_f32 v23, v23, v23")
        A("v_lshlrev_b32 v23, 16, v23")
    A("v_lshlrev_b32 v21, 3, v1")
    A(f"s_lshl_b32 s65, s68, 7")
    A(f"s_add_u32 s65, s65, {WS_G}")
    A("s_mov_b64 exec, 0xffff")
    A(f"buffer_store_dwordx2 v[22:23], v21, s[{S_WS}:{S_WS+3}], s65 offen sc1")
    A("s_mov_b64 exec, -1")

LX, LW, L2D, LSA, LGD, LV = 16, 56, 60, 62, 63, 20
K_XO, K_WO, K_M0, K_C0, K_W2, K_M2, K_T0, K_T1 = 76, 77, 78, 79, 80, 81, 82, 83
def loader_setup(A):
    lw = Q_NH
    A(f"s_and_b32 s{K_XO}, s{S_J}, 3")
    A(f"s_and_b32 s{K_T0}, s{S_XCD}, 6")
    A(f"s_lshl_b32 s{K_T0}, s{K_T0}, 1")
    A(f"s_add_u32 s{K_XO}, s{K_XO}, s{K_T0}")
    A(f"s_lshl_b32 s{K_XO}, s{K_XO}, 1")
    A(f"s_add_u32 s{K_XO}, s{K_XO}, s{lw}")
    A(f"s_and_b32 s{K_T0}, s{S_XCD}, 1")
    if O.HAB:
        A(f"s_xor_b32 s{K_XO}, s{K_XO}, s{K_T0}")
        A(f"s_xor_b32 s{K_XO}, s{K_XO}, 1")
    A(f"s_lshl_b32 s{K_XO}, s{K_XO}, 16")
    A(f"s_mul_i32 s{K_WO}, s{K_T0}, 7")
    A(f"s_lshr_b32 s{K_T1}, s{S_J}, 2")
    A(f"s_add_u32 s{K_WO}, s{K_WO}, s{K_T1}")
    A(f"s_lshl_b32 s{K_WO}, s{K_WO}, 8")
    A(f"s_lshl_b32 s{K_W2}, s{K_T1}, 7")
    A(f"s_mul_i32 s{K_T1}, s{lw}, {32*2*F}")
    A(f"s_add_u32 s{K_WO}, s{K_WO}, s{K_T1}")
    A(f"s_lshl_b32 s{K_M0}, s{lw}, 13")
    A(f"s_mul_i32 s{K_T0}, s{K_T0}, {56*16384}")
    A(f"s_add_u32 s{K_W2}, s{K_W2}, s{K_T0}")
    A(f"s_mul_i32 s{K_T0}, s{lw}, {7*16384}")
    A(f"s_add_u32 s{K_W2}, s{K_W2}, s{K_T0}")
    A(f"s_mul_i32 s{K_M2}, s{lw}, {7*2048}")
    rot_c0(A, K_C0, K_T0)
    A("v_lshrrev_b32 v34, 3, v1")
    A("v_and_b32 v35, 7, v1")
    A("v_lshrrev_b32 v36, 4, v1")
    A("v_xor_b32 v37, v35, v36")
    A("v_xor_b32 v38, 4, v37")
    A("v_lshlrev_b32 v34, 10, v34")
    A(f"v_lshl_add_u32 v{LX}, v37, 4, v34")
    A(f"v_lshl_add_u32 v{LX+1}, v38, 4, v34")
    A(f"v_add_u32 v{LX+1}, {8192-1024}, v{LX+1}")
    A(f"v_add_u32 v{LX+2}, {2*(8192-1024)}, v{LX}")
    A(f"v_add_u32 v{LX+3}, {2*(8192-1024)}, v{LX+1}")
    A("v_and_b32 v37, 1, v36")
    A("v_lshlrev_b32 v37, 2, v37")
    A("v_xor_b32 v37, v35, v37")
    A(f"v_lshl_add_u32 v{L2D}, v37, 4, v34")
    A(f"v_add_u32 v{L2D+1}, {8192-1024}, v{L2D}")
    A("v_and_b32 v35, 15, v1")
    A("v_lshlrev_b32 v37, 2, v36")
    A("v_xor_b32 v35, v35, v37")
    A(f"v_mul_u32_u24 v37, {2*F}, v36")
    A(f"v_lshl_add_u32 v{LW}, v35, 4, v37")
    for i in range(1, 4):
        A(f"v_add_u32 v{LW+i}, {i*(4*2*F-1024)}, v{LW}")
    A(f"s_lshl_b32 s{K_T0}, s{lw}, 3")
    A(f"s_add_u32 s{K_T0}, s{K_T0}, {L_SL}")
    A(f"s_cmp_eq_u32 s{Q_C}, 1")
    A(f"s_cselect_b32 s{K_T0}, s{K_T0}, {L_DUMMY}")
    A(f"v_mov_b32 v{LSA}, s{K_T0}")
    A(f"v_subrev_u32 v{LGD}, {L_SB-L_GD}, v{S_FRD}")
def l_chunk(A, cc):
    slot = cc % 4
    if "d" in O.X2: return
    A(f"s_add_u32 s{K_T0}, s{K_C0}, {cc}"); A(f"s_and_b32 s{K_T0}, s{K_T0}, 7")
    A(f"s_lshl_b32 s{K_T1}, s{K_T0}, 7"); A(f"s_add_u32 s{K_T1}, s{K_T1}, s{K_XO}")
    A(f"s_mul_i32 s{K_T0}, s{K_T0}, {64*2*F}"); A(f"s_add_u32 s{K_T0}, s{K_T0}, s{K_WO}")
    for q in range(2):
        A(f"s_add_u32 m0, s{K_M0}, {slot*32768+q*4096}")
        if q: A(f"s_add_u32 s{K_T1}, s{K_T1}, 32768")
        else: A("s_nop 0")
        for i in range(4):
            if "x" in O.X2: continue
            A(f"buffer_load_dwordx4 v{LX+i}, s[{S_X}:{S_X+3}], s{K_T1} offen offset:{i*1024} {O.XFL} lds")
        A(f"s_add_u32 m0, s{K_M0}, {slot*32768+16384+q*4096}")
        if q: A(f"s_add_u32 s{K_T0}, s{K_T0}, {16*2*F}")
        else: A("s_nop 0")
        for i in range(4):
            if "w" in O.X2: continue
            A(f"buffer_load_dwordx4 v{LW+i}, s[{S_W1}:{S_W1+3}], s{K_T0} offen offset:{i*1024} {O.W1FL} lds")
def l_pub(A, n, val):
    A(f"v_mov_b32 v{LV}, {val}"); A(f"v_mov_b32 v{LV+1}, {val}")
    A(f"s_waitcnt vmcnt({n})")
    A(f"ds_write_b64 v{LSA}, {vr(LV,2)}")
def loader(A, fin):
    A(f"s_cmp_ge_u32 s{S_J}, 28")
    A("s_cbranch_scc1 S_LW1")
    if O.LOOK == 3: l_chunk(A, 3)
    if O.LOOK == 8:
        A.label("S_LW1")
        fin()
    for c in range(max(4, O.LOOK), 8):
        lwait(A, LGD, 0, 31, c - 3)
        l_chunk(A, c)
        if c > O.LOOK: l_pub(A, 0 if "d" in O.X2 else 8 if ("x" in O.X2 or "w" in O.X2) else 16, c)
        if c == 7 and O.TOUCH:
            A(f"s_lshr_b32 s{K_T0}, s{K_XO}, 16")
            A(f"s_mul_i32 s{K_T0}, s{K_T0}, 224")
            A(f"s_and_b32 s{K_T1}, s{S_XCD}, 1")
            A(f"s_mul_i32 s{K_T1}, s{K_T1}, 56")
            A(f"s_add_u32 s{K_T0}, s{K_T0}, s{K_T1}")
            A(f"s_lshr_b32 s{K_T1}, s{S_J}, 2")
            A(f"s_lshl_b32 s{K_T1}, s{K_T1}, 3")
            A(f"s_add_u32 s{K_T0}, s{K_T0}, s{K_T1}")
            A(f"s_lshl_b32 s{K_T0}, s{K_T0}, 10")
            A(f"v_lshlrev_b32 v{LX}, 7, v1")
            A(f"s_add_u32 s{K_T1}, s{K_T0}, {112*1024}")
            A(f"buffer_load_dword v{LX+1}, v{LX}, s[{S_WS}:{S_WS+3}], s{K_T0} offen {O.TFL}")
            A(f"buffer_load_dword v{LX+2}, v{LX}, s[{S_WS}:{S_WS+3}], s{K_T1} offen {O.TFL}")
        if c == O.LFIN:
            A.label("S_LW1")
            fin()
            A(f"s_cmp_ge_u32 s{S_J}, 28")
            A("s_cbranch_scc1 S_LW2")
    A.label("S_LW2")
    if "v" in O.X2: l_pub(A, 0, 8)
    for s in range(4):
        lwait(A, LGD, 0, 31, 5 + s if "v" not in O.X2 else 8)
        if s == 0 and "v" in O.X2: pass
        for k in range(7):
            A(f"s_add_u32 m0, s{K_M2}, {s*32768+4096+k*2048}")
            A(f"s_add_u32 s{K_T0}, s{K_W2}, {(14*s+k)*16384}")
            A(f"buffer_load_dwordx4 v{L2D}, s[{S_W2}:{S_W2+3}], s{K_T0} offen {O.W2FL} lds")
            A(f"buffer_load_dwordx4 v{L2D+1}, s[{S_W2}:{S_W2+3}], s{K_T0} offen offset:1024 {O.W2FL} lds")
        if s == 0: l_pub(A, 16 if O.TOUCH else 14, 8)

TAB2 = LDS_SSM + 17408
S_PASS, S_UOK = 33, 34
U_SO, U_M0, UF, UD = 28, 29, 12, 13
def u_dma(A):
    for i in range(4):
        A(f"s_add_u32 m0, s{U_M0}, {i*1024}")
        A(f"s_add_u32 s{Q_T1}, s{U_SO}, {i*2048}")
        A(f"buffer_load_dwordx4 v{UD}, s[{S_WS}:{S_WS+3}], s{Q_T1} offen sc1 lds")
def u_setup(A):
    A(f"s_lshl_b32 s{Q_T0}, s{S_XCD}, {4+FS}")
    A(f"s_add_u32 s{Q_T0}, s{Q_T0}, {F_UT}")
    A("v_and_b32 v8, 15, v1")
    A(f"v_lshl_add_u32 v{UF}, v8, {FS}, s{Q_T0}")
    A(f"v_lshrrev_b32 v{UD}, 2, v1")
    A(f"v_lshlrev_b32 v{UD}, 3, v{UD}")
    A("v_and_b32 v8, 3, v1")
    A(f"v_add_lshl_u32 v{UD}, v{UD}, v8, 4")
    A(f"s_lshl_b32 s{U_SO}, s{Q_PAIR}, 7")
    A(f"s_add_u32 s{U_SO}, s{U_SO}, s{Q_NH}")
    A(f"s_lshl_b32 s{U_SO}, s{U_SO}, 6")
    A(f"s_add_u32 s{U_SO}, s{U_SO}, {WS_UT}")
    A(f"s_mul_i32 s{U_M0}, s{Q_NH}, {U_STRIDE}")
    A(f"s_add_u32 s{U_M0}, s{U_M0}, {LDS_U+64}")
    A(f"s_mov_b32 s{S_UOK}, 0")
def kgen2(A, later, hookA):
    w = S_WAVE; KC = Q_NH
    VW, VB, VA = 26, 27, 28
    E1, E8, E256, C0, E2, E4 = 128, 130, 132, 134, 136, 138
    LO = 140; E32 = 156; G = 160; CV = 200
    A(f"s_mul_i32 s{Q_TAB}, s{w}, {TAB_STRIDE}")
    A(f"s_add_u32 s{Q_TAB}, s{Q_TAB}, {TAB2}")
    A(f"v_lshl_add_u32 v{VW}, v1, 2, s{Q_TAB}")
    A("v_and_b32 v8, 15, v1")
    A("v_lshrrev_b32 v9, 5, v1")
    A(f"v_lshl_add_u32 v9, v9, 4, s{Q_TAB}")
    A("v_mov_b32 v10, 272")
    A(f"v_mad_u32_u24 v{VB}, v8, v10, v9")
    A("v_and_b32 v11, 7, v1")
    A("v_lshlrev_b32 v11, 2, v11")
    A("v_mov_b32 v12, 0xcbaaa988")
    A("v_lshrrev_b32 v11, v11, v12")
    A("v_and_b32 v11, 15, v11")
    A("v_and_b32 v12, 24, v1")
    A("v_cmp_eq_u32 vcc, 8, v12")
    A(f"s_mov_b32 s{Q_EX}, 0x0000ffff")
    A(f"s_mov_b32 s{Q_EX+1}, 0x0000ffff")
    A(f"s_mov_b32 s{Q_EX+2}, 0xffff0000")
    A(f"s_mov_b32 s{Q_EX+3}, 0xffff0000")
    A("v_cndmask_b32 v11, v8, v11, vcc")
    A(f"v_mad_u32_u24 v{VA}, v11, v10, v9")
    srd(A, S_WS, P_WS, WS_BYTES)
    A(f"v_mov_b32 v{LSA}, {L_DUMMY}")
    for k in range(16): A(f"v_mov_b32 v{KD+k}, 0")
    A(f"s_mov_b32 s{S_PASS}, 16")
    A("s_waitcnt lgkmcnt(0)")
    A(f"s_lshl_b32 s{Q_T0}, s{KC}, 4")
    A(f"s_lshr_b32 s{Q_LDT}, s{Q_LDT}, s{Q_T0}")
    A(f"s_lshl_b32 s{Q_LDT}, s{Q_LDT}, 16")
    A(f"s_lshr_b32 s{Q_DSK}, s{Q_DSK}, s{Q_T0}")
    A(f"s_lshl_b32 s{Q_DSK}, s{Q_DSK}, 16")
    A(f"v_mov_b32 v6, {LOG2E}")
    A(f"v_mul_f32 v7, s{Q_LDT}, v6")
    A("v_exp_f32 v7, v7")
    hookA()
    A("v_cvt_pk_bf16_f32 v7, v7, v7")
    A("v_lshlrev_b32 v7, 16, v7")
    A(f"s_waitcnt vmcnt({later})")
    tss(A, 2, "ak")
    A.label("KG_LOOP")
    for i in range(4): A(f"v_lshlrev_b32 v{2+i}, s{S_PASS}, v{14+i}")
    for i in range(4): A(f"v_and_b32 v{2+i}, 0xffff0000, v{2+i}")
    A("v_mul_f32 v2, v6, v2")
    A("v_exp_f32 v2, v2")
    A("v_add_f32 v8, v7, v7")
    A("v_cvt_pk_bf16_f32 v2, v2, v2")
    A("v_lshlrev_b32 v2, 16, v2")
    A("v_mul_f32 v2, v2, v7")
    A("v_mul_f32 v3, v3, v7")
    A("v_mul_f32 v2, 0xbfb8aa3b, v2")
    A(f"v_mul_f32 v3, {INV2PI}, v3")
    A(f"v_mul_f32 v{C0}, v4, v8")
    A(f"v_mul_f32 v{C0+1}, v5, v8")
    A("v_mul_f32 v10, 0x41000000, v2")
    A("v_mul_f32 v11, 0x41000000, v3")
    A("v_mul_f32 v12, 0x43800000, v2")
    A("v_mul_f32 v13, 0x43800000, v3")
    for r in (11, 3, 13): A(f"v_fract_f32 v{r}, v{r}")
    for (m, f, e) in ((10, 11, E8), (2, 3, E1), (12, 13, E256)):
        A(f"v_exp_f32 v{m}, v{m}")
        A(f"v_cos_f32 v{e}, v{f}")
        A(f"v_sin_f32 v{e+1}, v{f}")
    for (m, e) in ((10, E8), (2, E1), (12, E256)):
        A(f"v_pk_mul_f32 {vr(e,2)}, {vr(e,2)}, {vr(m,2)} op_sel:[0,0] op_sel_hi:[1,0]")
    hook = None
    kgen_tables2(A, hook, VW, VB, VA, E1, E8, E256, C0, E2, E4, LO, E32, G, CV)
    for ks in range(8):
        A(f"s_waitcnt lgkmcnt({7-ks})")
        A(f"v_mfma_f32_32x32x16_bf16 {vr(KD,16)}, {vr(KA+4*ks,4)}, {vr(KB+4*ks,4)}, {vr(KD,16)}")
    A(f"s_cmp_eq_u32 s{S_PASS}, 0")
    A("s_cbranch_scc1 KG_DONE")
    tss(A, 3, "k")
    A(f"s_mov_b32 s{S_PASS}, 0")
    A("s_branch KG_LOOP")
    A.label("KG_DONE")
    tss(A, 4, "k"); tss(A, 3, "a")
    token_get(A, 8, STOK)
    X = 64
    A(f"s_mul_i32 s{Q_T0}, s{KC}, {K_STRIDE}")
    A(f"s_add_u32 s{Q_T0}, s{Q_T0}, {LDS_K}")
    A("v_and_b32 v8, 31, v1")
    A("v_lshrrev_b32 v9, 5, v1")
    A(f"v_lshl_add_u32 v8, v8, 4, s{Q_T0}")
    A(f"v_lshl_add_u32 v10, v1, 3, s{Q_T0}")
    A("v_mov_b32 v12, 0"); A("v_mov_b32 v13, 0")
    A("ds_write_b64 v10, v[12:13]")
    A("v_and_b32 v11, 15, v1")
    A(f"s_mul_i32 s{Q_T0}, s{KC}, {U_STRIDE}")
    A(f"s_add_u32 s{Q_T0}, s{Q_T0}, {LDS_U}")
    A(f"v_lshl_add_u32 v11, v11, 2, s{Q_T0}")
    A("ds_write_b32 v11, v12")
    A("v_cmp_eq_u32 vcc, 0, v1")
    A(f"v_mov_b32 v11, s{Q_DSK}")
    A("v_lshl_add_u32 v14, v9, 3, v8")
    A("v_lshl_add_u32 v15, v9, 9, v8")
    A("v_cndmask_b32 v11, 0, v11, vcc")
    A("v_lshl_add_u32 v16, v9, 10, v8")
    A("s_nop 4")
    A(f"v_add_f32 v{KD}, v{KD}, v11")
    A("v_and_b32 v11, 1, v1")
    A("v_cmp_eq_u32 vcc, 1, v11")
    for k in range(4): A(f"v_cvt_pk_bf16_f32 v{X+k}, v{KD+2*k}, v{KD+2*k+1}")
    a, b, c = KD + 8, KD + 9, KD + 10
    for k, (p, q) in enumerate(((a, a), (a, b), (b, b), (c, c))): A(f"v_cvt_pk_bf16_f32 v{X+4+k}, v{p}, v{q}")
    A(f"ds_write_b64 v14, {vr(X,2)} offset:448")
    A(f"ds_write_b64 v14, {vr(X+2,2)} offset:960")
    A(f"ds_write_b128 v15, {vr(X+4,4)} offset:1472")
    X = 72
    for k in range(2):
        a, b = KD + 12 + 2 * k, KD + 13 + 2 * k
        A(f"v_cndmask_b32 v11, v{a}, v{b}, vcc")
        A(f"v_cvt_pk_bf16_f32 v{X+4*k}, v{a}, v{a}")
        A(f"v_cvt_pk_bf16_f32 v{X+4*k+1}, v{a}, v{a}")
        A(f"v_cvt_pk_bf16_f32 v{X+4*k+2}, v11, v{b}")
        A(f"v_cvt_pk_bf16_f32 v{X+4*k+3}, v{b}, v{b}")
        A(f"ds_write_b128 v16, {vr(X+4*k,4)} offset:{2496+512*k}")

def loader2(A):
    A(f"s_cmp_ge_u32 s{S_J}, 28")
    A("s_cbranch_scc1 S_LW2")
    for c in range(O.LOOK, 8):
        if c >= 4: lwait(A, LGD, 0, 31, c - 3, sleep=O.LSLP)
        l_chunk(A, c)
        if c > O.LOOK: l_pub(A, 16, c)
        if c in (3, 5, 7): tss(A, 2 + (c - 3) // 2, "k")
    A.label("S_LW2")
    u_setup(A)
    token_get(A, 8, STOK)
    for s in range(4):
        lwait(A, LGD, 0, 31, 5 + s, sleep=O.LSLP)
        if s < 3:
            if s: A(f"s_cmp_eq_u32 s{S_UOK}, 1"); A(f"s_cbranch_scc1 S_U{s}")
            A(f"buffer_load_dword v9, v{UF}, s[{S_WS}:{S_WS+3}], 0 offen sc1")
            if s: A.label(f"S_U{s}")
        for k in range(7):
            A(f"s_add_u32 m0, s{K_M2}, {s*32768+4096+k*2048}")
            A(f"s_add_u32 s{K_T0}, s{K_W2}, {(14*s+k)*16384}")
            A(f"buffer_load_dwordx4 v{L2D}, s[{S_W2}:{S_W2+3}], s{K_T0} offen {O.W2FL} lds")
            A(f"buffer_load_dwordx4 v{L2D+1}, s[{S_W2}:{S_W2+3}], s{K_T0} offen offset:1024 {O.W2FL} lds")
        if s == 0: l_pub(A, 15, 8)
        if s < 3:
            if s: A(f"s_cmp_eq_u32 s{S_UOK}, 1"); A(f"s_cbranch_scc1 S_V{s}")
            A("s_waitcnt vmcnt(14)")
            A(f"v_cmp_ne_u32 vcc, v{STOK}, v9")
            A(f"s_cbranch_vccnz S_V{s}")
            u_dma(A)
            A(f"s_mov_b32 s{S_UOK}, 1")
            A.label(f"S_V{s}")
    tss(A, 5, "k")
    A("s_waitcnt vmcnt(14)")
    A(f"s_cmp_eq_u32 s{S_UOK}, 1"); A(f"s_cbranch_scc1 S_CV")
    poll(A, UF, 9, STOK, "PU")
    u_dma(A)
    A("s_waitcnt vmcnt(0)")

def conv_final3(A):
    w = S_WAVE
    A("v_bfe_u32 v8, v1, 3, 1")
    A("v_bfe_u32 v9, v1, 2, 1")
    A("v_and_b32 v10, 3, v1")
    A(f"v_lshl_add_u32 v8, v8, 2, s{w}")
    A("v_lshl_add_u32 v11, v8, 2, v10")
    A("v_lshlrev_b32 v11, 2, v11")
    A("v_lshl_add_u32 v12, v9, 7, v11")
    A("v_mul_u32_u24 v13, 144, v9")
    A("v_add_u32 v13, v13, v11")
    A(f"v_add_u32 v12, {LDS_HEAD}, v12")
    A(f"v_add_u32 v13, {LDS_CARR}, v13")
    A("v_lshl_add_u32 v8, v8, 8, v10")
    A("v_lshl_add_u32 v8, v8, 1, v9")
    A("v_lshlrev_b32 v8, 1, v8")
    A(f"v_add_u32 v8, {LDS_STG}, v8")
    A(f"s_lshl_b32 s{Q_T1}, s{w}, 10")
    A(f"s_add_u32 s{Q_T0}, s{Q_T1}, {LDS_STG}")
    A(f"v_lshl_add_u32 v9, v1, 3, s{Q_T0}")
    A("v_lshlrev_b32 v16, 4, v1")
    A(f"s_lshl_b32 s{Q_T0}, s{Q_PAIR}, 13")
    A(f"s_add_u32 s{Q_T0}, s{Q_T0}, s{Q_T1}")
    A(f"s_lshl_b32 s{Q_T0}, s{Q_T0}, 1")
    A(f"s_add_u32 s{Q_T0}, s{Q_T0}, {WS_A2}")
    A(f"s_add_u32 s{Q_T1}, s{Q_T0}, 8192")
    for k in range(4): A(f"v_mov_b32 v{67+4*k}, v{STOK}")
    s_barrier(A, 3)
    A("ds_read_b32 v12, v12")
    A("ds_read_b32 v13, v13")
    A("s_waitcnt lgkmcnt(0)")
    A("v_add_f32 v12, v12, v13")
    A("v_cvt_pk_bf16_f32 v12, v12, v12")
    A("ds_write_b16 v8, v12")
    for k in range(4): A(f"ds_read_b64 {vr(64+4*k,2)}, v9 offset:{(k//2)*4096+(k%2)*512}")
    for k in range(4):
        A(f"s_waitcnt lgkmcnt({3-k})")
        A(f"v_mov_b32 v{66+4*k}, v{65+4*k}")
        A(f"v_mov_b32 v{65+4*k}, v{STOK}")
        A(f"buffer_store_dwordx4 {vr(64+4*k,4)}, v16, s[{S_WS}:{S_WS+3}], s{Q_T0+k//2} offen offset:{(k%2)*1024} sc1")
def s_tail3(A):
    w = S_WAVE; SO_P = 76
    tss(A, 5, "a"); tss(A, 2, "t")
    A(f"s_lshl_b32 s{Q_T0}, s2, 2")
    A(f"s_add_u32 s{Q_T0}, s{Q_T0}, s{w}")
    A(f"s_lshl_b32 s{SO_P}, s{Q_T0}, 12")
    A(f"s_add_u32 s{SO_P}, s{SO_P}, {WS_P}")
    A(f"s_lshl_b32 s{Q_T0}, s{Q_NH}, 15")
    A(f"s_lshl_b32 s{Q_T1}, s{Q_C}, 11")
    A(f"s_add_u32 s{Q_T0}, s{Q_T0}, s{Q_T1}")
    A(f"v_add_u32 v17, s{Q_T0}, v16")
    A(f"v_xor_b32 v15, {0x10000+2048}, v17")
    A(f"s_lshl_b32 s{Q_T0}, s{Q_NH}, 2")
    A(f"s_add_u32 s{Q_T0}, s{Q_T0}, {L_GD}")
    A("v_and_b32 v5, 1, v1")
    A(f"v_lshl_add_u32 v5, v5, 3, s{Q_T0}")
    for k in range(8): A(f"v_mov_b32 v{97+2*k}, v{STOK}")
    lwait(A, 5, 0, 31, 9, sleep=1 - O.RSLP)
    tss(A, 3, "t")
    X = 112
    for h in range(2):
        A(f"ds_read_b128 {vr(X+4*h,4)}, v17 offset:{1024*h}")
        A(f"ds_read_b128 {vr(X+8+4*h,4)}, v15 offset:{1024*h}")
    A(f"v_mov_b32 v{S_FT}, 50")
    for h in range(2):
        A(f"s_waitcnt lgkmcnt({2-2*h})")
        if h == 1: A(f"ds_write_b32 v{S_FOWN}, v{S_FT}")
        for k in range(4):
            r = X + 4 * h + k
            A(f"v_lshlrev_b32 v80, 16, v{r}")
            A(f"v_lshlrev_b32 v81, 16, v{r+8}")
            A(f"v_and_b32 v82, 0xffff0000, v{r}")
            A(f"v_and_b32 v83, 0xffff0000, v{r+8}")
            A("v_add_f32 v80, v80, v81")
            A("v_add_f32 v82, v82, v83")
            A(f"v_cvt_pk_bf16_f32 v{96+8*h+2*k}, v80, v82")
            if k % 2 == 1:
                q = 2 * h + k // 2
                A(f"buffer_store_dwordx4 {vr(96+4*q,4)}, v16, s[{S_WS}:{S_WS+3}], s{SO_P} offen offset:{1024*q} {O.PST}")
    tss(A, 4, "t")
    A("s_waitcnt lgkmcnt(0)")

def s_tail(A):
    w = S_WAVE
    RT, CT, TT, DB = Q_EX, Q_EX + 1, Q_EX + 2, Q_EX + 3
    PK, AP, G, PP, T = 128, 136, 144, 148, 160
    SO_P, SO_PF, SO_A, SO_O = 76, 77, 78, 79
    A(f"s_lshl_b32 s80, s{Q_PAIR}, {FS}")
    A(f"s_lshl_b32 s{Q_T0}, s{w}, {8+FS}")
    A(f"s_add_u32 s80, s80, s{Q_T0}")
    A(f"s_add_u32 s80, s80, {F_A}")
    A(f"s_and_b32 s{RT}, s{S_XCD}, 6")
    A(f"s_lshl_b32 s{RT}, s{RT}, 1")
    A(f"s_and_b32 s{Q_T0}, s{S_J}, 3")
    A(f"s_add_u32 s{RT}, s{RT}, s{Q_T0}")
    A(f"s_lshl_b32 s{RT}, s{RT}, 1")
    A(f"s_and_b32 s{Q_T0}, s{S_XCD}, 1")
    A(f"s_add_u32 s{RT}, s{RT}, s{Q_T0}")
    A(f"s_lshr_b32 s{CT}, s{S_J}, 2")
    A(f"s_lshl_b32 s{TT}, s{RT}, 1")
    A(f"s_add_u32 s{TT}, s{TT}, s{Q_NH}")
    A(f"s_lshl_b32 s{DB}, s{CT}, 1")
    A(f"s_add_u32 s{DB}, s{DB}, s{Q_C}")
    A(f"s_bfe_u32 s{Q_T0}, s{RT}, 0x20002")
    A(f"s_lshl_b32 s{Q_T0}, s{Q_T0}, {8+FS}")
    A(f"s_lshl_b32 s{Q_T1}, s{DB}, {4+FS}")
    A(f"s_add_u32 s{Q_T0}, s{Q_T0}, s{Q_T1}")
    A(f"s_add_u32 s{Q_T0}, s{Q_T0}, {F_A}")
    A(f"v_lshl_add_u32 v2, v1, {FS}, s{Q_T0}")
    A(f"s_lshl_b32 s{Q_T0}, s{TT}, {1+FS}")
    A(f"s_add_u32 s{Q_T0}, s{Q_T0}, {F_G}")
    A("v_and_b32 v3, 1, v1")
    A(f"v_lshl_add_u32 v3, v3, {FS}, s{Q_T0}")
    A("v_cmp_gt_u32 vcc, 16, v1")
    A("v_and_b32 v10, 31, v1")
    A("v_lshrrev_b32 v11, 5, v1")
    A("v_cndmask_b32 v2, v3, v2, vcc")
    A("v_lshlrev_b32 v4, 14, v11")
    A("v_lshl_add_u32 v12, v10, 2, v4")
    A("v_add_u32 v13, 8192, v12")
    A(f"s_lshl_b32 s{Q_T0}, s{TT}, 8")
    A(f"s_add_u32 s{Q_T0}, s{Q_T0}, {WS_G}")
    A(f"v_lshl_add_u32 v14, v10, 3, s{Q_T0}")
    A(f"s_lshl_b32 s{SO_A}, s{DB}, 17")
    A(f"s_lshl_b32 s{Q_T1}, s{TT}, 7")
    A(f"s_add_u32 s{SO_A}, s{SO_A}, s{Q_T1}")
    A(f"s_add_u32 s{SO_A}, s{SO_A}, {WS_A}")
    A("v_lshlrev_b32 v16, 4, v1")
    A(f"s_lshl_b32 s{Q_T0}, s{w}, 12")
    A(f"s_add_u32 s{Q_T0}, s{Q_T0}, {L_T}")
    A(f"v_add_u32 v18, s{Q_T0}, v16")
    A(f"s_lshl_b32 s{Q_T0}, s{w}, 8")
    A(f"s_add_u32 s{Q_T0}, s{Q_T0}, {L_T+16384}")
    A(f"v_lshl_add_u32 v19, v1, 2, s{Q_T0}")
    A(f"s_lshl_b32 s{Q_T0}, s2, 2")
    A(f"s_add_u32 s{Q_T0}, s{Q_T0}, s{w}")
    A(f"s_lshl_b32 s{SO_P}, s{Q_T0}, 12")
    A(f"s_add_u32 s{SO_P}, s{SO_P}, {WS_P}")
    A(f"s_xor_b32 s{SO_O}, s{SO_P}, {4<<12}")
    A(f"s_lshl_b32 s{Q_T0}, s{Q_NH}, 15")
    A(f"s_lshl_b32 s{Q_T1}, s{Q_C}, 11")
    A(f"s_add_u32 s{Q_T0}, s{Q_T0}, s{Q_T1}")
    A(f"v_add_u32 v17, s{Q_T0}, v16")
    A(f"v_xor_b32 v15, {0x10000+2048}, v17")
    A(f"s_lshl_b32 s{Q_T0}, s{Q_NH}, 2")
    A(f"s_add_u32 s{Q_T0}, s{Q_T0}, {L_GD}")
    A("v_and_b32 v5, 1, v1")
    A(f"v_lshl_add_u32 v5, v5, 3, s{Q_T0}")
    for k in range(8): A(f"v_mov_b32 v{97+2*k}, v{STOK}")
    A("s_waitcnt vmcnt(0)")
    flag_store(A, 80, 8, STOK)
    tss(A, 5, "a"); tss(A, 2, "t")
    def ag():
        poll(A, 2, 9, STOK, "PA")
        for q in range(4):
            for i in range(2):
                A(f"buffer_load_dword v{AP+2*q+i}, v{12+i}, s[{S_WS}:{S_WS+3}], s{SO_A} offen sc1")
            if q < 3: A(f"s_add_u32 s{SO_A}, s{SO_A}, 32768")
        A(f"buffer_load_dwordx2 {vr(G,2)}, v14, s[{S_WS}:{S_WS+3}], 0 offen sc1")
    def ag2():
        for k in range(8):
            A(f"v_lshlrev_b32 v{T+2*k}, 16, v{AP+k}")
            A(f"v_and_b32 v{T+2*k+1}, 0xffff0000, v{AP+k}")
        for k in range(16):
            A(f"v_mul_f32 v{T+k}, v{G}, v{T+k}")
        A(f"ds_write_b32 v19, v{G+1}")
    def relay():
        for h in range(2):
            A(f"ds_read_b128 {vr(64+4*h,4)}, v17 offset:{1024*h}")
            A(f"ds_read_b128 {vr(72+4*h,4)}, v15 offset:{1024*h}")
        A(f"v_mov_b32 v{S_FT}, 50")
        for h in range(2):
            A(f"s_waitcnt lgkmcnt({2-2*h})")
            if h == 1: A(f"ds_write_b32 v{S_FOWN}, v{S_FT}")
            for k in range(4):
                r = 64 + 4 * h + k
                A(f"v_lshlrev_b32 v80, 16, v{r}")
                A(f"v_lshlrev_b32 v81, 16, v{r+8}")
                A(f"v_and_b32 v82, 0xffff0000, v{r}")
                A(f"v_and_b32 v83, 0xffff0000, v{r+8}")
                A("v_add_f32 v80, v80, v81")
                A("v_add_f32 v82, v82, v83")
                A(f"v_cvt_pk_bf16_f32 v{96+8*h+2*k}, v80, v82")
                if k % 2 == 1:
                    q = 2 * h + k // 2
                    A(f"buffer_store_dwordx4 {vr(96+4*q,4)}, v16, s[{S_WS}:{S_WS+3}], s{SO_P} offen offset:{1024*q} {O.PST}")
    if O.TL2:
        GOT, REL, POL = 33, 34, 35
        A(f"s_bfe_u32 s{Q_T0}, s{RT}, 0x20002")
        A(f"s_lshl_b32 s{Q_T0}, s{Q_T0}, {8+FS}")
        A(f"s_lshl_b32 s{Q_T1}, s{CT}, {5+FS}")
        A(f"s_add_u32 s{Q_T0}, s{Q_T0}, s{Q_T1}")
        A(f"s_add_u32 s{Q_T0}, s{Q_T0}, {F_A}")
        A(f"v_lshl_add_u32 v2, v1, {FS}, s{Q_T0}")
        A(f"s_lshl_b32 s{Q_T0}, s{RT}, {2+FS}")
        A(f"s_add_u32 s{Q_T0}, s{Q_T0}, {F_G}")
        A("v_and_b32 v3, 3, v1")
        A(f"v_lshl_add_u32 v3, v3, {FS}, s{Q_T0}")
        A("v_cmp_gt_u32 vcc, 32, v1")
        A(f"v_mov_b32 v6, {L_AOK}")
        A(f"s_mov_b32 s{GOT}, 0"); A(f"s_mov_b32 s{REL}, 0")
        A("v_cndmask_b32 v2, v3, v2, vcc")
        A(f"s_cmp_eq_u32 s{w}, {O.POLW}")
        A(f"s_cselect_b32 s{POL}, 1, 0")
        A(f"s_mov_b32 s{S_SPIN}, {O.SPIN}")
        A.label("T_L")
        A(f"s_cmp_eq_u32 s{POL}, 1")
        A("s_cbranch_scc0 T_NP")
        A(f"buffer_load_dword v9, v2, s[{S_WS}:{S_WS+3}], 0 offen sc1")
        A(f"s_sub_u32 s{S_SPIN}, s{S_SPIN}, 1")
        A("s_waitcnt vmcnt(0)")
        A("s_cbranch_scc1 T_OK")
        A(f"v_cmp_ne_u32 vcc, v{STOK}, v9")
        A("s_cbranch_vccnz T_NP")
        A.label("T_OK")
        A(f"ds_write_b32 v6, v{STOK+1}")
        A(f"s_mov_b32 s{POL}, 0")
        A.label("T_NP")
        A("ds_read_b32 v7, v6")
        A("ds_read_b32 v31, v5")
        A(f"s_cmp_eq_u32 s{GOT}, 0")
        A("s_waitcnt lgkmcnt(0)")
        A("s_cbranch_scc0 T_NA")
        A("v_cmp_eq_u32 vcc, 0, v7")
        A("s_cbranch_vccnz T_NA")
        tss(A, 4, "t")
        for q in range(4):
            for i in range(2):
                A(f"buffer_load_dword v{AP+2*q+i}, v{12+i}, s[{S_WS}:{S_WS+3}], s{SO_A} offen sc1")
            if q < 3: A(f"s_add_u32 s{SO_A}, s{SO_A}, 32768")
        A(f"buffer_load_dwordx2 {vr(G,2)}, v14, s[{S_WS}:{S_WS+3}], 0 offen sc1")
        A(f"s_mov_b32 s{GOT}, 1")
        A(f"s_cmp_eq_u32 s{REL}, 1")
        A("s_cbranch_scc1 T_W0")
        A.label("T_NA")
        A(f"s_cmp_eq_u32 s{REL}, 0")
        A("s_cbranch_scc0 T_SL")
        A("v_cmp_gt_u32 vcc, 9, v31")
        A("s_cbranch_vccnz T_SL")
        tss(A, 3, "t")
        relay()
        A(f"s_mov_b32 s{REL}, 1")
        A(f"s_cmp_eq_u32 s{GOT}, 1")
        A("s_cbranch_scc1 T_W4")
        A.label("T_SL")
        A(f"s_cmp_eq_u32 s{POL}, 1")
        A("s_cbranch_scc1 T_SP")
        A("s_sleep 1")
        A("s_branch T_L")
        A.label("T_SP")
        A(f"s_sleep {O.ASLP}")
        A("s_branch T_L")
        A.label("T_W0")
        A("s_waitcnt vmcnt(0)")
        A.label("T_W4")
        A("s_waitcnt vmcnt(4)")
        tss(A, 5, "t")
        ag2()
        for q in range(4):
            A(f"ds_write_b128 v18, {vr(T+4*q,4)} offset:{q*1024}")
        sw_arrive(A, S_FOWN, S_FT, 100)
        A("s_waitcnt lgkmcnt(0)")
        return
    if O.AFIRST:
        ag(); A("s_waitcnt vmcnt(0)"); ag2()
        tss(A, 3, "t")
    lwait(A, 5, 0, 31, 9, sleep=1)
    tss(A, 4 if O.AFIRST else 3, "t")
    for h in range(2):
        A(f"ds_read_b128 {vr(64+4*h,4)}, v17 offset:{1024*h}")
        A(f"ds_read_b128 {vr(72+4*h,4)}, v15 offset:{1024*h}")
    A(f"v_mov_b32 v{S_FT}, 50")
    for h in range(2):
        A(f"s_waitcnt lgkmcnt({2-2*h})")
        if h == 1: A(f"ds_write_b32 v{S_FOWN}, v{S_FT}")
        for k in range(4):
            r = 64 + 4 * h + k
            A(f"v_lshlrev_b32 v80, 16, v{r}")
            A(f"v_lshlrev_b32 v81, 16, v{r+8}")
            A(f"v_and_b32 v82, 0xffff0000, v{r}")
            A(f"v_and_b32 v83, 0xffff0000, v{r+8}")
            A("v_add_f32 v80, v80, v81")
            A("v_add_f32 v82, v82, v83")
            A(f"v_cvt_pk_bf16_f32 v{96+8*h+2*k}, v80, v82")
            if k % 2 == 1:
                q = 2 * h + k // 2
                A(f"buffer_store_dwordx4 {vr(96+4*q,4)}, v16, s[{S_WS}:{S_WS+3}], s{SO_P} offen offset:{1024*q} {O.PST}")
    if not O.AFIRST:
        ag()
        tss(A, 4, "t")
    A(f"s_mov_b32 s{S_SPIN}, {O.SPIN}")
    A.label("S_PL")
    for q in range(4):
        A(f"buffer_load_dwordx4 {vr(112+4*q,4)}, v16, s[{S_WS}:{S_WS+3}], s{SO_O} offen offset:{1024*q} sc1")
    if not O.AFIRST:
        A(f"s_cmp_eq_u32 s{S_SPIN}, {O.SPIN}")
        A("s_cbranch_scc0 S_PM")
        A("s_waitcnt vmcnt(4)")
        ag2()
        A.label("S_PM")
    A("s_waitcnt vmcnt(0)")
    for k in range(4):
        A(f"v_xor_b32 v{80+k}, v{STOK}, v{113+4*k}")
        A(f"v_xor_b32 v{84+k}, v{STOK}, v{115+4*k}")
    A("v_or3_b32 v80, v80, v81, v82")
    A("v_or3_b32 v83, v83, v84, v85")
    A("v_or3_b32 v80, v80, v86, v87")
    A("v_or_b32 v80, v80, v83")
    A("v_cmp_ne_u32 vcc, 0, v80")
    A("s_cbranch_vccz S_PD")
    A("s_sleep 1")
    A(f"s_sub_u32 s{S_SPIN}, s{S_SPIN}, 1")
    A("s_cbranch_scc0 S_PL")
    A.label("S_PD")
    tss(A, 5, "t")
    for q in range(4):
        for k in range(2):
            r = 112 + 4 * q + 2 * k
            A(f"v_lshlrev_b32 v{80+2*k}, 16, v{r}")
            A(f"v_and_b32 v{81+2*k}, 0xffff0000, v{r}")
        for k in range(4):
            A(f"v_fmac_f32 v{T+4*q+k}, v{G+1}, v{80+k}")
        A(f"ds_write_b128 v18, {vr(T+4*q,4)} offset:{q*1024}")
    sw_arrive(A, S_FOWN, S_FT, 100)
    A("s_waitcnt lgkmcnt(0)")

def diag(A, k, role):
    A("s_waitcnt vmcnt(0) lgkmcnt(0)")
    A(f"s_memtime s[{S_TS+12}:{S_TS+13}]")
    A("s_waitcnt lgkmcnt(0)")
    A(f"s_sub_u32 s64, s{S_TS+2*k}, s{S_TS+2}")
    A(f"s_cmp_ge_u32 s{S_J}, 28")
    A("s_cselect_b32 s64, 0, s64")
    A("v_mov_b32 v2, 128"); A("v_mov_b32 v3, s64")
    A("s_mov_b64 exec, 1")
    A(f"global_atomic_add v2, v3, s[{P_DBG}:{P_DBG+1}] sc1")
    for lab, first in (("DG0", True), ("DG1", False)):
        A("s_mov_b32 s66, 1000000")
        if first: A("s_mov_b32 s67, 3200")
        A.label(lab)
        A("s_memrealtime s[64:65]")
        A("s_waitcnt lgkmcnt(0)")
        A(f"s_sub_u32 s64, s64, s{S_TS}")
        A("s_cmp_ge_u32 s64, s67")
        A(f"s_cbranch_scc1 {lab}X")
        A("s_sub_u32 s66, s66, 1")
        A(f"s_cbranch_scc0 {lab}")
        A.label(lab + "X")
        if first:
            A("s_waitcnt vmcnt(0)")
            A(f"global_load_dword v3, v2, s[{P_DBG}:{P_DBG+1}] sc1")
            A("s_waitcnt vmcnt(0)")
            A("v_readfirstlane_b32 s67, v3")
            A("s_lshr_b32 s67, s67, 11")
            A("s_add_u32 s67, s67, 3500")
def fin(A, role):
    if O.DIAG is None: ts_dump(A, 0, S_W8)
    elif O.DIAG[0] == role: diag(A, O.DIAG[1], role)

KN = "gated_mix__ssm_conv_s4d__dense_activation_silu__prompt_kernel"
A = Asm()
A.raw("; @launch grid=(256,1,1) block=(512,1,1) lds=163840")
A.raw('.amdgcn_target "amdgcn-amd-amdhsa--gfx950"')
kernel_header(A, KN)
ts_real(A, 0); parts_ts(A, 1)
prologue(A, "K_END")
A(f"s_mov_b32 s{S_W8}, s{S_WAVE}")
A("v_and_b32 v2, 31, v1")
A("v_lshlrev_b32 v2, 2, v2")
A(f"v_add_u32 v2, {LF}, v2")
A("v_mov_b32 v3, 0")
A("ds_write_b32 v2, v3")
A(f"s_cmp_ge_u32 s{S_WAVE}, 4")
A("s_cbranch_scc1 K_SSM")
if O.GPRIO: A(f"s_setprio {O.GPRIO}")
A(f"s_cmp_ge_u32 s{S_J}, 28")
A("s_cbranch_scc1 K_IDLE")
g1_setup(A)
if O.HAB: hab_setup(A)
rot_c0(A, S_C0, S_T0)
A("s_waitcnt lgkmcnt(0)")
srd(A, S_X, P_U, L*D*2); srd(A, S_W1, P_W1, D*F*2)
vm = Vm(A); cid = {}
for x in g_chunk_dma(0): vm.op(x)
cid[0] = vm.n
if O.GPRE == 1: A("s_barrier")
if O.LOOK > 1:
    for x in g_chunk_dma(1): vm.op(x)
    cid[1] = vm.n
if O.GPRE == 2: A("s_barrier")
srd(A, S_WS, P_WS, WS_BYTES); srd(A, S_OUT, P_OUT, L*D*2)
g1_setup2(A); g_flags_setup(A); g2_setup(A)
if O.HAB: hab_setup2(A)
if O.GW2: gw2_setup(A)
if O.LOOK > 2:
    for x in g_chunk_dma(2): vm.op(x)
    cid[2] = vm.n
if O.LOOK >= 4 and O.L3 == "u":
    for x in g_chunk_dma(3): vm.op(x)
    cid[3] = vm.n
if "L" in O.X2:
    parts_ts(A, 2)
    for k in sorted(cid)[:3]:
        vm.wait(cid[k]); parts_ts(A, 3 + k)
if O.GHOLD: lwait(A, GRD, 32, GT, 1, sleep=4)
(g1_main if O.LA == 1 else g1_main2)(A, vm, cid)
tsg(A, 2, "aeh")
g1_epi(A)
tsg(A, 3, "ae")
A.label("K_G2")
if O.GW2:
    A(f"v_mov_b32 v{GT}, 12")
    A("s_waitcnt vmcnt(0)")
    A(f"ds_write_b32 v{GOWN}, v{GT}")
    lwait(A, GRD, 0, GT + 1, 12)
else: lwait(A, GRD, 48, GT, 12)
for i in range(O.PFD):
    for x in w2_read(i): A(x)
tsg(A, 4, "h")
if O.PW:
    poll(A, FV, GT, VTOK, "PH", slp=O.HSLP)
    A("s_waitcnt lgkmcnt(0)")
else:
    A(f"v_mov_b32 v{GX}, {L_HOK}")
    A(f"s_cmp_eq_u32 s{S_WAVE}, 0")
    A("s_cbranch_scc0 K_HW")
    poll(A, FV, GT, VTOK, "PH", slp=O.HSLP)
    A(f"ds_write_b32 v{GX}, v{VTOK+1}")
    A("s_waitcnt lgkmcnt(1)")
    A("s_branch K_HD")
    A.label("K_HW")
    lwait(A, GX, 0, GT, 1)
A.label("K_HD")
tsg(A, 5, "h")
tsg(A, 4, "ae"); tsg(A, 1, "sf")
g2_main(A)
A("s_waitcnt lgkmcnt(0)")
fin(A, "G")
A("s_endpgm")
A.label("K_IDLE")
if O.IPRIO != O.GPRIO: A(f"s_setprio {O.IPRIO}")
idle_tr_issue(A)
if O.CODEPF:
    A("s_getpc_b64 s[72:73]")
    A.label("K_PC")
    A(f"s_sub_u32 s72, s72, K_PC-{KN}")
    A("s_subb_u32 s73, s73, 0")
    A(f"v_lshl_add_u32 v20, s64, 5, v1")
    A("v_lshlrev_b32 v20, 7, v20")
    A(f"v_min_u32 v20, K_END-{KN}, v20")
    A("s_mov_b64 exec, 0xffffffff")
    A("global_load_dword v21, v20, s[72:73]")
    A("s_mov_b64 exec, -1")
A("s_waitcnt lgkmcnt(0)")
srd(A, S_X, P_U, L*D*2)
if any(O.W2P): srd(A, S_W2, P_W2, D*F*2); w2_touch_setup(A)
w2_touch(A, O.W2P[0], 26)
idle_tr_dma(A)
A("s_barrier")
w2_touch(A, O.W2P[1], 26)
srd(A, S_WS, P_WS, WS_BYTES); srd(A, S_OUT, P_OUT, L*D*2)
idle_tr_finish(A, 2 * len(O.W2P[1]))
g_flags_setup(A); g2_setup(A)
tsg(A, 2, "ae")
token_get(A, GX, VTOK)
A(f"s_lshl_b32 s68, s34, 4")
A(f"s_add_u32 s68, s68, s33")
A(f"s_lshl_b32 s65, s68, {FS}")
A(f"s_add_u32 s65, s65, {F_UT}")
A("s_waitcnt vmcnt(0)")
flag_store(A, 65, GT, VTOK)
tsg(A, 3, "ae")
A(f"v_mov_b32 v{GT}, 8")
A(f"ds_write_b32 v{GOWN}, v{GT} offset:16")
if O.IPRIO != O.GPRIO: A(f"s_setprio {O.GPRIO}")
w2_touch(A, O.W2P[2], 26)
idle_gate_issue(A)
w2_touch(A, O.W2P[3], 26)
if O.GW2:
    gw2_setup(A)
    lwait(A, GRD, 16, GT, 8)
    for sl in range(4):
        for x in gw2_dma(sl): A(x)
idle_gate_finish(A, 2 * len(O.W2P[3]) + (28 if O.GW2 else 0))
if not O.TL3:
    A(f"s_lshl_b32 s65, s68, {FS}")
    A(f"s_add_u32 s65, s65, {F_G}")
    A("s_waitcnt vmcnt(0)")
    flag_store(A, 65, GT, VTOK)
A("s_branch K_G2")
A.label("K_SSM")
if O.SPRIO: A(f"s_setprio {O.SPRIO}")
A(f"s_sub_u32 s{S_WAVE}, s{S_WAVE}, 4")
s_setup(A)
carry_zero(A)
A("s_getreg_b32 s31, hwreg(HW_REG_XCC_ID)")
def w2s():
    if O.W2S is None: return
    srd(A, S_W2, P_W2, D*F*2)
    A(f"s_lshr_b32 s{Q_T0}, s{S_XCD}, 1")
    A(f"s_and_b32 s{Q_T1}, s{S_XCD}, 1")
    A(f"s_lshl_b32 s{Q_T1}, s{Q_T1}, 2")
    A(f"s_add_u32 s{Q_T0}, s{Q_T0}, s{Q_T1}")
    A(f"s_lshl_b32 s{Q_T0}, s{Q_T0}, 5")
    A(f"s_add_u32 s{Q_T0}, s{Q_T0}, s{S_J}")
    A(f"s_lshl_b32 s{Q_T0}, s{Q_T0}, 1")
    A(f"s_add_u32 s{Q_T0}, s{Q_T0}, s{Q_NH}")
    A(f"s_mul_i32 s{Q_T0}, s{Q_T0}, 3584")
    A("v_min_u32 v39, 27, v1")
    A("v_lshlrev_b32 v39, 7, v39")
    A(f"buffer_load_dword v39, v39, s[{S_W2}:{S_W2+3}], s{Q_T0} offen {O.PFL2}")
def flow2():
    A(f"s_cmp_eq_u32 s{Q_C}, 1")
    A("s_cbranch_scc1 S_LD")
    A(f"s_lshl_b32 s{Q_T0}, s{Q_PAIR}, 9")
    A(f"s_lshl_b32 s{Q_T1}, s{S_WAVE}, 8")
    A(f"s_add_u32 s{Q_T0}, s{Q_T0}, s{Q_T1}")
    A(f"v_lshl_add_u32 v6, v1, 2, s{Q_T0}")
    A(f"s_lshl_b32 s{Q_T0}, s{Q_PAIR}, 2")
    A("s_waitcnt lgkmcnt(0)")
    for i, p in enumerate((P_LA, P_AI, P_CR, P_CI)):
        A(f"global_load_dword v{14+i}, v6, s[{p}:{p+1}]")
    A(f"s_load_dword s{Q_LDT}, s[{P_LDT}:{P_LDT+1}], s{Q_T0}")
    A(f"s_load_dword s{Q_DSK}, s[{P_DSK}:{P_DSK+1}], s{Q_T0}")
    A(f"s_add_u32 s28, s{P_WS}, {F_EP}")
    A(f"s_addc_u32 s29, s{P_WS+1}, 0")
    A(f"s_cmp_eq_u32 s{S_WAVE}, 1")
    A("s_cbranch_scc0 S_NT")
    A("s_load_dword s30, s[28:29], 0")
    A.label("S_NT")
    A("s_barrier")
    if O.W2S == 0: w2s()
    def tokpub():
        A(f"s_cmp_eq_u32 s{S_WAVE}, 1")
        A("s_cbranch_scc0 S_NP")
        A("s_mul_i32 s30, s30, 0x9e3779a1")
        A("s_add_u32 s30, s30, 0x7f4a7c10")
        A("s_and_b32 s30, s30, -16")
        A(f"v_mov_b32 v{STOK}, s30")
        A(f"v_mov_b32 v{STOK+1}, 1")
        A(f"v_mov_b32 v34, {L_RDY}")
        A(f"ds_write_b64 v34, {vr(STOK,2)}")
        A(f"s_waitcnt vmcnt({1 if O.W2S == 0 else 0})")
        A(f"s_lshl_b32 s28, s2, {FS}")
        A(f"s_add_u32 s28, s28, {F_HERE}")
        flag_store(A, 28, 36, STOK)
        A("s_branch S_NQ")
        A.label("S_NP")
        A(f"s_waitcnt vmcnt({1 if O.W2S == 0 else 0})")
        A.label("S_NQ")
    kgen2(A, 2, tokpub)
    tss(A, 5, "k")
    A("s_cmp_eq_u32 s2, 0")
    A("s_cbranch_scc0 S_UW")
    A(f"s_cmp_eq_u32 s{S_WAVE}, 1")
    A("s_cbranch_scc0 S_UW")
    for i in range(4):
        A(f"v_lshlrev_b32 v8, {FS}, v1")
        A(f"v_add_u32 v8, {F_HERE+(64<<FS)*i}, v8")
        poll(A, 8, 9, STOK, "PE")
    A(f"s_mov_b32 s{Q_T0}, {F_EP}")
    flag_store(A, Q_T0, 8, STOK)
    A.label("S_UW")
    A("s_branch S_CV")
    A.label("S_LD")
    if O.LPRIO != O.SPRIO: A(f"s_setprio {O.LPRIO}")
    loader_setup(A)
    A("s_waitcnt lgkmcnt(0)")
    srd(A, S_X, P_U, L*D*2); srd(A, S_W1, P_W1, D*F*2); srd(A, S_W2, P_W2, D*F*2)
    srd(A, S_WS, P_WS, WS_BYTES)
    A("s_barrier")
    if O.W2S == 1: w2s()
    if O.LDLY: A(f"s_sleep {O.LDLY}")
    loader2(A)
def flow1():
    A(f"s_lshl_b32 s{Q_T0}, s{Q_PAIR}, 9")
    A(f"s_lshl_b32 s{Q_T1}, s{S_WAVE}, 7")
    A(f"s_add_u32 s{Q_T0}, s{Q_T0}, s{Q_T1}")
    A(f"v_lshl_add_u32 v6, v1, 1, s{Q_T0}")
    A(f"s_lshl_b32 s{Q_T0}, s{Q_PAIR}, 2")
    A("s_waitcnt lgkmcnt(0)")
    for i, p in enumerate((P_LA, P_AI, P_CR, P_CI)):
        A(f"global_load_ushort v{2+i}, v6, s[{p}:{p+1}]")
    A(f"s_load_dword s{Q_LDT}, s[{P_LDT}:{P_LDT+1}], s{Q_T0}")
    A(f"s_load_dword s{Q_DSK}, s[{P_DSK}:{P_DSK+1}], s{Q_T0}")
    A(f"s_add_u32 s28, s{P_WS}, {F_EP}")
    A(f"s_addc_u32 s29, s{P_WS+1}, 0")
    A(f"s_cmp_eq_u32 s{S_WAVE}, 1")
    A("s_cbranch_scc0 S_NT")
    A("s_load_dword s30, s[28:29], 0")
    A.label("S_NT")
    A("s_barrier")
    if O.TCH:
        A(f"s_cmp_eq_u32 s{Q_C}, 1")
        A("s_cbranch_scc1 S_T2")
        A(f"s_cmp_eq_u32 s{Q_NH}, 1")
        A("s_cbranch_scc1 S_T1")
        srd(A, S_X, P_U, L*D*2)
        A(f"s_lshl_b32 s{Q_T0}, s{Q_PAIR}, 13")
        A("v_lshlrev_b32 v39, 7, v1" if "x" in O.TCH else "v_mov_b32 v39, 0")
        A(f"buffer_load_dword v39, v39, s[{S_X}:{S_X+3}], s{Q_T0} offen")
        A("s_branch S_T3")
        A.label("S_T1")
        srd(A, S_W1, P_W1, D*F*2)
        A(f"s_add_u32 s{Q_T0}, s{S_XCD}, {2*O.TR}")
        A(f"s_bfe_u32 s{Q_T0}, s{Q_T0}, 0x20001")
        A(f"s_lshl_b32 s{Q_T0}, s{Q_T0}, 5")
        A(f"s_add_u32 s{Q_T0}, s{Q_T0}, s{S_J}")
        A(f"s_mul_i32 s{Q_T0}, s{Q_T0}, {4*2*F}")
        A(f"s_and_b32 s{Q_T1}, s{S_XCD}, 1")
        A(f"s_mul_i32 s{Q_T1}, s{Q_T1}, {F}")
        A(f"s_add_u32 s{Q_T0}, s{Q_T0}, s{Q_T1}")
        A("v_and_b32 v38, 15, v1")
        A("v_min_u32 v38, 13, v38")
        A("v_lshrrev_b32 v39, 4, v1")
        A(f"v_mul_u32_u24 v39, {2*F}, v39")
        A("v_lshl_add_u32 v39, v38, 7, v39" if "w" in O.TCH else "v_mov_b32 v39, 0")
        A(f"buffer_load_dword v39, v39, s[{S_W1}:{S_W1+3}], s{Q_T0} offen")
        A("s_branch S_T3")
        A.label("S_T2")
        w2s()
        A.label("S_T3")
    elif O.W2H: pass
    elif O.W2S is not None:
        srd(A, S_W2, P_W2, D*F*2)
        A(f"s_lshr_b32 s{Q_T0}, s{S_XCD}, 1")
        A(f"s_and_b32 s{Q_T1}, s{S_XCD}, 1")
        A(f"s_lshl_b32 s{Q_T1}, s{Q_T1}, 2")
        A(f"s_add_u32 s{Q_T0}, s{Q_T0}, s{Q_T1}")
        A(f"s_lshl_b32 s{Q_T0}, s{Q_T0}, 5")
        A(f"s_add_u32 s{Q_T0}, s{Q_T0}, s{S_J}")
        A(f"s_mul_i32 s{Q_T0}, s{Q_T0}, 7168")
        A(f"s_mul_i32 s{Q_T1}, s{S_WAVE}, 1792")
        A(f"s_add_u32 s{Q_T0}, s{Q_T0}, s{Q_T1}")
        A("v_min_u32 v39, 13, v1")
        A("v_lshlrev_b32 v39, 7, v39")
        A(f"buffer_load_dword v39, v39, s[{S_W2}:{S_W2+3}], s{Q_T0} offen {O.PFL2}")
    def pre():
        if O.GW2: srd(A, S_WS, P_WS, WS_BYTES); return
        srd(A, S_X, P_U, L*D*2); srd(A, S_W1, P_W1, D*F*2); srd(A, S_W2, P_W2, D*F*2)
        srd(A, S_WS, P_WS, WS_BYTES)
        loader_setup(A)
    def tokpub():
        tss(A, 2, "ak")
        A(f"s_cmp_eq_u32 s{S_WAVE}, 1")
        A("s_cbranch_scc0 S_NP")
        A("s_mul_i32 s30, s30, 0x9e3779a1")
        A("s_add_u32 s30, s30, 0x7f4a7c10")
        A("s_and_b32 s30, s30, -16")
        A("s_and_b32 s31, s31, 15")
        A("s_or_b32 s31, s31, s30")
        A(f"v_mov_b32 v{STOK}, s30")
        A(f"v_mov_b32 v{STOK+1}, 1")
        A(f"v_mov_b32 v34, {L_RDY}")
        A(f"ds_write_b64 v34, {vr(STOK,2)}")
        A(f"v_mov_b32 v35, s31")
        A(f"s_lshl_b32 s28, s2, {FS}")
        A(f"s_add_u32 s28, s28, {F_HERE}")
        flag_store(A, 28, 36, 35)
        A.label("S_NP")
    def khook():
        tss(A, 3, "k")
        if O.W2H == 1:
            A(f"s_cmp_eq_u32 s{Q_C}, 1")
            A("s_cbranch_scc0 S_T4")
            w2s()
            A.label("S_T4")
    kgen(A, later=0 if (O.W2S is None or O.W2H) else 1, hookA=tokpub, pre=pre, hook=khook)
    tss(A, 4, "k")
    if O.W2H == 2:
        A(f"s_cmp_eq_u32 s{Q_C}, 0")
        A("s_cbranch_scc0 S_T4")
        w2s()
        A.label("S_T4")
    kgen_exchange_write(A)
    A("s_waitcnt lgkmcnt(0)")
    sw_arrive(A, S_FOWN, S_FT, 1)
    def kfin():
        sw_wait(A, S_FRD, S_FT, 1, sleep=1)
        kgen_final(A)
        token_get(A, 8, STOK)
    tss(A, 3, "a")
    if O.GW2:
        token_get(A, 16, STOK)
        A(f"s_cmp_eq_u32 s{S_WAVE}, {O.UW}")
        A("s_cbranch_scc0 S_K1")
        A(f"s_lshl_b32 s{Q_T0}, s{S_XCD}, {4+FS}")
        A(f"s_add_u32 s{Q_T0}, s{Q_T0}, {F_UT}")
        A("v_and_b32 v16, 15, v1")
        A(f"v_lshl_add_u32 v16, v16, {FS}, s{Q_T0}")
        poll(A, 16, 17, STOK, "PU")
        ut2(A, 0)
        A.label("S_K1")
        sw_wait(A, S_FRD, S_FT, 1, sleep=1)
        kgen_final(A)
        tss(A, 5, "k")
        A(f"s_cmp_eq_u32 s{S_WAVE}, {O.UW}")
        A("s_cbranch_scc0 S_K2")
        ut2(A, 1)
        A.label("S_K2")
        A("s_cmp_eq_u32 s2, 0")
        A("s_cbranch_scc0 S_CV")
        A(f"s_cmp_eq_u32 s{S_WAVE}, 1")
        A("s_cbranch_scc0 S_CV")
        for i in range(4):
            A(f"v_lshlrev_b32 v8, {FS}, v1")
            A(f"v_add_u32 v8, {F_HERE+(64<<FS)*i}, v8")
            poll(A, 8, 9, STOK, "PE", mask=True)
        A(f"s_mov_b32 s{Q_T0}, {F_EP}")
        flag_store(A, Q_T0, 8, STOK)
        return
    A(f"s_cmp_eq_u32 s{Q_C}, 1")
    A("s_cbranch_scc1 S_LD")
    kfin()
    tss(A, 5, "k")
    A(f"s_cmp_eq_u32 s{S_WAVE}, 1")
    A("s_cbranch_scc1 S_VD")
    A(f"s_lshl_b32 s{Q_T0}, s{S_XCD}, {4+FS}")
    A(f"s_add_u32 s{Q_T0}, s{Q_T0}, {F_UT}")
    A("v_and_b32 v8, 15, v1")
    A(f"v_lshl_add_u32 v8, v8, {FS}, s{Q_T0}")
    poll(A, 8, 9, STOK, "PU")
    ut2(A)
    A("s_branch S_CV")
    A.label("S_VD")
    if O.VERD:
        A(f"s_and_b32 s{Q_T0}, s2, 31")
        A(f"s_lshl_b32 s{Q_T0}, s{Q_T0}, {FS}")
        A(f"s_add_u32 s{Q_T0}, s{Q_T0}, {F_HERE}")
        A("v_and_b32 v8, 7, v1")
        A(f"v_lshl_add_u32 v8, v8, {5+FS}, s{Q_T0}")
        poll(A, 8, 9, STOK, "PV", mask=True)
        A("v_cmp_ne_u32 vcc, s31, v9")
        A("s_cmp_eq_u64 vcc, 0")
        A(f"s_cselect_b32 s{Q_T0}, 1, 2")
        A(f"v_mov_b32 v9, s{Q_T0}")
        A(f"v_mov_b32 v8, {L_VERD}")
        A("ds_write_b32 v8, v9")
    A("s_cmp_eq_u32 s2, 0")
    A("s_cbranch_scc0 S_CV")
    for i in range(4):
        A(f"v_lshlrev_b32 v8, {FS}, v1")
        A(f"v_add_u32 v8, {F_HERE+(64<<FS)*i}, v8")
        poll(A, 8, 9, STOK, "PE", mask=True)
    A(f"s_mov_b32 s{Q_T0}, {F_EP}")
    flag_store(A, Q_T0, 8, STOK)
    A("s_branch S_CV")
    A.label("S_LD")
    loader(A, kfin)

(flow2 if O.DL else flow1)()
A.label("S_CV")
conv_setup(A)
A(f"v_mov_b32 v{LV}, 12"); A(f"v_mov_b32 v{LV+1}, 12")
s_barrier(A, 2)
tss(A, 4, "a")
if O.CPRIO != O.SPRIO: A(f"s_setprio {O.CPRIO}")
conv(A, inj=None if O.GW2 else (O.PUBM, ["s_waitcnt vmcnt(0)", f"ds_write_b64 v{LSA}, {vr(LV,2)}"]))
if O.CPRIO != O.TPRIO: A(f"s_setprio {O.TPRIO}")
if O.TL3:
    conv_final3(A); s_tail3(A)
else:
    s_barrier(A, 3)
    conv_final(A, "sc1")
    s_tail(A)
fin(A, "S")
A.label("K_END")
A("s_endpgm")
kernel_desc(A, KN, 256)
open(sys.argv[1], "w").write(A.text())
```

```python
import sys; sys.path.insert(0, "gen")
import parts
from parts import *
import ssm
from ssm import *

class Opt: pass
O = Opt()
O.TS = False
O.ROT = (0, 0, 2, 1)
O.SPRIO = 3; O.CPRIO = 0; O.GPRIO = 1; O.TPRIO = 3
O.CODEPF = True
O.SPIN = 100000
O.SLP = 4; O.HSLP = 1
O.TSC = None; O.TSG = "a"; O.TSS = "a"
O.ARR = 1
O.DEPTH = 14
O.PUBM = 12
O.SLOW = False
O.DIAG = None
O.HFS = 8
O.HLD = "sc1"; O.HST = "sc1"; O.GHOLD = False; O.VERD = False; O.NA = 4; O.PFD = 2; O.NOPK = True; O.KG2 = True; O.KLO = "pk"; O.KHI = "sc"; O.LFIN = 7; O.TOUCH = False; O.PST = "sc1"; O.AFIRST = False; O.XFL = ""; O.W1FL = ""; O.W2FL = ""; O.TFL = "nt"; O.UFL = ""; O.PDLY = 0; O.LOOK = 4; O.PFL = 99; O.L3 = "i"; O.IPRIO = 3; O.TAILK = 0
O.X2 = ""; O.ST = (1, 14, 28, 42)
O.HAB = False; O.BS = 8; O.FA = 6; O.PW = False; O.TCH = ""; O.TR = 2; O.W2H = False; O.PT = ""; O.APS = 3; O.XF = 0; O.RSLP = 0; O.XQ = None; O.XR = 2; O.TL3 = False; O.ASTEP = 48
O.GW2 = False; O.GW2N = 3; O.W2AF = 0; O.UW = 3
O.TL2 = False; O.PSTEP = 52; O.SPG = 3; O.POLW = 3; O.ASLP = 8
O.GPRE = 1
O.DL = False; O.LPRIO = 3; O.LSLP = 1; O.LDLY = 0
O.W2S = None
O.W2P = ((), (), (), ()); O.PFL2 = ""; O.UOWN = False
O.LA = 1; O.RSP = (2, 4, 6); O.PPOS = 0
O.DSL = (6, 7, 8, 10, 11, 12, 14, 15)
O.PAW = 2
for a in sys.argv[2:]: exec("O." + a)
parts.TS = O.TS
ssm.KG2 = O.KG2; ssm.KLO = O.KLO; ssm.KHI = O.KHI
parts.gflag_setup = lambda A: None

LF = LDS_SSM + 31744
L_GL, L_GD, L_SB, L_SL, L_RDY, L_HOK, L_VERD = LF, LF + 16, LF + 32, LF + 48, LF + 64, LF + 72, LF + 76
L_AOK = LF + 80
L_DUMMY = LF + 128
ssm.LDS_SFLAG = L_SB
FS = 8
F_HERE, F_UT, F_G, F_A, F_H, F_P, F_EP = [WS_FLAG + (x << FS) for x in (0, 256, 384, 512, 1536, 2560, 3584)]
assert F_EP + 256 <= (13 << 20)
WS_P = 16 << 20
WS_BYTES = (24 if O.TL3 else 20) << 20
WS_A2 = 20 << 20
STOK = 32
S_W8, S_SPIN, S_HF = 27, 85, 32

parts_ts = ts
def tsg(A, i, mode="a"):
    if O.TSC: return
    if O.TSG in mode: parts_ts(A, i)
def tss(A, i, mode="a"):
    if O.TSS in mode: parts_ts(A, i)

class Vm:
    def __init__(self, A): self.A = A; self.n = 0; self.done = 0
    def op(self, s):
        self.A(s)
        if s.startswith("buffer_") or s.startswith("global_"): self.n += 1
        return self.n
    def cnt(self, idn):
        k = min(self.n - idn, 63); self.done = max(self.done, self.n - k); return k
    def wait(self, idn, extra=""):
        if idn <= self.done:
            if extra: self.A(f"s_waitcnt {extra}")
            return
        self.A(f"s_waitcnt vmcnt({self.cnt(idn)}) {extra}")

def poll(A, vaddr, vt, tok, name, slp=None, mask=False):
    l = A.newlabel(name); d = A.newlabel(name)
    A(f"s_mov_b32 s{S_SPIN}, {O.SPIN}")
    A.label(l)
    A(f"buffer_load_dword v{vt}, v{vaddr}, s[{S_WS}:{S_WS+3}], 0 offen sc1")
    A("s_waitcnt vmcnt(0)")
    if mask:
        A(f"v_and_b32 v{vt+1}, -16, v{vt}")
        A(f"v_cmp_ne_u32 vcc, v{tok}, v{vt+1}")
    else:
        A(f"v_cmp_ne_u32 vcc, v{tok}, v{vt}")
    A(f"s_cbranch_vccz {d}")
    A(f"s_sleep {O.SLP if slp is None else slp}")
    A(f"s_sub_u32 s{S_SPIN}, s{S_SPIN}, 1")
    A(f"s_cbranch_scc0 {l}")
    A.label(d)

def lwait(A, vaddr, off, vt, val, issued=False, sleep=1):
    lab = A.newlabel("LW"); done = A.newlabel("LWD")
    if not issued: A(f"ds_read_b32 v{vt}, v{vaddr} offset:{off}")
    A("s_waitcnt lgkmcnt(0)")
    A(f"v_cmp_gt_u32 vcc, {val}, v{vt}")
    A(f"s_cbranch_vccz {done}")
    A.label(lab)
    if sleep: A(f"s_sleep {sleep}")
    A(f"ds_read_b32 v{vt}, v{vaddr} offset:{off}")
    A("s_waitcnt lgkmcnt(0)")
    A(f"v_cmp_gt_u32 vcc, {val}, v{vt}")
    A(f"s_cbranch_vccnz {lab}")
    A.label(done)

def token_get(A, va, tok):
    l = A.newlabel("RW"); d = A.newlabel("RW")
    A(f"v_mov_b32 v{va}, {L_RDY}")
    A.label(l)
    A(f"ds_read_b64 {vr(tok,2)}, v{va}")
    A("s_waitcnt lgkmcnt(0)")
    A(f"v_cmp_ne_u32 vcc, 1, v{tok+1}")
    A(f"s_cbranch_vccz {d}")
    A("s_sleep 1")
    A(f"s_branch {l}")
    A.label(d)

def flag_store(A, soff, va, vt, fl="sc1"):
    A(f"v_mov_b32 v{va}, 0")
    A("s_mov_b64 exec, 1")
    A(f"buffer_store_dword v{vt}, v{va}, s[{S_WS}:{S_WS+3}], s{soff} offen {fl}")
    A("s_mov_b64 exec, -1")

def rot_c0(A, dst, t0):
    a, b, c, d = O.ROT
    A(f"s_mov_b32 s{dst}, 0")
    if a: A(f"s_and_b32 s{t0}, s{S_J}, 3"); A(f"s_mul_i32 s{dst}, s{t0}, {a}")
    if b: A(f"s_lshr_b32 s{t0}, s{S_J}, 2"); A(f"s_mul_i32 s{t0}, s{t0}, {b}"); A(f"s_add_u32 s{dst}, s{dst}, s{t0}")
    if c: A(f"s_lshr_b32 s{t0}, s{S_XCD}, 1"); A(f"s_mul_i32 s{t0}, s{t0}, {c}"); A(f"s_add_u32 s{dst}, s{dst}, s{t0}")
    if d: A(f"s_and_b32 s{t0}, s{S_XCD}, 1"); A(f"s_mul_i32 s{t0}, s{t0}, {d}"); A(f"s_add_u32 s{dst}, s{dst}, s{t0}")

GOWN, GRD, GT, HV, AR, RW, FV, VTOK, GX = 50, 51, 52, 54, 56, 58, 59, 60, 62
ACCA, ACCB, AF, PK, HR0 = 64, 96, 128, 168, 184
OV, RX, TV = 55, 63, 49
FVB = 48
S_OO, S_PO, S_P1, S_PF = 76, 77, 78, 79
L_T = LDS_SSM
STMP = 160
S_HL, S_HR, S_C0 = 80, 81, 84

def g_flags_setup(A):
    A(f"s_lshl_b32 s{S_T0}, s{S_WAVE}, 2")
    A(f"s_add_u32 s{S_T0}, s{S_T0}, {LF}")
    A(f"v_mov_b32 v{GOWN}, s{S_T0}")
    A(f"v_and_b32 v{GRD}, 3, v1")
    A(f"v_lshlrev_b32 v{GRD}, 2, v{GRD}")
    A(f"v_add_u32 v{GRD}, {LF}, v{GRD}")

def g2_setup(A):
    w = S_WAVE; T = 30
    A(f"s_and_b32 s{S_T0}, s{S_XCD}, 6")
    A(f"s_lshl_b32 s{S_T0}, s{S_T0}, 1")
    A(f"s_and_b32 s{S_T1}, s{S_J}, 3")
    A(f"s_add_u32 s{S_T0}, s{S_T0}, s{S_T1}")
    A(f"s_and_b32 s{S_T1}, s{S_XCD}, 1")
    A(f"s_lshl_b32 s{S_HF}, s{S_T0}, 1")
    A(f"s_add_u32 s{S_HF}, s{S_HF}, s{S_T1}")
    A(f"s_lshl_b32 s{S_HF}, s{S_HF}, {5+O.HFS}")
    A(f"s_add_u32 s{S_HF}, s{S_HF}, {F_H}")
    A(f"v_min_u32 v{T}, 27, v1")
    A(f"v_lshl_add_u32 v{FV}, v{T}, {O.HFS}, s{S_HF}")
    if O.HAB:
        A(f"s_and_b32 s{S_HR}, s{w}, 1")
        A(f"s_lshl_b32 s{S_HR}, s{S_HR}, 1")
        A(f"s_lshr_b32 s{S_HL}, s{w}, 1")
        A(f"s_add_u32 s{S_HR}, s{S_HR}, s{S_HL}")
        A(f"s_mul_i32 s{S_HR}, s{S_HR}, 7")
        A(f"v_min_u32 v{T}, 6, v1")
        A(f"v_add_u32 v{T}, s{S_HR}, v{T}")
        A(f"v_lshl_add_u32 v{FV if O.PW else FVB}, v{T}, {O.HFS}, s{S_HF}")
        A(f"v_add_u32 v{FVB}, {F_P-F_H}, v{FV if O.PW else FVB}")
    A(f"s_lshl_b32 s{S_T0}, s{S_T0}, 2")
    A(f"s_and_b32 s{S_HR}, s{w}, 1")
    A(f"s_add_u32 s{S_T0}, s{S_T0}, s{S_HR}")
    A(f"s_lshl_b32 s{S_OO}, s{S_T1}, 1")
    A(f"s_add_u32 s{S_OO}, s{S_OO}, s{S_T0}")
    A(f"s_xor_b32 s{S_HL}, s{S_OO}, 2")
    A(f"s_mul_i32 s{S_HL}, s{S_HL}, 112")
    A(f"s_mul_i32 s{S_HR}, s{S_OO}, 112")
    A(f"s_lshl_b32 s{S_T1}, s{S_T1}, 1")
    A(f"s_lshr_b32 s{S_T0}, s{w}, 1")
    A(f"s_add_u32 s{S_T1}, s{S_T1}, s{S_T0}")
    A(f"s_mul_i32 s{S_T1}, s{S_T1}, 28")
    A(f"s_add_u32 s{S_HL}, s{S_HL}, s{S_T1}")
    A(f"s_add_u32 s{S_HR}, s{S_HR}, s{S_T1}")
    A(f"s_lshl_b32 s{S_HL}, s{S_HL}, 10")
    A(f"s_lshl_b32 s{S_HR}, s{S_HR}, 10")
    A(f"s_lshl_b32 s{S_OO}, s{S_OO}, 15")
    A(f"s_lshr_b32 s{S_T1}, s{S_J}, 2")
    A(f"s_lshl_b32 s{S_T1}, s{S_T1}, 1")
    A(f"s_add_u32 s{S_T1}, s{S_T1}, s{S_T0}")
    A(f"s_lshl_b32 s{S_T1}, s{S_T1}, 6")
    A(f"s_add_u32 s{S_OO}, s{S_OO}, s{S_T1}")
    A(f"v_lshlrev_b32 v{HV}, 4, v1")
    A(f"s_lshl_b32 s{S_T1}, s{w}, 15")
    A(f"v_add_u32 v{RW}, s{S_T1}, v{HV}")
    A(f"v_xor_b32 v{RX}, 0x10000, v{RW}")
    A(f"s_lshl_b32 s{S_T1}, s{w}, 12")
    A(f"s_add_u32 s{S_T1}, s{S_T1}, {L_T}")
    A(f"v_add_u32 v{TV}, s{S_T1}, v{HV}")
    A(f"v_lshrrev_b32 v{T+1}, 5, v1")
    A(f"v_and_b32 v{T}, 31, v1")
    A(f"v_lshlrev_b32 v{T}, 10, v{T}")
    A(f"v_lshl_add_u32 v{OV}, v{T+1}, 4, v{T}")
    A(f"v_bfe_u32 v{T+2}, v1, 2, 2")
    A(f"v_bfe_u32 v{T+3}, v1, 4, 1")
    A(f"v_bfe_u32 v{T+4}, v1, 1, 1")
    A(f"v_lshl_add_u32 v{T+3}, v{T+3}, 1, v{T+4}")
    A(f"v_bfe_u32 v{T+4}, v1, 3, 1")
    A(f"v_xor_b32 v{T+4}, s{S_T0}, v{T+4}")
    A(f"v_lshl_add_u32 v{T+3}, v{T+4}, 2, v{T+3}")
    A(f"v_lshl_add_u32 v{T+2}, v{T+1}, 2, v{T+2}")
    A(f"v_lshlrev_b32 v{T+2}, 7, v{T+2}")
    A(f"v_lshl_add_u32 v{T+2}, v{T+3}, 4, v{T+2}")
    A(f"v_and_b32 v{T+4}, 1, v1")
    A(f"v_lshl_add_u32 v{T+2}, v{T+4}, 3, v{T+2}")
    A(f"s_lshl_b32 s{S_T0}, s{S_T0}, 16")
    A(f"v_add_u32 v{AR}, s{S_T0}, v{T+2}")
    A(f"v_xor_b32 v{AR+1}, 64, v{AR}")

def w2_read(i):
    k = i % 28; dst = AF + 8 * (i % O.NA)
    o = (k // 14) * 32768 + 4096 + (k % 14) * 2048
    return [f"ds_read_b64_tr_b16 {vr(dst+4*a+2*x,2)}, v{AR+a} offset:{o+x*1024}" for a in range(2) for x in range(2)]
HQ = {}
def h_load(i):
    base, k = (S_HL, i) if i < 28 else (S_HR, i - 28)
    pre = [f"s_add_u32 s{S_T0}, s{base}, {k*1024}"] if k % 4 == 0 else []
    return pre + [f"buffer_load_dwordx4 {vr(HQ[i],4)}, v{HV}, s[{S_WS}:{S_WS+3}], s{S_T0} offen offset:{(k%4)*1024} {O.HLD}"]

def g_chunk_dma(cc):
    slot = cc % 4
    out = [f"s_add_u32 s{S_HO}, s{S_C0}, {cc}", f"s_and_b32 s{S_HO}, s{S_HO}, 7",
           f"s_lshl_b32 s{S_T1}, s{S_HO}, 7", f"s_add_u32 m0, s{S_M0X}, {slot*32768}", f"s_add_u32 s{S_T1}, s{S_T1}, s{S_XO}"]
    for i in range(4):
        out.append(f"buffer_load_dwordx4 v{G1_XD+i}, s[{S_X}:{S_X+3}], s{S_T1} offen offset:{i*1024} {O.XFL} lds")
    out += [f"s_mul_i32 s{S_T1}, s{S_HO}, {64*2*F}", f"s_add_u32 m0, s{S_M0X}, {slot*32768+16384}", f"s_add_u32 s{S_T1}, s{S_T1}, s{S_WO}"]
    for i in range(4):
        out.append(f"buffer_load_dwordx4 v{G1_WD+i}, s[{S_W1}:{S_W1+3}], s{S_T1} offen offset:{i*1024} {O.W1FL} lds")
    return out

VW2, S_W2O, S_W2M = 22, 78, 79
def gw2_setup(A):
    w = S_WAVE
    srd(A, S_W2, P_W2, D*F*2)
    A("v_lshrrev_b32 v30, 3, v1")
    A("v_and_b32 v31, 7, v1")
    A("v_bfe_u32 v32, v1, 4, 1")
    A("v_lshlrev_b32 v32, 2, v32")
    A("v_xor_b32 v31, v31, v32")
    A("v_lshlrev_b32 v30, 10, v30")
    A(f"v_lshl_add_u32 v{VW2}, v31, 4, v30")
    A(f"s_and_b32 s{S_T0}, s{S_XCD}, 1")
    A(f"s_lshl_b32 s{S_T0}, s{S_T0}, 3")
    A(f"s_and_b32 s{S_T1}, s{w}, 1")
    A(f"s_add_u32 s{S_T0}, s{S_T0}, s{S_T1}")
    A(f"s_mul_i32 s{S_W2O}, s{S_T0}, {7*16384}")
    A(f"s_mul_i32 s{S_W2M}, s{S_T1}, {7*2048}")
    A(f"s_lshr_b32 s{S_T0}, s{S_J}, 2")
    A(f"s_lshl_b32 s{S_T0}, s{S_T0}, 7")
    A(f"s_add_u32 s{S_W2O}, s{S_W2O}, s{S_T0}")
    A(f"s_lshr_b32 s{S_T0}, s{w}, 1")
    A(f"s_lshl_b32 s{S_T1}, s{S_T0}, 13")
    A(f"s_add_u32 s{S_W2O}, s{S_W2O}, s{S_T1}")
    A(f"s_lshl_b32 s{S_T1}, s{S_T0}, 10")
    A(f"s_add_u32 s{S_W2M}, s{S_W2M}, s{S_T1}")
def gw2_dma(sl):
    out = []
    for k in range(7):
        out += [f"s_add_u32 m0, s{S_W2M}, {sl*32768+4096+k*2048}", f"s_add_u32 s{S_T1}, s{S_W2O}, {(14*sl+k)*16384}",
                f"buffer_load_dwordx4 v{VW2}, s[{S_W2}:{S_W2+3}], s{S_T1} offen {O.W2FL} lds"]
    return out

def g1_main(A, vm, cid):
    vm.wait(cid[0])
    A(f"v_mov_b32 v{GT}, 1"); A(f"ds_write_b32 v{GOWN}, v{GT}")
    lwait(A, GRD, 0, GT + 1, 1, sleep=0)
    for r in g1_reads(0): A(r)
    for c in range(8):
        if O.TSC and c in O.TSC: parts_ts(A, 2 + O.TSC.index(c))
        off = 0 if c + 1 < O.LOOK else 48
        own = 4 <= c + 3 < O.LOOK
        units = [u for u in split_groups(g_chunk_dma(c + 3), 8)] if own else []
        slots = O.DSL
        for s in range(4):
            t = 4 * c + s
            mf = g1_mfmas(t)
            pre = []
            if s == 3:
                if c < 7: lwait(A, GRD, off, GT + 1, c + 2, issued=True, sleep=0)
                else: A("s_waitcnt lgkmcnt(0)")
                pre = [f"v_mov_b32 v{GT}, {c+1}", f"ds_write_b32 v{GOWN}, v{GT} offset:16"]
            elif s == O.ARR and c + 1 < O.LOOK:
                vm.wait(cid[c + 1], "lgkmcnt(0)")
                pre = [f"v_mov_b32 v{GT}, {c+2}", f"ds_write_b32 v{GOWN}, v{GT}"]
            else: A("s_waitcnt lgkmcnt(0)")
            if own and s == 1: lwait(A, GRD, 16, GX, c, issued=True, sleep=0)
            rd = g1_reads(t + 1) if t < 31 else []
            post = [f"ds_read_b32 v{GT+1}, v{GRD} offset:{off}"] if (s == 2 and c < 7) else []
            if own and s == 0: post.append(f"ds_read_b32 v{GX}, v{GRD} offset:16")
            def dm(g):
                if own:
                    for _ in range(slots.count(4 * s + g)):
                        for x in units.pop(0): vm.op(x)
                    if not units: cid[c + 3] = vm.n if c + 3 not in cid else cid[c + 3]
            A(mf[0])
            for x in rd[:3]: A(x)
            dm(0)
            A(mf[1])
            for x in rd[3:]: A(x)
            dm(1)
            A(mf[2])
            for x in pre + post: A(x)
            if c == 0 and O.LOOK >= 4 and O.L3 == "i":
                for x in split_groups(g_chunk_dma(3), 4)[s]: vm.op(x)
                cid[3] = vm.n
            dm(2)
            A(mf[3])
            dm(3)
        assert not units

_g1_reads = g1_reads
def g1_reads(t):
    out = _g1_reads(t)
    if O.HAB:
        c, s_ = divmod(t, 4); lo = ((c % 4) % 2) * 32768
        out[5] = out[5].replace(f"offset:{lo+4096}", f"offset:{lo+8192}")
    return out
def hab_setup(A):
    A(f"s_and_b32 s{S_T0}, s{S_XCD}, 1")
    A(f"s_xor_b32 s{S_T0}, s{S_T0}, 1")
    A(f"s_lshl_b32 s{S_T0}, s{S_T0}, 16")
    A(f"s_xor_b32 s{S_XO}, s{S_XO}, s{S_T0}")
def hab_setup2(A):
    A(f"s_lshr_b32 s{S_T0}, s{S_WAVE}, 1")
    A(f"s_lshl_b32 s{S_T0}, s{S_T0}, 12")
    for k in range(8): A(f"v_subrev_u32 v{G1_XR+k}, s{S_T0}, v{G1_XR+k}")

def g1_fr(lst, t, ns):
    import re
    o = G1_FR + (t % 2) * 16; n = G1_FR + (t % ns) * 16
    def f(m):
        a, b = int(m.group(1)), int(m.group(2))
        if o <= a < o + 16: return f"v[{a-o+n}:{b-o+n}]"
        return m.group(0)
    return [re.sub(r"v\[(\d+):(\d+)\]", f, x) for x in lst]

def lchk(A, vaddr, off, vt, val):
    lab = A.newlabel("LW"); done = A.newlabel("LWD")
    A(f"v_cmp_gt_u32 vcc, {val}, v{vt}")
    A(f"s_cbranch_vccz {done}")
    A.label(lab)
    A(f"ds_read_b32 v{vt}, v{vaddr} offset:{off}")
    A("s_waitcnt lgkmcnt(0)")
    A(f"v_cmp_gt_u32 vcc, {val}, v{vt}")
    A(f"s_cbranch_vccnz {lab}")
    A.label(done)

def g1_main2(A, vm, cid):
    LA = O.LA; NS = LA + 1
    lg = Lg(A); rid = {}
    vm.wait(cid[0])
    A(f"v_mov_b32 v{GT}, 1"); A(f"ds_write_b32 v{GOWN}, v{GT}")
    lwait(A, GRD, 0, GT + 1, 1, sleep=0)
    for t in range(LA):
        for r in g1_fr(g1_reads(t), t, NS): rid[t] = lg.op(r)
    sc = 4 - LA
    for c in range(8):
        if O.TSC and c in O.TSC: parts_ts(A, 2 + O.TSC.index(c))
        off = 0 if c + 1 < O.LOOK else 48
        own = 4 <= c + 3 < O.LOOK
        units = [u for u in split_groups(g_chunk_dma(c + 3), 8)] if own else []
        if O.GW2 and c >= 5 and c - 5 < O.GW2N:
            own = True; units = split_groups(gw2_dma(c - 5), 7) + [[]]
        for s in range(4):
            t = 4 * c + s
            mf = g1_fr(g1_mfmas(t), t, NS)
            need = rid[t]
            if s == sc and c < 7: need = max(need, pid)
            if own and s == 1: need = max(need, did)
            first = []; pre = []
            if s == O.ARR and c + 1 < O.LOOK:
                vm.wait(cid[c + 1])
                first += [f"ds_write_b32 v{GOWN}, v{GT}"]
                A(f"v_mov_b32 v{GT}, {c+2}")
            lg.wait(need)
            if s == sc and c < 7: lchk(A, GRD, off, GT + 1, c + 2)
            if own and s == 1: lchk(A, GRD, 16, GX, c)
            if s == 3: pre = [f"v_mov_b32 v{GT}, {c+1}", f"ds_write_b32 v{GOWN}, v{GT} offset:16"]
            rd = g1_fr(g1_reads(t + LA), t + LA, NS) if t + LA < 32 else []
            def dm(g):
                if own:
                    for _ in range(O.DSL.count(4 * s + g)):
                        for x in units.pop(0): vm.op(x)
                    if not units and c + 3 not in cid: cid[c + 3] = vm.n
            def em(x):
                if x.startswith("ds_"): return lg.op(x)
                A(x)
            sp = O.RSP
            A(mf[0])
            for x in first + pre: em(x)
            if s == sc - 1 and c < 7 and O.PPOS == 0: pid = lg.op(f"ds_read_b32 v{GT+1}, v{GRD} offset:{off}")
            if own and s == 0: did = lg.op(f"ds_read_b32 v{GX}, v{GRD} offset:16")
            for x in rd[:sp[0]]: rid[t + LA] = lg.op(x)
            dm(0)
            A(mf[1])
            for x in rd[sp[0]:sp[1]]: rid[t + LA] = lg.op(x)
            dm(1)
            A(mf[2])
            if s == sc - 1 and c < 7 and O.PPOS == 2: pid = lg.op(f"ds_read_b32 v{GT+1}, v{GRD} offset:{off}")
            for x in rd[sp[1]:sp[2]]: rid[t + LA] = lg.op(x)
            if c == 0 and O.LOOK >= 4 and O.L3 == "i":
                for x in split_groups(g_chunk_dma(3), 4)[s]: vm.op(x)
                cid[3] = vm.n
            dm(2)
            A(mf[3])
            for x in rd[sp[2]:]: rid[t + LA] = lg.op(x)
            dm(3)
        assert not units

def silu_np(A, regs, tmp):
    n = len(regs)
    for i, (s, d) in enumerate(regs):
        for e in range(2): A(f"v_mul_f32 v{tmp+2*i+e}, s{S_CL}, v{s+e}")
    for i in range(2 * n): A(f"v_exp_f32 v{tmp+i}, v{tmp+i}")
    for i in range(2 * n): A(f"v_add_f32 v{tmp+i}, 1.0, v{tmp+i}")
    for i in range(2 * n): A(f"v_rcp_f32 v{tmp+i}, v{tmp+i}")
    for i, (s, d) in enumerate(regs):
        for e in range(2): A(f"v_mul_f32 v{tmp+2*i+e}, v{tmp+2*i+e}, v{s+e}")
    for i, (s, d) in enumerate(regs):
        A(f"v_cvt_pk_bf16_f32 v{d}, v{tmp+2*i}, v{tmp+2*i+1}")

def split_groups(lst, n):
    units = []; cur = []
    for x in lst:
        cur.append(x)
        if x.startswith("buffer_"): units.append(cur); cur = []
    g = [[] for _ in range(n)]
    for i, u in enumerate(units): g[i * n // len(units)] += u
    return g

def g1_epi(A):
    w = S_WAVE
    if O.VERD:
        A(f"v_mov_b32 v{GX}, {L_RDY}")
        A(f"ds_read_b32 v{GT}, v{GX} offset:{L_VERD-L_RDY}")
    A(f"s_lshl_b32 s{S_HO}, s{S_RB}, 2")
    A(f"s_and_b32 s{S_T0}, s{w}, 2")
    A(f"s_add_u32 s{S_HO}, s{S_HO}, s{S_T0}")
    A(f"s_mul_i32 s{S_T1}, s{S_T0}, 7")
    A(f"s_mul_i32 s{S_HO}, s{S_HO}, 112")
    A(f"s_lshl_b32 s{S_T0}, s{S_CB}, 3")
    A(f"s_add_u32 s{S_HO}, s{S_HO}, s{S_T0}")
    A(f"s_and_b32 s{S_T0}, s{w}, 1")
    A(f"s_add_u32 s{S_T1}, s{S_T1}, s{S_T0}")
    A(f"s_lshl_b32 s{S_T0}, s{S_T0}, 2")
    A(f"s_add_u32 s{S_HO}, s{S_HO}, s{S_T0}")
    A(f"s_lshr_b32 s{S_T0}, s{S_J}, 2")
    A(f"s_lshl_b32 s{S_T0}, s{S_T0}, 1")
    A(f"s_add_u32 s{S_T1}, s{S_T1}, s{S_T0}")
    A(f"s_lshl_b32 s{S_T1}, s{S_T1}, {O.HFS}")
    A(f"s_add_u32 s{S_HF}, s{S_HF}, s{S_T1}")
    A(f"s_lshl_b32 s{S_HO}, s{S_HO}, 10")
    A(f"s_add_u32 s{S_XO}, s{S_HO}, {112*1024}")
    if O.HAB:
        A(f"s_lshr_b32 s{S_T0}, s{w}, 1")
        A(f"s_mul_i32 s{S_T0}, s{S_T0}, {112*1024}")
        A(f"s_sub_u32 s{S_XO}, s{S_HO}, s{S_T0}")
        A(f"s_and_b32 s{S_T0}, s{S_XCD}, 1")
        A(f"s_mul_i32 s{S_T0}, s{S_T0}, {224*1024}")
        A(f"s_add_u32 s{S_HO}, s{S_XO}, {224*1024}")
        A(f"s_sub_u32 s{S_HO}, s{S_HO}, s{S_T0}")
        A(f"s_add_u32 s{S_XO}, s{S_XO}, s{S_T0}")
        token_get(A, GX, VTOK)
    st = []
    p = 0
    for a, b in ([(0,0),(1,0),(0,1),(1,1)] if O.HAB else [(0,0),(0,1),(1,0),(1,1)]):
        if True:
            acc = G1_ACC + (2*a+b)*16
            for fh in range(2):
                dst = G1_FR + p * 4
                (silu_np if O.NOPK else silu_pairs)(A, [(acc + 8*fh + 2*i, dst + i) for i in range(4)], STMP)
                so = S_HO if b == 0 else S_XO
                st.append(f"buffer_store_dwordx4 {vr(dst,4)}, v{HV}, s[{S_WS}:{S_WS+3}], s{so} offen offset:{(2*a+fh)*1024}")
                if O.HAB and p == O.FA:
                    A(f"s_waitcnt vmcnt({p-4})")
                    flag_store(A, S_HF, GT, VTOK, O.HST)
                    tsg(A, 3, "h")
                    A(f"s_add_u32 s{S_HF}, s{S_HF}, {F_P-F_H}")
                A(st[-1] + " " + O.HST)
                p += 1
    tsg(A, 5, "e")
    if O.GW2:
        token_get(A, GX, VTOK)
        lwait(A, GRD, 16, GT, 8, sleep=0)
        n = 0
        if O.W2AF == 0:
            for sl in range(O.GW2N, 4):
                for x in gw2_dma(sl): A(x)
                n += 7
        A(f"s_waitcnt vmcnt({n})")
        flag_store(A, S_HF, GT, VTOK, O.HST)
        if O.W2AF == 1:
            for sl in range(O.GW2N, 4):
                for x in gw2_dma(sl): A(x)
        return
    if not O.VERD:
        if not O.HAB: token_get(A, GX, VTOK)
        A("s_waitcnt vmcnt(0)")
        flag_store(A, S_HF, GT, VTOK, O.HST)
        return
    lwait(A, GX, L_VERD - L_RDY, GT, 1, issued=True)
    A(f"ds_read_b64 {vr(VTOK,2)}, v{GX}")
    A(f"v_cmp_eq_u32 vcc, {1 if not O.SLOW else 7}, v{GT}")
    A("s_waitcnt vmcnt(0) lgkmcnt(0)")
    A("s_cbranch_vccz G_SLOW")
    flag_store(A, S_HF, GT, VTOK, O.HST)
    A("s_branch G_FD")
    A.label("G_SLOW")
    for x in st: A(x + " sc1")
    A("s_waitcnt vmcnt(0)")
    flag_store(A, S_HF, GT, VTOK)
    A.label("G_FD")

def g2_main(A):
    vm = Vm(A); lg = Lg(A)
    hid = {}; wid = {}
    assert HR0 + 4 * O.DEPTH <= 256 and AF + 8 * O.NA <= PK
    sched = {}; free = [HR0 + 4 * k for k in range(O.DEPTH)]; nx = 0
    for stp in range(0, 56):
        if stp >= 1: free.append(HQ[stp - 1])
        if O.XQ and stp == O.XQ[0]: free += [2 + 4 * k for k in range(8)]
        if O.XQ and stp == O.XQ[1]: free += [ACCA + 4 * k for k in range(8)]
        sched[stp] = []
        while nx < 56 and free and len(sched[stp]) < (O.DEPTH if stp == 0 else O.XR):
            HQ[nx] = free.pop(0); sched[stp].append(nx); nx += 1; lasts = stp
    for i in sched[0]:
        for x in h_load(i): vm.op(x)
        hid[i] = vm.n
    for i in range(O.PFD): wid[i] = 0
    send = []
    for t in range(2):
        for hf in range(2):
            send += [f"v_cvt_pk_bf16_f32 v{PK+8*t+4*hf+k}, v{ACCA+16*t+8*hf+2*k}, v{ACCA+16*t+8*hf+2*k+1}" for k in range(4)]
            send.append(f"ds_write_b128 v{RW}, {vr(PK+8*t+4*hf,4)} offset:{2048*t+1024*hf}")
    send += [f"v_mov_b32 v{GT+1}, 9", f"ds_write_b32 v{GOWN}, v{GT+1} offset:16"]
    if O.TS and O.TSG == "a" and not O.TSC: send.append(f"s_memtime s[{S_TS+10}:{S_TS+11}]")
    st = O.ST
    PR = 224
    pld = [f"buffer_load_dwordx4 {vr(PR+4*q,4)}, v{HV}, s[{S_WS}:{S_WS+3}], s{S_PO} offen offset:{1024*q} sc1" for q in range(4)]
    AL, GL_, VA0, SA0, SG0 = 240, 36, 38, 64, 68
    ald = []
    if O.TL3:
        A(f"s_lshr_b32 s{SG0}, s{S_OO}, 15")
        A(f"s_lshl_b32 s{SG0}, s{SG0}, 8")
        A(f"s_bfe_u32 s{SA0}, s{S_OO}, 0x40006")
        A(f"s_lshl_b32 s{SA0}, s{SA0}, 18")
        A(f"s_add_u32 s{SA0}, s{SA0}, s{SG0}")
        A(f"s_add_u32 s{SA0}, s{SA0}, {WS_A2}")
        A(f"s_add_u32 s{SG0}, s{SG0}, {WS_G}")
        for q in range(1, 4): A(f"s_add_u32 s{SA0+q}, s{SA0}, {q*65536}")
        A(f"v_and_b32 v{VA0+2}, 31, v1")
        A(f"v_lshlrev_b32 v{VA0+2}, 3, v{VA0+2}")
        A(f"v_lshrrev_b32 v{VA0}, 5, v1")
        A(f"v_lshl_add_u32 v{VA0}, v{VA0}, 15, v{VA0+2}")
        A(f"v_add_u32 v{VA0+1}, 16384, v{VA0}")
        ald = [f"buffer_load_dwordx2 {vr(GL_,2)}, v{VA0+2}, s[{S_WS}:{S_WS+3}], s{SG0} offen sc1"]
        ald += [f"buffer_load_dwordx2 {vr(AL+4*q+2*e,2)}, v{VA0+e}, s[{S_WS}:{S_WS+3}], s{SA0+q} offen sc1" for q in range(4) for e in range(2)]
    if O.TL2 or O.TL3:
        assert HR0 + 4 * O.DEPTH <= PR and O.PSTEP > lasts
        A(f"s_xor_b32 s{S_PO}, s2, 1")
        A(f"s_lshl_b32 s{S_PO}, s{S_PO}, 2")
        A(f"s_add_u32 s{S_PO}, s{S_PO}, s{S_WAVE}")
        A(f"s_lshl_b32 s{S_PO}, s{S_PO}, 12")
        A(f"s_add_u32 s{S_PO}, s{S_PO}, {WS_P}")
    for i in range(56):
        if O.TS and O.TSG == "s" and i in st: parts_ts(A, 2 + st.index(i))
        k = min(lg.n - wid[i], 15)
        need_l = wid[i] > lg.done
        if need_l: lg.done = lg.n - k
        vm.wait(hid[i], f"lgkmcnt({k})" if need_l else "")
        if O.HAB and 28 in sched[i]:
            vm.wait(bid)
            A(f"v_cmp_ne_u32 vcc, v{VTOK}, v{GT}")
            A("s_cbranch_vccz G_BD")
            poll(A, FVB, GT, VTOK, "PB", slp=O.HSLP)
            A.label("G_BD")
        fr = AF + 8 * (i % O.NA); hr = HQ[i]
        acc0 = ACCA if i < 28 else ACCB
        g = [[], []]
        if i + O.PFD < 56:
            rd = w2_read(i + O.PFD); g[0] += rd[:2]; g[1] += rd[2:]
        own = {}
        for q, nl in enumerate(sched[i] if i else []):
            hl = h_load(nl); own[hl[-1]] = nl
            g[min(q, 1)] += hl
        if i >= 29:
            for gi in range(2):
                for _ in range(O.SPG):
                    if send and not (O.XQ and O.XF and send[0].startswith("ds_write_b32") and (i, gi) < (lasts, 1)): g[gi].append(send.pop(0))
        if (O.TL2 or O.TL3) and i == O.PSTEP:
            g[1] += pld
        if O.TL3 and O.ASTEP <= i:
            q = i - O.ASTEP
            if O.APS == 3: g[0] += ald[3*q:3*q+2]; g[1] += ald[3*q+2:3*q+3]
            else: g[1] += ald[q:q+1]
        for m, t in enumerate((1, 0)):
            acc = acc0 + 16 * t
            c = "0" if i % 28 == 0 else vr(acc, 16)
            A(f"v_mfma_f32_32x32x16_bf16 {vr(acc,16)}, {vr(fr+4*t,4)}, {vr(hr,4)}, {c}" if "m" not in O.X2 else "s_nop 0")
            if i == 29 and m == 0: A("s_nop 1")
            for x in g[m]:
                if x.startswith("ds_"): lg.op(x)
                else:
                    vm.op(x)
                    if x in own: hid[own[x]] = vm.n
        if O.HAB and i == O.BS: bid = vm.op(f"buffer_load_dword v{GT}, v{FVB}, s[{S_WS}:{S_WS+3}], 0 offen sc1")
        if i + O.PFD < 56: wid[i + O.PFD] = lg.n
    T, R, GM = 2, 18, 34
    A(f"ds_read_b32 v{GT+1}, v{GRD} offset:32")
    A(f"v_mov_b32 v{GT}, 10")
    A(f"v_xor_b32 v{GX}, 8, v{GOWN}")
    A(f"s_lshl_b32 s{S_T0}, s{S_WAVE}, 8")
    A(f"s_add_u32 s{S_T0}, s{S_T0}, {L_T+16384}")
    A(f"v_lshl_add_u32 v{GM+1}, v1, 2, s{S_T0}")
    lwait(A, GRD, 32, GT + 1, 50, issued=True)
    A("s_nop 1")
    for q in range(4):
        A(f"ds_write_b128 v{RW}, {vr(ACCB+16+4*q,4)} offset:{q*1024}")
    A(f"ds_write_b32 v{GOWN}, v{GT} offset:16")
    if O.TL3:
        if O.PSTEP >= 56:
            for x in pld: A(x)
        tsg(A, 2, "f")
        lwait(A, GX, 16, GT + 1, 10, sleep=0)
        for q in range(4):
            A(f"ds_read_b128 {vr(R+4*q,4)}, v{RX} offset:{q*1024}")
        A(f"s_mov_b32 s{S_SPIN}, {O.SPIN}")
        def chk(name, tg, lds_, first):
            A(f"s_waitcnt vmcnt({first})")
            A.label(name + "L")
            acc = None
            tg = list(tg)
            if len(tg) % 2: A(f"v_xor_b32 v{GM}, v{VTOK}, v{tg.pop()}"); acc = GM
            for k in range(0, len(tg), 2):
                A(f"v_xor_b32 v{44+(k&2)}, v{VTOK}, v{tg[k]}")
                A(f"v_xor_b32 v{45+(k&2)}, v{VTOK}, v{tg[k+1]}")
                if acc: A(f"v_or3_b32 v{GM}, v{GM}, v{44+(k&2)}, v{45+(k&2)}")
                else: A(f"v_or_b32 v{GM}, v{44+(k&2)}, v{45+(k&2)}"); acc = GM
            A(f"v_cmp_ne_u32 vcc, 0, v{GM}")
            A(f"s_cbranch_vccz {name}D")
            for x in lds_: A(x)
            A(f"s_sub_u32 s{S_SPIN}, s{S_SPIN}, 1")
            A("s_waitcnt vmcnt(0)")
            A(f"s_cbranch_scc0 {name}L")
            A.label(name + "D")
        assert O.PSTEP >= O.ASTEP + 9 // O.APS
        chk("G_A", [AL + 1 + 2 * k for k in range(8)] + [GL_ + 1], ald, 4)
        for k in range(8):
            A(f"v_and_b32 v{AL+2*k+1}, 0xffff0000, v{AL+2*k}")
            A(f"v_lshlrev_b32 v{AL+2*k}, 16, v{AL+2*k}")
        for k in range(8):
            A(f"v_pk_mul_f32 {vr(T+2*k,2)}, {vr(AL+2*k,2)}, {vr(GL_,2)} op_sel:[0,0] op_sel_hi:[1,0]")
        A(f"v_sub_f32 v{GL_}, 1.0, v{GL_}")
        A(f"v_cvt_pk_bf16_f32 v{GL_}, v{GL_}, v{GL_}")
        A(f"v_lshlrev_b32 v{GL_}, 16, v{GL_}")
        A("s_waitcnt lgkmcnt(0)")
        for k in range(8):
            A(f"v_pk_add_f32 {vr(ACCB+2*k,2)}, {vr(ACCB+2*k,2)}, {vr(R+2*k,2)}")
        for k in range(8):
            A(f"v_pk_fma_f32 {vr(T+2*k,2)}, {vr(ACCB+2*k,2)}, {vr(GL_,2)}, {vr(T+2*k,2)} op_sel:[0,0,0] op_sel_hi:[1,0,1]")
        tsg(A, 3, "f")
        chk("G_P", [PR + 1 + 2 * k for k in range(8)], pld, 0)
        tsg(A, 4, "f")
        for k in range(8):
            A(f"v_and_b32 v{PR+2*k+1}, 0xffff0000, v{PR+2*k}")
            A(f"v_lshlrev_b32 v{PR+2*k}, 16, v{PR+2*k}")
        for k in range(8):
            A(f"v_pk_fma_f32 {vr(T+2*k,2)}, {vr(PR+2*k,2)}, {vr(GL_,2)}, {vr(T+2*k,2)} op_sel:[0,0,0] op_sel_hi:[1,0,1]")
        g2_out(A, T)
        tsg(A, 5, "f")
        return
    if O.TL2:
        if O.PSTEP >= 56:
            for x in pld: A(x)
        tsg(A, 2, "f")
        lwait(A, GX, 16, GT + 1, 10, sleep=0)
        for q in range(4):
            A(f"ds_read_b128 {vr(R+4*q,4)}, v{RX} offset:{q*1024}")
        A(f"ds_read_b32 v{GT+1}, v{GOWN} offset:32")
        for q in range(4):
            A(f"s_waitcnt lgkmcnt({4-q})")
            for k in (2*q, 2*q+1):
                A(f"v_pk_add_f32 {vr(ACCB+2*k,2)}, {vr(ACCB+2*k,2)}, {vr(R+2*k,2)}")
        lwait(A, GOWN, 32, GT + 1, 100, issued=True)
        tsg(A, 3, "f")
        A(f"ds_read_b32 v{GM}, v{GM+1}")
        for q in range(4):
            A(f"ds_read_b128 {vr(T+4*q,4)}, v{TV} offset:{q*1024}")
        A(f"s_mov_b32 s{S_SPIN}, {O.SPIN}")
        A.label("G_PL")
        A("s_waitcnt vmcnt(0)")
        for k in range(4):
            A(f"v_xor_b32 v{R+k}, v{VTOK}, v{PR+1+4*k}")
            A(f"v_xor_b32 v{R+4+k}, v{VTOK}, v{PR+3+4*k}")
        A(f"v_or3_b32 v{R}, v{R}, v{R+1}, v{R+2}")
        A(f"v_or3_b32 v{R+3}, v{R+3}, v{R+4}, v{R+5}")
        A(f"v_or3_b32 v{R}, v{R}, v{R+6}, v{R+7}")
        A(f"v_or_b32 v{R}, v{R}, v{R+3}")
        A(f"v_cmp_ne_u32 vcc, 0, v{R}")
        A("s_cbranch_vccz G_PD")
        for x in pld: A(x)
        A(f"s_sub_u32 s{S_SPIN}, s{S_SPIN}, 1")
        A("s_cbranch_scc0 G_PL")
        A("s_waitcnt vmcnt(0)")
        A.label("G_PD")
        tsg(A, 4, "f")
        for k in range(8):
            A(f"v_and_b32 v{PR+2*k+1}, 0xffff0000, v{PR+2*k}")
            A(f"v_lshlrev_b32 v{PR+2*k}, 16, v{PR+2*k}")
        for k in range(8):
            A(f"v_pk_add_f32 {vr(ACCB+2*k,2)}, {vr(ACCB+2*k,2)}, {vr(PR+2*k,2)}")
        A("s_waitcnt lgkmcnt(0)")
        for k in range(8):
            A(f"v_pk_fma_f32 {vr(T+2*k,2)}, {vr(ACCB+2*k,2)}, {vr(GM,2)}, {vr(T+2*k,2)} op_sel:[0,0,0] op_sel_hi:[1,0,1]")
        g2_out(A, T)
        tsg(A, 5, "f")
        return
    lwait(A, GOWN, 32, GT + 1, 100)
    A(f"ds_read_b32 v{GM}, v{GM+1}")
    for q in range(4):
        A(f"ds_read_b128 {vr(T+4*q,4)}, v{TV} offset:{q*1024}")
    lwait(A, GX, 16, GT + 1, 10, sleep=0)
    for q in range(4):
        A(f"ds_read_b128 {vr(R+4*q,4)}, v{RX} offset:{q*1024}")
    for k in range(8):
        A(f"v_pk_fma_f32 {vr(T+2*k,2)}, {vr(ACCB+2*k,2)}, {vr(GM,2)}, {vr(T+2*k,2)} op_sel:[0,0,0] op_sel_hi:[1,0,1]")
    for q in range(4):
        A(f"s_waitcnt lgkmcnt({3-q})")
        for k in (2*q, 2*q+1):
            A(f"v_pk_fma_f32 {vr(T+2*k,2)}, {vr(R+2*k,2)}, {vr(GM,2)}, {vr(T+2*k,2)} op_sel:[0,0,0] op_sel_hi:[1,0,1]")
    g2_out(A, T)
def g2_out(A, T):
    for k in range(8):
        A(f"v_cvt_pk_bf16_f32 v{PK+k}, v{T+2*k}, v{T+2*k+1}")
    A("s_nop 1")
    for h in range(2):
        A(f"v_permlane32_swap_b32 v{PK+4*h}, v{PK+4*h+2}")
        A(f"v_permlane32_swap_b32 v{PK+4*h+1}, v{PK+4*h+3}")
    A("s_nop 1")
    for h in range(2):
        A(f"buffer_store_dwordx4 {vr(PK+4*h,4)}, v{OV}, s[{S_OUT}:{S_OUT+3}], s{S_OO} offen offset:{32*h}")

def idle_tr_issue(A):
    A("v_lshrrev_b32 v8, 3, v1")
    A("v_and_b32 v9, 7, v1")
    A("v_lshlrev_b32 v10, 10, v8")
    A("v_lshl_add_u32 v10, v9, 4, v10")
    A(f"s_sub_u32 s64, s{S_J}, 28")
    A(f"s_lshl_b32 s64, s64, 2")
    A(f"s_add_u32 s64, s64, s{S_WAVE}")
    if O.UOWN:
        A(f"s_and_b32 s33, s64, 1")
        A(f"s_lshl_b32 s{S_T1}, s{S_XCD}, 1")
        A(f"s_add_u32 s33, s33, s{S_T1}")
        A(f"s_lshr_b32 s34, s64, 1")
    else:
        A(f"s_mov_b32 s33, s64")
        A(f"s_mov_b32 s34, s{S_XCD}")
    A(f"s_lshl_b32 s65, s33, 17")
    A(f"s_lshl_b32 s{S_T1}, s34, 7")
    A(f"s_add_u32 s65, s65, s{S_T1}")
    A(f"s_lshl_b32 s66, s{S_WAVE}, 15")
def idle_tr_dma(A):
    for i in range(16):
        A(f"s_add_u32 m0, s66, {i*1024}")
        A(f"s_add_u32 s{S_T1}, s65, {i*8192}")
        A(f"buffer_load_dwordx4 v10, s[{S_X}:{S_X+3}], s{S_T1} offen {O.UFL} lds")
def w2_touch(A, qs, dst):
    for q in qs:
        A(f"s_lshr_b32 s{S_T1}, s{S_XCD}, 1")
        A(f"s_add_u32 s{S_T1}, s{S_T1}, {q}")
        A(f"s_and_b32 s{S_T1}, s{S_T1}, 3")
        A(f"s_and_b32 s{S_T0}, s{S_XCD}, 1")
        A(f"s_lshl_b32 s{S_T0}, s{S_T0}, 2")
        A(f"s_add_u32 s{S_T1}, s{S_T1}, s{S_T0}")
        A(f"s_mul_i32 s{S_T1}, s{S_T1}, 229376")
        for i in range(2):
            A(f"buffer_load_dword v{dst}, v{24+i}, s[{S_W2}:{S_W2+3}], s{S_T1} offen {O.PFL2}")
def w2_touch_setup(A):
    A("s_mul_i32 s67, s64, 112")
    A("v_add_u32 v24, s67, v1")
    A("v_min_u32 v25, 47, v1")
    A("v_add3_u32 v25, v25, s67, 64")
    A("v_lshlrev_b32 v24, 7, v24")
    A("v_lshlrev_b32 v25, 7, v25")
def idle_tr_finish(A, extra=0):
    R = 128
    A("v_lshrrev_b32 v11, 4, v1")
    A("v_bfe_u32 v12, v1, 2, 2")
    A("v_lshl_add_u32 v12, v11, 3, v12")
    A("v_lshlrev_b32 v12, 7, v12")
    A("v_and_b32 v13, 3, v1")
    A("v_lshl_add_u32 v12, v13, 3, v12")
    A(f"v_add_u32 v12, s66, v12")
    A("v_bfe_u32 v13, v1, 1, 3")
    A("v_lshlrev_b32 v13, 13, v13")
    A("v_and_b32 v14, 1, v1")
    A("v_lshl_add_u32 v13, v14, 6, v13")
    A("v_lshl_add_u32 v16, v11, 4, v13")
    A(f"s_lshl_b32 s67, s34, 18")
    A(f"s_lshl_b32 s{S_T1}, s33, 9")
    A(f"s_add_u32 s67, s67, s{S_T1}")
    A(f"s_add_u32 s67, s67, {WS_UT}")
    for p in range(4):
        Rk = R + 16 * p
        A(f"s_waitcnt vmcnt({12+extra})")
        for a in range(4):
            for x in range(2):
                A(f"ds_read_b64_tr_b16 {vr(Rk+4*a+2*x,2)}, v12 offset:{p*4096+x*512+a*32}")
        for a in range(4):
            A(f"s_waitcnt lgkmcnt({6-2*a})")
            A(f"s_add_u32 s{S_T1}, s67, {a*65536}")
            A(f"buffer_store_dwordx4 {vr(Rk+4*a,4)}, v16, s[{S_WS}:{S_WS+3}], s{S_T1} offen offset:{p*128} sc1")
def ut2(A, part=None):
    R = 128
    if part == 1:
        for i in range(8):
            A(f"s_waitcnt vmcnt({7-i})")
            A(f"ds_write_b128 v16, {vr(R+4*i,4)} offset:{i*512}")
        return
    A(f"s_lshl_b32 s{Q_T0}, s{Q_PAIR}, 13")
    A(f"s_add_u32 s{Q_T0}, s{Q_T0}, {WS_UT}")
    A(f"s_add_u32 s{Q_T1}, s{Q_T0}, 4096")
    A("v_lshlrev_b32 v16, 4, v1")
    for i in range(8):
        A(f"buffer_load_dwordx4 {vr(R+4*i,4)}, v16, s[{S_WS}:{S_WS+3}], s{Q_T0+i//4} offen offset:{(i%4)*1024} sc1")
    A("v_bfe_u32 v16, v1, 2, 1")
    A(f"v_mul_u32_u24 v16, {U_STRIDE}, v16")
    A("v_lshrrev_b32 v17, 3, v1")
    A("v_lshl_add_u32 v16, v17, 6, v16")
    A("v_and_b32 v17, 3, v1")
    A("v_lshl_add_u32 v16, v17, 4, v16")
    A(f"v_add_u32 v16, {LDS_U+64}, v16")
    if part == 0: return
    for i in range(8):
        A(f"s_waitcnt vmcnt({7-i})")
        A(f"ds_write_b128 v16, {vr(R+4*i,4)} offset:{i*512}")
def idle_gate_issue(A):
    R = 64
    A(f"global_load_dwordx4 {vr(44,4)}, v{HV}, s[{P_GW}:{P_GW+1}]")
    A(f"s_lshl_b32 s68, s{S_XCD}, 4")
    A(f"s_add_u32 s68, s68, s64")
    A(f"s_lshl_b32 s65, s68, 14")
    for i in range(16):
        if i % 4 == 0: A(f"s_add_u32 s{S_T1}, s65, {i*1024}")
        A(f"buffer_load_dwordx4 {vr(R+4*i,4)}, v{HV}, s[{S_X}:{S_X+3}], s{S_T1} offen offset:{(i%4)*1024}")
def idle_gate_finish(A, extra=0):
    R = 64; S = 2
    A(f"s_waitcnt vmcnt({extra})")
    for k in range(4):
        for i in range(16):
            c = "0" if k == 0 else f"v{S+i}"
            A(f"v_dot2_f32_bf16 v{S+i}, v{R+4*i+k}, v{44+k}, {c}")
    for sh in ("row_shr:1", "row_shr:2", "row_shr:4", "row_shr:8"):
        for i in range(16):
            A(f"v_add_f32_dpp v{S+i}, v{S+i}, v{S+i} {sh} row_mask:0xf bank_mask:0xf bound_ctrl:1")
    for sh in ("row_bcast:15 row_mask:0xa", "row_bcast:31 row_mask:0xc"):
        for i in range(16):
            A(f"v_add_f32_dpp v{S+i}, v{S+i}, v{S+i} {sh} bank_mask:0xf")
    A("v_mov_b32 v20, 0")
    for h in range(2):
        for i in range(8): A(f"v_readlane_b32 s{38+i}, v{S+8*h+i}, 63")
        A("s_nop 3")
        for i in range(8): A(f"v_writelane_b32 v20, s{38+i}, {8*h+i}")
    A("v_cvt_pk_bf16_f32 v20, v20, v20")
    A("v_lshlrev_b32 v20, 16, v20")
    A("v_mul_f32 v20, 0xbfb8aa3b, v20")
    A("v_exp_f32 v20, v20")
    A("s_nop 0")
    A("v_add_f32 v20, 1.0, v20")
    A("v_rcp_f32 v20, v20")
    A("s_nop 0")
    A("v_cvt_pk_bf16_f32 v22, v20, v20")
    A("v_lshlrev_b32 v22, 16, v22")
    if O.TL3: A(f"v_mov_b32 v23, v{VTOK}")
    else:
        A("v_sub_f32 v23, 1.0, v22")
        A("v_cvt_pk_bf16_f32 v23, v23, v23")
        A("v_lshlrev_b32 v23, 16, v23")
    A("v_lshlrev_b32 v21, 3, v1")
    A(f"s_lshl_b32 s65, s68, 7")
    A(f"s_add_u32 s65, s65, {WS_G}")
    A("s_mov_b64 exec, 0xffff")
    A(f"buffer_store_dwordx2 v[22:23], v21, s[{S_WS}:{S_WS+3}], s65 offen sc1")
    A("s_mov_b64 exec, -1")

LX, LW, L2D, LSA, LGD, LV = 16, 56, 60, 62, 63, 20
K_XO, K_WO, K_M0, K_C0, K_W2, K_M2, K_T0, K_T1 = 76, 77, 78, 79, 80, 81, 82, 83
def loader_setup(A):
    lw = Q_NH
    A(f"s_and_b32 s{K_XO}, s{S_J}, 3")
    A(f"s_and_b32 s{K_T0}, s{S_XCD}, 6")
    A(f"s_lshl_b32 s{K_T0}, s{K_T0}, 1")
    A(f"s_add_u32 s{K_XO}, s{K_XO}, s{K_T0}")
    A(f"s_lshl_b32 s{K_XO}, s{K_XO}, 1")
    A(f"s_add_u32 s{K_XO}, s{K_XO}, s{lw}")
    A(f"s_and_b32 s{K_T0}, s{S_XCD}, 1")
    if O.HAB:
        A(f"s_xor_b32 s{K_XO}, s{K_XO}, s{K_T0}")
        A(f"s_xor_b32 s{K_XO}, s{K_XO}, 1")
    A(f"s_lshl_b32 s{K_XO}, s{K_XO}, 16")
    A(f"s_mul_i32 s{K_WO}, s{K_T0}, 7")
    A(f"s_lshr_b32 s{K_T1}, s{S_J}, 2")
    A(f"s_add_u32 s{K_WO}, s{K_WO}, s{K_T1}")
    A(f"s_lshl_b32 s{K_WO}, s{K_WO}, 8")
    A(f"s_lshl_b32 s{K_W2}, s{K_T1}, 7")
    A(f"s_mul_i32 s{K_T1}, s{lw}, {32*2*F}")
    A(f"s_add_u32 s{K_WO}, s{K_WO}, s{K_T1}")
    A(f"s_lshl_b32 s{K_M0}, s{lw}, 13")
    A(f"s_mul_i32 s{K_T0}, s{K_T0}, {56*16384}")
    A(f"s_add_u32 s{K_W2}, s{K_W2}, s{K_T0}")
    A(f"s_mul_i32 s{K_T0}, s{lw}, {7*16384}")
    A(f"s_add_u32 s{K_W2}, s{K_W2}, s{K_T0}")
    A(f"s_mul_i32 s{K_M2}, s{lw}, {7*2048}")
    rot_c0(A, K_C0, K_T0)
    A("v_lshrrev_b32 v34, 3, v1")
    A("v_and_b32 v35, 7, v1")
    A("v_lshrrev_b32 v36, 4, v1")
    A("v_xor_b32 v37, v35, v36")
    A("v_xor_b32 v38, 4, v37")
    A("v_lshlrev_b32 v34, 10, v34")
    A(f"v_lshl_add_u32 v{LX}, v37, 4, v34")
    A(f"v_lshl_add_u32 v{LX+1}, v38, 4, v34")
    A(f"v_add_u32 v{LX+1}, {8192-1024}, v{LX+1}")
    A(f"v_add_u32 v{LX+2}, {2*(8192-1024)}, v{LX}")
    A(f"v_add_u32 v{LX+3}, {2*(8192-1024)}, v{LX+1}")
    A("v_and_b32 v37, 1, v36")
    A("v_lshlrev_b32 v37, 2, v37")
    A("v_xor_b32 v37, v35, v37")
    A(f"v_lshl_add_u32 v{L2D}, v37, 4, v34")
    A(f"v_add_u32 v{L2D+1}, {8192-1024}, v{L2D}")
    A("v_and_b32 v35, 15, v1")
    A("v_lshlrev_b32 v37, 2, v36")
    A("v_xor_b32 v35, v35, v37")
    A(f"v_mul_u32_u24 v37, {2*F}, v36")
    A(f"v_lshl_add_u32 v{LW}, v35, 4, v37")
    for i in range(1, 4):
        A(f"v_add_u32 v{LW+i}, {i*(4*2*F-1024)}, v{LW}")
    A(f"s_lshl_b32 s{K_T0}, s{lw}, 3")
    A(f"s_add_u32 s{K_T0}, s{K_T0}, {L_SL}")
    A(f"s_cmp_eq_u32 s{Q_C}, 1")
    A(f"s_cselect_b32 s{K_T0}, s{K_T0}, {L_DUMMY}")
    A(f"v_mov_b32 v{LSA}, s{K_T0}")
    A(f"v_subrev_u32 v{LGD}, {L_SB-L_GD}, v{S_FRD}")
def l_chunk(A, cc):
    slot = cc % 4
    if "d" in O.X2: return
    A(f"s_add_u32 s{K_T0}, s{K_C0}, {cc}"); A(f"s_and_b32 s{K_T0}, s{K_T0}, 7")
    A(f"s_lshl_b32 s{K_T1}, s{K_T0}, 7"); A(f"s_add_u32 s{K_T1}, s{K_T1}, s{K_XO}")
    A(f"s_mul_i32 s{K_T0}, s{K_T0}, {64*2*F}"); A(f"s_add_u32 s{K_T0}, s{K_T0}, s{K_WO}")
    for q in range(2):
        A(f"s_add_u32 m0, s{K_M0}, {slot*32768+q*4096}")
        if q: A(f"s_add_u32 s{K_T1}, s{K_T1}, 32768")
        else: A("s_nop 0")
        for i in range(4):
            if "x" in O.X2: continue
            A(f"buffer_load_dwordx4 v{LX+i}, s[{S_X}:{S_X+3}], s{K_T1} offen offset:{i*1024} {O.XFL} lds")
        A(f"s_add_u32 m0, s{K_M0}, {slot*32768+16384+q*4096}")
        if q: A(f"s_add_u32 s{K_T0}, s{K_T0}, {16*2*F}")
        else: A("s_nop 0")
        for i in range(4):
            if "w" in O.X2: continue
            A(f"buffer_load_dwordx4 v{LW+i}, s[{S_W1}:{S_W1+3}], s{K_T0} offen offset:{i*1024} {O.W1FL} lds")
def l_pub(A, n, val):
    A(f"v_mov_b32 v{LV}, {val}"); A(f"v_mov_b32 v{LV+1}, {val}")
    A(f"s_waitcnt vmcnt({n})")
    A(f"ds_write_b64 v{LSA}, {vr(LV,2)}")
def loader(A, fin):
    A(f"s_cmp_ge_u32 s{S_J}, 28")
    A("s_cbranch_scc1 S_LW1")
    if O.LOOK == 3: l_chunk(A, 3)
    if O.LOOK == 8:
        A.label("S_LW1")
        fin()
    for c in range(max(4, O.LOOK), 8):
        lwait(A, LGD, 0, 31, c - 3)
        l_chunk(A, c)
        if c > O.LOOK: l_pub(A, 0 if "d" in O.X2 else 8 if ("x" in O.X2 or "w" in O.X2) else 16, c)
        if c == 7 and O.TOUCH:
            A(f"s_lshr_b32 s{K_T0}, s{K_XO}, 16")
            A(f"s_mul_i32 s{K_T0}, s{K_T0}, 224")
            A(f"s_and_b32 s{K_T1}, s{S_XCD}, 1")
            A(f"s_mul_i32 s{K_T1}, s{K_T1}, 56")
            A(f"s_add_u32 s{K_T0}, s{K_T0}, s{K_T1}")
            A(f"s_lshr_b32 s{K_T1}, s{S_J}, 2")
            A(f"s_lshl_b32 s{K_T1}, s{K_T1}, 3")
            A(f"s_add_u32 s{K_T0}, s{K_T0}, s{K_T1}")
            A(f"s_lshl_b32 s{K_T0}, s{K_T0}, 10")
            A(f"v_lshlrev_b32 v{LX}, 7, v1")
            A(f"s_add_u32 s{K_T1}, s{K_T0}, {112*1024}")
            A(f"buffer_load_dword v{LX+1}, v{LX}, s[{S_WS}:{S_WS+3}], s{K_T0} offen {O.TFL}")
            A(f"buffer_load_dword v{LX+2}, v{LX}, s[{S_WS}:{S_WS+3}], s{K_T1} offen {O.TFL}")
        if c == O.LFIN:
            A.label("S_LW1")
            fin()
            A(f"s_cmp_ge_u32 s{S_J}, 28")
            A("s_cbranch_scc1 S_LW2")
    A.label("S_LW2")
    if "v" in O.X2: l_pub(A, 0, 8)
    for s in range(4):
        lwait(A, LGD, 0, 31, 5 + s if "v" not in O.X2 else 8)
        if s == 0 and "v" in O.X2: pass
        for k in range(7):
            A(f"s_add_u32 m0, s{K_M2}, {s*32768+4096+k*2048}")
            A(f"s_add_u32 s{K_T0}, s{K_W2}, {(14*s+k)*16384}")
            A(f"buffer_load_dwordx4 v{L2D}, s[{S_W2}:{S_W2+3}], s{K_T0} offen {O.W2FL} lds")
            A(f"buffer_load_dwordx4 v{L2D+1}, s[{S_W2}:{S_W2+3}], s{K_T0} offen offset:1024 {O.W2FL} lds")
        if s == 0: l_pub(A, 16 if O.TOUCH else 14, 8)

TAB2 = LDS_SSM + 17408
S_PASS, S_UOK = 33, 34
U_SO, U_M0, UF, UD = 28, 29, 12, 13
def u_dma(A):
    for i in range(4):
        A(f"s_add_u32 m0, s{U_M0}, {i*1024}")
        A(f"s_add_u32 s{Q_T1}, s{U_SO}, {i*2048}")
        A(f"buffer_load_dwordx4 v{UD}, s[{S_WS}:{S_WS+3}], s{Q_T1} offen sc1 lds")
def u_setup(A):
    A(f"s_lshl_b32 s{Q_T0}, s{S_XCD}, {4+FS}")
    A(f"s_add_u32 s{Q_T0}, s{Q_T0}, {F_UT}")
    A("v_and_b32 v8, 15, v1")
    A(f"v_lshl_add_u32 v{UF}, v8, {FS}, s{Q_T0}")
    A(f"v_lshrrev_b32 v{UD}, 2, v1")
    A(f"v_lshlrev_b32 v{UD}, 3, v{UD}")
    A("v_and_b32 v8, 3, v1")
    A(f"v_add_lshl_u32 v{UD}, v{UD}, v8, 4")
    A(f"s_lshl_b32 s{U_SO}, s{Q_PAIR}, 7")
    A(f"s_add_u32 s{U_SO}, s{U_SO}, s{Q_NH}")
    A(f"s_lshl_b32 s{U_SO}, s{U_SO}, 6")
    A(f"s_add_u32 s{U_SO}, s{U_SO}, {WS_UT}")
    A(f"s_mul_i32 s{U_M0}, s{Q_NH}, {U_STRIDE}")
    A(f"s_add_u32 s{U_M0}, s{U_M0}, {LDS_U+64}")
    A(f"s_mov_b32 s{S_UOK}, 0")
def kgen2(A, later, hookA):
    w = S_WAVE; KC = Q_NH
    VW, VB, VA = 26, 27, 28
    E1, E8, E256, C0, E2, E4 = 128, 130, 132, 134, 136, 138
    LO = 140; E32 = 156; G = 160; CV = 200
    A(f"s_mul_i32 s{Q_TAB}, s{w}, {TAB_STRIDE}")
    A(f"s_add_u32 s{Q_TAB}, s{Q_TAB}, {TAB2}")
    A(f"v_lshl_add_u32 v{VW}, v1, 2, s{Q_TAB}")
    A("v_and_b32 v8, 15, v1")
    A("v_lshrrev_b32 v9, 5, v1")
    A(f"v_lshl_add_u32 v9, v9, 4, s{Q_TAB}")
    A("v_mov_b32 v10, 272")
    A(f"v_mad_u32_u24 v{VB}, v8, v10, v9")
    A("v_and_b32 v11, 7, v1")
    A("v_lshlrev_b32 v11, 2, v11")
    A("v_mov_b32 v12, 0xcbaaa988")
    A("v_lshrrev_b32 v11, v11, v12")
    A("v_and_b32 v11, 15, v11")
    A("v_and_b32 v12, 24, v1")
    A("v_cmp_eq_u32 vcc, 8, v12")
    A(f"s_mov_b32 s{Q_EX}, 0x0000ffff")
    A(f"s_mov_b32 s{Q_EX+1}, 0x0000ffff")
    A(f"s_mov_b32 s{Q_EX+2}, 0xffff0000")
    A(f"s_mov_b32 s{Q_EX+3}, 0xffff0000")
    A("v_cndmask_b32 v11, v8, v11, vcc")
    A(f"v_mad_u32_u24 v{VA}, v11, v10, v9")
    srd(A, S_WS, P_WS, WS_BYTES)
    A(f"v_mov_b32 v{LSA}, {L_DUMMY}")
    for k in range(16): A(f"v_mov_b32 v{KD+k}, 0")
    A(f"s_mov_b32 s{S_PASS}, 16")
    A("s_waitcnt lgkmcnt(0)")
    A(f"s_lshl_b32 s{Q_T0}, s{KC}, 4")
    A(f"s_lshr_b32 s{Q_LDT}, s{Q_LDT}, s{Q_T0}")
    A(f"s_lshl_b32 s{Q_LDT}, s{Q_LDT}, 16")
    A(f"s_lshr_b32 s{Q_DSK}, s{Q_DSK}, s{Q_T0}")
    A(f"s_lshl_b32 s{Q_DSK}, s{Q_DSK}, 16")
    A(f"v_mov_b32 v6, {LOG2E}")
    A(f"v_mul_f32 v7, s{Q_LDT}, v6")
    A("v_exp_f32 v7, v7")
    hookA()
    A("v_cvt_pk_bf16_f32 v7, v7, v7")
    A("v_lshlrev_b32 v7, 16, v7")
    A(f"s_waitcnt vmcnt({later})")
    tss(A, 2, "ak")
    A.label("KG_LOOP")
    for i in range(4): A(f"v_lshlrev_b32 v{2+i}, s{S_PASS}, v{14+i}")
    for i in range(4): A(f"v_and_b32 v{2+i}, 0xffff0000, v{2+i}")
    A("v_mul_f32 v2, v6, v2")
    A("v_exp_f32 v2, v2")
    A("v_add_f32 v8, v7, v7")
    A("v_cvt_pk_bf16_f32 v2, v2, v2")
    A("v_lshlrev_b32 v2, 16, v2")
    A("v_mul_f32 v2, v2, v7")
    A("v_mul_f32 v3, v3, v7")
    A("v_mul_f32 v2, 0xbfb8aa3b, v2")
    A(f"v_mul_f32 v3, {INV2PI}, v3")
    A(f"v_mul_f32 v{C0}, v4, v8")
    A(f"v_mul_f32 v{C0+1}, v5, v8")
    A("v_mul_f32 v10, 0x41000000, v2")
    A("v_mul_f32 v11, 0x41000000, v3")
    A("v_mul_f32 v12, 0x43800000, v2")
    A("v_mul_f32 v13, 0x43800000, v3")
    for r in (11, 3, 13): A(f"v_fract_f32 v{r}, v{r}")
    for (m, f, e) in ((10, 11, E8), (2, 3, E1), (12, 13, E256)):
        A(f"v_exp_f32 v{m}, v{m}")
        A(f"v_cos_f32 v{e}, v{f}")
        A(f"v_sin_f32 v{e+1}, v{f}")
    for (m, e) in ((10, E8), (2, E1), (12, E256)):
        A(f"v_pk_mul_f32 {vr(e,2)}, {vr(e,2)}, {vr(m,2)} op_sel:[0,0] op_sel_hi:[1,0]")
    hook = None
    kgen_tables2(A, hook, VW, VB, VA, E1, E8, E256, C0, E2, E4, LO, E32, G, CV)
    for ks in range(8):
        A(f"s_waitcnt lgkmcnt({7-ks})")
        A(f"v_mfma_f32_32x32x16_bf16 {vr(KD,16)}, {vr(KA+4*ks,4)}, {vr(KB+4*ks,4)}, {vr(KD,16)}")
    A(f"s_cmp_eq_u32 s{S_PASS}, 0")
    A("s_cbranch_scc1 KG_DONE")
    tss(A, 3, "k")
    A(f"s_mov_b32 s{S_PASS}, 0")
    A("s_branch KG_LOOP")
    A.label("KG_DONE")
    tss(A, 4, "k"); tss(A, 3, "a")
    token_get(A, 8, STOK)
    X = 64
    A(f"s_mul_i32 s{Q_T0}, s{KC}, {K_STRIDE}")
    A(f"s_add_u32 s{Q_T0}, s{Q_T0}, {LDS_K}")
    A("v_and_b32 v8, 31, v1")
    A("v_lshrrev_b32 v9, 5, v1")
    A(f"v_lshl_add_u32 v8, v8, 4, s{Q_T0}")
    A(f"v_lshl_add_u32 v10, v1, 3, s{Q_T0}")
    A("v_mov_b32 v12, 0"); A("v_mov_b32 v13, 0")
    A("ds_write_b64 v10, v[12:13]")
    A("v_and_b32 v11, 15, v1")
    A(f"s_mul_i32 s{Q_T0}, s{KC}, {U_STRIDE}")
    A(f"s_add_u32 s{Q_T0}, s{Q_T0}, {LDS_U}")
    A(f"v_lshl_add_u32 v11, v11, 2, s{Q_T0}")
    A("ds_write_b32 v11, v12")
    A("v_cmp_eq_u32 vcc, 0, v1")
    A(f"v_mov_b32 v11, s{Q_DSK}")
    A("v_lshl_add_u32 v14, v9, 3, v8")
    A("v_lshl_add_u32 v15, v9, 9, v8")
    A("v_cndmask_b32 v11, 0, v11, vcc")
    A("v_lshl_add_u32 v16, v9, 10, v8")
    A("s_nop 4")
    A(f"v_add_f32 v{KD}, v{KD}, v11")
    A("v_and_b32 v11, 1, v1")
    A("v_cmp_eq_u32 vcc, 1, v11")
    for k in range(4): A(f"v_cvt_pk_bf16_f32 v{X+k}, v{KD+2*k}, v{KD+2*k+1}")
    a, b, c = KD + 8, KD + 9, KD + 10
    for k, (p, q) in enumerate(((a, a), (a, b), (b, b), (c, c))): A(f"v_cvt_pk_bf16_f32 v{X+4+k}, v{p}, v{q}")
    A(f"ds_write_b64 v14, {vr(X,2)} offset:448")
    A(f"ds_write_b64 v14, {vr(X+2,2)} offset:960")
    A(f"ds_write_b128 v15, {vr(X+4,4)} offset:1472")
    X = 72
    for k in range(2):
        a, b = KD + 12 + 2 * k, KD + 13 + 2 * k
        A(f"v_cndmask_b32 v11, v{a}, v{b}, vcc")
        A(f"v_cvt_pk_bf16_f32 v{X+4*k}, v{a}, v{a}")
        A(f"v_cvt_pk_bf16_f32 v{X+4*k+1}, v{a}, v{a}")
        A(f"v_cvt_pk_bf16_f32 v{X+4*k+2}, v11, v{b}")
        A(f"v_cvt_pk_bf16_f32 v{X+4*k+3}, v{b}, v{b}")
        A(f"ds_write_b128 v16, {vr(X+4*k,4)} offset:{2496+512*k}")

def loader2(A):
    A(f"s_cmp_ge_u32 s{S_J}, 28")
    A("s_cbranch_scc1 S_LW2")
    for c in range(O.LOOK, 8):
        if c >= 4: lwait(A, LGD, 0, 31, c - 3, sleep=O.LSLP)
        l_chunk(A, c)
        if c > O.LOOK: l_pub(A, 16, c)
        if c in (3, 5, 7): tss(A, 2 + (c - 3) // 2, "k")
    A.label("S_LW2")
    u_setup(A)
    token_get(A, 8, STOK)
    for s in range(4):
        lwait(A, LGD, 0, 31, 5 + s, sleep=O.LSLP)
        if s < 3:
            if s: A(f"s_cmp_eq_u32 s{S_UOK}, 1"); A(f"s_cbranch_scc1 S_U{s}")
            A(f"buffer_load_dword v9, v{UF}, s[{S_WS}:{S_WS+3}], 0 offen sc1")
            if s: A.label(f"S_U{s}")
        for k in range(7):
            A(f"s_add_u32 m0, s{K_M2}, {s*32768+4096+k*2048}")
            A(f"s_add_u32 s{K_T0}, s{K_W2}, {(14*s+k)*16384}")
            A(f"buffer_load_dwordx4 v{L2D}, s[{S_W2}:{S_W2+3}], s{K_T0} offen {O.W2FL} lds")
            A(f"buffer_load_dwordx4 v{L2D+1}, s[{S_W2}:{S_W2+3}], s{K_T0} offen offset:1024 {O.W2FL} lds")
        if s == 0: l_pub(A, 15, 8)
        if s < 3:
            if s: A(f"s_cmp_eq_u32 s{S_UOK}, 1"); A(f"s_cbranch_scc1 S_V{s}")
            A("s_waitcnt vmcnt(14)")
            A(f"v_cmp_ne_u32 vcc, v{STOK}, v9")
            A(f"s_cbranch_vccnz S_V{s}")
            u_dma(A)
            A(f"s_mov_b32 s{S_UOK}, 1")
            A.label(f"S_V{s}")
    tss(A, 5, "k")
    A("s_waitcnt vmcnt(14)")
    A(f"s_cmp_eq_u32 s{S_UOK}, 1"); A(f"s_cbranch_scc1 S_CV")
    poll(A, UF, 9, STOK, "PU")
    u_dma(A)
    A("s_waitcnt vmcnt(0)")

def conv_final3(A):
    w = S_WAVE
    A("v_bfe_u32 v8, v1, 3, 1")
    A("v_bfe_u32 v9, v1, 2, 1")
    A("v_and_b32 v10, 3, v1")
    A(f"v_lshl_add_u32 v8, v8, 2, s{w}")
    A("v_lshl_add_u32 v11, v8, 2, v10")
    A("v_lshlrev_b32 v11, 2, v11")
    A("v_lshl_add_u32 v12, v9, 7, v11")
    A("v_mul_u32_u24 v13, 144, v9")
    A("v_add_u32 v13, v13, v11")
    A(f"v_add_u32 v12, {LDS_HEAD}, v12")
    A(f"v_add_u32 v13, {LDS_CARR}, v13")
    A("v_lshl_add_u32 v8, v8, 8, v10")
    A("v_lshl_add_u32 v8, v8, 1, v9")
    A("v_lshlrev_b32 v8, 1, v8")
    A(f"v_add_u32 v8, {LDS_STG}, v8")
    A(f"s_lshl_b32 s{Q_T1}, s{w}, 10")
    A(f"s_add_u32 s{Q_T0}, s{Q_T1}, {LDS_STG}")
    A(f"v_lshl_add_u32 v9, v1, 3, s{Q_T0}")
    A("v_lshlrev_b32 v16, 4, v1")
    A(f"s_lshl_b32 s{Q_T0}, s{Q_PAIR}, 13")
    A(f"s_add_u32 s{Q_T0}, s{Q_T0}, s{Q_T1}")
    A(f"s_lshl_b32 s{Q_T0}, s{Q_T0}, 1")
    A(f"s_add_u32 s{Q_T0}, s{Q_T0}, {WS_A2}")
    A(f"s_add_u32 s{Q_T1}, s{Q_T0}, 8192")
    for k in range(4): A(f"v_mov_b32 v{67+4*k}, v{STOK}")
    s_barrier(A, 3)
    A("ds_read_b32 v12, v12")
    A("ds_read_b32 v13, v13")
    A("s_waitcnt lgkmcnt(0)")
    A("v_add_f32 v12, v12, v13")
    A("v_cvt_pk_bf16_f32 v12, v12, v12")
    A("ds_write_b16 v8, v12")
    for k in range(4): A(f"ds_read_b64 {vr(64+4*k,2)}, v9 offset:{(k//2)*4096+(k%2)*512}")
    for k in range(4):
        A(f"s_waitcnt lgkmcnt({3-k})")
        A(f"v_mov_b32 v{66+4*k}, v{65+4*k}")
        A(f"v_mov_b32 v{65+4*k}, v{STOK}")
        A(f"buffer_store_dwordx4 {vr(64+4*k,4)}, v16, s[{S_WS}:{S_WS+3}], s{Q_T0+k//2} offen offset:{(k%2)*1024} sc1")
def s_tail3(A):
    w = S_WAVE; SO_P = 76
    tss(A, 5, "a"); tss(A, 2, "t")
    A(f"s_lshl_b32 s{Q_T0}, s2, 2")
    A(f"s_add_u32 s{Q_T0}, s{Q_T0}, s{w}")
    A(f"s_lshl_b32 s{SO_P}, s{Q_T0}, 12")
    A(f"s_add_u32 s{SO_P}, s{SO_P}, {WS_P}")
    A(f"s_lshl_b32 s{Q_T0}, s{Q_NH}, 15")
    A(f"s_lshl_b32 s{Q_T1}, s{Q_C}, 11")
    A(f"s_add_u32 s{Q_T0}, s{Q_T0}, s{Q_T1}")
    A(f"v_add_u32 v17, s{Q_T0}, v16")
    A(f"v_xor_b32 v15, {0x10000+2048}, v17")
    A(f"s_lshl_b32 s{Q_T0}, s{Q_NH}, 2")
    A(f"s_add_u32 s{Q_T0}, s{Q_T0}, {L_GD}")
    A("v_and_b32 v5, 1, v1")
    A(f"v_lshl_add_u32 v5, v5, 3, s{Q_T0}")
    for k in range(8): A(f"v_mov_b32 v{97+2*k}, v{STOK}")
    lwait(A, 5, 0, 31, 9, sleep=1 - O.RSLP)
    tss(A, 3, "t")
    X = 112
    for h in range(2):
        A(f"ds_read_b128 {vr(X+4*h,4)}, v17 offset:{1024*h}")
        A(f"ds_read_b128 {vr(X+8+4*h,4)}, v15 offset:{1024*h}")
    A(f"v_mov_b32 v{S_FT}, 50")
    for h in range(2):
        A(f"s_waitcnt lgkmcnt({2-2*h})")
        if h == 1: A(f"ds_write_b32 v{S_FOWN}, v{S_FT}")
        for k in range(4):
            r = X + 4 * h + k
            A(f"v_lshlrev_b32 v80, 16, v{r}")
            A(f"v_lshlrev_b32 v81, 16, v{r+8}")
            A(f"v_and_b32 v82, 0xffff0000, v{r}")
            A(f"v_and_b32 v83, 0xffff0000, v{r+8}")
            A("v_add_f32 v80, v80, v81")
            A("v_add_f32 v82, v82, v83")
            A(f"v_cvt_pk_bf16_f32 v{96+8*h+2*k}, v80, v82")
            if k % 2 == 1:
                q = 2 * h + k // 2
                A(f"buffer_store_dwordx4 {vr(96+4*q,4)}, v16, s[{S_WS}:{S_WS+3}], s{SO_P} offen offset:{1024*q} {O.PST}")
    tss(A, 4, "t")
    A("s_waitcnt lgkmcnt(0)")

def s_tail(A):
    w = S_WAVE
    RT, CT, TT, DB = Q_EX, Q_EX + 1, Q_EX + 2, Q_EX + 3
    PK, AP, G, PP, T = 128, 136, 144, 148, 160
    SO_P, SO_PF, SO_A, SO_O = 76, 77, 78, 79
    A(f"s_lshl_b32 s80, s{Q_PAIR}, {FS}")
    A(f"s_lshl_b32 s{Q_T0}, s{w}, {8+FS}")
    A(f"s_add_u32 s80, s80, s{Q_T0}")
    A(f"s_add_u32 s80, s80, {F_A}")
    A(f"s_and_b32 s{RT}, s{S_XCD}, 6")
    A(f"s_lshl_b32 s{RT}, s{RT}, 1")
    A(f"s_and_b32 s{Q_T0}, s{S_J}, 3")
    A(f"s_add_u32 s{RT}, s{RT}, s{Q_T0}")
    A(f"s_lshl_b32 s{RT}, s{RT}, 1")
    A(f"s_and_b32 s{Q_T0}, s{S_XCD}, 1")
    A(f"s_add_u32 s{RT}, s{RT}, s{Q_T0}")
    A(f"s_lshr_b32 s{CT}, s{S_J}, 2")
    A(f"s_lshl_b32 s{TT}, s{RT}, 1")
    A(f"s_add_u32 s{TT}, s{TT}, s{Q_NH}")
    A(f"s_lshl_b32 s{DB}, s{CT}, 1")
    A(f"s_add_u32 s{DB}, s{DB}, s{Q_C}")
    A(f"s_bfe_u32 s{Q_T0}, s{RT}, 0x20002")
    A(f"s_lshl_b32 s{Q_T0}, s{Q_T0}, {8+FS}")
    A(f"s_lshl_b32 s{Q_T1}, s{DB}, {4+FS}")
    A(f"s_add_u32 s{Q_T0}, s{Q_T0}, s{Q_T1}")
    A(f"s_add_u32 s{Q_T0}, s{Q_T0}, {F_A}")
    A(f"v_lshl_add_u32 v2, v1, {FS}, s{Q_T0}")
    A(f"s_lshl_b32 s{Q_T0}, s{TT}, {1+FS}")
    A(f"s_add_u32 s{Q_T0}, s{Q_T0}, {F_G}")
    A("v_and_b32 v3, 1, v1")
    A(f"v_lshl_add_u32 v3, v3, {FS}, s{Q_T0}")
    A("v_cmp_gt_u32 vcc, 16, v1")
    A("v_and_b32 v10, 31, v1")
    A("v_lshrrev_b32 v11, 5, v1")
    A("v_cndmask_b32 v2, v3, v2, vcc")
    A("v_lshlrev_b32 v4, 14, v11")
    A("v_lshl_add_u32 v12, v10, 2, v4")
    A("v_add_u32 v13, 8192, v12")
    A(f"s_lshl_b32 s{Q_T0}, s{TT}, 8")
    A(f"s_add_u32 s{Q_T0}, s{Q_T0}, {WS_G}")
    A(f"v_lshl_add_u32 v14, v10, 3, s{Q_T0}")
    A(f"s_lshl_b32 s{SO_A}, s{DB}, 17")
    A(f"s_lshl_b32 s{Q_T1}, s{TT}, 7")
    A(f"s_add_u32 s{SO_A}, s{SO_A}, s{Q_T1}")
    A(f"s_add_u32 s{SO_A}, s{SO_A}, {WS_A}")
    A("v_lshlrev_b32 v16, 4, v1")
    A(f"s_lshl_b32 s{Q_T0}, s{w}, 12")
    A(f"s_add_u32 s{Q_T0}, s{Q_T0}, {L_T}")
    A(f"v_add_u32 v18, s{Q_T0}, v16")
    A(f"s_lshl_b32 s{Q_T0}, s{w}, 8")
    A(f"s_add_u32 s{Q_T0}, s{Q_T0}, {L_T+16384}")
    A(f"v_lshl_add_u32 v19, v1, 2, s{Q_T0}")
    A(f"s_lshl_b32 s{Q_T0}, s2, 2")
    A(f"s_add_u32 s{Q_T0}, s{Q_T0}, s{w}")
    A(f"s_lshl_b32 s{SO_P}, s{Q_T0}, 12")
    A(f"s_add_u32 s{SO_P}, s{SO_P}, {WS_P}")
    A(f"s_xor_b32 s{SO_O}, s{SO_P}, {4<<12}")
    A(f"s_lshl_b32 s{Q_T0}, s{Q_NH}, 15")
    A(f"s_lshl_b32 s{Q_T1}, s{Q_C}, 11")
    A(f"s_add_u32 s{Q_T0}, s{Q_T0}, s{Q_T1}")
    A(f"v_add_u32 v17, s{Q_T0}, v16")
    A(f"v_xor_b32 v15, {0x10000+2048}, v17")
    A(f"s_lshl_b32 s{Q_T0}, s{Q_NH}, 2")
    A(f"s_add_u32 s{Q_T0}, s{Q_T0}, {L_GD}")
    A("v_and_b32 v5, 1, v1")
    A(f"v_lshl_add_u32 v5, v5, 3, s{Q_T0}")
    for k in range(8): A(f"v_mov_b32 v{97+2*k}, v{STOK}")
    A("s_waitcnt vmcnt(0)")
    flag_store(A, 80, 8, STOK)
    tss(A, 5, "a"); tss(A, 2, "t")
    def ag():
        poll(A, 2, 9, STOK, "PA")
        for q in range(4):
            for i in range(2):
                A(f"buffer_load_dword v{AP+2*q+i}, v{12+i}, s[{S_WS}:{S_WS+3}], s{SO_A} offen sc1")
            if q < 3: A(f"s_add_u32 s{SO_A}, s{SO_A}, 32768")
        A(f"buffer_load_dwordx2 {vr(G,2)}, v14, s[{S_WS}:{S_WS+3}], 0 offen sc1")
    def ag2():
        for k in range(8):
            A(f"v_lshlrev_b32 v{T+2*k}, 16, v{AP+k}")
            A(f"v_and_b32 v{T+2*k+1}, 0xffff0000, v{AP+k}")
        for k in range(16):
            A(f"v_mul_f32 v{T+k}, v{G}, v{T+k}")
        A(f"ds_write_b32 v19, v{G+1}")
    def relay():
        for h in range(2):
            A(f"ds_read_b128 {vr(64+4*h,4)}, v17 offset:{1024*h}")
            A(f"ds_read_b128 {vr(72+4*h,4)}, v15 offset:{1024*h}")
        A(f"v_mov_b32 v{S_FT}, 50")
        for h in range(2):
            A(f"s_waitcnt lgkmcnt({2-2*h})")
            if h == 1: A(f"ds_write_b32 v{S_FOWN}, v{S_FT}")
            for k in range(4):
                r = 64 + 4 * h + k
                A(f"v_lshlrev_b32 v80, 16, v{r}")
                A(f"v_lshlrev_b32 v81, 16, v{r+8}")
                A(f"v_and_b32 v82, 0xffff0000, v{r}")
                A(f"v_and_b32 v83, 0xffff0000, v{r+8}")
                A("v_add_f32 v80, v80, v81")
                A("v_add_f32 v82, v82, v83")
                A(f"v_cvt_pk_bf16_f32 v{96+8*h+2*k}, v80, v82")
                if k % 2 == 1:
                    q = 2 * h + k // 2
                    A(f"buffer_store_dwordx4 {vr(96+4*q,4)}, v16, s[{S_WS}:{S_WS+3}], s{SO_P} offen offset:{1024*q} {O.PST}")
    if O.TL2:
        GOT, REL, POL = 33, 34, 35
        A(f"s_bfe_u32 s{Q_T0}, s{RT}, 0x20002")
        A(f"s_lshl_b32 s{Q_T0}, s{Q_T0}, {8+FS}")
        A(f"s_lshl_b32 s{Q_T1}, s{CT}, {5+FS}")
        A(f"s_add_u32 s{Q_T0}, s{Q_T0}, s{Q_T1}")
        A(f"s_add_u32 s{Q_T0}, s{Q_T0}, {F_A}")
        A(f"v_lshl_add_u32 v2, v1, {FS}, s{Q_T0}")
        A(f"s_lshl_b32 s{Q_T0}, s{RT}, {2+FS}")
        A(f"s_add_u32 s{Q_T0}, s{Q_T0}, {F_G}")
        A("v_and_b32 v3, 3, v1")
        A(f"v_lshl_add_u32 v3, v3, {FS}, s{Q_T0}")
        A("v_cmp_gt_u32 vcc, 32, v1")
        A(f"v_mov_b32 v6, {L_AOK}")
        A(f"s_mov_b32 s{GOT}, 0"); A(f"s_mov_b32 s{REL}, 0")
        A("v_cndmask_b32 v2, v3, v2, vcc")
        A(f"s_cmp_eq_u32 s{w}, {O.POLW}")
        A(f"s_cselect_b32 s{POL}, 1, 0")
        A(f"s_mov_b32 s{S_SPIN}, {O.SPIN}")
        A.label("T_L")
        A(f"s_cmp_eq_u32 s{POL}, 1")
        A("s_cbranch_scc0 T_NP")
        A(f"buffer_load_dword v9, v2, s[{S_WS}:{S_WS+3}], 0 offen sc1")
        A(f"s_sub_u32 s{S_SPIN}, s{S_SPIN}, 1")
        A("s_waitcnt vmcnt(0)")
        A("s_cbranch_scc1 T_OK")
        A(f"v_cmp_ne_u32 vcc, v{STOK}, v9")
        A("s_cbranch_vccnz T_NP")
        A.label("T_OK")
        A(f"ds_write_b32 v6, v{STOK+1}")
        A(f"s_mov_b32 s{POL}, 0")
        A.label("T_NP")
        A("ds_read_b32 v7, v6")
        A("ds_read_b32 v31, v5")
        A(f"s_cmp_eq_u32 s{GOT}, 0")
        A("s_waitcnt lgkmcnt(0)")
        A("s_cbranch_scc0 T_NA")
        A("v_cmp_eq_u32 vcc, 0, v7")
        A("s_cbranch_vccnz T_NA")
        tss(A, 4, "t")
        for q in range(4):
            for i in range(2):
                A(f"buffer_load_dword v{AP+2*q+i}, v{12+i}, s[{S_WS}:{S_WS+3}], s{SO_A} offen sc1")
            if q < 3: A(f"s_add_u32 s{SO_A}, s{SO_A}, 32768")
        A(f"buffer_load_dwordx2 {vr(G,2)}, v14, s[{S_WS}:{S_WS+3}], 0 offen sc1")
        A(f"s_mov_b32 s{GOT}, 1")
        A(f"s_cmp_eq_u32 s{REL}, 1")
        A("s_cbranch_scc1 T_W0")
        A.label("T_NA")
        A(f"s_cmp_eq_u32 s{REL}, 0")
        A("s_cbranch_scc0 T_SL")
        A("v_cmp_gt_u32 vcc, 9, v31")
        A("s_cbranch_vccnz T_SL")
        tss(A, 3, "t")
        relay()
        A(f"s_mov_b32 s{REL}, 1")
        A(f"s_cmp_eq_u32 s{GOT}, 1")
        A("s_cbranch_scc1 T_W4")
        A.label("T_SL")
        A(f"s_cmp_eq_u32 s{POL}, 1")
        A("s_cbranch_scc1 T_SP")
        A("s_sleep 1")
        A("s_branch T_L")
        A.label("T_SP")
        A(f"s_sleep {O.ASLP}")
        A("s_branch T_L")
        A.label("T_W0")
        A("s_waitcnt vmcnt(0)")
        A.label("T_W4")
        A("s_waitcnt vmcnt(4)")
        tss(A, 5, "t")
        ag2()
        for q in range(4):
            A(f"ds_write_b128 v18, {vr(T+4*q,4)} offset:{q*1024}")
        sw_arrive(A, S_FOWN, S_FT, 100)
        A("s_waitcnt lgkmcnt(0)")
        return
    if O.AFIRST:
        ag(); A("s_waitcnt vmcnt(0)"); ag2()
        tss(A, 3, "t")
    lwait(A, 5, 0, 31, 9, sleep=1)
    tss(A, 4 if O.AFIRST else 3, "t")
    for h in range(2):
        A(f"ds_read_b128 {vr(64+4*h,4)}, v17 offset:{1024*h}")
        A(f"ds_read_b128 {vr(72+4*h,4)}, v15 offset:{1024*h}")
    A(f"v_mov_b32 v{S_FT}, 50")
    for h in range(2):
        A(f"s_waitcnt lgkmcnt({2-2*h})")
        if h == 1: A(f"ds_write_b32 v{S_FOWN}, v{S_FT}")
        for k in range(4):
            r = 64 + 4 * h + k
            A(f"v_lshlrev_b32 v80, 16, v{r}")
            A(f"v_lshlrev_b32 v81, 16, v{r+8}")
            A(f"v_and_b32 v82, 0xffff0000, v{r}")
            A(f"v_and_b32 v83, 0xffff0000, v{r+8}")
            A("v_add_f32 v80, v80, v81")
            A("v_add_f32 v82, v82, v83")
            A(f"v_cvt_pk_bf16_f32 v{96+8*h+2*k}, v80, v82")
            if k % 2 == 1:
                q = 2 * h + k // 2
                A(f"buffer_store_dwordx4 {vr(96+4*q,4)}, v16, s[{S_WS}:{S_WS+3}], s{SO_P} offen offset:{1024*q} {O.PST}")
    if not O.AFIRST:
        ag()
        tss(A, 4, "t")
    A(f"s_mov_b32 s{S_SPIN}, {O.SPIN}")
    A.label("S_PL")
    for q in range(4):
        A(f"buffer_load_dwordx4 {vr(112+4*q,4)}, v16, s[{S_WS}:{S_WS+3}], s{SO_O} offen offset:{1024*q} sc1")
    if not O.AFIRST:
        A(f"s_cmp_eq_u32 s{S_SPIN}, {O.SPIN}")
        A("s_cbranch_scc0 S_PM")
        A("s_waitcnt vmcnt(4)")
        ag2()
        A.label("S_PM")
    A("s_waitcnt vmcnt(0)")
    for k in range(4):
        A(f"v_xor_b32 v{80+k}, v{STOK}, v{113+4*k}")
        A(f"v_xor_b32 v{84+k}, v{STOK}, v{115+4*k}")
    A("v_or3_b32 v80, v80, v81, v82")
    A("v_or3_b32 v83, v83, v84, v85")
    A("v_or3_b32 v80, v80, v86, v87")
    A("v_or_b32 v80, v80, v83")
    A("v_cmp_ne_u32 vcc, 0, v80")
    A("s_cbranch_vccz S_PD")
    A("s_sleep 1")
    A(f"s_sub_u32 s{S_SPIN}, s{S_SPIN}, 1")
    A("s_cbranch_scc0 S_PL")
    A.label("S_PD")
    tss(A, 5, "t")
    for q in range(4):
        for k in range(2):
            r = 112 + 4 * q + 2 * k
            A(f"v_lshlrev_b32 v{80+2*k}, 16, v{r}")
            A(f"v_and_b32 v{81+2*k}, 0xffff0000, v{r}")
        for k in range(4):
            A(f"v_fmac_f32 v{T+4*q+k}, v{G+1}, v{80+k}")
        A(f"ds_write_b128 v18, {vr(T+4*q,4)} offset:{q*1024}")
    sw_arrive(A, S_FOWN, S_FT, 100)
    A("s_waitcnt lgkmcnt(0)")

def diag(A, k, role):
    A("s_waitcnt vmcnt(0) lgkmcnt(0)")
    A(f"s_memtime s[{S_TS+12}:{S_TS+13}]")
    A("s_waitcnt lgkmcnt(0)")
    A(f"s_sub_u32 s64, s{S_TS+2*k}, s{S_TS+2}")
    A(f"s_cmp_ge_u32 s{S_J}, 28")
    A("s_cselect_b32 s64, 0, s64")
    A("v_mov_b32 v2, 128"); A("v_mov_b32 v3, s64")
    A("s_mov_b64 exec, 1")
    A(f"global_atomic_add v2, v3, s[{P_DBG}:{P_DBG+1}] sc1")
    for lab, first in (("DG0", True), ("DG1", False)):
        A("s_mov_b32 s66, 1000000")
        if first: A("s_mov_b32 s67, 3200")
        A.label(lab)
        A("s_memrealtime s[64:65]")
        A("s_waitcnt lgkmcnt(0)")
        A(f"s_sub_u32 s64, s64, s{S_TS}")
        A("s_cmp_ge_u32 s64, s67")
        A(f"s_cbranch_scc1 {lab}X")
        A("s_sub_u32 s66, s66, 1")
        A(f"s_cbranch_scc0 {lab}")
        A.label(lab + "X")
        if first:
            A("s_waitcnt vmcnt(0)")
            A(f"global_load_dword v3, v2, s[{P_DBG}:{P_DBG+1}] sc1")
            A("s_waitcnt vmcnt(0)")
            A("v_readfirstlane_b32 s67, v3")
            A("s_lshr_b32 s67, s67, 11")
            A("s_add_u32 s67, s67, 3500")
def fin(A, role):
    if O.DIAG is None: ts_dump(A, 0, S_W8)
    elif O.DIAG[0] == role: diag(A, O.DIAG[1], role)

KN = "gated_mix__ssm_conv_s4d__dense_activation_silu__prompt_kernel"
A = Asm()
A.raw("; @launch grid=(256,1,1) block=(512,1,1) lds=163840")
A.raw('.amdgcn_target "amdgcn-amd-amdhsa--gfx950"')
kernel_header(A, KN)
ts_real(A, 0); parts_ts(A, 1)
prologue(A, "K_END")
A(f"s_mov_b32 s{S_W8}, s{S_WAVE}")
A("v_and_b32 v2, 31, v1")
A("v_lshlrev_b32 v2, 2, v2")
A(f"v_add_u32 v2, {LF}, v2")
A("v_mov_b32 v3, 0")
A("ds_write_b32 v2, v3")
A(f"s_cmp_ge_u32 s{S_WAVE}, 4")
A("s_cbranch_scc1 K_SSM")
if O.GPRIO: A(f"s_setprio {O.GPRIO}")
A(f"s_cmp_ge_u32 s{S_J}, 28")
A("s_cbranch_scc1 K_IDLE")
g1_setup(A)
if O.HAB: hab_setup(A)
rot_c0(A, S_C0, S_T0)
A("s_waitcnt lgkmcnt(0)")
srd(A, S_X, P_U, L*D*2); srd(A, S_W1, P_W1, D*F*2)
vm = Vm(A); cid = {}
for x in g_chunk_dma(0): vm.op(x)
cid[0] = vm.n
if O.GPRE == 1: A("s_barrier")
if O.LOOK > 1:
    for x in g_chunk_dma(1): vm.op(x)
    cid[1] = vm.n
if O.GPRE == 2: A("s_barrier")
srd(A, S_WS, P_WS, WS_BYTES); srd(A, S_OUT, P_OUT, L*D*2)
g1_setup2(A); g_flags_setup(A); g2_setup(A)
if O.HAB: hab_setup2(A)
if O.GW2: gw2_setup(A)
if O.LOOK > 2:
    for x in g_chunk_dma(2): vm.op(x)
    cid[2] = vm.n
if O.LOOK >= 4 and O.L3 == "u":
    for x in g_chunk_dma(3): vm.op(x)
    cid[3] = vm.n
if "L" in O.X2:
    parts_ts(A, 2)
    for k in sorted(cid)[:3]:
        vm.wait(cid[k]); parts_ts(A, 3 + k)
if O.GHOLD: lwait(A, GRD, 32, GT, 1, sleep=4)
(g1_main if O.LA == 1 else g1_main2)(A, vm, cid)
tsg(A, 2, "aeh")
g1_epi(A)
tsg(A, 3, "ae")
A.label("K_G2")
if O.GW2:
    A(f"v_mov_b32 v{GT}, 12")
    A("s_waitcnt vmcnt(0)")
    A(f"ds_write_b32 v{GOWN}, v{GT}")
    lwait(A, GRD, 0, GT + 1, 12)
else: lwait(A, GRD, 48, GT, 12)
for i in range(O.PFD):
    for x in w2_read(i): A(x)
tsg(A, 4, "h")
if O.PW:
    poll(A, FV, GT, VTOK, "PH", slp=O.HSLP)
    A("s_waitcnt lgkmcnt(0)")
else:
    A(f"v_mov_b32 v{GX}, {L_HOK}")
    A(f"s_cmp_eq_u32 s{S_WAVE}, 0")
    A("s_cbranch_scc0 K_HW")
    poll(A, FV, GT, VTOK, "PH", slp=O.HSLP)
    A(f"ds_write_b32 v{GX}, v{VTOK+1}")
    A("s_waitcnt lgkmcnt(1)")
    A("s_branch K_HD")
    A.label("K_HW")
    lwait(A, GX, 0, GT, 1)
A.label("K_HD")
tsg(A, 5, "h")
tsg(A, 4, "ae"); tsg(A, 1, "sf")
g2_main(A)
A("s_waitcnt lgkmcnt(0)")
fin(A, "G")
A("s_endpgm")
A.label("K_IDLE")
if O.IPRIO != O.GPRIO: A(f"s_setprio {O.IPRIO}")
idle_tr_issue(A)
if O.CODEPF:
    A("s_getpc_b64 s[72:73]")
    A.label("K_PC")
    A(f"s_sub_u32 s72, s72, K_PC-{KN}")
    A("s_subb_u32 s73, s73, 0")
    A(f"v_lshl_add_u32 v20, s64, 5, v1")
    A("v_lshlrev_b32 v20, 7, v20")
    A(f"v_min_u32 v20, K_END-{KN}, v20")
    A("s_mov_b64 exec, 0xffffffff")
    A("global_load_dword v21, v20, s[72:73]")
    A("s_mov_b64 exec, -1")
A("s_waitcnt lgkmcnt(0)")
srd(A, S_X, P_U, L*D*2)
if any(O.W2P): srd(A, S_W2, P_W2, D*F*2); w2_touch_setup(A)
w2_touch(A, O.W2P[0], 26)
idle_tr_dma(A)
A("s_barrier")
w2_touch(A, O.W2P[1], 26)
srd(A, S_WS, P_WS, WS_BYTES); srd(A, S_OUT, P_OUT, L*D*2)
idle_tr_finish(A, 2 * len(O.W2P[1]))
g_flags_setup(A); g2_setup(A)
tsg(A, 2, "ae")
token_get(A, GX, VTOK)
A(f"s_lshl_b32 s68, s34, 4")
A(f"s_add_u32 s68, s68, s33")
A(f"s_lshl_b32 s65, s68, {FS}")
A(f"s_add_u32 s65, s65, {F_UT}")
A("s_waitcnt vmcnt(0)")
flag_store(A, 65, GT, VTOK)
tsg(A, 3, "ae")
A(f"v_mov_b32 v{GT}, 8")
A(f"ds_write_b32 v{GOWN}, v{GT} offset:16")
if O.IPRIO != O.GPRIO: A(f"s_setprio {O.GPRIO}")
w2_touch(A, O.W2P[2], 26)
idle_gate_issue(A)
w2_touch(A, O.W2P[3], 26)
if O.GW2:
    gw2_setup(A)
    lwait(A, GRD, 16, GT, 8)
    for sl in range(4):
        for x in gw2_dma(sl): A(x)
idle_gate_finish(A, 2 * len(O.W2P[3]) + (28 if O.GW2 else 0))
if not O.TL3:
    A(f"s_lshl_b32 s65, s68, {FS}")
    A(f"s_add_u32 s65, s65, {F_G}")
    A("s_waitcnt vmcnt(0)")
    flag_store(A, 65, GT, VTOK)
A("s_branch K_G2")
A.label("K_SSM")
if O.SPRIO: A(f"s_setprio {O.SPRIO}")
A(f"s_sub_u32 s{S_WAVE}, s{S_WAVE}, 4")
s_setup(A)
carry_zero(A)
A("s_getreg_b32 s31, hwreg(HW_REG_XCC_ID)")
def w2s():
    if O.W2S is None: return
    srd(A, S_W2, P_W2, D*F*2)
    A(f"s_lshr_b32 s{Q_T0}, s{S_XCD}, 1")
    A(f"s_and_b32 s{Q_T1}, s{S_XCD}, 1")
    A(f"s_lshl_b32 s{Q_T1}, s{Q_T1}, 2")
    A(f"s_add_u32 s{Q_T0}, s{Q_T0}, s{Q_T1}")
    A(f"s_lshl_b32 s{Q_T0}, s{Q_T0}, 5")
    A(f"s_add_u32 s{Q_T0}, s{Q_T0}, s{S_J}")
    A(f"s_lshl_b32 s{Q_T0}, s{Q_T0}, 1")
    A(f"s_add_u32 s{Q_T0}, s{Q_T0}, s{Q_NH}")
    A(f"s_mul_i32 s{Q_T0}, s{Q_T0}, 3584")
    A("v_min_u32 v39, 27, v1")
    A("v_lshlrev_b32 v39, 7, v39")
    A(f"buffer_load_dword v39, v39, s[{S_W2}:{S_W2+3}], s{Q_T0} offen {O.PFL2}")
def flow2():
    A(f"s_cmp_eq_u32 s{Q_C}, 1")
    A("s_cbranch_scc1 S_LD")
    A(f"s_lshl_b32 s{Q_T0}, s{Q_PAIR}, 9")
    A(f"s_lshl_b32 s{Q_T1}, s{S_WAVE}, 8")
    A(f"s_add_u32 s{Q_T0}, s{Q_T0}, s{Q_T1}")
    A(f"v_lshl_add_u32 v6, v1, 2, s{Q_T0}")
    A(f"s_lshl_b32 s{Q_T0}, s{Q_PAIR}, 2")
    A("s_waitcnt lgkmcnt(0)")
    for i, p in enumerate((P_LA, P_AI, P_CR, P_CI)):
        A(f"global_load_dword v{14+i}, v6, s[{p}:{p+1}]")
    A(f"s_load_dword s{Q_LDT}, s[{P_LDT}:{P_LDT+1}], s{Q_T0}")
    A(f"s_load_dword s{Q_DSK}, s[{P_DSK}:{P_DSK+1}], s{Q_T0}")
    A(f"s_add_u32 s28, s{P_WS}, {F_EP}")
    A(f"s_addc_u32 s29, s{P_WS+1}, 0")
    A(f"s_cmp_eq_u32 s{S_WAVE}, 1")
    A("s_cbranch_scc0 S_NT")
    A("s_load_dword s30, s[28:29], 0")
    A.label("S_NT")
    A("s_barrier")
    if O.W2S == 0: w2s()
    def tokpub():
        A(f"s_cmp_eq_u32 s{S_WAVE}, 1")
        A("s_cbranch_scc0 S_NP")
        A("s_mul_i32 s30, s30, 0x9e3779a1")
        A("s_add_u32 s30, s30, 0x7f4a7c10")
        A("s_and_b32 s30, s30, -16")
        A(f"v_mov_b32 v{STOK}, s30")
        A(f"v_mov_b32 v{STOK+1}, 1")
        A(f"v_mov_b32 v34, {L_RDY}")
        A(f"ds_write_b64 v34, {vr(STOK,2)}")
        A(f"s_waitcnt vmcnt({1 if O.W2S == 0 else 0})")
        A(f"s_lshl_b32 s28, s2, {FS}")
        A(f"s_add_u32 s28, s28, {F_HERE}")
        flag_store(A, 28, 36, STOK)
        A("s_branch S_NQ")
        A.label("S_NP")
        A(f"s_waitcnt vmcnt({1 if O.W2S == 0 else 0})")
        A.label("S_NQ")
    kgen2(A, 2, tokpub)
    tss(A, 5, "k")
    A("s_cmp_eq_u32 s2, 0")
    A("s_cbranch_scc0 S_UW")
    A(f"s_cmp_eq_u32 s{S_WAVE}, 1")
    A("s_cbranch_scc0 S_UW")
    for i in range(4):
        A(f"v_lshlrev_b32 v8, {FS}, v1")
        A(f"v_add_u32 v8, {F_HERE+(64<<FS)*i}, v8")
        poll(A, 8, 9, STOK, "PE")
    A(f"s_mov_b32 s{Q_T0}, {F_EP}")
    flag_store(A, Q_T0, 8, STOK)
    A.label("S_UW")
    A("s_branch S_CV")
    A.label("S_LD")
    if O.LPRIO != O.SPRIO: A(f"s_setprio {O.LPRIO}")
    loader_setup(A)
    A("s_waitcnt lgkmcnt(0)")
    srd(A, S_X, P_U, L*D*2); srd(A, S_W1, P_W1, D*F*2); srd(A, S_W2, P_W2, D*F*2)
    srd(A, S_WS, P_WS, WS_BYTES)
    A("s_barrier")
    if O.W2S == 1: w2s()
    if O.LDLY: A(f"s_sleep {O.LDLY}")
    loader2(A)
def flow1():
    A(f"s_lshl_b32 s{Q_T0}, s{Q_PAIR}, 9")
    A(f"s_lshl_b32 s{Q_T1}, s{S_WAVE}, 7")
    A(f"s_add_u32 s{Q_T0}, s{Q_T0}, s{Q_T1}")
    A(f"v_lshl_add_u32 v6, v1, 1, s{Q_T0}")
    A(f"s_lshl_b32 s{Q_T0}, s{Q_PAIR}, 2")
    A("s_waitcnt lgkmcnt(0)")
    for i, p in enumerate((P_LA, P_AI, P_CR, P_CI)):
        A(f"global_load_ushort v{2+i}, v6, s[{p}:{p+1}]")
    A(f"s_load_dword s{Q_LDT}, s[{P_LDT}:{P_LDT+1}], s{Q_T0}")
    A(f"s_load_dword s{Q_DSK}, s[{P_DSK}:{P_DSK+1}], s{Q_T0}")
    A(f"s_add_u32 s28, s{P_WS}, {F_EP}")
    A(f"s_addc_u32 s29, s{P_WS+1}, 0")
    A(f"s_cmp_eq_u32 s{S_WAVE}, 1")
    A("s_cbranch_scc0 S_NT")
    A("s_load_dword s30, s[28:29], 0")
    A.label("S_NT")
    A("s_barrier")
    if O.TCH:
        A(f"s_cmp_eq_u32 s{Q_C}, 1")
        A("s_cbranch_scc1 S_T2")
        A(f"s_cmp_eq_u32 s{Q_NH}, 1")
        A("s_cbranch_scc1 S_T1")
        srd(A, S_X, P_U, L*D*2)
        A(f"s_lshl_b32 s{Q_T0}, s{Q_PAIR}, 13")
        A("v_lshlrev_b32 v39, 7, v1" if "x" in O.TCH else "v_mov_b32 v39, 0")
        A(f"buffer_load_dword v39, v39, s[{S_X}:{S_X+3}], s{Q_T0} offen")
        A("s_branch S_T3")
        A.label("S_T1")
        srd(A, S_W1, P_W1, D*F*2)
        A(f"s_add_u32 s{Q_T0}, s{S_XCD}, {2*O.TR}")
        A(f"s_bfe_u32 s{Q_T0}, s{Q_T0}, 0x20001")
        A(f"s_lshl_b32 s{Q_T0}, s{Q_T0}, 5")
        A(f"s_add_u32 s{Q_T0}, s{Q_T0}, s{S_J}")
        A(f"s_mul_i32 s{Q_T0}, s{Q_T0}, {4*2*F}")
        A(f"s_and_b32 s{Q_T1}, s{S_XCD}, 1")
        A(f"s_mul_i32 s{Q_T1}, s{Q_T1}, {F}")
        A(f"s_add_u32 s{Q_T0}, s{Q_T0}, s{Q_T1}")
        A("v_and_b32 v38, 15, v1")
        A("v_min_u32 v38, 13, v38")
        A("v_lshrrev_b32 v39, 4, v1")
        A(f"v_mul_u32_u24 v39, {2*F}, v39")
        A("v_lshl_add_u32 v39, v38, 7, v39" if "w" in O.TCH else "v_mov_b32 v39, 0")
        A(f"buffer_load_dword v39, v39, s[{S_W1}:{S_W1+3}], s{Q_T0} offen")
        A("s_branch S_T3")
        A.label("S_T2")
        w2s()
        A.label("S_T3")
    elif O.W2H: pass
    elif O.W2S is not None:
        srd(A, S_W2, P_W2, D*F*2)
        A(f"s_lshr_b32 s{Q_T0}, s{S_XCD}, 1")
        A(f"s_and_b32 s{Q_T1}, s{S_XCD}, 1")
        A(f"s_lshl_b32 s{Q_T1}, s{Q_T1}, 2")
        A(f"s_add_u32 s{Q_T0}, s{Q_T0}, s{Q_T1}")
        A(f"s_lshl_b32 s{Q_T0}, s{Q_T0}, 5")
        A(f"s_add_u32 s{Q_T0}, s{Q_T0}, s{S_J}")
        A(f"s_mul_i32 s{Q_T0}, s{Q_T0}, 7168")
        A(f"s_mul_i32 s{Q_T1}, s{S_WAVE}, 1792")
        A(f"s_add_u32 s{Q_T0}, s{Q_T0}, s{Q_T1}")
        A("v_min_u32 v39, 13, v1")
        A("v_lshlrev_b32 v39, 7, v39")
        A(f"buffer_load_dword v39, v39, s[{S_W2}:{S_W2+3}], s{Q_T0} offen {O.PFL2}")
    def pre():
        if O.GW2: srd(A, S_WS, P_WS, WS_BYTES); return
        srd(A, S_X, P_U, L*D*2); srd(A, S_W1, P_W1, D*F*2); srd(A, S_W2, P_W2, D*F*2)
        srd(A, S_WS, P_WS, WS_BYTES)
        loader_setup(A)
    def tokpub():
        tss(A, 2, "ak")
        A(f"s_cmp_eq_u32 s{S_WAVE}, 1")
        A("s_cbranch_scc0 S_NP")
        A("s_mul_i32 s30, s30, 0x9e3779a1")
        A("s_add_u32 s30, s30, 0x7f4a7c10")
        A("s_and_b32 s30, s30, -16")
        A("s_and_b32 s31, s31, 15")
        A("s_or_b32 s31, s31, s30")
        A(f"v_mov_b32 v{STOK}, s30")
        A(f"v_mov_b32 v{STOK+1}, 1")
        A(f"v_mov_b32 v34, {L_RDY}")
        A(f"ds_write_b64 v34, {vr(STOK,2)}")
        A(f"v_mov_b32 v35, s31")
        A(f"s_lshl_b32 s28, s2, {FS}")
        A(f"s_add_u32 s28, s28, {F_HERE}")
        flag_store(A, 28, 36, 35)
        A.label("S_NP")
    def khook():
        tss(A, 3, "k")
        if O.W2H == 1:
            A(f"s_cmp_eq_u32 s{Q_C}, 1")
            A("s_cbranch_scc0 S_T4")
            w2s()
            A.label("S_T4")
    kgen(A, later=0 if (O.W2S is None or O.W2H) else 1, hookA=tokpub, pre=pre, hook=khook)
    tss(A, 4, "k")
    if O.W2H == 2:
        A(f"s_cmp_eq_u32 s{Q_C}, 0")
        A("s_cbranch_scc0 S_T4")
        w2s()
        A.label("S_T4")
    kgen_exchange_write(A)
    A("s_waitcnt lgkmcnt(0)")
    sw_arrive(A, S_FOWN, S_FT, 1)
    def kfin():
        sw_wait(A, S_FRD, S_FT, 1, sleep=1)
        kgen_final(A)
        token_get(A, 8, STOK)
    tss(A, 3, "a")
    if O.GW2:
        token_get(A, 16, STOK)
        A(f"s_cmp_eq_u32 s{S_WAVE}, {O.UW}")
        A("s_cbranch_scc0 S_K1")
        A(f"s_lshl_b32 s{Q_T0}, s{S_XCD}, {4+FS}")
        A(f"s_add_u32 s{Q_T0}, s{Q_T0}, {F_UT}")
        A("v_and_b32 v16, 15, v1")
        A(f"v_lshl_add_u32 v16, v16, {FS}, s{Q_T0}")
        poll(A, 16, 17, STOK, "PU")
        ut2(A, 0)
        A.label("S_K1")
        sw_wait(A, S_FRD, S_FT, 1, sleep=1)
        kgen_final(A)
        tss(A, 5, "k")
        A(f"s_cmp_eq_u32 s{S_WAVE}, {O.UW}")
        A("s_cbranch_scc0 S_K2")
        ut2(A, 1)
        A.label("S_K2")
        A("s_cmp_eq_u32 s2, 0")
        A("s_cbranch_scc0 S_CV")
        A(f"s_cmp_eq_u32 s{S_WAVE}, 1")
        A("s_cbranch_scc0 S_CV")
        for i in range(4):
            A(f"v_lshlrev_b32 v8, {FS}, v1")
            A(f"v_add_u32 v8, {F_HERE+(64<<FS)*i}, v8")
            poll(A, 8, 9, STOK, "PE", mask=True)
        A(f"s_mov_b32 s{Q_T0}, {F_EP}")
        flag_store(A, Q_T0, 8, STOK)
        return
    A(f"s_cmp_eq_u32 s{Q_C}, 1")
    A("s_cbranch_scc1 S_LD")
    kfin()
    tss(A, 5, "k")
    A(f"s_cmp_eq_u32 s{S_WAVE}, 1")
    A("s_cbranch_scc1 S_VD")
    A(f"s_lshl_b32 s{Q_T0}, s{S_XCD}, {4+FS}")
    A(f"s_add_u32 s{Q_T0}, s{Q_T0}, {F_UT}")
    A("v_and_b32 v8, 15, v1")
    A(f"v_lshl_add_u32 v8, v8, {FS}, s{Q_T0}")
    poll(A, 8, 9, STOK, "PU")
    ut2(A)
    A("s_branch S_CV")
    A.label("S_VD")
    if O.PT:
        A(f"s_lshr_b32 s{Q_T0}, s{S_J}, 2")
        A(f"s_lshl_b32 s{Q_T0}, s{Q_T0}, 18")
        A(f"s_xor_b32 s{Q_T1}, s{S_XCD}, 2")
        A(f"s_lshl_b32 s{Q_T1}, s{Q_T1}, 10")
        A(f"s_add_u32 s{Q_T0}, s{Q_T0}, s{Q_T1}")
        A(f"s_add_u32 s{Q_T0}, s{Q_T0}, {WS_A}")
        A(f"v_lshl_add_u32 v8, v1, 13, s{Q_T0}")
        A(f"s_lshl_b32 s{Q_T0}, s2, 14")
        A(f"s_add_u32 s{Q_T0}, s{Q_T0}, {WS_P}")
        A("v_and_b32 v9, 3, v1")
        A(f"v_lshl_add_u32 v9, v9, 12, s{Q_T0}")
        A("v_cmp_gt_u32 vcc, 32, v1")
        A(f"s_lshl_b32 s{Q_T0}, s{Q_PAIR}, 13")
        A(f"s_add_u32 s{Q_T0}, s{Q_T0}, s{Q_T1}")
        A("v_cndmask_b32 v8, v9, v8, vcc")
        A(f"s_add_u32 s{Q_T0}, s{Q_T0}, {WS_A}")
        A("v_and_b32 v9, 1, v1")
        A("v_lshlrev_b32 v9, 12, v9")
        A(f"v_xor_b32 v9, s{Q_T0}, v9")
        A("v_cmp_gt_u32 vcc, 48, v1")
        srd(A, S_OUT, P_OUT, L*D*2)
        A("v_cndmask_b32 v8, v9, v8, vcc")
        if "w" in O.PT: A(f"buffer_load_dword v38, v8, s[{S_WS}:{S_WS+3}], 0 offen")
        A(f"s_and_b32 s{Q_T0}, s{S_XCD}, 6")
        A(f"s_lshl_b32 s{Q_T0}, s{Q_T0}, 1")
        A(f"s_and_b32 s{Q_T1}, s{S_J}, 3")
        A(f"s_add_u32 s{Q_T0}, s{Q_T0}, s{Q_T1}")
        A(f"s_lshl_b32 s{Q_T0}, s{Q_T0}, 1")
        A(f"s_and_b32 s{Q_T1}, s{S_XCD}, 1")
        A(f"s_add_u32 s{Q_T0}, s{Q_T0}, s{Q_T1}")
        A(f"s_lshl_b32 s{Q_T0}, s{Q_T0}, 16")
        A(f"s_lshr_b32 s{Q_T1}, s{S_J}, 2")
        A(f"s_lshl_b32 s{Q_T1}, s{Q_T1}, 7")
        A(f"s_add_u32 s{Q_T0}, s{Q_T0}, s{Q_T1}")
        if "O" in O.PT: A("v_lshlrev_b32 v9, 10, v1")
        else:
            A("v_and_b32 v9, 15, v1")
            A("v_lshlrev_b32 v9, 12, v9")
        if "o" in O.PT.lower(): A(f"buffer_load_dword v37, v9, s[{S_OUT}:{S_OUT+3}], s{Q_T0} offen")
    if O.VERD:
        A(f"s_and_b32 s{Q_T0}, s2, 31")
        A(f"s_lshl_b32 s{Q_T0}, s{Q_T0}, {FS}")
        A(f"s_add_u32 s{Q_T0}, s{Q_T0}, {F_HERE}")
        A("v_and_b32 v8, 7, v1")
        A(f"v_lshl_add_u32 v8, v8, {5+FS}, s{Q_T0}")
        poll(A, 8, 9, STOK, "PV", mask=True)
        A("v_cmp_ne_u32 vcc, s31, v9")
        A("s_cmp_eq_u64 vcc, 0")
        A(f"s_cselect_b32 s{Q_T0}, 1, 2")
        A(f"v_mov_b32 v9, s{Q_T0}")
        A(f"v_mov_b32 v8, {L_VERD}")
        A("ds_write_b32 v8, v9")
    A("s_cmp_eq_u32 s2, 0")
    A("s_cbranch_scc0 S_CV")
    for i in range(4):
        A(f"v_lshlrev_b32 v8, {FS}, v1")
        A(f"v_add_u32 v8, {F_HERE+(64<<FS)*i}, v8")
        poll(A, 8, 9, STOK, "PE", mask=True)
    A(f"s_mov_b32 s{Q_T0}, {F_EP}")
    flag_store(A, Q_T0, 8, STOK)
    A("s_branch S_CV")
    A.label("S_LD")
    loader(A, kfin)

(flow2 if O.DL else flow1)()
A.label("S_CV")
conv_setup(A)
A(f"v_mov_b32 v{LV}, 12"); A(f"v_mov_b32 v{LV+1}, 12")
s_barrier(A, 2)
tss(A, 4, "a")
if O.CPRIO != O.SPRIO: A(f"s_setprio {O.CPRIO}")
conv(A, inj=None if O.GW2 else (O.PUBM, ["s_waitcnt vmcnt(0)", f"ds_write_b64 v{LSA}, {vr(LV,2)}"]))
if O.CPRIO != O.TPRIO: A(f"s_setprio {O.TPRIO}")
if O.TL3:
    conv_final3(A); s_tail3(A)
else:
    s_barrier(A, 3)
    conv_final(A, "sc1")
    s_tail(A)
fin(A, "S")
A.label("K_END")
A("s_endpgm")
kernel_desc(A, KN, 256)
open(sys.argv[1], "w").write(A.text())
```

```python
import sys; sys.path.insert(0, "gen")
import parts
from parts import *
import ssm
from ssm import *

class Opt: pass
O = Opt()
O.TS = False
O.ROT = (0, 0, 2, 1)
O.SPRIO = 3; O.CPRIO = 0; O.GPRIO = 1; O.TPRIO = 3
O.CODEPF = True
O.SPIN = 100000
O.SLP = 4; O.HSLP = 1
O.TSC = None; O.TSG = "a"; O.TSS = "a"
O.ARR = 1
O.DEPTH = 14
O.PUBM = 12
O.SLOW = False
O.DIAG = None
O.HFS = 8
O.HLD = "sc1"; O.HST = "sc1"; O.GHOLD = False; O.VERD = False; O.NA = 4; O.PFD = 2; O.NOPK = True; O.KG2 = True; O.KLO = "pk"; O.KHI = "sc"; O.LFIN = 7; O.TOUCH = False; O.PST = "sc1"; O.AFIRST = False; O.XFL = ""; O.W1FL = ""; O.W2FL = ""; O.TFL = "nt"; O.UFL = ""; O.PDLY = 0; O.LOOK = 4; O.PFL = 99; O.L3 = "i"; O.IPRIO = 3; O.TAILK = 0
O.X2 = ""; O.ST = (1, 14, 28, 42)
O.HAB = False; O.BS = 8; O.FA = 6; O.PW = False; O.TCH = ""; O.TR = 2; O.W2H = False; O.PT = ""; O.APS = 3; O.XF = 0; O.RSLP = 0; O.XQ = None; O.XR = 2; O.TL3 = False; O.ASTEP = 48
O.GW2 = False; O.GW2N = 3; O.W2AF = 0; O.UW = 3
O.TL2 = False; O.PSTEP = 52; O.SPG = 3; O.POLW = 3; O.ASLP = 8
O.GPRE = 1
O.DL = False; O.LPRIO = 3; O.LSLP = 1; O.LDLY = 0
O.W2S = None
O.W2P = ((), (), (), ()); O.PFL2 = ""; O.UOWN = False
O.LA = 1; O.RSP = (2, 4, 6); O.PPOS = 0
O.DSL = (6, 7, 8, 10, 11, 12, 14, 15)
O.PAW = 2
for a in sys.argv[2:]: exec("O." + a)
parts.TS = O.TS
ssm.KG2 = O.KG2; ssm.KLO = O.KLO; ssm.KHI = O.KHI
parts.gflag_setup = lambda A: None

LF = LDS_SSM + 31744
L_GL, L_GD, L_SB, L_SL, L_RDY, L_HOK, L_VERD = LF, LF + 16, LF + 32, LF + 48, LF + 64, LF + 72, LF + 76
L_AOK = LF + 80
L_DUMMY = LF + 128
ssm.LDS_SFLAG = L_SB
FS = 8
F_HERE, F_UT, F_G, F_A, F_H, F_P, F_EP = [WS_FLAG + (x << FS) for x in (0, 256, 384, 512, 1536, 2560, 3584)]
assert F_EP + 256 <= (13 << 20)
WS_P = 16 << 20
WS_BYTES = (24 if O.TL3 else 20) << 20
WS_A2 = 20 << 20
STOK = 32
S_W8, S_SPIN, S_HF = 27, 85, 32

parts_ts = ts
def tsg(A, i, mode="a"):
    if O.TSC: return
    if O.TSG in mode: parts_ts(A, i)
def tss(A, i, mode="a"):
    if O.TSS in mode: parts_ts(A, i)

class Vm:
    def __init__(self, A): self.A = A; self.n = 0; self.done = 0
    def op(self, s):
        self.A(s)
        if s.startswith("buffer_") or s.startswith("global_"): self.n += 1
        return self.n
    def cnt(self, idn):
        k = min(self.n - idn, 63); self.done = max(self.done, self.n - k); return k
    def wait(self, idn, extra=""):
        if idn <= self.done:
            if extra: self.A(f"s_waitcnt {extra}")
            return
        self.A(f"s_waitcnt vmcnt({self.cnt(idn)}) {extra}")

def poll(A, vaddr, vt, tok, name, slp=None, mask=False):
    l = A.newlabel(name); d = A.newlabel(name)
    A(f"s_mov_b32 s{S_SPIN}, {O.SPIN}")
    A.label(l)
    A(f"buffer_load_dword v{vt}, v{vaddr}, s[{S_WS}:{S_WS+3}], 0 offen sc1")
    A("s_waitcnt vmcnt(0)")
    if mask:
        A(f"v_and_b32 v{vt+1}, -16, v{vt}")
        A(f"v_cmp_ne_u32 vcc, v{tok}, v{vt+1}")
    else:
        A(f"v_cmp_ne_u32 vcc, v{tok}, v{vt}")
    A(f"s_cbranch_vccz {d}")
    A(f"s_sleep {O.SLP if slp is None else slp}")
    A(f"s_sub_u32 s{S_SPIN}, s{S_SPIN}, 1")
    A(f"s_cbranch_scc0 {l}")
    A.label(d)

def lwait(A, vaddr, off, vt, val, issued=False, sleep=1):
    lab = A.newlabel("LW"); done = A.newlabel("LWD")
    if not issued: A(f"ds_read_b32 v{vt}, v{vaddr} offset:{off}")
    A("s_waitcnt lgkmcnt(0)")
    A(f"v_cmp_gt_u32 vcc, {val}, v{vt}")
    A(f"s_cbranch_vccz {done}")
    A.label(lab)
    if sleep: A(f"s_sleep {sleep}")
    A(f"ds_read_b32 v{vt}, v{vaddr} offset:{off}")
    A("s_waitcnt lgkmcnt(0)")
    A(f"v_cmp_gt_u32 vcc, {val}, v{vt}")
    A(f"s_cbranch_vccnz {lab}")
    A.label(done)

def token_get(A, va, tok):
    l = A.newlabel("RW"); d = A.newlabel("RW")
    A(f"v_mov_b32 v{va}, {L_RDY}")
    A.label(l)
    A(f"ds_read_b64 {vr(tok,2)}, v{va}")
    A("s_waitcnt lgkmcnt(0)")
    A(f"v_cmp_ne_u32 vcc, 1, v{tok+1}")
    A(f"s_cbranch_vccz {d}")
    A("s_sleep 1")
    A(f"s_branch {l}")
    A.label(d)

def flag_store(A, soff, va, vt, fl="sc1"):
    A(f"v_mov_b32 v{va}, 0")
    A("s_mov_b64 exec, 1")
    A(f"buffer_store_dword v{vt}, v{va}, s[{S_WS}:{S_WS+3}], s{soff} offen {fl}")
    A("s_mov_b64 exec, -1")

def rot_c0(A, dst, t0):
    a, b, c, d = O.ROT
    A(f"s_mov_b32 s{dst}, 0")
    if a: A(f"s_and_b32 s{t0}, s{S_J}, 3"); A(f"s_mul_i32 s{dst}, s{t0}, {a}")
    if b: A(f"s_lshr_b32 s{t0}, s{S_J}, 2"); A(f"s_mul_i32 s{t0}, s{t0}, {b}"); A(f"s_add_u32 s{dst}, s{dst}, s{t0}")
    if c: A(f"s_lshr_b32 s{t0}, s{S_XCD}, 1"); A(f"s_mul_i32 s{t0}, s{t0}, {c}"); A(f"s_add_u32 s{dst}, s{dst}, s{t0}")
    if d: A(f"s_and_b32 s{t0}, s{S_XCD}, 1"); A(f"s_mul_i32 s{t0}, s{t0}, {d}"); A(f"s_add_u32 s{dst}, s{dst}, s{t0}")

GOWN, GRD, GT, HV, AR, RW, FV, VTOK, GX = 50, 51, 52, 54, 56, 58, 59, 60, 62
ACCA, ACCB, AF, PK, HR0 = 64, 96, 128, 168, 184
OV, RX, TV = 55, 63, 49
FVB = 48
S_OO, S_PO, S_P1, S_PF = 76, 77, 78, 79
L_T = LDS_SSM
STMP = 160
S_HL, S_HR, S_C0 = 80, 81, 84

def g_flags_setup(A):
    A(f"s_lshl_b32 s{S_T0}, s{S_WAVE}, 2")
    A(f"s_add_u32 s{S_T0}, s{S_T0}, {LF}")
    A(f"v_mov_b32 v{GOWN}, s{S_T0}")
    A(f"v_and_b32 v{GRD}, 3, v1")
    A(f"v_lshlrev_b32 v{GRD}, 2, v{GRD}")
    A(f"v_add_u32 v{GRD}, {LF}, v{GRD}")

def g2_setup(A):
    w = S_WAVE; T = 30
    A(f"s_and_b32 s{S_T0}, s{S_XCD}, 6")
    A(f"s_lshl_b32 s{S_T0}, s{S_T0}, 1")
    A(f"s_and_b32 s{S_T1}, s{S_J}, 3")
    A(f"s_add_u32 s{S_T0}, s{S_T0}, s{S_T1}")
    A(f"s_and_b32 s{S_T1}, s{S_XCD}, 1")
    A(f"s_lshl_b32 s{S_HF}, s{S_T0}, 1")
    A(f"s_add_u32 s{S_HF}, s{S_HF}, s{S_T1}")
    A(f"s_lshl_b32 s{S_HF}, s{S_HF}, {5+O.HFS}")
    A(f"s_add_u32 s{S_HF}, s{S_HF}, {F_H}")
    A(f"v_min_u32 v{T}, 27, v1")
    A(f"v_lshl_add_u32 v{FV}, v{T}, {O.HFS}, s{S_HF}")
    if O.HAB:
        A(f"s_and_b32 s{S_HR}, s{w}, 1")
        A(f"s_lshl_b32 s{S_HR}, s{S_HR}, 1")
        A(f"s_lshr_b32 s{S_HL}, s{w}, 1")
        A(f"s_add_u32 s{S_HR}, s{S_HR}, s{S_HL}")
        A(f"s_mul_i32 s{S_HR}, s{S_HR}, 7")
        A(f"v_min_u32 v{T}, 6, v1")
        A(f"v_add_u32 v{T}, s{S_HR}, v{T}")
        A(f"v_lshl_add_u32 v{FV if O.PW else FVB}, v{T}, {O.HFS}, s{S_HF}")
        A(f"v_add_u32 v{FVB}, {F_P-F_H}, v{FV if O.PW else FVB}")
    A(f"s_lshl_b32 s{S_T0}, s{S_T0}, 2")
    A(f"s_and_b32 s{S_HR}, s{w}, 1")
    A(f"s_add_u32 s{S_T0}, s{S_T0}, s{S_HR}")
    A(f"s_lshl_b32 s{S_OO}, s{S_T1}, 1")
    A(f"s_add_u32 s{S_OO}, s{S_OO}, s{S_T0}")
    A(f"s_xor_b32 s{S_HL}, s{S_OO}, 2")
    A(f"s_mul_i32 s{S_HL}, s{S_HL}, 112")
    A(f"s_mul_i32 s{S_HR}, s{S_OO}, 112")
    A(f"s_lshl_b32 s{S_T1}, s{S_T1}, 1")
    A(f"s_lshr_b32 s{S_T0}, s{w}, 1")
    A(f"s_add_u32 s{S_T1}, s{S_T1}, s{S_T0}")
    A(f"s_mul_i32 s{S_T1}, s{S_T1}, 28")
    A(f"s_add_u32 s{S_HL}, s{S_HL}, s{S_T1}")
    A(f"s_add_u32 s{S_HR}, s{S_HR}, s{S_T1}")
    A(f"s_lshl_b32 s{S_HL}, s{S_HL}, 10")
    A(f"s_lshl_b32 s{S_HR}, s{S_HR}, 10")
    A(f"s_lshl_b32 s{S_OO}, s{S_OO}, 15")
    A(f"s_lshr_b32 s{S_T1}, s{S_J}, 2")
    A(f"s_lshl_b32 s{S_T1}, s{S_T1}, 1")
    A(f"s_add_u32 s{S_T1}, s{S_T1}, s{S_T0}")
    A(f"s_lshl_b32 s{S_T1}, s{S_T1}, 6")
    A(f"s_add_u32 s{S_OO}, s{S_OO}, s{S_T1}")
    A(f"v_lshlrev_b32 v{HV}, 4, v1")
    A(f"s_lshl_b32 s{S_T1}, s{w}, 15")
    A(f"v_add_u32 v{RW}, s{S_T1}, v{HV}")
    A(f"v_xor_b32 v{RX}, 0x10000, v{RW}")
    A(f"s_lshl_b32 s{S_T1}, s{w}, 12")
    A(f"s_add_u32 s{S_T1}, s{S_T1}, {L_T}")
    A(f"v_add_u32 v{TV}, s{S_T1}, v{HV}")
    A(f"v_lshrrev_b32 v{T+1}, 5, v1")
    A(f"v_and_b32 v{T}, 31, v1")
    A(f"v_lshlrev_b32 v{T}, 10, v{T}")
    A(f"v_lshl_add_u32 v{OV}, v{T+1}, 4, v{T}")
    A(f"v_bfe_u32 v{T+2}, v1, 2, 2")
    A(f"v_bfe_u32 v{T+3}, v1, 4, 1")
    A(f"v_bfe_u32 v{T+4}, v1, 1, 1")
    A(f"v_lshl_add_u32 v{T+3}, v{T+3}, 1, v{T+4}")
    A(f"v_bfe_u32 v{T+4}, v1, 3, 1")
    A(f"v_xor_b32 v{T+4}, s{S_T0}, v{T+4}")
    A(f"v_lshl_add_u32 v{T+3}, v{T+4}, 2, v{T+3}")
    A(f"v_lshl_add_u32 v{T+2}, v{T+1}, 2, v{T+2}")
    A(f"v_lshlrev_b32 v{T+2}, 7, v{T+2}")
    A(f"v_lshl_add_u32 v{T+2}, v{T+3}, 4, v{T+2}")
    A(f"v_and_b32 v{T+4}, 1, v1")
    A(f"v_lshl_add_u32 v{T+2}, v{T+4}, 3, v{T+2}")
    A(f"s_lshl_b32 s{S_T0}, s{S_T0}, 16")
    A(f"v_add_u32 v{AR}, s{S_T0}, v{T+2}")
    A(f"v_xor_b32 v{AR+1}, 64, v{AR}")

def w2_read(i):
    k = i % 28; dst = AF + 8 * (i % O.NA)
    o = (k // 14) * 32768 + 4096 + (k % 14) * 2048
    return [f"ds_read_b64_tr_b16 {vr(dst+4*a+2*x,2)}, v{AR+a} offset:{o+x*1024}" for a in range(2) for x in range(2)]
HQ = {}
def h_load(i):
    base, k = (S_HL, i) if i < 28 else (S_HR, i - 28)
    pre = [f"s_add_u32 s{S_T0}, s{base}, {k*1024}"] if k % 4 == 0 else []
    return pre + [f"buffer_load_dwordx4 {vr(HQ[i],4)}, v{HV}, s[{S_WS}:{S_WS+3}], s{S_T0} offen offset:{(k%4)*1024} {O.HLD}"]

def g_chunk_dma(cc):
    slot = cc % 4
    out = [f"s_add_u32 s{S_HO}, s{S_C0}, {cc}", f"s_and_b32 s{S_HO}, s{S_HO}, 7",
           f"s_lshl_b32 s{S_T1}, s{S_HO}, 7", f"s_add_u32 m0, s{S_M0X}, {slot*32768}", f"s_add_u32 s{S_T1}, s{S_T1}, s{S_XO}"]
    for i in range(4):
        out.append(f"buffer_load_dwordx4 v{G1_XD+i}, s[{S_X}:{S_X+3}], s{S_T1} offen offset:{i*1024} {O.XFL} lds")
    out += [f"s_mul_i32 s{S_T1}, s{S_HO}, {64*2*F}", f"s_add_u32 m0, s{S_M0X}, {slot*32768+16384}", f"s_add_u32 s{S_T1}, s{S_T1}, s{S_WO}"]
    for i in range(4):
        out.append(f"buffer_load_dwordx4 v{G1_WD+i}, s[{S_W1}:{S_W1+3}], s{S_T1} offen offset:{i*1024} {O.W1FL} lds")
    return out

VW2, S_W2O, S_W2M = 22, 78, 79
def gw2_setup(A):
    w = S_WAVE
    srd(A, S_W2, P_W2, D*F*2)
    A("v_lshrrev_b32 v30, 3, v1")
    A("v_and_b32 v31, 7, v1")
    A("v_bfe_u32 v32, v1, 4, 1")
    A("v_lshlrev_b32 v32, 2, v32")
    A("v_xor_b32 v31, v31, v32")
    A("v_lshlrev_b32 v30, 10, v30")
    A(f"v_lshl_add_u32 v{VW2}, v31, 4, v30")
    A(f"s_and_b32 s{S_T0}, s{S_XCD}, 1")
    A(f"s_lshl_b32 s{S_T0}, s{S_T0}, 3")
    A(f"s_and_b32 s{S_T1}, s{w}, 1")
    A(f"s_add_u32 s{S_T0}, s{S_T0}, s{S_T1}")
    A(f"s_mul_i32 s{S_W2O}, s{S_T0}, {7*16384}")
    A(f"s_mul_i32 s{S_W2M}, s{S_T1}, {7*2048}")
    A(f"s_lshr_b32 s{S_T0}, s{S_J}, 2")
    A(f"s_lshl_b32 s{S_T0}, s{S_T0}, 7")
    A(f"s_add_u32 s{S_W2O}, s{S_W2O}, s{S_T0}")
    A(f"s_lshr_b32 s{S_T0}, s{w}, 1")
    A(f"s_lshl_b32 s{S_T1}, s{S_T0}, 13")
    A(f"s_add_u32 s{S_W2O}, s{S_W2O}, s{S_T1}")
    A(f"s_lshl_b32 s{S_T1}, s{S_T0}, 10")
    A(f"s_add_u32 s{S_W2M}, s{S_W2M}, s{S_T1}")
def gw2_dma(sl):
    out = []
    for k in range(7):
        out += [f"s_add_u32 m0, s{S_W2M}, {sl*32768+4096+k*2048}", f"s_add_u32 s{S_T1}, s{S_W2O}, {(14*sl+k)*16384}",
                f"buffer_load_dwordx4 v{VW2}, s[{S_W2}:{S_W2+3}], s{S_T1} offen {O.W2FL} lds"]
    return out

def g1_main(A, vm, cid):
    vm.wait(cid[0])
    A(f"v_mov_b32 v{GT}, 1"); A(f"ds_write_b32 v{GOWN}, v{GT}")
    lwait(A, GRD, 0, GT + 1, 1, sleep=0)
    for r in g1_reads(0): A(r)
    for c in range(8):
        if O.TSC and c in O.TSC: parts_ts(A, 2 + O.TSC.index(c))
        off = 0 if c + 1 < O.LOOK else 48
        own = 4 <= c + 3 < O.LOOK
        units = [u for u in split_groups(g_chunk_dma(c + 3), 8)] if own else []
        slots = O.DSL
        for s in range(4):
            t = 4 * c + s
            mf = g1_mfmas(t)
            pre = []
            if s == 3:
                if c < 7: lwait(A, GRD, off, GT + 1, c + 2, issued=True, sleep=0)
                else: A("s_waitcnt lgkmcnt(0)")
                pre = [f"v_mov_b32 v{GT}, {c+1}", f"ds_write_b32 v{GOWN}, v{GT} offset:16"]
            elif s == O.ARR and c + 1 < O.LOOK:
                vm.wait(cid[c + 1], "lgkmcnt(0)")
                pre = [f"v_mov_b32 v{GT}, {c+2}", f"ds_write_b32 v{GOWN}, v{GT}"]
            else: A("s_waitcnt lgkmcnt(0)")
            if own and s == 1: lwait(A, GRD, 16, GX, c, issued=True, sleep=0)
            rd = g1_reads(t + 1) if t < 31 else []
            post = [f"ds_read_b32 v{GT+1}, v{GRD} offset:{off}"] if (s == 2 and c < 7) else []
            if own and s == 0: post.append(f"ds_read_b32 v{GX}, v{GRD} offset:16")
            def dm(g):
                if own:
                    for _ in range(slots.count(4 * s + g)):
                        for x in units.pop(0): vm.op(x)
                    if not units: cid[c + 3] = vm.n if c + 3 not in cid else cid[c + 3]
            A(mf[0])
            for x in rd[:3]: A(x)
            dm(0)
            A(mf[1])
            for x in rd[3:]: A(x)
            dm(1)
            A(mf[2])
            for x in pre + post: A(x)
            if c == 0 and O.LOOK >= 4 and O.L3 == "i":
                for x in split_groups(g_chunk_dma(3), 4)[s]: vm.op(x)
                cid[3] = vm.n
            dm(2)
            A(mf[3])
            dm(3)
        assert not units

_g1_reads = g1_reads
def g1_reads(t):
    out = _g1_reads(t)
    if O.HAB:
        c, s_ = divmod(t, 4); lo = ((c % 4) % 2) * 32768
        out[5] = out[5].replace(f"offset:{lo+4096}", f"offset:{lo+8192}")
    return out
def hab_setup(A):
    A(f"s_and_b32 s{S_T0}, s{S_XCD}, 1")
    A(f"s_xor_b32 s{S_T0}, s{S_T0}, 1")
    A(f"s_lshl_b32 s{S_T0}, s{S_T0}, 16")
    A(f"s_xor_b32 s{S_XO}, s{S_XO}, s{S_T0}")
def hab_setup2(A):
    A(f"s_lshr_b32 s{S_T0}, s{S_WAVE}, 1")
    A(f"s_lshl_b32 s{S_T0}, s{S_T0}, 12")
    for k in range(8): A(f"v_subrev_u32 v{G1_XR+k}, s{S_T0}, v{G1_XR+k}")

def g1_fr(lst, t, ns):
    import re
    o = G1_FR + (t % 2) * 16; n = G1_FR + (t % ns) * 16
    def f(m):
        a, b = int(m.group(1)), int(m.group(2))
        if o <= a < o + 16: return f"v[{a-o+n}:{b-o+n}]"
        return m.group(0)
    return [re.sub(r"v\[(\d+):(\d+)\]", f, x) for x in lst]

def lchk(A, vaddr, off, vt, val):
    lab = A.newlabel("LW"); done = A.newlabel("LWD")
    A(f"v_cmp_gt_u32 vcc, {val}, v{vt}")
    A(f"s_cbranch_vccz {done}")
    A.label(lab)
    A(f"ds_read_b32 v{vt}, v{vaddr} offset:{off}")
    A("s_waitcnt lgkmcnt(0)")
    A(f"v_cmp_gt_u32 vcc, {val}, v{vt}")
    A(f"s_cbranch_vccnz {lab}")
    A.label(done)

def g1_main2(A, vm, cid):
    LA = O.LA; NS = LA + 1
    lg = Lg(A); rid = {}
    vm.wait(cid[0])
    A(f"v_mov_b32 v{GT}, 1"); A(f"ds_write_b32 v{GOWN}, v{GT}")
    lwait(A, GRD, 0, GT + 1, 1, sleep=0)
    for t in range(LA):
        for r in g1_fr(g1_reads(t), t, NS): rid[t] = lg.op(r)
    sc = 4 - LA
    for c in range(8):
        if O.TSC and c in O.TSC: parts_ts(A, 2 + O.TSC.index(c))
        off = 0 if c + 1 < O.LOOK else 48
        own = 4 <= c + 3 < O.LOOK
        units = [u for u in split_groups(g_chunk_dma(c + 3), 8)] if own else []
        if O.GW2 and c >= 5 and c - 5 < O.GW2N:
            own = True; units = split_groups(gw2_dma(c - 5), 7) + [[]]
        for s in range(4):
            t = 4 * c + s
            mf = g1_fr(g1_mfmas(t), t, NS)
            need = rid[t]
            if s == sc and c < 7: need = max(need, pid)
            if own and s == 1: need = max(need, did)
            first = []; pre = []
            if s == O.ARR and c + 1 < O.LOOK:
                vm.wait(cid[c + 1])
                first += [f"ds_write_b32 v{GOWN}, v{GT}"]
                A(f"v_mov_b32 v{GT}, {c+2}")
            lg.wait(need)
            if s == sc and c < 7: lchk(A, GRD, off, GT + 1, c + 2)
            if own and s == 1: lchk(A, GRD, 16, GX, c)
            if s == 3: pre = [f"v_mov_b32 v{GT}, {c+1}", f"ds_write_b32 v{GOWN}, v{GT} offset:16"]
            rd = g1_fr(g1_reads(t + LA), t + LA, NS) if t + LA < 32 else []
            def dm(g):
                if own:
                    for _ in range(O.DSL.count(4 * s + g)):
                        for x in units.pop(0): vm.op(x)
                    if not units and c + 3 not in cid: cid[c + 3] = vm.n
            def em(x):
                if x.startswith("ds_"): return lg.op(x)
                A(x)
            sp = O.RSP
            A(mf[0])
            for x in first + pre: em(x)
            if s == sc - 1 and c < 7 and O.PPOS == 0: pid = lg.op(f"ds_read_b32 v{GT+1}, v{GRD} offset:{off}")
            if own and s == 0: did = lg.op(f"ds_read_b32 v{GX}, v{GRD} offset:16")
            for x in rd[:sp[0]]: rid[t + LA] = lg.op(x)
            dm(0)
            A(mf[1])
            for x in rd[sp[0]:sp[1]]: rid[t + LA] = lg.op(x)
            dm(1)
            A(mf[2])
            if s == sc - 1 and c < 7 and O.PPOS == 2: pid = lg.op(f"ds_read_b32 v{GT+1}, v{GRD} offset:{off}")
            for x in rd[sp[1]:sp[2]]: rid[t + LA] = lg.op(x)
            if c == 0 and O.LOOK >= 4 and O.L3 == "i":
                for x in split_groups(g_chunk_dma(3), 4)[s]: vm.op(x)
                cid[3] = vm.n
            dm(2)
            A(mf[3])
            for x in rd[sp[2]:]: rid[t + LA] = lg.op(x)
            dm(3)
        assert not units

def silu_np(A, regs, tmp):
    n = len(regs)
    for i, (s, d) in enumerate(regs):
        for e in range(2): A(f"v_mul_f32 v{tmp+2*i+e}, s{S_CL}, v{s+e}")
    for i in range(2 * n): A(f"v_exp_f32 v{tmp+i}, v{tmp+i}")
    for i in range(2 * n): A(f"v_add_f32 v{tmp+i}, 1.0, v{tmp+i}")
    for i in range(2 * n): A(f"v_rcp_f32 v{tmp+i}, v{tmp+i}")
    for i, (s, d) in enumerate(regs):
        for e in range(2): A(f"v_mul_f32 v{tmp+2*i+e}, v{tmp+2*i+e}, v{s+e}")
    for i, (s, d) in enumerate(regs):
        A(f"v_cvt_pk_bf16_f32 v{d}, v{tmp+2*i}, v{tmp+2*i+1}")

def split_groups(lst, n):
    units = []; cur = []
    for x in lst:
        cur.append(x)
        if x.startswith("buffer_"): units.append(cur); cur = []
    g = [[] for _ in range(n)]
    for i, u in enumerate(units): g[i * n // len(units)] += u
    return g

def g1_epi(A):
    w = S_WAVE
    if O.VERD:
        A(f"v_mov_b32 v{GX}, {L_RDY}")
        A(f"ds_read_b32 v{GT}, v{GX} offset:{L_VERD-L_RDY}")
    A(f"s_lshl_b32 s{S_HO}, s{S_RB}, 2")
    A(f"s_and_b32 s{S_T0}, s{w}, 2")
    A(f"s_add_u32 s{S_HO}, s{S_HO}, s{S_T0}")
    A(f"s_mul_i32 s{S_T1}, s{S_T0}, 7")
    A(f"s_mul_i32 s{S_HO}, s{S_HO}, 112")
    A(f"s_lshl_b32 s{S_T0}, s{S_CB}, 3")
    A(f"s_add_u32 s{S_HO}, s{S_HO}, s{S_T0}")
    A(f"s_and_b32 s{S_T0}, s{w}, 1")
    A(f"s_add_u32 s{S_T1}, s{S_T1}, s{S_T0}")
    A(f"s_lshl_b32 s{S_T0}, s{S_T0}, 2")
    A(f"s_add_u32 s{S_HO}, s{S_HO}, s{S_T0}")
    A(f"s_lshr_b32 s{S_T0}, s{S_J}, 2")
    A(f"s_lshl_b32 s{S_T0}, s{S_T0}, 1")
    A(f"s_add_u32 s{S_T1}, s{S_T1}, s{S_T0}")
    A(f"s_lshl_b32 s{S_T1}, s{S_T1}, {O.HFS}")
    A(f"s_add_u32 s{S_HF}, s{S_HF}, s{S_T1}")
    A(f"s_lshl_b32 s{S_HO}, s{S_HO}, 10")
    A(f"s_add_u32 s{S_XO}, s{S_HO}, {112*1024}")
    if O.HAB:
        A(f"s_lshr_b32 s{S_T0}, s{w}, 1")
        A(f"s_mul_i32 s{S_T0}, s{S_T0}, {112*1024}")
        A(f"s_sub_u32 s{S_XO}, s{S_HO}, s{S_T0}")
        A(f"s_and_b32 s{S_T0}, s{S_XCD}, 1")
        A(f"s_mul_i32 s{S_T0}, s{S_T0}, {224*1024}")
        A(f"s_add_u32 s{S_HO}, s{S_XO}, {224*1024}")
        A(f"s_sub_u32 s{S_HO}, s{S_HO}, s{S_T0}")
        A(f"s_add_u32 s{S_XO}, s{S_XO}, s{S_T0}")
        token_get(A, GX, VTOK)
    st = []
    p = 0
    for a, b in ([(0,0),(1,0),(0,1),(1,1)] if O.HAB else [(0,0),(0,1),(1,0),(1,1)]):
        if True:
            acc = G1_ACC + (2*a+b)*16
            for fh in range(2):
                dst = G1_FR + p * 4
                (silu_np if O.NOPK else silu_pairs)(A, [(acc + 8*fh + 2*i, dst + i) for i in range(4)], STMP)
                so = S_HO if b == 0 else S_XO
                st.append(f"buffer_store_dwordx4 {vr(dst,4)}, v{HV}, s[{S_WS}:{S_WS+3}], s{so} offen offset:{(2*a+fh)*1024}")
                if O.HAB and p == O.FA:
                    A(f"s_waitcnt vmcnt({p-4})")
                    flag_store(A, S_HF, GT, VTOK, O.HST)
                    tsg(A, 3, "h")
                    A(f"s_add_u32 s{S_HF}, s{S_HF}, {F_P-F_H}")
                A(st[-1] + " " + O.HST)
                p += 1
    tsg(A, 5, "e")
    if O.GW2:
        token_get(A, GX, VTOK)
        lwait(A, GRD, 16, GT, 8, sleep=0)
        n = 0
        if O.W2AF == 0:
            for sl in range(O.GW2N, 4):
                for x in gw2_dma(sl): A(x)
                n += 7
        A(f"s_waitcnt vmcnt({n})")
        flag_store(A, S_HF, GT, VTOK, O.HST)
        if O.W2AF == 1:
            for sl in range(O.GW2N, 4):
                for x in gw2_dma(sl): A(x)
        return
    if not O.VERD:
        if not O.HAB: token_get(A, GX, VTOK)
        A("s_waitcnt vmcnt(0)")
        flag_store(A, S_HF, GT, VTOK, O.HST)
        return
    lwait(A, GX, L_VERD - L_RDY, GT, 1, issued=True)
    A(f"ds_read_b64 {vr(VTOK,2)}, v{GX}")
    A(f"v_cmp_eq_u32 vcc, {1 if not O.SLOW else 7}, v{GT}")
    A("s_waitcnt vmcnt(0) lgkmcnt(0)")
    A("s_cbranch_vccz G_SLOW")
    flag_store(A, S_HF, GT, VTOK, O.HST)
    A("s_branch G_FD")
    A.label("G_SLOW")
    for x in st: A(x + " sc1")
    A("s_waitcnt vmcnt(0)")
    flag_store(A, S_HF, GT, VTOK)
    A.label("G_FD")

def g2_main(A):
    vm = Vm(A); lg = Lg(A)
    hid = {}; wid = {}
    assert HR0 + 4 * O.DEPTH <= 256 and AF + 8 * O.NA <= PK
    sched = {}; free = [HR0 + 4 * k for k in range(O.DEPTH)]; nx = 0
    for stp in range(0, 56):
        if stp >= 1: free.append(HQ[stp - 1])
        if O.XQ and stp == O.XQ[0]: free += [2 + 4 * k for k in range(8)]
        if O.XQ and stp == O.XQ[1]: free += [ACCA + 4 * k for k in range(8)]
        sched[stp] = []
        while nx < 56 and free and len(sched[stp]) < (O.DEPTH if stp == 0 else O.XR):
            HQ[nx] = free.pop(0); sched[stp].append(nx); nx += 1; lasts = stp
    for i in sched[0]:
        for x in h_load(i): vm.op(x)
        hid[i] = vm.n
    for i in range(O.PFD): wid[i] = 0
    send = []
    for t in range(2):
        for hf in range(2):
            send += [f"v_cvt_pk_bf16_f32 v{PK+8*t+4*hf+k}, v{ACCA+16*t+8*hf+2*k}, v{ACCA+16*t+8*hf+2*k+1}" for k in range(4)]
            send.append(f"ds_write_b128 v{RW}, {vr(PK+8*t+4*hf,4)} offset:{2048*t+1024*hf}")
    send += [f"v_mov_b32 v{GT+1}, 9", f"ds_write_b32 v{GOWN}, v{GT+1} offset:16"]
    if O.TS and O.TSG == "a" and not O.TSC: send.append(f"s_memtime s[{S_TS+10}:{S_TS+11}]")
    st = O.ST
    PR = 224
    pld = [f"buffer_load_dwordx4 {vr(PR+4*q,4)}, v{HV}, s[{S_WS}:{S_WS+3}], s{S_PO} offen offset:{1024*q} sc1" for q in range(4)]
    AL, GL_, VA0, SA0, SG0 = 240, 36, 38, 64, 68
    ald = []
    if O.TL3:
        A(f"s_lshr_b32 s{SG0}, s{S_OO}, 15")
        A(f"s_lshl_b32 s{SG0}, s{SG0}, 8")
        A(f"s_bfe_u32 s{SA0}, s{S_OO}, 0x40006")
        A(f"s_lshl_b32 s{SA0}, s{SA0}, 18")
        A(f"s_add_u32 s{SA0}, s{SA0}, s{SG0}")
        A(f"s_add_u32 s{SA0}, s{SA0}, {WS_A2}")
        A(f"s_add_u32 s{SG0}, s{SG0}, {WS_G}")
        for q in range(1, 4): A(f"s_add_u32 s{SA0+q}, s{SA0}, {q*65536}")
        A(f"v_and_b32 v{VA0+2}, 31, v1")
        A(f"v_lshlrev_b32 v{VA0+2}, 3, v{VA0+2}")
        A(f"v_lshrrev_b32 v{VA0}, 5, v1")
        A(f"v_lshl_add_u32 v{VA0}, v{VA0}, 15, v{VA0+2}")
        A(f"v_add_u32 v{VA0+1}, 16384, v{VA0}")
        ald = [f"buffer_load_dwordx2 {vr(GL_,2)}, v{VA0+2}, s[{S_WS}:{S_WS+3}], s{SG0} offen sc1"]
        ald += [f"buffer_load_dwordx2 {vr(AL+4*q+2*e,2)}, v{VA0+e}, s[{S_WS}:{S_WS+3}], s{SA0+q} offen sc1" for q in range(4) for e in range(2)]
    if O.TL2 or O.TL3:
        assert HR0 + 4 * O.DEPTH <= PR and O.PSTEP > lasts
        A(f"s_xor_b32 s{S_PO}, s2, 1")
        A(f"s_lshl_b32 s{S_PO}, s{S_PO}, 2")
        A(f"s_add_u32 s{S_PO}, s{S_PO}, s{S_WAVE}")
        A(f"s_lshl_b32 s{S_PO}, s{S_PO}, 12")
        A(f"s_add_u32 s{S_PO}, s{S_PO}, {WS_P}")
    for i in range(56):
        if O.TS and O.TSG == "s" and i in st: parts_ts(A, 2 + st.index(i))
        k = min(lg.n - wid[i], 15)
        need_l = wid[i] > lg.done
        if need_l: lg.done = lg.n - k
        vm.wait(hid[i], f"lgkmcnt({k})" if need_l else "")
        if O.HAB and 28 in sched[i]:
            vm.wait(bid)
            A(f"v_cmp_ne_u32 vcc, v{VTOK}, v{GT}")
            A("s_cbranch_vccz G_BD")
            poll(A, FVB, GT, VTOK, "PB", slp=O.HSLP)
            A.label("G_BD")
        fr = AF + 8 * (i % O.NA); hr = HQ[i]
        acc0 = ACCA if i < 28 else ACCB
        g = [[], []]
        if i + O.PFD < 56:
            rd = w2_read(i + O.PFD); g[0] += rd[:2]; g[1] += rd[2:]
        own = {}
        for q, nl in enumerate(sched[i] if i else []):
            hl = h_load(nl); own[hl[-1]] = nl
            g[min(q, 1)] += hl
        if i >= 29:
            for gi in range(2):
                for _ in range(O.SPG):
                    if send and not (O.XQ and O.XF and send[0].startswith("ds_write_b32") and (i, gi) < (lasts, 1)): g[gi].append(send.pop(0))
        if (O.TL2 or O.TL3) and i == O.PSTEP:
            g[1] += pld
        if O.TL3 and O.ASTEP <= i:
            q = i - O.ASTEP
            if O.APS == 3: g[0] += ald[3*q:3*q+2]; g[1] += ald[3*q+2:3*q+3]
            else: g[1] += ald[q:q+1]
        for m, t in enumerate((1, 0)):
            acc = acc0 + 16 * t
            c = "0" if i % 28 == 0 else vr(acc, 16)
            A(f"v_mfma_f32_32x32x16_bf16 {vr(acc,16)}, {vr(fr+4*t,4)}, {vr(hr,4)}, {c}" if "m" not in O.X2 else "s_nop 0")
            if i == 29 and m == 0: A("s_nop 1")
            for x in g[m]:
                if x.startswith("ds_"): lg.op(x)
                else:
                    vm.op(x)
                    if x in own: hid[own[x]] = vm.n
        if O.HAB and i == O.BS: bid = vm.op(f"buffer_load_dword v{GT}, v{FVB}, s[{S_WS}:{S_WS+3}], 0 offen sc1")
        if i + O.PFD < 56: wid[i + O.PFD] = lg.n
    T, R, GM = 2, 18, 34
    A(f"ds_read_b32 v{GT+1}, v{GRD} offset:32")
    A(f"v_mov_b32 v{GT}, 10")
    A(f"v_xor_b32 v{GX}, 8, v{GOWN}")
    A(f"s_lshl_b32 s{S_T0}, s{S_WAVE}, 8")
    A(f"s_add_u32 s{S_T0}, s{S_T0}, {L_T+16384}")
    A(f"v_lshl_add_u32 v{GM+1}, v1, 2, s{S_T0}")
    lwait(A, GRD, 32, GT + 1, 50, issued=True)
    A("s_nop 1")
    for q in range(4):
        A(f"ds_write_b128 v{RW}, {vr(ACCB+16+4*q,4)} offset:{q*1024}")
    A(f"ds_write_b32 v{GOWN}, v{GT} offset:16")
    if O.TL3:
        if O.PSTEP >= 56:
            for x in pld: A(x)
        tsg(A, 2, "f")
        lwait(A, GX, 16, GT + 1, 10, sleep=0)
        for q in range(4):
            A(f"ds_read_b128 {vr(R+4*q,4)}, v{RX} offset:{q*1024}")
        A(f"s_mov_b32 s{S_SPIN}, {O.SPIN}")
        def chk(name, tg, lds_, first):
            A(f"s_waitcnt vmcnt({first})")
            A.label(name + "L")
            acc = None
            tg = list(tg)
            if len(tg) % 2: A(f"v_xor_b32 v{GM}, v{VTOK}, v{tg.pop()}"); acc = GM
            for k in range(0, len(tg), 2):
                A(f"v_xor_b32 v{44+(k&2)}, v{VTOK}, v{tg[k]}")
                A(f"v_xor_b32 v{45+(k&2)}, v{VTOK}, v{tg[k+1]}")
                if acc: A(f"v_or3_b32 v{GM}, v{GM}, v{44+(k&2)}, v{45+(k&2)}")
                else: A(f"v_or_b32 v{GM}, v{44+(k&2)}, v{45+(k&2)}"); acc = GM
            A(f"v_cmp_ne_u32 vcc, 0, v{GM}")
            A(f"s_cbranch_vccz {name}D")
            for x in lds_: A(x)
            A(f"s_sub_u32 s{S_SPIN}, s{S_SPIN}, 1")
            A("s_waitcnt vmcnt(0)")
            A(f"s_cbranch_scc0 {name}L")
            A.label(name + "D")
        assert O.PSTEP >= O.ASTEP + 9 // O.APS
        chk("G_A", [AL + 1 + 2 * k for k in range(8)] + [GL_ + 1], ald, 4)
        for k in range(8):
            A(f"v_and_b32 v{AL+2*k+1}, 0xffff0000, v{AL+2*k}")
            A(f"v_lshlrev_b32 v{AL+2*k}, 16, v{AL+2*k}")
        for k in range(8):
            A(f"v_pk_mul_f32 {vr(T+2*k,2)}, {vr(AL+2*k,2)}, {vr(GL_,2)} op_sel:[0,0] op_sel_hi:[1,0]")
        A(f"v_sub_f32 v{GL_}, 1.0, v{GL_}")
        A(f"v_cvt_pk_bf16_f32 v{GL_}, v{GL_}, v{GL_}")
        A(f"v_lshlrev_b32 v{GL_}, 16, v{GL_}")
        A("s_waitcnt lgkmcnt(0)")
        for k in range(8):
            A(f"v_pk_add_f32 {vr(ACCB+2*k,2)}, {vr(ACCB+2*k,2)}, {vr(R+2*k,2)}")
        for k in range(8):
            A(f"v_pk_fma_f32 {vr(T+2*k,2)}, {vr(ACCB+2*k,2)}, {vr(GL_,2)}, {vr(T+2*k,2)} op_sel:[0,0,0] op_sel_hi:[1,0,1]")
        tsg(A, 3, "f")
        chk("G_P", [PR + 1 + 2 * k for k in range(8)], pld, 0)
        tsg(A, 4, "f")
        for k in range(8):
            A(f"v_and_b32 v{PR+2*k+1}, 0xffff0000, v{PR+2*k}")
            A(f"v_lshlrev_b32 v{PR+2*k}, 16, v{PR+2*k}")
        for k in range(8):
            A(f"v_pk_fma_f32 {vr(T+2*k,2)}, {vr(PR+2*k,2)}, {vr(GL_,2)}, {vr(T+2*k,2)} op_sel:[0,0,0] op_sel_hi:[1,0,1]")
        g2_out(A, T)
        tsg(A, 5, "f")
        return
    if O.TL2:
        if O.PSTEP >= 56:
            for x in pld: A(x)
        tsg(A, 2, "f")
        lwait(A, GX, 16, GT + 1, 10, sleep=0)
        for q in range(4):
            A(f"ds_read_b128 {vr(R+4*q,4)}, v{RX} offset:{q*1024}")
        A(f"ds_read_b32 v{GT+1}, v{GOWN} offset:32")
        for q in range(4):
            A(f"s_waitcnt lgkmcnt({4-q})")
            for k in (2*q, 2*q+1):
                A(f"v_pk_add_f32 {vr(ACCB+2*k,2)}, {vr(ACCB+2*k,2)}, {vr(R+2*k,2)}")
        lwait(A, GOWN, 32, GT + 1, 100, issued=True)
        tsg(A, 3, "f")
        A(f"ds_read_b32 v{GM}, v{GM+1}")
        for q in range(4):
            A(f"ds_read_b128 {vr(T+4*q,4)}, v{TV} offset:{q*1024}")
        A(f"s_mov_b32 s{S_SPIN}, {O.SPIN}")
        A.label("G_PL")
        A("s_waitcnt vmcnt(0)")
        for k in range(4):
            A(f"v_xor_b32 v{R+k}, v{VTOK}, v{PR+1+4*k}")
            A(f"v_xor_b32 v{R+4+k}, v{VTOK}, v{PR+3+4*k}")
        A(f"v_or3_b32 v{R}, v{R}, v{R+1}, v{R+2}")
        A(f"v_or3_b32 v{R+3}, v{R+3}, v{R+4}, v{R+5}")
        A(f"v_or3_b32 v{R}, v{R}, v{R+6}, v{R+7}")
        A(f"v_or_b32 v{R}, v{R}, v{R+3}")
        A(f"v_cmp_ne_u32 vcc, 0, v{R}")
        A("s_cbranch_vccz G_PD")
        for x in pld: A(x)
        A(f"s_sub_u32 s{S_SPIN}, s{S_SPIN}, 1")
        A("s_cbranch_scc0 G_PL")
        A("s_waitcnt vmcnt(0)")
        A.label("G_PD")
        tsg(A, 4, "f")
        for k in range(8):
            A(f"v_and_b32 v{PR+2*k+1}, 0xffff0000, v{PR+2*k}")
            A(f"v_lshlrev_b32 v{PR+2*k}, 16, v{PR+2*k}")
        for k in range(8):
            A(f"v_pk_add_f32 {vr(ACCB+2*k,2)}, {vr(ACCB+2*k,2)}, {vr(PR+2*k,2)}")
        A("s_waitcnt lgkmcnt(0)")
        for k in range(8):
            A(f"v_pk_fma_f32 {vr(T+2*k,2)}, {vr(ACCB+2*k,2)}, {vr(GM,2)}, {vr(T+2*k,2)} op_sel:[0,0,0] op_sel_hi:[1,0,1]")
        g2_out(A, T)
        tsg(A, 5, "f")
        return
    lwait(A, GOWN, 32, GT + 1, 100)
    A(f"ds_read_b32 v{GM}, v{GM+1}")
    for q in range(4):
        A(f"ds_read_b128 {vr(T+4*q,4)}, v{TV} offset:{q*1024}")
    lwait(A, GX, 16, GT + 1, 10, sleep=0)
    for q in range(4):
        A(f"ds_read_b128 {vr(R+4*q,4)}, v{RX} offset:{q*1024}")
    for k in range(8):
        A(f"v_pk_fma_f32 {vr(T+2*k,2)}, {vr(ACCB+2*k,2)}, {vr(GM,2)}, {vr(T+2*k,2)} op_sel:[0,0,0] op_sel_hi:[1,0,1]")
    for q in range(4):
        A(f"s_waitcnt lgkmcnt({3-q})")
        for k in (2*q, 2*q+1):
            A(f"v_pk_fma_f32 {vr(T+2*k,2)}, {vr(R+2*k,2)}, {vr(GM,2)}, {vr(T+2*k,2)} op_sel:[0,0,0] op_sel_hi:[1,0,1]")
    g2_out(A, T)
def g2_out(A, T):
    for k in range(8):
        A(f"v_cvt_pk_bf16_f32 v{PK+k}, v{T+2*k}, v{T+2*k+1}")
    A("s_nop 1")
    for h in range(2):
        A(f"v_permlane32_swap_b32 v{PK+4*h}, v{PK+4*h+2}")
        A(f"v_permlane32_swap_b32 v{PK+4*h+1}, v{PK+4*h+3}")
    A("s_nop 1")
    for h in range(2):
        A(f"buffer_store_dwordx4 {vr(PK+4*h,4)}, v{OV}, s[{S_OUT}:{S_OUT+3}], s{S_OO} offen offset:{32*h}")

def idle_tr_issue(A):
    A("v_lshrrev_b32 v8, 3, v1")
    A("v_and_b32 v9, 7, v1")
    A("v_lshlrev_b32 v10, 10, v8")
    A("v_lshl_add_u32 v10, v9, 4, v10")
    A(f"s_sub_u32 s64, s{S_J}, 28")
    A(f"s_lshl_b32 s64, s64, 2")
    A(f"s_add_u32 s64, s64, s{S_WAVE}")
    if O.UOWN:
        A(f"s_and_b32 s33, s64, 1")
        A(f"s_lshl_b32 s{S_T1}, s{S_XCD}, 1")
        A(f"s_add_u32 s33, s33, s{S_T1}")
        A(f"s_lshr_b32 s34, s64, 1")
    else:
        A(f"s_mov_b32 s33, s64")
        A(f"s_mov_b32 s34, s{S_XCD}")
    A(f"s_lshl_b32 s65, s33, 17")
    A(f"s_lshl_b32 s{S_T1}, s34, 7")
    A(f"s_add_u32 s65, s65, s{S_T1}")
    A(f"s_lshl_b32 s66, s{S_WAVE}, 15")
def idle_tr_dma(A):
    for i in range(16):
        A(f"s_add_u32 m0, s66, {i*1024}")
        A(f"s_add_u32 s{S_T1}, s65, {i*8192}")
        A(f"buffer_load_dwordx4 v10, s[{S_X}:{S_X+3}], s{S_T1} offen {O.UFL} lds")
def w2_touch(A, qs, dst):
    for q in qs:
        A(f"s_lshr_b32 s{S_T1}, s{S_XCD}, 1")
        A(f"s_add_u32 s{S_T1}, s{S_T1}, {q}")
        A(f"s_and_b32 s{S_T1}, s{S_T1}, 3")
        A(f"s_and_b32 s{S_T0}, s{S_XCD}, 1")
        A(f"s_lshl_b32 s{S_T0}, s{S_T0}, 2")
        A(f"s_add_u32 s{S_T1}, s{S_T1}, s{S_T0}")
        A(f"s_mul_i32 s{S_T1}, s{S_T1}, 229376")
        for i in range(2):
            A(f"buffer_load_dword v{dst}, v{24+i}, s[{S_W2}:{S_W2+3}], s{S_T1} offen {O.PFL2}")
def w2_touch_setup(A):
    A("s_mul_i32 s67, s64, 112")
    A("v_add_u32 v24, s67, v1")
    A("v_min_u32 v25, 47, v1")
    A("v_add3_u32 v25, v25, s67, 64")
    A("v_lshlrev_b32 v24, 7, v24")
    A("v_lshlrev_b32 v25, 7, v25")
def idle_tr_finish(A, extra=0):
    R = 128
    A("v_lshrrev_b32 v11, 4, v1")
    A("v_bfe_u32 v12, v1, 2, 2")
    A("v_lshl_add_u32 v12, v11, 3, v12")
    A("v_lshlrev_b32 v12, 7, v12")
    A("v_and_b32 v13, 3, v1")
    A("v_lshl_add_u32 v12, v13, 3, v12")
    A(f"v_add_u32 v12, s66, v12")
    A("v_bfe_u32 v13, v1, 1, 3")
    A("v_lshlrev_b32 v13, 13, v13")
    A("v_and_b32 v14, 1, v1")
    A("v_lshl_add_u32 v13, v14, 6, v13")
    A("v_lshl_add_u32 v16, v11, 4, v13")
    A(f"s_lshl_b32 s67, s34, 18")
    A(f"s_lshl_b32 s{S_T1}, s33, 9")
    A(f"s_add_u32 s67, s67, s{S_T1}")
    A(f"s_add_u32 s67, s67, {WS_UT}")
    for p in range(4):
        Rk = R + 16 * p
        A(f"s_waitcnt vmcnt({12+extra})")
        for a in range(4):
            for x in range(2):
                A(f"ds_read_b64_tr_b16 {vr(Rk+4*a+2*x,2)}, v12 offset:{p*4096+x*512+a*32}")
        for a in range(4):
            A(f"s_waitcnt lgkmcnt({6-2*a})")
            A(f"s_add_u32 s{S_T1}, s67, {a*65536}")
            A(f"buffer_store_dwordx4 {vr(Rk+4*a,4)}, v16, s[{S_WS}:{S_WS+3}], s{S_T1} offen offset:{p*128} sc1")
def ut2(A, part=None):
    R = 128
    if part == 1:
        for i in range(8):
            A(f"s_waitcnt vmcnt({7-i})")
            A(f"ds_write_b128 v16, {vr(R+4*i,4)} offset:{i*512}")
        return
    A(f"s_lshl_b32 s{Q_T0}, s{Q_PAIR}, 13")
    A(f"s_add_u32 s{Q_T0}, s{Q_T0}, {WS_UT}")
    A(f"s_add_u32 s{Q_T1}, s{Q_T0}, 4096")
    A("v_lshlrev_b32 v16, 4, v1")
    for i in range(8):
        A(f"buffer_load_dwordx4 {vr(R+4*i,4)}, v16, s[{S_WS}:{S_WS+3}], s{Q_T0+i//4} offen offset:{(i%4)*1024} sc1")
    A("v_bfe_u32 v16, v1, 2, 1")
    A(f"v_mul_u32_u24 v16, {U_STRIDE}, v16")
    A("v_lshrrev_b32 v17, 3, v1")
    A("v_lshl_add_u32 v16, v17, 6, v16")
    A("v_and_b32 v17, 3, v1")
    A("v_lshl_add_u32 v16, v17, 4, v16")
    A(f"v_add_u32 v16, {LDS_U+64}, v16")
    if part == 0: return
    for i in range(8):
        A(f"s_waitcnt vmcnt({7-i})")
        A(f"ds_write_b128 v16, {vr(R+4*i,4)} offset:{i*512}")
def idle_gate_issue(A):
    R = 64
    A(f"global_load_dwordx4 {vr(44,4)}, v{HV}, s[{P_GW}:{P_GW+1}]")
    A(f"s_lshl_b32 s68, s{S_XCD}, 4")
    A(f"s_add_u32 s68, s68, s64")
    A(f"s_lshl_b32 s65, s68, 14")
    for i in range(16):
        if i % 4 == 0: A(f"s_add_u32 s{S_T1}, s65, {i*1024}")
        A(f"buffer_load_dwordx4 {vr(R+4*i,4)}, v{HV}, s[{S_X}:{S_X+3}], s{S_T1} offen offset:{(i%4)*1024}")
def idle_gate_finish(A, extra=0):
    R = 64; S = 2
    A(f"s_waitcnt vmcnt({extra})")
    for k in range(4):
        for i in range(16):
            c = "0" if k == 0 else f"v{S+i}"
            A(f"v_dot2_f32_bf16 v{S+i}, v{R+4*i+k}, v{44+k}, {c}")
    for sh in ("row_shr:1", "row_shr:2", "row_shr:4", "row_shr:8"):
        for i in range(16):
            A(f"v_add_f32_dpp v{S+i}, v{S+i}, v{S+i} {sh} row_mask:0xf bank_mask:0xf bound_ctrl:1")
    for sh in ("row_bcast:15 row_mask:0xa", "row_bcast:31 row_mask:0xc"):
        for i in range(16):
            A(f"v_add_f32_dpp v{S+i}, v{S+i}, v{S+i} {sh} bank_mask:0xf")
    A("v_mov_b32 v20, 0")
    for h in range(2):
        for i in range(8): A(f"v_readlane_b32 s{38+i}, v{S+8*h+i}, 63")
        A("s_nop 3")
        for i in range(8): A(f"v_writelane_b32 v20, s{38+i}, {8*h+i}")
    A("v_cvt_pk_bf16_f32 v20, v20, v20")
    A("v_lshlrev_b32 v20, 16, v20")
    A("v_mul_f32 v20, 0xbfb8aa3b, v20")
    A("v_exp_f32 v20, v20")
    A("s_nop 0")
    A("v_add_f32 v20, 1.0, v20")
    A("v_rcp_f32 v20, v20")
    A("s_nop 0")
    A("v_cvt_pk_bf16_f32 v22, v20, v20")
    A("v_lshlrev_b32 v22, 16, v22")
    if O.TL3: A(f"v_mov_b32 v23, v{VTOK}")
    else:
        A("v_sub_f32 v23, 1.0, v22")
        A("v_cvt_pk_bf16_f32 v23, v23, v23")
        A("v_lshlrev_b32 v23, 16, v23")
    A("v_lshlrev_b32 v21, 3, v1")
    A(f"s_lshl_b32 s65, s68, 7")
    A(f"s_add_u32 s65, s65, {WS_G}")
    A("s_mov_b64 exec, 0xffff")
    A(f"buffer_store_dwordx2 v[22:23], v21, s[{S_WS}:{S_WS+3}], s65 offen sc1")
    A("s_mov_b64 exec, -1")

LX, LW, L2D, LSA, LGD, LV = 16, 56, 60, 62, 63, 20
K_XO, K_WO, K_M0, K_C0, K_W2, K_M2, K_T0, K_T1 = 76, 77, 78, 79, 80, 81, 82, 83
def loader_setup(A):
    lw = Q_NH
    A(f"s_and_b32 s{K_XO}, s{S_J}, 3")
    A(f"s_and_b32 s{K_T0}, s{S_XCD}, 6")
    A(f"s_lshl_b32 s{K_T0}, s{K_T0}, 1")
    A(f"s_add_u32 s{K_XO}, s{K_XO}, s{K_T0}")
    A(f"s_lshl_b32 s{K_XO}, s{K_XO}, 1")
    A(f"s_add_u32 s{K_XO}, s{K_XO}, s{lw}")
    A(f"s_and_b32 s{K_T0}, s{S_XCD}, 1")
    if O.HAB:
        A(f"s_xor_b32 s{K_XO}, s{K_XO}, s{K_T0}")
        A(f"s_xor_b32 s{K_XO}, s{K_XO}, 1")
    A(f"s_lshl_b32 s{K_XO}, s{K_XO}, 16")
    A(f"s_mul_i32 s{K_WO}, s{K_T0}, 7")
    A(f"s_lshr_b32 s{K_T1}, s{S_J}, 2")
    A(f"s_add_u32 s{K_WO}, s{K_WO}, s{K_T1}")
    A(f"s_lshl_b32 s{K_WO}, s{K_WO}, 8")
    A(f"s_lshl_b32 s{K_W2}, s{K_T1}, 7")
    A(f"s_mul_i32 s{K_T1}, s{lw}, {32*2*F}")
    A(f"s_add_u32 s{K_WO}, s{K_WO}, s{K_T1}")
    A(f"s_lshl_b32 s{K_M0}, s{lw}, 13")
    A(f"s_mul_i32 s{K_T0}, s{K_T0}, {56*16384}")
    A(f"s_add_u32 s{K_W2}, s{K_W2}, s{K_T0}")
    A(f"s_mul_i32 s{K_T0}, s{lw}, {7*16384}")
    A(f"s_add_u32 s{K_W2}, s{K_W2}, s{K_T0}")
    A(f"s_mul_i32 s{K_M2}, s{lw}, {7*2048}")
    rot_c0(A, K_C0, K_T0)
    A("v_lshrrev_b32 v34, 3, v1")
    A("v_and_b32 v35, 7, v1")
    A("v_lshrrev_b32 v36, 4, v1")
    A("v_xor_b32 v37, v35, v36")
    A("v_xor_b32 v38, 4, v37")
    A("v_lshlrev_b32 v34, 10, v34")
    A(f"v_lshl_add_u32 v{LX}, v37, 4, v34")
    A(f"v_lshl_add_u32 v{LX+1}, v38, 4, v34")
    A(f"v_add_u32 v{LX+1}, {8192-1024}, v{LX+1}")
    A(f"v_add_u32 v{LX+2}, {2*(8192-1024)}, v{LX}")
    A(f"v_add_u32 v{LX+3}, {2*(8192-1024)}, v{LX+1}")
    A("v_and_b32 v37, 1, v36")
    A("v_lshlrev_b32 v37, 2, v37")
    A("v_xor_b32 v37, v35, v37")
    A(f"v_lshl_add_u32 v{L2D}, v37, 4, v34")
    A(f"v_add_u32 v{L2D+1}, {8192-1024}, v{L2D}")
    A("v_and_b32 v35, 15, v1")
    A("v_lshlrev_b32 v37, 2, v36")
    A("v_xor_b32 v35, v35, v37")
    A(f"v_mul_u32_u24 v37, {2*F}, v36")
    A(f"v_lshl_add_u32 v{LW}, v35, 4, v37")
    for i in range(1, 4):
        A(f"v_add_u32 v{LW+i}, {i*(4*2*F-1024)}, v{LW}")
    A(f"s_lshl_b32 s{K_T0}, s{lw}, 3")
    A(f"s_add_u32 s{K_T0}, s{K_T0}, {L_SL}")
    A(f"s_cmp_eq_u32 s{Q_C}, 1")
    A(f"s_cselect_b32 s{K_T0}, s{K_T0}, {L_DUMMY}")
    A(f"v_mov_b32 v{LSA}, s{K_T0}")
    A(f"v_subrev_u32 v{LGD}, {L_SB-L_GD}, v{S_FRD}")
def l_chunk(A, cc):
    slot = cc % 4
    if "d" in O.X2: return
    A(f"s_add_u32 s{K_T0}, s{K_C0}, {cc}"); A(f"s_and_b32 s{K_T0}, s{K_T0}, 7")
    A(f"s_lshl_b32 s{K_T1}, s{K_T0}, 7"); A(f"s_add_u32 s{K_T1}, s{K_T1}, s{K_XO}")
    A(f"s_mul_i32 s{K_T0}, s{K_T0}, {64*2*F}"); A(f"s_add_u32 s{K_T0}, s{K_T0}, s{K_WO}")
    for q in range(2):
        A(f"s_add_u32 m0, s{K_M0}, {slot*32768+q*4096}")
        if q: A(f"s_add_u32 s{K_T1}, s{K_T1}, 32768")
        else: A("s_nop 0")
        for i in range(4):
            if "x" in O.X2: continue
            A(f"buffer_load_dwordx4 v{LX+i}, s[{S_X}:{S_X+3}], s{K_T1} offen offset:{i*1024} {O.XFL} lds")
        A(f"s_add_u32 m0, s{K_M0}, {slot*32768+16384+q*4096}")
        if q: A(f"s_add_u32 s{K_T0}, s{K_T0}, {16*2*F}")
        else: A("s_nop 0")
        for i in range(4):
            if "w" in O.X2: continue
            A(f"buffer_load_dwordx4 v{LW+i}, s[{S_W1}:{S_W1+3}], s{K_T0} offen offset:{i*1024} {O.W1FL} lds")
def l_pub(A, n, val):
    A(f"v_mov_b32 v{LV}, {val}"); A(f"v_mov_b32 v{LV+1}, {val}")
    A(f"s_waitcnt vmcnt({n})")
    A(f"ds_write_b64 v{LSA}, {vr(LV,2)}")
def loader(A, fin):
    A(f"s_cmp_ge_u32 s{S_J}, 28")
    A("s_cbranch_scc1 S_LW1")
    if O.LOOK == 3: l_chunk(A, 3)
    if O.LOOK == 8:
        A.label("S_LW1")
        fin()
    for c in range(max(4, O.LOOK), 8):
        lwait(A, LGD, 0, 31, c - 3)
        l_chunk(A, c)
        if c > O.LOOK: l_pub(A, 0 if "d" in O.X2 else 8 if ("x" in O.X2 or "w" in O.X2) else 16, c)
        if c == 7 and O.TOUCH:
            A(f"s_lshr_b32 s{K_T0}, s{K_XO}, 16")
            A(f"s_mul_i32 s{K_T0}, s{K_T0}, 224")
            A(f"s_and_b32 s{K_T1}, s{S_XCD}, 1")
            A(f"s_mul_i32 s{K_T1}, s{K_T1}, 56")
            A(f"s_add_u32 s{K_T0}, s{K_T0}, s{K_T1}")
            A(f"s_lshr_b32 s{K_T1}, s{S_J}, 2")
            A(f"s_lshl_b32 s{K_T1}, s{K_T1}, 3")
            A(f"s_add_u32 s{K_T0}, s{K_T0}, s{K_T1}")
            A(f"s_lshl_b32 s{K_T0}, s{K_T0}, 10")
            A(f"v_lshlrev_b32 v{LX}, 7, v1")
            A(f"s_add_u32 s{K_T1}, s{K_T0}, {112*1024}")
            A(f"buffer_load_dword v{LX+1}, v{LX}, s[{S_WS}:{S_WS+3}], s{K_T0} offen {O.TFL}")
            A(f"buffer_load_dword v{LX+2}, v{LX}, s[{S_WS}:{S_WS+3}], s{K_T1} offen {O.TFL}")
        if c == O.LFIN:
            A.label("S_LW1")
            fin()
            A(f"s_cmp_ge_u32 s{S_J}, 28")
            A("s_cbranch_scc1 S_LW2")
    A.label("S_LW2")
    if "v" in O.X2: l_pub(A, 0, 8)
    for s in range(4):
        lwait(A, LGD, 0, 31, 5 + s if "v" not in O.X2 else 8)
        if s == 0 and "v" in O.X2: pass
        for k in range(7):
            A(f"s_add_u32 m0, s{K_M2}, {s*32768+4096+k*2048}")
            A(f"s_add_u32 s{K_T0}, s{K_W2}, {(14*s+k)*16384}")
            A(f"buffer_load_dwordx4 v{L2D}, s[{S_W2}:{S_W2+3}], s{K_T0} offen {O.W2FL} lds")
            A(f"buffer_load_dwordx4 v{L2D+1}, s[{S_W2}:{S_W2+3}], s{K_T0} offen offset:1024 {O.W2FL} lds")
        if s == 0: l_pub(A, 16 if O.TOUCH else 14, 8)

TAB2 = LDS_SSM + 17408
S_PASS, S_UOK = 33, 34
U_SO, U_M0, UF, UD = 28, 29, 12, 13
def u_dma(A):
    for i in range(4):
        A(f"s_add_u32 m0, s{U_M0}, {i*1024}")
        A(f"s_add_u32 s{Q_T1}, s{U_SO}, {i*2048}")
        A(f"buffer_load_dwordx4 v{UD}, s[{S_WS}:{S_WS+3}], s{Q_T1} offen sc1 lds")
def u_setup(A):
    A(f"s_lshl_b32 s{Q_T0}, s{S_XCD}, {4+FS}")
    A(f"s_add_u32 s{Q_T0}, s{Q_T0}, {F_UT}")
    A("v_and_b32 v8, 15, v1")
    A(f"v_lshl_add_u32 v{UF}, v8, {FS}, s{Q_T0}")
    A(f"v_lshrrev_b32 v{UD}, 2, v1")
    A(f"v_lshlrev_b32 v{UD}, 3, v{UD}")
    A("v_and_b32 v8, 3, v1")
    A(f"v_add_lshl_u32 v{UD}, v{UD}, v8, 4")
    A(f"s_lshl_b32 s{U_SO}, s{Q_PAIR}, 7")
    A(f"s_add_u32 s{U_SO}, s{U_SO}, s{Q_NH}")
    A(f"s_lshl_b32 s{U_SO}, s{U_SO}, 6")
    A(f"s_add_u32 s{U_SO}, s{U_SO}, {WS_UT}")
    A(f"s_mul_i32 s{U_M0}, s{Q_NH}, {U_STRIDE}")
    A(f"s_add_u32 s{U_M0}, s{U_M0}, {LDS_U+64}")
    A(f"s_mov_b32 s{S_UOK}, 0")
def kgen2(A, later, hookA):
    w = S_WAVE; KC = Q_NH
    VW, VB, VA = 26, 27, 28
    E1, E8, E256, C0, E2, E4 = 128, 130, 132, 134, 136, 138
    LO = 140; E32 = 156; G = 160; CV = 200
    A(f"s_mul_i32 s{Q_TAB}, s{w}, {TAB_STRIDE}")
    A(f"s_add_u32 s{Q_TAB}, s{Q_TAB}, {TAB2}")
    A(f"v_lshl_add_u32 v{VW}, v1, 2, s{Q_TAB}")
    A("v_and_b32 v8, 15, v1")
    A("v_lshrrev_b32 v9, 5, v1")
    A(f"v_lshl_add_u32 v9, v9, 4, s{Q_TAB}")
    A("v_mov_b32 v10, 272")
    A(f"v_mad_u32_u24 v{VB}, v8, v10, v9")
    A("v_and_b32 v11, 7, v1")
    A("v_lshlrev_b32 v11, 2, v11")
    A("v_mov_b32 v12, 0xcbaaa988")
    A("v_lshrrev_b32 v11, v11, v12")
    A("v_and_b32 v11, 15, v11")
    A("v_and_b32 v12, 24, v1")
    A("v_cmp_eq_u32 vcc, 8, v12")
    A(f"s_mov_b32 s{Q_EX}, 0x0000ffff")
    A(f"s_mov_b32 s{Q_EX+1}, 0x0000ffff")
    A(f"s_mov_b32 s{Q_EX+2}, 0xffff0000")
    A(f"s_mov_b32 s{Q_EX+3}, 0xffff0000")
    A("v_cndmask_b32 v11, v8, v11, vcc")
    A(f"v_mad_u32_u24 v{VA}, v11, v10, v9")
    srd(A, S_WS, P_WS, WS_BYTES)
    A(f"v_mov_b32 v{LSA}, {L_DUMMY}")
    for k in range(16): A(f"v_mov_b32 v{KD+k}, 0")
    A(f"s_mov_b32 s{S_PASS}, 16")
    A("s_waitcnt lgkmcnt(0)")
    A(f"s_lshl_b32 s{Q_T0}, s{KC}, 4")
    A(f"s_lshr_b32 s{Q_LDT}, s{Q_LDT}, s{Q_T0}")
    A(f"s_lshl_b32 s{Q_LDT}, s{Q_LDT}, 16")
    A(f"s_lshr_b32 s{Q_DSK}, s{Q_DSK}, s{Q_T0}")
    A(f"s_lshl_b32 s{Q_DSK}, s{Q_DSK}, 16")
    A(f"v_mov_b32 v6, {LOG2E}")
    A(f"v_mul_f32 v7, s{Q_LDT}, v6")
    A("v_exp_f32 v7, v7")
    hookA()
    A("v_cvt_pk_bf16_f32 v7, v7, v7")
    A("v_lshlrev_b32 v7, 16, v7")
    A(f"s_waitcnt vmcnt({later})")
    tss(A, 2, "ak")
    A.label("KG_LOOP")
    for i in range(4): A(f"v_lshlrev_b32 v{2+i}, s{S_PASS}, v{14+i}")
    for i in range(4): A(f"v_and_b32 v{2+i}, 0xffff0000, v{2+i}")
    A("v_mul_f32 v2, v6, v2")
    A("v_exp_f32 v2, v2")
    A("v_add_f32 v8, v7, v7")
    A("v_cvt_pk_bf16_f32 v2, v2, v2")
    A("v_lshlrev_b32 v2, 16, v2")
    A("v_mul_f32 v2, v2, v7")
    A("v_mul_f32 v3, v3, v7")
    A("v_mul_f32 v2, 0xbfb8aa3b, v2")
    A(f"v_mul_f32 v3, {INV2PI}, v3")
    A(f"v_mul_f32 v{C0}, v4, v8")
    A(f"v_mul_f32 v{C0+1}, v5, v8")
    A("v_mul_f32 v10, 0x41000000, v2")
    A("v_mul_f32 v11, 0x41000000, v3")
    A("v_mul_f32 v12, 0x43800000, v2")
    A("v_mul_f32 v13, 0x43800000, v3")
    for r in (11, 3, 13): A(f"v_fract_f32 v{r}, v{r}")
    for (m, f, e) in ((10, 11, E8), (2, 3, E1), (12, 13, E256)):
        A(f"v_exp_f32 v{m}, v{m}")
        A(f"v_cos_f32 v{e}, v{f}")
        A(f"v_sin_f32 v{e+1}, v{f}")
    for (m, e) in ((10, E8), (2, E1), (12, E256)):
        A(f"v_pk_mul_f32 {vr(e,2)}, {vr(e,2)}, {vr(m,2)} op_sel:[0,0] op_sel_hi:[1,0]")
    hook = None
    kgen_tables2(A, hook, VW, VB, VA, E1, E8, E256, C0, E2, E4, LO, E32, G, CV)
    for ks in range(8):
        A(f"s_waitcnt lgkmcnt({7-ks})")
        A(f"v_mfma_f32_32x32x16_bf16 {vr(KD,16)}, {vr(KA+4*ks,4)}, {vr(KB+4*ks,4)}, {vr(KD,16)}")
    A(f"s_cmp_eq_u32 s{S_PASS}, 0")
    A("s_cbranch_scc1 KG_DONE")
    tss(A, 3, "k")
    A(f"s_mov_b32 s{S_PASS}, 0")
    A("s_branch KG_LOOP")
    A.label("KG_DONE")
    tss(A, 4, "k"); tss(A, 3, "a")
    token_get(A, 8, STOK)
    X = 64
    A(f"s_mul_i32 s{Q_T0}, s{KC}, {K_STRIDE}")
    A(f"s_add_u32 s{Q_T0}, s{Q_T0}, {LDS_K}")
    A("v_and_b32 v8, 31, v1")
    A("v_lshrrev_b32 v9, 5, v1")
    A(f"v_lshl_add_u32 v8, v8, 4, s{Q_T0}")
    A(f"v_lshl_add_u32 v10, v1, 3, s{Q_T0}")
    A("v_mov_b32 v12, 0"); A("v_mov_b32 v13, 0")
    A("ds_write_b64 v10, v[12:13]")
    A("v_and_b32 v11, 15, v1")
    A(f"s_mul_i32 s{Q_T0}, s{KC}, {U_STRIDE}")
    A(f"s_add_u32 s{Q_T0}, s{Q_T0}, {LDS_U}")
    A(f"v_lshl_add_u32 v11, v11, 2, s{Q_T0}")
    A("ds_write_b32 v11, v12")
    A("v_cmp_eq_u32 vcc, 0, v1")
    A(f"v_mov_b32 v11, s{Q_DSK}")
    A("v_lshl_add_u32 v14, v9, 3, v8")
    A("v_lshl_add_u32 v15, v9, 9, v8")
    A("v_cndmask_b32 v11, 0, v11, vcc")
    A("v_lshl_add_u32 v16, v9, 10, v8")
    A("s_nop 4")
    A(f"v_add_f32 v{KD}, v{KD}, v11")
    A("v_and_b32 v11, 1, v1")
    A("v_cmp_eq_u32 vcc, 1, v11")
    for k in range(4): A(f"v_cvt_pk_bf16_f32 v{X+k}, v{KD+2*k}, v{KD+2*k+1}")
    a, b, c = KD + 8, KD + 9, KD + 10
    for k, (p, q) in enumerate(((a, a), (a, b), (b, b), (c, c))): A(f"v_cvt_pk_bf16_f32 v{X+4+k}, v{p}, v{q}")
    A(f"ds_write_b64 v14, {vr(X,2)} offset:448")
    A(f"ds_write_b64 v14, {vr(X+2,2)} offset:960")
    A(f"ds_write_b128 v15, {vr(X+4,4)} offset:1472")
    X = 72
    for k in range(2):
        a, b = KD + 12 + 2 * k, KD + 13 + 2 * k
        A(f"v_cndmask_b32 v11, v{a}, v{b}, vcc")
        A(f"v_cvt_pk_bf16_f32 v{X+4*k}, v{a}, v{a}")
        A(f"v_cvt_pk_bf16_f32 v{X+4*k+1}, v{a}, v{a}")
        A(f"v_cvt_pk_bf16_f32 v{X+4*k+2}, v11, v{b}")
        A(f"v_cvt_pk_bf16_f32 v{X+4*k+3}, v{b}, v{b}")
        A(f"ds_write_b128 v16, {vr(X+4*k,4)} offset:{2496+512*k}")

def loader2(A):
    A(f"s_cmp_ge_u32 s{S_J}, 28")
    A("s_cbranch_scc1 S_LW2")
    for c in range(O.LOOK, 8):
        if c >= 4: lwait(A, LGD, 0, 31, c - 3, sleep=O.LSLP)
        l_chunk(A, c)
        if c > O.LOOK: l_pub(A, 16, c)
        if c in (3, 5, 7): tss(A, 2 + (c - 3) // 2, "k")
    A.label("S_LW2")
    u_setup(A)
    token_get(A, 8, STOK)
    for s in range(4):
        lwait(A, LGD, 0, 31, 5 + s, sleep=O.LSLP)
        if s < 3:
            if s: A(f"s_cmp_eq_u32 s{S_UOK}, 1"); A(f"s_cbranch_scc1 S_U{s}")
            A(f"buffer_load_dword v9, v{UF}, s[{S_WS}:{S_WS+3}], 0 offen sc1")
            if s: A.label(f"S_U{s}")
        for k in range(7):
            A(f"s_add_u32 m0, s{K_M2}, {s*32768+4096+k*2048}")
            A(f"s_add_u32 s{K_T0}, s{K_W2}, {(14*s+k)*16384}")
            A(f"buffer_load_dwordx4 v{L2D}, s[{S_W2}:{S_W2+3}], s{K_T0} offen {O.W2FL} lds")
            A(f"buffer_load_dwordx4 v{L2D+1}, s[{S_W2}:{S_W2+3}], s{K_T0} offen offset:1024 {O.W2FL} lds")
        if s == 0: l_pub(A, 15, 8)
        if s < 3:
            if s: A(f"s_cmp_eq_u32 s{S_UOK}, 1"); A(f"s_cbranch_scc1 S_V{s}")
            A("s_waitcnt vmcnt(14)")
            A(f"v_cmp_ne_u32 vcc, v{STOK}, v9")
            A(f"s_cbranch_vccnz S_V{s}")
            u_dma(A)
            A(f"s_mov_b32 s{S_UOK}, 1")
            A.label(f"S_V{s}")
    tss(A, 5, "k")
    A("s_waitcnt vmcnt(14)")
    A(f"s_cmp_eq_u32 s{S_UOK}, 1"); A(f"s_cbranch_scc1 S_CV")
    poll(A, UF, 9, STOK, "PU")
    u_dma(A)
    A("s_waitcnt vmcnt(0)")

def conv_final3(A):
    w = S_WAVE
    A("v_bfe_u32 v8, v1, 3, 1")
    A("v_bfe_u32 v9, v1, 2, 1")
    A("v_and_b32 v10, 3, v1")
    A(f"v_lshl_add_u32 v8, v8, 2, s{w}")
    A("v_lshl_add_u32 v11, v8, 2, v10")
    A("v_lshlrev_b32 v11, 2, v11")
    A("v_lshl_add_u32 v12, v9, 7, v11")
    A("v_mul_u32_u24 v13, 144, v9")
    A("v_add_u32 v13, v13, v11")
    A(f"v_add_u32 v12, {LDS_HEAD}, v12")
    A(f"v_add_u32 v13, {LDS_CARR}, v13")
    A("v_lshl_add_u32 v8, v8, 8, v10")
    A("v_lshl_add_u32 v8, v8, 1, v9")
    A("v_lshlrev_b32 v8, 1, v8")
    A(f"v_add_u32 v8, {LDS_STG}, v8")
    A(f"s_lshl_b32 s{Q_T1}, s{w}, 10")
    A(f"s_add_u32 s{Q_T0}, s{Q_T1}, {LDS_STG}")
    A(f"v_lshl_add_u32 v9, v1, 3, s{Q_T0}")
    A("v_lshlrev_b32 v16, 4, v1")
    A(f"s_lshl_b32 s{Q_T0}, s{Q_PAIR}, 13")
    A(f"s_add_u32 s{Q_T0}, s{Q_T0}, s{Q_T1}")
    A(f"s_lshl_b32 s{Q_T0}, s{Q_T0}, 1")
    A(f"s_add_u32 s{Q_T0}, s{Q_T0}, {WS_A2}")
    A(f"s_add_u32 s{Q_T1}, s{Q_T0}, 8192")
    for k in range(4): A(f"v_mov_b32 v{67+4*k}, v{STOK}")
    s_barrier(A, 3)
    A("ds_read_b32 v12, v12")
    A("ds_read_b32 v13, v13")
    A("s_waitcnt lgkmcnt(0)")
    A("v_add_f32 v12, v12, v13")
    A("v_cvt_pk_bf16_f32 v12, v12, v12")
    A("ds_write_b16 v8, v12")
    for k in range(4): A(f"ds_read_b64 {vr(64+4*k,2)}, v9 offset:{(k//2)*4096+(k%2)*512}")
    for k in range(4):
        A(f"s_waitcnt lgkmcnt({3-k})")
        A(f"v_mov_b32 v{66+4*k}, v{65+4*k}")
        A(f"v_mov_b32 v{65+4*k}, v{STOK}")
        A(f"buffer_store_dwordx4 {vr(64+4*k,4)}, v16, s[{S_WS}:{S_WS+3}], s{Q_T0+k//2} offen offset:{(k%2)*1024} sc1")
def s_tail3(A):
    w = S_WAVE; SO_P = 76
    tss(A, 5, "a"); tss(A, 2, "t")
    A(f"s_lshl_b32 s{Q_T0}, s2, 2")
    A(f"s_add_u32 s{Q_T0}, s{Q_T0}, s{w}")
    A(f"s_lshl_b32 s{SO_P}, s{Q_T0}, 12")
    A(f"s_add_u32 s{SO_P}, s{SO_P}, {WS_P}")
    A(f"s_lshl_b32 s{Q_T0}, s{Q_NH}, 15")
    A(f"s_lshl_b32 s{Q_T1}, s{Q_C}, 11")
    A(f"s_add_u32 s{Q_T0}, s{Q_T0}, s{Q_T1}")
    A(f"v_add_u32 v17, s{Q_T0}, v16")
    A(f"v_xor_b32 v15, {0x10000+2048}, v17")
    A(f"s_lshl_b32 s{Q_T0}, s{Q_NH}, 2")
    A(f"s_add_u32 s{Q_T0}, s{Q_T0}, {L_GD}")
    A("v_and_b32 v5, 1, v1")
    A(f"v_lshl_add_u32 v5, v5, 3, s{Q_T0}")
    for k in range(8): A(f"v_mov_b32 v{97+2*k}, v{STOK}")
    lwait(A, 5, 0, 31, 9, sleep=1 - O.RSLP)
    tss(A, 3, "t")
    X = 112
    for h in range(2):
        A(f"ds_read_b128 {vr(X+4*h,4)}, v17 offset:{1024*h}")
        A(f"ds_read_b128 {vr(X+8+4*h,4)}, v15 offset:{1024*h}")
    A(f"v_mov_b32 v{S_FT}, 50")
    for h in range(2):
        A(f"s_waitcnt lgkmcnt({2-2*h})")
        if h == 1: A(f"ds_write_b32 v{S_FOWN}, v{S_FT}")
        for k in range(4):
            r = X + 4 * h + k
            A(f"v_lshlrev_b32 v80, 16, v{r}")
            A(f"v_lshlrev_b32 v81, 16, v{r+8}")
            A(f"v_and_b32 v82, 0xffff0000, v{r}")
            A(f"v_and_b32 v83, 0xffff0000, v{r+8}")
            A("v_add_f32 v80, v80, v81")
            A("v_add_f32 v82, v82, v83")
            A(f"v_cvt_pk_bf16_f32 v{96+8*h+2*k}, v80, v82")
            if k % 2 == 1:
                q = 2 * h + k // 2
                A(f"buffer_store_dwordx4 {vr(96+4*q,4)}, v16, s[{S_WS}:{S_WS+3}], s{SO_P} offen offset:{1024*q} {O.PST}")
    tss(A, 4, "t")
    A("s_waitcnt lgkmcnt(0)")

def s_tail(A):
    w = S_WAVE
    RT, CT, TT, DB = Q_EX, Q_EX + 1, Q_EX + 2, Q_EX + 3
    PK, AP, G, PP, T = 128, 136, 144, 148, 160
    SO_P, SO_PF, SO_A, SO_O = 76, 77, 78, 79
    A(f"s_lshl_b32 s80, s{Q_PAIR}, {FS}")
    A(f"s_lshl_b32 s{Q_T0}, s{w}, {8+FS}")
    A(f"s_add_u32 s80, s80, s{Q_T0}")
    A(f"s_add_u32 s80, s80, {F_A}")
    A(f"s_and_b32 s{RT}, s{S_XCD}, 6")
    A(f"s_lshl_b32 s{RT}, s{RT}, 1")
    A(f"s_and_b32 s{Q_T0}, s{S_J}, 3")
    A(f"s_add_u32 s{RT}, s{RT}, s{Q_T0}")
    A(f"s_lshl_b32 s{RT}, s{RT}, 1")
    A(f"s_and_b32 s{Q_T0}, s{S_XCD}, 1")
    A(f"s_add_u32 s{RT}, s{RT}, s{Q_T0}")
    A(f"s_lshr_b32 s{CT}, s{S_J}, 2")
    A(f"s_lshl_b32 s{TT}, s{RT}, 1")
    A(f"s_add_u32 s{TT}, s{TT}, s{Q_NH}")
    A(f"s_lshl_b32 s{DB}, s{CT}, 1")
    A(f"s_add_u32 s{DB}, s{DB}, s{Q_C}")
    A(f"s_bfe_u32 s{Q_T0}, s{RT}, 0x20002")
    A(f"s_lshl_b32 s{Q_T0}, s{Q_T0}, {8+FS}")
    A(f"s_lshl_b32 s{Q_T1}, s{DB}, {4+FS}")
    A(f"s_add_u32 s{Q_T0}, s{Q_T0}, s{Q_T1}")
    A(f"s_add_u32 s{Q_T0}, s{Q_T0}, {F_A}")
    A(f"v_lshl_add_u32 v2, v1, {FS}, s{Q_T0}")
    A(f"s_lshl_b32 s{Q_T0}, s{TT}, {1+FS}")
    A(f"s_add_u32 s{Q_T0}, s{Q_T0}, {F_G}")
    A("v_and_b32 v3, 1, v1")
    A(f"v_lshl_add_u32 v3, v3, {FS}, s{Q_T0}")
    A("v_cmp_gt_u32 vcc, 16, v1")
    A("v_and_b32 v10, 31, v1")
    A("v_lshrrev_b32 v11, 5, v1")
    A("v_cndmask_b32 v2, v3, v2, vcc")
    A("v_lshlrev_b32 v4, 14, v11")
    A("v_lshl_add_u32 v12, v10, 2, v4")
    A("v_add_u32 v13, 8192, v12")
    A(f"s_lshl_b32 s{Q_T0}, s{TT}, 8")
    A(f"s_add_u32 s{Q_T0}, s{Q_T0}, {WS_G}")
    A(f"v_lshl_add_u32 v14, v10, 3, s{Q_T0}")
    A(f"s_lshl_b32 s{SO_A}, s{DB}, 17")
    A(f"s_lshl_b32 s{Q_T1}, s{TT}, 7")
    A(f"s_add_u32 s{SO_A}, s{SO_A}, s{Q_T1}")
    A(f"s_add_u32 s{SO_A}, s{SO_A}, {WS_A}")
    A("v_lshlrev_b32 v16, 4, v1")
    A(f"s_lshl_b32 s{Q_T0}, s{w}, 12")
    A(f"s_add_u32 s{Q_T0}, s{Q_T0}, {L_T}")
    A(f"v_add_u32 v18, s{Q_T0}, v16")
    A(f"s_lshl_b32 s{Q_T0}, s{w}, 8")
    A(f"s_add_u32 s{Q_T0}, s{Q_T0}, {L_T+16384}")
    A(f"v_lshl_add_u32 v19, v1, 2, s{Q_T0}")
    A(f"s_lshl_b32 s{Q_T0}, s2, 2")
    A(f"s_add_u32 s{Q_T0}, s{Q_T0}, s{w}")
    A(f"s_lshl_b32 s{SO_P}, s{Q_T0}, 12")
    A(f"s_add_u32 s{SO_P}, s{SO_P}, {WS_P}")
    A(f"s_xor_b32 s{SO_O}, s{SO_P}, {4<<12}")
    A(f"s_lshl_b32 s{Q_T0}, s{Q_NH}, 15")
    A(f"s_lshl_b32 s{Q_T1}, s{Q_C}, 11")
    A(f"s_add_u32 s{Q_T0}, s{Q_T0}, s{Q_T1}")
    A(f"v_add_u32 v17, s{Q_T0}, v16")
    A(f"v_xor_b32 v15, {0x10000+2048}, v17")
    A(f"s_lshl_b32 s{Q_T0}, s{Q_NH}, 2")
    A(f"s_add_u32 s{Q_T0}, s{Q_T0}, {L_GD}")
    A("v_and_b32 v5, 1, v1")
    A(f"v_lshl_add_u32 v5, v5, 3, s{Q_T0}")
    for k in range(8): A(f"v_mov_b32 v{97+2*k}, v{STOK}")
    A("s_waitcnt vmcnt(0)")
    flag_store(A, 80, 8, STOK)
    tss(A, 5, "a"); tss(A, 2, "t")
    def ag():
        poll(A, 2, 9, STOK, "PA")
        for q in range(4):
            for i in range(2):
                A(f"buffer_load_dword v{AP+2*q+i}, v{12+i}, s[{S_WS}:{S_WS+3}], s{SO_A} offen sc1")
            if q < 3: A(f"s_add_u32 s{SO_A}, s{SO_A}, 32768")
        A(f"buffer_load_dwordx2 {vr(G,2)}, v14, s[{S_WS}:{S_WS+3}], 0 offen sc1")
    def ag2():
        for k in range(8):
            A(f"v_lshlrev_b32 v{T+2*k}, 16, v{AP+k}")
            A(f"v_and_b32 v{T+2*k+1}, 0xffff0000, v{AP+k}")
        for k in range(16):
            A(f"v_mul_f32 v{T+k}, v{G}, v{T+k}")
        A(f"ds_write_b32 v19, v{G+1}")
    def relay():
        for h in range(2):
            A(f"ds_read_b128 {vr(64+4*h,4)}, v17 offset:{1024*h}")
            A(f"ds_read_b128 {vr(72+4*h,4)}, v15 offset:{1024*h}")
        A(f"v_mov_b32 v{S_FT}, 50")
        for h in range(2):
            A(f"s_waitcnt lgkmcnt({2-2*h})")
            if h == 1: A(f"ds_write_b32 v{S_FOWN}, v{S_FT}")
            for k in range(4):
                r = 64 + 4 * h + k
                A(f"v_lshlrev_b32 v80, 16, v{r}")
                A(f"v_lshlrev_b32 v81, 16, v{r+8}")
                A(f"v_and_b32 v82, 0xffff0000, v{r}")
                A(f"v_and_b32 v83, 0xffff0000, v{r+8}")
                A("v_add_f32 v80, v80, v81")
                A("v_add_f32 v82, v82, v83")
                A(f"v_cvt_pk_bf16_f32 v{96+8*h+2*k}, v80, v82")
                if k % 2 == 1:
                    q = 2 * h + k // 2
                    A(f"buffer_store_dwordx4 {vr(96+4*q,4)}, v16, s[{S_WS}:{S_WS+3}], s{SO_P} offen offset:{1024*q} {O.PST}")
    if O.TL2:
        GOT, REL, POL = 33, 34, 35
        A(f"s_bfe_u32 s{Q_T0}, s{RT}, 0x20002")
        A(f"s_lshl_b32 s{Q_T0}, s{Q_T0}, {8+FS}")
        A(f"s_lshl_b32 s{Q_T1}, s{CT}, {5+FS}")
        A(f"s_add_u32 s{Q_T0}, s{Q_T0}, s{Q_T1}")
        A(f"s_add_u32 s{Q_T0}, s{Q_T0}, {F_A}")
        A(f"v_lshl_add_u32 v2, v1, {FS}, s{Q_T0}")
        A(f"s_lshl_b32 s{Q_T0}, s{RT}, {2+FS}")
        A(f"s_add_u32 s{Q_T0}, s{Q_T0}, {F_G}")
        A("v_and_b32 v3, 3, v1")
        A(f"v_lshl_add_u32 v3, v3, {FS}, s{Q_T0}")
        A("v_cmp_gt_u32 vcc, 32, v1")
        A(f"v_mov_b32 v6, {L_AOK}")
        A(f"s_mov_b32 s{GOT}, 0"); A(f"s_mov_b32 s{REL}, 0")
        A("v_cndmask_b32 v2, v3, v2, vcc")
        A(f"s_cmp_eq_u32 s{w}, {O.POLW}")
        A(f"s_cselect_b32 s{POL}, 1, 0")
        A(f"s_mov_b32 s{S_SPIN}, {O.SPIN}")
        A.label("T_L")
        A(f"s_cmp_eq_u32 s{POL}, 1")
        A("s_cbranch_scc0 T_NP")
        A(f"buffer_load_dword v9, v2, s[{S_WS}:{S_WS+3}], 0 offen sc1")
        A(f"s_sub_u32 s{S_SPIN}, s{S_SPIN}, 1")
        A("s_waitcnt vmcnt(0)")
        A("s_cbranch_scc1 T_OK")
        A(f"v_cmp_ne_u32 vcc, v{STOK}, v9")
        A("s_cbranch_vccnz T_NP")
        A.label("T_OK")
        A(f"ds_write_b32 v6, v{STOK+1}")
        A(f"s_mov_b32 s{POL}, 0")
        A.label("T_NP")
        A("ds_read_b32 v7, v6")
        A("ds_read_b32 v31, v5")
        A(f"s_cmp_eq_u32 s{GOT}, 0")
        A("s_waitcnt lgkmcnt(0)")
        A("s_cbranch_scc0 T_NA")
        A("v_cmp_eq_u32 vcc, 0, v7")
        A("s_cbranch_vccnz T_NA")
        tss(A, 4, "t")
        for q in range(4):
            for i in range(2):
                A(f"buffer_load_dword v{AP+2*q+i}, v{12+i}, s[{S_WS}:{S_WS+3}], s{SO_A} offen sc1")
            if q < 3: A(f"s_add_u32 s{SO_A}, s{SO_A}, 32768")
        A(f"buffer_load_dwordx2 {vr(G,2)}, v14, s[{S_WS}:{S_WS+3}], 0 offen sc1")
        A(f"s_mov_b32 s{GOT}, 1")
        A(f"s_cmp_eq_u32 s{REL}, 1")
        A("s_cbranch_scc1 T_W0")
        A.label("T_NA")
        A(f"s_cmp_eq_u32 s{REL}, 0")
        A("s_cbranch_scc0 T_SL")
        A("v_cmp_gt_u32 vcc, 9, v31")
        A("s_cbranch_vccnz T_SL")
        tss(A, 3, "t")
        relay()
        A(f"s_mov_b32 s{REL}, 1")
        A(f"s_cmp_eq_u32 s{GOT}, 1")
        A("s_cbranch_scc1 T_W4")
        A.label("T_SL")
        A(f"s_cmp_eq_u32 s{POL}, 1")
        A("s_cbranch_scc1 T_SP")
        A("s_sleep 1")
        A("s_branch T_L")
        A.label("T_SP")
        A(f"s_sleep {O.ASLP}")
        A("s_branch T_L")
        A.label("T_W0")
        A("s_waitcnt vmcnt(0)")
        A.label("T_W4")
        A("s_waitcnt vmcnt(4)")
        tss(A, 5, "t")
        ag2()
        for q in range(4):
            A(f"ds_write_b128 v18, {vr(T+4*q,4)} offset:{q*1024}")
        sw_arrive(A, S_FOWN, S_FT, 100)
        A("s_waitcnt lgkmcnt(0)")
        return
    if O.AFIRST:
        ag(); A("s_waitcnt vmcnt(0)"); ag2()
        tss(A, 3, "t")
    lwait(A, 5, 0, 31, 9, sleep=1)
    tss(A, 4 if O.AFIRST else 3, "t")
    for h in range(2):
        A(f"ds_read_b128 {vr(64+4*h,4)}, v17 offset:{1024*h}")
        A(f"ds_read_b128 {vr(72+4*h,4)}, v15 offset:{1024*h}")
    A(f"v_mov_b32 v{S_FT}, 50")
    for h in range(2):
        A(f"s_waitcnt lgkmcnt({2-2*h})")
        if h == 1: A(f"ds_write_b32 v{S_FOWN}, v{S_FT}")
        for k in range(4):
            r = 64 + 4 * h + k
            A(f"v_lshlrev_b32 v80, 16, v{r}")
            A(f"v_lshlrev_b32 v81, 16, v{r+8}")
            A(f"v_and_b32 v82, 0xffff0000, v{r}")
            A(f"v_and_b32 v83, 0xffff0000, v{r+8}")
            A("v_add_f32 v80, v80, v81")
            A("v_add_f32 v82, v82, v83")
            A(f"v_cvt_pk_bf16_f32 v{96+8*h+2*k}, v80, v82")
            if k % 2 == 1:
                q = 2 * h + k // 2
                A(f"buffer_store_dwordx4 {vr(96+4*q,4)}, v16, s[{S_WS}:{S_WS+3}], s{SO_P} offen offset:{1024*q} {O.PST}")
    if not O.AFIRST:
        ag()
        tss(A, 4, "t")
    A(f"s_mov_b32 s{S_SPIN}, {O.SPIN}")
    A.label("S_PL")
    for q in range(4):
        A(f"buffer_load_dwordx4 {vr(112+4*q,4)}, v16, s[{S_WS}:{S_WS+3}], s{SO_O} offen offset:{1024*q} sc1")
    if not O.AFIRST:
        A(f"s_cmp_eq_u32 s{S_SPIN}, {O.SPIN}")
        A("s_cbranch_scc0 S_PM")
        A("s_waitcnt vmcnt(4)")
        ag2()
        A.label("S_PM")
    A("s_waitcnt vmcnt(0)")
    for k in range(4):
        A(f"v_xor_b32 v{80+k}, v{STOK}, v{113+4*k}")
        A(f"v_xor_b32 v{84+k}, v{STOK}, v{115+4*k}")
    A("v_or3_b32 v80, v80, v81, v82")
    A("v_or3_b32 v83, v83, v84, v85")
    A("v_or3_b32 v80, v80, v86, v87")
    A("v_or_b32 v80, v80, v83")
    A("v_cmp_ne_u32 vcc, 0, v80")
    A("s_cbranch_vccz S_PD")
    A("s_sleep 1")
    A(f"s_sub_u32 s{S_SPIN}, s{S_SPIN}, 1")
    A("s_cbranch_scc0 S_PL")
    A.label("S_PD")
    tss(A, 5, "t")
    for q in range(4):
        for k in range(2):
            r = 112 + 4 * q + 2 * k
            A(f"v_lshlrev_b32 v{80+2*k}, 16, v{r}")
            A(f"v_and_b32 v{81+2*k}, 0xffff0000, v{r}")
        for k in range(4):
            A(f"v_fmac_f32 v{T+4*q+k}, v{G+1}, v{80+k}")
        A(f"ds_write_b128 v18, {vr(T+4*q,4)} offset:{q*1024}")
    sw_arrive(A, S_FOWN, S_FT, 100)
    A("s_waitcnt lgkmcnt(0)")

def diag(A, k, role):
    A("s_waitcnt vmcnt(0) lgkmcnt(0)")
    A(f"s_memtime s[{S_TS+12}:{S_TS+13}]")
    A("s_waitcnt lgkmcnt(0)")
    A(f"s_sub_u32 s64, s{S_TS+2*k}, s{S_TS+2}")
    mx = len(O.DIAG) > 2
    if not mx or role == "G":
        A(f"s_cmp_ge_u32 s{S_J}, 28")
        A("s_cselect_b32 s64, 0, s64")
    A("v_mov_b32 v2, 128"); A("v_mov_b32 v3, s64")
    A("s_mov_b64 exec, 1")
    A(f"global_atomic_{'umax' if mx else 'add'} v2, v3, s[{P_DBG}:{P_DBG+1}] sc1")
    for lab, first in (("DG0", True), ("DG1", False)):
        A("s_mov_b32 s66, 1000000")
        if first: A("s_mov_b32 s67, 3200")
        A.label(lab)
        A("s_memrealtime s[64:65]")
        A("s_waitcnt lgkmcnt(0)")
        A(f"s_sub_u32 s64, s64, s{S_TS}")
        A("s_cmp_ge_u32 s64, s67")
        A(f"s_cbranch_scc1 {lab}X")
        A("s_sub_u32 s66, s66, 1")
        A(f"s_cbranch_scc0 {lab}")
        A.label(lab + "X")
        if first:
            A("s_waitcnt vmcnt(0)")
            A(f"global_load_dword v3, v2, s[{P_DBG}:{P_DBG+1}] sc1")
            A("s_waitcnt vmcnt(0)")
            A("v_readfirstlane_b32 s67, v3")
            A(f"s_lshr_b32 s67, s67, {1 if mx else 11}")
            A("s_add_u32 s67, s67, 3500")
def fin(A, role):
    if O.DIAG is None: ts_dump(A, 0, S_W8)
    elif O.DIAG[0] == role: diag(A, O.DIAG[1], role)

KN = "gated_mix__ssm_conv_s4d__dense_activation_silu__prompt_kernel"
A = Asm()
A.raw("; @launch grid=(256,1,1) block=(512,1,1) lds=163840")
A.raw('.amdgcn_target "amdgcn-amd-amdhsa--gfx950"')
kernel_header(A, KN)
ts_real(A, 0); parts_ts(A, 1)
prologue(A, "K_END")
A(f"s_mov_b32 s{S_W8}, s{S_WAVE}")
A("v_and_b32 v2, 31, v1")
A("v_lshlrev_b32 v2, 2, v2")
A(f"v_add_u32 v2, {LF}, v2")
A("v_mov_b32 v3, 0")
A("ds_write_b32 v2, v3")
A(f"s_cmp_ge_u32 s{S_WAVE}, 4")
A("s_cbranch_scc1 K_SSM")
if O.GPRIO: A(f"s_setprio {O.GPRIO}")
A(f"s_cmp_ge_u32 s{S_J}, 28")
A("s_cbranch_scc1 K_IDLE")
g1_setup(A)
if O.HAB: hab_setup(A)
rot_c0(A, S_C0, S_T0)
A("s_waitcnt lgkmcnt(0)")
srd(A, S_X, P_U, L*D*2); srd(A, S_W1, P_W1, D*F*2)
vm = Vm(A); cid = {}
for x in g_chunk_dma(0): vm.op(x)
cid[0] = vm.n
if O.GPRE == 1: A("s_barrier")
if O.LOOK > 1:
    for x in g_chunk_dma(1): vm.op(x)
    cid[1] = vm.n
if O.GPRE == 2: A("s_barrier")
srd(A, S_WS, P_WS, WS_BYTES); srd(A, S_OUT, P_OUT, L*D*2)
g1_setup2(A); g_flags_setup(A); g2_setup(A)
if O.HAB: hab_setup2(A)
if O.GW2: gw2_setup(A)
if O.LOOK > 2:
    for x in g_chunk_dma(2): vm.op(x)
    cid[2] = vm.n
if O.LOOK >= 4 and O.L3 == "u":
    for x in g_chunk_dma(3): vm.op(x)
    cid[3] = vm.n
if "L" in O.X2:
    parts_ts(A, 2)
    for k in sorted(cid)[:3]:
        vm.wait(cid[k]); parts_ts(A, 3 + k)
if O.GHOLD: lwait(A, GRD, 32, GT, 1, sleep=4)
(g1_main if O.LA == 1 else g1_main2)(A, vm, cid)
tsg(A, 2, "aeh")
g1_epi(A)
tsg(A, 3, "ae")
A.label("K_G2")
if O.GW2:
    A(f"v_mov_b32 v{GT}, 12")
    A("s_waitcnt vmcnt(0)")
    A(f"ds_write_b32 v{GOWN}, v{GT}")
    lwait(A, GRD, 0, GT + 1, 12)
else: lwait(A, GRD, 48, GT, 12)
for i in range(O.PFD):
    for x in w2_read(i): A(x)
tsg(A, 4, "h")
if O.PW:
    poll(A, FV, GT, VTOK, "PH", slp=O.HSLP)
    A("s_waitcnt lgkmcnt(0)")
else:
    A(f"v_mov_b32 v{GX}, {L_HOK}")
    A(f"s_cmp_eq_u32 s{S_WAVE}, 0")
    A("s_cbranch_scc0 K_HW")
    poll(A, FV, GT, VTOK, "PH", slp=O.HSLP)
    A(f"ds_write_b32 v{GX}, v{VTOK+1}")
    A("s_waitcnt lgkmcnt(1)")
    A("s_branch K_HD")
    A.label("K_HW")
    lwait(A, GX, 0, GT, 1)
A.label("K_HD")
tsg(A, 5, "h")
tsg(A, 4, "ae"); tsg(A, 1, "sf")
g2_main(A)
A("s_waitcnt lgkmcnt(0)")
fin(A, "G")
A("s_endpgm")
A.label("K_IDLE")
if O.IPRIO != O.GPRIO: A(f"s_setprio {O.IPRIO}")
idle_tr_issue(A)
if O.CODEPF:
    A("s_getpc_b64 s[72:73]")
    A.label("K_PC")
    A(f"s_sub_u32 s72, s72, K_PC-{KN}")
    A("s_subb_u32 s73, s73, 0")
    A(f"v_lshl_add_u32 v20, s64, 5, v1")
    A("v_lshlrev_b32 v20, 7, v20")
    A(f"v_min_u32 v20, K_END-{KN}, v20")
    A("s_mov_b64 exec, 0xffffffff")
    A("global_load_dword v21, v20, s[72:73]")
    A("s_mov_b64 exec, -1")
A("s_waitcnt lgkmcnt(0)")
srd(A, S_X, P_U, L*D*2)
if any(O.W2P): srd(A, S_W2, P_W2, D*F*2); w2_touch_setup(A)
w2_touch(A, O.W2P[0], 26)
idle_tr_dma(A)
A("s_barrier")
w2_touch(A, O.W2P[1], 26)
srd(A, S_WS, P_WS, WS_BYTES); srd(A, S_OUT, P_OUT, L*D*2)
idle_tr_finish(A, 2 * len(O.W2P[1]))
g_flags_setup(A); g2_setup(A)
tsg(A, 2, "ae")
token_get(A, GX, VTOK)
A(f"s_lshl_b32 s68, s34, 4")
A(f"s_add_u32 s68, s68, s33")
A(f"s_lshl_b32 s65, s68, {FS}")
A(f"s_add_u32 s65, s65, {F_UT}")
A("s_waitcnt vmcnt(0)")
flag_store(A, 65, GT, VTOK)
tsg(A, 3, "ae")
A(f"v_mov_b32 v{GT}, 8")
A(f"ds_write_b32 v{GOWN}, v{GT} offset:16")
if O.IPRIO != O.GPRIO: A(f"s_setprio {O.GPRIO}")
w2_touch(A, O.W2P[2], 26)
idle_gate_issue(A)
w2_touch(A, O.W2P[3], 26)
if O.GW2:
    gw2_setup(A)
    lwait(A, GRD, 16, GT, 8)
    for sl in range(4):
        for x in gw2_dma(sl): A(x)
idle_gate_finish(A, 2 * len(O.W2P[3]) + (28 if O.GW2 else 0))
if not O.TL3:
    A(f"s_lshl_b32 s65, s68, {FS}")
    A(f"s_add_u32 s65, s65, {F_G}")
    A("s_waitcnt vmcnt(0)")
    flag_store(A, 65, GT, VTOK)
A("s_branch K_G2")
A.label("K_SSM")
if O.SPRIO: A(f"s_setprio {O.SPRIO}")
A(f"s_sub_u32 s{S_WAVE}, s{S_WAVE}, 4")
s_setup(A)
carry_zero(A)
A("s_getreg_b32 s31, hwreg(HW_REG_XCC_ID)")
def w2s():
    if O.W2S is None: return
    srd(A, S_W2, P_W2, D*F*2)
    A(f"s_lshr_b32 s{Q_T0}, s{S_XCD}, 1")
    A(f"s_and_b32 s{Q_T1}, s{S_XCD}, 1")
    A(f"s_lshl_b32 s{Q_T1}, s{Q_T1}, 2")
    A(f"s_add_u32 s{Q_T0}, s{Q_T0}, s{Q_T1}")
    A(f"s_lshl_b32 s{Q_T0}, s{Q_T0}, 5")
    A(f"s_add_u32 s{Q_T0}, s{Q_T0}, s{S_J}")
    A(f"s_lshl_b32 s{Q_T0}, s{Q_T0}, 1")
    A(f"s_add_u32 s{Q_T0}, s{Q_T0}, s{Q_NH}")
    A(f"s_mul_i32 s{Q_T0}, s{Q_T0}, 3584")
    A("v_min_u32 v39, 27, v1")
    A("v_lshlrev_b32 v39, 7, v39")
    A(f"buffer_load_dword v39, v39, s[{S_W2}:{S_W2+3}], s{Q_T0} offen {O.PFL2}")
def flow2():
    A(f"s_cmp_eq_u32 s{Q_C}, 1")
    A("s_cbranch_scc1 S_LD")
    A(f"s_lshl_b32 s{Q_T0}, s{Q_PAIR}, 9")
    A(f"s_lshl_b32 s{Q_T1}, s{S_WAVE}, 8")
    A(f"s_add_u32 s{Q_T0}, s{Q_T0}, s{Q_T1}")
    A(f"v_lshl_add_u32 v6, v1, 2, s{Q_T0}")
    A(f"s_lshl_b32 s{Q_T0}, s{Q_PAIR}, 2")
    A("s_waitcnt lgkmcnt(0)")
    for i, p in enumerate((P_LA, P_AI, P_CR, P_CI)):
        A(f"global_load_dword v{14+i}, v6, s[{p}:{p+1}]")
    A(f"s_load_dword s{Q_LDT}, s[{P_LDT}:{P_LDT+1}], s{Q_T0}")
    A(f"s_load_dword s{Q_DSK}, s[{P_DSK}:{P_DSK+1}], s{Q_T0}")
    A(f"s_add_u32 s28, s{P_WS}, {F_EP}")
    A(f"s_addc_u32 s29, s{P_WS+1}, 0")
    A(f"s_cmp_eq_u32 s{S_WAVE}, 1")
    A("s_cbranch_scc0 S_NT")
    A("s_load_dword s30, s[28:29], 0")
    A.label("S_NT")
    A("s_barrier")
    if O.W2S == 0: w2s()
    def tokpub():
        A(f"s_cmp_eq_u32 s{S_WAVE}, 1")
        A("s_cbranch_scc0 S_NP")
        A("s_mul_i32 s30, s30, 0x9e3779a1")
        A("s_add_u32 s30, s30, 0x7f4a7c10")
        A("s_and_b32 s30, s30, -16")
        A(f"v_mov_b32 v{STOK}, s30")
        A(f"v_mov_b32 v{STOK+1}, 1")
        A(f"v_mov_b32 v34, {L_RDY}")
        A(f"ds_write_b64 v34, {vr(STOK,2)}")
        A(f"s_waitcnt vmcnt({1 if O.W2S == 0 else 0})")
        A(f"s_lshl_b32 s28, s2, {FS}")
        A(f"s_add_u32 s28, s28, {F_HERE}")
        flag_store(A, 28, 36, STOK)
        A("s_branch S_NQ")
        A.label("S_NP")
        A(f"s_waitcnt vmcnt({1 if O.W2S == 0 else 0})")
        A.label("S_NQ")
    kgen2(A, 2, tokpub)
    tss(A, 5, "k")
    A("s_cmp_eq_u32 s2, 0")
    A("s_cbranch_scc0 S_UW")
    A(f"s_cmp_eq_u32 s{S_WAVE}, 1")
    A("s_cbranch_scc0 S_UW")
    for i in range(4):
        A(f"v_lshlrev_b32 v8, {FS}, v1")
        A(f"v_add_u32 v8, {F_HERE+(64<<FS)*i}, v8")
        poll(A, 8, 9, STOK, "PE")
    A(f"s_mov_b32 s{Q_T0}, {F_EP}")
    flag_store(A, Q_T0, 8, STOK)
    A.label("S_UW")
    A("s_branch S_CV")
    A.label("S_LD")
    if O.LPRIO != O.SPRIO: A(f"s_setprio {O.LPRIO}")
    loader_setup(A)
    A("s_waitcnt lgkmcnt(0)")
    srd(A, S_X, P_U, L*D*2); srd(A, S_W1, P_W1, D*F*2); srd(A, S_W2, P_W2, D*F*2)
    srd(A, S_WS, P_WS, WS_BYTES)
    A("s_barrier")
    if O.W2S == 1: w2s()
    if O.LDLY: A(f"s_sleep {O.LDLY}")
    loader2(A)
def flow1():
    A(f"s_lshl_b32 s{Q_T0}, s{Q_PAIR}, 9")
    A(f"s_lshl_b32 s{Q_T1}, s{S_WAVE}, 7")
    A(f"s_add_u32 s{Q_T0}, s{Q_T0}, s{Q_T1}")
    A(f"v_lshl_add_u32 v6, v1, 1, s{Q_T0}")
    A(f"s_lshl_b32 s{Q_T0}, s{Q_PAIR}, 2")
    A("s_waitcnt lgkmcnt(0)")
    for i, p in enumerate((P_LA, P_AI, P_CR, P_CI)):
        A(f"global_load_ushort v{2+i}, v6, s[{p}:{p+1}]")
    A(f"s_load_dword s{Q_LDT}, s[{P_LDT}:{P_LDT+1}], s{Q_T0}")
    A(f"s_load_dword s{Q_DSK}, s[{P_DSK}:{P_DSK+1}], s{Q_T0}")
    A(f"s_add_u32 s28, s{P_WS}, {F_EP}")
    A(f"s_addc_u32 s29, s{P_WS+1}, 0")
    A(f"s_cmp_eq_u32 s{S_WAVE}, 1")
    A("s_cbranch_scc0 S_NT")
    A("s_load_dword s30, s[28:29], 0")
    A.label("S_NT")
    A("s_barrier")
    if O.TCH:
        A(f"s_cmp_eq_u32 s{Q_C}, 1")
        A("s_cbranch_scc1 S_T2")
        A(f"s_cmp_eq_u32 s{Q_NH}, 1")
        A("s_cbranch_scc1 S_T1")
        srd(A, S_X, P_U, L*D*2)
        A(f"s_lshl_b32 s{Q_T0}, s{Q_PAIR}, 13")
        A("v_lshlrev_b32 v39, 7, v1" if "x" in O.TCH else "v_mov_b32 v39, 0")
        A(f"buffer_load_dword v39, v39, s[{S_X}:{S_X+3}], s{Q_T0} offen")
        A("s_branch S_T3")
        A.label("S_T1")
        srd(A, S_W1, P_W1, D*F*2)
        A(f"s_add_u32 s{Q_T0}, s{S_XCD}, {2*O.TR}")
        A(f"s_bfe_u32 s{Q_T0}, s{Q_T0}, 0x20001")
        A(f"s_lshl_b32 s{Q_T0}, s{Q_T0}, 5")
        A(f"s_add_u32 s{Q_T0}, s{Q_T0}, s{S_J}")
        A(f"s_mul_i32 s{Q_T0}, s{Q_T0}, {4*2*F}")
        A(f"s_and_b32 s{Q_T1}, s{S_XCD}, 1")
        A(f"s_mul_i32 s{Q_T1}, s{Q_T1}, {F}")
        A(f"s_add_u32 s{Q_T0}, s{Q_T0}, s{Q_T1}")
        A("v_and_b32 v38, 15, v1")
        A("v_min_u32 v38, 13, v38")
        A("v_lshrrev_b32 v39, 4, v1")
        A(f"v_mul_u32_u24 v39, {2*F}, v39")
        A("v_lshl_add_u32 v39, v38, 7, v39" if "w" in O.TCH else "v_mov_b32 v39, 0")
        A(f"buffer_load_dword v39, v39, s[{S_W1}:{S_W1+3}], s{Q_T0} offen")
        A("s_branch S_T3")
        A.label("S_T2")
        w2s()
        A.label("S_T3")
    elif O.W2H: pass
    elif O.W2S is not None:
        srd(A, S_W2, P_W2, D*F*2)
        A(f"s_lshr_b32 s{Q_T0}, s{S_XCD}, 1")
        A(f"s_and_b32 s{Q_T1}, s{S_XCD}, 1")
        A(f"s_lshl_b32 s{Q_T1}, s{Q_T1}, 2")
        A(f"s_add_u32 s{Q_T0}, s{Q_T0}, s{Q_T1}")
        A(f"s_lshl_b32 s{Q_T0}, s{Q_T0}, 5")
        A(f"s_add_u32 s{Q_T0}, s{Q_T0}, s{S_J}")
        A(f"s_mul_i32 s{Q_T0}, s{Q_T0}, 7168")
        A(f"s_mul_i32 s{Q_T1}, s{S_WAVE}, 1792")
        A(f"s_add_u32 s{Q_T0}, s{Q_T0}, s{Q_T1}")
        A("v_min_u32 v39, 13, v1")
        A("v_lshlrev_b32 v39, 7, v39")
        A(f"buffer_load_dword v39, v39, s[{S_W2}:{S_W2+3}], s{Q_T0} offen {O.PFL2}")
    def pre():
        if O.GW2: srd(A, S_WS, P_WS, WS_BYTES); return
        srd(A, S_X, P_U, L*D*2); srd(A, S_W1, P_W1, D*F*2); srd(A, S_W2, P_W2, D*F*2)
        srd(A, S_WS, P_WS, WS_BYTES)
        loader_setup(A)
    def tokpub():
        tss(A, 2, "ak")
        A(f"s_cmp_eq_u32 s{S_WAVE}, 1")
        A("s_cbranch_scc0 S_NP")
        A("s_mul_i32 s30, s30, 0x9e3779a1")
        A("s_add_u32 s30, s30, 0x7f4a7c10")
        A("s_and_b32 s30, s30, -16")
        A("s_and_b32 s31, s31, 15")
        A("s_or_b32 s31, s31, s30")
        A(f"v_mov_b32 v{STOK}, s30")
        A(f"v_mov_b32 v{STOK+1}, 1")
        A(f"v_mov_b32 v34, {L_RDY}")
        A(f"ds_write_b64 v34, {vr(STOK,2)}")
        A(f"v_mov_b32 v35, s31")
        A(f"s_lshl_b32 s28, s2, {FS}")
        A(f"s_add_u32 s28, s28, {F_HERE}")
        flag_store(A, 28, 36, 35)
        A.label("S_NP")
    def khook():
        tss(A, 3, "k")
        if O.W2H == 1:
            A(f"s_cmp_eq_u32 s{Q_C}, 1")
            A("s_cbranch_scc0 S_T4")
            w2s()
            A.label("S_T4")
    kgen(A, later=0 if (O.W2S is None or O.W2H) else 1, hookA=tokpub, pre=pre, hook=khook)
    tss(A, 4, "k")
    if O.W2H == 2:
        A(f"s_cmp_eq_u32 s{Q_C}, 0")
        A("s_cbranch_scc0 S_T4")
        w2s()
        A.label("S_T4")
    kgen_exchange_write(A)
    A("s_waitcnt lgkmcnt(0)")
    sw_arrive(A, S_FOWN, S_FT, 1)
    def kfin():
        sw_wait(A, S_FRD, S_FT, 1, sleep=1)
        kgen_final(A)
        token_get(A, 8, STOK)
    tss(A, 3, "a")
    if O.GW2:
        token_get(A, 16, STOK)
        A(f"s_cmp_eq_u32 s{S_WAVE}, {O.UW}")
        A("s_cbranch_scc0 S_K1")
        A(f"s_lshl_b32 s{Q_T0}, s{S_XCD}, {4+FS}")
        A(f"s_add_u32 s{Q_T0}, s{Q_T0}, {F_UT}")
        A("v_and_b32 v16, 15, v1")
        A(f"v_lshl_add_u32 v16, v16, {FS}, s{Q_T0}")
        poll(A, 16, 17, STOK, "PU")
        ut2(A, 0)
        A.label("S_K1")
        sw_wait(A, S_FRD, S_FT, 1, sleep=1)
        kgen_final(A)
        tss(A, 5, "k")
        A(f"s_cmp_eq_u32 s{S_WAVE}, {O.UW}")
        A("s_cbranch_scc0 S_K2")
        ut2(A, 1)
        A.label("S_K2")
        A("s_cmp_eq_u32 s2, 0")
        A("s_cbranch_scc0 S_CV")
        A(f"s_cmp_eq_u32 s{S_WAVE}, 1")
        A("s_cbranch_scc0 S_CV")
        for i in range(4):
            A(f"v_lshlrev_b32 v8, {FS}, v1")
            A(f"v_add_u32 v8, {F_HERE+(64<<FS)*i}, v8")
            poll(A, 8, 9, STOK, "PE", mask=True)
        A(f"s_mov_b32 s{Q_T0}, {F_EP}")
        flag_store(A, Q_T0, 8, STOK)
        return
    A(f"s_cmp_eq_u32 s{Q_C}, 1")
    A("s_cbranch_scc1 S_LD")
    kfin()
    tss(A, 5, "k")
    A(f"s_cmp_eq_u32 s{S_WAVE}, 1")
    A("s_cbranch_scc1 S_VD")
    A(f"s_lshl_b32 s{Q_T0}, s{S_XCD}, {4+FS}")
    A(f"s_add_u32 s{Q_T0}, s{Q_T0}, {F_UT}")
    A("v_and_b32 v8, 15, v1")
    A(f"v_lshl_add_u32 v8, v8, {FS}, s{Q_T0}")
    poll(A, 8, 9, STOK, "PU")
    ut2(A)
    A("s_branch S_CV")
    A.label("S_VD")
    if O.PT:
        A(f"s_lshr_b32 s{Q_T0}, s{S_J}, 2")
        A(f"s_lshl_b32 s{Q_T0}, s{Q_T0}, 18")
        A(f"s_xor_b32 s{Q_T1}, s{S_XCD}, 2")
        A(f"s_lshl_b32 s{Q_T1}, s{Q_T1}, 10")
        A(f"s_add_u32 s{Q_T0}, s{Q_T0}, s{Q_T1}")
        A(f"s_add_u32 s{Q_T0}, s{Q_T0}, {WS_A}")
        A(f"v_lshl_add_u32 v8, v1, 13, s{Q_T0}")
        A(f"s_lshl_b32 s{Q_T0}, s2, 14")
        A(f"s_add_u32 s{Q_T0}, s{Q_T0}, {WS_P}")
        A("v_and_b32 v9, 3, v1")
        A(f"v_lshl_add_u32 v9, v9, 12, s{Q_T0}")
        A("v_cmp_gt_u32 vcc, 32, v1")
        A(f"s_lshl_b32 s{Q_T0}, s{Q_PAIR}, 13")
        A(f"s_add_u32 s{Q_T0}, s{Q_T0}, s{Q_T1}")
        A("v_cndmask_b32 v8, v9, v8, vcc")
        A(f"s_add_u32 s{Q_T0}, s{Q_T0}, {WS_A}")
        A("v_and_b32 v9, 1, v1")
        A("v_lshlrev_b32 v9, 12, v9")
        A(f"v_xor_b32 v9, s{Q_T0}, v9")
        A("v_cmp_gt_u32 vcc, 48, v1")
        srd(A, S_OUT, P_OUT, L*D*2)
        A("v_cndmask_b32 v8, v9, v8, vcc")
        if "w" in O.PT: A(f"buffer_load_dword v38, v8, s[{S_WS}:{S_WS+3}], 0 offen")
        A(f"s_and_b32 s{Q_T0}, s{S_XCD}, 6")
        A(f"s_lshl_b32 s{Q_T0}, s{Q_T0}, 1")
        A(f"s_and_b32 s{Q_T1}, s{S_J}, 3")
        A(f"s_add_u32 s{Q_T0}, s{Q_T0}, s{Q_T1}")
        A(f"s_lshl_b32 s{Q_T0}, s{Q_T0}, 1")
        A(f"s_and_b32 s{Q_T1}, s{S_XCD}, 1")
        A(f"s_add_u32 s{Q_T0}, s{Q_T0}, s{Q_T1}")
        A(f"s_lshl_b32 s{Q_T0}, s{Q_T0}, 16")
        A(f"s_lshr_b32 s{Q_T1}, s{S_J}, 2")
        A(f"s_lshl_b32 s{Q_T1}, s{Q_T1}, 7")
        A(f"s_add_u32 s{Q_T0}, s{Q_T0}, s{Q_T1}")
        if "O" in O.PT: A("v_lshlrev_b32 v9, 10, v1")
        else:
            A("v_and_b32 v9, 15, v1")
            A("v_lshlrev_b32 v9, 12, v9")
        if "o" in O.PT.lower(): A(f"buffer_load_dword v37, v9, s[{S_OUT}:{S_OUT+3}], s{Q_T0} offen")
    if O.VERD:
        A(f"s_and_b32 s{Q_T0}, s2, 31")
        A(f"s_lshl_b32 s{Q_T0}, s{Q_T0}, {FS}")
        A(f"s_add_u32 s{Q_T0}, s{Q_T0}, {F_HERE}")
        A("v_and_b32 v8, 7, v1")
        A(f"v_lshl_add_u32 v8, v8, {5+FS}, s{Q_T0}")
        poll(A, 8, 9, STOK, "PV", mask=True)
        A("v_cmp_ne_u32 vcc, s31, v9")
        A("s_cmp_eq_u64 vcc, 0")
        A(f"s_cselect_b32 s{Q_T0}, 1, 2")
        A(f"v_mov_b32 v9, s{Q_T0}")
        A(f"v_mov_b32 v8, {L_VERD}")
        A("ds_write_b32 v8, v9")
    A("s_cmp_eq_u32 s2, 0")
    A("s_cbranch_scc0 S_CV")
    for i in range(4):
        A(f"v_lshlrev_b32 v8, {FS}, v1")
        A(f"v_add_u32 v8, {F_HERE+(64<<FS)*i}, v8")
        poll(A, 8, 9, STOK, "PE", mask=True)
    A(f"s_mov_b32 s{Q_T0}, {F_EP}")
    flag_store(A, Q_T0, 8, STOK)
    A("s_branch S_CV")
    A.label("S_LD")
    loader(A, kfin)

(flow2 if O.DL else flow1)()
A.label("S_CV")
conv_setup(A)
A(f"v_mov_b32 v{LV}, 12"); A(f"v_mov_b32 v{LV+1}, 12")
s_barrier(A, 2)
tss(A, 4, "a")
if O.CPRIO != O.SPRIO: A(f"s_setprio {O.CPRIO}")
conv(A, inj=None if O.GW2 else (O.PUBM, ["s_waitcnt vmcnt(0)", f"ds_write_b64 v{LSA}, {vr(LV,2)}"]))
if O.CPRIO != O.TPRIO: A(f"s_setprio {O.TPRIO}")
if O.TL3:
    conv_final3(A); s_tail3(A)
else:
    s_barrier(A, 3)
    conv_final(A, "sc1")
    s_tail(A)
fin(A, "S")
A.label("K_END")
A("s_endpgm")
kernel_desc(A, KN, 256)
open(sys.argv[1], "w").write(A.text())
```

```python
import sys; sys.path.insert(0, "gen")
import parts
from parts import *
import ssm
from ssm import *

class Opt: pass
O = Opt()
O.TS = False
O.ROT = (0, 0, 2, 1)
O.SPRIO = 3; O.CPRIO = 0; O.GPRIO = 1; O.TPRIO = 3
O.CODEPF = True
O.SPIN = 100000
O.SLP = 4; O.HSLP = 1
O.TSC = None; O.TSG = "a"; O.TSS = "a"
O.ARR = 1
O.DEPTH = 14
O.PUBM = 12
O.SLOW = False
O.DIAG = None
O.HFS = 8
O.HLD = "sc1"; O.HST = "sc1"; O.GHOLD = False; O.VERD = False; O.NA = 4; O.PFD = 2; O.NOPK = True; O.KG2 = True; O.KLO = "pk"; O.KHI = "sc"; O.LFIN = 7; O.TOUCH = False; O.PST = "sc1"; O.AFIRST = False; O.XFL = ""; O.W1FL = ""; O.W2FL = ""; O.TFL = "nt"; O.UFL = ""; O.PDLY = 0; O.LOOK = 4; O.PFL = 99; O.L3 = "i"; O.IPRIO = 3; O.TAILK = 0
O.X2 = ""
O.GPRE = 1
O.DL = False; O.LPRIO = 3; O.LSLP = 1; O.LDLY = 0
O.W2S = None
O.W2P = ((), (), (), ()); O.PFL2 = ""; O.UOWN = False
O.LA = 1; O.RSP = (2, 4, 6); O.PPOS = 0
O.DSL = (6, 7, 8, 10, 11, 12, 14, 15)
O.PAW = 2
for a in sys.argv[2:]: exec("O." + a)
parts.TS = O.TS
ssm.KG2 = O.KG2; ssm.KLO = O.KLO; ssm.KHI = O.KHI
parts.gflag_setup = lambda A: None

LF = LDS_SSM + 31744
L_GL, L_GD, L_SB, L_SL, L_RDY, L_HOK, L_VERD = LF, LF + 16, LF + 32, LF + 48, LF + 64, LF + 72, LF + 76
L_DUMMY = LF + 128
ssm.LDS_SFLAG = L_SB
FS = 8
F_HERE, F_UT, F_G, F_A, F_H, F_P, F_EP = [WS_FLAG + (x << FS) for x in (0, 256, 384, 512, 1536, 2560, 3584)]
assert F_EP + 256 <= (13 << 20)
WS_P = 16 << 20
WS_BYTES = 20 << 20
STOK = 32
S_W8, S_SPIN, S_HF = 27, 85, 32

parts_ts = ts
def tsg(A, i, mode="a"):
    if O.TSC: return
    if O.TSG in mode: parts_ts(A, i)
def tss(A, i, mode="a"):
    if O.TSS in mode: parts_ts(A, i)

class Vm:
    def __init__(self, A): self.A = A; self.n = 0; self.done = 0
    def op(self, s):
        self.A(s)
        if s.startswith("buffer_") or s.startswith("global_"): self.n += 1
        return self.n
    def cnt(self, idn):
        k = min(self.n - idn, 63); self.done = max(self.done, self.n - k); return k
    def wait(self, idn, extra=""):
        if idn <= self.done:
            if extra: self.A(f"s_waitcnt {extra}")
            return
        self.A(f"s_waitcnt vmcnt({self.cnt(idn)}) {extra}")

def poll(A, vaddr, vt, tok, name, slp=None, mask=False):
    l = A.newlabel(name); d = A.newlabel(name)
    A(f"s_mov_b32 s{S_SPIN}, {O.SPIN}")
    A.label(l)
    A(f"buffer_load_dword v{vt}, v{vaddr}, s[{S_WS}:{S_WS+3}], 0 offen sc1")
    A("s_waitcnt vmcnt(0)")
    if mask:
        A(f"v_and_b32 v{vt+1}, -16, v{vt}")
        A(f"v_cmp_ne_u32 vcc, v{tok}, v{vt+1}")
    else:
        A(f"v_cmp_ne_u32 vcc, v{tok}, v{vt}")
    A(f"s_cbranch_vccz {d}")
    A(f"s_sleep {O.SLP if slp is None else slp}")
    A(f"s_sub_u32 s{S_SPIN}, s{S_SPIN}, 1")
    A(f"s_cbranch_scc0 {l}")
    A.label(d)

def lwait(A, vaddr, off, vt, val, issued=False, sleep=1):
    lab = A.newlabel("LW"); done = A.newlabel("LWD")
    if not issued: A(f"ds_read_b32 v{vt}, v{vaddr} offset:{off}")
    A("s_waitcnt lgkmcnt(0)")
    A(f"v_cmp_gt_u32 vcc, {val}, v{vt}")
    A(f"s_cbranch_vccz {done}")
    A.label(lab)
    if sleep: A(f"s_sleep {sleep}")
    A(f"ds_read_b32 v{vt}, v{vaddr} offset:{off}")
    A("s_waitcnt lgkmcnt(0)")
    A(f"v_cmp_gt_u32 vcc, {val}, v{vt}")
    A(f"s_cbranch_vccnz {lab}")
    A.label(done)

def token_get(A, va, tok):
    l = A.newlabel("RW"); d = A.newlabel("RW")
    A(f"v_mov_b32 v{va}, {L_RDY}")
    A.label(l)
    A(f"ds_read_b64 {vr(tok,2)}, v{va}")
    A("s_waitcnt lgkmcnt(0)")
    A(f"v_cmp_ne_u32 vcc, 1, v{tok+1}")
    A(f"s_cbranch_vccz {d}")
    A("s_sleep 1")
    A(f"s_branch {l}")
    A.label(d)

def flag_store(A, soff, va, vt, fl="sc1"):
    A(f"v_mov_b32 v{va}, 0")
    A("s_mov_b64 exec, 1")
    A(f"buffer_store_dword v{vt}, v{va}, s[{S_WS}:{S_WS+3}], s{soff} offen {fl}")
    A("s_mov_b64 exec, -1")

def rot_c0(A, dst, t0):
    a, b, c, d = O.ROT
    A(f"s_mov_b32 s{dst}, 0")
    if a: A(f"s_and_b32 s{t0}, s{S_J}, 3"); A(f"s_mul_i32 s{dst}, s{t0}, {a}")
    if b: A(f"s_lshr_b32 s{t0}, s{S_J}, 2"); A(f"s_mul_i32 s{t0}, s{t0}, {b}"); A(f"s_add_u32 s{dst}, s{dst}, s{t0}")
    if c: A(f"s_lshr_b32 s{t0}, s{S_XCD}, 1"); A(f"s_mul_i32 s{t0}, s{t0}, {c}"); A(f"s_add_u32 s{dst}, s{dst}, s{t0}")
    if d: A(f"s_and_b32 s{t0}, s{S_XCD}, 1"); A(f"s_mul_i32 s{t0}, s{t0}, {d}"); A(f"s_add_u32 s{dst}, s{dst}, s{t0}")

GOWN, GRD, GT, HV, AR, RW, FV, VTOK, GX = 50, 51, 52, 54, 56, 58, 59, 60, 62
ACCA, ACCB, AF, PK, HR0 = 64, 96, 128, 168, 184
OV, RX, TV = 55, 63, 49
S_OO, S_PO, S_P1, S_PF = 76, 77, 78, 79
L_T = LDS_SSM
STMP = 160
S_HL, S_HR, S_C0 = 80, 81, 84

def g_flags_setup(A):
    A(f"s_lshl_b32 s{S_T0}, s{S_WAVE}, 2")
    A(f"s_add_u32 s{S_T0}, s{S_T0}, {LF}")
    A(f"v_mov_b32 v{GOWN}, s{S_T0}")
    A(f"v_and_b32 v{GRD}, 3, v1")
    A(f"v_lshlrev_b32 v{GRD}, 2, v{GRD}")
    A(f"v_add_u32 v{GRD}, {LF}, v{GRD}")

def g2_setup(A):
    w = S_WAVE; T = 30
    A(f"s_and_b32 s{S_T0}, s{S_XCD}, 6")
    A(f"s_lshl_b32 s{S_T0}, s{S_T0}, 1")
    A(f"s_and_b32 s{S_T1}, s{S_J}, 3")
    A(f"s_add_u32 s{S_T0}, s{S_T0}, s{S_T1}")
    A(f"s_and_b32 s{S_T1}, s{S_XCD}, 1")
    A(f"s_lshl_b32 s{S_HF}, s{S_T0}, 1")
    A(f"s_add_u32 s{S_HF}, s{S_HF}, s{S_T1}")
    A(f"s_lshl_b32 s{S_HF}, s{S_HF}, {5+O.HFS}")
    A(f"s_add_u32 s{S_HF}, s{S_HF}, {F_H}")
    A(f"v_min_u32 v{T}, 27, v1")
    A(f"v_lshl_add_u32 v{FV}, v{T}, {O.HFS}, s{S_HF}")
    A(f"s_lshl_b32 s{S_T0}, s{S_T0}, 2")
    A(f"s_and_b32 s{S_HR}, s{w}, 1")
    A(f"s_add_u32 s{S_T0}, s{S_T0}, s{S_HR}")
    A(f"s_lshl_b32 s{S_OO}, s{S_T1}, 1")
    A(f"s_add_u32 s{S_OO}, s{S_OO}, s{S_T0}")
    A(f"s_xor_b32 s{S_HL}, s{S_OO}, 2")
    A(f"s_mul_i32 s{S_HL}, s{S_HL}, 112")
    A(f"s_mul_i32 s{S_HR}, s{S_OO}, 112")
    A(f"s_lshl_b32 s{S_T1}, s{S_T1}, 1")
    A(f"s_lshr_b32 s{S_T0}, s{w}, 1")
    A(f"s_add_u32 s{S_T1}, s{S_T1}, s{S_T0}")
    A(f"s_mul_i32 s{S_T1}, s{S_T1}, 28")
    A(f"s_add_u32 s{S_HL}, s{S_HL}, s{S_T1}")
    A(f"s_add_u32 s{S_HR}, s{S_HR}, s{S_T1}")
    A(f"s_lshl_b32 s{S_HL}, s{S_HL}, 10")
    A(f"s_lshl_b32 s{S_HR}, s{S_HR}, 10")
    A(f"s_lshl_b32 s{S_OO}, s{S_OO}, 15")
    A(f"s_lshr_b32 s{S_T1}, s{S_J}, 2")
    A(f"s_lshl_b32 s{S_T1}, s{S_T1}, 1")
    A(f"s_add_u32 s{S_T1}, s{S_T1}, s{S_T0}")
    A(f"s_lshl_b32 s{S_T1}, s{S_T1}, 6")
    A(f"s_add_u32 s{S_OO}, s{S_OO}, s{S_T1}")
    A(f"v_lshlrev_b32 v{HV}, 4, v1")
    A(f"s_lshl_b32 s{S_T1}, s{w}, 15")
    A(f"v_add_u32 v{RW}, s{S_T1}, v{HV}")
    A(f"v_xor_b32 v{RX}, 0x10000, v{RW}")
    A(f"s_lshl_b32 s{S_T1}, s{w}, 12")
    A(f"s_add_u32 s{S_T1}, s{S_T1}, {L_T}")
    A(f"v_add_u32 v{TV}, s{S_T1}, v{HV}")
    A(f"v_lshrrev_b32 v{T+1}, 5, v1")
    A(f"v_and_b32 v{T}, 31, v1")
    A(f"v_lshlrev_b32 v{T}, 10, v{T}")
    A(f"v_lshl_add_u32 v{OV}, v{T+1}, 4, v{T}")
    A(f"v_bfe_u32 v{T+2}, v1, 2, 2")
    A(f"v_bfe_u32 v{T+3}, v1, 4, 1")
    A(f"v_bfe_u32 v{T+4}, v1, 1, 1")
    A(f"v_lshl_add_u32 v{T+3}, v{T+3}, 1, v{T+4}")
    A(f"v_bfe_u32 v{T+4}, v1, 3, 1")
    A(f"v_xor_b32 v{T+4}, s{S_T0}, v{T+4}")
    A(f"v_lshl_add_u32 v{T+3}, v{T+4}, 2, v{T+3}")
    A(f"v_lshl_add_u32 v{T+2}, v{T+1}, 2, v{T+2}")
    A(f"v_lshlrev_b32 v{T+2}, 7, v{T+2}")
    A(f"v_lshl_add_u32 v{T+2}, v{T+3}, 4, v{T+2}")
    A(f"v_and_b32 v{T+4}, 1, v1")
    A(f"v_lshl_add_u32 v{T+2}, v{T+4}, 3, v{T+2}")
    A(f"s_lshl_b32 s{S_T0}, s{S_T0}, 16")
    A(f"v_add_u32 v{AR}, s{S_T0}, v{T+2}")
    A(f"v_xor_b32 v{AR+1}, 64, v{AR}")

def w2_read(i):
    k = i % 28; dst = AF + 8 * (i % O.NA)
    o = (k // 14) * 32768 + 4096 + (k % 14) * 2048
    return [f"ds_read_b64_tr_b16 {vr(dst+4*a+2*x,2)}, v{AR+a} offset:{o+x*1024}" for a in range(2) for x in range(2)]
def h_load(i):
    base, k = (S_HL, i) if i < 28 else (S_HR, i - 28)
    pre = [f"s_add_u32 s{S_T0}, s{base}, {k*1024}"] if k % 4 == 0 else []
    return pre + [f"buffer_load_dwordx4 {vr(HR0+4*(i%O.DEPTH),4)}, v{HV}, s[{S_WS}:{S_WS+3}], s{S_T0} offen offset:{(k%4)*1024} {O.HLD}"]

def g_chunk_dma(cc):
    slot = cc % 4
    out = [f"s_add_u32 s{S_HO}, s{S_C0}, {cc}", f"s_and_b32 s{S_HO}, s{S_HO}, 7",
           f"s_lshl_b32 s{S_T1}, s{S_HO}, 7", f"s_add_u32 m0, s{S_M0X}, {slot*32768}", f"s_add_u32 s{S_T1}, s{S_T1}, s{S_XO}"]
    for i in range(4):
        out.append(f"buffer_load_dwordx4 v{G1_XD+i}, s[{S_X}:{S_X+3}], s{S_T1} offen offset:{i*1024} {O.XFL} lds")
    out += [f"s_mul_i32 s{S_T1}, s{S_HO}, {64*2*F}", f"s_add_u32 m0, s{S_M0X}, {slot*32768+16384}", f"s_add_u32 s{S_T1}, s{S_T1}, s{S_WO}"]
    for i in range(4):
        out.append(f"buffer_load_dwordx4 v{G1_WD+i}, s[{S_W1}:{S_W1+3}], s{S_T1} offen offset:{i*1024} {O.W1FL} lds")
    return out

def g1_main(A, vm, cid):
    vm.wait(cid[0])
    A(f"v_mov_b32 v{GT}, 1"); A(f"ds_write_b32 v{GOWN}, v{GT}")
    lwait(A, GRD, 0, GT + 1, 1, sleep=0)
    for r in g1_reads(0): A(r)
    for c in range(8):
        if O.TSC and c in O.TSC: parts_ts(A, 2 + O.TSC.index(c))
        off = 0 if c + 1 < O.LOOK else 48
        own = 4 <= c + 3 < O.LOOK
        units = [u for u in split_groups(g_chunk_dma(c + 3), 8)] if own else []
        slots = O.DSL
        for s in range(4):
            t = 4 * c + s
            mf = g1_mfmas(t)
            pre = []
            if s == 3:
                if c < 7: lwait(A, GRD, off, GT + 1, c + 2, issued=True, sleep=0)
                else: A("s_waitcnt lgkmcnt(0)")
                pre = [f"v_mov_b32 v{GT}, {c+1}", f"ds_write_b32 v{GOWN}, v{GT} offset:16"]
            elif s == O.ARR and c + 1 < O.LOOK:
                vm.wait(cid[c + 1], "lgkmcnt(0)")
                pre = [f"v_mov_b32 v{GT}, {c+2}", f"ds_write_b32 v{GOWN}, v{GT}"]
            else: A("s_waitcnt lgkmcnt(0)")
            if own and s == 1: lwait(A, GRD, 16, GX, c, issued=True, sleep=0)
            rd = g1_reads(t + 1) if t < 31 else []
            post = [f"ds_read_b32 v{GT+1}, v{GRD} offset:{off}"] if (s == 2 and c < 7) else []
            if own and s == 0: post.append(f"ds_read_b32 v{GX}, v{GRD} offset:16")
            def dm(g):
                if own:
                    for _ in range(slots.count(4 * s + g)):
                        for x in units.pop(0): vm.op(x)
                    if not units: cid[c + 3] = vm.n if c + 3 not in cid else cid[c + 3]
            A(mf[0])
            for x in rd[:3]: A(x)
            dm(0)
            A(mf[1])
            for x in rd[3:]: A(x)
            dm(1)
            A(mf[2])
            for x in pre + post: A(x)
            if c == 0 and O.LOOK >= 4 and O.L3 == "i":
                for x in split_groups(g_chunk_dma(3), 4)[s]: vm.op(x)
                cid[3] = vm.n
            dm(2)
            A(mf[3])
            dm(3)
        assert not units

def g1_fr(lst, t, ns):
    import re
    o = G1_FR + (t % 2) * 16; n = G1_FR + (t % ns) * 16
    def f(m):
        a, b = int(m.group(1)), int(m.group(2))
        if o <= a < o + 16: return f"v[{a-o+n}:{b-o+n}]"
        return m.group(0)
    return [re.sub(r"v\[(\d+):(\d+)\]", f, x) for x in lst]

def lchk(A, vaddr, off, vt, val):
    lab = A.newlabel("LW"); done = A.newlabel("LWD")
    A(f"v_cmp_gt_u32 vcc, {val}, v{vt}")
    A(f"s_cbranch_vccz {done}")
    A.label(lab)
    A(f"ds_read_b32 v{vt}, v{vaddr} offset:{off}")
    A("s_waitcnt lgkmcnt(0)")
    A(f"v_cmp_gt_u32 vcc, {val}, v{vt}")
    A(f"s_cbranch_vccnz {lab}")
    A.label(done)

def g1_main2(A, vm, cid):
    LA = O.LA; NS = LA + 1
    lg = Lg(A); rid = {}
    vm.wait(cid[0])
    A(f"v_mov_b32 v{GT}, 1"); A(f"ds_write_b32 v{GOWN}, v{GT}")
    lwait(A, GRD, 0, GT + 1, 1, sleep=0)
    for t in range(LA):
        for r in g1_fr(g1_reads(t), t, NS): rid[t] = lg.op(r)
    sc = 4 - LA
    for c in range(8):
        if O.TSC and c in O.TSC: parts_ts(A, 2 + O.TSC.index(c))
        off = 0 if c + 1 < O.LOOK else 48
        own = 4 <= c + 3 < O.LOOK
        units = [u for u in split_groups(g_chunk_dma(c + 3), 8)] if own else []
        for s in range(4):
            t = 4 * c + s
            mf = g1_fr(g1_mfmas(t), t, NS)
            need = rid[t]
            if s == sc and c < 7: need = max(need, pid)
            if own and s == 1: need = max(need, did)
            first = []; pre = []
            if s == O.ARR and c + 1 < O.LOOK:
                vm.wait(cid[c + 1])
                first += [f"ds_write_b32 v{GOWN}, v{GT}"]
                A(f"v_mov_b32 v{GT}, {c+2}")
            lg.wait(need)
            if s == sc and c < 7: lchk(A, GRD, off, GT + 1, c + 2)
            if own and s == 1: lchk(A, GRD, 16, GX, c)
            if s == 3: pre = [f"v_mov_b32 v{GT}, {c+1}", f"ds_write_b32 v{GOWN}, v{GT} offset:16"]
            rd = g1_fr(g1_reads(t + LA), t + LA, NS) if t + LA < 32 else []
            def dm(g):
                if own:
                    for _ in range(O.DSL.count(4 * s + g)):
                        for x in units.pop(0): vm.op(x)
                    if not units and c + 3 not in cid: cid[c + 3] = vm.n
            def em(x):
                if x.startswith("ds_"): return lg.op(x)
                A(x)
            sp = O.RSP
            A(mf[0])
            for x in first + pre: em(x)
            if s == sc - 1 and c < 7 and O.PPOS == 0: pid = lg.op(f"ds_read_b32 v{GT+1}, v{GRD} offset:{off}")
            if own and s == 0: did = lg.op(f"ds_read_b32 v{GX}, v{GRD} offset:16")
            for x in rd[:sp[0]]: rid[t + LA] = lg.op(x)
            dm(0)
            A(mf[1])
            for x in rd[sp[0]:sp[1]]: rid[t + LA] = lg.op(x)
            dm(1)
            A(mf[2])
            if s == sc - 1 and c < 7 and O.PPOS == 2: pid = lg.op(f"ds_read_b32 v{GT+1}, v{GRD} offset:{off}")
            for x in rd[sp[1]:sp[2]]: rid[t + LA] = lg.op(x)
            if c == 0 and O.LOOK >= 4 and O.L3 == "i":
                for x in split_groups(g_chunk_dma(3), 4)[s]: vm.op(x)
                cid[3] = vm.n
            dm(2)
            A(mf[3])
            for x in rd[sp[2]:]: rid[t + LA] = lg.op(x)
            dm(3)
        assert not units

def silu_np(A, regs, tmp):
    n = len(regs)
    for i, (s, d) in enumerate(regs):
        for e in range(2): A(f"v_mul_f32 v{tmp+2*i+e}, s{S_CL}, v{s+e}")
    for i in range(2 * n): A(f"v_exp_f32 v{tmp+i}, v{tmp+i}")
    for i in range(2 * n): A(f"v_add_f32 v{tmp+i}, 1.0, v{tmp+i}")
    for i in range(2 * n): A(f"v_rcp_f32 v{tmp+i}, v{tmp+i}")
    for i, (s, d) in enumerate(regs):
        for e in range(2): A(f"v_mul_f32 v{tmp+2*i+e}, v{tmp+2*i+e}, v{s+e}")
    for i, (s, d) in enumerate(regs):
        A(f"v_cvt_pk_bf16_f32 v{d}, v{tmp+2*i}, v{tmp+2*i+1}")

def split_groups(lst, n):
    units = []; cur = []
    for x in lst:
        cur.append(x)
        if x.startswith("buffer_"): units.append(cur); cur = []
    g = [[] for _ in range(n)]
    for i, u in enumerate(units): g[i * n // len(units)] += u
    return g

def g1_epi(A):
    w = S_WAVE
    if O.VERD:
        A(f"v_mov_b32 v{GX}, {L_RDY}")
        A(f"ds_read_b32 v{GT}, v{GX} offset:{L_VERD-L_RDY}")
    A(f"s_lshl_b32 s{S_HO}, s{S_RB}, 2")
    A(f"s_and_b32 s{S_T0}, s{w}, 2")
    A(f"s_add_u32 s{S_HO}, s{S_HO}, s{S_T0}")
    A(f"s_mul_i32 s{S_T1}, s{S_T0}, 7")
    A(f"s_mul_i32 s{S_HO}, s{S_HO}, 112")
    A(f"s_lshl_b32 s{S_T0}, s{S_CB}, 3")
    A(f"s_add_u32 s{S_HO}, s{S_HO}, s{S_T0}")
    A(f"s_and_b32 s{S_T0}, s{w}, 1")
    A(f"s_add_u32 s{S_T1}, s{S_T1}, s{S_T0}")
    A(f"s_lshl_b32 s{S_T0}, s{S_T0}, 2")
    A(f"s_add_u32 s{S_HO}, s{S_HO}, s{S_T0}")
    A(f"s_lshr_b32 s{S_T0}, s{S_J}, 2")
    A(f"s_lshl_b32 s{S_T0}, s{S_T0}, 1")
    A(f"s_add_u32 s{S_T1}, s{S_T1}, s{S_T0}")
    A(f"s_lshl_b32 s{S_T1}, s{S_T1}, {O.HFS}")
    A(f"s_add_u32 s{S_HF}, s{S_HF}, s{S_T1}")
    A(f"s_lshl_b32 s{S_HO}, s{S_HO}, 10")
    A(f"s_add_u32 s{S_XO}, s{S_HO}, {112*1024}")
    st = []
    p = 0
    for a in range(2):
        for b in range(2):
            acc = G1_ACC + (2*a+b)*16
            for fh in range(2):
                dst = G1_FR + p * 4
                (silu_np if O.NOPK else silu_pairs)(A, [(acc + 8*fh + 2*i, dst + i) for i in range(4)], STMP)
                so = S_HO if b == 0 else S_XO
                st.append(f"buffer_store_dwordx4 {vr(dst,4)}, v{HV}, s[{S_WS}:{S_WS+3}], s{so} offen offset:{(2*a+fh)*1024}")
                A(st[-1] + " " + O.HST)
                p += 1
    tsg(A, 5, "e")
    if not O.VERD:
        token_get(A, GX, VTOK)
        A("s_waitcnt vmcnt(0)")
        flag_store(A, S_HF, GT, VTOK, O.HST)
        return
    lwait(A, GX, L_VERD - L_RDY, GT, 1, issued=True)
    A(f"ds_read_b64 {vr(VTOK,2)}, v{GX}")
    A(f"v_cmp_eq_u32 vcc, {1 if not O.SLOW else 7}, v{GT}")
    A("s_waitcnt vmcnt(0) lgkmcnt(0)")
    A("s_cbranch_vccz G_SLOW")
    flag_store(A, S_HF, GT, VTOK, O.HST)
    A("s_branch G_FD")
    A.label("G_SLOW")
    for x in st: A(x + " sc1")
    A("s_waitcnt vmcnt(0)")
    flag_store(A, S_HF, GT, VTOK)
    A.label("G_FD")

def g2_main(A):
    vm = Vm(A); lg = Lg(A)
    hid = {}; wid = {}
    assert HR0 + 4 * O.DEPTH <= 256 and AF + 8 * O.NA <= PK
    for i in range(O.DEPTH):
        for x in h_load(i): vm.op(x)
        hid[i] = vm.n
    for i in range(O.PFD): wid[i] = 0
    send = []
    for t in range(2):
        for hf in range(2):
            send += [f"v_cvt_pk_bf16_f32 v{PK+8*t+4*hf+k}, v{ACCA+16*t+8*hf+2*k}, v{ACCA+16*t+8*hf+2*k+1}" for k in range(4)]
            send.append(f"ds_write_b128 v{RW}, {vr(PK+8*t+4*hf,4)} offset:{2048*t+1024*hf}")
    send += [f"v_mov_b32 v{GT+1}, 9", f"ds_write_b32 v{GOWN}, v{GT+1} offset:16"]
    if O.TS and O.TSG == "a" and not O.TSC: send.append(f"s_memtime s[{S_TS+10}:{S_TS+11}]")
    st = (1, 14, 28, 42)
    for i in range(56):
        if O.TS and O.TSG == "s" and i in st: parts_ts(A, 2 + st.index(i))
        k = min(lg.n - wid[i], 15)
        need_l = wid[i] > lg.done
        if need_l: lg.done = lg.n - k
        vm.wait(hid[i], f"lgkmcnt({k})" if need_l else "")
        fr = AF + 8 * (i % O.NA); hr = HR0 + 4 * (i % O.DEPTH)
        acc0 = ACCA if i < 28 else ACCB
        g = [[], []]
        if i + O.PFD < 56:
            rd = w2_read(i + O.PFD); g[0] += rd[:2]; g[1] += rd[2:]
        nl = i - 1 + O.DEPTH
        if i >= 1 and nl < 56: g[0] += h_load(nl)
        if i >= 29:
            for gi in range(2):
                for _ in range(3):
                    if send: g[gi].append(send.pop(0))
        for m, t in enumerate((1, 0)):
            acc = acc0 + 16 * t
            c = "0" if i % 28 == 0 else vr(acc, 16)
            A(f"v_mfma_f32_32x32x16_bf16 {vr(acc,16)}, {vr(fr+4*t,4)}, {vr(hr,4)}, {c}" if "m" not in O.X2 else "s_nop 0")
            if i == 29 and m == 0: A("s_nop 1")
            for x in g[m]:
                if x.startswith("ds_"): lg.op(x)
                else:
                    vm.op(x)
                    if x.startswith("buffer_load"): hid[nl] = vm.n
        if i + O.PFD < 56: wid[i + O.PFD] = lg.n
    T, R, GM = 2, 18, 34
    A(f"ds_read_b32 v{GT+1}, v{GRD} offset:32")
    A(f"v_mov_b32 v{GT}, 10")
    A(f"v_xor_b32 v{GX}, 8, v{GOWN}")
    A(f"s_lshl_b32 s{S_T0}, s{S_WAVE}, 8")
    A(f"s_add_u32 s{S_T0}, s{S_T0}, {L_T+16384}")
    A(f"v_lshl_add_u32 v{GM+1}, v1, 2, s{S_T0}")
    lwait(A, GRD, 32, GT + 1, 50, issued=True)
    A("s_nop 1")
    for q in range(4):
        A(f"ds_write_b128 v{RW}, {vr(ACCB+16+4*q,4)} offset:{q*1024}")
    A(f"ds_write_b32 v{GOWN}, v{GT} offset:16")
    lwait(A, GOWN, 32, GT + 1, 100)
    A(f"ds_read_b32 v{GM}, v{GM+1}")
    for q in range(4):
        A(f"ds_read_b128 {vr(T+4*q,4)}, v{TV} offset:{q*1024}")
    lwait(A, GX, 16, GT + 1, 10, sleep=0)
    for q in range(4):
        A(f"ds_read_b128 {vr(R+4*q,4)}, v{RX} offset:{q*1024}")
    for k in range(8):
        A(f"v_pk_fma_f32 {vr(T+2*k,2)}, {vr(ACCB+2*k,2)}, {vr(GM,2)}, {vr(T+2*k,2)} op_sel:[0,0,0] op_sel_hi:[1,0,1]")
    for q in range(4):
        A(f"s_waitcnt lgkmcnt({3-q})")
        for k in (2*q, 2*q+1):
            A(f"v_pk_fma_f32 {vr(T+2*k,2)}, {vr(R+2*k,2)}, {vr(GM,2)}, {vr(T+2*k,2)} op_sel:[0,0,0] op_sel_hi:[1,0,1]")
    for k in range(8):
        A(f"v_cvt_pk_bf16_f32 v{PK+k}, v{T+2*k}, v{T+2*k+1}")
    A("s_nop 1")
    for h in range(2):
        A(f"v_permlane32_swap_b32 v{PK+4*h}, v{PK+4*h+2}")
        A(f"v_permlane32_swap_b32 v{PK+4*h+1}, v{PK+4*h+3}")
    A("s_nop 1")
    for h in range(2):
        A(f"buffer_store_dwordx4 {vr(PK+4*h,4)}, v{OV}, s[{S_OUT}:{S_OUT+3}], s{S_OO} offen offset:{32*h}")

def idle_tr_issue(A):
    A("v_lshrrev_b32 v8, 3, v1")
    A("v_and_b32 v9, 7, v1")
    A("v_lshlrev_b32 v10, 10, v8")
    A("v_lshl_add_u32 v10, v9, 4, v10")
    A(f"s_sub_u32 s64, s{S_J}, 28")
    A(f"s_lshl_b32 s64, s64, 2")
    A(f"s_add_u32 s64, s64, s{S_WAVE}")
    if O.UOWN:
        A(f"s_and_b32 s33, s64, 1")
        A(f"s_lshl_b32 s{S_T1}, s{S_XCD}, 1")
        A(f"s_add_u32 s33, s33, s{S_T1}")
        A(f"s_lshr_b32 s34, s64, 1")
    else:
        A(f"s_mov_b32 s33, s64")
        A(f"s_mov_b32 s34, s{S_XCD}")
    A(f"s_lshl_b32 s65, s33, 17")
    A(f"s_lshl_b32 s{S_T1}, s34, 7")
    A(f"s_add_u32 s65, s65, s{S_T1}")
    A(f"s_lshl_b32 s66, s{S_WAVE}, 15")
def idle_tr_dma(A):
    for i in range(16):
        A(f"s_add_u32 m0, s66, {i*1024}")
        A(f"s_add_u32 s{S_T1}, s65, {i*8192}")
        A(f"buffer_load_dwordx4 v10, s[{S_X}:{S_X+3}], s{S_T1} offen {O.UFL} lds")
def w2_touch(A, qs, dst):
    for q in qs:
        A(f"s_lshr_b32 s{S_T1}, s{S_XCD}, 1")
        A(f"s_add_u32 s{S_T1}, s{S_T1}, {q}")
        A(f"s_and_b32 s{S_T1}, s{S_T1}, 3")
        A(f"s_and_b32 s{S_T0}, s{S_XCD}, 1")
        A(f"s_lshl_b32 s{S_T0}, s{S_T0}, 2")
        A(f"s_add_u32 s{S_T1}, s{S_T1}, s{S_T0}")
        A(f"s_mul_i32 s{S_T1}, s{S_T1}, 229376")
        for i in range(2):
            A(f"buffer_load_dword v{dst}, v{24+i}, s[{S_W2}:{S_W2+3}], s{S_T1} offen {O.PFL2}")
def w2_touch_setup(A):
    A("s_mul_i32 s67, s64, 112")
    A("v_add_u32 v24, s67, v1")
    A("v_min_u32 v25, 47, v1")
    A("v_add3_u32 v25, v25, s67, 64")
    A("v_lshlrev_b32 v24, 7, v24")
    A("v_lshlrev_b32 v25, 7, v25")
def idle_tr_finish(A, extra=0):
    R = 128
    A("v_lshrrev_b32 v11, 4, v1")
    A("v_bfe_u32 v12, v1, 2, 2")
    A("v_lshl_add_u32 v12, v11, 3, v12")
    A("v_lshlrev_b32 v12, 7, v12")
    A("v_and_b32 v13, 3, v1")
    A("v_lshl_add_u32 v12, v13, 3, v12")
    A(f"v_add_u32 v12, s66, v12")
    A("v_bfe_u32 v13, v1, 1, 3")
    A("v_lshlrev_b32 v13, 13, v13")
    A("v_and_b32 v14, 1, v1")
    A("v_lshl_add_u32 v13, v14, 6, v13")
    A("v_lshl_add_u32 v16, v11, 4, v13")
    A(f"s_lshl_b32 s67, s34, 18")
    A(f"s_lshl_b32 s{S_T1}, s33, 9")
    A(f"s_add_u32 s67, s67, s{S_T1}")
    A(f"s_add_u32 s67, s67, {WS_UT}")
    for p in range(4):
        Rk = R + 16 * p
        A(f"s_waitcnt vmcnt({12+extra})")
        for a in range(4):
            for x in range(2):
                A(f"ds_read_b64_tr_b16 {vr(Rk+4*a+2*x,2)}, v12 offset:{p*4096+x*512+a*32}")
        for a in range(4):
            A(f"s_waitcnt lgkmcnt({6-2*a})")
            A(f"s_add_u32 s{S_T1}, s67, {a*65536}")
            A(f"buffer_store_dwordx4 {vr(Rk+4*a,4)}, v16, s[{S_WS}:{S_WS+3}], s{S_T1} offen offset:{p*128} sc1")
def ut2(A):
    R = 128
    A(f"s_lshl_b32 s{Q_T0}, s{Q_PAIR}, 13")
    A(f"s_add_u32 s{Q_T0}, s{Q_T0}, {WS_UT}")
    A(f"s_add_u32 s{Q_T1}, s{Q_T0}, 4096")
    A("v_lshlrev_b32 v16, 4, v1")
    for i in range(8):
        A(f"buffer_load_dwordx4 {vr(R+4*i,4)}, v16, s[{S_WS}:{S_WS+3}], s{Q_T0+i//4} offen offset:{(i%4)*1024} sc1")
    A("v_bfe_u32 v16, v1, 2, 1")
    A(f"v_mul_u32_u24 v16, {U_STRIDE}, v16")
    A("v_lshrrev_b32 v17, 3, v1")
    A("v_lshl_add_u32 v16, v17, 6, v16")
    A("v_and_b32 v17, 3, v1")
    A("v_lshl_add_u32 v16, v17, 4, v16")
    A(f"v_add_u32 v16, {LDS_U+64}, v16")
    for i in range(8):
        A(f"s_waitcnt vmcnt({7-i})")
        A(f"ds_write_b128 v16, {vr(R+4*i,4)} offset:{i*512}")
def idle_gate_issue(A):
    R = 64
    A(f"global_load_dwordx4 {vr(44,4)}, v{HV}, s[{P_GW}:{P_GW+1}]")
    A(f"s_lshl_b32 s68, s{S_XCD}, 4")
    A(f"s_add_u32 s68, s68, s64")
    A(f"s_lshl_b32 s65, s68, 14")
    for i in range(16):
        if i % 4 == 0: A(f"s_add_u32 s{S_T1}, s65, {i*1024}")
        A(f"buffer_load_dwordx4 {vr(R+4*i,4)}, v{HV}, s[{S_X}:{S_X+3}], s{S_T1} offen offset:{(i%4)*1024}")
def idle_gate_finish(A, extra=0):
    R = 64; S = 2
    A(f"s_waitcnt vmcnt({extra})")
    for k in range(4):
        for i in range(16):
            c = "0" if k == 0 else f"v{S+i}"
            A(f"v_dot2_f32_bf16 v{S+i}, v{R+4*i+k}, v{44+k}, {c}")
    for sh in ("row_shr:1", "row_shr:2", "row_shr:4", "row_shr:8"):
        for i in range(16):
            A(f"v_add_f32_dpp v{S+i}, v{S+i}, v{S+i} {sh} row_mask:0xf bank_mask:0xf bound_ctrl:1")
    for sh in ("row_bcast:15 row_mask:0xa", "row_bcast:31 row_mask:0xc"):
        for i in range(16):
            A(f"v_add_f32_dpp v{S+i}, v{S+i}, v{S+i} {sh} bank_mask:0xf")
    A("v_mov_b32 v20, 0")
    for h in range(2):
        for i in range(8): A(f"v_readlane_b32 s{38+i}, v{S+8*h+i}, 63")
        A("s_nop 3")
        for i in range(8): A(f"v_writelane_b32 v20, s{38+i}, {8*h+i}")
    A("v_cvt_pk_bf16_f32 v20, v20, v20")
    A("v_lshlrev_b32 v20, 16, v20")
    A("v_mul_f32 v20, 0xbfb8aa3b, v20")
    A("v_exp_f32 v20, v20")
    A("s_nop 0")
    A("v_add_f32 v20, 1.0, v20")
    A("v_rcp_f32 v20, v20")
    A("s_nop 0")
    A("v_cvt_pk_bf16_f32 v22, v20, v20")
    A("v_lshlrev_b32 v22, 16, v22")
    A("v_sub_f32 v23, 1.0, v22")
    A("v_cvt_pk_bf16_f32 v23, v23, v23")
    A("v_lshlrev_b32 v23, 16, v23")
    A("v_lshlrev_b32 v21, 3, v1")
    A(f"s_lshl_b32 s65, s68, 7")
    A(f"s_add_u32 s65, s65, {WS_G}")
    A("s_mov_b64 exec, 0xffff")
    A(f"buffer_store_dwordx2 v[22:23], v21, s[{S_WS}:{S_WS+3}], s65 offen sc1")
    A("s_mov_b64 exec, -1")

LX, LW, L2D, LSA, LGD, LV = 16, 56, 60, 62, 63, 20
K_XO, K_WO, K_M0, K_C0, K_W2, K_M2, K_T0, K_T1 = 76, 77, 78, 79, 80, 81, 82, 83
def loader_setup(A):
    lw = Q_NH
    A(f"s_and_b32 s{K_XO}, s{S_J}, 3")
    A(f"s_and_b32 s{K_T0}, s{S_XCD}, 6")
    A(f"s_lshl_b32 s{K_T0}, s{K_T0}, 1")
    A(f"s_add_u32 s{K_XO}, s{K_XO}, s{K_T0}")
    A(f"s_lshl_b32 s{K_XO}, s{K_XO}, 1")
    A(f"s_add_u32 s{K_XO}, s{K_XO}, s{lw}")
    A(f"s_lshl_b32 s{K_XO}, s{K_XO}, 16")
    A(f"s_and_b32 s{K_T0}, s{S_XCD}, 1")
    A(f"s_mul_i32 s{K_WO}, s{K_T0}, 7")
    A(f"s_lshr_b32 s{K_T1}, s{S_J}, 2")
    A(f"s_add_u32 s{K_WO}, s{K_WO}, s{K_T1}")
    A(f"s_lshl_b32 s{K_WO}, s{K_WO}, 8")
    A(f"s_lshl_b32 s{K_W2}, s{K_T1}, 7")
    A(f"s_mul_i32 s{K_T1}, s{lw}, {32*2*F}")
    A(f"s_add_u32 s{K_WO}, s{K_WO}, s{K_T1}")
    A(f"s_lshl_b32 s{K_M0}, s{lw}, 13")
    A(f"s_mul_i32 s{K_T0}, s{K_T0}, {56*16384}")
    A(f"s_add_u32 s{K_W2}, s{K_W2}, s{K_T0}")
    A(f"s_mul_i32 s{K_T0}, s{lw}, {7*16384}")
    A(f"s_add_u32 s{K_W2}, s{K_W2}, s{K_T0}")
    A(f"s_mul_i32 s{K_M2}, s{lw}, {7*2048}")
    rot_c0(A, K_C0, K_T0)
    A("v_lshrrev_b32 v34, 3, v1")
    A("v_and_b32 v35, 7, v1")
    A("v_lshrrev_b32 v36, 4, v1")
    A("v_xor_b32 v37, v35, v36")
    A("v_xor_b32 v38, 4, v37")
    A("v_lshlrev_b32 v34, 10, v34")
    A(f"v_lshl_add_u32 v{LX}, v37, 4, v34")
    A(f"v_lshl_add_u32 v{LX+1}, v38, 4, v34")
    A(f"v_add_u32 v{LX+1}, {8192-1024}, v{LX+1}")
    A(f"v_add_u32 v{LX+2}, {2*(8192-1024)}, v{LX}")
    A(f"v_add_u32 v{LX+3}, {2*(8192-1024)}, v{LX+1}")
    A("v_and_b32 v37, 1, v36")
    A("v_lshlrev_b32 v37, 2, v37")
    A("v_xor_b32 v37, v35, v37")
    A(f"v_lshl_add_u32 v{L2D}, v37, 4, v34")
    A(f"v_add_u32 v{L2D+1}, {8192-1024}, v{L2D}")
    A("v_and_b32 v35, 15, v1")
    A("v_lshlrev_b32 v37, 2, v36")
    A("v_xor_b32 v35, v35, v37")
    A(f"v_mul_u32_u24 v37, {2*F}, v36")
    A(f"v_lshl_add_u32 v{LW}, v35, 4, v37")
    for i in range(1, 4):
        A(f"v_add_u32 v{LW+i}, {i*(4*2*F-1024)}, v{LW}")
    A(f"s_lshl_b32 s{K_T0}, s{lw}, 3")
    A(f"s_add_u32 s{K_T0}, s{K_T0}, {L_SL}")
    A(f"s_cmp_eq_u32 s{Q_C}, 1")
    A(f"s_cselect_b32 s{K_T0}, s{K_T0}, {L_DUMMY}")
    A(f"v_mov_b32 v{LSA}, s{K_T0}")
    A(f"v_subrev_u32 v{LGD}, {L_SB-L_GD}, v{S_FRD}")
def l_chunk(A, cc):
    slot = cc % 4
    if "d" in O.X2: return
    A(f"s_add_u32 s{K_T0}, s{K_C0}, {cc}"); A(f"s_and_b32 s{K_T0}, s{K_T0}, 7")
    A(f"s_lshl_b32 s{K_T1}, s{K_T0}, 7"); A(f"s_add_u32 s{K_T1}, s{K_T1}, s{K_XO}")
    A(f"s_mul_i32 s{K_T0}, s{K_T0}, {64*2*F}"); A(f"s_add_u32 s{K_T0}, s{K_T0}, s{K_WO}")
    for q in range(2):
        A(f"s_add_u32 m0, s{K_M0}, {slot*32768+q*4096}")
        if q: A(f"s_add_u32 s{K_T1}, s{K_T1}, 32768")
        else: A("s_nop 0")
        for i in range(4):
            if "x" in O.X2: continue
            A(f"buffer_load_dwordx4 v{LX+i}, s[{S_X}:{S_X+3}], s{K_T1} offen offset:{i*1024} {O.XFL} lds")
        A(f"s_add_u32 m0, s{K_M0}, {slot*32768+16384+q*4096}")
        if q: A(f"s_add_u32 s{K_T0}, s{K_T0}, {16*2*F}")
        else: A("s_nop 0")
        for i in range(4):
            if "w" in O.X2: continue
            A(f"buffer_load_dwordx4 v{LW+i}, s[{S_W1}:{S_W1+3}], s{K_T0} offen offset:{i*1024} {O.W1FL} lds")
def l_pub(A, n, val):
    A(f"v_mov_b32 v{LV}, {val}"); A(f"v_mov_b32 v{LV+1}, {val}")
    A(f"s_waitcnt vmcnt({n})")
    A(f"ds_write_b64 v{LSA}, {vr(LV,2)}")
def loader(A, fin):
    A(f"s_cmp_ge_u32 s{S_J}, 28")
    A("s_cbranch_scc1 S_LW1")
    if O.LOOK == 3: l_chunk(A, 3)
    if O.LOOK == 8:
        A.label("S_LW1")
        fin()
    for c in range(max(4, O.LOOK), 8):
        lwait(A, LGD, 0, 31, c - 3)
        l_chunk(A, c)
        if c > O.LOOK: l_pub(A, 0 if "d" in O.X2 else 8 if ("x" in O.X2 or "w" in O.X2) else 16, c)
        if c == 7 and O.TOUCH:
            A(f"s_lshr_b32 s{K_T0}, s{K_XO}, 16")
            A(f"s_mul_i32 s{K_T0}, s{K_T0}, 224")
            A(f"s_and_b32 s{K_T1}, s{S_XCD}, 1")
            A(f"s_mul_i32 s{K_T1}, s{K_T1}, 56")
            A(f"s_add_u32 s{K_T0}, s{K_T0}, s{K_T1}")
            A(f"s_lshr_b32 s{K_T1}, s{S_J}, 2")
            A(f"s_lshl_b32 s{K_T1}, s{K_T1}, 3")
            A(f"s_add_u32 s{K_T0}, s{K_T0}, s{K_T1}")
            A(f"s_lshl_b32 s{K_T0}, s{K_T0}, 10")
            A(f"v_lshlrev_b32 v{LX}, 7, v1")
            A(f"s_add_u32 s{K_T1}, s{K_T0}, {112*1024}")
            A(f"buffer_load_dword v{LX+1}, v{LX}, s[{S_WS}:{S_WS+3}], s{K_T0} offen {O.TFL}")
            A(f"buffer_load_dword v{LX+2}, v{LX}, s[{S_WS}:{S_WS+3}], s{K_T1} offen {O.TFL}")
        if c == O.LFIN:
            A.label("S_LW1")
            fin()
            A(f"s_cmp_ge_u32 s{S_J}, 28")
            A("s_cbranch_scc1 S_LW2")
    A.label("S_LW2")
    if "v" in O.X2: l_pub(A, 0, 8)
    for s in range(4):
        lwait(A, LGD, 0, 31, 5 + s if "v" not in O.X2 else 8)
        if s == 0 and "v" in O.X2: pass
        for k in range(7):
            A(f"s_add_u32 m0, s{K_M2}, {s*32768+4096+k*2048}")
            A(f"s_add_u32 s{K_T0}, s{K_W2}, {(14*s+k)*16384}")
            A(f"buffer_load_dwordx4 v{L2D}, s[{S_W2}:{S_W2+3}], s{K_T0} offen {O.W2FL} lds")
            A(f"buffer_load_dwordx4 v{L2D+1}, s[{S_W2}:{S_W2+3}], s{K_T0} offen offset:1024 {O.W2FL} lds")
        if s == 0: l_pub(A, 16 if O.TOUCH else 14, 8)

TAB2 = LDS_SSM + 17408
S_PASS, S_UOK = 33, 34
U_SO, U_M0, UF, UD = 28, 29, 12, 13
def u_dma(A):
    for i in range(4):
        A(f"s_add_u32 m0, s{U_M0}, {i*1024}")
        A(f"s_add_u32 s{Q_T1}, s{U_SO}, {i*2048}")
        A(f"buffer_load_dwordx4 v{UD}, s[{S_WS}:{S_WS+3}], s{Q_T1} offen sc1 lds")
def u_setup(A):
    A(f"s_lshl_b32 s{Q_T0}, s{S_XCD}, {4+FS}")
    A(f"s_add_u32 s{Q_T0}, s{Q_T0}, {F_UT}")
    A("v_and_b32 v8, 15, v1")
    A(f"v_lshl_add_u32 v{UF}, v8, {FS}, s{Q_T0}")
    A(f"v_lshrrev_b32 v{UD}, 2, v1")
    A(f"v_lshlrev_b32 v{UD}, 3, v{UD}")
    A("v_and_b32 v8, 3, v1")
    A(f"v_add_lshl_u32 v{UD}, v{UD}, v8, 4")
    A(f"s_lshl_b32 s{U_SO}, s{Q_PAIR}, 7")
    A(f"s_add_u32 s{U_SO}, s{U_SO}, s{Q_NH}")
    A(f"s_lshl_b32 s{U_SO}, s{U_SO}, 6")
    A(f"s_add_u32 s{U_SO}, s{U_SO}, {WS_UT}")
    A(f"s_mul_i32 s{U_M0}, s{Q_NH}, {U_STRIDE}")
    A(f"s_add_u32 s{U_M0}, s{U_M0}, {LDS_U+64}")
    A(f"s_mov_b32 s{S_UOK}, 0")
def kgen2(A, later, hookA):
    w = S_WAVE; KC = Q_NH
    VW, VB, VA = 26, 27, 28
    E1, E8, E256, C0, E2, E4 = 128, 130, 132, 134, 136, 138
    LO = 140; E32 = 156; G = 160; CV = 200
    A(f"s_mul_i32 s{Q_TAB}, s{w}, {TAB_STRIDE}")
    A(f"s_add_u32 s{Q_TAB}, s{Q_TAB}, {TAB2}")
    A(f"v_lshl_add_u32 v{VW}, v1, 2, s{Q_TAB}")
    A("v_and_b32 v8, 15, v1")
    A("v_lshrrev_b32 v9, 5, v1")
    A(f"v_lshl_add_u32 v9, v9, 4, s{Q_TAB}")
    A("v_mov_b32 v10, 272")
    A(f"v_mad_u32_u24 v{VB}, v8, v10, v9")
    A("v_and_b32 v11, 7, v1")
    A("v_lshlrev_b32 v11, 2, v11")
    A("v_mov_b32 v12, 0xcbaaa988")
    A("v_lshrrev_b32 v11, v11, v12")
    A("v_and_b32 v11, 15, v11")
    A("v_and_b32 v12, 24, v1")
    A("v_cmp_eq_u32 vcc, 8, v12")
    A(f"s_mov_b32 s{Q_EX}, 0x0000ffff")
    A(f"s_mov_b32 s{Q_EX+1}, 0x0000ffff")
    A(f"s_mov_b32 s{Q_EX+2}, 0xffff0000")
    A(f"s_mov_b32 s{Q_EX+3}, 0xffff0000")
    A("v_cndmask_b32 v11, v8, v11, vcc")
    A(f"v_mad_u32_u24 v{VA}, v11, v10, v9")
    srd(A, S_WS, P_WS, WS_BYTES)
    A(f"v_mov_b32 v{LSA}, {L_DUMMY}")
    for k in range(16): A(f"v_mov_b32 v{KD+k}, 0")
    A(f"s_mov_b32 s{S_PASS}, 16")
    A("s_waitcnt lgkmcnt(0)")
    A(f"s_lshl_b32 s{Q_T0}, s{KC}, 4")
    A(f"s_lshr_b32 s{Q_LDT}, s{Q_LDT}, s{Q_T0}")
    A(f"s_lshl_b32 s{Q_LDT}, s{Q_LDT}, 16")
    A(f"s_lshr_b32 s{Q_DSK}, s{Q_DSK}, s{Q_T0}")
    A(f"s_lshl_b32 s{Q_DSK}, s{Q_DSK}, 16")
    A(f"v_mov_b32 v6, {LOG2E}")
    A(f"v_mul_f32 v7, s{Q_LDT}, v6")
    A("v_exp_f32 v7, v7")
    hookA()
    A("v_cvt_pk_bf16_f32 v7, v7, v7")
    A("v_lshlrev_b32 v7, 16, v7")
    A(f"s_waitcnt vmcnt({later})")
    tss(A, 2, "ak")
    A.label("KG_LOOP")
    for i in range(4): A(f"v_lshlrev_b32 v{2+i}, s{S_PASS}, v{14+i}")
    for i in range(4): A(f"v_and_b32 v{2+i}, 0xffff0000, v{2+i}")
    A("v_mul_f32 v2, v6, v2")
    A("v_exp_f32 v2, v2")
    A("v_add_f32 v8, v7, v7")
    A("v_cvt_pk_bf16_f32 v2, v2, v2")
    A("v_lshlrev_b32 v2, 16, v2")
    A("v_mul_f32 v2, v2, v7")
    A("v_mul_f32 v3, v3, v7")
    A("v_mul_f32 v2, 0xbfb8aa3b, v2")
    A(f"v_mul_f32 v3, {INV2PI}, v3")
    A(f"v_mul_f32 v{C0}, v4, v8")
    A(f"v_mul_f32 v{C0+1}, v5, v8")
    A("v_mul_f32 v10, 0x41000000, v2")
    A("v_mul_f32 v11, 0x41000000, v3")
    A("v_mul_f32 v12, 0x43800000, v2")
    A("v_mul_f32 v13, 0x43800000, v3")
    for r in (11, 3, 13): A(f"v_fract_f32 v{r}, v{r}")
    for (m, f, e) in ((10, 11, E8), (2, 3, E1), (12, 13, E256)):
        A(f"v_exp_f32 v{m}, v{m}")
        A(f"v_cos_f32 v{e}, v{f}")
        A(f"v_sin_f32 v{e+1}, v{f}")
    for (m, e) in ((10, E8), (2, E1), (12, E256)):
        A(f"v_pk_mul_f32 {vr(e,2)}, {vr(e,2)}, {vr(m,2)} op_sel:[0,0] op_sel_hi:[1,0]")
    hook = None
    kgen_tables2(A, hook, VW, VB, VA, E1, E8, E256, C0, E2, E4, LO, E32, G, CV)
    for ks in range(8):
        A(f"s_waitcnt lgkmcnt({7-ks})")
        A(f"v_mfma_f32_32x32x16_bf16 {vr(KD,16)}, {vr(KA+4*ks,4)}, {vr(KB+4*ks,4)}, {vr(KD,16)}")
    A(f"s_cmp_eq_u32 s{S_PASS}, 0")
    A("s_cbranch_scc1 KG_DONE")
    tss(A, 3, "k")
    A(f"s_mov_b32 s{S_PASS}, 0")
    A("s_branch KG_LOOP")
    A.label("KG_DONE")
    tss(A, 4, "k"); tss(A, 3, "a")
    token_get(A, 8, STOK)
    X = 64
    A(f"s_mul_i32 s{Q_T0}, s{KC}, {K_STRIDE}")
    A(f"s_add_u32 s{Q_T0}, s{Q_T0}, {LDS_K}")
    A("v_and_b32 v8, 31, v1")
    A("v_lshrrev_b32 v9, 5, v1")
    A(f"v_lshl_add_u32 v8, v8, 4, s{Q_T0}")
    A(f"v_lshl_add_u32 v10, v1, 3, s{Q_T0}")
    A("v_mov_b32 v12, 0"); A("v_mov_b32 v13, 0")
    A("ds_write_b64 v10, v[12:13]")
    A("v_and_b32 v11, 15, v1")
    A(f"s_mul_i32 s{Q_T0}, s{KC}, {U_STRIDE}")
    A(f"s_add_u32 s{Q_T0}, s{Q_T0}, {LDS_U}")
    A(f"v_lshl_add_u32 v11, v11, 2, s{Q_T0}")
    A("ds_write_b32 v11, v12")
    A("v_cmp_eq_u32 vcc, 0, v1")
    A(f"v_mov_b32 v11, s{Q_DSK}")
    A("v_lshl_add_u32 v14, v9, 3, v8")
    A("v_lshl_add_u32 v15, v9, 9, v8")
    A("v_cndmask_b32 v11, 0, v11, vcc")
    A("v_lshl_add_u32 v16, v9, 10, v8")
    A("s_nop 4")
    A(f"v_add_f32 v{KD}, v{KD}, v11")
    A("v_and_b32 v11, 1, v1")
    A("v_cmp_eq_u32 vcc, 1, v11")
    for k in range(4): A(f"v_cvt_pk_bf16_f32 v{X+k}, v{KD+2*k}, v{KD+2*k+1}")
    a, b, c = KD + 8, KD + 9, KD + 10
    for k, (p, q) in enumerate(((a, a), (a, b), (b, b), (c, c))): A(f"v_cvt_pk_bf16_f32 v{X+4+k}, v{p}, v{q}")
    A(f"ds_write_b64 v14, {vr(X,2)} offset:448")
    A(f"ds_write_b64 v14, {vr(X+2,2)} offset:960")
    A(f"ds_write_b128 v15, {vr(X+4,4)} offset:1472")
    X = 72
    for k in range(2):
        a, b = KD + 12 + 2 * k, KD + 13 + 2 * k
        A(f"v_cndmask_b32 v11, v{a}, v{b}, vcc")
        A(f"v_cvt_pk_bf16_f32 v{X+4*k}, v{a}, v{a}")
        A(f"v_cvt_pk_bf16_f32 v{X+4*k+1}, v{a}, v{a}")
        A(f"v_cvt_pk_bf16_f32 v{X+4*k+2}, v11, v{b}")
        A(f"v_cvt_pk_bf16_f32 v{X+4*k+3}, v{b}, v{b}")
        A(f"ds_write_b128 v16, {vr(X+4*k,4)} offset:{2496+512*k}")

def loader2(A):
    A(f"s_cmp_ge_u32 s{S_J}, 28")
    A("s_cbranch_scc1 S_LW2")
    for c in range(O.LOOK, 8):
        if c >= 4: lwait(A, LGD, 0, 31, c - 3, sleep=O.LSLP)
        l_chunk(A, c)
        if c > O.LOOK: l_pub(A, 16, c)
        if c in (3, 5, 7): tss(A, 2 + (c - 3) // 2, "k")
    A.label("S_LW2")
    u_setup(A)
    token_get(A, 8, STOK)
    for s in range(4):
        lwait(A, LGD, 0, 31, 5 + s, sleep=O.LSLP)
        if s < 3:
            if s: A(f"s_cmp_eq_u32 s{S_UOK}, 1"); A(f"s_cbranch_scc1 S_U{s}")
            A(f"buffer_load_dword v9, v{UF}, s[{S_WS}:{S_WS+3}], 0 offen sc1")
            if s: A.label(f"S_U{s}")
        for k in range(7):
            A(f"s_add_u32 m0, s{K_M2}, {s*32768+4096+k*2048}")
            A(f"s_add_u32 s{K_T0}, s{K_W2}, {(14*s+k)*16384}")
            A(f"buffer_load_dwordx4 v{L2D}, s[{S_W2}:{S_W2+3}], s{K_T0} offen {O.W2FL} lds")
            A(f"buffer_load_dwordx4 v{L2D+1}, s[{S_W2}:{S_W2+3}], s{K_T0} offen offset:1024 {O.W2FL} lds")
        if s == 0: l_pub(A, 15, 8)
        if s < 3:
            if s: A(f"s_cmp_eq_u32 s{S_UOK}, 1"); A(f"s_cbranch_scc1 S_V{s}")
            A("s_waitcnt vmcnt(14)")
            A(f"v_cmp_ne_u32 vcc, v{STOK}, v9")
            A(f"s_cbranch_vccnz S_V{s}")
            u_dma(A)
            A(f"s_mov_b32 s{S_UOK}, 1")
            A.label(f"S_V{s}")
    tss(A, 5, "k")
    A("s_waitcnt vmcnt(14)")
    A(f"s_cmp_eq_u32 s{S_UOK}, 1"); A(f"s_cbranch_scc1 S_CV")
    poll(A, UF, 9, STOK, "PU")
    u_dma(A)
    A("s_waitcnt vmcnt(0)")

def s_tail(A):
    w = S_WAVE
    RT, CT, TT, DB = Q_EX, Q_EX + 1, Q_EX + 2, Q_EX + 3
    PK, AP, G, PP, T = 128, 136, 144, 148, 160
    SO_P, SO_PF, SO_A, SO_O = 76, 77, 78, 79
    A(f"s_lshl_b32 s80, s{Q_PAIR}, {FS}")
    A(f"s_lshl_b32 s{Q_T0}, s{w}, {8+FS}")
    A(f"s_add_u32 s80, s80, s{Q_T0}")
    A(f"s_add_u32 s80, s80, {F_A}")
    A(f"s_and_b32 s{RT}, s{S_XCD}, 6")
    A(f"s_lshl_b32 s{RT}, s{RT}, 1")
    A(f"s_and_b32 s{Q_T0}, s{S_J}, 3")
    A(f"s_add_u32 s{RT}, s{RT}, s{Q_T0}")
    A(f"s_lshl_b32 s{RT}, s{RT}, 1")
    A(f"s_and_b32 s{Q_T0}, s{S_XCD}, 1")
    A(f"s_add_u32 s{RT}, s{RT}, s{Q_T0}")
    A(f"s_lshr_b32 s{CT}, s{S_J}, 2")
    A(f"s_lshl_b32 s{TT}, s{RT}, 1")
    A(f"s_add_u32 s{TT}, s{TT}, s{Q_NH}")
    A(f"s_lshl_b32 s{DB}, s{CT}, 1")
    A(f"s_add_u32 s{DB}, s{DB}, s{Q_C}")
    A(f"s_bfe_u32 s{Q_T0}, s{RT}, 0x20002")
    A(f"s_lshl_b32 s{Q_T0}, s{Q_T0}, {8+FS}")
    A(f"s_lshl_b32 s{Q_T1}, s{DB}, {4+FS}")
    A(f"s_add_u32 s{Q_T0}, s{Q_T0}, s{Q_T1}")
    A(f"s_add_u32 s{Q_T0}, s{Q_T0}, {F_A}")
    A(f"v_lshl_add_u32 v2, v1, {FS}, s{Q_T0}")
    A(f"s_lshl_b32 s{Q_T0}, s{TT}, {1+FS}")
    A(f"s_add_u32 s{Q_T0}, s{Q_T0}, {F_G}")
    A("v_and_b32 v3, 1, v1")
    A(f"v_lshl_add_u32 v3, v3, {FS}, s{Q_T0}")
    A("v_cmp_gt_u32 vcc, 16, v1")
    A("v_and_b32 v10, 31, v1")
    A("v_lshrrev_b32 v11, 5, v1")
    A("v_cndmask_b32 v2, v3, v2, vcc")
    A("v_lshlrev_b32 v4, 14, v11")
    A("v_lshl_add_u32 v12, v10, 2, v4")
    A("v_add_u32 v13, 8192, v12")
    A(f"s_lshl_b32 s{Q_T0}, s{TT}, 8")
    A(f"s_add_u32 s{Q_T0}, s{Q_T0}, {WS_G}")
    A(f"v_lshl_add_u32 v14, v10, 3, s{Q_T0}")
    A(f"s_lshl_b32 s{SO_A}, s{DB}, 17")
    A(f"s_lshl_b32 s{Q_T1}, s{TT}, 7")
    A(f"s_add_u32 s{SO_A}, s{SO_A}, s{Q_T1}")
    A(f"s_add_u32 s{SO_A}, s{SO_A}, {WS_A}")
    A("v_lshlrev_b32 v16, 4, v1")
    A(f"s_lshl_b32 s{Q_T0}, s{w}, 12")
    A(f"s_add_u32 s{Q_T0}, s{Q_T0}, {L_T}")
    A(f"v_add_u32 v18, s{Q_T0}, v16")
    A(f"s_lshl_b32 s{Q_T0}, s{w}, 8")
    A(f"s_add_u32 s{Q_T0}, s{Q_T0}, {L_T+16384}")
    A(f"v_lshl_add_u32 v19, v1, 2, s{Q_T0}")
    A(f"s_lshl_b32 s{Q_T0}, s2, 2")
    A(f"s_add_u32 s{Q_T0}, s{Q_T0}, s{w}")
    A(f"s_lshl_b32 s{SO_P}, s{Q_T0}, 12")
    A(f"s_add_u32 s{SO_P}, s{SO_P}, {WS_P}")
    A(f"s_xor_b32 s{SO_O}, s{SO_P}, {4<<12}")
    A(f"s_lshl_b32 s{Q_T0}, s{Q_NH}, 15")
    A(f"s_lshl_b32 s{Q_T1}, s{Q_C}, 11")
    A(f"s_add_u32 s{Q_T0}, s{Q_T0}, s{Q_T1}")
    A(f"v_add_u32 v17, s{Q_T0}, v16")
    A(f"v_xor_b32 v15, {0x10000+2048}, v17")
    A(f"s_lshl_b32 s{Q_T0}, s{Q_NH}, 2")
    A(f"s_add_u32 s{Q_T0}, s{Q_T0}, {L_GD}")
    A("v_and_b32 v5, 1, v1")
    A(f"v_lshl_add_u32 v5, v5, 3, s{Q_T0}")
    for k in range(8): A(f"v_mov_b32 v{97+2*k}, v{STOK}")
    A("s_waitcnt vmcnt(0)")
    flag_store(A, 80, 8, STOK)
    tss(A, 5, "a"); tss(A, 2, "t")
    def ag():
        poll(A, 2, 9, STOK, "PA")
        for q in range(4):
            for i in range(2):
                A(f"buffer_load_dword v{AP+2*q+i}, v{12+i}, s[{S_WS}:{S_WS+3}], s{SO_A} offen sc1")
            if q < 3: A(f"s_add_u32 s{SO_A}, s{SO_A}, 32768")
        A(f"buffer_load_dwordx2 {vr(G,2)}, v14, s[{S_WS}:{S_WS+3}], 0 offen sc1")
    def ag2():
        for k in range(8):
            A(f"v_lshlrev_b32 v{T+2*k}, 16, v{AP+k}")
            A(f"v_and_b32 v{T+2*k+1}, 0xffff0000, v{AP+k}")
        for k in range(16):
            A(f"v_mul_f32 v{T+k}, v{G}, v{T+k}")
        A(f"ds_write_b32 v19, v{G+1}")
    if O.AFIRST:
        ag(); A("s_waitcnt vmcnt(0)"); ag2()
        tss(A, 3, "t")
    lwait(A, 5, 0, 31, 9, sleep=1)
    tss(A, 4 if O.AFIRST else 3, "t")
    for h in range(2):
        A(f"ds_read_b128 {vr(64+4*h,4)}, v17 offset:{1024*h}")
        A(f"ds_read_b128 {vr(72+4*h,4)}, v15 offset:{1024*h}")
    A(f"v_mov_b32 v{S_FT}, 50")
    for h in range(2):
        A(f"s_waitcnt lgkmcnt({2-2*h})")
        if h == 1: A(f"ds_write_b32 v{S_FOWN}, v{S_FT}")
        for k in range(4):
            r = 64 + 4 * h + k
            A(f"v_lshlrev_b32 v80, 16, v{r}")
            A(f"v_lshlrev_b32 v81, 16, v{r+8}")
            A(f"v_and_b32 v82, 0xffff0000, v{r}")
            A(f"v_and_b32 v83, 0xffff0000, v{r+8}")
            A("v_add_f32 v80, v80, v81")
            A("v_add_f32 v82, v82, v83")
            A(f"v_cvt_pk_bf16_f32 v{96+8*h+2*k}, v80, v82")
            if k % 2 == 1:
                q = 2 * h + k // 2
                A(f"buffer_store_dwordx4 {vr(96+4*q,4)}, v16, s[{S_WS}:{S_WS+3}], s{SO_P} offen offset:{1024*q} {O.PST}")
    if not O.AFIRST:
        ag()
        tss(A, 4, "t")
    A(f"s_mov_b32 s{S_SPIN}, {O.SPIN}")
    A.label("S_PL")
    for q in range(4):
        A(f"buffer_load_dwordx4 {vr(112+4*q,4)}, v16, s[{S_WS}:{S_WS+3}], s{SO_O} offen offset:{1024*q} sc1")
    if not O.AFIRST:
        A(f"s_cmp_eq_u32 s{S_SPIN}, {O.SPIN}")
        A("s_cbranch_scc0 S_PM")
        A("s_waitcnt vmcnt(4)")
        ag2()
        A.label("S_PM")
    A("s_waitcnt vmcnt(0)")
    for k in range(4):
        A(f"v_xor_b32 v{80+k}, v{STOK}, v{113+4*k}")
        A(f"v_xor_b32 v{84+k}, v{STOK}, v{115+4*k}")
    A("v_or3_b32 v80, v80, v81, v82")
    A("v_or3_b32 v83, v83, v84, v85")
    A("v_or3_b32 v80, v80, v86, v87")
    A("v_or_b32 v80, v80, v83")
    A("v_cmp_ne_u32 vcc, 0, v80")
    A("s_cbranch_vccz S_PD")
    A("s_sleep 1")
    A(f"s_sub_u32 s{S_SPIN}, s{S_SPIN}, 1")
    A("s_cbranch_scc0 S_PL")
    A.label("S_PD")
    tss(A, 5, "t")
    for q in range(4):
        for k in range(2):
            r = 112 + 4 * q + 2 * k
            A(f"v_lshlrev_b32 v{80+2*k}, 16, v{r}")
            A(f"v_and_b32 v{81+2*k}, 0xffff0000, v{r}")
        for k in range(4):
            A(f"v_fmac_f32 v{T+4*q+k}, v{G+1}, v{80+k}")
        A(f"ds_write_b128 v18, {vr(T+4*q,4)} offset:{q*1024}")
    sw_arrive(A, S_FOWN, S_FT, 100)
    A("s_waitcnt lgkmcnt(0)")

def diag(A, k, role):
    A("s_waitcnt vmcnt(0) lgkmcnt(0)")
    A(f"s_memtime s[{S_TS+12}:{S_TS+13}]")
    A("s_waitcnt lgkmcnt(0)")
    A(f"s_sub_u32 s64, s{S_TS+2*k}, s{S_TS+2}")
    A(f"s_cmp_ge_u32 s{S_J}, 28")
    A("s_cselect_b32 s64, 0, s64")
    A("v_mov_b32 v2, 128"); A("v_mov_b32 v3, s64")
    A("s_mov_b64 exec, 1")
    A(f"global_atomic_add v2, v3, s[{P_DBG}:{P_DBG+1}] sc1")
    for lab, first in (("DG0", True), ("DG1", False)):
        A("s_mov_b32 s66, 1000000")
        if first: A("s_mov_b32 s67, 3200")
        A.label(lab)
        A("s_memrealtime s[64:65]")
        A("s_waitcnt lgkmcnt(0)")
        A(f"s_sub_u32 s64, s64, s{S_TS}")
        A("s_cmp_ge_u32 s64, s67")
        A(f"s_cbranch_scc1 {lab}X")
        A("s_sub_u32 s66, s66, 1")
        A(f"s_cbranch_scc0 {lab}")
        A.label(lab + "X")
        if first:
            A("s_waitcnt vmcnt(0)")
            A(f"global_load_dword v3, v2, s[{P_DBG}:{P_DBG+1}] sc1")
            A("s_waitcnt vmcnt(0)")
            A("v_readfirstlane_b32 s67, v3")
            A("s_lshr_b32 s67, s67, 11")
            A("s_add_u32 s67, s67, 3500")
def fin(A, role):
    if O.DIAG is None: ts_dump(A, 0, S_W8)
    elif O.DIAG[0] == role: diag(A, O.DIAG[1], role)

KN = "gated_mix__ssm_conv_s4d__dense_activation_silu__prompt_kernel"
A = Asm()
A.raw("; @launch grid=(256,1,1) block=(512,1,1) lds=163840")
A.raw('.amdgcn_target "amdgcn-amd-amdhsa--gfx950"')
kernel_header(A, KN)
ts_real(A, 0); parts_ts(A, 1)
prologue(A, "K_END")
A(f"s_mov_b32 s{S_W8}, s{S_WAVE}")
A("v_and_b32 v2, 31, v1")
A("v_lshlrev_b32 v2, 2, v2")
A(f"v_add_u32 v2, {LF}, v2")
A("v_mov_b32 v3, 0")
A("ds_write_b32 v2, v3")
A(f"s_cmp_ge_u32 s{S_WAVE}, 4")
A("s_cbranch_scc1 K_SSM")
if O.GPRIO: A(f"s_setprio {O.GPRIO}")
A(f"s_cmp_ge_u32 s{S_J}, 28")
A("s_cbranch_scc1 K_IDLE")
g1_setup(A)
rot_c0(A, S_C0, S_T0)
A("s_waitcnt lgkmcnt(0)")
srd(A, S_X, P_U, L*D*2); srd(A, S_W1, P_W1, D*F*2)
vm = Vm(A); cid = {}
for x in g_chunk_dma(0): vm.op(x)
cid[0] = vm.n
if O.GPRE == 1: A("s_barrier")
if O.LOOK > 1:
    for x in g_chunk_dma(1): vm.op(x)
    cid[1] = vm.n
if O.GPRE == 2: A("s_barrier")
srd(A, S_WS, P_WS, WS_BYTES); srd(A, S_OUT, P_OUT, L*D*2)
g1_setup2(A); g_flags_setup(A); g2_setup(A)
if O.LOOK > 2:
    for x in g_chunk_dma(2): vm.op(x)
    cid[2] = vm.n
if O.LOOK >= 4 and O.L3 == "u":
    for x in g_chunk_dma(3): vm.op(x)
    cid[3] = vm.n
if "L" in O.X2:
    parts_ts(A, 2)
    for k in sorted(cid)[:3]:
        vm.wait(cid[k]); parts_ts(A, 3 + k)
if O.GHOLD: lwait(A, GRD, 32, GT, 1, sleep=4)
(g1_main if O.LA == 1 else g1_main2)(A, vm, cid)
tsg(A, 2, "ae")
g1_epi(A)
tsg(A, 3, "ae")
A.label("K_G2")
lwait(A, GRD, 48, GT, 12)
for i in range(O.PFD):
    for x in w2_read(i): A(x)
A(f"v_mov_b32 v{GX}, {L_HOK}")
A(f"s_cmp_eq_u32 s{S_WAVE}, 0")
A("s_cbranch_scc0 K_HW")
poll(A, FV, GT, VTOK, "PH", slp=O.HSLP)
A(f"ds_write_b32 v{GX}, v{VTOK+1}")
A("s_waitcnt lgkmcnt(1)")
A("s_branch K_HD")
A.label("K_HW")
lwait(A, GX, 0, GT, 1)
A.label("K_HD")
tsg(A, 4, "ae"); tsg(A, 1, "s")
g2_main(A)
A("s_waitcnt lgkmcnt(0)")
fin(A, "G")
A("s_endpgm")
A.label("K_IDLE")
if O.IPRIO != O.GPRIO: A(f"s_setprio {O.IPRIO}")
idle_tr_issue(A)
if O.CODEPF:
    A("s_getpc_b64 s[72:73]")
    A.label("K_PC")
    A(f"s_sub_u32 s72, s72, K_PC-{KN}")
    A("s_subb_u32 s73, s73, 0")
    A(f"v_lshl_add_u32 v20, s64, 5, v1")
    A("v_lshlrev_b32 v20, 7, v20")
    A(f"v_min_u32 v20, K_END-{KN}, v20")
    A("s_mov_b64 exec, 0xffffffff")
    A("global_load_dword v21, v20, s[72:73]")
    A("s_mov_b64 exec, -1")
A("s_waitcnt lgkmcnt(0)")
srd(A, S_X, P_U, L*D*2)
if any(O.W2P): srd(A, S_W2, P_W2, D*F*2); w2_touch_setup(A)
w2_touch(A, O.W2P[0], 26)
idle_tr_dma(A)
A("s_barrier")
w2_touch(A, O.W2P[1], 26)
srd(A, S_WS, P_WS, WS_BYTES); srd(A, S_OUT, P_OUT, L*D*2)
idle_tr_finish(A, 2 * len(O.W2P[1]))
g_flags_setup(A); g2_setup(A)
tsg(A, 2, "ae")
token_get(A, GX, VTOK)
A(f"s_lshl_b32 s68, s34, 4")
A(f"s_add_u32 s68, s68, s33")
A(f"s_lshl_b32 s65, s68, {FS}")
A(f"s_add_u32 s65, s65, {F_UT}")
A("s_waitcnt vmcnt(0)")
flag_store(A, 65, GT, VTOK)
tsg(A, 3, "ae")
A(f"v_mov_b32 v{GT}, 8")
A(f"ds_write_b32 v{GOWN}, v{GT} offset:16")
if O.IPRIO != O.GPRIO: A(f"s_setprio {O.GPRIO}")
w2_touch(A, O.W2P[2], 26)
idle_gate_issue(A)
w2_touch(A, O.W2P[3], 26)
idle_gate_finish(A, 2 * len(O.W2P[3]))
A(f"s_lshl_b32 s65, s68, {FS}")
A(f"s_add_u32 s65, s65, {F_G}")
A("s_waitcnt vmcnt(0)")
flag_store(A, 65, GT, VTOK)
A("s_branch K_G2")
A.label("K_SSM")
if O.SPRIO: A(f"s_setprio {O.SPRIO}")
A(f"s_sub_u32 s{S_WAVE}, s{S_WAVE}, 4")
s_setup(A)
carry_zero(A)
A("s_getreg_b32 s31, hwreg(HW_REG_XCC_ID)")
def w2s():
    if O.W2S is None: return
    srd(A, S_W2, P_W2, D*F*2)
    A(f"s_lshr_b32 s{Q_T0}, s{S_XCD}, 1")
    A(f"s_and_b32 s{Q_T1}, s{S_XCD}, 1")
    A(f"s_lshl_b32 s{Q_T1}, s{Q_T1}, 2")
    A(f"s_add_u32 s{Q_T0}, s{Q_T0}, s{Q_T1}")
    A(f"s_lshl_b32 s{Q_T0}, s{Q_T0}, 5")
    A(f"s_add_u32 s{Q_T0}, s{Q_T0}, s{S_J}")
    A(f"s_lshl_b32 s{Q_T0}, s{Q_T0}, 1")
    A(f"s_add_u32 s{Q_T0}, s{Q_T0}, s{Q_NH}")
    A(f"s_mul_i32 s{Q_T0}, s{Q_T0}, 3584")
    A("v_min_u32 v39, 27, v1")
    A("v_lshlrev_b32 v39, 7, v39")
    A(f"buffer_load_dword v39, v39, s[{S_W2}:{S_W2+3}], s{Q_T0} offen {O.PFL2}")
def flow2():
    A(f"s_cmp_eq_u32 s{Q_C}, 1")
    A("s_cbranch_scc1 S_LD")
    A(f"s_lshl_b32 s{Q_T0}, s{Q_PAIR}, 9")
    A(f"s_lshl_b32 s{Q_T1}, s{S_WAVE}, 8")
    A(f"s_add_u32 s{Q_T0}, s{Q_T0}, s{Q_T1}")
    A(f"v_lshl_add_u32 v6, v1, 2, s{Q_T0}")
    A(f"s_lshl_b32 s{Q_T0}, s{Q_PAIR}, 2")
    A("s_waitcnt lgkmcnt(0)")
    for i, p in enumerate((P_LA, P_AI, P_CR, P_CI)):
        A(f"global_load_dword v{14+i}, v6, s[{p}:{p+1}]")
    A(f"s_load_dword s{Q_LDT}, s[{P_LDT}:{P_LDT+1}], s{Q_T0}")
    A(f"s_load_dword s{Q_DSK}, s[{P_DSK}:{P_DSK+1}], s{Q_T0}")
    A(f"s_add_u32 s28, s{P_WS}, {F_EP}")
    A(f"s_addc_u32 s29, s{P_WS+1}, 0")
    A(f"s_cmp_eq_u32 s{S_WAVE}, 1")
    A("s_cbranch_scc0 S_NT")
    A("s_load_dword s30, s[28:29], 0")
    A.label("S_NT")
    A("s_barrier")
    if O.W2S == 0: w2s()
    def tokpub():
        A(f"s_cmp_eq_u32 s{S_WAVE}, 1")
        A("s_cbranch_scc0 S_NP")
        A("s_mul_i32 s30, s30, 0x9e3779a1")
        A("s_add_u32 s30, s30, 0x7f4a7c10")
        A("s_and_b32 s30, s30, -16")
        A(f"v_mov_b32 v{STOK}, s30")
        A(f"v_mov_b32 v{STOK+1}, 1")
        A(f"v_mov_b32 v34, {L_RDY}")
        A(f"ds_write_b64 v34, {vr(STOK,2)}")
        A(f"s_waitcnt vmcnt({1 if O.W2S == 0 else 0})")
        A(f"s_lshl_b32 s28, s2, {FS}")
        A(f"s_add_u32 s28, s28, {F_HERE}")
        flag_store(A, 28, 36, STOK)
        A("s_branch S_NQ")
        A.label("S_NP")
        A(f"s_waitcnt vmcnt({1 if O.W2S == 0 else 0})")
        A.label("S_NQ")
    kgen2(A, 2, tokpub)
    tss(A, 5, "k")
    A("s_cmp_eq_u32 s2, 0")
    A("s_cbranch_scc0 S_UW")
    A(f"s_cmp_eq_u32 s{S_WAVE}, 1")
    A("s_cbranch_scc0 S_UW")
    for i in range(4):
        A(f"v_lshlrev_b32 v8, {FS}, v1")
        A(f"v_add_u32 v8, {F_HERE+(64<<FS)*i}, v8")
        poll(A, 8, 9, STOK, "PE")
    A(f"s_mov_b32 s{Q_T0}, {F_EP}")
    flag_store(A, Q_T0, 8, STOK)
    A.label("S_UW")
    A("s_branch S_CV")
    A.label("S_LD")
    if O.LPRIO != O.SPRIO: A(f"s_setprio {O.LPRIO}")
    loader_setup(A)
    A("s_waitcnt lgkmcnt(0)")
    srd(A, S_X, P_U, L*D*2); srd(A, S_W1, P_W1, D*F*2); srd(A, S_W2, P_W2, D*F*2)
    srd(A, S_WS, P_WS, WS_BYTES)
    A("s_barrier")
    if O.W2S == 1: w2s()
    if O.LDLY: A(f"s_sleep {O.LDLY}")
    loader2(A)
def flow1():
    A(f"s_lshl_b32 s{Q_T0}, s{Q_PAIR}, 9")
    A(f"s_lshl_b32 s{Q_T1}, s{S_WAVE}, 7")
    A(f"s_add_u32 s{Q_T0}, s{Q_T0}, s{Q_T1}")
    A(f"v_lshl_add_u32 v6, v1, 1, s{Q_T0}")
    A(f"s_lshl_b32 s{Q_T0}, s{Q_PAIR}, 2")
    A("s_waitcnt lgkmcnt(0)")
    for i, p in enumerate((P_LA, P_AI, P_CR, P_CI)):
        A(f"global_load_ushort v{2+i}, v6, s[{p}:{p+1}]")
    A(f"s_load_dword s{Q_LDT}, s[{P_LDT}:{P_LDT+1}], s{Q_T0}")
    A(f"s_load_dword s{Q_DSK}, s[{P_DSK}:{P_DSK+1}], s{Q_T0}")
    A(f"s_add_u32 s28, s{P_WS}, {F_EP}")
    A(f"s_addc_u32 s29, s{P_WS+1}, 0")
    A(f"s_cmp_eq_u32 s{S_WAVE}, 1")
    A("s_cbranch_scc0 S_NT")
    A("s_load_dword s30, s[28:29], 0")
    A.label("S_NT")
    A("s_barrier")
    if O.W2S is not None:
        srd(A, S_W2, P_W2, D*F*2)
        A(f"s_lshr_b32 s{Q_T0}, s{S_XCD}, 1")
        A(f"s_and_b32 s{Q_T1}, s{S_XCD}, 1")
        A(f"s_lshl_b32 s{Q_T1}, s{Q_T1}, 2")
        A(f"s_add_u32 s{Q_T0}, s{Q_T0}, s{Q_T1}")
        A(f"s_lshl_b32 s{Q_T0}, s{Q_T0}, 5")
        A(f"s_add_u32 s{Q_T0}, s{Q_T0}, s{S_J}")
        A(f"s_mul_i32 s{Q_T0}, s{Q_T0}, 7168")
        A(f"s_mul_i32 s{Q_T1}, s{S_WAVE}, 1792")
        A(f"s_add_u32 s{Q_T0}, s{Q_T0}, s{Q_T1}")
        A("v_min_u32 v39, 13, v1")
        A("v_lshlrev_b32 v39, 7, v39")
        A(f"buffer_load_dword v39, v39, s[{S_W2}:{S_W2+3}], s{Q_T0} offen {O.PFL2}")
    def pre():
        srd(A, S_X, P_U, L*D*2); srd(A, S_W1, P_W1, D*F*2); srd(A, S_W2, P_W2, D*F*2)
        srd(A, S_WS, P_WS, WS_BYTES)
        loader_setup(A)
    def tokpub():
        tss(A, 2, "ak")
        A(f"s_cmp_eq_u32 s{S_WAVE}, 1")
        A("s_cbranch_scc0 S_NP")
        A("s_mul_i32 s30, s30, 0x9e3779a1")
        A("s_add_u32 s30, s30, 0x7f4a7c10")
        A("s_and_b32 s30, s30, -16")
        A("s_and_b32 s31, s31, 15")
        A("s_or_b32 s31, s31, s30")
        A(f"v_mov_b32 v{STOK}, s30")
        A(f"v_mov_b32 v{STOK+1}, 1")
        A(f"v_mov_b32 v34, {L_RDY}")
        A(f"ds_write_b64 v34, {vr(STOK,2)}")
        A(f"v_mov_b32 v35, s31")
        A(f"s_lshl_b32 s28, s2, {FS}")
        A(f"s_add_u32 s28, s28, {F_HERE}")
        flag_store(A, 28, 36, 35)
        A.label("S_NP")
    kgen(A, later=0 if O.W2S is None else 1, hookA=tokpub, pre=pre, hook=lambda: tss(A, 3, "k"))
    tss(A, 4, "k")
    kgen_exchange_write(A)
    A("s_waitcnt lgkmcnt(0)")
    sw_arrive(A, S_FOWN, S_FT, 1)
    def kfin():
        sw_wait(A, S_FRD, S_FT, 1, sleep=1)
        kgen_final(A)
        token_get(A, 8, STOK)
    tss(A, 3, "a")
    A(f"s_cmp_eq_u32 s{Q_C}, 1")
    A("s_cbranch_scc1 S_LD")
    kfin()
    tss(A, 5, "k")
    A(f"s_cmp_eq_u32 s{S_WAVE}, 1")
    A("s_cbranch_scc1 S_VD")
    A(f"s_lshl_b32 s{Q_T0}, s{S_XCD}, {4+FS}")
    A(f"s_add_u32 s{Q_T0}, s{Q_T0}, {F_UT}")
    A("v_and_b32 v8, 15, v1")
    A(f"v_lshl_add_u32 v8, v8, {FS}, s{Q_T0}")
    poll(A, 8, 9, STOK, "PU")
    ut2(A)
    A("s_branch S_CV")
    A.label("S_VD")
    if O.VERD:
        A(f"s_and_b32 s{Q_T0}, s2, 31")
        A(f"s_lshl_b32 s{Q_T0}, s{Q_T0}, {FS}")
        A(f"s_add_u32 s{Q_T0}, s{Q_T0}, {F_HERE}")
        A("v_and_b32 v8, 7, v1")
        A(f"v_lshl_add_u32 v8, v8, {5+FS}, s{Q_T0}")
        poll(A, 8, 9, STOK, "PV", mask=True)
        A("v_cmp_ne_u32 vcc, s31, v9")
        A("s_cmp_eq_u64 vcc, 0")
        A(f"s_cselect_b32 s{Q_T0}, 1, 2")
        A(f"v_mov_b32 v9, s{Q_T0}")
        A(f"v_mov_b32 v8, {L_VERD}")
        A("ds_write_b32 v8, v9")
    A("s_cmp_eq_u32 s2, 0")
    A("s_cbranch_scc0 S_CV")
    for i in range(4):
        A(f"v_lshlrev_b32 v8, {FS}, v1")
        A(f"v_add_u32 v8, {F_HERE+(64<<FS)*i}, v8")
        poll(A, 8, 9, STOK, "PE", mask=True)
    A(f"s_mov_b32 s{Q_T0}, {F_EP}")
    flag_store(A, Q_T0, 8, STOK)
    A("s_branch S_CV")
    A.label("S_LD")
    loader(A, kfin)

(flow2 if O.DL else flow1)()
A.label("S_CV")
conv_setup(A)
A(f"v_mov_b32 v{LV}, 12"); A(f"v_mov_b32 v{LV+1}, 12")
s_barrier(A, 2)
tss(A, 4, "a")
if O.CPRIO != O.SPRIO: A(f"s_setprio {O.CPRIO}")
conv(A, inj=(O.PUBM, ["s_waitcnt vmcnt(0)", f"ds_write_b64 v{LSA}, {vr(LV,2)}"]))
if O.CPRIO != O.TPRIO: A(f"s_setprio {O.TPRIO}")
s_barrier(A, 3)
conv_final(A, "sc1")
s_tail(A)
fin(A, "S")
A.label("K_END")
A("s_endpgm")
kernel_desc(A, KN, 256)
open(sys.argv[1], "w").write(A.text())
```

```python
import sys; sys.path.insert(0, "gen")
import parts
from parts import *
import ssm
from ssm import *

class Opt: pass
O = Opt()
O.TS = False
O.ROT = (0, 0, 2, 1)
O.SPRIO = 3; O.CPRIO = 0; O.GPRIO = 1; O.TPRIO = 3
O.CODEPF = True
O.ECP = 0
import math
O.SPIN = 100000
O.SLP = 4; O.HSLP = 1
O.TSC = None; O.TSG = "a"; O.TSS = "a"
O.ARR = 1
O.DEPTH = 14
O.PUBM = 12
O.SLOW = False
O.DIAG = None
O.HFS = 8
O.HLD = "sc1"; O.HST = "sc1"; O.GHOLD = False; O.VERD = False; O.NA = 4; O.PFD = 2; O.NOPK = True; O.KG2 = True; O.KLO = "pk"; O.KHI = "sc"; O.LFIN = 7; O.TOUCH = False; O.PST = "sc1"; O.AFIRST = False; O.XFL = ""; O.W1FL = ""; O.W2FL = ""; O.TFL = "nt"; O.UFL = ""; O.PDLY = 0; O.LOOK = 4; O.PFL = 99; O.L3 = "i"; O.IPRIO = 3; O.TAILK = 0
O.X2 = ""; O.ST = (1, 14, 28, 42)
O.HAB = False; O.BS = 8; O.FA = 6; O.PW = False; O.TCH = ""; O.TR = 2; O.W2H = False; O.PT = ""; O.APS = 3; O.XF = 0; O.RSLP = 0; O.XQ = None; O.XR = 2; O.TL3 = False; O.ASTEP = 48
O.GW2 = False; O.GW2N = 3; O.W2AF = 0; O.UW = 3
O.TL2 = False; O.PSTEP = 52; O.SPG = 3; O.POLW = 3; O.ASLP = 8
O.GPRE = 1
O.DL = False; O.LPRIO = 3; O.LSLP = 1; O.LDLY = 0
O.W2S = None
O.W2P = ((), (), (), ()); O.PFL2 = ""; O.UOWN = False
O.LA = 1; O.RSP = (2, 4, 6); O.PPOS = 0
O.DSL = (6, 7, 8, 10, 11, 12, 14, 15)
O.PAW = 2
for a in sys.argv[2:]: exec("O." + a)
parts.TS = O.TS
ssm.KG2 = O.KG2; ssm.KLO = O.KLO; ssm.KHI = O.KHI
parts.gflag_setup = lambda A: None

LF = LDS_SSM + 31744
L_GL, L_GD, L_SB, L_SL, L_RDY, L_HOK, L_VERD = LF, LF + 16, LF + 32, LF + 48, LF + 64, LF + 72, LF + 76
L_AOK = LF + 80
L_DUMMY = LF + 128
ssm.LDS_SFLAG = L_SB
FS = 8
F_HERE, F_UT, F_G, F_A, F_H, F_P, F_EP = [WS_FLAG + (x << FS) for x in (0, 256, 384, 512, 1536, 2560, 3584)]
assert F_EP + 256 <= (13 << 20)
WS_P = 16 << 20
WS_BYTES = (24 if O.TL3 else 20) << 20
WS_A2 = 20 << 20
STOK = 32
S_W8, S_SPIN, S_HF = 27, 85, 32

parts_ts = ts
def tsg(A, i, mode="a"):
    if O.TSC: return
    if O.TSG in mode: parts_ts(A, i)
def tss(A, i, mode="a"):
    if O.TSS in mode: parts_ts(A, i)

class Vm:
    def __init__(self, A): self.A = A; self.n = 0; self.done = 0
    def op(self, s):
        self.A(s)
        if s.startswith("buffer_") or s.startswith("global_"): self.n += 1
        return self.n
    def cnt(self, idn):
        k = min(self.n - idn, 63); self.done = max(self.done, self.n - k); return k
    def wait(self, idn, extra=""):
        if idn <= self.done:
            if extra: self.A(f"s_waitcnt {extra}")
            return
        self.A(f"s_waitcnt vmcnt({self.cnt(idn)}) {extra}")

def poll(A, vaddr, vt, tok, name, slp=None, mask=False):
    l = A.newlabel(name); d = A.newlabel(name)
    A(f"s_mov_b32 s{S_SPIN}, {O.SPIN}")
    A.label(l)
    A(f"buffer_load_dword v{vt}, v{vaddr}, s[{S_WS}:{S_WS+3}], 0 offen sc1")
    A("s_waitcnt vmcnt(0)")
    if mask:
        A(f"v_and_b32 v{vt+1}, -16, v{vt}")
        A(f"v_cmp_ne_u32 vcc, v{tok}, v{vt+1}")
    else:
        A(f"v_cmp_ne_u32 vcc, v{tok}, v{vt}")
    A(f"s_cbranch_vccz {d}")
    A(f"s_sleep {O.SLP if slp is None else slp}")
    A(f"s_sub_u32 s{S_SPIN}, s{S_SPIN}, 1")
    A(f"s_cbranch_scc0 {l}")
    A.label(d)

def lwait(A, vaddr, off, vt, val, issued=False, sleep=1):
    lab = A.newlabel("LW"); done = A.newlabel("LWD")
    if not issued: A(f"ds_read_b32 v{vt}, v{vaddr} offset:{off}")
    A("s_waitcnt lgkmcnt(0)")
    A(f"v_cmp_gt_u32 vcc, {val}, v{vt}")
    A(f"s_cbranch_vccz {done}")
    A.label(lab)
    if sleep: A(f"s_sleep {sleep}")
    A(f"ds_read_b32 v{vt}, v{vaddr} offset:{off}")
    A("s_waitcnt lgkmcnt(0)")
    A(f"v_cmp_gt_u32 vcc, {val}, v{vt}")
    A(f"s_cbranch_vccnz {lab}")
    A.label(done)

def token_get(A, va, tok):
    l = A.newlabel("RW"); d = A.newlabel("RW")
    A(f"v_mov_b32 v{va}, {L_RDY}")
    A.label(l)
    A(f"ds_read_b64 {vr(tok,2)}, v{va}")
    A("s_waitcnt lgkmcnt(0)")
    A(f"v_cmp_ne_u32 vcc, 1, v{tok+1}")
    A(f"s_cbranch_vccz {d}")
    A("s_sleep 1")
    A(f"s_branch {l}")
    A.label(d)

def flag_store(A, soff, va, vt, fl="sc1"):
    A(f"v_mov_b32 v{va}, 0")
    A("s_mov_b64 exec, 1")
    A(f"buffer_store_dword v{vt}, v{va}, s[{S_WS}:{S_WS+3}], s{soff} offen {fl}")
    A("s_mov_b64 exec, -1")

def rot_c0(A, dst, t0):
    a, b, c, d = O.ROT
    A(f"s_mov_b32 s{dst}, 0")
    if a: A(f"s_and_b32 s{t0}, s{S_J}, 3"); A(f"s_mul_i32 s{dst}, s{t0}, {a}")
    if b: A(f"s_lshr_b32 s{t0}, s{S_J}, 2"); A(f"s_mul_i32 s{t0}, s{t0}, {b}"); A(f"s_add_u32 s{dst}, s{dst}, s{t0}")
    if c: A(f"s_lshr_b32 s{t0}, s{S_XCD}, 1"); A(f"s_mul_i32 s{t0}, s{t0}, {c}"); A(f"s_add_u32 s{dst}, s{dst}, s{t0}")
    if d: A(f"s_and_b32 s{t0}, s{S_XCD}, 1"); A(f"s_mul_i32 s{t0}, s{t0}, {d}"); A(f"s_add_u32 s{dst}, s{dst}, s{t0}")

GOWN, GRD, GT, HV, AR, RW, FV, VTOK, GX = 50, 51, 52, 54, 56, 58, 59, 60, 62
ACCA, ACCB, AF, PK, HR0 = 64, 96, 128, 168, 184
OV, RX, TV = 55, 63, 49
FVB = 48
S_OO, S_PO, S_P1, S_PF = 76, 77, 78, 79
L_T = LDS_SSM
STMP = 160
S_HL, S_HR, S_C0 = 80, 81, 84

def g_flags_setup(A):
    A(f"s_lshl_b32 s{S_T0}, s{S_WAVE}, 2")
    A(f"s_add_u32 s{S_T0}, s{S_T0}, {LF}")
    A(f"v_mov_b32 v{GOWN}, s{S_T0}")
    A(f"v_and_b32 v{GRD}, 3, v1")
    A(f"v_lshlrev_b32 v{GRD}, 2, v{GRD}")
    A(f"v_add_u32 v{GRD}, {LF}, v{GRD}")

def g2_setup(A):
    w = S_WAVE; T = 30
    A(f"s_and_b32 s{S_T0}, s{S_XCD}, 6")
    A(f"s_lshl_b32 s{S_T0}, s{S_T0}, 1")
    A(f"s_and_b32 s{S_T1}, s{S_J}, 3")
    A(f"s_add_u32 s{S_T0}, s{S_T0}, s{S_T1}")
    A(f"s_and_b32 s{S_T1}, s{S_XCD}, 1")
    A(f"s_lshl_b32 s{S_HF}, s{S_T0}, 1")
    A(f"s_add_u32 s{S_HF}, s{S_HF}, s{S_T1}")
    A(f"s_lshl_b32 s{S_HF}, s{S_HF}, {5+O.HFS}")
    A(f"s_add_u32 s{S_HF}, s{S_HF}, {F_H}")
    A(f"v_min_u32 v{T}, 27, v1")
    A(f"v_lshl_add_u32 v{FV}, v{T}, {O.HFS}, s{S_HF}")
    if O.HAB:
        A(f"s_and_b32 s{S_HR}, s{w}, 1")
        A(f"s_lshl_b32 s{S_HR}, s{S_HR}, 1")
        A(f"s_lshr_b32 s{S_HL}, s{w}, 1")
        A(f"s_add_u32 s{S_HR}, s{S_HR}, s{S_HL}")
        A(f"s_mul_i32 s{S_HR}, s{S_HR}, 7")
        A(f"v_min_u32 v{T}, 6, v1")
        A(f"v_add_u32 v{T}, s{S_HR}, v{T}")
        A(f"v_lshl_add_u32 v{FV if O.PW else FVB}, v{T}, {O.HFS}, s{S_HF}")
        A(f"v_add_u32 v{FVB}, {F_P-F_H}, v{FV if O.PW else FVB}")
    A(f"s_lshl_b32 s{S_T0}, s{S_T0}, 2")
    A(f"s_and_b32 s{S_HR}, s{w}, 1")
    A(f"s_add_u32 s{S_T0}, s{S_T0}, s{S_HR}")
    A(f"s_lshl_b32 s{S_OO}, s{S_T1}, 1")
    A(f"s_add_u32 s{S_OO}, s{S_OO}, s{S_T0}")
    A(f"s_xor_b32 s{S_HL}, s{S_OO}, 2")
    A(f"s_mul_i32 s{S_HL}, s{S_HL}, 112")
    A(f"s_mul_i32 s{S_HR}, s{S_OO}, 112")
    A(f"s_lshl_b32 s{S_T1}, s{S_T1}, 1")
    A(f"s_lshr_b32 s{S_T0}, s{w}, 1")
    A(f"s_add_u32 s{S_T1}, s{S_T1}, s{S_T0}")
    A(f"s_mul_i32 s{S_T1}, s{S_T1}, 28")
    A(f"s_add_u32 s{S_HL}, s{S_HL}, s{S_T1}")
    A(f"s_add_u32 s{S_HR}, s{S_HR}, s{S_T1}")
    A(f"s_lshl_b32 s{S_HL}, s{S_HL}, 10")
    A(f"s_lshl_b32 s{S_HR}, s{S_HR}, 10")
    A(f"s_lshl_b32 s{S_OO}, s{S_OO}, 15")
    A(f"s_lshr_b32 s{S_T1}, s{S_J}, 2")
    A(f"s_lshl_b32 s{S_T1}, s{S_T1}, 1")
    A(f"s_add_u32 s{S_T1}, s{S_T1}, s{S_T0}")
    A(f"s_lshl_b32 s{S_T1}, s{S_T1}, 6")
    A(f"s_add_u32 s{S_OO}, s{S_OO}, s{S_T1}")
    A(f"v_lshlrev_b32 v{HV}, 4, v1")
    A(f"s_lshl_b32 s{S_T1}, s{w}, 15")
    A(f"v_add_u32 v{RW}, s{S_T1}, v{HV}")
    A(f"v_xor_b32 v{RX}, 0x10000, v{RW}")
    A(f"s_lshl_b32 s{S_T1}, s{w}, 12")
    A(f"s_add_u32 s{S_T1}, s{S_T1}, {L_T}")
    A(f"v_add_u32 v{TV}, s{S_T1}, v{HV}")
    A(f"v_lshrrev_b32 v{T+1}, 5, v1")
    A(f"v_and_b32 v{T}, 31, v1")
    A(f"v_lshlrev_b32 v{T}, 10, v{T}")
    A(f"v_lshl_add_u32 v{OV}, v{T+1}, 4, v{T}")
    A(f"v_bfe_u32 v{T+2}, v1, 2, 2")
    A(f"v_bfe_u32 v{T+3}, v1, 4, 1")
    A(f"v_bfe_u32 v{T+4}, v1, 1, 1")
    A(f"v_lshl_add_u32 v{T+3}, v{T+3}, 1, v{T+4}")
    A(f"v_bfe_u32 v{T+4}, v1, 3, 1")
    A(f"v_xor_b32 v{T+4}, s{S_T0}, v{T+4}")
    A(f"v_lshl_add_u32 v{T+3}, v{T+4}, 2, v{T+3}")
    A(f"v_lshl_add_u32 v{T+2}, v{T+1}, 2, v{T+2}")
    A(f"v_lshlrev_b32 v{T+2}, 7, v{T+2}")
    A(f"v_lshl_add_u32 v{T+2}, v{T+3}, 4, v{T+2}")
    A(f"v_and_b32 v{T+4}, 1, v1")
    A(f"v_lshl_add_u32 v{T+2}, v{T+4}, 3, v{T+2}")
    A(f"s_lshl_b32 s{S_T0}, s{S_T0}, 16")
    A(f"v_add_u32 v{AR}, s{S_T0}, v{T+2}")
    A(f"v_xor_b32 v{AR+1}, 64, v{AR}")

def w2_read(i):
    k = i % 28; dst = AF + 8 * (i % O.NA)
    o = (k // 14) * 32768 + 4096 + (k % 14) * 2048
    return [f"ds_read_b64_tr_b16 {vr(dst+4*a+2*x,2)}, v{AR+a} offset:{o+x*1024}" for a in range(2) for x in range(2)]
HQ = {}
def h_load(i):
    base, k = (S_HL, i) if i < 28 else (S_HR, i - 28)
    pre = [f"s_add_u32 s{S_T0}, s{base}, {k*1024}"] if k % 4 == 0 else []
    return pre + [f"buffer_load_dwordx4 {vr(HQ[i],4)}, v{HV}, s[{S_WS}:{S_WS+3}], s{S_T0} offen offset:{(k%4)*1024} {O.HLD}"]

def g_chunk_dma(cc):
    slot = cc % 4
    out = [f"s_add_u32 s{S_HO}, s{S_C0}, {cc}", f"s_and_b32 s{S_HO}, s{S_HO}, 7",
           f"s_lshl_b32 s{S_T1}, s{S_HO}, 7", f"s_add_u32 m0, s{S_M0X}, {slot*32768}", f"s_add_u32 s{S_T1}, s{S_T1}, s{S_XO}"]
    for i in range(4):
        out.append(f"buffer_load_dwordx4 v{G1_XD+i}, s[{S_X}:{S_X+3}], s{S_T1} offen offset:{i*1024} {O.XFL} lds")
    out += [f"s_mul_i32 s{S_T1}, s{S_HO}, {64*2*F}", f"s_add_u32 m0, s{S_M0X}, {slot*32768+16384}", f"s_add_u32 s{S_T1}, s{S_T1}, s{S_WO}"]
    for i in range(4):
        out.append(f"buffer_load_dwordx4 v{G1_WD+i}, s[{S_W1}:{S_W1+3}], s{S_T1} offen offset:{i*1024} {O.W1FL} lds")
    return out

VW2, S_W2O, S_W2M = 22, 78, 79
def gw2_setup(A):
    w = S_WAVE
    srd(A, S_W2, P_W2, D*F*2)
    A("v_lshrrev_b32 v30, 3, v1")
    A("v_and_b32 v31, 7, v1")
    A("v_bfe_u32 v32, v1, 4, 1")
    A("v_lshlrev_b32 v32, 2, v32")
    A("v_xor_b32 v31, v31, v32")
    A("v_lshlrev_b32 v30, 10, v30")
    A(f"v_lshl_add_u32 v{VW2}, v31, 4, v30")
    A(f"s_and_b32 s{S_T0}, s{S_XCD}, 1")
    A(f"s_lshl_b32 s{S_T0}, s{S_T0}, 3")
    A(f"s_and_b32 s{S_T1}, s{w}, 1")
    A(f"s_add_u32 s{S_T0}, s{S_T0}, s{S_T1}")
    A(f"s_mul_i32 s{S_W2O}, s{S_T0}, {7*16384}")
    A(f"s_mul_i32 s{S_W2M}, s{S_T1}, {7*2048}")
    A(f"s_lshr_b32 s{S_T0}, s{S_J}, 2")
    A(f"s_lshl_b32 s{S_T0}, s{S_T0}, 7")
    A(f"s_add_u32 s{S_W2O}, s{S_W2O}, s{S_T0}")
    A(f"s_lshr_b32 s{S_T0}, s{w}, 1")
    A(f"s_lshl_b32 s{S_T1}, s{S_T0}, 13")
    A(f"s_add_u32 s{S_W2O}, s{S_W2O}, s{S_T1}")
    A(f"s_lshl_b32 s{S_T1}, s{S_T0}, 10")
    A(f"s_add_u32 s{S_W2M}, s{S_W2M}, s{S_T1}")
def gw2_dma(sl):
    out = []
    for k in range(7):
        out += [f"s_add_u32 m0, s{S_W2M}, {sl*32768+4096+k*2048}", f"s_add_u32 s{S_T1}, s{S_W2O}, {(14*sl+k)*16384}",
                f"buffer_load_dwordx4 v{VW2}, s[{S_W2}:{S_W2+3}], s{S_T1} offen {O.W2FL} lds"]
    return out

def g1_main(A, vm, cid):
    vm.wait(cid[0])
    A(f"v_mov_b32 v{GT}, 1"); A(f"ds_write_b32 v{GOWN}, v{GT}")
    lwait(A, GRD, 0, GT + 1, 1, sleep=0)
    for r in g1_reads(0): A(r)
    for c in range(8):
        if O.TSC and c in O.TSC: parts_ts(A, 2 + O.TSC.index(c))
        off = 0 if c + 1 < O.LOOK else 48
        own = 4 <= c + 3 < O.LOOK
        units = [u for u in split_groups(g_chunk_dma(c + 3), 8)] if own else []
        slots = O.DSL
        for s in range(4):
            t = 4 * c + s
            mf = g1_mfmas(t)
            pre = []
            if s == 3:
                if c < 7: lwait(A, GRD, off, GT + 1, c + 2, issued=True, sleep=0)
                else: A("s_waitcnt lgkmcnt(0)")
                pre = [f"v_mov_b32 v{GT}, {c+1}", f"ds_write_b32 v{GOWN}, v{GT} offset:16"]
            elif s == O.ARR and c + 1 < O.LOOK:
                vm.wait(cid[c + 1], "lgkmcnt(0)")
                pre = [f"v_mov_b32 v{GT}, {c+2}", f"ds_write_b32 v{GOWN}, v{GT}"]
            else: A("s_waitcnt lgkmcnt(0)")
            if own and s == 1: lwait(A, GRD, 16, GX, c, issued=True, sleep=0)
            rd = g1_reads(t + 1) if t < 31 else []
            post = [f"ds_read_b32 v{GT+1}, v{GRD} offset:{off}"] if (s == 2 and c < 7) else []
            if own and s == 0: post.append(f"ds_read_b32 v{GX}, v{GRD} offset:16")
            def dm(g):
                if own:
                    for _ in range(slots.count(4 * s + g)):
                        for x in units.pop(0): vm.op(x)
                    if not units: cid[c + 3] = vm.n if c + 3 not in cid else cid[c + 3]
            A(mf[0])
            for x in rd[:3]: A(x)
            dm(0)
            A(mf[1])
            for x in rd[3:]: A(x)
            dm(1)
            A(mf[2])
            for x in pre + post: A(x)
            if c == 0 and O.LOOK >= 4 and O.L3 == "i":
                for x in split_groups(g_chunk_dma(3), 4)[s]: vm.op(x)
                cid[3] = vm.n
            dm(2)
            A(mf[3])
            dm(3)
        assert not units

_g1_reads = g1_reads
def g1_reads(t):
    out = _g1_reads(t)
    if O.HAB:
        c, s_ = divmod(t, 4); lo = ((c % 4) % 2) * 32768
        out[5] = out[5].replace(f"offset:{lo+4096}", f"offset:{lo+8192}")
    return out
def hab_setup(A):
    A(f"s_and_b32 s{S_T0}, s{S_XCD}, 1")
    A(f"s_xor_b32 s{S_T0}, s{S_T0}, 1")
    A(f"s_lshl_b32 s{S_T0}, s{S_T0}, 16")
    A(f"s_xor_b32 s{S_XO}, s{S_XO}, s{S_T0}")
def hab_setup2(A):
    A(f"s_lshr_b32 s{S_T0}, s{S_WAVE}, 1")
    A(f"s_lshl_b32 s{S_T0}, s{S_T0}, 12")
    for k in range(8): A(f"v_subrev_u32 v{G1_XR+k}, s{S_T0}, v{G1_XR+k}")

def g1_fr(lst, t, ns):
    import re
    o = G1_FR + (t % 2) * 16; n = G1_FR + (t % ns) * 16
    def f(m):
        a, b = int(m.group(1)), int(m.group(2))
        if o <= a < o + 16: return f"v[{a-o+n}:{b-o+n}]"
        return m.group(0)
    return [re.sub(r"v\[(\d+):(\d+)\]", f, x) for x in lst]

def lchk(A, vaddr, off, vt, val):
    lab = A.newlabel("LW"); done = A.newlabel("LWD")
    A(f"v_cmp_gt_u32 vcc, {val}, v{vt}")
    A(f"s_cbranch_vccz {done}")
    A.label(lab)
    A(f"ds_read_b32 v{vt}, v{vaddr} offset:{off}")
    A("s_waitcnt lgkmcnt(0)")
    A(f"v_cmp_gt_u32 vcc, {val}, v{vt}")
    A(f"s_cbranch_vccnz {lab}")
    A.label(done)

def g1_main2(A, vm, cid):
    LA = O.LA; NS = LA + 1
    lg = Lg(A); rid = {}
    vm.wait(cid[0])
    A(f"v_mov_b32 v{GT}, 1"); A(f"ds_write_b32 v{GOWN}, v{GT}")
    lwait(A, GRD, 0, GT + 1, 1, sleep=0)
    for t in range(LA):
        for r in g1_fr(g1_reads(t), t, NS): rid[t] = lg.op(r)
    sc = 4 - LA
    for c in range(8):
        if O.TSC and c in O.TSC: parts_ts(A, 2 + O.TSC.index(c))
        off = 0 if c + 1 < O.LOOK else 48
        own = 4 <= c + 3 < O.LOOK
        units = [u for u in split_groups(g_chunk_dma(c + 3), 8)] if own else []
        if O.GW2 and c >= 5 and c - 5 < O.GW2N:
            own = True; units = split_groups(gw2_dma(c - 5), 7) + [[]]
        for s in range(4):
            t = 4 * c + s
            mf = g1_fr(g1_mfmas(t), t, NS)
            need = rid[t]
            if s == sc and c < 7: need = max(need, pid)
            if own and s == 1: need = max(need, did)
            first = []; pre = []
            if s == O.ARR and c + 1 < O.LOOK:
                vm.wait(cid[c + 1])
                first += [f"ds_write_b32 v{GOWN}, v{GT}"]
                A(f"v_mov_b32 v{GT}, {c+2}")
            lg.wait(need)
            if s == sc and c < 7: lchk(A, GRD, off, GT + 1, c + 2)
            if own and s == 1: lchk(A, GRD, 16, GX, c)
            if s == 3: pre = [f"v_mov_b32 v{GT}, {c+1}", f"ds_write_b32 v{GOWN}, v{GT} offset:16"]
            rd = g1_fr(g1_reads(t + LA), t + LA, NS) if t + LA < 32 else []
            def dm(g):
                if own:
                    for _ in range(O.DSL.count(4 * s + g)):
                        for x in units.pop(0): vm.op(x)
                    if not units and c + 3 not in cid: cid[c + 3] = vm.n
            def em(x):
                if x.startswith("ds_"): return lg.op(x)
                A(x)
            sp = O.RSP
            A(mf[0])
            for x in first + pre: em(x)
            if s == sc - 1 and c < 7 and O.PPOS == 0: pid = lg.op(f"ds_read_b32 v{GT+1}, v{GRD} offset:{off}")
            if own and s == 0: did = lg.op(f"ds_read_b32 v{GX}, v{GRD} offset:16")
            for x in rd[:sp[0]]: rid[t + LA] = lg.op(x)
            dm(0)
            A(mf[1])
            for x in rd[sp[0]:sp[1]]: rid[t + LA] = lg.op(x)
            dm(1)
            A(mf[2])
            if s == sc - 1 and c < 7 and O.PPOS == 2: pid = lg.op(f"ds_read_b32 v{GT+1}, v{GRD} offset:{off}")
            for x in rd[sp[1]:sp[2]]: rid[t + LA] = lg.op(x)
            if c == 0 and O.LOOK >= 4 and O.L3 == "i":
                for x in split_groups(g_chunk_dma(3), 4)[s]: vm.op(x)
                cid[3] = vm.n
            dm(2)
            A(mf[3])
            for x in rd[sp[2]:]: rid[t + LA] = lg.op(x)
            dm(3)
        assert not units

def silu_np(A, regs, tmp):
    n = len(regs)
    for i, (s, d) in enumerate(regs):
        for e in range(2): A(f"v_mul_f32 v{tmp+2*i+e}, s{S_CL}, v{s+e}")
    for i in range(2 * n): A(f"v_exp_f32 v{tmp+i}, v{tmp+i}")
    for i in range(2 * n): A(f"v_add_f32 v{tmp+i}, 1.0, v{tmp+i}")
    for i in range(2 * n): A(f"v_rcp_f32 v{tmp+i}, v{tmp+i}")
    for i, (s, d) in enumerate(regs):
        for e in range(2): A(f"v_mul_f32 v{tmp+2*i+e}, v{tmp+2*i+e}, v{s+e}")
    for i, (s, d) in enumerate(regs):
        A(f"v_cvt_pk_bf16_f32 v{d}, v{tmp+2*i}, v{tmp+2*i+1}")

def split_groups(lst, n):
    units = []; cur = []
    for x in lst:
        cur.append(x)
        if x.startswith("buffer_"): units.append(cur); cur = []
    g = [[] for _ in range(n)]
    for i, u in enumerate(units): g[i * n // len(units)] += u
    return g

def g1_epi(A):
    w = S_WAVE
    if O.VERD:
        A(f"v_mov_b32 v{GX}, {L_RDY}")
        A(f"ds_read_b32 v{GT}, v{GX} offset:{L_VERD-L_RDY}")
    A(f"s_lshl_b32 s{S_HO}, s{S_RB}, 2")
    A(f"s_and_b32 s{S_T0}, s{w}, 2")
    A(f"s_add_u32 s{S_HO}, s{S_HO}, s{S_T0}")
    A(f"s_mul_i32 s{S_T1}, s{S_T0}, 7")
    A(f"s_mul_i32 s{S_HO}, s{S_HO}, 112")
    A(f"s_lshl_b32 s{S_T0}, s{S_CB}, 3")
    A(f"s_add_u32 s{S_HO}, s{S_HO}, s{S_T0}")
    A(f"s_and_b32 s{S_T0}, s{w}, 1")
    A(f"s_add_u32 s{S_T1}, s{S_T1}, s{S_T0}")
    A(f"s_lshl_b32 s{S_T0}, s{S_T0}, 2")
    A(f"s_add_u32 s{S_HO}, s{S_HO}, s{S_T0}")
    A(f"s_lshr_b32 s{S_T0}, s{S_J}, 2")
    A(f"s_lshl_b32 s{S_T0}, s{S_T0}, 1")
    A(f"s_add_u32 s{S_T1}, s{S_T1}, s{S_T0}")
    A(f"s_lshl_b32 s{S_T1}, s{S_T1}, {O.HFS}")
    A(f"s_add_u32 s{S_HF}, s{S_HF}, s{S_T1}")
    A(f"s_lshl_b32 s{S_HO}, s{S_HO}, 10")
    A(f"s_add_u32 s{S_XO}, s{S_HO}, {112*1024}")
    if O.HAB:
        A(f"s_lshr_b32 s{S_T0}, s{w}, 1")
        A(f"s_mul_i32 s{S_T0}, s{S_T0}, {112*1024}")
        A(f"s_sub_u32 s{S_XO}, s{S_HO}, s{S_T0}")
        A(f"s_and_b32 s{S_T0}, s{S_XCD}, 1")
        A(f"s_mul_i32 s{S_T0}, s{S_T0}, {224*1024}")
        A(f"s_add_u32 s{S_HO}, s{S_XO}, {224*1024}")
        A(f"s_sub_u32 s{S_HO}, s{S_HO}, s{S_T0}")
        A(f"s_add_u32 s{S_XO}, s{S_XO}, s{S_T0}")
        token_get(A, GX, VTOK)
    st = []
    p = 0
    for a, b in ([(0,0),(1,0),(0,1),(1,1)] if O.HAB else [(0,0),(0,1),(1,0),(1,1)]):
        if True:
            acc = G1_ACC + (2*a+b)*16
            for fh in range(2):
                dst = G1_FR + p * 4
                (silu_np if O.NOPK else silu_pairs)(A, [(acc + 8*fh + 2*i, dst + i) for i in range(4)], STMP)
                so = S_HO if b == 0 else S_XO
                st.append(f"buffer_store_dwordx4 {vr(dst,4)}, v{HV}, s[{S_WS}:{S_WS+3}], s{so} offen offset:{(2*a+fh)*1024}")
                if O.HAB and p == O.FA:
                    A(f"s_waitcnt vmcnt({p-4})")
                    flag_store(A, S_HF, GT, VTOK, O.HST)
                    tsg(A, 3, "h")
                    A(f"s_add_u32 s{S_HF}, s{S_HF}, {F_P-F_H}")
                A(st[-1] + " " + O.HST)
                p += 1
    tsg(A, 5, "e")
    if O.GW2:
        token_get(A, GX, VTOK)
        lwait(A, GRD, 16, GT, 8, sleep=0)
        n = 0
        if O.W2AF == 0:
            for sl in range(O.GW2N, 4):
                for x in gw2_dma(sl): A(x)
                n += 7
        A(f"s_waitcnt vmcnt({n})")
        flag_store(A, S_HF, GT, VTOK, O.HST)
        if O.W2AF == 1:
            for sl in range(O.GW2N, 4):
                for x in gw2_dma(sl): A(x)
        return
    if not O.VERD:
        if not O.HAB: token_get(A, GX, VTOK)
        A("s_waitcnt vmcnt(0)")
        flag_store(A, S_HF, GT, VTOK, O.HST)
        return
    lwait(A, GX, L_VERD - L_RDY, GT, 1, issued=True)
    A(f"ds_read_b64 {vr(VTOK,2)}, v{GX}")
    A(f"v_cmp_eq_u32 vcc, {1 if not O.SLOW else 7}, v{GT}")
    A("s_waitcnt vmcnt(0) lgkmcnt(0)")
    A("s_cbranch_vccz G_SLOW")
    flag_store(A, S_HF, GT, VTOK, O.HST)
    A("s_branch G_FD")
    A.label("G_SLOW")
    for x in st: A(x + " sc1")
    A("s_waitcnt vmcnt(0)")
    flag_store(A, S_HF, GT, VTOK)
    A.label("G_FD")

def g2_main(A):
    vm = Vm(A); lg = Lg(A)
    hid = {}; wid = {}
    assert HR0 + 4 * O.DEPTH <= 256 and AF + 8 * O.NA <= PK
    sched = {}; free = [HR0 + 4 * k for k in range(O.DEPTH)]; nx = 0
    for stp in range(0, 56):
        if stp >= 1: free.append(HQ[stp - 1])
        if O.XQ and stp == O.XQ[0]: free += [2 + 4 * k for k in range(8)]
        if O.XQ and stp == O.XQ[1]: free += [ACCA + 4 * k for k in range(8)]
        sched[stp] = []
        while nx < 56 and free and len(sched[stp]) < (O.DEPTH if stp == 0 else O.XR):
            HQ[nx] = free.pop(0); sched[stp].append(nx); nx += 1; lasts = stp
    for i in sched[0]:
        for x in h_load(i): vm.op(x)
        hid[i] = vm.n
    for i in range(O.PFD): wid[i] = 0
    send = []
    for t in range(2):
        for hf in range(2):
            send += [f"v_cvt_pk_bf16_f32 v{PK+8*t+4*hf+k}, v{ACCA+16*t+8*hf+2*k}, v{ACCA+16*t+8*hf+2*k+1}" for k in range(4)]
            send.append(f"ds_write_b128 v{RW}, {vr(PK+8*t+4*hf,4)} offset:{2048*t+1024*hf}")
    send += [f"v_mov_b32 v{GT+1}, 9", f"ds_write_b32 v{GOWN}, v{GT+1} offset:16"]
    if O.TS and O.TSG == "a" and not O.TSC: send.append(f"s_memtime s[{S_TS+10}:{S_TS+11}]")
    st = O.ST
    PR = 224
    pld = [f"buffer_load_dwordx4 {vr(PR+4*q,4)}, v{HV}, s[{S_WS}:{S_WS+3}], s{S_PO} offen offset:{1024*q} sc1" for q in range(4)]
    AL, GL_, VA0, SA0, SG0 = 240, 36, 38, 64, 68
    ald = []
    if O.TL3:
        A(f"s_lshr_b32 s{SG0}, s{S_OO}, 15")
        A(f"s_lshl_b32 s{SG0}, s{SG0}, 8")
        A(f"s_bfe_u32 s{SA0}, s{S_OO}, 0x40006")
        A(f"s_lshl_b32 s{SA0}, s{SA0}, 18")
        A(f"s_add_u32 s{SA0}, s{SA0}, s{SG0}")
        A(f"s_add_u32 s{SA0}, s{SA0}, {WS_A2}")
        A(f"s_add_u32 s{SG0}, s{SG0}, {WS_G}")
        for q in range(1, 4): A(f"s_add_u32 s{SA0+q}, s{SA0}, {q*65536}")
        A(f"v_and_b32 v{VA0+2}, 31, v1")
        A(f"v_lshlrev_b32 v{VA0+2}, 3, v{VA0+2}")
        A(f"v_lshrrev_b32 v{VA0}, 5, v1")
        A(f"v_lshl_add_u32 v{VA0}, v{VA0}, 15, v{VA0+2}")
        A(f"v_add_u32 v{VA0+1}, 16384, v{VA0}")
        ald = [f"buffer_load_dwordx2 {vr(GL_,2)}, v{VA0+2}, s[{S_WS}:{S_WS+3}], s{SG0} offen sc1"]
        ald += [f"buffer_load_dwordx2 {vr(AL+4*q+2*e,2)}, v{VA0+e}, s[{S_WS}:{S_WS+3}], s{SA0+q} offen sc1" for q in range(4) for e in range(2)]
    if O.TL2 or O.TL3:
        assert HR0 + 4 * O.DEPTH <= PR and O.PSTEP > lasts
        A(f"s_xor_b32 s{S_PO}, s2, 1")
        A(f"s_lshl_b32 s{S_PO}, s{S_PO}, 2")
        A(f"s_add_u32 s{S_PO}, s{S_PO}, s{S_WAVE}")
        A(f"s_lshl_b32 s{S_PO}, s{S_PO}, 12")
        A(f"s_add_u32 s{S_PO}, s{S_PO}, {WS_P}")
    for i in range(56):
        if O.TS and O.TSG == "s" and i in st: parts_ts(A, 2 + st.index(i))
        k = min(lg.n - wid[i], 15)
        need_l = wid[i] > lg.done
        if need_l: lg.done = lg.n - k
        vm.wait(hid[i], f"lgkmcnt({k})" if need_l else "")
        if O.HAB and 28 in sched[i]:
            vm.wait(bid)
            A(f"v_cmp_ne_u32 vcc, v{VTOK}, v{GT}")
            A("s_cbranch_vccz G_BD")
            poll(A, FVB, GT, VTOK, "PB", slp=O.HSLP)
            A.label("G_BD")
        fr = AF + 8 * (i % O.NA); hr = HQ[i]
        acc0 = ACCA if i < 28 else ACCB
        g = [[], []]
        if i + O.PFD < 56:
            rd = w2_read(i + O.PFD); g[0] += rd[:2]; g[1] += rd[2:]
        own = {}
        for q, nl in enumerate(sched[i] if i else []):
            hl = h_load(nl); own[hl[-1]] = nl
            g[min(q, 1)] += hl
        if i >= 29:
            for gi in range(2):
                for _ in range(O.SPG):
                    if send and not (O.XQ and O.XF and send[0].startswith("ds_write_b32") and (i, gi) < (lasts, 1)): g[gi].append(send.pop(0))
        if (O.TL2 or O.TL3) and i == O.PSTEP:
            g[1] += pld
        if O.TL3 and O.ASTEP <= i:
            q = i - O.ASTEP
            if O.APS == 3: g[0] += ald[3*q:3*q+2]; g[1] += ald[3*q+2:3*q+3]
            else: g[1] += ald[q:q+1]
        for m, t in enumerate((1, 0)):
            acc = acc0 + 16 * t
            c = "0" if i % 28 == 0 else vr(acc, 16)
            A(f"v_mfma_f32_32x32x16_bf16 {vr(acc,16)}, {vr(fr+4*t,4)}, {vr(hr,4)}, {c}" if "m" not in O.X2 else "s_nop 0")
            if i == 29 and m == 0: A("s_nop 1")
            for x in g[m]:
                if x.startswith("ds_"): lg.op(x)
                else:
                    vm.op(x)
                    if x in own: hid[own[x]] = vm.n
        if O.HAB and i == O.BS: bid = vm.op(f"buffer_load_dword v{GT}, v{FVB}, s[{S_WS}:{S_WS+3}], 0 offen sc1")
        if i + O.PFD < 56: wid[i + O.PFD] = lg.n
    T, R, GM = 2, 18, 34
    A(f"ds_read_b32 v{GT+1}, v{GRD} offset:32")
    A(f"v_mov_b32 v{GT}, 10")
    A(f"v_xor_b32 v{GX}, 8, v{GOWN}")
    A(f"s_lshl_b32 s{S_T0}, s{S_WAVE}, 8")
    A(f"s_add_u32 s{S_T0}, s{S_T0}, {L_T+16384}")
    A(f"v_lshl_add_u32 v{GM+1}, v1, 2, s{S_T0}")
    lwait(A, GRD, 32, GT + 1, 50, issued=True)
    A("s_nop 1")
    for q in range(4):
        A(f"ds_write_b128 v{RW}, {vr(ACCB+16+4*q,4)} offset:{q*1024}")
    A(f"ds_write_b32 v{GOWN}, v{GT} offset:16")
    if O.TL3:
        if O.PSTEP >= 56:
            for x in pld: A(x)
        tsg(A, 2, "f")
        lwait(A, GX, 16, GT + 1, 10, sleep=0)
        for q in range(4):
            A(f"ds_read_b128 {vr(R+4*q,4)}, v{RX} offset:{q*1024}")
        A(f"s_mov_b32 s{S_SPIN}, {O.SPIN}")
        def chk(name, tg, lds_, first):
            A(f"s_waitcnt vmcnt({first})")
            A.label(name + "L")
            acc = None
            tg = list(tg)
            if len(tg) % 2: A(f"v_xor_b32 v{GM}, v{VTOK}, v{tg.pop()}"); acc = GM
            for k in range(0, len(tg), 2):
                A(f"v_xor_b32 v{44+(k&2)}, v{VTOK}, v{tg[k]}")
                A(f"v_xor_b32 v{45+(k&2)}, v{VTOK}, v{tg[k+1]}")
                if acc: A(f"v_or3_b32 v{GM}, v{GM}, v{44+(k&2)}, v{45+(k&2)}")
                else: A(f"v_or_b32 v{GM}, v{44+(k&2)}, v{45+(k&2)}"); acc = GM
            A(f"v_cmp_ne_u32 vcc, 0, v{GM}")
            A(f"s_cbranch_vccz {name}D")
            for x in lds_: A(x)
            A(f"s_sub_u32 s{S_SPIN}, s{S_SPIN}, 1")
            A("s_waitcnt vmcnt(0)")
            A(f"s_cbranch_scc0 {name}L")
            A.label(name + "D")
        assert O.PSTEP >= O.ASTEP + 9 // O.APS
        chk("G_A", [AL + 1 + 2 * k for k in range(8)] + [GL_ + 1], ald, 4)
        for k in range(8):
            A(f"v_and_b32 v{AL+2*k+1}, 0xffff0000, v{AL+2*k}")
            A(f"v_lshlrev_b32 v{AL+2*k}, 16, v{AL+2*k}")
        for k in range(8):
            A(f"v_pk_mul_f32 {vr(T+2*k,2)}, {vr(AL+2*k,2)}, {vr(GL_,2)} op_sel:[0,0] op_sel_hi:[1,0]")
        A(f"v_sub_f32 v{GL_}, 1.0, v{GL_}")
        A(f"v_cvt_pk_bf16_f32 v{GL_}, v{GL_}, v{GL_}")
        A(f"v_lshlrev_b32 v{GL_}, 16, v{GL_}")
        A("s_waitcnt lgkmcnt(0)")
        for k in range(8):
            A(f"v_pk_add_f32 {vr(ACCB+2*k,2)}, {vr(ACCB+2*k,2)}, {vr(R+2*k,2)}")
        for k in range(8):
            A(f"v_pk_fma_f32 {vr(T+2*k,2)}, {vr(ACCB+2*k,2)}, {vr(GL_,2)}, {vr(T+2*k,2)} op_sel:[0,0,0] op_sel_hi:[1,0,1]")
        tsg(A, 3, "f")
        chk("G_P", [PR + 1 + 2 * k for k in range(8)], pld, 0)
        tsg(A, 4, "f")
        for k in range(8):
            A(f"v_and_b32 v{PR+2*k+1}, 0xffff0000, v{PR+2*k}")
            A(f"v_lshlrev_b32 v{PR+2*k}, 16, v{PR+2*k}")
        for k in range(8):
            A(f"v_pk_fma_f32 {vr(T+2*k,2)}, {vr(PR+2*k,2)}, {vr(GL_,2)}, {vr(T+2*k,2)} op_sel:[0,0,0] op_sel_hi:[1,0,1]")
        g2_out(A, T)
        tsg(A, 5, "f")
        return
    if O.TL2:
        if O.PSTEP >= 56:
            for x in pld: A(x)
        tsg(A, 2, "f")
        lwait(A, GX, 16, GT + 1, 10, sleep=0)
        for q in range(4):
            A(f"ds_read_b128 {vr(R+4*q,4)}, v{RX} offset:{q*1024}")
        A(f"ds_read_b32 v{GT+1}, v{GOWN} offset:32")
        for q in range(4):
            A(f"s_waitcnt lgkmcnt({4-q})")
            for k in (2*q, 2*q+1):
                A(f"v_pk_add_f32 {vr(ACCB+2*k,2)}, {vr(ACCB+2*k,2)}, {vr(R+2*k,2)}")
        lwait(A, GOWN, 32, GT + 1, 100, issued=True)
        tsg(A, 3, "f")
        A(f"ds_read_b32 v{GM}, v{GM+1}")
        for q in range(4):
            A(f"ds_read_b128 {vr(T+4*q,4)}, v{TV} offset:{q*1024}")
        A(f"s_mov_b32 s{S_SPIN}, {O.SPIN}")
        A.label("G_PL")
        A("s_waitcnt vmcnt(0)")
        for k in range(4):
            A(f"v_xor_b32 v{R+k}, v{VTOK}, v{PR+1+4*k}")
            A(f"v_xor_b32 v{R+4+k}, v{VTOK}, v{PR+3+4*k}")
        A(f"v_or3_b32 v{R}, v{R}, v{R+1}, v{R+2}")
        A(f"v_or3_b32 v{R+3}, v{R+3}, v{R+4}, v{R+5}")
        A(f"v_or3_b32 v{R}, v{R}, v{R+6}, v{R+7}")
        A(f"v_or_b32 v{R}, v{R}, v{R+3}")
        A(f"v_cmp_ne_u32 vcc, 0, v{R}")
        A("s_cbranch_vccz G_PD")
        for x in pld: A(x)
        A(f"s_sub_u32 s{S_SPIN}, s{S_SPIN}, 1")
        A("s_cbranch_scc0 G_PL")
        A("s_waitcnt vmcnt(0)")
        A.label("G_PD")
        tsg(A, 4, "f")
        for k in range(8):
            A(f"v_and_b32 v{PR+2*k+1}, 0xffff0000, v{PR+2*k}")
            A(f"v_lshlrev_b32 v{PR+2*k}, 16, v{PR+2*k}")
        for k in range(8):
            A(f"v_pk_add_f32 {vr(ACCB+2*k,2)}, {vr(ACCB+2*k,2)}, {vr(PR+2*k,2)}")
        A("s_waitcnt lgkmcnt(0)")
        for k in range(8):
            A(f"v_pk_fma_f32 {vr(T+2*k,2)}, {vr(ACCB+2*k,2)}, {vr(GM,2)}, {vr(T+2*k,2)} op_sel:[0,0,0] op_sel_hi:[1,0,1]")
        g2_out(A, T)
        tsg(A, 5, "f")
        return
    lwait(A, GOWN, 32, GT + 1, 100)
    A(f"ds_read_b32 v{GM}, v{GM+1}")
    for q in range(4):
        A(f"ds_read_b128 {vr(T+4*q,4)}, v{TV} offset:{q*1024}")
    lwait(A, GX, 16, GT + 1, 10, sleep=0)
    for q in range(4):
        A(f"ds_read_b128 {vr(R+4*q,4)}, v{RX} offset:{q*1024}")
    for k in range(8):
        A(f"v_pk_fma_f32 {vr(T+2*k,2)}, {vr(ACCB+2*k,2)}, {vr(GM,2)}, {vr(T+2*k,2)} op_sel:[0,0,0] op_sel_hi:[1,0,1]")
    for q in range(4):
        A(f"s_waitcnt lgkmcnt({3-q})")
        for k in (2*q, 2*q+1):
            A(f"v_pk_fma_f32 {vr(T+2*k,2)}, {vr(R+2*k,2)}, {vr(GM,2)}, {vr(T+2*k,2)} op_sel:[0,0,0] op_sel_hi:[1,0,1]")
    g2_out(A, T)
def g2_out(A, T):
    for k in range(8):
        A(f"v_cvt_pk_bf16_f32 v{PK+k}, v{T+2*k}, v{T+2*k+1}")
    A("s_nop 1")
    for h in range(2):
        A(f"v_permlane32_swap_b32 v{PK+4*h}, v{PK+4*h+2}")
        A(f"v_permlane32_swap_b32 v{PK+4*h+1}, v{PK+4*h+3}")
    A("s_nop 1")
    for h in range(2):
        A(f"buffer_store_dwordx4 {vr(PK+4*h,4)}, v{OV}, s[{S_OUT}:{S_OUT+3}], s{S_OO} offen offset:{32*h}")

def idle_tr_issue(A):
    A("v_lshrrev_b32 v8, 3, v1")
    A("v_and_b32 v9, 7, v1")
    A("v_lshlrev_b32 v10, 10, v8")
    A("v_lshl_add_u32 v10, v9, 4, v10")
    A(f"s_sub_u32 s64, s{S_J}, 28")
    A(f"s_lshl_b32 s64, s64, 2")
    A(f"s_add_u32 s64, s64, s{S_WAVE}")
    if O.UOWN:
        A(f"s_and_b32 s33, s64, 1")
        A(f"s_lshl_b32 s{S_T1}, s{S_XCD}, 1")
        A(f"s_add_u32 s33, s33, s{S_T1}")
        A(f"s_lshr_b32 s34, s64, 1")
    else:
        A(f"s_mov_b32 s33, s64")
        A(f"s_mov_b32 s34, s{S_XCD}")
    A(f"s_lshl_b32 s65, s33, 17")
    A(f"s_lshl_b32 s{S_T1}, s34, 7")
    A(f"s_add_u32 s65, s65, s{S_T1}")
    A(f"s_lshl_b32 s66, s{S_WAVE}, 15")
def idle_tr_dma(A):
    for i in range(16):
        A(f"s_add_u32 m0, s66, {i*1024}")
        A(f"s_add_u32 s{S_T1}, s65, {i*8192}")
        A(f"buffer_load_dwordx4 v10, s[{S_X}:{S_X+3}], s{S_T1} offen {O.UFL} lds")
def w2_touch(A, qs, dst):
    for q in qs:
        A(f"s_lshr_b32 s{S_T1}, s{S_XCD}, 1")
        A(f"s_add_u32 s{S_T1}, s{S_T1}, {q}")
        A(f"s_and_b32 s{S_T1}, s{S_T1}, 3")
        A(f"s_and_b32 s{S_T0}, s{S_XCD}, 1")
        A(f"s_lshl_b32 s{S_T0}, s{S_T0}, 2")
        A(f"s_add_u32 s{S_T1}, s{S_T1}, s{S_T0}")
        A(f"s_mul_i32 s{S_T1}, s{S_T1}, 229376")
        for i in range(2):
            A(f"buffer_load_dword v{dst}, v{24+i}, s[{S_W2}:{S_W2+3}], s{S_T1} offen {O.PFL2}")
def w2_touch_setup(A):
    A("s_mul_i32 s67, s64, 112")
    A("v_add_u32 v24, s67, v1")
    A("v_min_u32 v25, 47, v1")
    A("v_add3_u32 v25, v25, s67, 64")
    A("v_lshlrev_b32 v24, 7, v24")
    A("v_lshlrev_b32 v25, 7, v25")
def idle_tr_finish(A, extra=0):
    R = 128
    A("v_lshrrev_b32 v11, 4, v1")
    A("v_bfe_u32 v12, v1, 2, 2")
    A("v_lshl_add_u32 v12, v11, 3, v12")
    A("v_lshlrev_b32 v12, 7, v12")
    A("v_and_b32 v13, 3, v1")
    A("v_lshl_add_u32 v12, v13, 3, v12")
    A(f"v_add_u32 v12, s66, v12")
    A("v_bfe_u32 v13, v1, 1, 3")
    A("v_lshlrev_b32 v13, 13, v13")
    A("v_and_b32 v14, 1, v1")
    A("v_lshl_add_u32 v13, v14, 6, v13")
    A("v_lshl_add_u32 v16, v11, 4, v13")
    A(f"s_lshl_b32 s67, s34, 18")
    A(f"s_lshl_b32 s{S_T1}, s33, 9")
    A(f"s_add_u32 s67, s67, s{S_T1}")
    A(f"s_add_u32 s67, s67, {WS_UT}")
    for p in range(4):
        Rk = R + 16 * p
        A(f"s_waitcnt vmcnt({12+extra})")
        for a in range(4):
            for x in range(2):
                A(f"ds_read_b64_tr_b16 {vr(Rk+4*a+2*x,2)}, v12 offset:{p*4096+x*512+a*32}")
        for a in range(4):
            A(f"s_waitcnt lgkmcnt({6-2*a})")
            A(f"s_add_u32 s{S_T1}, s67, {a*65536}")
            A(f"buffer_store_dwordx4 {vr(Rk+4*a,4)}, v16, s[{S_WS}:{S_WS+3}], s{S_T1} offen offset:{p*128} sc1")
def ut2(A, part=None):
    R = 128
    if part == 1:
        for i in range(8):
            A(f"s_waitcnt vmcnt({7-i})")
            A(f"ds_write_b128 v16, {vr(R+4*i,4)} offset:{i*512}")
        return
    A(f"s_lshl_b32 s{Q_T0}, s{Q_PAIR}, 13")
    A(f"s_add_u32 s{Q_T0}, s{Q_T0}, {WS_UT}")
    A(f"s_add_u32 s{Q_T1}, s{Q_T0}, 4096")
    A("v_lshlrev_b32 v16, 4, v1")
    for i in range(8):
        A(f"buffer_load_dwordx4 {vr(R+4*i,4)}, v16, s[{S_WS}:{S_WS+3}], s{Q_T0+i//4} offen offset:{(i%4)*1024} sc1")
    A("v_bfe_u32 v16, v1, 2, 1")
    A(f"v_mul_u32_u24 v16, {U_STRIDE}, v16")
    A("v_lshrrev_b32 v17, 3, v1")
    A("v_lshl_add_u32 v16, v17, 6, v16")
    A("v_and_b32 v17, 3, v1")
    A("v_lshl_add_u32 v16, v17, 4, v16")
    A(f"v_add_u32 v16, {LDS_U+64}, v16")
    if part == 0: return
    for i in range(8):
        A(f"s_waitcnt vmcnt({7-i})")
        A(f"ds_write_b128 v16, {vr(R+4*i,4)} offset:{i*512}")
def idle_gate_issue(A):
    R = 64
    A(f"global_load_dwordx4 {vr(44,4)}, v{HV}, s[{P_GW}:{P_GW+1}]")
    A(f"s_lshl_b32 s68, s{S_XCD}, 4")
    A(f"s_add_u32 s68, s68, s64")
    A(f"s_lshl_b32 s65, s68, 14")
    for i in range(16):
        if i % 4 == 0: A(f"s_add_u32 s{S_T1}, s65, {i*1024}")
        A(f"buffer_load_dwordx4 {vr(R+4*i,4)}, v{HV}, s[{S_X}:{S_X+3}], s{S_T1} offen offset:{(i%4)*1024}")
def idle_gate_finish(A, extra=0):
    R = 64; S = 2
    A(f"s_waitcnt vmcnt({extra})")
    for k in range(4):
        for i in range(16):
            c = "0" if k == 0 else f"v{S+i}"
            A(f"v_dot2_f32_bf16 v{S+i}, v{R+4*i+k}, v{44+k}, {c}")
    for sh in ("row_shr:1", "row_shr:2", "row_shr:4", "row_shr:8"):
        for i in range(16):
            A(f"v_add_f32_dpp v{S+i}, v{S+i}, v{S+i} {sh} row_mask:0xf bank_mask:0xf bound_ctrl:1")
    for sh in ("row_bcast:15 row_mask:0xa", "row_bcast:31 row_mask:0xc"):
        for i in range(16):
            A(f"v_add_f32_dpp v{S+i}, v{S+i}, v{S+i} {sh} bank_mask:0xf")
    A("v_mov_b32 v20, 0")
    for h in range(2):
        for i in range(8): A(f"v_readlane_b32 s{38+i}, v{S+8*h+i}, 63")
        A("s_nop 3")
        for i in range(8): A(f"v_writelane_b32 v20, s{38+i}, {8*h+i}")
    A("v_cvt_pk_bf16_f32 v20, v20, v20")
    A("v_lshlrev_b32 v20, 16, v20")
    A("v_mul_f32 v20, 0xbfb8aa3b, v20")
    A("v_exp_f32 v20, v20")
    A("s_nop 0")
    A("v_add_f32 v20, 1.0, v20")
    A("v_rcp_f32 v20, v20")
    A("s_nop 0")
    A("v_cvt_pk_bf16_f32 v22, v20, v20")
    A("v_lshlrev_b32 v22, 16, v22")
    if O.TL3: A(f"v_mov_b32 v23, v{VTOK}")
    else:
        A("v_sub_f32 v23, 1.0, v22")
        A("v_cvt_pk_bf16_f32 v23, v23, v23")
        A("v_lshlrev_b32 v23, 16, v23")
    A("v_lshlrev_b32 v21, 3, v1")
    A(f"s_lshl_b32 s65, s68, 7")
    A(f"s_add_u32 s65, s65, {WS_G}")
    A("s_mov_b64 exec, 0xffff")
    A(f"buffer_store_dwordx2 v[22:23], v21, s[{S_WS}:{S_WS+3}], s65 offen sc1")
    A("s_mov_b64 exec, -1")

LX, LW, L2D, LSA, LGD, LV = 16, 56, 60, 62, 63, 20
K_XO, K_WO, K_M0, K_C0, K_W2, K_M2, K_T0, K_T1 = 76, 77, 78, 79, 80, 81, 82, 83
def loader_setup(A):
    lw = Q_NH
    A(f"s_and_b32 s{K_XO}, s{S_J}, 3")
    A(f"s_and_b32 s{K_T0}, s{S_XCD}, 6")
    A(f"s_lshl_b32 s{K_T0}, s{K_T0}, 1")
    A(f"s_add_u32 s{K_XO}, s{K_XO}, s{K_T0}")
    A(f"s_lshl_b32 s{K_XO}, s{K_XO}, 1")
    A(f"s_add_u32 s{K_XO}, s{K_XO}, s{lw}")
    A(f"s_and_b32 s{K_T0}, s{S_XCD}, 1")
    if O.HAB:
        A(f"s_xor_b32 s{K_XO}, s{K_XO}, s{K_T0}")
        A(f"s_xor_b32 s{K_XO}, s{K_XO}, 1")
    A(f"s_lshl_b32 s{K_XO}, s{K_XO}, 16")
    A(f"s_mul_i32 s{K_WO}, s{K_T0}, 7")
    A(f"s_lshr_b32 s{K_T1}, s{S_J}, 2")
    A(f"s_add_u32 s{K_WO}, s{K_WO}, s{K_T1}")
    A(f"s_lshl_b32 s{K_WO}, s{K_WO}, 8")
    A(f"s_lshl_b32 s{K_W2}, s{K_T1}, 7")
    A(f"s_mul_i32 s{K_T1}, s{lw}, {32*2*F}")
    A(f"s_add_u32 s{K_WO}, s{K_WO}, s{K_T1}")
    A(f"s_lshl_b32 s{K_M0}, s{lw}, 13")
    A(f"s_mul_i32 s{K_T0}, s{K_T0}, {56*16384}")
    A(f"s_add_u32 s{K_W2}, s{K_W2}, s{K_T0}")
    A(f"s_mul_i32 s{K_T0}, s{lw}, {7*16384}")
    A(f"s_add_u32 s{K_W2}, s{K_W2}, s{K_T0}")
    A(f"s_mul_i32 s{K_M2}, s{lw}, {7*2048}")
    rot_c0(A, K_C0, K_T0)
    A("v_lshrrev_b32 v34, 3, v1")
    A("v_and_b32 v35, 7, v1")
    A("v_lshrrev_b32 v36, 4, v1")
    A("v_xor_b32 v37, v35, v36")
    A("v_xor_b32 v38, 4, v37")
    A("v_lshlrev_b32 v34, 10, v34")
    A(f"v_lshl_add_u32 v{LX}, v37, 4, v34")
    A(f"v_lshl_add_u32 v{LX+1}, v38, 4, v34")
    A(f"v_add_u32 v{LX+1}, {8192-1024}, v{LX+1}")
    A(f"v_add_u32 v{LX+2}, {2*(8192-1024)}, v{LX}")
    A(f"v_add_u32 v{LX+3}, {2*(8192-1024)}, v{LX+1}")
    A("v_and_b32 v37, 1, v36")
    A("v_lshlrev_b32 v37, 2, v37")
    A("v_xor_b32 v37, v35, v37")
    A(f"v_lshl_add_u32 v{L2D}, v37, 4, v34")
    A(f"v_add_u32 v{L2D+1}, {8192-1024}, v{L2D}")
    A("v_and_b32 v35, 15, v1")
    A("v_lshlrev_b32 v37, 2, v36")
    A("v_xor_b32 v35, v35, v37")
    A(f"v_mul_u32_u24 v37, {2*F}, v36")
    A(f"v_lshl_add_u32 v{LW}, v35, 4, v37")
    for i in range(1, 4):
        A(f"v_add_u32 v{LW+i}, {i*(4*2*F-1024)}, v{LW}")
    A(f"s_lshl_b32 s{K_T0}, s{lw}, 3")
    A(f"s_add_u32 s{K_T0}, s{K_T0}, {L_SL}")
    A(f"s_cmp_eq_u32 s{Q_C}, 1")
    A(f"s_cselect_b32 s{K_T0}, s{K_T0}, {L_DUMMY}")
    A(f"v_mov_b32 v{LSA}, s{K_T0}")
    A(f"v_subrev_u32 v{LGD}, {L_SB-L_GD}, v{S_FRD}")
def l_chunk(A, cc):
    slot = cc % 4
    if "d" in O.X2: return
    A(f"s_add_u32 s{K_T0}, s{K_C0}, {cc}"); A(f"s_and_b32 s{K_T0}, s{K_T0}, 7")
    A(f"s_lshl_b32 s{K_T1}, s{K_T0}, 7"); A(f"s_add_u32 s{K_T1}, s{K_T1}, s{K_XO}")
    A(f"s_mul_i32 s{K_T0}, s{K_T0}, {64*2*F}"); A(f"s_add_u32 s{K_T0}, s{K_T0}, s{K_WO}")
    for q in range(2):
        A(f"s_add_u32 m0, s{K_M0}, {slot*32768+q*4096}")
        if q: A(f"s_add_u32 s{K_T1}, s{K_T1}, 32768")
        else: A("s_nop 0")
        for i in range(4):
            if "x" in O.X2: continue
            A(f"buffer_load_dwordx4 v{LX+i}, s[{S_X}:{S_X+3}], s{K_T1} offen offset:{i*1024} {O.XFL} lds")
        A(f"s_add_u32 m0, s{K_M0}, {slot*32768+16384+q*4096}")
        if q: A(f"s_add_u32 s{K_T0}, s{K_T0}, {16*2*F}")
        else: A("s_nop 0")
        for i in range(4):
            if "w" in O.X2: continue
            A(f"buffer_load_dwordx4 v{LW+i}, s[{S_W1}:{S_W1+3}], s{K_T0} offen offset:{i*1024} {O.W1FL} lds")
def l_pub(A, n, val):
    A(f"v_mov_b32 v{LV}, {val}"); A(f"v_mov_b32 v{LV+1}, {val}")
    A(f"s_waitcnt vmcnt({n})")
    A(f"ds_write_b64 v{LSA}, {vr(LV,2)}")
def loader(A, fin):
    A(f"s_cmp_ge_u32 s{S_J}, 28")
    A("s_cbranch_scc1 S_LW1")
    if O.LOOK == 3: l_chunk(A, 3)
    if O.LOOK == 8:
        A.label("S_LW1")
        fin()
    for c in range(max(4, O.LOOK), 8):
        lwait(A, LGD, 0, 31, c - 3)
        l_chunk(A, c)
        if c > O.LOOK: l_pub(A, 0 if "d" in O.X2 else 8 if ("x" in O.X2 or "w" in O.X2) else 16, c)
        if c == 7 and O.TOUCH:
            A(f"s_lshr_b32 s{K_T0}, s{K_XO}, 16")
            A(f"s_mul_i32 s{K_T0}, s{K_T0}, 224")
            A(f"s_and_b32 s{K_T1}, s{S_XCD}, 1")
            A(f"s_mul_i32 s{K_T1}, s{K_T1}, 56")
            A(f"s_add_u32 s{K_T0}, s{K_T0}, s{K_T1}")
            A(f"s_lshr_b32 s{K_T1}, s{S_J}, 2")
            A(f"s_lshl_b32 s{K_T1}, s{K_T1}, 3")
            A(f"s_add_u32 s{K_T0}, s{K_T0}, s{K_T1}")
            A(f"s_lshl_b32 s{K_T0}, s{K_T0}, 10")
            A(f"v_lshlrev_b32 v{LX}, 7, v1")
            A(f"s_add_u32 s{K_T1}, s{K_T0}, {112*1024}")
            A(f"buffer_load_dword v{LX+1}, v{LX}, s[{S_WS}:{S_WS+3}], s{K_T0} offen {O.TFL}")
            A(f"buffer_load_dword v{LX+2}, v{LX}, s[{S_WS}:{S_WS+3}], s{K_T1} offen {O.TFL}")
        if c == O.LFIN:
            A.label("S_LW1")
            fin()
            A(f"s_cmp_ge_u32 s{S_J}, 28")
            A("s_cbranch_scc1 S_LW2")
    A.label("S_LW2")
    if "v" in O.X2: l_pub(A, 0, 8)
    for s in range(4):
        lwait(A, LGD, 0, 31, 5 + s if "v" not in O.X2 else 8)
        if s == 0 and "v" in O.X2: pass
        for k in range(7):
            A(f"s_add_u32 m0, s{K_M2}, {s*32768+4096+k*2048}")
            A(f"s_add_u32 s{K_T0}, s{K_W2}, {(14*s+k)*16384}")
            A(f"buffer_load_dwordx4 v{L2D}, s[{S_W2}:{S_W2+3}], s{K_T0} offen {O.W2FL} lds")
            A(f"buffer_load_dwordx4 v{L2D+1}, s[{S_W2}:{S_W2+3}], s{K_T0} offen offset:1024 {O.W2FL} lds")
        if s == 0: l_pub(A, 16 if O.TOUCH else 14, 8)

TAB2 = LDS_SSM + 17408
S_PASS, S_UOK = 33, 34
U_SO, U_M0, UF, UD = 28, 29, 12, 13
def u_dma(A):
    for i in range(4):
        A(f"s_add_u32 m0, s{U_M0}, {i*1024}")
        A(f"s_add_u32 s{Q_T1}, s{U_SO}, {i*2048}")
        A(f"buffer_load_dwordx4 v{UD}, s[{S_WS}:{S_WS+3}], s{Q_T1} offen sc1 lds")
def u_setup(A):
    A(f"s_lshl_b32 s{Q_T0}, s{S_XCD}, {4+FS}")
    A(f"s_add_u32 s{Q_T0}, s{Q_T0}, {F_UT}")
    A("v_and_b32 v8, 15, v1")
    A(f"v_lshl_add_u32 v{UF}, v8, {FS}, s{Q_T0}")
    A(f"v_lshrrev_b32 v{UD}, 2, v1")
    A(f"v_lshlrev_b32 v{UD}, 3, v{UD}")
    A("v_and_b32 v8, 3, v1")
    A(f"v_add_lshl_u32 v{UD}, v{UD}, v8, 4")
    A(f"s_lshl_b32 s{U_SO}, s{Q_PAIR}, 7")
    A(f"s_add_u32 s{U_SO}, s{U_SO}, s{Q_NH}")
    A(f"s_lshl_b32 s{U_SO}, s{U_SO}, 6")
    A(f"s_add_u32 s{U_SO}, s{U_SO}, {WS_UT}")
    A(f"s_mul_i32 s{U_M0}, s{Q_NH}, {U_STRIDE}")
    A(f"s_add_u32 s{U_M0}, s{U_M0}, {LDS_U+64}")
    A(f"s_mov_b32 s{S_UOK}, 0")
def kgen2(A, later, hookA):
    w = S_WAVE; KC = Q_NH
    VW, VB, VA = 26, 27, 28
    E1, E8, E256, C0, E2, E4 = 128, 130, 132, 134, 136, 138
    LO = 140; E32 = 156; G = 160; CV = 200
    A(f"s_mul_i32 s{Q_TAB}, s{w}, {TAB_STRIDE}")
    A(f"s_add_u32 s{Q_TAB}, s{Q_TAB}, {TAB2}")
    A(f"v_lshl_add_u32 v{VW}, v1, 2, s{Q_TAB}")
    A("v_and_b32 v8, 15, v1")
    A("v_lshrrev_b32 v9, 5, v1")
    A(f"v_lshl_add_u32 v9, v9, 4, s{Q_TAB}")
    A("v_mov_b32 v10, 272")
    A(f"v_mad_u32_u24 v{VB}, v8, v10, v9")
    A("v_and_b32 v11, 7, v1")
    A("v_lshlrev_b32 v11, 2, v11")
    A("v_mov_b32 v12, 0xcbaaa988")
    A("v_lshrrev_b32 v11, v11, v12")
    A("v_and_b32 v11, 15, v11")
    A("v_and_b32 v12, 24, v1")
    A("v_cmp_eq_u32 vcc, 8, v12")
    A(f"s_mov_b32 s{Q_EX}, 0x0000ffff")
    A(f"s_mov_b32 s{Q_EX+1}, 0x0000ffff")
    A(f"s_mov_b32 s{Q_EX+2}, 0xffff0000")
    A(f"s_mov_b32 s{Q_EX+3}, 0xffff0000")
    A("v_cndmask_b32 v11, v8, v11, vcc")
    A(f"v_mad_u32_u24 v{VA}, v11, v10, v9")
    srd(A, S_WS, P_WS, WS_BYTES)
    A(f"v_mov_b32 v{LSA}, {L_DUMMY}")
    for k in range(16): A(f"v_mov_b32 v{KD+k}, 0")
    A(f"s_mov_b32 s{S_PASS}, 16")
    A("s_waitcnt lgkmcnt(0)")
    A(f"s_lshl_b32 s{Q_T0}, s{KC}, 4")
    A(f"s_lshr_b32 s{Q_LDT}, s{Q_LDT}, s{Q_T0}")
    A(f"s_lshl_b32 s{Q_LDT}, s{Q_LDT}, 16")
    A(f"s_lshr_b32 s{Q_DSK}, s{Q_DSK}, s{Q_T0}")
    A(f"s_lshl_b32 s{Q_DSK}, s{Q_DSK}, 16")
    A(f"v_mov_b32 v6, {LOG2E}")
    A(f"v_mul_f32 v7, s{Q_LDT}, v6")
    A("v_exp_f32 v7, v7")
    hookA()
    A("v_cvt_pk_bf16_f32 v7, v7, v7")
    A("v_lshlrev_b32 v7, 16, v7")
    A(f"s_waitcnt vmcnt({later})")
    tss(A, 2, "ak")
    A.label("KG_LOOP")
    for i in range(4): A(f"v_lshlrev_b32 v{2+i}, s{S_PASS}, v{14+i}")
    for i in range(4): A(f"v_and_b32 v{2+i}, 0xffff0000, v{2+i}")
    A("v_mul_f32 v2, v6, v2")
    A("v_exp_f32 v2, v2")
    A("v_add_f32 v8, v7, v7")
    A("v_cvt_pk_bf16_f32 v2, v2, v2")
    A("v_lshlrev_b32 v2, 16, v2")
    A("v_mul_f32 v2, v2, v7")
    A("v_mul_f32 v3, v3, v7")
    A("v_mul_f32 v2, 0xbfb8aa3b, v2")
    A(f"v_mul_f32 v3, {INV2PI}, v3")
    A(f"v_mul_f32 v{C0}, v4, v8")
    A(f"v_mul_f32 v{C0+1}, v5, v8")
    A("v_mul_f32 v10, 0x41000000, v2")
    A("v_mul_f32 v11, 0x41000000, v3")
    A("v_mul_f32 v12, 0x43800000, v2")
    A("v_mul_f32 v13, 0x43800000, v3")
    for r in (11, 3, 13): A(f"v_fract_f32 v{r}, v{r}")
    for (m, f, e) in ((10, 11, E8), (2, 3, E1), (12, 13, E256)):
        A(f"v_exp_f32 v{m}, v{m}")
        A(f"v_cos_f32 v{e}, v{f}")
        A(f"v_sin_f32 v{e+1}, v{f}")
    for (m, e) in ((10, E8), (2, E1), (12, E256)):
        A(f"v_pk_mul_f32 {vr(e,2)}, {vr(e,2)}, {vr(m,2)} op_sel:[0,0] op_sel_hi:[1,0]")
    hook = None
    kgen_tables2(A, hook, VW, VB, VA, E1, E8, E256, C0, E2, E4, LO, E32, G, CV)
    for ks in range(8):
        A(f"s_waitcnt lgkmcnt({7-ks})")
        A(f"v_mfma_f32_32x32x16_bf16 {vr(KD,16)}, {vr(KA+4*ks,4)}, {vr(KB+4*ks,4)}, {vr(KD,16)}")
    A(f"s_cmp_eq_u32 s{S_PASS}, 0")
    A("s_cbranch_scc1 KG_DONE")
    tss(A, 3, "k")
    A(f"s_mov_b32 s{S_PASS}, 0")
    A("s_branch KG_LOOP")
    A.label("KG_DONE")
    tss(A, 4, "k"); tss(A, 3, "a")
    token_get(A, 8, STOK)
    X = 64
    A(f"s_mul_i32 s{Q_T0}, s{KC}, {K_STRIDE}")
    A(f"s_add_u32 s{Q_T0}, s{Q_T0}, {LDS_K}")
    A("v_and_b32 v8, 31, v1")
    A("v_lshrrev_b32 v9, 5, v1")
    A(f"v_lshl_add_u32 v8, v8, 4, s{Q_T0}")
    A(f"v_lshl_add_u32 v10, v1, 3, s{Q_T0}")
    A("v_mov_b32 v12, 0"); A("v_mov_b32 v13, 0")
    A("ds_write_b64 v10, v[12:13]")
    A("v_and_b32 v11, 15, v1")
    A(f"s_mul_i32 s{Q_T0}, s{KC}, {U_STRIDE}")
    A(f"s_add_u32 s{Q_T0}, s{Q_T0}, {LDS_U}")
    A(f"v_lshl_add_u32 v11, v11, 2, s{Q_T0}")
    A("ds_write_b32 v11, v12")
    A("v_cmp_eq_u32 vcc, 0, v1")
    A(f"v_mov_b32 v11, s{Q_DSK}")
    A("v_lshl_add_u32 v14, v9, 3, v8")
    A("v_lshl_add_u32 v15, v9, 9, v8")
    A("v_cndmask_b32 v11, 0, v11, vcc")
    A("v_lshl_add_u32 v16, v9, 10, v8")
    A("s_nop 4")
    A(f"v_add_f32 v{KD}, v{KD}, v11")
    A("v_and_b32 v11, 1, v1")
    A("v_cmp_eq_u32 vcc, 1, v11")
    for k in range(4): A(f"v_cvt_pk_bf16_f32 v{X+k}, v{KD+2*k}, v{KD+2*k+1}")
    a, b, c = KD + 8, KD + 9, KD + 10
    for k, (p, q) in enumerate(((a, a), (a, b), (b, b), (c, c))): A(f"v_cvt_pk_bf16_f32 v{X+4+k}, v{p}, v{q}")
    A(f"ds_write_b64 v14, {vr(X,2)} offset:448")
    A(f"ds_write_b64 v14, {vr(X+2,2)} offset:960")
    A(f"ds_write_b128 v15, {vr(X+4,4)} offset:1472")
    X = 72
    for k in range(2):
        a, b = KD + 12 + 2 * k, KD + 13 + 2 * k
        A(f"v_cndmask_b32 v11, v{a}, v{b}, vcc")
        A(f"v_cvt_pk_bf16_f32 v{X+4*k}, v{a}, v{a}")
        A(f"v_cvt_pk_bf16_f32 v{X+4*k+1}, v{a}, v{a}")
        A(f"v_cvt_pk_bf16_f32 v{X+4*k+2}, v11, v{b}")
        A(f"v_cvt_pk_bf16_f32 v{X+4*k+3}, v{b}, v{b}")
        A(f"ds_write_b128 v16, {vr(X+4*k,4)} offset:{2496+512*k}")

def loader2(A):
    A(f"s_cmp_ge_u32 s{S_J}, 28")
    A("s_cbranch_scc1 S_LW2")
    for c in range(O.LOOK, 8):
        if c >= 4: lwait(A, LGD, 0, 31, c - 3, sleep=O.LSLP)
        l_chunk(A, c)
        if c > O.LOOK: l_pub(A, 16, c)
        if c in (3, 5, 7): tss(A, 2 + (c - 3) // 2, "k")
    A.label("S_LW2")
    u_setup(A)
    token_get(A, 8, STOK)
    for s in range(4):
        lwait(A, LGD, 0, 31, 5 + s, sleep=O.LSLP)
        if s < 3:
            if s: A(f"s_cmp_eq_u32 s{S_UOK}, 1"); A(f"s_cbranch_scc1 S_U{s}")
            A(f"buffer_load_dword v9, v{UF}, s[{S_WS}:{S_WS+3}], 0 offen sc1")
            if s: A.label(f"S_U{s}")
        for k in range(7):
            A(f"s_add_u32 m0, s{K_M2}, {s*32768+4096+k*2048}")
            A(f"s_add_u32 s{K_T0}, s{K_W2}, {(14*s+k)*16384}")
            A(f"buffer_load_dwordx4 v{L2D}, s[{S_W2}:{S_W2+3}], s{K_T0} offen {O.W2FL} lds")
            A(f"buffer_load_dwordx4 v{L2D+1}, s[{S_W2}:{S_W2+3}], s{K_T0} offen offset:1024 {O.W2FL} lds")
        if s == 0: l_pub(A, 15, 8)
        if s < 3:
            if s: A(f"s_cmp_eq_u32 s{S_UOK}, 1"); A(f"s_cbranch_scc1 S_V{s}")
            A("s_waitcnt vmcnt(14)")
            A(f"v_cmp_ne_u32 vcc, v{STOK}, v9")
            A(f"s_cbranch_vccnz S_V{s}")
            u_dma(A)
            A(f"s_mov_b32 s{S_UOK}, 1")
            A.label(f"S_V{s}")
    tss(A, 5, "k")
    A("s_waitcnt vmcnt(14)")
    A(f"s_cmp_eq_u32 s{S_UOK}, 1"); A(f"s_cbranch_scc1 S_CV")
    poll(A, UF, 9, STOK, "PU")
    u_dma(A)
    A("s_waitcnt vmcnt(0)")

def conv_final3(A):
    w = S_WAVE
    A("v_bfe_u32 v8, v1, 3, 1")
    A("v_bfe_u32 v9, v1, 2, 1")
    A("v_and_b32 v10, 3, v1")
    A(f"v_lshl_add_u32 v8, v8, 2, s{w}")
    A("v_lshl_add_u32 v11, v8, 2, v10")
    A("v_lshlrev_b32 v11, 2, v11")
    A("v_lshl_add_u32 v12, v9, 7, v11")
    A("v_mul_u32_u24 v13, 144, v9")
    A("v_add_u32 v13, v13, v11")
    A(f"v_add_u32 v12, {LDS_HEAD}, v12")
    A(f"v_add_u32 v13, {LDS_CARR}, v13")
    A("v_lshl_add_u32 v8, v8, 8, v10")
    A("v_lshl_add_u32 v8, v8, 1, v9")
    A("v_lshlrev_b32 v8, 1, v8")
    A(f"v_add_u32 v8, {LDS_STG}, v8")
    A(f"s_lshl_b32 s{Q_T1}, s{w}, 10")
    A(f"s_add_u32 s{Q_T0}, s{Q_T1}, {LDS_STG}")
    A(f"v_lshl_add_u32 v9, v1, 3, s{Q_T0}")
    A("v_lshlrev_b32 v16, 4, v1")
    A(f"s_lshl_b32 s{Q_T0}, s{Q_PAIR}, 13")
    A(f"s_add_u32 s{Q_T0}, s{Q_T0}, s{Q_T1}")
    A(f"s_lshl_b32 s{Q_T0}, s{Q_T0}, 1")
    A(f"s_add_u32 s{Q_T0}, s{Q_T0}, {WS_A2}")
    A(f"s_add_u32 s{Q_T1}, s{Q_T0}, 8192")
    for k in range(4): A(f"v_mov_b32 v{67+4*k}, v{STOK}")
    s_barrier(A, 3)
    A("ds_read_b32 v12, v12")
    A("ds_read_b32 v13, v13")
    A("s_waitcnt lgkmcnt(0)")
    A("v_add_f32 v12, v12, v13")
    A("v_cvt_pk_bf16_f32 v12, v12, v12")
    A("ds_write_b16 v8, v12")
    for k in range(4): A(f"ds_read_b64 {vr(64+4*k,2)}, v9 offset:{(k//2)*4096+(k%2)*512}")
    for k in range(4):
        A(f"s_waitcnt lgkmcnt({3-k})")
        A(f"v_mov_b32 v{66+4*k}, v{65+4*k}")
        A(f"v_mov_b32 v{65+4*k}, v{STOK}")
        A(f"buffer_store_dwordx4 {vr(64+4*k,4)}, v16, s[{S_WS}:{S_WS+3}], s{Q_T0+k//2} offen offset:{(k%2)*1024} sc1")
def s_tail3(A):
    w = S_WAVE; SO_P = 76
    tss(A, 5, "a"); tss(A, 2, "t")
    A(f"s_lshl_b32 s{Q_T0}, s2, 2")
    A(f"s_add_u32 s{Q_T0}, s{Q_T0}, s{w}")
    A(f"s_lshl_b32 s{SO_P}, s{Q_T0}, 12")
    A(f"s_add_u32 s{SO_P}, s{SO_P}, {WS_P}")
    A(f"s_lshl_b32 s{Q_T0}, s{Q_NH}, 15")
    A(f"s_lshl_b32 s{Q_T1}, s{Q_C}, 11")
    A(f"s_add_u32 s{Q_T0}, s{Q_T0}, s{Q_T1}")
    A(f"v_add_u32 v17, s{Q_T0}, v16")
    A(f"v_xor_b32 v15, {0x10000+2048}, v17")
    A(f"s_lshl_b32 s{Q_T0}, s{Q_NH}, 2")
    A(f"s_add_u32 s{Q_T0}, s{Q_T0}, {L_GD}")
    A("v_and_b32 v5, 1, v1")
    A(f"v_lshl_add_u32 v5, v5, 3, s{Q_T0}")
    for k in range(8): A(f"v_mov_b32 v{97+2*k}, v{STOK}")
    lwait(A, 5, 0, 31, 9, sleep=1 - O.RSLP)
    tss(A, 3, "t")
    X = 112
    for h in range(2):
        A(f"ds_read_b128 {vr(X+4*h,4)}, v17 offset:{1024*h}")
        A(f"ds_read_b128 {vr(X+8+4*h,4)}, v15 offset:{1024*h}")
    A(f"v_mov_b32 v{S_FT}, 50")
    for h in range(2):
        A(f"s_waitcnt lgkmcnt({2-2*h})")
        if h == 1: A(f"ds_write_b32 v{S_FOWN}, v{S_FT}")
        for k in range(4):
            r = X + 4 * h + k
            A(f"v_lshlrev_b32 v80, 16, v{r}")
            A(f"v_lshlrev_b32 v81, 16, v{r+8}")
            A(f"v_and_b32 v82, 0xffff0000, v{r}")
            A(f"v_and_b32 v83, 0xffff0000, v{r+8}")
            A("v_add_f32 v80, v80, v81")
            A("v_add_f32 v82, v82, v83")
            A(f"v_cvt_pk_bf16_f32 v{96+8*h+2*k}, v80, v82")
            if k % 2 == 1:
                q = 2 * h + k // 2
                A(f"buffer_store_dwordx4 {vr(96+4*q,4)}, v16, s[{S_WS}:{S_WS+3}], s{SO_P} offen offset:{1024*q} {O.PST}")
    tss(A, 4, "t")
    A("s_waitcnt lgkmcnt(0)")

def s_tail(A):
    w = S_WAVE
    RT, CT, TT, DB = Q_EX, Q_EX + 1, Q_EX + 2, Q_EX + 3
    PK, AP, G, PP, T = 128, 136, 144, 148, 160
    SO_P, SO_PF, SO_A, SO_O = 76, 77, 78, 79
    A(f"s_lshl_b32 s80, s{Q_PAIR}, {FS}")
    A(f"s_lshl_b32 s{Q_T0}, s{w}, {8+FS}")
    A(f"s_add_u32 s80, s80, s{Q_T0}")
    A(f"s_add_u32 s80, s80, {F_A}")
    A(f"s_and_b32 s{RT}, s{S_XCD}, 6")
    A(f"s_lshl_b32 s{RT}, s{RT}, 1")
    A(f"s_and_b32 s{Q_T0}, s{S_J}, 3")
    A(f"s_add_u32 s{RT}, s{RT}, s{Q_T0}")
    A(f"s_lshl_b32 s{RT}, s{RT}, 1")
    A(f"s_and_b32 s{Q_T0}, s{S_XCD}, 1")
    A(f"s_add_u32 s{RT}, s{RT}, s{Q_T0}")
    A(f"s_lshr_b32 s{CT}, s{S_J}, 2")
    A(f"s_lshl_b32 s{TT}, s{RT}, 1")
    A(f"s_add_u32 s{TT}, s{TT}, s{Q_NH}")
    A(f"s_lshl_b32 s{DB}, s{CT}, 1")
    A(f"s_add_u32 s{DB}, s{DB}, s{Q_C}")
    A(f"s_bfe_u32 s{Q_T0}, s{RT}, 0x20002")
    A(f"s_lshl_b32 s{Q_T0}, s{Q_T0}, {8+FS}")
    A(f"s_lshl_b32 s{Q_T1}, s{DB}, {4+FS}")
    A(f"s_add_u32 s{Q_T0}, s{Q_T0}, s{Q_T1}")
    A(f"s_add_u32 s{Q_T0}, s{Q_T0}, {F_A}")
    A(f"v_lshl_add_u32 v2, v1, {FS}, s{Q_T0}")
    A(f"s_lshl_b32 s{Q_T0}, s{TT}, {1+FS}")
    A(f"s_add_u32 s{Q_T0}, s{Q_T0}, {F_G}")
    A("v_and_b32 v3, 1, v1")
    A(f"v_lshl_add_u32 v3, v3, {FS}, s{Q_T0}")
    A("v_cmp_gt_u32 vcc, 16, v1")
    A("v_and_b32 v10, 31, v1")
    A("v_lshrrev_b32 v11, 5, v1")
    A("v_cndmask_b32 v2, v3, v2, vcc")
    A("v_lshlrev_b32 v4, 14, v11")
    A("v_lshl_add_u32 v12, v10, 2, v4")
    A("v_add_u32 v13, 8192, v12")
    A(f"s_lshl_b32 s{Q_T0}, s{TT}, 8")
    A(f"s_add_u32 s{Q_T0}, s{Q_T0}, {WS_G}")
    A(f"v_lshl_add_u32 v14, v10, 3, s{Q_T0}")
    A(f"s_lshl_b32 s{SO_A}, s{DB}, 17")
    A(f"s_lshl_b32 s{Q_T1}, s{TT}, 7")
    A(f"s_add_u32 s{SO_A}, s{SO_A}, s{Q_T1}")
    A(f"s_add_u32 s{SO_A}, s{SO_A}, {WS_A}")
    A("v_lshlrev_b32 v16, 4, v1")
    A(f"s_lshl_b32 s{Q_T0}, s{w}, 12")
    A(f"s_add_u32 s{Q_T0}, s{Q_T0}, {L_T}")
    A(f"v_add_u32 v18, s{Q_T0}, v16")
    A(f"s_lshl_b32 s{Q_T0}, s{w}, 8")
    A(f"s_add_u32 s{Q_T0}, s{Q_T0}, {L_T+16384}")
    A(f"v_lshl_add_u32 v19, v1, 2, s{Q_T0}")
    A(f"s_lshl_b32 s{Q_T0}, s2, 2")
    A(f"s_add_u32 s{Q_T0}, s{Q_T0}, s{w}")
    A(f"s_lshl_b32 s{SO_P}, s{Q_T0}, 12")
    A(f"s_add_u32 s{SO_P}, s{SO_P}, {WS_P}")
    A(f"s_xor_b32 s{SO_O}, s{SO_P}, {4<<12}")
    A(f"s_lshl_b32 s{Q_T0}, s{Q_NH}, 15")
    A(f"s_lshl_b32 s{Q_T1}, s{Q_C}, 11")
    A(f"s_add_u32 s{Q_T0}, s{Q_T0}, s{Q_T1}")
    A(f"v_add_u32 v17, s{Q_T0}, v16")
    A(f"v_xor_b32 v15, {0x10000+2048}, v17")
    A(f"s_lshl_b32 s{Q_T0}, s{Q_NH}, 2")
    A(f"s_add_u32 s{Q_T0}, s{Q_T0}, {L_GD}")
    A("v_and_b32 v5, 1, v1")
    A(f"v_lshl_add_u32 v5, v5, 3, s{Q_T0}")
    for k in range(8): A(f"v_mov_b32 v{97+2*k}, v{STOK}")
    A("s_waitcnt vmcnt(0)")
    flag_store(A, 80, 8, STOK)
    tss(A, 5, "a"); tss(A, 2, "t")
    def ag():
        poll(A, 2, 9, STOK, "PA")
        for q in range(4):
            for i in range(2):
                A(f"buffer_load_dword v{AP+2*q+i}, v{12+i}, s[{S_WS}:{S_WS+3}], s{SO_A} offen sc1")
            if q < 3: A(f"s_add_u32 s{SO_A}, s{SO_A}, 32768")
        A(f"buffer_load_dwordx2 {vr(G,2)}, v14, s[{S_WS}:{S_WS+3}], 0 offen sc1")
    def ag2():
        for k in range(8):
            A(f"v_lshlrev_b32 v{T+2*k}, 16, v{AP+k}")
            A(f"v_and_b32 v{T+2*k+1}, 0xffff0000, v{AP+k}")
        for k in range(16):
            A(f"v_mul_f32 v{T+k}, v{G}, v{T+k}")
        A(f"ds_write_b32 v19, v{G+1}")
    def relay():
        for h in range(2):
            A(f"ds_read_b128 {vr(64+4*h,4)}, v17 offset:{1024*h}")
            A(f"ds_read_b128 {vr(72+4*h,4)}, v15 offset:{1024*h}")
        A(f"v_mov_b32 v{S_FT}, 50")
        for h in range(2):
            A(f"s_waitcnt lgkmcnt({2-2*h})")
            if h == 1: A(f"ds_write_b32 v{S_FOWN}, v{S_FT}")
            for k in range(4):
                r = 64 + 4 * h + k
                A(f"v_lshlrev_b32 v80, 16, v{r}")
                A(f"v_lshlrev_b32 v81, 16, v{r+8}")
                A(f"v_and_b32 v82, 0xffff0000, v{r}")
                A(f"v_and_b32 v83, 0xffff0000, v{r+8}")
                A("v_add_f32 v80, v80, v81")
                A("v_add_f32 v82, v82, v83")
                A(f"v_cvt_pk_bf16_f32 v{96+8*h+2*k}, v80, v82")
                if k % 2 == 1:
                    q = 2 * h + k // 2
                    A(f"buffer_store_dwordx4 {vr(96+4*q,4)}, v16, s[{S_WS}:{S_WS+3}], s{SO_P} offen offset:{1024*q} {O.PST}")
    if O.TL2:
        GOT, REL, POL = 33, 34, 35
        A(f"s_bfe_u32 s{Q_T0}, s{RT}, 0x20002")
        A(f"s_lshl_b32 s{Q_T0}, s{Q_T0}, {8+FS}")
        A(f"s_lshl_b32 s{Q_T1}, s{CT}, {5+FS}")
        A(f"s_add_u32 s{Q_T0}, s{Q_T0}, s{Q_T1}")
        A(f"s_add_u32 s{Q_T0}, s{Q_T0}, {F_A}")
        A(f"v_lshl_add_u32 v2, v1, {FS}, s{Q_T0}")
        A(f"s_lshl_b32 s{Q_T0}, s{RT}, {2+FS}")
        A(f"s_add_u32 s{Q_T0}, s{Q_T0}, {F_G}")
        A("v_and_b32 v3, 3, v1")
        A(f"v_lshl_add_u32 v3, v3, {FS}, s{Q_T0}")
        A("v_cmp_gt_u32 vcc, 32, v1")
        A(f"v_mov_b32 v6, {L_AOK}")
        A(f"s_mov_b32 s{GOT}, 0"); A(f"s_mov_b32 s{REL}, 0")
        A("v_cndmask_b32 v2, v3, v2, vcc")
        A(f"s_cmp_eq_u32 s{w}, {O.POLW}")
        A(f"s_cselect_b32 s{POL}, 1, 0")
        A(f"s_mov_b32 s{S_SPIN}, {O.SPIN}")
        A.label("T_L")
        A(f"s_cmp_eq_u32 s{POL}, 1")
        A("s_cbranch_scc0 T_NP")
        A(f"buffer_load_dword v9, v2, s[{S_WS}:{S_WS+3}], 0 offen sc1")
        A(f"s_sub_u32 s{S_SPIN}, s{S_SPIN}, 1")
        A("s_waitcnt vmcnt(0)")
        A("s_cbranch_scc1 T_OK")
        A(f"v_cmp_ne_u32 vcc, v{STOK}, v9")
        A("s_cbranch_vccnz T_NP")
        A.label("T_OK")
        A(f"ds_write_b32 v6, v{STOK+1}")
        A(f"s_mov_b32 s{POL}, 0")
        A.label("T_NP")
        A("ds_read_b32 v7, v6")
        A("ds_read_b32 v31, v5")
        A(f"s_cmp_eq_u32 s{GOT}, 0")
        A("s_waitcnt lgkmcnt(0)")
        A("s_cbranch_scc0 T_NA")
        A("v_cmp_eq_u32 vcc, 0, v7")
        A("s_cbranch_vccnz T_NA")
        tss(A, 4, "t")
        for q in range(4):
            for i in range(2):
                A(f"buffer_load_dword v{AP+2*q+i}, v{12+i}, s[{S_WS}:{S_WS+3}], s{SO_A} offen sc1")
            if q < 3: A(f"s_add_u32 s{SO_A}, s{SO_A}, 32768")
        A(f"buffer_load_dwordx2 {vr(G,2)}, v14, s[{S_WS}:{S_WS+3}], 0 offen sc1")
        A(f"s_mov_b32 s{GOT}, 1")
        A(f"s_cmp_eq_u32 s{REL}, 1")
        A("s_cbranch_scc1 T_W0")
        A.label("T_NA")
        A(f"s_cmp_eq_u32 s{REL}, 0")
        A("s_cbranch_scc0 T_SL")
        A("v_cmp_gt_u32 vcc, 9, v31")
        A("s_cbranch_vccnz T_SL")
        tss(A, 3, "t")
        relay()
        A(f"s_mov_b32 s{REL}, 1")
        A(f"s_cmp_eq_u32 s{GOT}, 1")
        A("s_cbranch_scc1 T_W4")
        A.label("T_SL")
        A(f"s_cmp_eq_u32 s{POL}, 1")
        A("s_cbranch_scc1 T_SP")
        A("s_sleep 1")
        A("s_branch T_L")
        A.label("T_SP")
        A(f"s_sleep {O.ASLP}")
        A("s_branch T_L")
        A.label("T_W0")
        A("s_waitcnt vmcnt(0)")
        A.label("T_W4")
        A("s_waitcnt vmcnt(4)")
        tss(A, 5, "t")
        ag2()
        for q in range(4):
            A(f"ds_write_b128 v18, {vr(T+4*q,4)} offset:{q*1024}")
        sw_arrive(A, S_FOWN, S_FT, 100)
        A("s_waitcnt lgkmcnt(0)")
        return
    if O.AFIRST:
        ag(); A("s_waitcnt vmcnt(0)"); ag2()
        tss(A, 3, "t")
    lwait(A, 5, 0, 31, 9, sleep=1)
    tss(A, 4 if O.AFIRST else 3, "t")
    for h in range(2):
        A(f"ds_read_b128 {vr(64+4*h,4)}, v17 offset:{1024*h}")
        A(f"ds_read_b128 {vr(72+4*h,4)}, v15 offset:{1024*h}")
    A(f"v_mov_b32 v{S_FT}, 50")
    for h in range(2):
        A(f"s_waitcnt lgkmcnt({2-2*h})")
        if h == 1: A(f"ds_write_b32 v{S_FOWN}, v{S_FT}")
        for k in range(4):
            r = 64 + 4 * h + k
            A(f"v_lshlrev_b32 v80, 16, v{r}")
            A(f"v_lshlrev_b32 v81, 16, v{r+8}")
            A(f"v_and_b32 v82, 0xffff0000, v{r}")
            A(f"v_and_b32 v83, 0xffff0000, v{r+8}")
            A("v_add_f32 v80, v80, v81")
            A("v_add_f32 v82, v82, v83")
            A(f"v_cvt_pk_bf16_f32 v{96+8*h+2*k}, v80, v82")
            if k % 2 == 1:
                q = 2 * h + k // 2
                A(f"buffer_store_dwordx4 {vr(96+4*q,4)}, v16, s[{S_WS}:{S_WS+3}], s{SO_P} offen offset:{1024*q} {O.PST}")
    if not O.AFIRST:
        ag()
        tss(A, 4, "t")
    A(f"s_mov_b32 s{S_SPIN}, {O.SPIN}")
    A.label("S_PL")
    for q in range(4):
        A(f"buffer_load_dwordx4 {vr(112+4*q,4)}, v16, s[{S_WS}:{S_WS+3}], s{SO_O} offen offset:{1024*q} sc1")
    if not O.AFIRST:
        A(f"s_cmp_eq_u32 s{S_SPIN}, {O.SPIN}")
        A("s_cbranch_scc0 S_PM")
        A("s_waitcnt vmcnt(4)")
        ag2()
        A.label("S_PM")
    A("s_waitcnt vmcnt(0)")
    for k in range(4):
        A(f"v_xor_b32 v{80+k}, v{STOK}, v{113+4*k}")
        A(f"v_xor_b32 v{84+k}, v{STOK}, v{115+4*k}")
    A("v_or3_b32 v80, v80, v81, v82")
    A("v_or3_b32 v83, v83, v84, v85")
    A("v_or3_b32 v80, v80, v86, v87")
    A("v_or_b32 v80, v80, v83")
    A("v_cmp_ne_u32 vcc, 0, v80")
    A("s_cbranch_vccz S_PD")
    A("s_sleep 1")
    A(f"s_sub_u32 s{S_SPIN}, s{S_SPIN}, 1")
    A("s_cbranch_scc0 S_PL")
    A.label("S_PD")
    tss(A, 5, "t")
    for q in range(4):
        for k in range(2):
            r = 112 + 4 * q + 2 * k
            A(f"v_lshlrev_b32 v{80+2*k}, 16, v{r}")
            A(f"v_and_b32 v{81+2*k}, 0xffff0000, v{r}")
        for k in range(4):
            A(f"v_fmac_f32 v{T+4*q+k}, v{G+1}, v{80+k}")
        A(f"ds_write_b128 v18, {vr(T+4*q,4)} offset:{q*1024}")
    sw_arrive(A, S_FOWN, S_FT, 100)
    A("s_waitcnt lgkmcnt(0)")

def diag(A, k, role):
    A("s_waitcnt vmcnt(0) lgkmcnt(0)")
    A(f"s_memtime s[{S_TS+12}:{S_TS+13}]")
    A("s_waitcnt lgkmcnt(0)")
    A(f"s_sub_u32 s64, s{S_TS+2*k}, s{S_TS+2}")
    mx = len(O.DIAG) > 2
    if not mx or role == "G":
        A(f"s_cmp_ge_u32 s{S_J}, 28")
        A("s_cselect_b32 s64, 0, s64")
    A("v_mov_b32 v2, 128"); A("v_mov_b32 v3, s64")
    A("s_mov_b64 exec, 1")
    A(f"global_atomic_{'umax' if mx else 'add'} v2, v3, s[{P_DBG}:{P_DBG+1}] sc1")
    for lab, first in (("DG0", True), ("DG1", False)):
        A("s_mov_b32 s66, 1000000")
        if first: A("s_mov_b32 s67, 3200")
        A.label(lab)
        A("s_memrealtime s[64:65]")
        A("s_waitcnt lgkmcnt(0)")
        A(f"s_sub_u32 s64, s64, s{S_TS}")
        A("s_cmp_ge_u32 s64, s67")
        A(f"s_cbranch_scc1 {lab}X")
        A("s_sub_u32 s66, s66, 1")
        A(f"s_cbranch_scc0 {lab}")
        A.label(lab + "X")
        if first:
            A("s_waitcnt vmcnt(0)")
            A(f"global_load_dword v3, v2, s[{P_DBG}:{P_DBG+1}] sc1")
            A("s_waitcnt vmcnt(0)")
            A("v_readfirstlane_b32 s67, v3")
            A(f"s_lshr_b32 s67, s67, {1 if mx else 11}")
            A("s_add_u32 s67, s67, 3500")
def fin(A, role):
    if O.DIAG is None: ts_dump(A, 0, S_W8)
    elif O.DIAG[0] == role: diag(A, O.DIAG[1], role)

KN = "gated_mix__ssm_conv_s4d__dense_activation_silu__prompt_kernel"
A = Asm()
A.raw("; @launch grid=(256,1,1) block=(512,1,1) lds=163840")
A.raw('.amdgcn_target "amdgcn-amd-amdhsa--gfx950"')
kernel_header(A, KN)
ts_real(A, 0); parts_ts(A, 1)
if O.ECP > 0:
    A(f"s_cmp_ge_u32 s2, 256")
    A(f"s_cbranch_scc1 K_END")
    A("s_getpc_b64 s[72:73]")
    A.label("K_PC0")
    A("s_load_dwordx16 s[36:51], s[0:1], 0")
    A(f"s_lshr_b32 s{S_J}, s2, 3")
    if O.ECP == 1:
        A("v_lshrrev_b32 v255, 5, v0")
        A(f"v_lshl_add_u32 v255, s{S_J}, 4, v255")
        A("v_lshlrev_b32 v255, 6, v255")
    else:
        A(f"s_and_b32 s74, s{S_J}, {32//O.ECP-1}")
        A(f"v_lshrrev_b32 v255, {5-int(math.log2(O.ECP))}, v0")
        A(f"v_lshl_add_u32 v255, s74, {4+int(math.log2(O.ECP))}, v255")
        A("v_lshlrev_b32 v255, 6, v255")
    A(f"v_min_u32 v255, K_END-K_PC0, v255")
    A("global_load_dword v255, v255, s[72:73]")
    A("s_load_dwordx8 s[52:59], s[0:1], 64")
    A("s_load_dwordx4 s[60:63], s[0:1], 96")
    A("v_lshrrev_b32 v2, 6, v0")
    A("v_and_b32 v1, 63, v0")
    A(f"v_readfirstlane_b32 s{S_WAVE}, v2")
    A(f"s_and_b32 s{S_XCD}, s2, 7")
else:
    prologue(A, "K_END")
A(f"s_mov_b32 s{S_W8}, s{S_WAVE}")
A("v_and_b32 v2, 31, v1")
A("v_lshlrev_b32 v2, 2, v2")
A(f"v_add_u32 v2, {LF}, v2")
A("v_mov_b32 v3, 0")
A("ds_write_b32 v2, v3")
A(f"s_cmp_ge_u32 s{S_WAVE}, 4")
A("s_cbranch_scc1 K_SSM")
if O.GPRIO: A(f"s_setprio {O.GPRIO}")
if O.ECP < 0:
    A(f"s_cmp_lt_u32 s{S_J}, 28")
    A("s_cbranch_scc1 K_GM")
    A("s_getpc_b64 s[72:73]")
    A.label("K_PC0")
    A(f"s_and_b32 s74, s{S_J}, 3")
    A(f"v_lshrrev_b32 v255, 1, v0")
    A(f"v_lshl_add_u32 v255, s74, 7, v255")
    A("v_lshlrev_b32 v255, 6, v255")
    A(f"v_min_u32 v255, K_END-K_PC0, v255")
    A("global_load_dword v255, v255, s[72:73]")
    A("s_branch K_IDLE")
    A.label("K_GM")
else:
    A(f"s_cmp_ge_u32 s{S_J}, 28")
    A("s_cbranch_scc1 K_IDLE")
g1_setup(A)
if O.HAB: hab_setup(A)
rot_c0(A, S_C0, S_T0)
A("s_waitcnt lgkmcnt(0)")
srd(A, S_X, P_U, L*D*2); srd(A, S_W1, P_W1, D*F*2)
vm = Vm(A); cid = {}
for x in g_chunk_dma(0): vm.op(x)
cid[0] = vm.n
if O.GPRE == 1: A("s_barrier")
if O.LOOK > 1:
    for x in g_chunk_dma(1): vm.op(x)
    cid[1] = vm.n
if O.GPRE == 2: A("s_barrier")
srd(A, S_WS, P_WS, WS_BYTES); srd(A, S_OUT, P_OUT, L*D*2)
g1_setup2(A); g_flags_setup(A); g2_setup(A)
if O.HAB: hab_setup2(A)
if O.GW2: gw2_setup(A)
if O.LOOK > 2:
    for x in g_chunk_dma(2): vm.op(x)
    cid[2] = vm.n
if O.LOOK >= 4 and O.L3 == "u":
    for x in g_chunk_dma(3): vm.op(x)
    cid[3] = vm.n
if "L" in O.X2:
    parts_ts(A, 2)
    for k in sorted(cid)[:3]:
        vm.wait(cid[k]); parts_ts(A, 3 + k)
if O.GHOLD: lwait(A, GRD, 32, GT, 1, sleep=4)
(g1_main if O.LA == 1 else g1_main2)(A, vm, cid)
tsg(A, 2, "aeh")
g1_epi(A)
tsg(A, 3, "ae")
A.label("K_G2")
if O.GW2:
    A(f"v_mov_b32 v{GT}, 12")
    A("s_waitcnt vmcnt(0)")
    A(f"ds_write_b32 v{GOWN}, v{GT}")
    lwait(A, GRD, 0, GT + 1, 12)
else: lwait(A, GRD, 48, GT, 12)
for i in range(O.PFD):
    for x in w2_read(i): A(x)
tsg(A, 4, "h")
if O.PW:
    poll(A, FV, GT, VTOK, "PH", slp=O.HSLP)
    A("s_waitcnt lgkmcnt(0)")
else:
    A(f"v_mov_b32 v{GX}, {L_HOK}")
    A(f"s_cmp_eq_u32 s{S_WAVE}, 0")
    A("s_cbranch_scc0 K_HW")
    poll(A, FV, GT, VTOK, "PH", slp=O.HSLP)
    A(f"ds_write_b32 v{GX}, v{VTOK+1}")
    A("s_waitcnt lgkmcnt(1)")
    A("s_branch K_HD")
    A.label("K_HW")
    lwait(A, GX, 0, GT, 1)
A.label("K_HD")
tsg(A, 5, "h")
tsg(A, 4, "ae"); tsg(A, 1, "sf")
g2_main(A)
A("s_waitcnt lgkmcnt(0)")
fin(A, "G")
A("s_endpgm")
A.label("K_IDLE")
if O.IPRIO != O.GPRIO: A(f"s_setprio {O.IPRIO}")
idle_tr_issue(A)
if O.CODEPF:
    A("s_getpc_b64 s[72:73]")
    A.label("K_PC")
    A(f"s_sub_u32 s72, s72, K_PC-{KN}")
    A("s_subb_u32 s73, s73, 0")
    A(f"v_lshl_add_u32 v20, s64, 5, v1")
    A("v_lshlrev_b32 v20, 7, v20")
    A(f"v_min_u32 v20, K_END-{KN}, v20")
    A("s_mov_b64 exec, 0xffffffff")
    A("global_load_dword v21, v20, s[72:73]")
    A("s_mov_b64 exec, -1")
A("s_waitcnt lgkmcnt(0)")
srd(A, S_X, P_U, L*D*2)
if any(O.W2P): srd(A, S_W2, P_W2, D*F*2); w2_touch_setup(A)
w2_touch(A, O.W2P[0], 26)
idle_tr_dma(A)
A("s_barrier")
w2_touch(A, O.W2P[1], 26)
srd(A, S_WS, P_WS, WS_BYTES); srd(A, S_OUT, P_OUT, L*D*2)
idle_tr_finish(A, 2 * len(O.W2P[1]))
g_flags_setup(A); g2_setup(A)
tsg(A, 2, "ae")
token_get(A, GX, VTOK)
A(f"s_lshl_b32 s68, s34, 4")
A(f"s_add_u32 s68, s68, s33")
A(f"s_lshl_b32 s65, s68, {FS}")
A(f"s_add_u32 s65, s65, {F_UT}")
A("s_waitcnt vmcnt(0)")
flag_store(A, 65, GT, VTOK)
tsg(A, 3, "ae")
A(f"v_mov_b32 v{GT}, 8")
A(f"ds_write_b32 v{GOWN}, v{GT} offset:16")
if O.IPRIO != O.GPRIO: A(f"s_setprio {O.GPRIO}")
w2_touch(A, O.W2P[2], 26)
idle_gate_issue(A)
w2_touch(A, O.W2P[3], 26)
if O.GW2:
    gw2_setup(A)
    lwait(A, GRD, 16, GT, 8)
    for sl in range(4):
        for x in gw2_dma(sl): A(x)
idle_gate_finish(A, 2 * len(O.W2P[3]) + (28 if O.GW2 else 0))
if not O.TL3:
    A(f"s_lshl_b32 s65, s68, {FS}")
    A(f"s_add_u32 s65, s65, {F_G}")
    A("s_waitcnt vmcnt(0)")
    flag_store(A, 65, GT, VTOK)
A("s_branch K_G2")
A.label("K_SSM")
if O.SPRIO: A(f"s_setprio {O.SPRIO}")
A(f"s_sub_u32 s{S_WAVE}, s{S_WAVE}, 4")
s_setup(A)
carry_zero(A)
A("s_getreg_b32 s31, hwreg(HW_REG_XCC_ID)")
def w2s():
    if O.W2S is None: return
    srd(A, S_W2, P_W2, D*F*2)
    A(f"s_lshr_b32 s{Q_T0}, s{S_XCD}, 1")
    A(f"s_and_b32 s{Q_T1}, s{S_XCD}, 1")
    A(f"s_lshl_b32 s{Q_T1}, s{Q_T1}, 2")
    A(f"s_add_u32 s{Q_T0}, s{Q_T0}, s{Q_T1}")
    A(f"s_lshl_b32 s{Q_T0}, s{Q_T0}, 5")
    A(f"s_add_u32 s{Q_T0}, s{Q_T0}, s{S_J}")
    A(f"s_lshl_b32 s{Q_T0}, s{Q_T0}, 1")
    A(f"s_add_u32 s{Q_T0}, s{Q_T0}, s{Q_NH}")
    A(f"s_mul_i32 s{Q_T0}, s{Q_T0}, 3584")
    A("v_min_u32 v39, 27, v1")
    A("v_lshlrev_b32 v39, 7, v39")
    A(f"buffer_load_dword v39, v39, s[{S_W2}:{S_W2+3}], s{Q_T0} offen {O.PFL2}")
def flow2():
    A(f"s_cmp_eq_u32 s{Q_C}, 1")
    A("s_cbranch_scc1 S_LD")
    A(f"s_lshl_b32 s{Q_T0}, s{Q_PAIR}, 9")
    A(f"s_lshl_b32 s{Q_T1}, s{S_WAVE}, 8")
    A(f"s_add_u32 s{Q_T0}, s{Q_T0}, s{Q_T1}")
    A(f"v_lshl_add_u32 v6, v1, 2, s{Q_T0}")
    A(f"s_lshl_b32 s{Q_T0}, s{Q_PAIR}, 2")
    A("s_waitcnt lgkmcnt(0)")
    for i, p in enumerate((P_LA, P_AI, P_CR, P_CI)):
        A(f"global_load_dword v{14+i}, v6, s[{p}:{p+1}]")
    A(f"s_load_dword s{Q_LDT}, s[{P_LDT}:{P_LDT+1}], s{Q_T0}")
    A(f"s_load_dword s{Q_DSK}, s[{P_DSK}:{P_DSK+1}], s{Q_T0}")
    A(f"s_add_u32 s28, s{P_WS}, {F_EP}")
    A(f"s_addc_u32 s29, s{P_WS+1}, 0")
    A(f"s_cmp_eq_u32 s{S_WAVE}, 1")
    A("s_cbranch_scc0 S_NT")
    A("s_load_dword s30, s[28:29], 0")
    A.label("S_NT")
    A("s_barrier")
    if O.W2S == 0: w2s()
    def tokpub():
        A(f"s_cmp_eq_u32 s{S_WAVE}, 1")
        A("s_cbranch_scc0 S_NP")
        A("s_mul_i32 s30, s30, 0x9e3779a1")
        A("s_add_u32 s30, s30, 0x7f4a7c10")
        A("s_and_b32 s30, s30, -16")
        A(f"v_mov_b32 v{STOK}, s30")
        A(f"v_mov_b32 v{STOK+1}, 1")
        A(f"v_mov_b32 v34, {L_RDY}")
        A(f"ds_write_b64 v34, {vr(STOK,2)}")
        A(f"s_waitcnt vmcnt({1 if O.W2S == 0 else 0})")
        A(f"s_lshl_b32 s28, s2, {FS}")
        A(f"s_add_u32 s28, s28, {F_HERE}")
        flag_store(A, 28, 36, STOK)
        A("s_branch S_NQ")
        A.label("S_NP")
        A(f"s_waitcnt vmcnt({1 if O.W2S == 0 else 0})")
        A.label("S_NQ")
    kgen2(A, 2, tokpub)
    tss(A, 5, "k")
    A("s_cmp_eq_u32 s2, 0")
    A("s_cbranch_scc0 S_UW")
    A(f"s_cmp_eq_u32 s{S_WAVE}, 1")
    A("s_cbranch_scc0 S_UW")
    for i in range(4):
        A(f"v_lshlrev_b32 v8, {FS}, v1")
        A(f"v_add_u32 v8, {F_HERE+(64<<FS)*i}, v8")
        poll(A, 8, 9, STOK, "PE")
    A(f"s_mov_b32 s{Q_T0}, {F_EP}")
    flag_store(A, Q_T0, 8, STOK)
    A.label("S_UW")
    A("s_branch S_CV")
    A.label("S_LD")
    if O.LPRIO != O.SPRIO: A(f"s_setprio {O.LPRIO}")
    loader_setup(A)
    A("s_waitcnt lgkmcnt(0)")
    srd(A, S_X, P_U, L*D*2); srd(A, S_W1, P_W1, D*F*2); srd(A, S_W2, P_W2, D*F*2)
    srd(A, S_WS, P_WS, WS_BYTES)
    A("s_barrier")
    if O.W2S == 1: w2s()
    if O.LDLY: A(f"s_sleep {O.LDLY}")
    loader2(A)
def flow1():
    A(f"s_lshl_b32 s{Q_T0}, s{Q_PAIR}, 9")
    A(f"s_lshl_b32 s{Q_T1}, s{S_WAVE}, 7")
    A(f"s_add_u32 s{Q_T0}, s{Q_T0}, s{Q_T1}")
    A(f"v_lshl_add_u32 v6, v1, 1, s{Q_T0}")
    A(f"s_lshl_b32 s{Q_T0}, s{Q_PAIR}, 2")
    A("s_waitcnt lgkmcnt(0)")
    for i, p in enumerate((P_LA, P_AI, P_CR, P_CI)):
        A(f"global_load_ushort v{2+i}, v6, s[{p}:{p+1}]")
    A(f"s_load_dword s{Q_LDT}, s[{P_LDT}:{P_LDT+1}], s{Q_T0}")
    A(f"s_load_dword s{Q_DSK}, s[{P_DSK}:{P_DSK+1}], s{Q_T0}")
    A(f"s_add_u32 s28, s{P_WS}, {F_EP}")
    A(f"s_addc_u32 s29, s{P_WS+1}, 0")
    A(f"s_cmp_eq_u32 s{S_WAVE}, 1")
    A("s_cbranch_scc0 S_NT")
    A("s_load_dword s30, s[28:29], 0")
    A.label("S_NT")
    A("s_barrier")
    if O.TCH:
        A(f"s_cmp_eq_u32 s{Q_C}, 1")
        A("s_cbranch_scc1 S_T2")
        A(f"s_cmp_eq_u32 s{Q_NH}, 1")
        A("s_cbranch_scc1 S_T1")
        srd(A, S_X, P_U, L*D*2)
        A(f"s_lshl_b32 s{Q_T0}, s{Q_PAIR}, 13")
        A("v_lshlrev_b32 v39, 7, v1" if "x" in O.TCH else "v_mov_b32 v39, 0")
        A(f"buffer_load_dword v39, v39, s[{S_X}:{S_X+3}], s{Q_T0} offen")
        A("s_branch S_T3")
        A.label("S_T1")
        srd(A, S_W1, P_W1, D*F*2)
        A(f"s_add_u32 s{Q_T0}, s{S_XCD}, {2*O.TR}")
        A(f"s_bfe_u32 s{Q_T0}, s{Q_T0}, 0x20001")
        A(f"s_lshl_b32 s{Q_T0}, s{Q_T0}, 5")
        A(f"s_add_u32 s{Q_T0}, s{Q_T0}, s{S_J}")
        A(f"s_mul_i32 s{Q_T0}, s{Q_T0}, {4*2*F}")
        A(f"s_and_b32 s{Q_T1}, s{S_XCD}, 1")
        A(f"s_mul_i32 s{Q_T1}, s{Q_T1}, {F}")
        A(f"s_add_u32 s{Q_T0}, s{Q_T0}, s{Q_T1}")
        A("v_and_b32 v38, 15, v1")
        A("v_min_u32 v38, 13, v38")
        A("v_lshrrev_b32 v39, 4, v1")
        A(f"v_mul_u32_u24 v39, {2*F}, v39")
        A("v_lshl_add_u32 v39, v38, 7, v39" if "w" in O.TCH else "v_mov_b32 v39, 0")
        A(f"buffer_load_dword v39, v39, s[{S_W1}:{S_W1+3}], s{Q_T0} offen")
        A("s_branch S_T3")
        A.label("S_T2")
        w2s()
        A.label("S_T3")
    elif O.W2H: pass
    elif O.W2S is not None:
        srd(A, S_W2, P_W2, D*F*2)
        A(f"s_lshr_b32 s{Q_T0}, s{S_XCD}, 1")
        A(f"s_and_b32 s{Q_T1}, s{S_XCD}, 1")
        A(f"s_lshl_b32 s{Q_T1}, s{Q_T1}, 2")
        A(f"s_add_u32 s{Q_T0}, s{Q_T0}, s{Q_T1}")
        A(f"s_lshl_b32 s{Q_T0}, s{Q_T0}, 5")
        A(f"s_add_u32 s{Q_T0}, s{Q_T0}, s{S_J}")
        A(f"s_mul_i32 s{Q_T0}, s{Q_T0}, 7168")
        A(f"s_mul_i32 s{Q_T1}, s{S_WAVE}, 1792")
        A(f"s_add_u32 s{Q_T0}, s{Q_T0}, s{Q_T1}")
        A("v_min_u32 v39, 13, v1")
        A("v_lshlrev_b32 v39, 7, v39")
        A(f"buffer_load_dword v39, v39, s[{S_W2}:{S_W2+3}], s{Q_T0} offen {O.PFL2}")
    def pre():
        if O.GW2: srd(A, S_WS, P_WS, WS_BYTES); return
        srd(A, S_X, P_U, L*D*2); srd(A, S_W1, P_W1, D*F*2); srd(A, S_W2, P_W2, D*F*2)
        srd(A, S_WS, P_WS, WS_BYTES)
        loader_setup(A)
    def tokpub():
        tss(A, 2, "ak")
        A(f"s_cmp_eq_u32 s{S_WAVE}, 1")
        A("s_cbranch_scc0 S_NP")
        A("s_mul_i32 s30, s30, 0x9e3779a1")
        A("s_add_u32 s30, s30, 0x7f4a7c10")
        A("s_and_b32 s30, s30, -16")
        A("s_and_b32 s31, s31, 15")
        A("s_or_b32 s31, s31, s30")
        A(f"v_mov_b32 v{STOK}, s30")
        A(f"v_mov_b32 v{STOK+1}, 1")
        A(f"v_mov_b32 v34, {L_RDY}")
        A(f"ds_write_b64 v34, {vr(STOK,2)}")
        A(f"v_mov_b32 v35, s31")
        A(f"s_lshl_b32 s28, s2, {FS}")
        A(f"s_add_u32 s28, s28, {F_HERE}")
        flag_store(A, 28, 36, 35)
        A.label("S_NP")
    def khook():
        tss(A, 3, "k")
        if O.W2H == 1:
            A(f"s_cmp_eq_u32 s{Q_C}, 1")
            A("s_cbranch_scc0 S_T4")
            w2s()
            A.label("S_T4")
    kgen(A, later=0 if (O.W2S is None or O.W2H) else 1, hookA=tokpub, pre=pre, hook=khook)
    tss(A, 4, "k")
    if O.W2H == 2:
        A(f"s_cmp_eq_u32 s{Q_C}, 0")
        A("s_cbranch_scc0 S_T4")
        w2s()
        A.label("S_T4")
    kgen_exchange_write(A)
    A("s_waitcnt lgkmcnt(0)")
    sw_arrive(A, S_FOWN, S_FT, 1)
    def kfin():
        sw_wait(A, S_FRD, S_FT, 1, sleep=1)
        kgen_final(A)
        token_get(A, 8, STOK)
    tss(A, 3, "a")
    if O.GW2:
        token_get(A, 16, STOK)
        A(f"s_cmp_eq_u32 s{S_WAVE}, {O.UW}")
        A("s_cbranch_scc0 S_K1")
        A(f"s_lshl_b32 s{Q_T0}, s{S_XCD}, {4+FS}")
        A(f"s_add_u32 s{Q_T0}, s{Q_T0}, {F_UT}")
        A("v_and_b32 v16, 15, v1")
        A(f"v_lshl_add_u32 v16, v16, {FS}, s{Q_T0}")
        poll(A, 16, 17, STOK, "PU")
        ut2(A, 0)
        A.label("S_K1")
        sw_wait(A, S_FRD, S_FT, 1, sleep=1)
        kgen_final(A)
        tss(A, 5, "k")
        A(f"s_cmp_eq_u32 s{S_WAVE}, {O.UW}")
        A("s_cbranch_scc0 S_K2")
        ut2(A, 1)
        A.label("S_K2")
        A("s_cmp_eq_u32 s2, 0")
        A("s_cbranch_scc0 S_CV")
        A(f"s_cmp_eq_u32 s{S_WAVE}, 1")
        A("s_cbranch_scc0 S_CV")
        for i in range(4):
            A(f"v_lshlrev_b32 v8, {FS}, v1")
            A(f"v_add_u32 v8, {F_HERE+(64<<FS)*i}, v8")
            poll(A, 8, 9, STOK, "PE", mask=True)
        A(f"s_mov_b32 s{Q_T0}, {F_EP}")
        flag_store(A, Q_T0, 8, STOK)
        return
    A(f"s_cmp_eq_u32 s{Q_C}, 1")
    A("s_cbranch_scc1 S_LD")
    kfin()
    tss(A, 5, "k")
    A(f"s_cmp_eq_u32 s{S_WAVE}, 1")
    A("s_cbranch_scc1 S_VD")
    A(f"s_lshl_b32 s{Q_T0}, s{S_XCD}, {4+FS}")
    A(f"s_add_u32 s{Q_T0}, s{Q_T0}, {F_UT}")
    A("v_and_b32 v8, 15, v1")
    A(f"v_lshl_add_u32 v8, v8, {FS}, s{Q_T0}")
    poll(A, 8, 9, STOK, "PU")
    ut2(A)
    A("s_branch S_CV")
    A.label("S_VD")
    if O.PT:
        A(f"s_lshr_b32 s{Q_T0}, s{S_J}, 2")
        A(f"s_lshl_b32 s{Q_T0}, s{Q_T0}, 18")
        A(f"s_xor_b32 s{Q_T1}, s{S_XCD}, 2")
        A(f"s_lshl_b32 s{Q_T1}, s{Q_T1}, 10")
        A(f"s_add_u32 s{Q_T0}, s{Q_T0}, s{Q_T1}")
        A(f"s_add_u32 s{Q_T0}, s{Q_T0}, {WS_A}")
        A(f"v_lshl_add_u32 v8, v1, 13, s{Q_T0}")
        A(f"s_lshl_b32 s{Q_T0}, s2, 14")
        A(f"s_add_u32 s{Q_T0}, s{Q_T0}, {WS_P}")
        A("v_and_b32 v9, 3, v1")
        A(f"v_lshl_add_u32 v9, v9, 12, s{Q_T0}")
        A("v_cmp_gt_u32 vcc, 32, v1")
        A(f"s_lshl_b32 s{Q_T0}, s{Q_PAIR}, 13")
        A(f"s_add_u32 s{Q_T0}, s{Q_T0}, s{Q_T1}")
        A("v_cndmask_b32 v8, v9, v8, vcc")
        A(f"s_add_u32 s{Q_T0}, s{Q_T0}, {WS_A}")
        A("v_and_b32 v9, 1, v1")
        A("v_lshlrev_b32 v9, 12, v9")
        A(f"v_xor_b32 v9, s{Q_T0}, v9")
        A("v_cmp_gt_u32 vcc, 48, v1")
        srd(A, S_OUT, P_OUT, L*D*2)
        A("v_cndmask_b32 v8, v9, v8, vcc")
        if "w" in O.PT: A(f"buffer_load_dword v38, v8, s[{S_WS}:{S_WS+3}], 0 offen")
        A(f"s_and_b32 s{Q_T0}, s{S_XCD}, 6")
        A(f"s_lshl_b32 s{Q_T0}, s{Q_T0}, 1")
        A(f"s_and_b32 s{Q_T1}, s{S_J}, 3")
        A(f"s_add_u32 s{Q_T0}, s{Q_T0}, s{Q_T1}")
        A(f"s_lshl_b32 s{Q_T0}, s{Q_T0}, 1")
        A(f"s_and_b32 s{Q_T1}, s{S_XCD}, 1")
        A(f"s_add_u32 s{Q_T0}, s{Q_T0}, s{Q_T1}")
        A(f"s_lshl_b32 s{Q_T0}, s{Q_T0}, 16")
        A(f"s_lshr_b32 s{Q_T1}, s{S_J}, 2")
        A(f"s_lshl_b32 s{Q_T1}, s{Q_T1}, 7")
        A(f"s_add_u32 s{Q_T0}, s{Q_T0}, s{Q_T1}")
        if "O" in O.PT: A("v_lshlrev_b32 v9, 10, v1")
        else:
            A("v_and_b32 v9, 15, v1")
            A("v_lshlrev_b32 v9, 12, v9")
        if "o" in O.PT.lower(): A(f"buffer_load_dword v37, v9, s[{S_OUT}:{S_OUT+3}], s{Q_T0} offen")
    if O.VERD:
        A(f"s_and_b32 s{Q_T0}, s2, 31")
        A(f"s_lshl_b32 s{Q_T0}, s{Q_T0}, {FS}")
        A(f"s_add_u32 s{Q_T0}, s{Q_T0}, {F_HERE}")
        A("v_and_b32 v8, 7, v1")
        A(f"v_lshl_add_u32 v8, v8, {5+FS}, s{Q_T0}")
        poll(A, 8, 9, STOK, "PV", mask=True)
        A("v_cmp_ne_u32 vcc, s31, v9")
        A("s_cmp_eq_u64 vcc, 0")
        A(f"s_cselect_b32 s{Q_T0}, 1, 2")
        A(f"v_mov_b32 v9, s{Q_T0}")
        A(f"v_mov_b32 v8, {L_VERD}")
        A("ds_write_b32 v8, v9")
    A("s_cmp_eq_u32 s2, 0")
    A("s_cbranch_scc0 S_CV")
    for i in range(4):
        A(f"v_lshlrev_b32 v8, {FS}, v1")
        A(f"v_add_u32 v8, {F_HERE+(64<<FS)*i}, v8")
        poll(A, 8, 9, STOK, "PE", mask=True)
    A(f"s_mov_b32 s{Q_T0}, {F_EP}")
    flag_store(A, Q_T0, 8, STOK)
    A("s_branch S_CV")
    A.label("S_LD")
    loader(A, kfin)

(flow2 if O.DL else flow1)()
A.label("S_CV")
conv_setup(A)
A(f"v_mov_b32 v{LV}, 12"); A(f"v_mov_b32 v{LV+1}, 12")
s_barrier(A, 2)
tss(A, 4, "a")
if O.CPRIO != O.SPRIO: A(f"s_setprio {O.CPRIO}")
conv(A, inj=None if O.GW2 else (O.PUBM, ["s_waitcnt vmcnt(0)", f"ds_write_b64 v{LSA}, {vr(LV,2)}"]))
if O.CPRIO != O.TPRIO: A(f"s_setprio {O.TPRIO}")
if O.TL3:
    conv_final3(A); s_tail3(A)
else:
    s_barrier(A, 3)
    conv_final(A, "sc1")
    s_tail(A)
fin(A, "S")
A.label("K_END")
A("s_endpgm")
kernel_desc(A, KN, 256)
open(sys.argv[1], "w").write(A.text())
```

```python
import sys; sys.path.insert(0, "gen")
import parts
from parts import *
import ssm
from ssm import *

class Opt: pass
O = Opt()
O.TS = False
O.ROT = (0, 0, 2, 1)
O.SPRIO = 3; O.CPRIO = 0; O.GPRIO = 1; O.TPRIO = 3
O.CODEPF = True
O.KROT = 0; O.ECP = 0; O.EPOL = 0
import math
O.SPIN = 100000
O.SLP = 4; O.HSLP = 1
O.TSC = None; O.TSG = "a"; O.TSS = "a"
O.ARR = 1
O.DEPTH = 14
O.PUBM = 12
O.SLOW = False
O.DIAG = None
O.HFS = 8
O.HLD = "sc1"; O.HST = "sc1"; O.GHOLD = False; O.VERD = False; O.NA = 4; O.PFD = 2; O.NOPK = True; O.KG2 = True; O.KLO = "pk"; O.KHI = "sc"; O.LFIN = 7; O.TOUCH = False; O.PST = "sc1"; O.AFIRST = False; O.XFL = ""; O.W1FL = ""; O.W2FL = ""; O.TFL = "nt"; O.UFL = ""; O.PDLY = 0; O.LOOK = 4; O.PFL = 99; O.L3 = "i"; O.IPRIO = 3; O.TAILK = 0
O.X2 = ""; O.ST = (1, 14, 28, 42)
O.HAB = False; O.BS = 8; O.FA = 6; O.PW = False; O.TCH = ""; O.TR = 2; O.W2H = False; O.PT = ""; O.APS = 3; O.XF = 0; O.RSLP = 0; O.XQ = None; O.XR = 2; O.TL3 = False; O.ASTEP = 48
O.GW2 = False; O.GW2N = 3; O.W2AF = 0; O.UW = 3
O.TL2 = False; O.PSTEP = 52; O.SPG = 3; O.POLW = 3; O.ASLP = 8
O.GPRE = 1
O.DL = False; O.LPRIO = 3; O.LSLP = 1; O.LDLY = 0
O.W2S = None
O.W2P = ((), (), (), ()); O.PFL2 = ""; O.UOWN = False
O.LA = 1; O.RSP = (2, 4, 6); O.PPOS = 0
O.DSL = (6, 7, 8, 10, 11, 12, 14, 15)
O.PAW = 2
for a in sys.argv[2:]: exec("O." + a)
parts.TS = O.TS
ssm.KG2 = O.KG2; ssm.KLO = O.KLO; ssm.KHI = O.KHI
parts.gflag_setup = lambda A: None

LF = LDS_SSM + 31744
L_GL, L_GD, L_SB, L_SL, L_RDY, L_HOK, L_VERD = LF, LF + 16, LF + 32, LF + 48, LF + 64, LF + 72, LF + 76
L_AOK = LF + 80
L_DUMMY = LF + 128
ssm.LDS_SFLAG = L_SB
FS = 8
F_HERE, F_UT, F_G, F_A, F_H, F_P, F_EP = [WS_FLAG + (x << FS) for x in (0, 256, 384, 512, 1536, 2560, 3584)]
assert F_EP + 256 <= (13 << 20)
WS_P = 16 << 20
WS_BYTES = (24 if O.TL3 else 20) << 20
WS_A2 = 20 << 20
STOK = 32
S_W8, S_SPIN, S_HF = 27, 85, 32

parts_ts = ts
def tsg(A, i, mode="a"):
    if O.TSC: return
    if O.TSG in mode: parts_ts(A, i)
def tss(A, i, mode="a"):
    if O.TSS in mode: parts_ts(A, i)

class Vm:
    def __init__(self, A): self.A = A; self.n = 0; self.done = 0
    def op(self, s):
        self.A(s)
        if s.startswith("buffer_") or s.startswith("global_"): self.n += 1
        return self.n
    def cnt(self, idn):
        k = min(self.n - idn, 63); self.done = max(self.done, self.n - k); return k
    def wait(self, idn, extra=""):
        if idn <= self.done:
            if extra: self.A(f"s_waitcnt {extra}")
            return
        self.A(f"s_waitcnt vmcnt({self.cnt(idn)}) {extra}")

def poll(A, vaddr, vt, tok, name, slp=None, mask=False):
    l = A.newlabel(name); d = A.newlabel(name)
    A(f"s_mov_b32 s{S_SPIN}, {O.SPIN}")
    A.label(l)
    A(f"buffer_load_dword v{vt}, v{vaddr}, s[{S_WS}:{S_WS+3}], 0 offen sc1")
    A("s_waitcnt vmcnt(0)")
    if mask:
        A(f"v_and_b32 v{vt+1}, -16, v{vt}")
        A(f"v_cmp_ne_u32 vcc, v{tok}, v{vt+1}")
    else:
        A(f"v_cmp_ne_u32 vcc, v{tok}, v{vt}")
    A(f"s_cbranch_vccz {d}")
    A(f"s_sleep {O.SLP if slp is None else slp}")
    A(f"s_sub_u32 s{S_SPIN}, s{S_SPIN}, 1")
    A(f"s_cbranch_scc0 {l}")
    A.label(d)

def lwait(A, vaddr, off, vt, val, issued=False, sleep=1):
    lab = A.newlabel("LW"); done = A.newlabel("LWD")
    if not issued: A(f"ds_read_b32 v{vt}, v{vaddr} offset:{off}")
    A("s_waitcnt lgkmcnt(0)")
    A(f"v_cmp_gt_u32 vcc, {val}, v{vt}")
    A(f"s_cbranch_vccz {done}")
    A.label(lab)
    if sleep: A(f"s_sleep {sleep}")
    A(f"ds_read_b32 v{vt}, v{vaddr} offset:{off}")
    A("s_waitcnt lgkmcnt(0)")
    A(f"v_cmp_gt_u32 vcc, {val}, v{vt}")
    A(f"s_cbranch_vccnz {lab}")
    A.label(done)

def token_get(A, va, tok):
    l = A.newlabel("RW"); d = A.newlabel("RW")
    A(f"v_mov_b32 v{va}, {L_RDY}")
    A.label(l)
    A(f"ds_read_b64 {vr(tok,2)}, v{va}")
    A("s_waitcnt lgkmcnt(0)")
    A(f"v_cmp_ne_u32 vcc, 1, v{tok+1}")
    A(f"s_cbranch_vccz {d}")
    A("s_sleep 1")
    A(f"s_branch {l}")
    A.label(d)

def flag_store(A, soff, va, vt, fl="sc1"):
    A(f"v_mov_b32 v{va}, 0")
    A("s_mov_b64 exec, 1")
    A(f"buffer_store_dword v{vt}, v{va}, s[{S_WS}:{S_WS+3}], s{soff} offen {fl}")
    A("s_mov_b64 exec, -1")

def rot_c0(A, dst, t0):
    a, b, c, d = O.ROT
    A(f"s_mov_b32 s{dst}, 0")
    if a: A(f"s_and_b32 s{t0}, s{S_J}, 3"); A(f"s_mul_i32 s{dst}, s{t0}, {a}")
    if b: A(f"s_lshr_b32 s{t0}, s{S_J}, 2"); A(f"s_mul_i32 s{t0}, s{t0}, {b}"); A(f"s_add_u32 s{dst}, s{dst}, s{t0}")
    if c: A(f"s_lshr_b32 s{t0}, s{S_XCD}, 1"); A(f"s_mul_i32 s{t0}, s{t0}, {c}"); A(f"s_add_u32 s{dst}, s{dst}, s{t0}")
    if d: A(f"s_and_b32 s{t0}, s{S_XCD}, 1"); A(f"s_mul_i32 s{t0}, s{t0}, {d}"); A(f"s_add_u32 s{dst}, s{dst}, s{t0}")

GOWN, GRD, GT, HV, AR, RW, FV, VTOK, GX = 50, 51, 52, 54, 56, 58, 59, 60, 62
ACCA, ACCB, AF, PK, HR0 = 64, 96, 128, 168, 184
OV, RX, TV = 55, 63, 49
FVB = 48
S_OO, S_PO, S_P1, S_PF = 76, 77, 78, 79
L_T = LDS_SSM
STMP = 160
S_HL, S_HR, S_C0 = 80, 81, 84

def g_flags_setup(A):
    A(f"s_lshl_b32 s{S_T0}, s{S_WAVE}, 2")
    A(f"s_add_u32 s{S_T0}, s{S_T0}, {LF}")
    A(f"v_mov_b32 v{GOWN}, s{S_T0}")
    A(f"v_and_b32 v{GRD}, 3, v1")
    A(f"v_lshlrev_b32 v{GRD}, 2, v{GRD}")
    A(f"v_add_u32 v{GRD}, {LF}, v{GRD}")

def krot(A, d, sh):
    A(f"s_lshr_b32 s{d}, s{S_J}, 2")
    if O.KROT == 1:
        A(f"s_cmp_eq_u32 s{d}, 7")
        A(f"s_cselect_b32 s{d}, 3, s{d}")
    elif O.KROT == 2:
        A(f"s_and_b32 s{d}, s{d}, 3")
        A(f"s_lshl_b32 s{d}, s{d}, 1")
    elif O.KROT == 3:
        A(f"s_and_b32 s{d}, s{d}, 1")
        A(f"s_mul_i32 s{d}, s{d}, 3")
    A(f"s_lshl_b32 s{d}, s{d}, {sh}")
def g2_setup(A):
    w = S_WAVE; T = 30
    if O.KROT: krot(A, 82, 12)
    A(f"s_and_b32 s{S_T0}, s{S_XCD}, 6")
    A(f"s_lshl_b32 s{S_T0}, s{S_T0}, 1")
    A(f"s_and_b32 s{S_T1}, s{S_J}, 3")
    A(f"s_add_u32 s{S_T0}, s{S_T0}, s{S_T1}")
    A(f"s_and_b32 s{S_T1}, s{S_XCD}, 1")
    A(f"s_lshl_b32 s{S_HF}, s{S_T0}, 1")
    A(f"s_add_u32 s{S_HF}, s{S_HF}, s{S_T1}")
    A(f"s_lshl_b32 s{S_HF}, s{S_HF}, {5+O.HFS}")
    A(f"s_add_u32 s{S_HF}, s{S_HF}, {F_H}")
    A(f"v_min_u32 v{T}, 27, v1")
    A(f"v_lshl_add_u32 v{FV}, v{T}, {O.HFS}, s{S_HF}")
    if O.HAB:
        A(f"s_and_b32 s{S_HR}, s{w}, 1")
        A(f"s_lshl_b32 s{S_HR}, s{S_HR}, 1")
        A(f"s_lshr_b32 s{S_HL}, s{w}, 1")
        A(f"s_add_u32 s{S_HR}, s{S_HR}, s{S_HL}")
        A(f"s_mul_i32 s{S_HR}, s{S_HR}, 7")
        A(f"v_min_u32 v{T}, 6, v1")
        A(f"v_add_u32 v{T}, s{S_HR}, v{T}")
        A(f"v_lshl_add_u32 v{FV if O.PW else FVB}, v{T}, {O.HFS}, s{S_HF}")
        A(f"v_add_u32 v{FVB}, {F_P-F_H}, v{FV if O.PW else FVB}")
    A(f"s_lshl_b32 s{S_T0}, s{S_T0}, 2")
    A(f"s_and_b32 s{S_HR}, s{w}, 1")
    A(f"s_add_u32 s{S_T0}, s{S_T0}, s{S_HR}")
    A(f"s_lshl_b32 s{S_OO}, s{S_T1}, 1")
    A(f"s_add_u32 s{S_OO}, s{S_OO}, s{S_T0}")
    A(f"s_xor_b32 s{S_HL}, s{S_OO}, 2")
    A(f"s_mul_i32 s{S_HL}, s{S_HL}, 112")
    A(f"s_mul_i32 s{S_HR}, s{S_OO}, 112")
    A(f"s_lshl_b32 s{S_T1}, s{S_T1}, 1")
    A(f"s_lshr_b32 s{S_T0}, s{w}, 1")
    A(f"s_add_u32 s{S_T1}, s{S_T1}, s{S_T0}")
    A(f"s_mul_i32 s{S_T1}, s{S_T1}, 28")
    A(f"s_add_u32 s{S_HL}, s{S_HL}, s{S_T1}")
    A(f"s_add_u32 s{S_HR}, s{S_HR}, s{S_T1}")
    A(f"s_lshl_b32 s{S_HL}, s{S_HL}, 10")
    A(f"s_lshl_b32 s{S_HR}, s{S_HR}, 10")
    A(f"s_lshl_b32 s{S_OO}, s{S_OO}, 15")
    A(f"s_lshr_b32 s{S_T1}, s{S_J}, 2")
    A(f"s_lshl_b32 s{S_T1}, s{S_T1}, 1")
    A(f"s_add_u32 s{S_T1}, s{S_T1}, s{S_T0}")
    A(f"s_lshl_b32 s{S_T1}, s{S_T1}, 6")
    A(f"s_add_u32 s{S_OO}, s{S_OO}, s{S_T1}")
    A(f"v_lshlrev_b32 v{HV}, 4, v1")
    A(f"s_lshl_b32 s{S_T1}, s{w}, 15")
    A(f"v_add_u32 v{RW}, s{S_T1}, v{HV}")
    A(f"v_xor_b32 v{RX}, 0x10000, v{RW}")
    A(f"s_lshl_b32 s{S_T1}, s{w}, 12")
    A(f"s_add_u32 s{S_T1}, s{S_T1}, {L_T}")
    A(f"v_add_u32 v{TV}, s{S_T1}, v{HV}")
    A(f"v_lshrrev_b32 v{T+1}, 5, v1")
    A(f"v_and_b32 v{T}, 31, v1")
    A(f"v_lshlrev_b32 v{T}, 10, v{T}")
    A(f"v_lshl_add_u32 v{OV}, v{T+1}, 4, v{T}")
    A(f"v_bfe_u32 v{T+2}, v1, 2, 2")
    A(f"v_bfe_u32 v{T+3}, v1, 4, 1")
    A(f"v_bfe_u32 v{T+4}, v1, 1, 1")
    A(f"v_lshl_add_u32 v{T+3}, v{T+3}, 1, v{T+4}")
    A(f"v_bfe_u32 v{T+4}, v1, 3, 1")
    A(f"v_xor_b32 v{T+4}, s{S_T0}, v{T+4}")
    A(f"v_lshl_add_u32 v{T+3}, v{T+4}, 2, v{T+3}")
    A(f"v_lshl_add_u32 v{T+2}, v{T+1}, 2, v{T+2}")
    A(f"v_lshlrev_b32 v{T+2}, 7, v{T+2}")
    A(f"v_lshl_add_u32 v{T+2}, v{T+3}, 4, v{T+2}")
    A(f"v_and_b32 v{T+4}, 1, v1")
    A(f"v_lshl_add_u32 v{T+2}, v{T+4}, 3, v{T+2}")
    A(f"s_lshl_b32 s{S_T0}, s{S_T0}, 16")
    A(f"v_add_u32 v{AR}, s{S_T0}, v{T+2}")
    A(f"v_xor_b32 v{AR+1}, 64, v{AR}")

def w2_read(i):
    k = i % 28; dst = AF + 8 * (i % O.NA)
    o = (k // 14) * 32768 + 4096 + (k % 14) * 2048
    return [f"ds_read_b64_tr_b16 {vr(dst+4*a+2*x,2)}, v{AR+a} offset:{o+x*1024}" for a in range(2) for x in range(2)]
HQ = {}
def h_load(i):
    base, k = (S_HL, i) if i < 28 else (S_HR, i - 28)
    pre = [f"s_add_u32 s{S_T0}, s{base}, {k*1024}"] if k % 4 == 0 else []
    if O.KROT and k == 0:
        pre = [f"s_add_u32 s{S_T0}, s{base}, s82", f"s_add_u32 s83, s{base}, {28*1024}"]
    elif O.KROT and k % 4 == 0:
        pre = [f"s_add_u32 s{S_T0}, s{S_T0}, 4096", f"s_cmp_eq_u32 s{S_T0}, s83", f"s_cselect_b32 s{S_T0}, s{base}, s{S_T0}"]
    return pre + [f"buffer_load_dwordx4 {vr(HQ[i],4)}, v{HV}, s[{S_WS}:{S_WS+3}], s{S_T0} offen offset:{(k%4)*1024} {O.HLD}"]

def g_chunk_dma(cc):
    slot = cc % 4
    out = [f"s_add_u32 s{S_HO}, s{S_C0}, {cc}", f"s_and_b32 s{S_HO}, s{S_HO}, 7",
           f"s_lshl_b32 s{S_T1}, s{S_HO}, 7", f"s_add_u32 m0, s{S_M0X}, {slot*32768}", f"s_add_u32 s{S_T1}, s{S_T1}, s{S_XO}"]
    for i in range(4):
        out.append(f"buffer_load_dwordx4 v{G1_XD+i}, s[{S_X}:{S_X+3}], s{S_T1} offen offset:{i*1024} {O.XFL} lds")
    out += [f"s_mul_i32 s{S_T1}, s{S_HO}, {64*2*F}", f"s_add_u32 m0, s{S_M0X}, {slot*32768+16384}", f"s_add_u32 s{S_T1}, s{S_T1}, s{S_WO}"]
    for i in range(4):
        out.append(f"buffer_load_dwordx4 v{G1_WD+i}, s[{S_W1}:{S_W1+3}], s{S_T1} offen offset:{i*1024} {O.W1FL} lds")
    return out

VW2, S_W2O, S_W2M = 22, 78, 79
def gw2_setup(A):
    w = S_WAVE
    srd(A, S_W2, P_W2, D*F*2)
    A("v_lshrrev_b32 v30, 3, v1")
    A("v_and_b32 v31, 7, v1")
    A("v_bfe_u32 v32, v1, 4, 1")
    A("v_lshlrev_b32 v32, 2, v32")
    A("v_xor_b32 v31, v31, v32")
    A("v_lshlrev_b32 v30, 10, v30")
    A(f"v_lshl_add_u32 v{VW2}, v31, 4, v30")
    A(f"s_and_b32 s{S_T0}, s{S_XCD}, 1")
    A(f"s_lshl_b32 s{S_T0}, s{S_T0}, 3")
    A(f"s_and_b32 s{S_T1}, s{w}, 1")
    A(f"s_add_u32 s{S_T0}, s{S_T0}, s{S_T1}")
    A(f"s_mul_i32 s{S_W2O}, s{S_T0}, {7*16384}")
    A(f"s_mul_i32 s{S_W2M}, s{S_T1}, {7*2048}")
    A(f"s_lshr_b32 s{S_T0}, s{S_J}, 2")
    A(f"s_lshl_b32 s{S_T0}, s{S_T0}, 7")
    A(f"s_add_u32 s{S_W2O}, s{S_W2O}, s{S_T0}")
    A(f"s_lshr_b32 s{S_T0}, s{w}, 1")
    A(f"s_lshl_b32 s{S_T1}, s{S_T0}, 13")
    A(f"s_add_u32 s{S_W2O}, s{S_W2O}, s{S_T1}")
    A(f"s_lshl_b32 s{S_T1}, s{S_T0}, 10")
    A(f"s_add_u32 s{S_W2M}, s{S_W2M}, s{S_T1}")
def gw2_dma(sl):
    out = []
    for k in range(7):
        out += [f"s_add_u32 m0, s{S_W2M}, {sl*32768+4096+k*2048}", f"s_add_u32 s{S_T1}, s{S_W2O}, {(14*sl+k)*16384}",
                f"buffer_load_dwordx4 v{VW2}, s[{S_W2}:{S_W2+3}], s{S_T1} offen {O.W2FL} lds"]
    return out

def g1_main(A, vm, cid):
    vm.wait(cid[0])
    A(f"v_mov_b32 v{GT}, 1"); A(f"ds_write_b32 v{GOWN}, v{GT}")
    lwait(A, GRD, 0, GT + 1, 1, sleep=0)
    for r in g1_reads(0): A(r)
    for c in range(8):
        if O.TSC and c in O.TSC: parts_ts(A, 2 + O.TSC.index(c))
        off = 0 if c + 1 < O.LOOK else 48
        own = 4 <= c + 3 < O.LOOK
        units = [u for u in split_groups(g_chunk_dma(c + 3), 8)] if own else []
        slots = O.DSL
        for s in range(4):
            t = 4 * c + s
            mf = g1_mfmas(t)
            pre = []
            if s == 3:
                if c < 7: lwait(A, GRD, off, GT + 1, c + 2, issued=True, sleep=0)
                else: A("s_waitcnt lgkmcnt(0)")
                pre = [f"v_mov_b32 v{GT}, {c+1}", f"ds_write_b32 v{GOWN}, v{GT} offset:16"]
            elif s == O.ARR and c + 1 < O.LOOK:
                vm.wait(cid[c + 1], "lgkmcnt(0)")
                pre = [f"v_mov_b32 v{GT}, {c+2}", f"ds_write_b32 v{GOWN}, v{GT}"]
            else: A("s_waitcnt lgkmcnt(0)")
            if own and s == 1: lwait(A, GRD, 16, GX, c, issued=True, sleep=0)
            rd = g1_reads(t + 1) if t < 31 else []
            post = [f"ds_read_b32 v{GT+1}, v{GRD} offset:{off}"] if (s == 2 and c < 7) else []
            if own and s == 0: post.append(f"ds_read_b32 v{GX}, v{GRD} offset:16")
            def dm(g):
                if own:
                    for _ in range(slots.count(4 * s + g)):
                        for x in units.pop(0): vm.op(x)
                    if not units: cid[c + 3] = vm.n if c + 3 not in cid else cid[c + 3]
            A(mf[0])
            for x in rd[:3]: A(x)
            dm(0)
            A(mf[1])
            for x in rd[3:]: A(x)
            dm(1)
            A(mf[2])
            for x in pre + post: A(x)
            if c == 0 and O.LOOK >= 4 and O.L3 == "i":
                for x in split_groups(g_chunk_dma(3), 4)[s]: vm.op(x)
                cid[3] = vm.n
            dm(2)
            A(mf[3])
            dm(3)
        assert not units

_g1_reads = g1_reads
def g1_reads(t):
    out = _g1_reads(t)
    if O.HAB:
        c, s_ = divmod(t, 4); lo = ((c % 4) % 2) * 32768
        out[5] = out[5].replace(f"offset:{lo+4096}", f"offset:{lo+8192}")
    return out
def hab_setup(A):
    A(f"s_and_b32 s{S_T0}, s{S_XCD}, 1")
    A(f"s_xor_b32 s{S_T0}, s{S_T0}, 1")
    A(f"s_lshl_b32 s{S_T0}, s{S_T0}, 16")
    A(f"s_xor_b32 s{S_XO}, s{S_XO}, s{S_T0}")
def hab_setup2(A):
    A(f"s_lshr_b32 s{S_T0}, s{S_WAVE}, 1")
    A(f"s_lshl_b32 s{S_T0}, s{S_T0}, 12")
    for k in range(8): A(f"v_subrev_u32 v{G1_XR+k}, s{S_T0}, v{G1_XR+k}")

def g1_fr(lst, t, ns):
    import re
    o = G1_FR + (t % 2) * 16; n = G1_FR + (t % ns) * 16
    def f(m):
        a, b = int(m.group(1)), int(m.group(2))
        if o <= a < o + 16: return f"v[{a-o+n}:{b-o+n}]"
        return m.group(0)
    return [re.sub(r"v\[(\d+):(\d+)\]", f, x) for x in lst]

def lchk(A, vaddr, off, vt, val):
    lab = A.newlabel("LW"); done = A.newlabel("LWD")
    A(f"v_cmp_gt_u32 vcc, {val}, v{vt}")
    A(f"s_cbranch_vccz {done}")
    A.label(lab)
    A(f"ds_read_b32 v{vt}, v{vaddr} offset:{off}")
    A("s_waitcnt lgkmcnt(0)")
    A(f"v_cmp_gt_u32 vcc, {val}, v{vt}")
    A(f"s_cbranch_vccnz {lab}")
    A.label(done)

def g1_main2(A, vm, cid):
    LA = O.LA; NS = LA + 1
    lg = Lg(A); rid = {}
    vm.wait(cid[0])
    A(f"v_mov_b32 v{GT}, 1"); A(f"ds_write_b32 v{GOWN}, v{GT}")
    lwait(A, GRD, 0, GT + 1, 1, sleep=0)
    for t in range(LA):
        for r in g1_fr(g1_reads(t), t, NS): rid[t] = lg.op(r)
    sc = 4 - LA
    for c in range(8):
        if O.TSC and c in O.TSC: parts_ts(A, 2 + O.TSC.index(c))
        off = 0 if c + 1 < O.LOOK else 48
        own = 4 <= c + 3 < O.LOOK
        units = [u for u in split_groups(g_chunk_dma(c + 3), 8)] if own else []
        if O.GW2 and c >= 5 and c - 5 < O.GW2N:
            own = True; units = split_groups(gw2_dma(c - 5), 7) + [[]]
        for s in range(4):
            t = 4 * c + s
            mf = g1_fr(g1_mfmas(t), t, NS)
            need = rid[t]
            if s == sc and c < 7: need = max(need, pid)
            if own and s == 1: need = max(need, did)
            first = []; pre = []
            if s == O.ARR and c + 1 < O.LOOK:
                vm.wait(cid[c + 1])
                first += [f"ds_write_b32 v{GOWN}, v{GT}"]
                A(f"v_mov_b32 v{GT}, {c+2}")
            lg.wait(need)
            if s == sc and c < 7: lchk(A, GRD, off, GT + 1, c + 2)
            if own and s == 1: lchk(A, GRD, 16, GX, c)
            if s == 3: pre = [f"v_mov_b32 v{GT}, {c+1}", f"ds_write_b32 v{GOWN}, v{GT} offset:16"]
            rd = g1_fr(g1_reads(t + LA), t + LA, NS) if t + LA < 32 else []
            def dm(g):
                if own:
                    for _ in range(O.DSL.count(4 * s + g)):
                        for x in units.pop(0): vm.op(x)
                    if not units and c + 3 not in cid: cid[c + 3] = vm.n
            def em(x):
                if x.startswith("ds_"): return lg.op(x)
                A(x)
            sp = O.RSP
            A(mf[0])
            for x in first + pre: em(x)
            if s == sc - 1 and c < 7 and O.PPOS == 0: pid = lg.op(f"ds_read_b32 v{GT+1}, v{GRD} offset:{off}")
            if own and s == 0: did = lg.op(f"ds_read_b32 v{GX}, v{GRD} offset:16")
            for x in rd[:sp[0]]: rid[t + LA] = lg.op(x)
            dm(0)
            A(mf[1])
            for x in rd[sp[0]:sp[1]]: rid[t + LA] = lg.op(x)
            dm(1)
            A(mf[2])
            if s == sc - 1 and c < 7 and O.PPOS == 2: pid = lg.op(f"ds_read_b32 v{GT+1}, v{GRD} offset:{off}")
            for x in rd[sp[1]:sp[2]]: rid[t + LA] = lg.op(x)
            if c == 0 and O.LOOK >= 4 and O.L3 == "i":
                for x in split_groups(g_chunk_dma(3), 4)[s]: vm.op(x)
                cid[3] = vm.n
            dm(2)
            A(mf[3])
            for x in rd[sp[2]:]: rid[t + LA] = lg.op(x)
            dm(3)
        assert not units

def silu_np(A, regs, tmp):
    n = len(regs)
    for i, (s, d) in enumerate(regs):
        for e in range(2): A(f"v_mul_f32 v{tmp+2*i+e}, s{S_CL}, v{s+e}")
    for i in range(2 * n): A(f"v_exp_f32 v{tmp+i}, v{tmp+i}")
    for i in range(2 * n): A(f"v_add_f32 v{tmp+i}, 1.0, v{tmp+i}")
    for i in range(2 * n): A(f"v_rcp_f32 v{tmp+i}, v{tmp+i}")
    for i, (s, d) in enumerate(regs):
        for e in range(2): A(f"v_mul_f32 v{tmp+2*i+e}, v{tmp+2*i+e}, v{s+e}")
    for i, (s, d) in enumerate(regs):
        A(f"v_cvt_pk_bf16_f32 v{d}, v{tmp+2*i}, v{tmp+2*i+1}")

def split_groups(lst, n):
    units = []; cur = []
    for x in lst:
        cur.append(x)
        if x.startswith("buffer_"): units.append(cur); cur = []
    g = [[] for _ in range(n)]
    for i, u in enumerate(units): g[i * n // len(units)] += u
    return g

def g1_epi(A):
    w = S_WAVE
    if O.VERD:
        A(f"v_mov_b32 v{GX}, {L_RDY}")
        A(f"ds_read_b32 v{GT}, v{GX} offset:{L_VERD-L_RDY}")
    A(f"s_lshl_b32 s{S_HO}, s{S_RB}, 2")
    A(f"s_and_b32 s{S_T0}, s{w}, 2")
    A(f"s_add_u32 s{S_HO}, s{S_HO}, s{S_T0}")
    A(f"s_mul_i32 s{S_T1}, s{S_T0}, 7")
    A(f"s_mul_i32 s{S_HO}, s{S_HO}, 112")
    A(f"s_lshl_b32 s{S_T0}, s{S_CB}, 3")
    A(f"s_add_u32 s{S_HO}, s{S_HO}, s{S_T0}")
    A(f"s_and_b32 s{S_T0}, s{w}, 1")
    A(f"s_add_u32 s{S_T1}, s{S_T1}, s{S_T0}")
    A(f"s_lshl_b32 s{S_T0}, s{S_T0}, 2")
    A(f"s_add_u32 s{S_HO}, s{S_HO}, s{S_T0}")
    A(f"s_lshr_b32 s{S_T0}, s{S_J}, 2")
    A(f"s_lshl_b32 s{S_T0}, s{S_T0}, 1")
    A(f"s_add_u32 s{S_T1}, s{S_T1}, s{S_T0}")
    A(f"s_lshl_b32 s{S_T1}, s{S_T1}, {O.HFS}")
    A(f"s_add_u32 s{S_HF}, s{S_HF}, s{S_T1}")
    A(f"s_lshl_b32 s{S_HO}, s{S_HO}, 10")
    A(f"s_add_u32 s{S_XO}, s{S_HO}, {112*1024}")
    if O.HAB:
        A(f"s_lshr_b32 s{S_T0}, s{w}, 1")
        A(f"s_mul_i32 s{S_T0}, s{S_T0}, {112*1024}")
        A(f"s_sub_u32 s{S_XO}, s{S_HO}, s{S_T0}")
        A(f"s_and_b32 s{S_T0}, s{S_XCD}, 1")
        A(f"s_mul_i32 s{S_T0}, s{S_T0}, {224*1024}")
        A(f"s_add_u32 s{S_HO}, s{S_XO}, {224*1024}")
        A(f"s_sub_u32 s{S_HO}, s{S_HO}, s{S_T0}")
        A(f"s_add_u32 s{S_XO}, s{S_XO}, s{S_T0}")
        token_get(A, GX, VTOK)
    st = []
    p = 0
    for a, b in ([(0,0),(1,0),(0,1),(1,1)] if O.HAB else [(0,0),(0,1),(1,0),(1,1)]):
        if True:
            acc = G1_ACC + (2*a+b)*16
            for fh in range(2):
                dst = G1_FR + p * 4
                (silu_np if O.NOPK else silu_pairs)(A, [(acc + 8*fh + 2*i, dst + i) for i in range(4)], STMP)
                so = S_HO if b == 0 else S_XO
                st.append(f"buffer_store_dwordx4 {vr(dst,4)}, v{HV}, s[{S_WS}:{S_WS+3}], s{so} offen offset:{(2*a+fh)*1024}")
                if O.HAB and p == O.FA:
                    A(f"s_waitcnt vmcnt({p-4})")
                    flag_store(A, S_HF, GT, VTOK, O.HST)
                    tsg(A, 3, "h")
                    A(f"s_add_u32 s{S_HF}, s{S_HF}, {F_P-F_H}")
                A(st[-1] + " " + O.HST)
                p += 1
    tsg(A, 5, "e")
    if O.GW2:
        token_get(A, GX, VTOK)
        lwait(A, GRD, 16, GT, 8, sleep=0)
        n = 0
        if O.W2AF == 0:
            for sl in range(O.GW2N, 4):
                for x in gw2_dma(sl): A(x)
                n += 7
        A(f"s_waitcnt vmcnt({n})")
        flag_store(A, S_HF, GT, VTOK, O.HST)
        if O.W2AF == 1:
            for sl in range(O.GW2N, 4):
                for x in gw2_dma(sl): A(x)
        return
    if not O.VERD:
        if not O.HAB: token_get(A, GX, VTOK)
        A("s_waitcnt vmcnt(0)")
        flag_store(A, S_HF, GT, VTOK, O.HST)
        return
    lwait(A, GX, L_VERD - L_RDY, GT, 1, issued=True)
    A(f"ds_read_b64 {vr(VTOK,2)}, v{GX}")
    A(f"v_cmp_eq_u32 vcc, {1 if not O.SLOW else 7}, v{GT}")
    A("s_waitcnt vmcnt(0) lgkmcnt(0)")
    A("s_cbranch_vccz G_SLOW")
    flag_store(A, S_HF, GT, VTOK, O.HST)
    A("s_branch G_FD")
    A.label("G_SLOW")
    for x in st: A(x + " sc1")
    A("s_waitcnt vmcnt(0)")
    flag_store(A, S_HF, GT, VTOK)
    A.label("G_FD")

def g2_main(A):
    vm = Vm(A); lg = Lg(A)
    hid = {}; wid = {}
    assert HR0 + 4 * O.DEPTH <= 256 and AF + 8 * O.NA <= PK
    sched = {}; free = [HR0 + 4 * k for k in range(O.DEPTH)]; nx = 0
    for stp in range(0, 56):
        if stp >= 1: free.append(HQ[stp - 1])
        if O.XQ and stp == O.XQ[0]: free += [2 + 4 * k for k in range(8)]
        if O.XQ and stp == O.XQ[1]: free += [ACCA + 4 * k for k in range(8)]
        sched[stp] = []
        while nx < 56 and free and len(sched[stp]) < (O.DEPTH if stp == 0 else O.XR):
            HQ[nx] = free.pop(0); sched[stp].append(nx); nx += 1; lasts = stp
    for i in sched[0]:
        for x in h_load(i): vm.op(x)
        hid[i] = vm.n
    for i in range(O.PFD): wid[i] = 0
    send = []
    for t in range(2):
        for hf in range(2):
            send += [f"v_cvt_pk_bf16_f32 v{PK+8*t+4*hf+k}, v{ACCA+16*t+8*hf+2*k}, v{ACCA+16*t+8*hf+2*k+1}" for k in range(4)]
            send.append(f"ds_write_b128 v{RW}, {vr(PK+8*t+4*hf,4)} offset:{2048*t+1024*hf}")
    send += [f"v_mov_b32 v{GT+1}, 9", f"ds_write_b32 v{GOWN}, v{GT+1} offset:16"]
    if O.TS and O.TSG == "a" and not O.TSC: send.append(f"s_memtime s[{S_TS+10}:{S_TS+11}]")
    st = O.ST
    PR = 224
    pld = [f"buffer_load_dwordx4 {vr(PR+4*q,4)}, v{HV}, s[{S_WS}:{S_WS+3}], s{S_PO} offen offset:{1024*q} sc1" for q in range(4)]
    AL, GL_, VA0, SA0, SG0 = 240, 36, 38, 64, 68
    ald = []
    if O.TL3:
        A(f"s_lshr_b32 s{SG0}, s{S_OO}, 15")
        A(f"s_lshl_b32 s{SG0}, s{SG0}, 8")
        A(f"s_bfe_u32 s{SA0}, s{S_OO}, 0x40006")
        A(f"s_lshl_b32 s{SA0}, s{SA0}, 18")
        A(f"s_add_u32 s{SA0}, s{SA0}, s{SG0}")
        A(f"s_add_u32 s{SA0}, s{SA0}, {WS_A2}")
        A(f"s_add_u32 s{SG0}, s{SG0}, {WS_G}")
        for q in range(1, 4): A(f"s_add_u32 s{SA0+q}, s{SA0}, {q*65536}")
        A(f"v_and_b32 v{VA0+2}, 31, v1")
        A(f"v_lshlrev_b32 v{VA0+2}, 3, v{VA0+2}")
        A(f"v_lshrrev_b32 v{VA0}, 5, v1")
        A(f"v_lshl_add_u32 v{VA0}, v{VA0}, 15, v{VA0+2}")
        A(f"v_add_u32 v{VA0+1}, 16384, v{VA0}")
        ald = [f"buffer_load_dwordx2 {vr(GL_,2)}, v{VA0+2}, s[{S_WS}:{S_WS+3}], s{SG0} offen sc1"]
        ald += [f"buffer_load_dwordx2 {vr(AL+4*q+2*e,2)}, v{VA0+e}, s[{S_WS}:{S_WS+3}], s{SA0+q} offen sc1" for q in range(4) for e in range(2)]
    if O.TL2 or O.TL3:
        assert HR0 + 4 * O.DEPTH <= PR and O.PSTEP > lasts
        A(f"s_xor_b32 s{S_PO}, s2, 1")
        A(f"s_lshl_b32 s{S_PO}, s{S_PO}, 2")
        A(f"s_add_u32 s{S_PO}, s{S_PO}, s{S_WAVE}")
        A(f"s_lshl_b32 s{S_PO}, s{S_PO}, 12")
        A(f"s_add_u32 s{S_PO}, s{S_PO}, {WS_P}")
    for i in range(56):
        if O.TS and O.TSG == "s" and i in st: parts_ts(A, 2 + st.index(i))
        k = min(lg.n - wid[i], 15)
        need_l = wid[i] > lg.done
        if need_l: lg.done = lg.n - k
        vm.wait(hid[i], f"lgkmcnt({k})" if need_l else "")
        if O.HAB and 28 in sched[i]:
            vm.wait(bid)
            A(f"v_cmp_ne_u32 vcc, v{VTOK}, v{GT}")
            A("s_cbranch_vccz G_BD")
            poll(A, FVB, GT, VTOK, "PB", slp=O.HSLP)
            A.label("G_BD")
        fr = AF + 8 * (i % O.NA); hr = HQ[i]
        acc0 = ACCA if i < 28 else ACCB
        g = [[], []]
        if i + O.PFD < 56:
            rd = w2_read(i + O.PFD); g[0] += rd[:2]; g[1] += rd[2:]
        own = {}
        for q, nl in enumerate(sched[i] if i else []):
            hl = h_load(nl); own[hl[-1]] = nl
            g[min(q, 1)] += hl
        if i >= 29:
            for gi in range(2):
                for _ in range(O.SPG):
                    if send and not (O.XQ and O.XF and send[0].startswith("ds_write_b32") and (i, gi) < (lasts, 1)): g[gi].append(send.pop(0))
        if (O.TL2 or O.TL3) and i == O.PSTEP:
            g[1] += pld
        if O.TL3 and O.ASTEP <= i:
            q = i - O.ASTEP
            if O.APS == 3: g[0] += ald[3*q:3*q+2]; g[1] += ald[3*q+2:3*q+3]
            else: g[1] += ald[q:q+1]
        for m, t in enumerate((1, 0)):
            acc = acc0 + 16 * t
            c = "0" if i % 28 == 0 else vr(acc, 16)
            A(f"v_mfma_f32_32x32x16_bf16 {vr(acc,16)}, {vr(fr+4*t,4)}, {vr(hr,4)}, {c}" if "m" not in O.X2 else "s_nop 0")
            if i == 29 and m == 0: A("s_nop 1")
            for x in g[m]:
                if x.startswith("ds_"): lg.op(x)
                else:
                    vm.op(x)
                    if x in own: hid[own[x]] = vm.n
        if O.HAB and i == O.BS: bid = vm.op(f"buffer_load_dword v{GT}, v{FVB}, s[{S_WS}:{S_WS+3}], 0 offen sc1")
        if i + O.PFD < 56: wid[i + O.PFD] = lg.n
    T, R, GM = 2, 18, 34
    A(f"ds_read_b32 v{GT+1}, v{GRD} offset:32")
    A(f"v_mov_b32 v{GT}, 10")
    A(f"v_xor_b32 v{GX}, 8, v{GOWN}")
    A(f"s_lshl_b32 s{S_T0}, s{S_WAVE}, 8")
    A(f"s_add_u32 s{S_T0}, s{S_T0}, {L_T+16384}")
    A(f"v_lshl_add_u32 v{GM+1}, v1, 2, s{S_T0}")
    lwait(A, GRD, 32, GT + 1, 50, issued=True)
    A("s_nop 1")
    for q in range(4):
        A(f"ds_write_b128 v{RW}, {vr(ACCB+16+4*q,4)} offset:{q*1024}")
    A(f"ds_write_b32 v{GOWN}, v{GT} offset:16")
    if O.TL3:
        if O.PSTEP >= 56:
            for x in pld: A(x)
        tsg(A, 2, "f")
        lwait(A, GX, 16, GT + 1, 10, sleep=0)
        for q in range(4):
            A(f"ds_read_b128 {vr(R+4*q,4)}, v{RX} offset:{q*1024}")
        A(f"s_mov_b32 s{S_SPIN}, {O.SPIN}")
        def chk(name, tg, lds_, first):
            A(f"s_waitcnt vmcnt({first})")
            A.label(name + "L")
            acc = None
            tg = list(tg)
            if len(tg) % 2: A(f"v_xor_b32 v{GM}, v{VTOK}, v{tg.pop()}"); acc = GM
            for k in range(0, len(tg), 2):
                A(f"v_xor_b32 v{44+(k&2)}, v{VTOK}, v{tg[k]}")
                A(f"v_xor_b32 v{45+(k&2)}, v{VTOK}, v{tg[k+1]}")
                if acc: A(f"v_or3_b32 v{GM}, v{GM}, v{44+(k&2)}, v{45+(k&2)}")
                else: A(f"v_or_b32 v{GM}, v{44+(k&2)}, v{45+(k&2)}"); acc = GM
            A(f"v_cmp_ne_u32 vcc, 0, v{GM}")
            A(f"s_cbranch_vccz {name}D")
            for x in lds_: A(x)
            A(f"s_sub_u32 s{S_SPIN}, s{S_SPIN}, 1")
            A("s_waitcnt vmcnt(0)")
            A(f"s_cbranch_scc0 {name}L")
            A.label(name + "D")
        assert O.PSTEP >= O.ASTEP + 9 // O.APS
        chk("G_A", [AL + 1 + 2 * k for k in range(8)] + [GL_ + 1], ald, 4)
        for k in range(8):
            A(f"v_and_b32 v{AL+2*k+1}, 0xffff0000, v{AL+2*k}")
            A(f"v_lshlrev_b32 v{AL+2*k}, 16, v{AL+2*k}")
        for k in range(8):
            A(f"v_pk_mul_f32 {vr(T+2*k,2)}, {vr(AL+2*k,2)}, {vr(GL_,2)} op_sel:[0,0] op_sel_hi:[1,0]")
        A(f"v_sub_f32 v{GL_}, 1.0, v{GL_}")
        A(f"v_cvt_pk_bf16_f32 v{GL_}, v{GL_}, v{GL_}")
        A(f"v_lshlrev_b32 v{GL_}, 16, v{GL_}")
        A("s_waitcnt lgkmcnt(0)")
        for k in range(8):
            A(f"v_pk_add_f32 {vr(ACCB+2*k,2)}, {vr(ACCB+2*k,2)}, {vr(R+2*k,2)}")
        for k in range(8):
            A(f"v_pk_fma_f32 {vr(T+2*k,2)}, {vr(ACCB+2*k,2)}, {vr(GL_,2)}, {vr(T+2*k,2)} op_sel:[0,0,0] op_sel_hi:[1,0,1]")
        tsg(A, 3, "f")
        chk("G_P", [PR + 1 + 2 * k for k in range(8)], pld, 0)
        tsg(A, 4, "f")
        for k in range(8):
            A(f"v_and_b32 v{PR+2*k+1}, 0xffff0000, v{PR+2*k}")
            A(f"v_lshlrev_b32 v{PR+2*k}, 16, v{PR+2*k}")
        for k in range(8):
            A(f"v_pk_fma_f32 {vr(T+2*k,2)}, {vr(PR+2*k,2)}, {vr(GL_,2)}, {vr(T+2*k,2)} op_sel:[0,0,0] op_sel_hi:[1,0,1]")
        g2_out(A, T)
        tsg(A, 5, "f")
        return
    if O.TL2:
        if O.PSTEP >= 56:
            for x in pld: A(x)
        tsg(A, 2, "f")
        lwait(A, GX, 16, GT + 1, 10, sleep=0)
        for q in range(4):
            A(f"ds_read_b128 {vr(R+4*q,4)}, v{RX} offset:{q*1024}")
        A(f"ds_read_b32 v{GT+1}, v{GOWN} offset:32")
        for q in range(4):
            A(f"s_waitcnt lgkmcnt({4-q})")
            for k in (2*q, 2*q+1):
                A(f"v_pk_add_f32 {vr(ACCB+2*k,2)}, {vr(ACCB+2*k,2)}, {vr(R+2*k,2)}")
        lwait(A, GOWN, 32, GT + 1, 100, issued=True)
        tsg(A, 3, "f")
        A(f"ds_read_b32 v{GM}, v{GM+1}")
        for q in range(4):
            A(f"ds_read_b128 {vr(T+4*q,4)}, v{TV} offset:{q*1024}")
        A(f"s_mov_b32 s{S_SPIN}, {O.SPIN}")
        A.label("G_PL")
        A("s_waitcnt vmcnt(0)")
        for k in range(4):
            A(f"v_xor_b32 v{R+k}, v{VTOK}, v{PR+1+4*k}")
            A(f"v_xor_b32 v{R+4+k}, v{VTOK}, v{PR+3+4*k}")
        A(f"v_or3_b32 v{R}, v{R}, v{R+1}, v{R+2}")
        A(f"v_or3_b32 v{R+3}, v{R+3}, v{R+4}, v{R+5}")
        A(f"v_or3_b32 v{R}, v{R}, v{R+6}, v{R+7}")
        A(f"v_or_b32 v{R}, v{R}, v{R+3}")
        A(f"v_cmp_ne_u32 vcc, 0, v{R}")
        A("s_cbranch_vccz G_PD")
        for x in pld: A(x)
        A(f"s_sub_u32 s{S_SPIN}, s{S_SPIN}, 1")
        A("s_cbranch_scc0 G_PL")
        A("s_waitcnt vmcnt(0)")
        A.label("G_PD")
        tsg(A, 4, "f")
        for k in range(8):
            A(f"v_and_b32 v{PR+2*k+1}, 0xffff0000, v{PR+2*k}")
            A(f"v_lshlrev_b32 v{PR+2*k}, 16, v{PR+2*k}")
        for k in range(8):
            A(f"v_pk_add_f32 {vr(ACCB+2*k,2)}, {vr(ACCB+2*k,2)}, {vr(PR+2*k,2)}")
        A("s_waitcnt lgkmcnt(0)")
        for k in range(8):
            A(f"v_pk_fma_f32 {vr(T+2*k,2)}, {vr(ACCB+2*k,2)}, {vr(GM,2)}, {vr(T+2*k,2)} op_sel:[0,0,0] op_sel_hi:[1,0,1]")
        g2_out(A, T)
        tsg(A, 5, "f")
        return
    lwait(A, GOWN, 32, GT + 1, 100)
    A(f"ds_read_b32 v{GM}, v{GM+1}")
    for q in range(4):
        A(f"ds_read_b128 {vr(T+4*q,4)}, v{TV} offset:{q*1024}")
    lwait(A, GX, 16, GT + 1, 10, sleep=0)
    for q in range(4):
        A(f"ds_read_b128 {vr(R+4*q,4)}, v{RX} offset:{q*1024}")
    for k in range(8):
        A(f"v_pk_fma_f32 {vr(T+2*k,2)}, {vr(ACCB+2*k,2)}, {vr(GM,2)}, {vr(T+2*k,2)} op_sel:[0,0,0] op_sel_hi:[1,0,1]")
    for q in range(4):
        A(f"s_waitcnt lgkmcnt({3-q})")
        for k in (2*q, 2*q+1):
            A(f"v_pk_fma_f32 {vr(T+2*k,2)}, {vr(R+2*k,2)}, {vr(GM,2)}, {vr(T+2*k,2)} op_sel:[0,0,0] op_sel_hi:[1,0,1]")
    g2_out(A, T)
def g2_out(A, T):
    for k in range(8):
        A(f"v_cvt_pk_bf16_f32 v{PK+k}, v{T+2*k}, v{T+2*k+1}")
    A("s_nop 1")
    for h in range(2):
        A(f"v_permlane32_swap_b32 v{PK+4*h}, v{PK+4*h+2}")
        A(f"v_permlane32_swap_b32 v{PK+4*h+1}, v{PK+4*h+3}")
    A("s_nop 1")
    for h in range(2):
        A(f"buffer_store_dwordx4 {vr(PK+4*h,4)}, v{OV}, s[{S_OUT}:{S_OUT+3}], s{S_OO} offen offset:{32*h}")

def idle_tr_issue(A):
    A("v_lshrrev_b32 v8, 3, v1")
    A("v_and_b32 v9, 7, v1")
    A("v_lshlrev_b32 v10, 10, v8")
    A("v_lshl_add_u32 v10, v9, 4, v10")
    A(f"s_sub_u32 s64, s{S_J}, 28")
    A(f"s_lshl_b32 s64, s64, 2")
    A(f"s_add_u32 s64, s64, s{S_WAVE}")
    if O.UOWN:
        A(f"s_and_b32 s33, s64, 1")
        A(f"s_lshl_b32 s{S_T1}, s{S_XCD}, 1")
        A(f"s_add_u32 s33, s33, s{S_T1}")
        A(f"s_lshr_b32 s34, s64, 1")
    else:
        A(f"s_mov_b32 s33, s64")
        A(f"s_mov_b32 s34, s{S_XCD}")
    A(f"s_lshl_b32 s65, s33, 17")
    A(f"s_lshl_b32 s{S_T1}, s34, 7")
    A(f"s_add_u32 s65, s65, s{S_T1}")
    A(f"s_lshl_b32 s66, s{S_WAVE}, 15")
def idle_tr_dma(A):
    for i in range(16):
        A(f"s_add_u32 m0, s66, {i*1024}")
        A(f"s_add_u32 s{S_T1}, s65, {i*8192}")
        A(f"buffer_load_dwordx4 v10, s[{S_X}:{S_X+3}], s{S_T1} offen {O.UFL} lds")
def w2_touch(A, qs, dst):
    for q in qs:
        A(f"s_lshr_b32 s{S_T1}, s{S_XCD}, 1")
        A(f"s_add_u32 s{S_T1}, s{S_T1}, {q}")
        A(f"s_and_b32 s{S_T1}, s{S_T1}, 3")
        A(f"s_and_b32 s{S_T0}, s{S_XCD}, 1")
        A(f"s_lshl_b32 s{S_T0}, s{S_T0}, 2")
        A(f"s_add_u32 s{S_T1}, s{S_T1}, s{S_T0}")
        A(f"s_mul_i32 s{S_T1}, s{S_T1}, 229376")
        for i in range(2):
            A(f"buffer_load_dword v{dst}, v{24+i}, s[{S_W2}:{S_W2+3}], s{S_T1} offen {O.PFL2}")
def w2_touch_setup(A):
    A("s_mul_i32 s67, s64, 112")
    A("v_add_u32 v24, s67, v1")
    A("v_min_u32 v25, 47, v1")
    A("v_add3_u32 v25, v25, s67, 64")
    A("v_lshlrev_b32 v24, 7, v24")
    A("v_lshlrev_b32 v25, 7, v25")
def idle_tr_finish(A, extra=0):
    R = 128
    A("v_lshrrev_b32 v11, 4, v1")
    A("v_bfe_u32 v12, v1, 2, 2")
    A("v_lshl_add_u32 v12, v11, 3, v12")
    A("v_lshlrev_b32 v12, 7, v12")
    A("v_and_b32 v13, 3, v1")
    A("v_lshl_add_u32 v12, v13, 3, v12")
    A(f"v_add_u32 v12, s66, v12")
    A("v_bfe_u32 v13, v1, 1, 3")
    A("v_lshlrev_b32 v13, 13, v13")
    A("v_and_b32 v14, 1, v1")
    A("v_lshl_add_u32 v13, v14, 6, v13")
    A("v_lshl_add_u32 v16, v11, 4, v13")
    A(f"s_lshl_b32 s67, s34, 18")
    A(f"s_lshl_b32 s{S_T1}, s33, 9")
    A(f"s_add_u32 s67, s67, s{S_T1}")
    A(f"s_add_u32 s67, s67, {WS_UT}")
    for p in range(4):
        Rk = R + 16 * p
        A(f"s_waitcnt vmcnt({12+extra})")
        for a in range(4):
            for x in range(2):
                A(f"ds_read_b64_tr_b16 {vr(Rk+4*a+2*x,2)}, v12 offset:{p*4096+x*512+a*32}")
        for a in range(4):
            A(f"s_waitcnt lgkmcnt({6-2*a})")
            A(f"s_add_u32 s{S_T1}, s67, {a*65536}")
            A(f"buffer_store_dwordx4 {vr(Rk+4*a,4)}, v16, s[{S_WS}:{S_WS+3}], s{S_T1} offen offset:{p*128} sc1")
def ut2(A, part=None):
    R = 128
    if part == 1:
        for i in range(8):
            A(f"s_waitcnt vmcnt({7-i})")
            A(f"ds_write_b128 v16, {vr(R+4*i,4)} offset:{i*512}")
        return
    A(f"s_lshl_b32 s{Q_T0}, s{Q_PAIR}, 13")
    A(f"s_add_u32 s{Q_T0}, s{Q_T0}, {WS_UT}")
    A(f"s_add_u32 s{Q_T1}, s{Q_T0}, 4096")
    A("v_lshlrev_b32 v16, 4, v1")
    for i in range(8):
        A(f"buffer_load_dwordx4 {vr(R+4*i,4)}, v16, s[{S_WS}:{S_WS+3}], s{Q_T0+i//4} offen offset:{(i%4)*1024} sc1")
    A("v_bfe_u32 v16, v1, 2, 1")
    A(f"v_mul_u32_u24 v16, {U_STRIDE}, v16")
    A("v_lshrrev_b32 v17, 3, v1")
    A("v_lshl_add_u32 v16, v17, 6, v16")
    A("v_and_b32 v17, 3, v1")
    A("v_lshl_add_u32 v16, v17, 4, v16")
    A(f"v_add_u32 v16, {LDS_U+64}, v16")
    if part == 0: return
    for i in range(8):
        A(f"s_waitcnt vmcnt({7-i})")
        A(f"ds_write_b128 v16, {vr(R+4*i,4)} offset:{i*512}")
def idle_gate_issue(A):
    R = 64
    A(f"global_load_dwordx4 {vr(44,4)}, v{HV}, s[{P_GW}:{P_GW+1}]")
    A(f"s_lshl_b32 s68, s{S_XCD}, 4")
    A(f"s_add_u32 s68, s68, s64")
    A(f"s_lshl_b32 s65, s68, 14")
    for i in range(16):
        if i % 4 == 0: A(f"s_add_u32 s{S_T1}, s65, {i*1024}")
        A(f"buffer_load_dwordx4 {vr(R+4*i,4)}, v{HV}, s[{S_X}:{S_X+3}], s{S_T1} offen offset:{(i%4)*1024}")
def idle_gate_finish(A, extra=0):
    R = 64; S = 2
    A(f"s_waitcnt vmcnt({extra})")
    for k in range(4):
        for i in range(16):
            c = "0" if k == 0 else f"v{S+i}"
            A(f"v_dot2_f32_bf16 v{S+i}, v{R+4*i+k}, v{44+k}, {c}")
    for sh in ("row_shr:1", "row_shr:2", "row_shr:4", "row_shr:8"):
        for i in range(16):
            A(f"v_add_f32_dpp v{S+i}, v{S+i}, v{S+i} {sh} row_mask:0xf bank_mask:0xf bound_ctrl:1")
    for sh in ("row_bcast:15 row_mask:0xa", "row_bcast:31 row_mask:0xc"):
        for i in range(16):
            A(f"v_add_f32_dpp v{S+i}, v{S+i}, v{S+i} {sh} bank_mask:0xf")
    A("v_mov_b32 v20, 0")
    for h in range(2):
        for i in range(8): A(f"v_readlane_b32 s{38+i}, v{S+8*h+i}, 63")
        A("s_nop 3")
        for i in range(8): A(f"v_writelane_b32 v20, s{38+i}, {8*h+i}")
    A("v_cvt_pk_bf16_f32 v20, v20, v20")
    A("v_lshlrev_b32 v20, 16, v20")
    A("v_mul_f32 v20, 0xbfb8aa3b, v20")
    A("v_exp_f32 v20, v20")
    A("s_nop 0")
    A("v_add_f32 v20, 1.0, v20")
    A("v_rcp_f32 v20, v20")
    A("s_nop 0")
    A("v_cvt_pk_bf16_f32 v22, v20, v20")
    A("v_lshlrev_b32 v22, 16, v22")
    if O.TL3: A(f"v_mov_b32 v23, v{VTOK}")
    else:
        A("v_sub_f32 v23, 1.0, v22")
        A("v_cvt_pk_bf16_f32 v23, v23, v23")
        A("v_lshlrev_b32 v23, 16, v23")
    A("v_lshlrev_b32 v21, 3, v1")
    A(f"s_lshl_b32 s65, s68, 7")
    A(f"s_add_u32 s65, s65, {WS_G}")
    A("s_mov_b64 exec, 0xffff")
    A(f"buffer_store_dwordx2 v[22:23], v21, s[{S_WS}:{S_WS+3}], s65 offen sc1")
    A("s_mov_b64 exec, -1")

LX, LW, L2D, LSA, LGD, LV = 16, 56, 60, 62, 63, 20
K_XO, K_WO, K_M0, K_C0, K_W2, K_M2, K_T0, K_T1 = 76, 77, 78, 79, 80, 81, 82, 83
def loader_setup(A):
    lw = Q_NH
    A(f"s_and_b32 s{K_XO}, s{S_J}, 3")
    A(f"s_and_b32 s{K_T0}, s{S_XCD}, 6")
    A(f"s_lshl_b32 s{K_T0}, s{K_T0}, 1")
    A(f"s_add_u32 s{K_XO}, s{K_XO}, s{K_T0}")
    A(f"s_lshl_b32 s{K_XO}, s{K_XO}, 1")
    A(f"s_add_u32 s{K_XO}, s{K_XO}, s{lw}")
    A(f"s_and_b32 s{K_T0}, s{S_XCD}, 1")
    if O.HAB:
        A(f"s_xor_b32 s{K_XO}, s{K_XO}, s{K_T0}")
        A(f"s_xor_b32 s{K_XO}, s{K_XO}, 1")
    A(f"s_lshl_b32 s{K_XO}, s{K_XO}, 16")
    A(f"s_mul_i32 s{K_WO}, s{K_T0}, 7")
    A(f"s_lshr_b32 s{K_T1}, s{S_J}, 2")
    A(f"s_add_u32 s{K_WO}, s{K_WO}, s{K_T1}")
    A(f"s_lshl_b32 s{K_WO}, s{K_WO}, 8")
    A(f"s_lshl_b32 s{K_W2}, s{K_T1}, 7")
    A(f"s_mul_i32 s{K_T1}, s{lw}, {32*2*F}")
    A(f"s_add_u32 s{K_WO}, s{K_WO}, s{K_T1}")
    A(f"s_lshl_b32 s{K_M0}, s{lw}, 13")
    A(f"s_mul_i32 s{K_T0}, s{K_T0}, {56*16384}")
    A(f"s_add_u32 s{K_W2}, s{K_W2}, s{K_T0}")
    if O.KROT:
        A(f"s_add_u32 s84, s{K_W2}, {28*16384}")
        krot(A, K_T0, 16)
        A(f"s_add_u32 s{K_W2}, s{K_W2}, s{K_T0}")
    A(f"s_mul_i32 s{K_T0}, s{lw}, {7*16384}")
    A(f"s_add_u32 s{K_W2}, s{K_W2}, s{K_T0}")
    A(f"s_mul_i32 s{K_M2}, s{lw}, {7*2048}")
    rot_c0(A, K_C0, K_T0)
    A("v_lshrrev_b32 v34, 3, v1")
    A("v_and_b32 v35, 7, v1")
    A("v_lshrrev_b32 v36, 4, v1")
    A("v_xor_b32 v37, v35, v36")
    A("v_xor_b32 v38, 4, v37")
    A("v_lshlrev_b32 v34, 10, v34")
    A(f"v_lshl_add_u32 v{LX}, v37, 4, v34")
    A(f"v_lshl_add_u32 v{LX+1}, v38, 4, v34")
    A(f"v_add_u32 v{LX+1}, {8192-1024}, v{LX+1}")
    A(f"v_add_u32 v{LX+2}, {2*(8192-1024)}, v{LX}")
    A(f"v_add_u32 v{LX+3}, {2*(8192-1024)}, v{LX+1}")
    A("v_and_b32 v37, 1, v36")
    A("v_lshlrev_b32 v37, 2, v37")
    A("v_xor_b32 v37, v35, v37")
    A(f"v_lshl_add_u32 v{L2D}, v37, 4, v34")
    A(f"v_add_u32 v{L2D+1}, {8192-1024}, v{L2D}")
    A("v_and_b32 v35, 15, v1")
    A("v_lshlrev_b32 v37, 2, v36")
    A("v_xor_b32 v35, v35, v37")
    A(f"v_mul_u32_u24 v37, {2*F}, v36")
    A(f"v_lshl_add_u32 v{LW}, v35, 4, v37")
    for i in range(1, 4):
        A(f"v_add_u32 v{LW+i}, {i*(4*2*F-1024)}, v{LW}")
    A(f"s_lshl_b32 s{K_T0}, s{lw}, 3")
    A(f"s_add_u32 s{K_T0}, s{K_T0}, {L_SL}")
    A(f"s_cmp_eq_u32 s{Q_C}, 1")
    A(f"s_cselect_b32 s{K_T0}, s{K_T0}, {L_DUMMY}")
    A(f"v_mov_b32 v{LSA}, s{K_T0}")
    A(f"v_subrev_u32 v{LGD}, {L_SB-L_GD}, v{S_FRD}")
def l_chunk(A, cc):
    slot = cc % 4
    if "d" in O.X2: return
    A(f"s_add_u32 s{K_T0}, s{K_C0}, {cc}"); A(f"s_and_b32 s{K_T0}, s{K_T0}, 7")
    A(f"s_lshl_b32 s{K_T1}, s{K_T0}, 7"); A(f"s_add_u32 s{K_T1}, s{K_T1}, s{K_XO}")
    A(f"s_mul_i32 s{K_T0}, s{K_T0}, {64*2*F}"); A(f"s_add_u32 s{K_T0}, s{K_T0}, s{K_WO}")
    for q in range(2):
        A(f"s_add_u32 m0, s{K_M0}, {slot*32768+q*4096}")
        if q: A(f"s_add_u32 s{K_T1}, s{K_T1}, 32768")
        else: A("s_nop 0")
        for i in range(4):
            if "x" in O.X2: continue
            A(f"buffer_load_dwordx4 v{LX+i}, s[{S_X}:{S_X+3}], s{K_T1} offen offset:{i*1024} {O.XFL} lds")
        A(f"s_add_u32 m0, s{K_M0}, {slot*32768+16384+q*4096}")
        if q: A(f"s_add_u32 s{K_T0}, s{K_T0}, {16*2*F}")
        else: A("s_nop 0")
        for i in range(4):
            if "w" in O.X2: continue
            A(f"buffer_load_dwordx4 v{LW+i}, s[{S_W1}:{S_W1+3}], s{K_T0} offen offset:{i*1024} {O.W1FL} lds")
def l_pub(A, n, val):
    A(f"v_mov_b32 v{LV}, {val}"); A(f"v_mov_b32 v{LV+1}, {val}")
    A(f"s_waitcnt vmcnt({n})")
    A(f"ds_write_b64 v{LSA}, {vr(LV,2)}")
def loader(A, fin):
    A(f"s_cmp_ge_u32 s{S_J}, 28")
    A("s_cbranch_scc1 S_LW1")
    if O.LOOK == 3: l_chunk(A, 3)
    if O.LOOK == 8:
        A.label("S_LW1")
        fin()
    for c in range(max(4, O.LOOK), 8):
        lwait(A, LGD, 0, 31, c - 3)
        l_chunk(A, c)
        if c > O.LOOK: l_pub(A, 0 if "d" in O.X2 else 8 if ("x" in O.X2 or "w" in O.X2) else 16, c)
        if c == 7 and O.TOUCH:
            A(f"s_lshr_b32 s{K_T0}, s{K_XO}, 16")
            A(f"s_mul_i32 s{K_T0}, s{K_T0}, 224")
            A(f"s_and_b32 s{K_T1}, s{S_XCD}, 1")
            A(f"s_mul_i32 s{K_T1}, s{K_T1}, 56")
            A(f"s_add_u32 s{K_T0}, s{K_T0}, s{K_T1}")
            A(f"s_lshr_b32 s{K_T1}, s{S_J}, 2")
            A(f"s_lshl_b32 s{K_T1}, s{K_T1}, 3")
            A(f"s_add_u32 s{K_T0}, s{K_T0}, s{K_T1}")
            A(f"s_lshl_b32 s{K_T0}, s{K_T0}, 10")
            A(f"v_lshlrev_b32 v{LX}, 7, v1")
            A(f"s_add_u32 s{K_T1}, s{K_T0}, {112*1024}")
            A(f"buffer_load_dword v{LX+1}, v{LX}, s[{S_WS}:{S_WS+3}], s{K_T0} offen {O.TFL}")
            A(f"buffer_load_dword v{LX+2}, v{LX}, s[{S_WS}:{S_WS+3}], s{K_T1} offen {O.TFL}")
        if c == O.LFIN:
            A.label("S_LW1")
            fin()
            A(f"s_cmp_ge_u32 s{S_J}, 28")
            A("s_cbranch_scc1 S_LW2")
    A.label("S_LW2")
    if "v" in O.X2: l_pub(A, 0, 8)
    for s in range(4):
        lwait(A, LGD, 0, 31, 5 + s if "v" not in O.X2 else 8)
        if s == 2 and O.KROT: A(f"s_add_u32 s84, s84, {28*16384}")
        for k in range(7):
            A(f"s_add_u32 m0, s{K_M2}, {s*32768+4096+k*2048}")
            A(f"s_add_u32 s{K_T0}, s{K_W2}, {(14*s+k)*16384}")
            if O.KROT:
                A(f"s_sub_u32 s{K_T1}, s{K_T0}, {28*16384}")
                A(f"s_cmp_ge_u32 s{K_T0}, s84")
                A(f"s_cselect_b32 s{K_T0}, s{K_T1}, s{K_T0}")
            A(f"buffer_load_dwordx4 v{L2D}, s[{S_W2}:{S_W2+3}], s{K_T0} offen {O.W2FL} lds")
            A(f"buffer_load_dwordx4 v{L2D+1}, s[{S_W2}:{S_W2+3}], s{K_T0} offen offset:1024 {O.W2FL} lds")
        if s == 0: l_pub(A, 16 if O.TOUCH else 14, 8)

TAB2 = LDS_SSM + 17408
S_PASS, S_UOK = 33, 34
U_SO, U_M0, UF, UD = 28, 29, 12, 13
def u_dma(A):
    for i in range(4):
        A(f"s_add_u32 m0, s{U_M0}, {i*1024}")
        A(f"s_add_u32 s{Q_T1}, s{U_SO}, {i*2048}")
        A(f"buffer_load_dwordx4 v{UD}, s[{S_WS}:{S_WS+3}], s{Q_T1} offen sc1 lds")
def u_setup(A):
    A(f"s_lshl_b32 s{Q_T0}, s{S_XCD}, {4+FS}")
    A(f"s_add_u32 s{Q_T0}, s{Q_T0}, {F_UT}")
    A("v_and_b32 v8, 15, v1")
    A(f"v_lshl_add_u32 v{UF}, v8, {FS}, s{Q_T0}")
    A(f"v_lshrrev_b32 v{UD}, 2, v1")
    A(f"v_lshlrev_b32 v{UD}, 3, v{UD}")
    A("v_and_b32 v8, 3, v1")
    A(f"v_add_lshl_u32 v{UD}, v{UD}, v8, 4")
    A(f"s_lshl_b32 s{U_SO}, s{Q_PAIR}, 7")
    A(f"s_add_u32 s{U_SO}, s{U_SO}, s{Q_NH}")
    A(f"s_lshl_b32 s{U_SO}, s{U_SO}, 6")
    A(f"s_add_u32 s{U_SO}, s{U_SO}, {WS_UT}")
    A(f"s_mul_i32 s{U_M0}, s{Q_NH}, {U_STRIDE}")
    A(f"s_add_u32 s{U_M0}, s{U_M0}, {LDS_U+64}")
    A(f"s_mov_b32 s{S_UOK}, 0")
def kgen2(A, later, hookA):
    w = S_WAVE; KC = Q_NH
    VW, VB, VA = 26, 27, 28
    E1, E8, E256, C0, E2, E4 = 128, 130, 132, 134, 136, 138
    LO = 140; E32 = 156; G = 160; CV = 200
    A(f"s_mul_i32 s{Q_TAB}, s{w}, {TAB_STRIDE}")
    A(f"s_add_u32 s{Q_TAB}, s{Q_TAB}, {TAB2}")
    A(f"v_lshl_add_u32 v{VW}, v1, 2, s{Q_TAB}")
    A("v_and_b32 v8, 15, v1")
    A("v_lshrrev_b32 v9, 5, v1")
    A(f"v_lshl_add_u32 v9, v9, 4, s{Q_TAB}")
    A("v_mov_b32 v10, 272")
    A(f"v_mad_u32_u24 v{VB}, v8, v10, v9")
    A("v_and_b32 v11, 7, v1")
    A("v_lshlrev_b32 v11, 2, v11")
    A("v_mov_b32 v12, 0xcbaaa988")
    A("v_lshrrev_b32 v11, v11, v12")
    A("v_and_b32 v11, 15, v11")
    A("v_and_b32 v12, 24, v1")
    A("v_cmp_eq_u32 vcc, 8, v12")
    A(f"s_mov_b32 s{Q_EX}, 0x0000ffff")
    A(f"s_mov_b32 s{Q_EX+1}, 0x0000ffff")
    A(f"s_mov_b32 s{Q_EX+2}, 0xffff0000")
    A(f"s_mov_b32 s{Q_EX+3}, 0xffff0000")
    A("v_cndmask_b32 v11, v8, v11, vcc")
    A(f"v_mad_u32_u24 v{VA}, v11, v10, v9")
    srd(A, S_WS, P_WS, WS_BYTES)
    A(f"v_mov_b32 v{LSA}, {L_DUMMY}")
    for k in range(16): A(f"v_mov_b32 v{KD+k}, 0")
    A(f"s_mov_b32 s{S_PASS}, 16")
    A("s_waitcnt lgkmcnt(0)")
    A(f"s_lshl_b32 s{Q_T0}, s{KC}, 4")
    A(f"s_lshr_b32 s{Q_LDT}, s{Q_LDT}, s{Q_T0}")
    A(f"s_lshl_b32 s{Q_LDT}, s{Q_LDT}, 16")
    A(f"s_lshr_b32 s{Q_DSK}, s{Q_DSK}, s{Q_T0}")
    A(f"s_lshl_b32 s{Q_DSK}, s{Q_DSK}, 16")
    A(f"v_mov_b32 v6, {LOG2E}")
    A(f"v_mul_f32 v7, s{Q_LDT}, v6")
    A("v_exp_f32 v7, v7")
    hookA()
    A("v_cvt_pk_bf16_f32 v7, v7, v7")
    A("v_lshlrev_b32 v7, 16, v7")
    A(f"s_waitcnt vmcnt({later})")
    tss(A, 2, "ak")
    A.label("KG_LOOP")
    for i in range(4): A(f"v_lshlrev_b32 v{2+i}, s{S_PASS}, v{14+i}")
    for i in range(4): A(f"v_and_b32 v{2+i}, 0xffff0000, v{2+i}")
    A("v_mul_f32 v2, v6, v2")
    A("v_exp_f32 v2, v2")
    A("v_add_f32 v8, v7, v7")
    A("v_cvt_pk_bf16_f32 v2, v2, v2")
    A("v_lshlrev_b32 v2, 16, v2")
    A("v_mul_f32 v2, v2, v7")
    A("v_mul_f32 v3, v3, v7")
    A("v_mul_f32 v2, 0xbfb8aa3b, v2")
    A(f"v_mul_f32 v3, {INV2PI}, v3")
    A(f"v_mul_f32 v{C0}, v4, v8")
    A(f"v_mul_f32 v{C0+1}, v5, v8")
    A("v_mul_f32 v10, 0x41000000, v2")
    A("v_mul_f32 v11, 0x41000000, v3")
    A("v_mul_f32 v12, 0x43800000, v2")
    A("v_mul_f32 v13, 0x43800000, v3")
    for r in (11, 3, 13): A(f"v_fract_f32 v{r}, v{r}")
    for (m, f, e) in ((10, 11, E8), (2, 3, E1), (12, 13, E256)):
        A(f"v_exp_f32 v{m}, v{m}")
        A(f"v_cos_f32 v{e}, v{f}")
        A(f"v_sin_f32 v{e+1}, v{f}")
    for (m, e) in ((10, E8), (2, E1), (12, E256)):
        A(f"v_pk_mul_f32 {vr(e,2)}, {vr(e,2)}, {vr(m,2)} op_sel:[0,0] op_sel_hi:[1,0]")
    hook = None
    kgen_tables2(A, hook, VW, VB, VA, E1, E8, E256, C0, E2, E4, LO, E32, G, CV)
    for ks in range(8):
        A(f"s_waitcnt lgkmcnt({7-ks})")
        A(f"v_mfma_f32_32x32x16_bf16 {vr(KD,16)}, {vr(KA+4*ks,4)}, {vr(KB+4*ks,4)}, {vr(KD,16)}")
    A(f"s_cmp_eq_u32 s{S_PASS}, 0")
    A("s_cbranch_scc1 KG_DONE")
    tss(A, 3, "k")
    A(f"s_mov_b32 s{S_PASS}, 0")
    A("s_branch KG_LOOP")
    A.label("KG_DONE")
    tss(A, 4, "k"); tss(A, 3, "a")
    token_get(A, 8, STOK)
    X = 64
    A(f"s_mul_i32 s{Q_T0}, s{KC}, {K_STRIDE}")
    A(f"s_add_u32 s{Q_T0}, s{Q_T0}, {LDS_K}")
    A("v_and_b32 v8, 31, v1")
    A("v_lshrrev_b32 v9, 5, v1")
    A(f"v_lshl_add_u32 v8, v8, 4, s{Q_T0}")
    A(f"v_lshl_add_u32 v10, v1, 3, s{Q_T0}")
    A("v_mov_b32 v12, 0"); A("v_mov_b32 v13, 0")
    A("ds_write_b64 v10, v[12:13]")
    A("v_and_b32 v11, 15, v1")
    A(f"s_mul_i32 s{Q_T0}, s{KC}, {U_STRIDE}")
    A(f"s_add_u32 s{Q_T0}, s{Q_T0}, {LDS_U}")
    A(f"v_lshl_add_u32 v11, v11, 2, s{Q_T0}")
    A("ds_write_b32 v11, v12")
    A("v_cmp_eq_u32 vcc, 0, v1")
    A(f"v_mov_b32 v11, s{Q_DSK}")
    A("v_lshl_add_u32 v14, v9, 3, v8")
    A("v_lshl_add_u32 v15, v9, 9, v8")
    A("v_cndmask_b32 v11, 0, v11, vcc")
    A("v_lshl_add_u32 v16, v9, 10, v8")
    A("s_nop 4")
    A(f"v_add_f32 v{KD}, v{KD}, v11")
    A("v_and_b32 v11, 1, v1")
    A("v_cmp_eq_u32 vcc, 1, v11")
    for k in range(4): A(f"v_cvt_pk_bf16_f32 v{X+k}, v{KD+2*k}, v{KD+2*k+1}")
    a, b, c = KD + 8, KD + 9, KD + 10
    for k, (p, q) in enumerate(((a, a), (a, b), (b, b), (c, c))): A(f"v_cvt_pk_bf16_f32 v{X+4+k}, v{p}, v{q}")
    A(f"ds_write_b64 v14, {vr(X,2)} offset:448")
    A(f"ds_write_b64 v14, {vr(X+2,2)} offset:960")
    A(f"ds_write_b128 v15, {vr(X+4,4)} offset:1472")
    X = 72
    for k in range(2):
        a, b = KD + 12 + 2 * k, KD + 13 + 2 * k
        A(f"v_cndmask_b32 v11, v{a}, v{b}, vcc")
        A(f"v_cvt_pk_bf16_f32 v{X+4*k}, v{a}, v{a}")
        A(f"v_cvt_pk_bf16_f32 v{X+4*k+1}, v{a}, v{a}")
        A(f"v_cvt_pk_bf16_f32 v{X+4*k+2}, v11, v{b}")
        A(f"v_cvt_pk_bf16_f32 v{X+4*k+3}, v{b}, v{b}")
        A(f"ds_write_b128 v16, {vr(X+4*k,4)} offset:{2496+512*k}")

def loader2(A):
    A(f"s_cmp_ge_u32 s{S_J}, 28")
    A("s_cbranch_scc1 S_LW2")
    for c in range(O.LOOK, 8):
        if c >= 4: lwait(A, LGD, 0, 31, c - 3, sleep=O.LSLP)
        l_chunk(A, c)
        if c > O.LOOK: l_pub(A, 16, c)
        if c in (3, 5, 7): tss(A, 2 + (c - 3) // 2, "k")
    A.label("S_LW2")
    u_setup(A)
    token_get(A, 8, STOK)
    for s in range(4):
        lwait(A, LGD, 0, 31, 5 + s, sleep=O.LSLP)
        if s < 3:
            if s: A(f"s_cmp_eq_u32 s{S_UOK}, 1"); A(f"s_cbranch_scc1 S_U{s}")
            A(f"buffer_load_dword v9, v{UF}, s[{S_WS}:{S_WS+3}], 0 offen sc1")
            if s: A.label(f"S_U{s}")
        for k in range(7):
            A(f"s_add_u32 m0, s{K_M2}, {s*32768+4096+k*2048}")
            A(f"s_add_u32 s{K_T0}, s{K_W2}, {(14*s+k)*16384}")
            A(f"buffer_load_dwordx4 v{L2D}, s[{S_W2}:{S_W2+3}], s{K_T0} offen {O.W2FL} lds")
            A(f"buffer_load_dwordx4 v{L2D+1}, s[{S_W2}:{S_W2+3}], s{K_T0} offen offset:1024 {O.W2FL} lds")
        if s == 0: l_pub(A, 15, 8)
        if s < 3:
            if s: A(f"s_cmp_eq_u32 s{S_UOK}, 1"); A(f"s_cbranch_scc1 S_V{s}")
            A("s_waitcnt vmcnt(14)")
            A(f"v_cmp_ne_u32 vcc, v{STOK}, v9")
            A(f"s_cbranch_vccnz S_V{s}")
            u_dma(A)
            A(f"s_mov_b32 s{S_UOK}, 1")
            A.label(f"S_V{s}")
    tss(A, 5, "k")
    A("s_waitcnt vmcnt(14)")
    A(f"s_cmp_eq_u32 s{S_UOK}, 1"); A(f"s_cbranch_scc1 S_CV")
    poll(A, UF, 9, STOK, "PU")
    u_dma(A)
    A("s_waitcnt vmcnt(0)")

def conv_final3(A):
    w = S_WAVE
    A("v_bfe_u32 v8, v1, 3, 1")
    A("v_bfe_u32 v9, v1, 2, 1")
    A("v_and_b32 v10, 3, v1")
    A(f"v_lshl_add_u32 v8, v8, 2, s{w}")
    A("v_lshl_add_u32 v11, v8, 2, v10")
    A("v_lshlrev_b32 v11, 2, v11")
    A("v_lshl_add_u32 v12, v9, 7, v11")
    A("v_mul_u32_u24 v13, 144, v9")
    A("v_add_u32 v13, v13, v11")
    A(f"v_add_u32 v12, {LDS_HEAD}, v12")
    A(f"v_add_u32 v13, {LDS_CARR}, v13")
    A("v_lshl_add_u32 v8, v8, 8, v10")
    A("v_lshl_add_u32 v8, v8, 1, v9")
    A("v_lshlrev_b32 v8, 1, v8")
    A(f"v_add_u32 v8, {LDS_STG}, v8")
    A(f"s_lshl_b32 s{Q_T1}, s{w}, 10")
    A(f"s_add_u32 s{Q_T0}, s{Q_T1}, {LDS_STG}")
    A(f"v_lshl_add_u32 v9, v1, 3, s{Q_T0}")
    A("v_lshlrev_b32 v16, 4, v1")
    A(f"s_lshl_b32 s{Q_T0}, s{Q_PAIR}, 13")
    A(f"s_add_u32 s{Q_T0}, s{Q_T0}, s{Q_T1}")
    A(f"s_lshl_b32 s{Q_T0}, s{Q_T0}, 1")
    A(f"s_add_u32 s{Q_T0}, s{Q_T0}, {WS_A2}")
    A(f"s_add_u32 s{Q_T1}, s{Q_T0}, 8192")
    for k in range(4): A(f"v_mov_b32 v{67+4*k}, v{STOK}")
    s_barrier(A, 3)
    A("ds_read_b32 v12, v12")
    A("ds_read_b32 v13, v13")
    A("s_waitcnt lgkmcnt(0)")
    A("v_add_f32 v12, v12, v13")
    A("v_cvt_pk_bf16_f32 v12, v12, v12")
    A("ds_write_b16 v8, v12")
    for k in range(4): A(f"ds_read_b64 {vr(64+4*k,2)}, v9 offset:{(k//2)*4096+(k%2)*512}")
    for k in range(4):
        A(f"s_waitcnt lgkmcnt({3-k})")
        A(f"v_mov_b32 v{66+4*k}, v{65+4*k}")
        A(f"v_mov_b32 v{65+4*k}, v{STOK}")
        A(f"buffer_store_dwordx4 {vr(64+4*k,4)}, v16, s[{S_WS}:{S_WS+3}], s{Q_T0+k//2} offen offset:{(k%2)*1024} sc1")
def s_tail3(A):
    w = S_WAVE; SO_P = 76
    tss(A, 5, "a"); tss(A, 2, "t")
    A(f"s_lshl_b32 s{Q_T0}, s2, 2")
    A(f"s_add_u32 s{Q_T0}, s{Q_T0}, s{w}")
    A(f"s_lshl_b32 s{SO_P}, s{Q_T0}, 12")
    A(f"s_add_u32 s{SO_P}, s{SO_P}, {WS_P}")
    A(f"s_lshl_b32 s{Q_T0}, s{Q_NH}, 15")
    A(f"s_lshl_b32 s{Q_T1}, s{Q_C}, 11")
    A(f"s_add_u32 s{Q_T0}, s{Q_T0}, s{Q_T1}")
    A(f"v_add_u32 v17, s{Q_T0}, v16")
    A(f"v_xor_b32 v15, {0x10000+2048}, v17")
    A(f"s_lshl_b32 s{Q_T0}, s{Q_NH}, 2")
    A(f"s_add_u32 s{Q_T0}, s{Q_T0}, {L_GD}")
    A("v_and_b32 v5, 1, v1")
    A(f"v_lshl_add_u32 v5, v5, 3, s{Q_T0}")
    for k in range(8): A(f"v_mov_b32 v{97+2*k}, v{STOK}")
    lwait(A, 5, 0, 31, 9, sleep=1 - O.RSLP)
    tss(A, 3, "t")
    X = 112
    for h in range(2):
        A(f"ds_read_b128 {vr(X+4*h,4)}, v17 offset:{1024*h}")
        A(f"ds_read_b128 {vr(X+8+4*h,4)}, v15 offset:{1024*h}")
    A(f"v_mov_b32 v{S_FT}, 50")
    for h in range(2):
        A(f"s_waitcnt lgkmcnt({2-2*h})")
        if h == 1: A(f"ds_write_b32 v{S_FOWN}, v{S_FT}")
        for k in range(4):
            r = X + 4 * h + k
            A(f"v_lshlrev_b32 v80, 16, v{r}")
            A(f"v_lshlrev_b32 v81, 16, v{r+8}")
            A(f"v_and_b32 v82, 0xffff0000, v{r}")
            A(f"v_and_b32 v83, 0xffff0000, v{r+8}")
            A("v_add_f32 v80, v80, v81")
            A("v_add_f32 v82, v82, v83")
            A(f"v_cvt_pk_bf16_f32 v{96+8*h+2*k}, v80, v82")
            if k % 2 == 1:
                q = 2 * h + k // 2
                A(f"buffer_store_dwordx4 {vr(96+4*q,4)}, v16, s[{S_WS}:{S_WS+3}], s{SO_P} offen offset:{1024*q} {O.PST}")
    tss(A, 4, "t")
    A("s_waitcnt lgkmcnt(0)")

def s_tail(A):
    w = S_WAVE
    RT, CT, TT, DB = Q_EX, Q_EX + 1, Q_EX + 2, Q_EX + 3
    PK, AP, G, PP, T = 128, 136, 144, 148, 160
    SO_P, SO_PF, SO_A, SO_O = 76, 77, 78, 79
    A(f"s_lshl_b32 s80, s{Q_PAIR}, {FS}")
    A(f"s_lshl_b32 s{Q_T0}, s{w}, {8+FS}")
    A(f"s_add_u32 s80, s80, s{Q_T0}")
    A(f"s_add_u32 s80, s80, {F_A}")
    A(f"s_and_b32 s{RT}, s{S_XCD}, 6")
    A(f"s_lshl_b32 s{RT}, s{RT}, 1")
    A(f"s_and_b32 s{Q_T0}, s{S_J}, 3")
    A(f"s_add_u32 s{RT}, s{RT}, s{Q_T0}")
    A(f"s_lshl_b32 s{RT}, s{RT}, 1")
    A(f"s_and_b32 s{Q_T0}, s{S_XCD}, 1")
    A(f"s_add_u32 s{RT}, s{RT}, s{Q_T0}")
    A(f"s_lshr_b32 s{CT}, s{S_J}, 2")
    A(f"s_lshl_b32 s{TT}, s{RT}, 1")
    A(f"s_add_u32 s{TT}, s{TT}, s{Q_NH}")
    A(f"s_lshl_b32 s{DB}, s{CT}, 1")
    A(f"s_add_u32 s{DB}, s{DB}, s{Q_C}")
    A(f"s_bfe_u32 s{Q_T0}, s{RT}, 0x20002")
    A(f"s_lshl_b32 s{Q_T0}, s{Q_T0}, {8+FS}")
    A(f"s_lshl_b32 s{Q_T1}, s{DB}, {4+FS}")
    A(f"s_add_u32 s{Q_T0}, s{Q_T0}, s{Q_T1}")
    A(f"s_add_u32 s{Q_T0}, s{Q_T0}, {F_A}")
    A(f"v_lshl_add_u32 v2, v1, {FS}, s{Q_T0}")
    A(f"s_lshl_b32 s{Q_T0}, s{TT}, {1+FS}")
    A(f"s_add_u32 s{Q_T0}, s{Q_T0}, {F_G}")
    A("v_and_b32 v3, 1, v1")
    A(f"v_lshl_add_u32 v3, v3, {FS}, s{Q_T0}")
    A("v_cmp_gt_u32 vcc, 16, v1")
    A("v_and_b32 v10, 31, v1")
    A("v_lshrrev_b32 v11, 5, v1")
    A("v_cndmask_b32 v2, v3, v2, vcc")
    A("v_lshlrev_b32 v4, 14, v11")
    A("v_lshl_add_u32 v12, v10, 2, v4")
    A("v_add_u32 v13, 8192, v12")
    A(f"s_lshl_b32 s{Q_T0}, s{TT}, 8")
    A(f"s_add_u32 s{Q_T0}, s{Q_T0}, {WS_G}")
    A(f"v_lshl_add_u32 v14, v10, 3, s{Q_T0}")
    A(f"s_lshl_b32 s{SO_A}, s{DB}, 17")
    A(f"s_lshl_b32 s{Q_T1}, s{TT}, 7")
    A(f"s_add_u32 s{SO_A}, s{SO_A}, s{Q_T1}")
    A(f"s_add_u32 s{SO_A}, s{SO_A}, {WS_A}")
    A("v_lshlrev_b32 v16, 4, v1")
    A(f"s_lshl_b32 s{Q_T0}, s{w}, 12")
    A(f"s_add_u32 s{Q_T0}, s{Q_T0}, {L_T}")
    A(f"v_add_u32 v18, s{Q_T0}, v16")
    A(f"s_lshl_b32 s{Q_T0}, s{w}, 8")
    A(f"s_add_u32 s{Q_T0}, s{Q_T0}, {L_T+16384}")
    A(f"v_lshl_add_u32 v19, v1, 2, s{Q_T0}")
    A(f"s_lshl_b32 s{Q_T0}, s2, 2")
    A(f"s_add_u32 s{Q_T0}, s{Q_T0}, s{w}")
    A(f"s_lshl_b32 s{SO_P}, s{Q_T0}, 12")
    A(f"s_add_u32 s{SO_P}, s{SO_P}, {WS_P}")
    A(f"s_xor_b32 s{SO_O}, s{SO_P}, {4<<12}")
    A(f"s_lshl_b32 s{Q_T0}, s{Q_NH}, 15")
    A(f"s_lshl_b32 s{Q_T1}, s{Q_C}, 11")
    A(f"s_add_u32 s{Q_T0}, s{Q_T0}, s{Q_T1}")
    A(f"v_add_u32 v17, s{Q_T0}, v16")
    A(f"v_xor_b32 v15, {0x10000+2048}, v17")
    A(f"s_lshl_b32 s{Q_T0}, s{Q_NH}, 2")
    A(f"s_add_u32 s{Q_T0}, s{Q_T0}, {L_GD}")
    A("v_and_b32 v5, 1, v1")
    A(f"v_lshl_add_u32 v5, v5, 3, s{Q_T0}")
    for k in range(8): A(f"v_mov_b32 v{97+2*k}, v{STOK}")
    A("s_waitcnt vmcnt(0)")
    flag_store(A, 80, 8, STOK)
    tss(A, 5, "a"); tss(A, 2, "t")
    def ag():
        if O.EPOL:
            A("s_waitcnt vmcnt(4)")
            A(f"v_cmp_ne_u32 vcc, v{STOK}, v9")
            A("s_cbranch_vccz S_EP")
        poll(A, 2, 9, STOK, "PA")
        if O.EPOL: A.label("S_EP")
        for q in range(4):
            for i in range(2):
                A(f"buffer_load_dword v{AP+2*q+i}, v{12+i}, s[{S_WS}:{S_WS+3}], s{SO_A} offen sc1")
            if q < 3: A(f"s_add_u32 s{SO_A}, s{SO_A}, 32768")
        A(f"buffer_load_dwordx2 {vr(G,2)}, v14, s[{S_WS}:{S_WS+3}], 0 offen sc1")
    def ag2():
        for k in range(8):
            A(f"v_lshlrev_b32 v{T+2*k}, 16, v{AP+k}")
            A(f"v_and_b32 v{T+2*k+1}, 0xffff0000, v{AP+k}")
        for k in range(16):
            A(f"v_mul_f32 v{T+k}, v{G}, v{T+k}")
        A(f"ds_write_b32 v19, v{G+1}")
    def relay():
        for h in range(2):
            A(f"ds_read_b128 {vr(64+4*h,4)}, v17 offset:{1024*h}")
            A(f"ds_read_b128 {vr(72+4*h,4)}, v15 offset:{1024*h}")
        A(f"v_mov_b32 v{S_FT}, 50")
        for h in range(2):
            A(f"s_waitcnt lgkmcnt({2-2*h})")
            if h == 1: A(f"ds_write_b32 v{S_FOWN}, v{S_FT}")
            for k in range(4):
                r = 64 + 4 * h + k
                A(f"v_lshlrev_b32 v80, 16, v{r}")
                A(f"v_lshlrev_b32 v81, 16, v{r+8}")
                A(f"v_and_b32 v82, 0xffff0000, v{r}")
                A(f"v_and_b32 v83, 0xffff0000, v{r+8}")
                A("v_add_f32 v80, v80, v81")
                A("v_add_f32 v82, v82, v83")
                A(f"v_cvt_pk_bf16_f32 v{96+8*h+2*k}, v80, v82")
                if k % 2 == 1:
                    q = 2 * h + k // 2
                    A(f"buffer_store_dwordx4 {vr(96+4*q,4)}, v16, s[{S_WS}:{S_WS+3}], s{SO_P} offen offset:{1024*q} {O.PST}")
    if O.TL2:
        GOT, REL, POL = 33, 34, 35
        A(f"s_bfe_u32 s{Q_T0}, s{RT}, 0x20002")
        A(f"s_lshl_b32 s{Q_T0}, s{Q_T0}, {8+FS}")
        A(f"s_lshl_b32 s{Q_T1}, s{CT}, {5+FS}")
        A(f"s_add_u32 s{Q_T0}, s{Q_T0}, s{Q_T1}")
        A(f"s_add_u32 s{Q_T0}, s{Q_T0}, {F_A}")
        A(f"v_lshl_add_u32 v2, v1, {FS}, s{Q_T0}")
        A(f"s_lshl_b32 s{Q_T0}, s{RT}, {2+FS}")
        A(f"s_add_u32 s{Q_T0}, s{Q_T0}, {F_G}")
        A("v_and_b32 v3, 3, v1")
        A(f"v_lshl_add_u32 v3, v3, {FS}, s{Q_T0}")
        A("v_cmp_gt_u32 vcc, 32, v1")
        A(f"v_mov_b32 v6, {L_AOK}")
        A(f"s_mov_b32 s{GOT}, 0"); A(f"s_mov_b32 s{REL}, 0")
        A("v_cndmask_b32 v2, v3, v2, vcc")
        A(f"s_cmp_eq_u32 s{w}, {O.POLW}")
        A(f"s_cselect_b32 s{POL}, 1, 0")
        A(f"s_mov_b32 s{S_SPIN}, {O.SPIN}")
        A.label("T_L")
        A(f"s_cmp_eq_u32 s{POL}, 1")
        A("s_cbranch_scc0 T_NP")
        A(f"buffer_load_dword v9, v2, s[{S_WS}:{S_WS+3}], 0 offen sc1")
        A(f"s_sub_u32 s{S_SPIN}, s{S_SPIN}, 1")
        A("s_waitcnt vmcnt(0)")
        A("s_cbranch_scc1 T_OK")
        A(f"v_cmp_ne_u32 vcc, v{STOK}, v9")
        A("s_cbranch_vccnz T_NP")
        A.label("T_OK")
        A(f"ds_write_b32 v6, v{STOK+1}")
        A(f"s_mov_b32 s{POL}, 0")
        A.label("T_NP")
        A("ds_read_b32 v7, v6")
        A("ds_read_b32 v31, v5")
        A(f"s_cmp_eq_u32 s{GOT}, 0")
        A("s_waitcnt lgkmcnt(0)")
        A("s_cbranch_scc0 T_NA")
        A("v_cmp_eq_u32 vcc, 0, v7")
        A("s_cbranch_vccnz T_NA")
        tss(A, 4, "t")
        for q in range(4):
            for i in range(2):
                A(f"buffer_load_dword v{AP+2*q+i}, v{12+i}, s[{S_WS}:{S_WS+3}], s{SO_A} offen sc1")
            if q < 3: A(f"s_add_u32 s{SO_A}, s{SO_A}, 32768")
        A(f"buffer_load_dwordx2 {vr(G,2)}, v14, s[{S_WS}:{S_WS+3}], 0 offen sc1")
        A(f"s_mov_b32 s{GOT}, 1")
        A(f"s_cmp_eq_u32 s{REL}, 1")
        A("s_cbranch_scc1 T_W0")
        A.label("T_NA")
        A(f"s_cmp_eq_u32 s{REL}, 0")
        A("s_cbranch_scc0 T_SL")
        A("v_cmp_gt_u32 vcc, 9, v31")
        A("s_cbranch_vccnz T_SL")
        tss(A, 3, "t")
        relay()
        A(f"s_mov_b32 s{REL}, 1")
        A(f"s_cmp_eq_u32 s{GOT}, 1")
        A("s_cbranch_scc1 T_W4")
        A.label("T_SL")
        A(f"s_cmp_eq_u32 s{POL}, 1")
        A("s_cbranch_scc1 T_SP")
        A("s_sleep 1")
        A("s_branch T_L")
        A.label("T_SP")
        A(f"s_sleep {O.ASLP}")
        A("s_branch T_L")
        A.label("T_W0")
        A("s_waitcnt vmcnt(0)")
        A.label("T_W4")
        A("s_waitcnt vmcnt(4)")
        tss(A, 5, "t")
        ag2()
        for q in range(4):
            A(f"ds_write_b128 v18, {vr(T+4*q,4)} offset:{q*1024}")
        sw_arrive(A, S_FOWN, S_FT, 100)
        A("s_waitcnt lgkmcnt(0)")
        return
    if O.AFIRST:
        ag(); A("s_waitcnt vmcnt(0)"); ag2()
        tss(A, 3, "t")
    lwait(A, 5, 0, 31, 9, sleep=1)
    tss(A, 4 if O.AFIRST else 3, "t")
    if O.EPOL: A(f"buffer_load_dword v9, v2, s[{S_WS}:{S_WS+3}], 0 offen sc1")
    for h in range(2):
        A(f"ds_read_b128 {vr(64+4*h,4)}, v17 offset:{1024*h}")
        A(f"ds_read_b128 {vr(72+4*h,4)}, v15 offset:{1024*h}")
    A(f"v_mov_b32 v{S_FT}, 50")
    for h in range(2):
        A(f"s_waitcnt lgkmcnt({2-2*h})")
        if h == 1: A(f"ds_write_b32 v{S_FOWN}, v{S_FT}")
        for k in range(4):
            r = 64 + 4 * h + k
            A(f"v_lshlrev_b32 v80, 16, v{r}")
            A(f"v_lshlrev_b32 v81, 16, v{r+8}")
            A(f"v_and_b32 v82, 0xffff0000, v{r}")
            A(f"v_and_b32 v83, 0xffff0000, v{r+8}")
            A("v_add_f32 v80, v80, v81")
            A("v_add_f32 v82, v82, v83")
            A(f"v_cvt_pk_bf16_f32 v{96+8*h+2*k}, v80, v82")
            if k % 2 == 1:
                q = 2 * h + k // 2
                A(f"buffer_store_dwordx4 {vr(96+4*q,4)}, v16, s[{S_WS}:{S_WS+3}], s{SO_P} offen offset:{1024*q} {O.PST}")
    if not O.AFIRST:
        ag()
        tss(A, 4, "t")
    A(f"s_mov_b32 s{S_SPIN}, {O.SPIN}")
    A.label("S_PL")
    for q in range(4):
        A(f"buffer_load_dwordx4 {vr(112+4*q,4)}, v16, s[{S_WS}:{S_WS+3}], s{SO_O} offen offset:{1024*q} sc1")
    if not O.AFIRST:
        A(f"s_cmp_eq_u32 s{S_SPIN}, {O.SPIN}")
        A("s_cbranch_scc0 S_PM")
        A("s_waitcnt vmcnt(4)")
        ag2()
        A.label("S_PM")
    A("s_waitcnt vmcnt(0)")
    for k in range(4):
        A(f"v_xor_b32 v{80+k}, v{STOK}, v{113+4*k}")
        A(f"v_xor_b32 v{84+k}, v{STOK}, v{115+4*k}")
    A("v_or3_b32 v80, v80, v81, v82")
    A("v_or3_b32 v83, v83, v84, v85")
    A("v_or3_b32 v80, v80, v86, v87")
    A("v_or_b32 v80, v80, v83")
    A("v_cmp_ne_u32 vcc, 0, v80")
    A("s_cbranch_vccz S_PD")
    A("s_sleep 1")
    A(f"s_sub_u32 s{S_SPIN}, s{S_SPIN}, 1")
    A("s_cbranch_scc0 S_PL")
    A.label("S_PD")
    tss(A, 5, "t")
    for q in range(4):
        for k in range(2):
            r = 112 + 4 * q + 2 * k
            A(f"v_lshlrev_b32 v{80+2*k}, 16, v{r}")
            A(f"v_and_b32 v{81+2*k}, 0xffff0000, v{r}")
        for k in range(4):
            A(f"v_fmac_f32 v{T+4*q+k}, v{G+1}, v{80+k}")
        A(f"ds_write_b128 v18, {vr(T+4*q,4)} offset:{q*1024}")
    sw_arrive(A, S_FOWN, S_FT, 100)
    A("s_waitcnt lgkmcnt(0)")

def diag(A, k, role):
    A("s_waitcnt vmcnt(0) lgkmcnt(0)")
    A(f"s_memtime s[{S_TS+12}:{S_TS+13}]")
    A("s_waitcnt lgkmcnt(0)")
    A(f"s_sub_u32 s64, s{S_TS+2*k}, s{S_TS+2}")
    mx = len(O.DIAG) > 2
    if not mx or role == "G":
        A(f"s_cmp_ge_u32 s{S_J}, 28")
        A("s_cselect_b32 s64, 0, s64")
    A("v_mov_b32 v2, 128"); A("v_mov_b32 v3, s64")
    A("s_mov_b64 exec, 1")
    A(f"global_atomic_{'umax' if mx else 'add'} v2, v3, s[{P_DBG}:{P_DBG+1}] sc1")
    for lab, first in (("DG0", True), ("DG1", False)):
        A("s_mov_b32 s66, 1000000")
        if first: A("s_mov_b32 s67, 3200")
        A.label(lab)
        A("s_memrealtime s[64:65]")
        A("s_waitcnt lgkmcnt(0)")
        A(f"s_sub_u32 s64, s64, s{S_TS}")
        A("s_cmp_ge_u32 s64, s67")
        A(f"s_cbranch_scc1 {lab}X")
        A("s_sub_u32 s66, s66, 1")
        A(f"s_cbranch_scc0 {lab}")
        A.label(lab + "X")
        if first:
            A("s_waitcnt vmcnt(0)")
            A(f"global_load_dword v3, v2, s[{P_DBG}:{P_DBG+1}] sc1")
            A("s_waitcnt vmcnt(0)")
            A("v_readfirstlane_b32 s67, v3")
            A(f"s_lshr_b32 s67, s67, {1 if mx else 11}")
            A("s_add_u32 s67, s67, 3500")
def fin(A, role):
    if O.DIAG is None: ts_dump(A, 0, S_W8)
    elif O.DIAG[0] == role: diag(A, O.DIAG[1], role)

KN = "gated_mix__ssm_conv_s4d__dense_activation_silu__prompt_kernel"
A = Asm()
A.raw("; @launch grid=(256,1,1) block=(512,1,1) lds=163840")
A.raw('.amdgcn_target "amdgcn-amd-amdhsa--gfx950"')
kernel_header(A, KN)
ts_real(A, 0); parts_ts(A, 1)
if O.ECP > 0:
    A(f"s_cmp_ge_u32 s2, 256")
    A(f"s_cbranch_scc1 K_END")
    A("s_getpc_b64 s[72:73]")
    A.label("K_PC0")
    A("s_load_dwordx16 s[36:51], s[0:1], 0")
    A(f"s_lshr_b32 s{S_J}, s2, 3")
    if O.ECP == 1:
        A("v_lshrrev_b32 v255, 5, v0")
        A(f"v_lshl_add_u32 v255, s{S_J}, 4, v255")
        A("v_lshlrev_b32 v255, 6, v255")
    else:
        A(f"s_and_b32 s74, s{S_J}, {32//O.ECP-1}")
        A(f"v_lshrrev_b32 v255, {5-int(math.log2(O.ECP))}, v0")
        A(f"v_lshl_add_u32 v255, s74, {4+int(math.log2(O.ECP))}, v255")
        A("v_lshlrev_b32 v255, 6, v255")
    A(f"v_min_u32 v255, K_END-K_PC0, v255")
    A("global_load_dword v255, v255, s[72:73]")
    A("s_load_dwordx8 s[52:59], s[0:1], 64")
    A("s_load_dwordx4 s[60:63], s[0:1], 96")
    A("v_lshrrev_b32 v2, 6, v0")
    A("v_and_b32 v1, 63, v0")
    A(f"v_readfirstlane_b32 s{S_WAVE}, v2")
    A(f"s_and_b32 s{S_XCD}, s2, 7")
else:
    prologue(A, "K_END")
A(f"s_mov_b32 s{S_W8}, s{S_WAVE}")
A("v_and_b32 v2, 31, v1")
A("v_lshlrev_b32 v2, 2, v2")
A(f"v_add_u32 v2, {LF}, v2")
A("v_mov_b32 v3, 0")
A("ds_write_b32 v2, v3")
A(f"s_cmp_ge_u32 s{S_WAVE}, 4")
A("s_cbranch_scc1 K_SSM")
if O.GPRIO: A(f"s_setprio {O.GPRIO}")
if O.ECP < 0:
    A(f"s_cmp_lt_u32 s{S_J}, 28")
    A("s_cbranch_scc1 K_GM")
    A("s_getpc_b64 s[72:73]")
    A.label("K_PC0")
    A(f"s_and_b32 s74, s{S_J}, 3")
    A(f"v_lshrrev_b32 v255, 1, v0")
    A(f"v_lshl_add_u32 v255, s74, 7, v255")
    A("v_lshlrev_b32 v255, 6, v255")
    A(f"v_min_u32 v255, K_END-K_PC0, v255")
    A("global_load_dword v255, v255, s[72:73]")
    A("s_branch K_IDLE")
    A.label("K_GM")
else:
    A(f"s_cmp_ge_u32 s{S_J}, 28")
    A("s_cbranch_scc1 K_IDLE")
g1_setup(A)
if O.HAB: hab_setup(A)
rot_c0(A, S_C0, S_T0)
A("s_waitcnt lgkmcnt(0)")
srd(A, S_X, P_U, L*D*2); srd(A, S_W1, P_W1, D*F*2)
vm = Vm(A); cid = {}
for x in g_chunk_dma(0): vm.op(x)
cid[0] = vm.n
if O.GPRE == 1: A("s_barrier")
if O.LOOK > 1:
    for x in g_chunk_dma(1): vm.op(x)
    cid[1] = vm.n
if O.GPRE == 2: A("s_barrier")
srd(A, S_WS, P_WS, WS_BYTES); srd(A, S_OUT, P_OUT, L*D*2)
g1_setup2(A); g_flags_setup(A); g2_setup(A)
if O.HAB: hab_setup2(A)
if O.GW2: gw2_setup(A)
if O.LOOK > 2:
    for x in g_chunk_dma(2): vm.op(x)
    cid[2] = vm.n
if O.LOOK >= 4 and O.L3 == "u":
    for x in g_chunk_dma(3): vm.op(x)
    cid[3] = vm.n
if "L" in O.X2:
    parts_ts(A, 2)
    for k in sorted(cid)[:3]:
        vm.wait(cid[k]); parts_ts(A, 3 + k)
if O.GHOLD: lwait(A, GRD, 32, GT, 1, sleep=4)
(g1_main if O.LA == 1 else g1_main2)(A, vm, cid)
tsg(A, 2, "aeh")
g1_epi(A)
tsg(A, 3, "ae")
A.label("K_G2")
if O.GW2:
    A(f"v_mov_b32 v{GT}, 12")
    A("s_waitcnt vmcnt(0)")
    A(f"ds_write_b32 v{GOWN}, v{GT}")
    lwait(A, GRD, 0, GT + 1, 12)
else: lwait(A, GRD, 48, GT, 12)
for i in range(O.PFD):
    for x in w2_read(i): A(x)
tsg(A, 4, "h")
if O.PW:
    poll(A, FV, GT, VTOK, "PH", slp=O.HSLP)
    A("s_waitcnt lgkmcnt(0)")
else:
    A(f"v_mov_b32 v{GX}, {L_HOK}")
    A(f"s_cmp_eq_u32 s{S_WAVE}, 0")
    A("s_cbranch_scc0 K_HW")
    poll(A, FV, GT, VTOK, "PH", slp=O.HSLP)
    A(f"ds_write_b32 v{GX}, v{VTOK+1}")
    A("s_waitcnt lgkmcnt(1)")
    A("s_branch K_HD")
    A.label("K_HW")
    lwait(A, GX, 0, GT, 1)
A.label("K_HD")
tsg(A, 5, "h")
tsg(A, 4, "ae"); tsg(A, 1, "sf")
g2_main(A)
A("s_waitcnt lgkmcnt(0)")
fin(A, "G")
A("s_endpgm")
A.label("K_IDLE")
if O.IPRIO != O.GPRIO: A(f"s_setprio {O.IPRIO}")
idle_tr_issue(A)
if O.CODEPF:
    A("s_getpc_b64 s[72:73]")
    A.label("K_PC")
    A(f"s_sub_u32 s72, s72, K_PC-{KN}")
    A("s_subb_u32 s73, s73, 0")
    A(f"v_lshl_add_u32 v20, s64, 5, v1")
    A("v_lshlrev_b32 v20, 7, v20")
    A(f"v_min_u32 v20, K_END-{KN}, v20")
    A("s_mov_b64 exec, 0xffffffff")
    A("global_load_dword v21, v20, s[72:73]")
    A("s_mov_b64 exec, -1")
A("s_waitcnt lgkmcnt(0)")
srd(A, S_X, P_U, L*D*2)
if any(O.W2P): srd(A, S_W2, P_W2, D*F*2); w2_touch_setup(A)
w2_touch(A, O.W2P[0], 26)
idle_tr_dma(A)
A("s_barrier")
w2_touch(A, O.W2P[1], 26)
srd(A, S_WS, P_WS, WS_BYTES); srd(A, S_OUT, P_OUT, L*D*2)
idle_tr_finish(A, 2 * len(O.W2P[1]))
g_flags_setup(A); g2_setup(A)
tsg(A, 2, "ae")
token_get(A, GX, VTOK)
A(f"s_lshl_b32 s68, s34, 4")
A(f"s_add_u32 s68, s68, s33")
A(f"s_lshl_b32 s65, s68, {FS}")
A(f"s_add_u32 s65, s65, {F_UT}")
A("s_waitcnt vmcnt(0)")
flag_store(A, 65, GT, VTOK)
tsg(A, 3, "ae")
A(f"v_mov_b32 v{GT}, 8")
A(f"ds_write_b32 v{GOWN}, v{GT} offset:16")
if O.IPRIO != O.GPRIO: A(f"s_setprio {O.GPRIO}")
w2_touch(A, O.W2P[2], 26)
idle_gate_issue(A)
w2_touch(A, O.W2P[3], 26)
if O.GW2:
    gw2_setup(A)
    lwait(A, GRD, 16, GT, 8)
    for sl in range(4):
        for x in gw2_dma(sl): A(x)
idle_gate_finish(A, 2 * len(O.W2P[3]) + (28 if O.GW2 else 0))
if not O.TL3:
    A(f"s_lshl_b32 s65, s68, {FS}")
    A(f"s_add_u32 s65, s65, {F_G}")
    A("s_waitcnt vmcnt(0)")
    flag_store(A, 65, GT, VTOK)
A("s_branch K_G2")
A.label("K_SSM")
if O.SPRIO: A(f"s_setprio {O.SPRIO}")
A(f"s_sub_u32 s{S_WAVE}, s{S_WAVE}, 4")
s_setup(A)
carry_zero(A)
A("s_getreg_b32 s31, hwreg(HW_REG_XCC_ID)")
def w2s():
    if O.W2S is None: return
    srd(A, S_W2, P_W2, D*F*2)
    A(f"s_lshr_b32 s{Q_T0}, s{S_XCD}, 1")
    A(f"s_and_b32 s{Q_T1}, s{S_XCD}, 1")
    A(f"s_lshl_b32 s{Q_T1}, s{Q_T1}, 2")
    A(f"s_add_u32 s{Q_T0}, s{Q_T0}, s{Q_T1}")
    A(f"s_lshl_b32 s{Q_T0}, s{Q_T0}, 5")
    A(f"s_add_u32 s{Q_T0}, s{Q_T0}, s{S_J}")
    A(f"s_lshl_b32 s{Q_T0}, s{Q_T0}, 1")
    A(f"s_add_u32 s{Q_T0}, s{Q_T0}, s{Q_NH}")
    A(f"s_mul_i32 s{Q_T0}, s{Q_T0}, 3584")
    A("v_min_u32 v39, 27, v1")
    A("v_lshlrev_b32 v39, 7, v39")
    A(f"buffer_load_dword v39, v39, s[{S_W2}:{S_W2+3}], s{Q_T0} offen {O.PFL2}")
def flow2():
    A(f"s_cmp_eq_u32 s{Q_C}, 1")
    A("s_cbranch_scc1 S_LD")
    A(f"s_lshl_b32 s{Q_T0}, s{Q_PAIR}, 9")
    A(f"s_lshl_b32 s{Q_T1}, s{S_WAVE}, 8")
    A(f"s_add_u32 s{Q_T0}, s{Q_T0}, s{Q_T1}")
    A(f"v_lshl_add_u32 v6, v1, 2, s{Q_T0}")
    A(f"s_lshl_b32 s{Q_T0}, s{Q_PAIR}, 2")
    A("s_waitcnt lgkmcnt(0)")
    for i, p in enumerate((P_LA, P_AI, P_CR, P_CI)):
        A(f"global_load_dword v{14+i}, v6, s[{p}:{p+1}]")
    A(f"s_load_dword s{Q_LDT}, s[{P_LDT}:{P_LDT+1}], s{Q_T0}")
    A(f"s_load_dword s{Q_DSK}, s[{P_DSK}:{P_DSK+1}], s{Q_T0}")
    A(f"s_add_u32 s28, s{P_WS}, {F_EP}")
    A(f"s_addc_u32 s29, s{P_WS+1}, 0")
    A(f"s_cmp_eq_u32 s{S_WAVE}, 1")
    A("s_cbranch_scc0 S_NT")
    A("s_load_dword s30, s[28:29], 0")
    A.label("S_NT")
    A("s_barrier")
    if O.W2S == 0: w2s()
    def tokpub():
        A(f"s_cmp_eq_u32 s{S_WAVE}, 1")
        A("s_cbranch_scc0 S_NP")
        A("s_mul_i32 s30, s30, 0x9e3779a1")
        A("s_add_u32 s30, s30, 0x7f4a7c10")
        A("s_and_b32 s30, s30, -16")
        A(f"v_mov_b32 v{STOK}, s30")
        A(f"v_mov_b32 v{STOK+1}, 1")
        A(f"v_mov_b32 v34, {L_RDY}")
        A(f"ds_write_b64 v34, {vr(STOK,2)}")
        A(f"s_waitcnt vmcnt({1 if O.W2S == 0 else 0})")
        A(f"s_lshl_b32 s28, s2, {FS}")
        A(f"s_add_u32 s28, s28, {F_HERE}")
        flag_store(A, 28, 36, STOK)
        A("s_branch S_NQ")
        A.label("S_NP")
        A(f"s_waitcnt vmcnt({1 if O.W2S == 0 else 0})")
        A.label("S_NQ")
    kgen2(A, 2, tokpub)
    tss(A, 5, "k")
    A("s_cmp_eq_u32 s2, 0")
    A("s_cbranch_scc0 S_UW")
    A(f"s_cmp_eq_u32 s{S_WAVE}, 1")
    A("s_cbranch_scc0 S_UW")
    for i in range(4):
        A(f"v_lshlrev_b32 v8, {FS}, v1")
        A(f"v_add_u32 v8, {F_HERE+(64<<FS)*i}, v8")
        poll(A, 8, 9, STOK, "PE")
    A(f"s_mov_b32 s{Q_T0}, {F_EP}")
    flag_store(A, Q_T0, 8, STOK)
    A.label("S_UW")
    A("s_branch S_CV")
    A.label("S_LD")
    if O.LPRIO != O.SPRIO: A(f"s_setprio {O.LPRIO}")
    loader_setup(A)
    A("s_waitcnt lgkmcnt(0)")
    srd(A, S_X, P_U, L*D*2); srd(A, S_W1, P_W1, D*F*2); srd(A, S_W2, P_W2, D*F*2)
    srd(A, S_WS, P_WS, WS_BYTES)
    A("s_barrier")
    if O.W2S == 1: w2s()
    if O.LDLY: A(f"s_sleep {O.LDLY}")
    loader2(A)
def flow1():
    A(f"s_lshl_b32 s{Q_T0}, s{Q_PAIR}, 9")
    A(f"s_lshl_b32 s{Q_T1}, s{S_WAVE}, 7")
    A(f"s_add_u32 s{Q_T0}, s{Q_T0}, s{Q_T1}")
    A(f"v_lshl_add_u32 v6, v1, 1, s{Q_T0}")
    A(f"s_lshl_b32 s{Q_T0}, s{Q_PAIR}, 2")
    A("s_waitcnt lgkmcnt(0)")
    for i, p in enumerate((P_LA, P_AI, P_CR, P_CI)):
        A(f"global_load_ushort v{2+i}, v6, s[{p}:{p+1}]")
    A(f"s_load_dword s{Q_LDT}, s[{P_LDT}:{P_LDT+1}], s{Q_T0}")
    A(f"s_load_dword s{Q_DSK}, s[{P_DSK}:{P_DSK+1}], s{Q_T0}")
    A(f"s_add_u32 s28, s{P_WS}, {F_EP}")
    A(f"s_addc_u32 s29, s{P_WS+1}, 0")
    A(f"s_cmp_eq_u32 s{S_WAVE}, 1")
    A("s_cbranch_scc0 S_NT")
    A("s_load_dword s30, s[28:29], 0")
    A.label("S_NT")
    A("s_barrier")
    if O.TCH:
        A(f"s_cmp_eq_u32 s{Q_C}, 1")
        A("s_cbranch_scc1 S_T2")
        A(f"s_cmp_eq_u32 s{Q_NH}, 1")
        A("s_cbranch_scc1 S_T1")
        srd(A, S_X, P_U, L*D*2)
        A(f"s_lshl_b32 s{Q_T0}, s{Q_PAIR}, 13")
        A("v_lshlrev_b32 v39, 7, v1" if "x" in O.TCH else "v_mov_b32 v39, 0")
        A(f"buffer_load_dword v39, v39, s[{S_X}:{S_X+3}], s{Q_T0} offen")
        A("s_branch S_T3")
        A.label("S_T1")
        srd(A, S_W1, P_W1, D*F*2)
        A(f"s_add_u32 s{Q_T0}, s{S_XCD}, {2*O.TR}")
        A(f"s_bfe_u32 s{Q_T0}, s{Q_T0}, 0x20001")
        A(f"s_lshl_b32 s{Q_T0}, s{Q_T0}, 5")
        A(f"s_add_u32 s{Q_T0}, s{Q_T0}, s{S_J}")
        A(f"s_mul_i32 s{Q_T0}, s{Q_T0}, {4*2*F}")
        A(f"s_and_b32 s{Q_T1}, s{S_XCD}, 1")
        A(f"s_mul_i32 s{Q_T1}, s{Q_T1}, {F}")
        A(f"s_add_u32 s{Q_T0}, s{Q_T0}, s{Q_T1}")
        A("v_and_b32 v38, 15, v1")
        A("v_min_u32 v38, 13, v38")
        A("v_lshrrev_b32 v39, 4, v1")
        A(f"v_mul_u32_u24 v39, {2*F}, v39")
        A("v_lshl_add_u32 v39, v38, 7, v39" if "w" in O.TCH else "v_mov_b32 v39, 0")
        A(f"buffer_load_dword v39, v39, s[{S_W1}:{S_W1+3}], s{Q_T0} offen")
        A("s_branch S_T3")
        A.label("S_T2")
        w2s()
        A.label("S_T3")
    elif O.W2H: pass
    elif O.W2S is not None:
        srd(A, S_W2, P_W2, D*F*2)
        A(f"s_lshr_b32 s{Q_T0}, s{S_XCD}, 1")
        A(f"s_and_b32 s{Q_T1}, s{S_XCD}, 1")
        A(f"s_lshl_b32 s{Q_T1}, s{Q_T1}, 2")
        A(f"s_add_u32 s{Q_T0}, s{Q_T0}, s{Q_T1}")
        A(f"s_lshl_b32 s{Q_T0}, s{Q_T0}, 5")
        A(f"s_add_u32 s{Q_T0}, s{Q_T0}, s{S_J}")
        A(f"s_mul_i32 s{Q_T0}, s{Q_T0}, 7168")
        A(f"s_mul_i32 s{Q_T1}, s{S_WAVE}, 1792")
        A(f"s_add_u32 s{Q_T0}, s{Q_T0}, s{Q_T1}")
        A("v_min_u32 v39, 13, v1")
        A("v_lshlrev_b32 v39, 7, v39")
        A(f"buffer_load_dword v39, v39, s[{S_W2}:{S_W2+3}], s{Q_T0} offen {O.PFL2}")
    def pre():
        if O.GW2: srd(A, S_WS, P_WS, WS_BYTES); return
        srd(A, S_X, P_U, L*D*2); srd(A, S_W1, P_W1, D*F*2); srd(A, S_W2, P_W2, D*F*2)
        srd(A, S_WS, P_WS, WS_BYTES)
        loader_setup(A)
    def tokpub():
        tss(A, 2, "ak")
        A(f"s_cmp_eq_u32 s{S_WAVE}, 1")
        A("s_cbranch_scc0 S_NP")
        A("s_mul_i32 s30, s30, 0x9e3779a1")
        A("s_add_u32 s30, s30, 0x7f4a7c10")
        A("s_and_b32 s30, s30, -16")
        A("s_and_b32 s31, s31, 15")
        A("s_or_b32 s31, s31, s30")
        A(f"v_mov_b32 v{STOK}, s30")
        A(f"v_mov_b32 v{STOK+1}, 1")
        A(f"v_mov_b32 v34, {L_RDY}")
        A(f"ds_write_b64 v34, {vr(STOK,2)}")
        A(f"v_mov_b32 v35, s31")
        A(f"s_lshl_b32 s28, s2, {FS}")
        A(f"s_add_u32 s28, s28, {F_HERE}")
        flag_store(A, 28, 36, 35)
        A.label("S_NP")
    def khook():
        tss(A, 3, "k")
        if O.W2H == 1:
            A(f"s_cmp_eq_u32 s{Q_C}, 1")
            A("s_cbranch_scc0 S_T4")
            w2s()
            A.label("S_T4")
    kgen(A, later=0 if (O.W2S is None or O.W2H) else 1, hookA=tokpub, pre=pre, hook=khook)
    tss(A, 4, "k")
    if O.W2H == 2:
        A(f"s_cmp_eq_u32 s{Q_C}, 0")
        A("s_cbranch_scc0 S_T4")
        w2s()
        A.label("S_T4")
    kgen_exchange_write(A)
    A("s_waitcnt lgkmcnt(0)")
    sw_arrive(A, S_FOWN, S_FT, 1)
    def kfin():
        sw_wait(A, S_FRD, S_FT, 1, sleep=1)
        kgen_final(A)
        token_get(A, 8, STOK)
    tss(A, 3, "a")
    if O.GW2:
        token_get(A, 16, STOK)
        A(f"s_cmp_eq_u32 s{S_WAVE}, {O.UW}")
        A("s_cbranch_scc0 S_K1")
        A(f"s_lshl_b32 s{Q_T0}, s{S_XCD}, {4+FS}")
        A(f"s_add_u32 s{Q_T0}, s{Q_T0}, {F_UT}")
        A("v_and_b32 v16, 15, v1")
        A(f"v_lshl_add_u32 v16, v16, {FS}, s{Q_T0}")
        poll(A, 16, 17, STOK, "PU")
        ut2(A, 0)
        A.label("S_K1")
        sw_wait(A, S_FRD, S_FT, 1, sleep=1)
        kgen_final(A)
        tss(A, 5, "k")
        A(f"s_cmp_eq_u32 s{S_WAVE}, {O.UW}")
        A("s_cbranch_scc0 S_K2")
        ut2(A, 1)
        A.label("S_K2")
        A("s_cmp_eq_u32 s2, 0")
        A("s_cbranch_scc0 S_CV")
        A(f"s_cmp_eq_u32 s{S_WAVE}, 1")
        A("s_cbranch_scc0 S_CV")
        for i in range(4):
            A(f"v_lshlrev_b32 v8, {FS}, v1")
            A(f"v_add_u32 v8, {F_HERE+(64<<FS)*i}, v8")
            poll(A, 8, 9, STOK, "PE", mask=True)
        A(f"s_mov_b32 s{Q_T0}, {F_EP}")
        flag_store(A, Q_T0, 8, STOK)
        return
    A(f"s_cmp_eq_u32 s{Q_C}, 1")
    A("s_cbranch_scc1 S_LD")
    kfin()
    tss(A, 5, "k")
    A(f"s_cmp_eq_u32 s{S_WAVE}, 1")
    A("s_cbranch_scc1 S_VD")
    A(f"s_lshl_b32 s{Q_T0}, s{S_XCD}, {4+FS}")
    A(f"s_add_u32 s{Q_T0}, s{Q_T0}, {F_UT}")
    A("v_and_b32 v8, 15, v1")
    A(f"v_lshl_add_u32 v8, v8, {FS}, s{Q_T0}")
    poll(A, 8, 9, STOK, "PU")
    ut2(A)
    A("s_branch S_CV")
    A.label("S_VD")
    if O.PT:
        A(f"s_lshr_b32 s{Q_T0}, s{S_J}, 2")
        A(f"s_lshl_b32 s{Q_T0}, s{Q_T0}, 18")
        A(f"s_xor_b32 s{Q_T1}, s{S_XCD}, 2")
        A(f"s_lshl_b32 s{Q_T1}, s{Q_T1}, 10")
        A(f"s_add_u32 s{Q_T0}, s{Q_T0}, s{Q_T1}")
        A(f"s_add_u32 s{Q_T0}, s{Q_T0}, {WS_A}")
        A(f"v_lshl_add_u32 v8, v1, 13, s{Q_T0}")
        A(f"s_lshl_b32 s{Q_T0}, s2, 14")
        A(f"s_add_u32 s{Q_T0}, s{Q_T0}, {WS_P}")
        A("v_and_b32 v9, 3, v1")
        A(f"v_lshl_add_u32 v9, v9, 12, s{Q_T0}")
        A("v_cmp_gt_u32 vcc, 32, v1")
        A(f"s_lshl_b32 s{Q_T0}, s{Q_PAIR}, 13")
        A(f"s_add_u32 s{Q_T0}, s{Q_T0}, s{Q_T1}")
        A("v_cndmask_b32 v8, v9, v8, vcc")
        A(f"s_add_u32 s{Q_T0}, s{Q_T0}, {WS_A}")
        A("v_and_b32 v9, 1, v1")
        A("v_lshlrev_b32 v9, 12, v9")
        A(f"v_xor_b32 v9, s{Q_T0}, v9")
        A("v_cmp_gt_u32 vcc, 48, v1")
        srd(A, S_OUT, P_OUT, L*D*2)
        A("v_cndmask_b32 v8, v9, v8, vcc")
        if "w" in O.PT: A(f"buffer_load_dword v38, v8, s[{S_WS}:{S_WS+3}], 0 offen")
        A(f"s_and_b32 s{Q_T0}, s{S_XCD}, 6")
        A(f"s_lshl_b32 s{Q_T0}, s{Q_T0}, 1")
        A(f"s_and_b32 s{Q_T1}, s{S_J}, 3")
        A(f"s_add_u32 s{Q_T0}, s{Q_T0}, s{Q_T1}")
        A(f"s_lshl_b32 s{Q_T0}, s{Q_T0}, 1")
        A(f"s_and_b32 s{Q_T1}, s{S_XCD}, 1")
        A(f"s_add_u32 s{Q_T0}, s{Q_T0}, s{Q_T1}")
        A(f"s_lshl_b32 s{Q_T0}, s{Q_T0}, 16")
        A(f"s_lshr_b32 s{Q_T1}, s{S_J}, 2")
        A(f"s_lshl_b32 s{Q_T1}, s{Q_T1}, 7")
        A(f"s_add_u32 s{Q_T0}, s{Q_T0}, s{Q_T1}")
        if "O" in O.PT: A("v_lshlrev_b32 v9, 10, v1")
        else:
            A("v_and_b32 v9, 15, v1")
            A("v_lshlrev_b32 v9, 12, v9")
        if "o" in O.PT.lower(): A(f"buffer_load_dword v37, v9, s[{S_OUT}:{S_OUT+3}], s{Q_T0} offen")
    if O.VERD:
        A(f"s_and_b32 s{Q_T0}, s2, 31")
        A(f"s_lshl_b32 s{Q_T0}, s{Q_T0}, {FS}")
        A(f"s_add_u32 s{Q_T0}, s{Q_T0}, {F_HERE}")
        A("v_and_b32 v8, 7, v1")
        A(f"v_lshl_add_u32 v8, v8, {5+FS}, s{Q_T0}")
        poll(A, 8, 9, STOK, "PV", mask=True)
        A("v_cmp_ne_u32 vcc, s31, v9")
        A("s_cmp_eq_u64 vcc, 0")
        A(f"s_cselect_b32 s{Q_T0}, 1, 2")
        A(f"v_mov_b32 v9, s{Q_T0}")
        A(f"v_mov_b32 v8, {L_VERD}")
        A("ds_write_b32 v8, v9")
    A("s_cmp_eq_u32 s2, 0")
    A("s_cbranch_scc0 S_CV")
    for i in range(4):
        A(f"v_lshlrev_b32 v8, {FS}, v1")
        A(f"v_add_u32 v8, {F_HERE+(64<<FS)*i}, v8")
        poll(A, 8, 9, STOK, "PE", mask=True)
    A(f"s_mov_b32 s{Q_T0}, {F_EP}")
    flag_store(A, Q_T0, 8, STOK)
    A("s_branch S_CV")
    A.label("S_LD")
    loader(A, kfin)

(flow2 if O.DL else flow1)()
A.label("S_CV")
conv_setup(A)
A(f"v_mov_b32 v{LV}, 12"); A(f"v_mov_b32 v{LV+1}, 12")
s_barrier(A, 2)
tss(A, 4, "a")
if O.CPRIO != O.SPRIO: A(f"s_setprio {O.CPRIO}")
conv(A, inj=None if O.GW2 else (O.PUBM, ["s_waitcnt vmcnt(0)", f"ds_write_b64 v{LSA}, {vr(LV,2)}"]))
if O.CPRIO != O.TPRIO: A(f"s_setprio {O.TPRIO}")
if O.TL3:
    conv_final3(A); s_tail3(A)
else:
    s_barrier(A, 3)
    conv_final(A, "sc1")
    s_tail(A)
fin(A, "S")
A.label("K_END")
A("s_endpgm")
kernel_desc(A, KN, 256)
open(sys.argv[1], "w").write(A.text())
```

```python
import sys; sys.path.insert(0, "gen")
import parts
from parts import *
import ssm
from ssm import *

class Opt: pass
O = Opt()
O.TS = False
O.ROT = (0, 0, 2, 1)
O.SPRIO = 3; O.CPRIO = 0; O.GPRIO = 1; O.TPRIO = 3
O.CODEPF = True
O.YPRIO = None; O.G2P = None; O.MID = 0; O.TR2 = False; O.F32 = 0; O.FK = False; O.YP = 1; O.KROT = 0; O.ECP = 0; O.EPOL = 0
import math
O.SPIN = 100000
O.SLP = 4; O.HSLP = 1
O.TSC = None; O.TSG = "a"; O.TSS = "a"
O.ARR = 1
O.DEPTH = 14
O.PUBM = 12
O.SLOW = False
O.DIAG = None
O.HFS = 8
O.HLD = "sc1"; O.HST = "sc1"; O.GHOLD = False; O.VERD = False; O.NA = 4; O.PFD = 2; O.NOPK = True; O.KG2 = True; O.KLO = "pk"; O.KHI = "sc"; O.LFIN = 7; O.TOUCH = False; O.PST = "sc1"; O.AFIRST = False; O.XFL = ""; O.W1FL = ""; O.W2FL = ""; O.TFL = "nt"; O.UFL = ""; O.PDLY = 0; O.LOOK = 4; O.PFL = 99; O.L3 = "i"; O.IPRIO = 3; O.TAILK = 0
O.X2 = ""; O.ST = (1, 14, 28, 42)
O.HAB = False; O.BS = 8; O.FA = 6; O.PW = False; O.TCH = ""; O.TR = 2; O.W2H = False; O.PT = ""; O.APS = 3; O.XF = 0; O.RSLP = 0; O.XQ = None; O.XR = 2; O.TL3 = False; O.ASTEP = 48
O.GW2 = False; O.GW2N = 3; O.W2AF = 0; O.UW = 3
O.TL2 = False; O.PSTEP = 52; O.SPG = 3; O.POLW = 3; O.ASLP = 8
O.GPRE = 1
O.DL = False; O.LPRIO = 3; O.LSLP = 1; O.LDLY = 0
O.W2S = None
O.W2P = ((), (), (), ()); O.PFL2 = ""; O.UOWN = False
O.LA = 1; O.RSP = (2, 4, 6); O.PPOS = 0
O.DSL = (6, 7, 8, 10, 11, 12, 14, 15)
O.PAW = 2
for a in sys.argv[2:]: exec("O." + a)
parts.TS = O.TS
ssm.KG2 = O.KG2; ssm.KLO = O.KLO; ssm.KHI = O.KHI
parts.gflag_setup = lambda A: None

LF = LDS_SSM + 31744
L_GL, L_GD, L_SB, L_SL, L_RDY, L_HOK, L_VERD = LF, LF + 16, LF + 32, LF + 48, LF + 64, LF + 72, LF + 76
L_AOK = LF + 80
L_DUMMY = LF + 128
ssm.LDS_SFLAG = L_SB
FS = 8
F_HERE, F_UT, F_G, F_A, F_H, F_P, F_EP = [WS_FLAG + (x << FS) for x in (0, 256, 384, 512, 1536, 2560, 3584)]
assert F_EP + 256 <= (13 << 20)
WS_P = 16 << 20
WS_BYTES = (24 if O.TL3 else 20) << 20
WS_A2 = 20 << 20
STOK = 32
S_W8, S_SPIN, S_HF = 27, 85, 32

parts_ts = ts
def tsg(A, i, mode="a"):
    if O.TSC: return
    if O.TSG in mode: parts_ts(A, i)
def tss(A, i, mode="a"):
    if O.TSS in mode: parts_ts(A, i)

class Vm:
    def __init__(self, A): self.A = A; self.n = 0; self.done = 0
    def op(self, s):
        self.A(s)
        if s.startswith("buffer_") or s.startswith("global_"): self.n += 1
        return self.n
    def cnt(self, idn):
        k = min(self.n - idn, 63); self.done = max(self.done, self.n - k); return k
    def wait(self, idn, extra=""):
        if idn <= self.done:
            if extra: self.A(f"s_waitcnt {extra}")
            return
        self.A(f"s_waitcnt vmcnt({self.cnt(idn)}) {extra}")

def poll(A, vaddr, vt, tok, name, slp=None, mask=False):
    l = A.newlabel(name); d = A.newlabel(name)
    A(f"s_mov_b32 s{S_SPIN}, {O.SPIN}")
    A.label(l)
    A(f"buffer_load_dword v{vt}, v{vaddr}, s[{S_WS}:{S_WS+3}], 0 offen sc1")
    A("s_waitcnt vmcnt(0)")
    if mask:
        A(f"v_and_b32 v{vt+1}, -16, v{vt}")
        A(f"v_cmp_ne_u32 vcc, v{tok}, v{vt+1}")
    else:
        A(f"v_cmp_ne_u32 vcc, v{tok}, v{vt}")
    A(f"s_cbranch_vccz {d}")
    A(f"s_sleep {O.SLP if slp is None else slp}")
    A(f"s_sub_u32 s{S_SPIN}, s{S_SPIN}, 1")
    A(f"s_cbranch_scc0 {l}")
    A.label(d)

def lwait(A, vaddr, off, vt, val, issued=False, sleep=1):
    lab = A.newlabel("LW"); done = A.newlabel("LWD")
    if not issued: A(f"ds_read_b32 v{vt}, v{vaddr} offset:{off}")
    A("s_waitcnt lgkmcnt(0)")
    A(f"v_cmp_gt_u32 vcc, {val}, v{vt}")
    A(f"s_cbranch_vccz {done}")
    A.label(lab)
    if sleep: A(f"s_sleep {sleep}")
    A(f"ds_read_b32 v{vt}, v{vaddr} offset:{off}")
    A("s_waitcnt lgkmcnt(0)")
    A(f"v_cmp_gt_u32 vcc, {val}, v{vt}")
    A(f"s_cbranch_vccnz {lab}")
    A.label(done)

def token_get(A, va, tok):
    l = A.newlabel("RW"); d = A.newlabel("RW")
    A(f"v_mov_b32 v{va}, {L_RDY}")
    A.label(l)
    A(f"ds_read_b64 {vr(tok,2)}, v{va}")
    A("s_waitcnt lgkmcnt(0)")
    A(f"v_cmp_ne_u32 vcc, 1, v{tok+1}")
    A(f"s_cbranch_vccz {d}")
    A("s_sleep 1")
    A(f"s_branch {l}")
    A.label(d)

def flag_store(A, soff, va, vt, fl="sc1"):
    A(f"v_mov_b32 v{va}, 0")
    A("s_mov_b64 exec, 1")
    A(f"buffer_store_dword v{vt}, v{va}, s[{S_WS}:{S_WS+3}], s{soff} offen {fl}")
    A("s_mov_b64 exec, -1")

def rot_c0(A, dst, t0):
    a, b, c, d = O.ROT
    A(f"s_mov_b32 s{dst}, 0")
    if a: A(f"s_and_b32 s{t0}, s{S_J}, 3"); A(f"s_mul_i32 s{dst}, s{t0}, {a}")
    if b: A(f"s_lshr_b32 s{t0}, s{S_J}, 2"); A(f"s_mul_i32 s{t0}, s{t0}, {b}"); A(f"s_add_u32 s{dst}, s{dst}, s{t0}")
    if c: A(f"s_lshr_b32 s{t0}, s{S_XCD}, 1"); A(f"s_mul_i32 s{t0}, s{t0}, {c}"); A(f"s_add_u32 s{dst}, s{dst}, s{t0}")
    if d: A(f"s_and_b32 s{t0}, s{S_XCD}, 1"); A(f"s_mul_i32 s{t0}, s{t0}, {d}"); A(f"s_add_u32 s{dst}, s{dst}, s{t0}")

GOWN, GRD, GT, HV, AR, RW, FV, VTOK, GX = 50, 51, 52, 54, 56, 58, 59, 60, 62
ACCA, ACCB, AF, PK, HR0 = 64, 96, 128, 168, 184
OV, RX, TV = 55, 63, 49
FVB = 48
S_OO, S_PO, S_P1, S_PF = 76, 77, 78, 79
L_T = LDS_SSM
STMP = 160
S_HL, S_HR, S_C0 = 80, 81, 84

def g_flags_setup(A):
    A(f"s_lshl_b32 s{S_T0}, s{S_WAVE}, 2")
    A(f"s_add_u32 s{S_T0}, s{S_T0}, {LF}")
    A(f"v_mov_b32 v{GOWN}, s{S_T0}")
    A(f"v_and_b32 v{GRD}, 3, v1")
    A(f"v_lshlrev_b32 v{GRD}, 2, v{GRD}")
    A(f"v_add_u32 v{GRD}, {LF}, v{GRD}")

def krot(A, d, sh):
    A(f"s_lshr_b32 s{d}, s{S_J}, 2")
    if O.KROT == 1:
        A(f"s_cmp_eq_u32 s{d}, 7")
        A(f"s_cselect_b32 s{d}, 3, s{d}")
    elif O.KROT == 2:
        A(f"s_and_b32 s{d}, s{d}, 3")
        A(f"s_lshl_b32 s{d}, s{d}, 1")
    elif O.KROT == 3:
        A(f"s_and_b32 s{d}, s{d}, 1")
        A(f"s_mul_i32 s{d}, s{d}, 3")
    A(f"s_lshl_b32 s{d}, s{d}, {sh}")
def g2_setup(A):
    w = S_WAVE; T = 30
    if O.KROT: krot(A, 82, 12)
    A(f"s_and_b32 s{S_T0}, s{S_XCD}, 6")
    A(f"s_lshl_b32 s{S_T0}, s{S_T0}, 1")
    A(f"s_and_b32 s{S_T1}, s{S_J}, 3")
    A(f"s_add_u32 s{S_T0}, s{S_T0}, s{S_T1}")
    A(f"s_and_b32 s{S_T1}, s{S_XCD}, 1")
    A(f"s_lshl_b32 s{S_HF}, s{S_T0}, 1")
    A(f"s_add_u32 s{S_HF}, s{S_HF}, s{S_T1}")
    A(f"s_lshl_b32 s{S_HF}, s{S_HF}, {5+O.HFS}")
    A(f"s_add_u32 s{S_HF}, s{S_HF}, {F_H}")
    A(f"v_min_u32 v{T}, 27, v1")
    A(f"v_lshl_add_u32 v{FV}, v{T}, {O.HFS}, s{S_HF}")
    if O.FK:
        srd(A, S_W2, P_W2, D*F*2)
        A(f"s_mul_i32 s82, s{S_T1}, {(14-32) << O.HFS}")
        A(f"s_add_u32 s82, s82, s{S_HF}")
        if O.PW:
            A(f"s_lshr_b32 s83, s{w}, 1")
            A(f"s_lshl_b32 s83, s83, {5+O.HFS}")
            A(f"s_add_u32 s82, s82, s83")
            A(f"s_and_b32 s83, s{w}, 1")
            A(f"s_mul_i32 s83, s83, {7 << O.HFS}")
            A(f"s_add_u32 s82, s82, s83")
            A(f"v_min_u32 v{T}, 6, v1")
        else:
            A(f"v_and_b32 v{T}, 31, v1")
            A(f"v_min_u32 v{T}, 13, v{T}")
            A(f"v_and_or_b32 v{T}, v1, 32, v{T}")
        A(f"v_lshl_add_u32 v{FV}, v{T}, {O.HFS}, s82")
        A(f"s_mul_i32 s82, s{w}, {28*16384}")
        A(f"s_lshr_b32 s83, s{S_J}, 2")
        A(f"s_lshl_b32 s83, s83, 7")
        A(f"s_add_u32 s82, s82, s83")
        A(f"s_lshl_b32 s83, s{w}, 15")
    if O.HAB:
        A(f"s_and_b32 s{S_HR}, s{w}, 1")
        A(f"s_lshl_b32 s{S_HR}, s{S_HR}, 1")
        A(f"s_lshr_b32 s{S_HL}, s{w}, 1")
        A(f"s_add_u32 s{S_HR}, s{S_HR}, s{S_HL}")
        A(f"s_mul_i32 s{S_HR}, s{S_HR}, 7")
        A(f"v_min_u32 v{T}, 6, v1")
        A(f"v_add_u32 v{T}, s{S_HR}, v{T}")
        A(f"v_lshl_add_u32 v{FV if O.PW else FVB}, v{T}, {O.HFS}, s{S_HF}")
        A(f"v_add_u32 v{FVB}, {F_P-F_H}, v{FV if O.PW else FVB}")
    A(f"s_lshl_b32 s{S_T0}, s{S_T0}, 2")
    A(f"s_and_b32 s{S_HR}, s{w}, 1")
    A(f"s_add_u32 s{S_T0}, s{S_T0}, s{S_HR}")
    A(f"s_lshl_b32 s{S_OO}, s{S_T1}, 1")
    A(f"s_add_u32 s{S_OO}, s{S_OO}, s{S_T0}")
    A(f"s_xor_b32 s{S_HL}, s{S_OO}, {1 if O.FK else 2}")
    A(f"s_mul_i32 s{S_HL}, s{S_HL}, 112")
    A(f"s_mul_i32 s{S_HR}, s{S_OO}, 112")
    A(f"s_lshl_b32 s{S_T1}, s{S_T1}, 1")
    A(f"s_lshr_b32 s{S_T0}, s{w}, 1")
    A(f"s_add_u32 s{S_T1}, s{S_T1}, s{S_T0}")
    A(f"s_mul_i32 s{S_T1}, s{w if O.FK else S_T1}, 28")
    A(f"s_add_u32 s{S_HL}, s{S_HL}, s{S_T1}")
    A(f"s_add_u32 s{S_HR}, s{S_HR}, s{S_T1}")
    A(f"s_lshl_b32 s{S_HL}, s{S_HL}, 10")
    A(f"s_lshl_b32 s{S_HR}, s{S_HR}, 10")
    A(f"s_lshl_b32 s{S_OO}, s{S_OO}, 15")
    A(f"s_lshr_b32 s{S_T1}, s{S_J}, 2")
    A(f"s_lshl_b32 s{S_T1}, s{S_T1}, 1")
    A(f"s_add_u32 s{S_T1}, s{S_T1}, s{S_T0}")
    A(f"s_lshl_b32 s{S_T1}, s{S_T1}, 6")
    A(f"s_add_u32 s{S_OO}, s{S_OO}, s{S_T1}")
    A(f"v_lshlrev_b32 v{HV}, 4, v1")
    A(f"s_lshl_b32 s{S_T1}, s{w}, 15")
    A(f"v_add_u32 v{RW}, s{S_T1}, v{HV}")
    A(f"v_xor_b32 v{RX}, 0x10000, v{RW}")
    A(f"s_lshl_b32 s{S_T1}, s{w}, 12")
    A(f"s_add_u32 s{S_T1}, s{S_T1}, {L_T}")
    A(f"v_add_u32 v{TV}, s{S_T1}, v{HV}")
    A(f"v_lshrrev_b32 v{T+1}, 5, v1")
    A(f"v_and_b32 v{T}, 31, v1")
    A(f"v_lshlrev_b32 v{T}, 10, v{T}")
    A(f"v_lshl_add_u32 v{OV}, v{T+1}, 4, v{T}")
    A(f"v_bfe_u32 v{T+2}, v1, 2, 2")
    A(f"v_bfe_u32 v{T+3}, v1, 4, 1")
    A(f"v_bfe_u32 v{T+4}, v1, 1, 1")
    A(f"v_lshl_add_u32 v{T+3}, v{T+3}, 1, v{T+4}")
    A(f"v_bfe_u32 v{T+4}, v1, 3, 1")
    A(f"v_xor_b32 v{T+4}, s{S_T0}, v{T+4}")
    A(f"v_lshl_add_u32 v{T+3}, v{T+4}, 2, v{T+3}")
    A(f"v_lshl_add_u32 v{T+2}, v{T+1}, 2, v{T+2}")
    A(f"v_lshlrev_b32 v{T+2}, 7, v{T+2}")
    A(f"v_lshl_add_u32 v{T+2}, v{T+3}, 4, v{T+2}")
    A(f"v_and_b32 v{T+4}, 1, v1")
    A(f"v_lshl_add_u32 v{T+2}, v{T+4}, 3, v{T+2}")
    A(f"s_lshl_b32 s{S_T0}, s{S_T0}, 16")
    A(f"v_add_u32 v{AR}, s{83 if O.FK else S_T0}, v{T+2}")
    A(f"v_xor_b32 v{AR+1}, 64, v{AR}")

XR = [128 + 8 * r for r in range(7)] + [224 + 8 * r for r in range(4)] + [2 + 8 * r for r in range(3)]
def fk_x(A):
    if O.YPRIO is not None: A(f"s_setprio {O.YPRIO}")
    for r in range(14):
        for x in w2_read(r): A(x)
    A("v_lshrrev_b32 v28, 3, v1")
    A("v_and_b32 v29, 7, v1")
    A("v_bfe_u32 v27, v1, 4, 1")
    A("v_lshlrev_b32 v28, 10, v28")
    A("v_lshlrev_b32 v27, 2, v27")
    A("v_xor_b32 v27, v29, v27")
    A("v_lshl_add_u32 v26, v27, 4, v28")
    A(f"v_add_u32 v27, {8192-1024}, v26")
    for r in range(14):
        if r in (0, 11): A(f"s_waitcnt lgkmcnt({12 if r == 0 else 0})")
        A(f"s_add_u32 m0, s83, {4096+r*2048}")
        A(f"s_add_u32 s{S_T0}, s82, {(14+r)*16384}")
        A(f"buffer_load_dwordx4 v26, s[{S_W2}:{S_W2+3}], s{S_T0} offen {O.W2FL} lds")
        A(f"buffer_load_dwordx4 v27, s[{S_W2}:{S_W2+3}], s{S_T0} offen offset:1024 {O.W2FL} lds")
def w2_read(i):
    k = i % 28; dst = AF + 8 * (i % O.NA)
    if O.FK: k = i % 14; dst = XR[k]
    o = (k // 14) * 32768 + 4096 + (k % 14) * 2048
    return [f"ds_read_b64_tr_b16 {vr(dst+4*a+2*x,2)}, v{AR+a} offset:{o+x*1024}" for a in range(2) for x in range(2)]
HQ = {}
def h_load(i):
    base, k = (S_HL, i) if i < 28 else (S_HR, i - 28)
    if O.FK:
        r = i % 14; base = S_HR if (i // 14) % 2 else S_HL
        pre = [f"s_add_u32 s{S_T0}, s{base}, {(r + 14 * (i // 28)) * 1024}"] if r % 4 == 0 else []
        return pre + [f"buffer_load_dwordx4 {vr(HQ[i],4)}, v{HV}, s[{S_WS}:{S_WS+3}], s{S_T0} offen offset:{(r%4)*1024} {O.HLD}"]
    pre = [f"s_add_u32 s{S_T0}, s{base}, {k*1024}"] if k % 4 == 0 else []
    if O.KROT and k == 0:
        pre = [f"s_add_u32 s{S_T0}, s{base}, s82", f"s_add_u32 s83, s{base}, {28*1024}"]
    elif O.KROT and k % 4 == 0:
        pre = [f"s_add_u32 s{S_T0}, s{S_T0}, 4096", f"s_cmp_eq_u32 s{S_T0}, s83", f"s_cselect_b32 s{S_T0}, s{base}, s{S_T0}"]
    return pre + [f"buffer_load_dwordx4 {vr(HQ[i],4)}, v{HV}, s[{S_WS}:{S_WS+3}], s{S_T0} offen offset:{(k%4)*1024} {O.HLD}"]

def g_chunk_dma(cc):
    slot = cc % 4
    out = [f"s_add_u32 s{S_HO}, s{S_C0}, {cc}", f"s_and_b32 s{S_HO}, s{S_HO}, 7",
           f"s_lshl_b32 s{S_T1}, s{S_HO}, 7", f"s_add_u32 m0, s{S_M0X}, {slot*32768}", f"s_add_u32 s{S_T1}, s{S_T1}, s{S_XO}"]
    for i in range(4):
        out.append(f"buffer_load_dwordx4 v{G1_XD+i}, s[{S_X}:{S_X+3}], s{S_T1} offen offset:{i*1024} {O.XFL} lds")
    out += [f"s_mul_i32 s{S_T1}, s{S_HO}, {64*2*F}", f"s_add_u32 m0, s{S_M0X}, {slot*32768+16384}", f"s_add_u32 s{S_T1}, s{S_T1}, s{S_WO}"]
    for i in range(4):
        out.append(f"buffer_load_dwordx4 v{G1_WD+i}, s[{S_W1}:{S_W1+3}], s{S_T1} offen offset:{i*1024} {O.W1FL} lds")
    return out

VW2, S_W2O, S_W2M = 22, 78, 79
def gw2_setup(A):
    w = S_WAVE
    srd(A, S_W2, P_W2, D*F*2)
    A("v_lshrrev_b32 v30, 3, v1")
    A("v_and_b32 v31, 7, v1")
    A("v_bfe_u32 v32, v1, 4, 1")
    A("v_lshlrev_b32 v32, 2, v32")
    A("v_xor_b32 v31, v31, v32")
    A("v_lshlrev_b32 v30, 10, v30")
    A(f"v_lshl_add_u32 v{VW2}, v31, 4, v30")
    A(f"s_and_b32 s{S_T0}, s{S_XCD}, 1")
    A(f"s_lshl_b32 s{S_T0}, s{S_T0}, 3")
    A(f"s_and_b32 s{S_T1}, s{w}, 1")
    A(f"s_add_u32 s{S_T0}, s{S_T0}, s{S_T1}")
    A(f"s_mul_i32 s{S_W2O}, s{S_T0}, {7*16384}")
    A(f"s_mul_i32 s{S_W2M}, s{S_T1}, {7*2048}")
    A(f"s_lshr_b32 s{S_T0}, s{S_J}, 2")
    A(f"s_lshl_b32 s{S_T0}, s{S_T0}, 7")
    A(f"s_add_u32 s{S_W2O}, s{S_W2O}, s{S_T0}")
    A(f"s_lshr_b32 s{S_T0}, s{w}, 1")
    A(f"s_lshl_b32 s{S_T1}, s{S_T0}, 13")
    A(f"s_add_u32 s{S_W2O}, s{S_W2O}, s{S_T1}")
    A(f"s_lshl_b32 s{S_T1}, s{S_T0}, 10")
    A(f"s_add_u32 s{S_W2M}, s{S_W2M}, s{S_T1}")
def gw2_dma(sl):
    out = []
    for k in range(7):
        out += [f"s_add_u32 m0, s{S_W2M}, {sl*32768+4096+k*2048}", f"s_add_u32 s{S_T1}, s{S_W2O}, {(14*sl+k)*16384}",
                f"buffer_load_dwordx4 v{VW2}, s[{S_W2}:{S_W2+3}], s{S_T1} offen {O.W2FL} lds"]
    return out

def g1_main(A, vm, cid):
    vm.wait(cid[0])
    A(f"v_mov_b32 v{GT}, 1"); A(f"ds_write_b32 v{GOWN}, v{GT}")
    lwait(A, GRD, 0, GT + 1, 1, sleep=0)
    for r in g1_reads(0): A(r)
    for c in range(8):
        if O.TSC and c in O.TSC: parts_ts(A, 2 + O.TSC.index(c))
        off = 0 if c + 1 < O.LOOK else 48
        own = 4 <= c + 3 < O.LOOK
        units = [u for u in split_groups(g_chunk_dma(c + 3), 8)] if own else []
        slots = O.DSL
        for s in range(4):
            t = 4 * c + s
            mf = g1_mfmas(t)
            pre = []
            if s == 3:
                if c < 7: lwait(A, GRD, off, GT + 1, c + 2, issued=True, sleep=0)
                else: A("s_waitcnt lgkmcnt(0)")
                pre = [f"v_mov_b32 v{GT}, {c+1}", f"ds_write_b32 v{GOWN}, v{GT} offset:16"]
            elif s == O.ARR and c + 1 < O.LOOK:
                vm.wait(cid[c + 1], "lgkmcnt(0)")
                pre = [f"v_mov_b32 v{GT}, {c+2}", f"ds_write_b32 v{GOWN}, v{GT}"]
            else: A("s_waitcnt lgkmcnt(0)")
            if own and s == 1: lwait(A, GRD, 16, GX, c, issued=True, sleep=0)
            rd = g1_reads(t + 1) if t < 31 else []
            post = [f"ds_read_b32 v{GT+1}, v{GRD} offset:{off}"] if (s == 2 and c < 7) else []
            if own and s == 0: post.append(f"ds_read_b32 v{GX}, v{GRD} offset:16")
            def dm(g):
                if own:
                    for _ in range(slots.count(4 * s + g)):
                        for x in units.pop(0): vm.op(x)
                    if not units: cid[c + 3] = vm.n if c + 3 not in cid else cid[c + 3]
            A(mf[0])
            for x in rd[:3]: A(x)
            dm(0)
            A(mf[1])
            for x in rd[3:]: A(x)
            dm(1)
            A(mf[2])
            for x in pre + post: A(x)
            if c == 0 and O.LOOK >= 4 and O.L3 == "i":
                for x in split_groups(g_chunk_dma(3), 4)[s]: vm.op(x)
                cid[3] = vm.n
            dm(2)
            A(mf[3])
            dm(3)
        assert not units

_g1_reads = g1_reads
def g1_reads(t):
    out = _g1_reads(t)
    if O.HAB:
        c, s_ = divmod(t, 4); lo = ((c % 4) % 2) * 32768
        out[5] = out[5].replace(f"offset:{lo+4096}", f"offset:{lo+8192}")
    return out
def hab_setup(A):
    A(f"s_and_b32 s{S_T0}, s{S_XCD}, 1")
    A(f"s_xor_b32 s{S_T0}, s{S_T0}, 1")
    A(f"s_lshl_b32 s{S_T0}, s{S_T0}, 16")
    A(f"s_xor_b32 s{S_XO}, s{S_XO}, s{S_T0}")
def hab_setup2(A):
    A(f"s_lshr_b32 s{S_T0}, s{S_WAVE}, 1")
    A(f"s_lshl_b32 s{S_T0}, s{S_T0}, 12")
    for k in range(8): A(f"v_subrev_u32 v{G1_XR+k}, s{S_T0}, v{G1_XR+k}")

def g1_fr(lst, t, ns):
    import re
    o = G1_FR + (t % 2) * 16; n = G1_FR + (t % ns) * 16
    def f(m):
        a, b = int(m.group(1)), int(m.group(2))
        if o <= a < o + 16: return f"v[{a-o+n}:{b-o+n}]"
        return m.group(0)
    return [re.sub(r"v\[(\d+):(\d+)\]", f, x) for x in lst]

def lchk(A, vaddr, off, vt, val):
    lab = A.newlabel("LW"); done = A.newlabel("LWD")
    A(f"v_cmp_gt_u32 vcc, {val}, v{vt}")
    A(f"s_cbranch_vccz {done}")
    A.label(lab)
    A(f"ds_read_b32 v{vt}, v{vaddr} offset:{off}")
    A("s_waitcnt lgkmcnt(0)")
    A(f"v_cmp_gt_u32 vcc, {val}, v{vt}")
    A(f"s_cbranch_vccnz {lab}")
    A.label(done)

def g1_main2(A, vm, cid):
    LA = O.LA; NS = LA + 1
    lg = Lg(A); rid = {}
    vm.wait(cid[0])
    A(f"v_mov_b32 v{GT}, 1"); A(f"ds_write_b32 v{GOWN}, v{GT}")
    lwait(A, GRD, 0, GT + 1, 1, sleep=0)
    for t in range(LA):
        for r in g1_fr(g1_reads(t), t, NS): rid[t] = lg.op(r)
    sc = 4 - LA
    for c in range(8):
        if O.TSC and c in O.TSC: parts_ts(A, 2 + O.TSC.index(c))
        off = 0 if c + 1 < O.LOOK else 48
        own = 4 <= c + 3 < O.LOOK
        units = [u for u in split_groups(g_chunk_dma(c + 3), 8)] if own else []
        if O.GW2 and c >= 5 and c - 5 < O.GW2N:
            own = True; units = split_groups(gw2_dma(c - 5), 7) + [[]]
        for s in range(4):
            t = 4 * c + s
            mf = g1_fr(g1_mfmas(t), t, NS)
            need = rid[t]
            if s == sc and c < 7: need = max(need, pid)
            if own and s == 1: need = max(need, did)
            first = []; pre = []
            if s == O.ARR and c + 1 < O.LOOK:
                vm.wait(cid[c + 1])
                first += [f"ds_write_b32 v{GOWN}, v{GT}"]
                A(f"v_mov_b32 v{GT}, {c+2}")
            lg.wait(need)
            if s == sc and c < 7: lchk(A, GRD, off, GT + 1, c + 2)
            if own and s == 1: lchk(A, GRD, 16, GX, c)
            if s == 3: pre = [f"v_mov_b32 v{GT}, {c+1}", f"ds_write_b32 v{GOWN}, v{GT} offset:16"]
            rd = g1_fr(g1_reads(t + LA), t + LA, NS) if t + LA < 32 else []
            def dm(g):
                if own:
                    for _ in range(O.DSL.count(4 * s + g)):
                        for x in units.pop(0): vm.op(x)
                    if not units and c + 3 not in cid: cid[c + 3] = vm.n
            def em(x):
                if x.startswith("ds_"): return lg.op(x)
                A(x)
            sp = O.RSP
            A(mf[0])
            for x in first + pre: em(x)
            if s == sc - 1 and c < 7 and O.PPOS == 0: pid = lg.op(f"ds_read_b32 v{GT+1}, v{GRD} offset:{off}")
            if own and s == 0: did = lg.op(f"ds_read_b32 v{GX}, v{GRD} offset:16")
            for x in rd[:sp[0]]: rid[t + LA] = lg.op(x)
            dm(0)
            A(mf[1])
            for x in rd[sp[0]:sp[1]]: rid[t + LA] = lg.op(x)
            dm(1)
            A(mf[2])
            if s == sc - 1 and c < 7 and O.PPOS == 2: pid = lg.op(f"ds_read_b32 v{GT+1}, v{GRD} offset:{off}")
            for x in rd[sp[1]:sp[2]]: rid[t + LA] = lg.op(x)
            if c == 0 and O.LOOK >= 4 and O.L3 == "i":
                for x in split_groups(g_chunk_dma(3), 4)[s]: vm.op(x)
                cid[3] = vm.n
            dm(2)
            A(mf[3])
            for x in rd[sp[2]:]: rid[t + LA] = lg.op(x)
            dm(3)
        assert not units

def silu_np(A, regs, tmp):
    n = len(regs)
    for i, (s, d) in enumerate(regs):
        for e in range(2): A(f"v_mul_f32 v{tmp+2*i+e}, s{S_CL}, v{s+e}")
    for i in range(2 * n): A(f"v_exp_f32 v{tmp+i}, v{tmp+i}")
    for i in range(2 * n): A(f"v_add_f32 v{tmp+i}, 1.0, v{tmp+i}")
    for i in range(2 * n): A(f"v_rcp_f32 v{tmp+i}, v{tmp+i}")
    for i, (s, d) in enumerate(regs):
        for e in range(2): A(f"v_mul_f32 v{tmp+2*i+e}, v{tmp+2*i+e}, v{s+e}")
    for i, (s, d) in enumerate(regs):
        A(f"v_cvt_pk_bf16_f32 v{d}, v{tmp+2*i}, v{tmp+2*i+1}")

def split_groups(lst, n):
    units = []; cur = []
    for x in lst:
        cur.append(x)
        if x.startswith("buffer_"): units.append(cur); cur = []
    g = [[] for _ in range(n)]
    for i, u in enumerate(units): g[i * n // len(units)] += u
    return g

def g1_epi(A):
    w = S_WAVE
    if O.VERD:
        A(f"v_mov_b32 v{GX}, {L_RDY}")
        A(f"ds_read_b32 v{GT}, v{GX} offset:{L_VERD-L_RDY}")
    A(f"s_lshl_b32 s{S_HO}, s{S_RB}, 2")
    A(f"s_and_b32 s{S_T0}, s{w}, 2")
    A(f"s_add_u32 s{S_HO}, s{S_HO}, s{S_T0}")
    A(f"s_mul_i32 s{S_T1}, s{S_T0}, 7")
    A(f"s_mul_i32 s{S_HO}, s{S_HO}, 112")
    A(f"s_lshl_b32 s{S_T0}, s{S_CB}, 3")
    A(f"s_add_u32 s{S_HO}, s{S_HO}, s{S_T0}")
    A(f"s_and_b32 s{S_T0}, s{w}, 1")
    A(f"s_add_u32 s{S_T1}, s{S_T1}, s{S_T0}")
    A(f"s_lshl_b32 s{S_T0}, s{S_T0}, 2")
    A(f"s_add_u32 s{S_HO}, s{S_HO}, s{S_T0}")
    A(f"s_lshr_b32 s{S_T0}, s{S_J}, 2")
    A(f"s_lshl_b32 s{S_T0}, s{S_T0}, 1")
    A(f"s_add_u32 s{S_T1}, s{S_T1}, s{S_T0}")
    A(f"s_lshl_b32 s{S_T1}, s{S_T1}, {O.HFS}")
    A(f"s_add_u32 s{S_HF}, s{S_HF}, s{S_T1}")
    A(f"s_lshl_b32 s{S_HO}, s{S_HO}, 10")
    A(f"s_add_u32 s{S_XO}, s{S_HO}, {112*1024}")
    if O.HAB:
        A(f"s_lshr_b32 s{S_T0}, s{w}, 1")
        A(f"s_mul_i32 s{S_T0}, s{S_T0}, {112*1024}")
        A(f"s_sub_u32 s{S_XO}, s{S_HO}, s{S_T0}")
        A(f"s_and_b32 s{S_T0}, s{S_XCD}, 1")
        A(f"s_mul_i32 s{S_T0}, s{S_T0}, {224*1024}")
        A(f"s_add_u32 s{S_HO}, s{S_XO}, {224*1024}")
        A(f"s_sub_u32 s{S_HO}, s{S_HO}, s{S_T0}")
        A(f"s_add_u32 s{S_XO}, s{S_XO}, s{S_T0}")
        token_get(A, GX, VTOK)
    st = []
    p = 0
    for a, b in ([(0,0),(1,0),(0,1),(1,1)] if O.HAB else [(0,0),(0,1),(1,0),(1,1)]):
        if True:
            acc = G1_ACC + (2*a+b)*16
            for fh in range(2):
                dst = G1_FR + p * 4
                (silu_np if O.NOPK else silu_pairs)(A, [(acc + 8*fh + 2*i, dst + i) for i in range(4)], STMP)
                so = S_HO if b == 0 else S_XO
                st.append(f"buffer_store_dwordx4 {vr(dst,4)}, v{HV}, s[{S_WS}:{S_WS+3}], s{so} offen offset:{(2*a+fh)*1024}")
                if O.HAB and p == O.FA:
                    A(f"s_waitcnt vmcnt({p-4})")
                    flag_store(A, S_HF, GT, VTOK, O.HST)
                    tsg(A, 3, "h")
                    A(f"s_add_u32 s{S_HF}, s{S_HF}, {F_P-F_H}")
                A(st[-1] + " " + O.HST)
                p += 1
    tsg(A, 5, "e")
    if O.GW2:
        token_get(A, GX, VTOK)
        lwait(A, GRD, 16, GT, 8, sleep=0)
        n = 0
        if O.W2AF == 0:
            for sl in range(O.GW2N, 4):
                for x in gw2_dma(sl): A(x)
                n += 7
        A(f"s_waitcnt vmcnt({n})")
        flag_store(A, S_HF, GT, VTOK, O.HST)
        if O.W2AF == 1:
            for sl in range(O.GW2N, 4):
                for x in gw2_dma(sl): A(x)
        return
    if not O.VERD:
        if not O.HAB: token_get(A, GX, VTOK)
        if O.FK and O.YP == 0:
            lwait(A, GRD, 48, GT, 12)
            fk_x(A)
            A("s_waitcnt vmcnt(28)")
            flag_store(A, S_HF, GT, VTOK, O.HST)
            A("s_branch K_G3")
            return
        A("s_waitcnt vmcnt(0)")
        flag_store(A, S_HF, GT, VTOK, O.HST)
        return
    lwait(A, GX, L_VERD - L_RDY, GT, 1, issued=True)
    A(f"ds_read_b64 {vr(VTOK,2)}, v{GX}")
    A(f"v_cmp_eq_u32 vcc, {1 if not O.SLOW else 7}, v{GT}")
    A("s_waitcnt vmcnt(0) lgkmcnt(0)")
    A("s_cbranch_vccz G_SLOW")
    flag_store(A, S_HF, GT, VTOK, O.HST)
    A("s_branch G_FD")
    A.label("G_SLOW")
    for x in st: A(x + " sc1")
    A("s_waitcnt vmcnt(0)")
    flag_store(A, S_HF, GT, VTOK)
    A.label("G_FD")

def g2_main(A):
    vm = Vm(A); lg = Lg(A)
    hid = {}; wid = {}
    assert HR0 + 4 * O.DEPTH <= 256 and AF + 8 * O.NA <= PK
    sched = {}; free = [HR0 + 4 * k for k in range(O.DEPTH)]; nx = 0
    for stp in range(0, 56):
        if stp >= 1: free.append(HQ[stp - 1])
        if O.XQ and stp == O.XQ[0]: free += [2 + 4 * k for k in range(8)]
        if O.XQ and stp == O.XQ[1]: free += [ACCA + 4 * k for k in range(8)]
        sched[stp] = []
        while nx < 56 and free and len(sched[stp]) < (O.DEPTH if stp == 0 else O.XR):
            HQ[nx] = free.pop(0); sched[stp].append(nx); nx += 1; lasts = stp
    for i in sched[0]:
        for x in h_load(i): vm.op(x)
        hid[i] = vm.n
    for i in range(O.PFD): wid[i] = 0
    if O.FK:
        assert HR0 + 4 * O.DEPTH <= 224
        for i in range(56): wid[i] = 0
    send = []
    for t in range(2):
        for hf in range(2):
            pk = ACCA+16*t+8*hf if O.FK else PK+8*t+4*hf
            send += [f"v_cvt_pk_bf16_f32 v{pk+k}, v{ACCA+16*t+8*hf+2*k}, v{ACCA+16*t+8*hf+2*k+1}" for k in range(4)]
            send.append(f"ds_write_b128 v{RW}, {vr(pk,4)} offset:{2048*t+1024*hf}")
    MD = 1 if O.MID else 0
    if O.F32: send = [f"ds_write_b128 v{RW}, {vr(ACCA+4*q,4)} offset:{1024*q}" for q in (4, 5, 6, 7, 0, 1, 2, 3)]
    XO = 8192 if O.F32 else 0
    send += [f"v_mov_b32 v{GT+1}, {9+MD}", f"ds_write_b32 v{GOWN}, v{GT+1} offset:16"]
    if O.TS and O.TSG == "a" and not O.TSC: send.append(f"s_memtime s[{S_TS+10}:{S_TS+11}]")
    st = O.ST
    PR = 224
    pld = [f"buffer_load_dwordx4 {vr(PR+4*q,4)}, v{HV}, s[{S_WS}:{S_WS+3}], s{S_PO} offen offset:{1024*q} sc1" for q in range(4)]
    AL, GL_, VA0, SA0, SG0 = 240, 36, 38, 64, 68
    ald = []
    if O.TL3:
        A(f"s_lshr_b32 s{SG0}, s{S_OO}, 15")
        A(f"s_lshl_b32 s{SG0}, s{SG0}, 8")
        A(f"s_bfe_u32 s{SA0}, s{S_OO}, 0x40006")
        A(f"s_lshl_b32 s{SA0}, s{SA0}, 18")
        A(f"s_add_u32 s{SA0}, s{SA0}, s{SG0}")
        A(f"s_add_u32 s{SA0}, s{SA0}, {WS_A2}")
        A(f"s_add_u32 s{SG0}, s{SG0}, {WS_G}")
        for q in range(1, 4): A(f"s_add_u32 s{SA0+q}, s{SA0}, {q*65536}")
        A(f"v_and_b32 v{VA0+2}, 31, v1")
        A(f"v_lshlrev_b32 v{VA0+2}, 3, v{VA0+2}")
        A(f"v_lshrrev_b32 v{VA0}, 5, v1")
        A(f"v_lshl_add_u32 v{VA0}, v{VA0}, 15, v{VA0+2}")
        A(f"v_add_u32 v{VA0+1}, 16384, v{VA0}")
        ald = [f"buffer_load_dwordx2 {vr(GL_,2)}, v{VA0+2}, s[{S_WS}:{S_WS+3}], s{SG0} offen sc1"]
        ald += [f"buffer_load_dwordx2 {vr(AL+4*q+2*e,2)}, v{VA0+e}, s[{S_WS}:{S_WS+3}], s{SA0+q} offen sc1" for q in range(4) for e in range(2)]
    if O.TL2 or O.TL3:
        assert HR0 + 4 * O.DEPTH <= PR and O.PSTEP > lasts
        A(f"s_xor_b32 s{S_PO}, s2, 1")
        A(f"s_lshl_b32 s{S_PO}, s{S_PO}, 2")
        A(f"s_add_u32 s{S_PO}, s{S_PO}, s{S_WAVE}")
        A(f"s_lshl_b32 s{S_PO}, s{S_PO}, 12")
        A(f"s_add_u32 s{S_PO}, s{S_PO}, {WS_P}")
    for i in range(56):
        if O.TS and O.TSG == "s" and i in st: parts_ts(A, 2 + st.index(i))
        k = min(lg.n - wid[i], 15)
        need_l = wid[i] > lg.done
        if need_l: lg.done = lg.n - k
        vm.wait(hid[i], f"lgkmcnt({k})" if need_l else "")
        if O.HAB and 28 in sched[i]:
            vm.wait(bid)
            A(f"v_cmp_ne_u32 vcc, v{VTOK}, v{GT}")
            A("s_cbranch_vccz G_BD")
            poll(A, FVB, GT, VTOK, "PB", slp=O.HSLP)
            A.label("G_BD")
        fr = AF + 8 * (i % O.NA); hr = HQ[i]
        acc0 = ACCA if i < 28 else ACCB
        if O.FK: fr = XR[i % 14]; acc0 = ACCB if (i // 14) % 2 else ACCA
        g = [[], []]
        rdn = (28 <= i + O.PFD < 42) if O.FK else (i + O.PFD < 56)
        SB = 43 if O.FK else 29
        if rdn:
            rd = w2_read(i + O.PFD); g[0] += rd[:2]; g[1] += rd[2:]
        own = {}
        for q, nl in enumerate(sched[i] if i else []):
            hl = h_load(nl); own[hl[-1]] = nl
            g[min(q, 1)] += hl
        if i >= SB:
            for gi in range(2):
                for _ in range(O.SPG):
                    if send and not (O.XQ and O.XF and send[0].startswith("ds_write_b32") and (i, gi) < (lasts, 1)): g[gi].append(send.pop(0))
        if O.MID and i == O.MID:
            g[0].append(f"v_mov_b32 v{GT+1}, 9"); g[1].append(f"ds_write_b32 v{GOWN}, v{GT+1} offset:16")
        if (O.TL2 or O.TL3) and i == O.PSTEP:
            g[1] += pld
        if O.TL3 and O.ASTEP <= i:
            q = i - O.ASTEP
            if O.APS == 3: g[0] += ald[3*q:3*q+2]; g[1] += ald[3*q+2:3*q+3]
            else: g[1] += ald[q:q+1]
        for m, t in enumerate((1, 0)):
            acc = acc0 + 16 * t
            c = "0" if (i in (0, 14) if O.FK else i % 28 == 0) else vr(acc, 16)
            A(f"v_mfma_f32_32x32x16_bf16 {vr(acc,16)}, {vr(fr+4*t,4)}, {vr(hr,4)}, {c}" if "m" not in O.X2 else "s_nop 0")
            if i == SB and m == 0: A("s_nop 1")
            for x in g[m]:
                if x.startswith("ds_"): lg.op(x)
                else:
                    vm.op(x)
                    if x in own: hid[own[x]] = vm.n
        if O.HAB and i == O.BS: bid = vm.op(f"buffer_load_dword v{GT}, v{FVB}, s[{S_WS}:{S_WS+3}], 0 offen sc1")
        if rdn: wid[i + O.PFD] = lg.n
    T, R, GM = 2, 18, 34
    if not O.F32: A(f"ds_read_b32 v{GT+1}, v{GRD} offset:32")
    A(f"v_mov_b32 v{GT}, {10+MD}")
    A(f"v_xor_b32 v{GX}, 8, v{GOWN}")
    A(f"s_lshl_b32 s{S_T0}, s{S_WAVE}, 8")
    A(f"s_add_u32 s{S_T0}, s{S_T0}, {L_T+16384}")
    A(f"v_lshl_add_u32 v{GM+1}, v1, 2, s{S_T0}")
    if O.F32: A("s_nop 6")
    else: lwait(A, GRD, 32, GT + 1, 50, issued=True)
    A("s_nop 1")
    for q in range(4):
        A(f"ds_write_b128 v{RW}, {vr(ACCB+16+4*q,4)} offset:{XO+q*1024}")
    A(f"ds_write_b32 v{GOWN}, v{GT} offset:16")
    if O.TL3:
        if O.PSTEP >= 56:
            for x in pld: A(x)
        tsg(A, 2, "f")
        lwait(A, GX, 16, GT + 1, 10, sleep=0)
        for q in range(4):
            A(f"ds_read_b128 {vr(R+4*q,4)}, v{RX} offset:{q*1024}")
        A(f"s_mov_b32 s{S_SPIN}, {O.SPIN}")
        def chk(name, tg, lds_, first):
            A(f"s_waitcnt vmcnt({first})")
            A.label(name + "L")
            acc = None
            tg = list(tg)
            if len(tg) % 2: A(f"v_xor_b32 v{GM}, v{VTOK}, v{tg.pop()}"); acc = GM
            for k in range(0, len(tg), 2):
                A(f"v_xor_b32 v{44+(k&2)}, v{VTOK}, v{tg[k]}")
                A(f"v_xor_b32 v{45+(k&2)}, v{VTOK}, v{tg[k+1]}")
                if acc: A(f"v_or3_b32 v{GM}, v{GM}, v{44+(k&2)}, v{45+(k&2)}")
                else: A(f"v_or_b32 v{GM}, v{44+(k&2)}, v{45+(k&2)}"); acc = GM
            A(f"v_cmp_ne_u32 vcc, 0, v{GM}")
            A(f"s_cbranch_vccz {name}D")
            for x in lds_: A(x)
            A(f"s_sub_u32 s{S_SPIN}, s{S_SPIN}, 1")
            A("s_waitcnt vmcnt(0)")
            A(f"s_cbranch_scc0 {name}L")
            A.label(name + "D")
        assert O.PSTEP >= O.ASTEP + 9 // O.APS
        chk("G_A", [AL + 1 + 2 * k for k in range(8)] + [GL_ + 1], ald, 4)
        for k in range(8):
            A(f"v_and_b32 v{AL+2*k+1}, 0xffff0000, v{AL+2*k}")
            A(f"v_lshlrev_b32 v{AL+2*k}, 16, v{AL+2*k}")
        for k in range(8):
            A(f"v_pk_mul_f32 {vr(T+2*k,2)}, {vr(AL+2*k,2)}, {vr(GL_,2)} op_sel:[0,0] op_sel_hi:[1,0]")
        A(f"v_sub_f32 v{GL_}, 1.0, v{GL_}")
        A(f"v_cvt_pk_bf16_f32 v{GL_}, v{GL_}, v{GL_}")
        A(f"v_lshlrev_b32 v{GL_}, 16, v{GL_}")
        A("s_waitcnt lgkmcnt(0)")
        for k in range(8):
            A(f"v_pk_add_f32 {vr(ACCB+2*k,2)}, {vr(ACCB+2*k,2)}, {vr(R+2*k,2)}")
        for k in range(8):
            A(f"v_pk_fma_f32 {vr(T+2*k,2)}, {vr(ACCB+2*k,2)}, {vr(GL_,2)}, {vr(T+2*k,2)} op_sel:[0,0,0] op_sel_hi:[1,0,1]")
        tsg(A, 3, "f")
        chk("G_P", [PR + 1 + 2 * k for k in range(8)], pld, 0)
        tsg(A, 4, "f")
        for k in range(8):
            A(f"v_and_b32 v{PR+2*k+1}, 0xffff0000, v{PR+2*k}")
            A(f"v_lshlrev_b32 v{PR+2*k}, 16, v{PR+2*k}")
        for k in range(8):
            A(f"v_pk_fma_f32 {vr(T+2*k,2)}, {vr(PR+2*k,2)}, {vr(GL_,2)}, {vr(T+2*k,2)} op_sel:[0,0,0] op_sel_hi:[1,0,1]")
        g2_out(A, T)
        tsg(A, 5, "f")
        return
    if O.TL2:
        if O.PSTEP >= 56:
            for x in pld: A(x)
        tsg(A, 2, "f")
        lwait(A, GX, 16, GT + 1, 10, sleep=0)
        for q in range(4):
            A(f"ds_read_b128 {vr(R+4*q,4)}, v{RX} offset:{q*1024}")
        A(f"ds_read_b32 v{GT+1}, v{GOWN} offset:32")
        for q in range(4):
            A(f"s_waitcnt lgkmcnt({4-q})")
            for k in (2*q, 2*q+1):
                A(f"v_pk_add_f32 {vr(ACCB+2*k,2)}, {vr(ACCB+2*k,2)}, {vr(R+2*k,2)}")
        lwait(A, GOWN, 32, GT + 1, 100, issued=True)
        tsg(A, 3, "f")
        A(f"ds_read_b32 v{GM}, v{GM+1}")
        for q in range(4):
            A(f"ds_read_b128 {vr(T+4*q,4)}, v{TV} offset:{q*1024}")
        A(f"s_mov_b32 s{S_SPIN}, {O.SPIN}")
        A.label("G_PL")
        A("s_waitcnt vmcnt(0)")
        for k in range(4):
            A(f"v_xor_b32 v{R+k}, v{VTOK}, v{PR+1+4*k}")
            A(f"v_xor_b32 v{R+4+k}, v{VTOK}, v{PR+3+4*k}")
        A(f"v_or3_b32 v{R}, v{R}, v{R+1}, v{R+2}")
        A(f"v_or3_b32 v{R+3}, v{R+3}, v{R+4}, v{R+5}")
        A(f"v_or3_b32 v{R}, v{R}, v{R+6}, v{R+7}")
        A(f"v_or_b32 v{R}, v{R}, v{R+3}")
        A(f"v_cmp_ne_u32 vcc, 0, v{R}")
        A("s_cbranch_vccz G_PD")
        for x in pld: A(x)
        A(f"s_sub_u32 s{S_SPIN}, s{S_SPIN}, 1")
        A("s_cbranch_scc0 G_PL")
        A("s_waitcnt vmcnt(0)")
        A.label("G_PD")
        tsg(A, 4, "f")
        for k in range(8):
            A(f"v_and_b32 v{PR+2*k+1}, 0xffff0000, v{PR+2*k}")
            A(f"v_lshlrev_b32 v{PR+2*k}, 16, v{PR+2*k}")
        for k in range(8):
            A(f"v_pk_add_f32 {vr(ACCB+2*k,2)}, {vr(ACCB+2*k,2)}, {vr(PR+2*k,2)}")
        A("s_waitcnt lgkmcnt(0)")
        for k in range(8):
            A(f"v_pk_fma_f32 {vr(T+2*k,2)}, {vr(ACCB+2*k,2)}, {vr(GM,2)}, {vr(T+2*k,2)} op_sel:[0,0,0] op_sel_hi:[1,0,1]")
        g2_out(A, T)
        tsg(A, 5, "f")
        return
    if O.TR2:
        lwait(A, GX, 16, GT + 1, 10 + MD, sleep=0)
        for q in range(4):
            A(f"ds_read_b128 {vr(R+4*q,4)}, v{RX} offset:{XO+q*1024}")
        A(f"ds_read_b32 v{GT+1}, v{GOWN} offset:32")
        for q in range(4):
            A(f"s_waitcnt lgkmcnt({4-q})")
            for k in (2*q, 2*q+1):
                A(f"v_pk_add_f32 {vr(ACCB+2*k,2)}, {vr(ACCB+2*k,2)}, {vr(R+2*k,2)}")
        lwait(A, GOWN, 32, GT + 1, 100, issued=True, sleep=0)
        A(f"ds_read_b32 v{GM}, v{GM+1}")
        for q in range(4):
            A(f"ds_read_b128 {vr(T+4*q,4)}, v{TV} offset:{q*1024}")
        for q in range(4):
            A(f"s_waitcnt lgkmcnt({3-q})")
            for k in (2*q, 2*q+1):
                A(f"v_pk_fma_f32 {vr(T+2*k,2)}, {vr(ACCB+2*k,2)}, {vr(GM,2)}, {vr(T+2*k,2)} op_sel:[0,0,0] op_sel_hi:[1,0,1]")
        g2_out(A, T)
        return
    lwait(A, GOWN, 32, GT + 1, 100)
    A(f"ds_read_b32 v{GM}, v{GM+1}")
    for q in range(4):
        A(f"ds_read_b128 {vr(T+4*q,4)}, v{TV} offset:{q*1024}")
    lwait(A, GX, 16, GT + 1, 10 + MD, sleep=0)
    for q in range(4):
        A(f"ds_read_b128 {vr(R+4*q,4)}, v{RX} offset:{q*1024}")
    for k in range(8):
        A(f"v_pk_fma_f32 {vr(T+2*k,2)}, {vr(ACCB+2*k,2)}, {vr(GM,2)}, {vr(T+2*k,2)} op_sel:[0,0,0] op_sel_hi:[1,0,1]")
    for q in range(4):
        A(f"s_waitcnt lgkmcnt({3-q})")
        for k in (2*q, 2*q+1):
            A(f"v_pk_fma_f32 {vr(T+2*k,2)}, {vr(R+2*k,2)}, {vr(GM,2)}, {vr(T+2*k,2)} op_sel:[0,0,0] op_sel_hi:[1,0,1]")
    g2_out(A, T)
def g2_out(A, T):
    for k in range(8):
        A(f"v_cvt_pk_bf16_f32 v{PK+k}, v{T+2*k}, v{T+2*k+1}")
    A("s_nop 1")
    for h in range(2):
        A(f"v_permlane32_swap_b32 v{PK+4*h}, v{PK+4*h+2}")
        A(f"v_permlane32_swap_b32 v{PK+4*h+1}, v{PK+4*h+3}")
    A("s_nop 1")
    for h in range(2):
        A(f"buffer_store_dwordx4 {vr(PK+4*h,4)}, v{OV}, s[{S_OUT}:{S_OUT+3}], s{S_OO} offen offset:{32*h}")

def idle_tr_issue(A):
    A("v_lshrrev_b32 v8, 3, v1")
    A("v_and_b32 v9, 7, v1")
    A("v_lshlrev_b32 v10, 10, v8")
    A("v_lshl_add_u32 v10, v9, 4, v10")
    A(f"s_sub_u32 s64, s{S_J}, 28")
    A(f"s_lshl_b32 s64, s64, 2")
    A(f"s_add_u32 s64, s64, s{S_WAVE}")
    if O.UOWN:
        A(f"s_and_b32 s33, s64, 1")
        A(f"s_lshl_b32 s{S_T1}, s{S_XCD}, 1")
        A(f"s_add_u32 s33, s33, s{S_T1}")
        A(f"s_lshr_b32 s34, s64, 1")
    else:
        A(f"s_mov_b32 s33, s64")
        A(f"s_mov_b32 s34, s{S_XCD}")
    A(f"s_lshl_b32 s65, s33, 17")
    A(f"s_lshl_b32 s{S_T1}, s34, 7")
    A(f"s_add_u32 s65, s65, s{S_T1}")
    A(f"s_lshl_b32 s66, s{S_WAVE}, 15")
def idle_tr_dma(A):
    for i in range(16):
        A(f"s_add_u32 m0, s66, {i*1024}")
        A(f"s_add_u32 s{S_T1}, s65, {i*8192}")
        A(f"buffer_load_dwordx4 v10, s[{S_X}:{S_X+3}], s{S_T1} offen {O.UFL} lds")
def w2_touch(A, qs, dst):
    for q in qs:
        if O.FK:
            A(f"s_add_u32 s{S_T1}, s{S_XCD}, {q}")
            A(f"s_and_b32 s{S_T1}, s{S_T1}, 3")
            A(f"s_mul_i32 s{S_T1}, s{S_T1}, {2*229376}")
            if q < 4: A(f"s_add_u32 s{S_T1}, s{S_T1}, 229376")
            for i in range(2):
                A(f"buffer_load_dword v{dst}, v{24+i}, s[{S_W2}:{S_W2+3}], s{S_T1} offen {O.PFL2}")
            continue
        A(f"s_lshr_b32 s{S_T1}, s{S_XCD}, 1")
        A(f"s_add_u32 s{S_T1}, s{S_T1}, {q}")
        A(f"s_and_b32 s{S_T1}, s{S_T1}, 3")
        A(f"s_and_b32 s{S_T0}, s{S_XCD}, 1")
        A(f"s_lshl_b32 s{S_T0}, s{S_T0}, 2")
        A(f"s_add_u32 s{S_T1}, s{S_T1}, s{S_T0}")
        A(f"s_mul_i32 s{S_T1}, s{S_T1}, 229376")
        for i in range(2):
            A(f"buffer_load_dword v{dst}, v{24+i}, s[{S_W2}:{S_W2+3}], s{S_T1} offen {O.PFL2}")
def w2_touch_setup(A):
    A("s_mul_i32 s67, s64, 112")
    A("v_add_u32 v24, s67, v1")
    A("v_min_u32 v25, 47, v1")
    A("v_add3_u32 v25, v25, s67, 64")
    A("v_lshlrev_b32 v24, 7, v24")
    A("v_lshlrev_b32 v25, 7, v25")
def idle_tr_finish(A, extra=0):
    R = 128
    A("v_lshrrev_b32 v11, 4, v1")
    A("v_bfe_u32 v12, v1, 2, 2")
    A("v_lshl_add_u32 v12, v11, 3, v12")
    A("v_lshlrev_b32 v12, 7, v12")
    A("v_and_b32 v13, 3, v1")
    A("v_lshl_add_u32 v12, v13, 3, v12")
    A(f"v_add_u32 v12, s66, v12")
    A("v_bfe_u32 v13, v1, 1, 3")
    A("v_lshlrev_b32 v13, 13, v13")
    A("v_and_b32 v14, 1, v1")
    A("v_lshl_add_u32 v13, v14, 6, v13")
    A("v_lshl_add_u32 v16, v11, 4, v13")
    A(f"s_lshl_b32 s67, s34, 18")
    A(f"s_lshl_b32 s{S_T1}, s33, 9")
    A(f"s_add_u32 s67, s67, s{S_T1}")
    A(f"s_add_u32 s67, s67, {WS_UT}")
    for p in range(4):
        Rk = R + 16 * p
        A(f"s_waitcnt vmcnt({12+extra})")
        for a in range(4):
            for x in range(2):
                A(f"ds_read_b64_tr_b16 {vr(Rk+4*a+2*x,2)}, v12 offset:{p*4096+x*512+a*32}")
        for a in range(4):
            A(f"s_waitcnt lgkmcnt({6-2*a})")
            A(f"s_add_u32 s{S_T1}, s67, {a*65536}")
            A(f"buffer_store_dwordx4 {vr(Rk+4*a,4)}, v16, s[{S_WS}:{S_WS+3}], s{S_T1} offen offset:{p*128} sc1")
def ut2(A, part=None):
    R = 128
    if part == 1:
        for i in range(8):
            A(f"s_waitcnt vmcnt({7-i})")
            A(f"ds_write_b128 v16, {vr(R+4*i,4)} offset:{i*512}")
        return
    A(f"s_lshl_b32 s{Q_T0}, s{Q_PAIR}, 13")
    A(f"s_add_u32 s{Q_T0}, s{Q_T0}, {WS_UT}")
    A(f"s_add_u32 s{Q_T1}, s{Q_T0}, 4096")
    A("v_lshlrev_b32 v16, 4, v1")
    for i in range(8):
        A(f"buffer_load_dwordx4 {vr(R+4*i,4)}, v16, s[{S_WS}:{S_WS+3}], s{Q_T0+i//4} offen offset:{(i%4)*1024} sc1")
    A("v_bfe_u32 v16, v1, 2, 1")
    A(f"v_mul_u32_u24 v16, {U_STRIDE}, v16")
    A("v_lshrrev_b32 v17, 3, v1")
    A("v_lshl_add_u32 v16, v17, 6, v16")
    A("v_and_b32 v17, 3, v1")
    A("v_lshl_add_u32 v16, v17, 4, v16")
    A(f"v_add_u32 v16, {LDS_U+64}, v16")
    if part == 0: return
    for i in range(8):
        A(f"s_waitcnt vmcnt({7-i})")
        A(f"ds_write_b128 v16, {vr(R+4*i,4)} offset:{i*512}")
def idle_gate_issue(A):
    R = 64
    A(f"global_load_dwordx4 {vr(44,4)}, v{HV}, s[{P_GW}:{P_GW+1}]")
    A(f"s_lshl_b32 s68, s{S_XCD}, 4")
    A(f"s_add_u32 s68, s68, s64")
    A(f"s_lshl_b32 s65, s68, 14")
    for i in range(16):
        if i % 4 == 0: A(f"s_add_u32 s{S_T1}, s65, {i*1024}")
        A(f"buffer_load_dwordx4 {vr(R+4*i,4)}, v{HV}, s[{S_X}:{S_X+3}], s{S_T1} offen offset:{(i%4)*1024}")
def idle_gate_finish(A, extra=0):
    R = 64; S = 2
    A(f"s_waitcnt vmcnt({extra})")
    for k in range(4):
        for i in range(16):
            c = "0" if k == 0 else f"v{S+i}"
            A(f"v_dot2_f32_bf16 v{S+i}, v{R+4*i+k}, v{44+k}, {c}")
    for sh in ("row_shr:1", "row_shr:2", "row_shr:4", "row_shr:8"):
        for i in range(16):
            A(f"v_add_f32_dpp v{S+i}, v{S+i}, v{S+i} {sh} row_mask:0xf bank_mask:0xf bound_ctrl:1")
    for sh in ("row_bcast:15 row_mask:0xa", "row_bcast:31 row_mask:0xc"):
        for i in range(16):
            A(f"v_add_f32_dpp v{S+i}, v{S+i}, v{S+i} {sh} bank_mask:0xf")
    A("v_mov_b32 v20, 0")
    for h in range(2):
        for i in range(8): A(f"v_readlane_b32 s{38+i}, v{S+8*h+i}, 63")
        A("s_nop 3")
        for i in range(8): A(f"v_writelane_b32 v20, s{38+i}, {8*h+i}")
    A("v_cvt_pk_bf16_f32 v20, v20, v20")
    A("v_lshlrev_b32 v20, 16, v20")
    A("v_mul_f32 v20, 0xbfb8aa3b, v20")
    A("v_exp_f32 v20, v20")
    A("s_nop 0")
    A("v_add_f32 v20, 1.0, v20")
    A("v_rcp_f32 v20, v20")
    A("s_nop 0")
    A("v_cvt_pk_bf16_f32 v22, v20, v20")
    A("v_lshlrev_b32 v22, 16, v22")
    if O.TL3: A(f"v_mov_b32 v23, v{VTOK}")
    else:
        A("v_sub_f32 v23, 1.0, v22")
        A("v_cvt_pk_bf16_f32 v23, v23, v23")
        A("v_lshlrev_b32 v23, 16, v23")
    A("v_lshlrev_b32 v21, 3, v1")
    A(f"s_lshl_b32 s65, s68, 7")
    A(f"s_add_u32 s65, s65, {WS_G}")
    A("s_mov_b64 exec, 0xffff")
    A(f"buffer_store_dwordx2 v[22:23], v21, s[{S_WS}:{S_WS+3}], s65 offen sc1")
    A("s_mov_b64 exec, -1")

LX, LW, L2D, LSA, LGD, LV = 16, 56, 60, 62, 63, 20
K_XO, K_WO, K_M0, K_C0, K_W2, K_M2, K_T0, K_T1 = 76, 77, 78, 79, 80, 81, 82, 83
def loader_setup(A):
    lw = Q_NH
    A(f"s_and_b32 s{K_XO}, s{S_J}, 3")
    A(f"s_and_b32 s{K_T0}, s{S_XCD}, 6")
    A(f"s_lshl_b32 s{K_T0}, s{K_T0}, 1")
    A(f"s_add_u32 s{K_XO}, s{K_XO}, s{K_T0}")
    A(f"s_lshl_b32 s{K_XO}, s{K_XO}, 1")
    A(f"s_add_u32 s{K_XO}, s{K_XO}, s{lw}")
    A(f"s_and_b32 s{K_T0}, s{S_XCD}, 1")
    if O.HAB:
        A(f"s_xor_b32 s{K_XO}, s{K_XO}, s{K_T0}")
        A(f"s_xor_b32 s{K_XO}, s{K_XO}, 1")
    A(f"s_lshl_b32 s{K_XO}, s{K_XO}, 16")
    A(f"s_mul_i32 s{K_WO}, s{K_T0}, 7")
    A(f"s_lshr_b32 s{K_T1}, s{S_J}, 2")
    A(f"s_add_u32 s{K_WO}, s{K_WO}, s{K_T1}")
    A(f"s_lshl_b32 s{K_WO}, s{K_WO}, 8")
    A(f"s_lshl_b32 s{K_W2}, s{K_T1}, 7")
    A(f"s_mul_i32 s{K_T1}, s{lw}, {32*2*F}")
    A(f"s_add_u32 s{K_WO}, s{K_WO}, s{K_T1}")
    A(f"s_lshl_b32 s{K_M0}, s{lw}, 13")
    A(f"s_mul_i32 s{K_T0}, s{K_T0}, {0 if O.FK else 56*16384}")
    A(f"s_add_u32 s{K_W2}, s{K_W2}, s{K_T0}")
    if O.KROT:
        A(f"s_add_u32 s84, s{K_W2}, {28*16384}")
        krot(A, K_T0, 16)
        A(f"s_add_u32 s{K_W2}, s{K_W2}, s{K_T0}")
    A(f"s_mul_i32 s{K_T0}, s{lw}, {7*16384}")
    A(f"s_add_u32 s{K_W2}, s{K_W2}, s{K_T0}")
    A(f"s_mul_i32 s{K_M2}, s{lw}, {7*2048}")
    rot_c0(A, K_C0, K_T0)
    A("v_lshrrev_b32 v34, 3, v1")
    A("v_and_b32 v35, 7, v1")
    A("v_lshrrev_b32 v36, 4, v1")
    A("v_xor_b32 v37, v35, v36")
    A("v_xor_b32 v38, 4, v37")
    A("v_lshlrev_b32 v34, 10, v34")
    A(f"v_lshl_add_u32 v{LX}, v37, 4, v34")
    A(f"v_lshl_add_u32 v{LX+1}, v38, 4, v34")
    A(f"v_add_u32 v{LX+1}, {8192-1024}, v{LX+1}")
    A(f"v_add_u32 v{LX+2}, {2*(8192-1024)}, v{LX}")
    A(f"v_add_u32 v{LX+3}, {2*(8192-1024)}, v{LX+1}")
    A("v_and_b32 v37, 1, v36")
    A("v_lshlrev_b32 v37, 2, v37")
    A("v_xor_b32 v37, v35, v37")
    A(f"v_lshl_add_u32 v{L2D}, v37, 4, v34")
    A(f"v_add_u32 v{L2D+1}, {8192-1024}, v{L2D}")
    A("v_and_b32 v35, 15, v1")
    A("v_lshlrev_b32 v37, 2, v36")
    A("v_xor_b32 v35, v35, v37")
    A(f"v_mul_u32_u24 v37, {2*F}, v36")
    A(f"v_lshl_add_u32 v{LW}, v35, 4, v37")
    for i in range(1, 4):
        A(f"v_add_u32 v{LW+i}, {i*(4*2*F-1024)}, v{LW}")
    A(f"s_lshl_b32 s{K_T0}, s{lw}, 3")
    A(f"s_add_u32 s{K_T0}, s{K_T0}, {L_SL}")
    A(f"s_cmp_eq_u32 s{Q_C}, 1")
    A(f"s_cselect_b32 s{K_T0}, s{K_T0}, {L_DUMMY}")
    A(f"v_mov_b32 v{LSA}, s{K_T0}")
    A(f"v_subrev_u32 v{LGD}, {L_SB-L_GD}, v{S_FRD}")
def l_chunk(A, cc):
    slot = cc % 4
    if "d" in O.X2: return
    A(f"s_add_u32 s{K_T0}, s{K_C0}, {cc}"); A(f"s_and_b32 s{K_T0}, s{K_T0}, 7")
    A(f"s_lshl_b32 s{K_T1}, s{K_T0}, 7"); A(f"s_add_u32 s{K_T1}, s{K_T1}, s{K_XO}")
    A(f"s_mul_i32 s{K_T0}, s{K_T0}, {64*2*F}"); A(f"s_add_u32 s{K_T0}, s{K_T0}, s{K_WO}")
    for q in range(2):
        A(f"s_add_u32 m0, s{K_M0}, {slot*32768+q*4096}")
        if q: A(f"s_add_u32 s{K_T1}, s{K_T1}, 32768")
        else: A("s_nop 0")
        for i in range(4):
            if "x" in O.X2: continue
            A(f"buffer_load_dwordx4 v{LX+i}, s[{S_X}:{S_X+3}], s{K_T1} offen offset:{i*1024} {O.XFL} lds")
        A(f"s_add_u32 m0, s{K_M0}, {slot*32768+16384+q*4096}")
        if q: A(f"s_add_u32 s{K_T0}, s{K_T0}, {16*2*F}")
        else: A("s_nop 0")
        for i in range(4):
            if "w" in O.X2: continue
            A(f"buffer_load_dwordx4 v{LW+i}, s[{S_W1}:{S_W1+3}], s{K_T0} offen offset:{i*1024} {O.W1FL} lds")
def l_pub(A, n, val):
    A(f"v_mov_b32 v{LV}, {val}"); A(f"v_mov_b32 v{LV+1}, {val}")
    A(f"s_waitcnt vmcnt({n})")
    A(f"ds_write_b64 v{LSA}, {vr(LV,2)}")
def loader(A, fin):
    A(f"s_cmp_ge_u32 s{S_J}, 28")
    A("s_cbranch_scc1 S_LW1")
    if O.LOOK == 3: l_chunk(A, 3)
    if O.LOOK == 8:
        A.label("S_LW1")
        fin()
    for c in range(max(4, O.LOOK), 8):
        lwait(A, LGD, 0, 31, c - 3)
        l_chunk(A, c)
        if c > O.LOOK: l_pub(A, 0 if "d" in O.X2 else 8 if ("x" in O.X2 or "w" in O.X2) else 16, c)
        if c == 7 and O.TOUCH:
            A(f"s_lshr_b32 s{K_T0}, s{K_XO}, 16")
            A(f"s_mul_i32 s{K_T0}, s{K_T0}, 224")
            A(f"s_and_b32 s{K_T1}, s{S_XCD}, 1")
            A(f"s_mul_i32 s{K_T1}, s{K_T1}, 56")
            A(f"s_add_u32 s{K_T0}, s{K_T0}, s{K_T1}")
            A(f"s_lshr_b32 s{K_T1}, s{S_J}, 2")
            A(f"s_lshl_b32 s{K_T1}, s{K_T1}, 3")
            A(f"s_add_u32 s{K_T0}, s{K_T0}, s{K_T1}")
            A(f"s_lshl_b32 s{K_T0}, s{K_T0}, 10")
            A(f"v_lshlrev_b32 v{LX}, 7, v1")
            A(f"s_add_u32 s{K_T1}, s{K_T0}, {112*1024}")
            A(f"buffer_load_dword v{LX+1}, v{LX}, s[{S_WS}:{S_WS+3}], s{K_T0} offen {O.TFL}")
            A(f"buffer_load_dword v{LX+2}, v{LX}, s[{S_WS}:{S_WS+3}], s{K_T1} offen {O.TFL}")
        if c == O.LFIN:
            A.label("S_LW1")
            fin()
            A(f"s_cmp_ge_u32 s{S_J}, 28")
            A("s_cbranch_scc1 S_LW2")
    A.label("S_LW2")
    if "v" in O.X2: l_pub(A, 0, 8)
    for s in range(4):
        lwait(A, LGD, 0, 31, 5 + s if "v" not in O.X2 else 8)
        if s == 2 and O.KROT: A(f"s_add_u32 s84, s84, {28*16384}")
        for k in range(7):
            A(f"s_add_u32 m0, s{K_M2}, {s*32768+4096+k*2048}")
            A(f"s_add_u32 s{K_T0}, s{K_W2}, {((28 if O.FK else 14)*s+k)*16384}")
            if O.KROT:
                A(f"s_sub_u32 s{K_T1}, s{K_T0}, {28*16384}")
                A(f"s_cmp_ge_u32 s{K_T0}, s84")
                A(f"s_cselect_b32 s{K_T0}, s{K_T1}, s{K_T0}")
            A(f"buffer_load_dwordx4 v{L2D}, s[{S_W2}:{S_W2+3}], s{K_T0} offen {O.W2FL} lds")
            A(f"buffer_load_dwordx4 v{L2D+1}, s[{S_W2}:{S_W2+3}], s{K_T0} offen offset:1024 {O.W2FL} lds")
        if s == 0: l_pub(A, 16 if O.TOUCH else 14, 8)

TAB2 = LDS_SSM + 17408
S_PASS, S_UOK = 33, 34
U_SO, U_M0, UF, UD = 28, 29, 12, 13
def u_dma(A):
    for i in range(4):
        A(f"s_add_u32 m0, s{U_M0}, {i*1024}")
        A(f"s_add_u32 s{Q_T1}, s{U_SO}, {i*2048}")
        A(f"buffer_load_dwordx4 v{UD}, s[{S_WS}:{S_WS+3}], s{Q_T1} offen sc1 lds")
def u_setup(A):
    A(f"s_lshl_b32 s{Q_T0}, s{S_XCD}, {4+FS}")
    A(f"s_add_u32 s{Q_T0}, s{Q_T0}, {F_UT}")
    A("v_and_b32 v8, 15, v1")
    A(f"v_lshl_add_u32 v{UF}, v8, {FS}, s{Q_T0}")
    A(f"v_lshrrev_b32 v{UD}, 2, v1")
    A(f"v_lshlrev_b32 v{UD}, 3, v{UD}")
    A("v_and_b32 v8, 3, v1")
    A(f"v_add_lshl_u32 v{UD}, v{UD}, v8, 4")
    A(f"s_lshl_b32 s{U_SO}, s{Q_PAIR}, 7")
    A(f"s_add_u32 s{U_SO}, s{U_SO}, s{Q_NH}")
    A(f"s_lshl_b32 s{U_SO}, s{U_SO}, 6")
    A(f"s_add_u32 s{U_SO}, s{U_SO}, {WS_UT}")
    A(f"s_mul_i32 s{U_M0}, s{Q_NH}, {U_STRIDE}")
    A(f"s_add_u32 s{U_M0}, s{U_M0}, {LDS_U+64}")
    A(f"s_mov_b32 s{S_UOK}, 0")
def kgen2(A, later, hookA):
    w = S_WAVE; KC = Q_NH
    VW, VB, VA = 26, 27, 28
    E1, E8, E256, C0, E2, E4 = 128, 130, 132, 134, 136, 138
    LO = 140; E32 = 156; G = 160; CV = 200
    A(f"s_mul_i32 s{Q_TAB}, s{w}, {TAB_STRIDE}")
    A(f"s_add_u32 s{Q_TAB}, s{Q_TAB}, {TAB2}")
    A(f"v_lshl_add_u32 v{VW}, v1, 2, s{Q_TAB}")
    A("v_and_b32 v8, 15, v1")
    A("v_lshrrev_b32 v9, 5, v1")
    A(f"v_lshl_add_u32 v9, v9, 4, s{Q_TAB}")
    A("v_mov_b32 v10, 272")
    A(f"v_mad_u32_u24 v{VB}, v8, v10, v9")
    A("v_and_b32 v11, 7, v1")
    A("v_lshlrev_b32 v11, 2, v11")
    A("v_mov_b32 v12, 0xcbaaa988")
    A("v_lshrrev_b32 v11, v11, v12")
    A("v_and_b32 v11, 15, v11")
    A("v_and_b32 v12, 24, v1")
    A("v_cmp_eq_u32 vcc, 8, v12")
    A(f"s_mov_b32 s{Q_EX}, 0x0000ffff")
    A(f"s_mov_b32 s{Q_EX+1}, 0x0000ffff")
    A(f"s_mov_b32 s{Q_EX+2}, 0xffff0000")
    A(f"s_mov_b32 s{Q_EX+3}, 0xffff0000")
    A("v_cndmask_b32 v11, v8, v11, vcc")
    A(f"v_mad_u32_u24 v{VA}, v11, v10, v9")
    srd(A, S_WS, P_WS, WS_BYTES)
    A(f"v_mov_b32 v{LSA}, {L_DUMMY}")
    for k in range(16): A(f"v_mov_b32 v{KD+k}, 0")
    A(f"s_mov_b32 s{S_PASS}, 16")
    A("s_waitcnt lgkmcnt(0)")
    A(f"s_lshl_b32 s{Q_T0}, s{KC}, 4")
    A(f"s_lshr_b32 s{Q_LDT}, s{Q_LDT}, s{Q_T0}")
    A(f"s_lshl_b32 s{Q_LDT}, s{Q_LDT}, 16")
    A(f"s_lshr_b32 s{Q_DSK}, s{Q_DSK}, s{Q_T0}")
    A(f"s_lshl_b32 s{Q_DSK}, s{Q_DSK}, 16")
    A(f"v_mov_b32 v6, {LOG2E}")
    A(f"v_mul_f32 v7, s{Q_LDT}, v6")
    A("v_exp_f32 v7, v7")
    hookA()
    A("v_cvt_pk_bf16_f32 v7, v7, v7")
    A("v_lshlrev_b32 v7, 16, v7")
    A(f"s_waitcnt vmcnt({later})")
    tss(A, 2, "ak")
    A.label("KG_LOOP")
    for i in range(4): A(f"v_lshlrev_b32 v{2+i}, s{S_PASS}, v{14+i}")
    for i in range(4): A(f"v_and_b32 v{2+i}, 0xffff0000, v{2+i}")
    A("v_mul_f32 v2, v6, v2")
    A("v_exp_f32 v2, v2")
    A("v_add_f32 v8, v7, v7")
    A("v_cvt_pk_bf16_f32 v2, v2, v2")
    A("v_lshlrev_b32 v2, 16, v2")
    A("v_mul_f32 v2, v2, v7")
    A("v_mul_f32 v3, v3, v7")
    A("v_mul_f32 v2, 0xbfb8aa3b, v2")
    A(f"v_mul_f32 v3, {INV2PI}, v3")
    A(f"v_mul_f32 v{C0}, v4, v8")
    A(f"v_mul_f32 v{C0+1}, v5, v8")
    A("v_mul_f32 v10, 0x41000000, v2")
    A("v_mul_f32 v11, 0x41000000, v3")
    A("v_mul_f32 v12, 0x43800000, v2")
    A("v_mul_f32 v13, 0x43800000, v3")
    for r in (11, 3, 13): A(f"v_fract_f32 v{r}, v{r}")
    for (m, f, e) in ((10, 11, E8), (2, 3, E1), (12, 13, E256)):
        A(f"v_exp_f32 v{m}, v{m}")
        A(f"v_cos_f32 v{e}, v{f}")
        A(f"v_sin_f32 v{e+1}, v{f}")
    for (m, e) in ((10, E8), (2, E1), (12, E256)):
        A(f"v_pk_mul_f32 {vr(e,2)}, {vr(e,2)}, {vr(m,2)} op_sel:[0,0] op_sel_hi:[1,0]")
    hook = None
    kgen_tables2(A, hook, VW, VB, VA, E1, E8, E256, C0, E2, E4, LO, E32, G, CV)
    for ks in range(8):
        A(f"s_waitcnt lgkmcnt({7-ks})")
        A(f"v_mfma_f32_32x32x16_bf16 {vr(KD,16)}, {vr(KA+4*ks,4)}, {vr(KB+4*ks,4)}, {vr(KD,16)}")
    A(f"s_cmp_eq_u32 s{S_PASS}, 0")
    A("s_cbranch_scc1 KG_DONE")
    tss(A, 3, "k")
    A(f"s_mov_b32 s{S_PASS}, 0")
    A("s_branch KG_LOOP")
    A.label("KG_DONE")
    tss(A, 4, "k"); tss(A, 3, "a")
    token_get(A, 8, STOK)
    X = 64
    A(f"s_mul_i32 s{Q_T0}, s{KC}, {K_STRIDE}")
    A(f"s_add_u32 s{Q_T0}, s{Q_T0}, {LDS_K}")
    A("v_and_b32 v8, 31, v1")
    A("v_lshrrev_b32 v9, 5, v1")
    A(f"v_lshl_add_u32 v8, v8, 4, s{Q_T0}")
    A(f"v_lshl_add_u32 v10, v1, 3, s{Q_T0}")
    A("v_mov_b32 v12, 0"); A("v_mov_b32 v13, 0")
    A("ds_write_b64 v10, v[12:13]")
    A("v_and_b32 v11, 15, v1")
    A(f"s_mul_i32 s{Q_T0}, s{KC}, {U_STRIDE}")
    A(f"s_add_u32 s{Q_T0}, s{Q_T0}, {LDS_U}")
    A(f"v_lshl_add_u32 v11, v11, 2, s{Q_T0}")
    A("ds_write_b32 v11, v12")
    A("v_cmp_eq_u32 vcc, 0, v1")
    A(f"v_mov_b32 v11, s{Q_DSK}")
    A("v_lshl_add_u32 v14, v9, 3, v8")
    A("v_lshl_add_u32 v15, v9, 9, v8")
    A("v_cndmask_b32 v11, 0, v11, vcc")
    A("v_lshl_add_u32 v16, v9, 10, v8")
    A("s_nop 4")
    A(f"v_add_f32 v{KD}, v{KD}, v11")
    A("v_and_b32 v11, 1, v1")
    A("v_cmp_eq_u32 vcc, 1, v11")
    for k in range(4): A(f"v_cvt_pk_bf16_f32 v{X+k}, v{KD+2*k}, v{KD+2*k+1}")
    a, b, c = KD + 8, KD + 9, KD + 10
    for k, (p, q) in enumerate(((a, a), (a, b), (b, b), (c, c))): A(f"v_cvt_pk_bf16_f32 v{X+4+k}, v{p}, v{q}")
    A(f"ds_write_b64 v14, {vr(X,2)} offset:448")
    A(f"ds_write_b64 v14, {vr(X+2,2)} offset:960")
    A(f"ds_write_b128 v15, {vr(X+4,4)} offset:1472")
    X = 72
    for k in range(2):
        a, b = KD + 12 + 2 * k, KD + 13 + 2 * k
        A(f"v_cndmask_b32 v11, v{a}, v{b}, vcc")
        A(f"v_cvt_pk_bf16_f32 v{X+4*k}, v{a}, v{a}")
        A(f"v_cvt_pk_bf16_f32 v{X+4*k+1}, v{a}, v{a}")
        A(f"v_cvt_pk_bf16_f32 v{X+4*k+2}, v11, v{b}")
        A(f"v_cvt_pk_bf16_f32 v{X+4*k+3}, v{b}, v{b}")
        A(f"ds_write_b128 v16, {vr(X+4*k,4)} offset:{2496+512*k}")

def loader2(A):
    A(f"s_cmp_ge_u32 s{S_J}, 28")
    A("s_cbranch_scc1 S_LW2")
    for c in range(O.LOOK, 8):
        if c >= 4: lwait(A, LGD, 0, 31, c - 3, sleep=O.LSLP)
        l_chunk(A, c)
        if c > O.LOOK: l_pub(A, 16, c)
        if c in (3, 5, 7): tss(A, 2 + (c - 3) // 2, "k")
    A.label("S_LW2")
    u_setup(A)
    token_get(A, 8, STOK)
    for s in range(4):
        lwait(A, LGD, 0, 31, 5 + s, sleep=O.LSLP)
        if s < 3:
            if s: A(f"s_cmp_eq_u32 s{S_UOK}, 1"); A(f"s_cbranch_scc1 S_U{s}")
            A(f"buffer_load_dword v9, v{UF}, s[{S_WS}:{S_WS+3}], 0 offen sc1")
            if s: A.label(f"S_U{s}")
        for k in range(7):
            A(f"s_add_u32 m0, s{K_M2}, {s*32768+4096+k*2048}")
            A(f"s_add_u32 s{K_T0}, s{K_W2}, {(14*s+k)*16384}")
            A(f"buffer_load_dwordx4 v{L2D}, s[{S_W2}:{S_W2+3}], s{K_T0} offen {O.W2FL} lds")
            A(f"buffer_load_dwordx4 v{L2D+1}, s[{S_W2}:{S_W2+3}], s{K_T0} offen offset:1024 {O.W2FL} lds")
        if s == 0: l_pub(A, 15, 8)
        if s < 3:
            if s: A(f"s_cmp_eq_u32 s{S_UOK}, 1"); A(f"s_cbranch_scc1 S_V{s}")
            A("s_waitcnt vmcnt(14)")
            A(f"v_cmp_ne_u32 vcc, v{STOK}, v9")
            A(f"s_cbranch_vccnz S_V{s}")
            u_dma(A)
            A(f"s_mov_b32 s{S_UOK}, 1")
            A.label(f"S_V{s}")
    tss(A, 5, "k")
    A("s_waitcnt vmcnt(14)")
    A(f"s_cmp_eq_u32 s{S_UOK}, 1"); A(f"s_cbranch_scc1 S_CV")
    poll(A, UF, 9, STOK, "PU")
    u_dma(A)
    A("s_waitcnt vmcnt(0)")

def conv_final3(A):
    w = S_WAVE
    A("v_bfe_u32 v8, v1, 3, 1")
    A("v_bfe_u32 v9, v1, 2, 1")
    A("v_and_b32 v10, 3, v1")
    A(f"v_lshl_add_u32 v8, v8, 2, s{w}")
    A("v_lshl_add_u32 v11, v8, 2, v10")
    A("v_lshlrev_b32 v11, 2, v11")
    A("v_lshl_add_u32 v12, v9, 7, v11")
    A("v_mul_u32_u24 v13, 144, v9")
    A("v_add_u32 v13, v13, v11")
    A(f"v_add_u32 v12, {LDS_HEAD}, v12")
    A(f"v_add_u32 v13, {LDS_CARR}, v13")
    A("v_lshl_add_u32 v8, v8, 8, v10")
    A("v_lshl_add_u32 v8, v8, 1, v9")
    A("v_lshlrev_b32 v8, 1, v8")
    A(f"v_add_u32 v8, {LDS_STG}, v8")
    A(f"s_lshl_b32 s{Q_T1}, s{w}, 10")
    A(f"s_add_u32 s{Q_T0}, s{Q_T1}, {LDS_STG}")
    A(f"v_lshl_add_u32 v9, v1, 3, s{Q_T0}")
    A("v_lshlrev_b32 v16, 4, v1")
    A(f"s_lshl_b32 s{Q_T0}, s{Q_PAIR}, 13")
    A(f"s_add_u32 s{Q_T0}, s{Q_T0}, s{Q_T1}")
    A(f"s_lshl_b32 s{Q_T0}, s{Q_T0}, 1")
    A(f"s_add_u32 s{Q_T0}, s{Q_T0}, {WS_A2}")
    A(f"s_add_u32 s{Q_T1}, s{Q_T0}, 8192")
    for k in range(4): A(f"v_mov_b32 v{67+4*k}, v{STOK}")
    s_barrier(A, 3)
    A("ds_read_b32 v12, v12")
    A("ds_read_b32 v13, v13")
    A("s_waitcnt lgkmcnt(0)")
    A("v_add_f32 v12, v12, v13")
    A("v_cvt_pk_bf16_f32 v12, v12, v12")
    A("ds_write_b16 v8, v12")
    for k in range(4): A(f"ds_read_b64 {vr(64+4*k,2)}, v9 offset:{(k//2)*4096+(k%2)*512}")
    for k in range(4):
        A(f"s_waitcnt lgkmcnt({3-k})")
        A(f"v_mov_b32 v{66+4*k}, v{65+4*k}")
        A(f"v_mov_b32 v{65+4*k}, v{STOK}")
        A(f"buffer_store_dwordx4 {vr(64+4*k,4)}, v16, s[{S_WS}:{S_WS+3}], s{Q_T0+k//2} offen offset:{(k%2)*1024} sc1")
def s_tail3(A):
    w = S_WAVE; SO_P = 76
    tss(A, 5, "a"); tss(A, 2, "t")
    A(f"s_lshl_b32 s{Q_T0}, s2, 2")
    A(f"s_add_u32 s{Q_T0}, s{Q_T0}, s{w}")
    A(f"s_lshl_b32 s{SO_P}, s{Q_T0}, 12")
    A(f"s_add_u32 s{SO_P}, s{SO_P}, {WS_P}")
    A(f"s_lshl_b32 s{Q_T0}, s{Q_NH}, 15")
    A(f"s_lshl_b32 s{Q_T1}, s{Q_C}, 11")
    A(f"s_add_u32 s{Q_T0}, s{Q_T0}, s{Q_T1}")
    A(f"v_add_u32 v17, s{Q_T0}, v16")
    A(f"v_xor_b32 v15, {0x10000+2048}, v17")
    A(f"s_lshl_b32 s{Q_T0}, s{Q_NH}, 2")
    A(f"s_add_u32 s{Q_T0}, s{Q_T0}, {L_GD}")
    A("v_and_b32 v5, 1, v1")
    A(f"v_lshl_add_u32 v5, v5, 3, s{Q_T0}")
    for k in range(8): A(f"v_mov_b32 v{97+2*k}, v{STOK}")
    lwait(A, 5, 0, 31, 9, sleep=1 - O.RSLP)
    tss(A, 3, "t")
    X = 112
    for h in range(2):
        A(f"ds_read_b128 {vr(X+4*h,4)}, v17 offset:{1024*h}")
        A(f"ds_read_b128 {vr(X+8+4*h,4)}, v15 offset:{1024*h}")
    A(f"v_mov_b32 v{S_FT}, 50")
    for h in range(2):
        A(f"s_waitcnt lgkmcnt({2-2*h})")
        if h == 1: A(f"ds_write_b32 v{S_FOWN}, v{S_FT}")
        for k in range(4):
            r = X + 4 * h + k
            A(f"v_lshlrev_b32 v80, 16, v{r}")
            A(f"v_lshlrev_b32 v81, 16, v{r+8}")
            A(f"v_and_b32 v82, 0xffff0000, v{r}")
            A(f"v_and_b32 v83, 0xffff0000, v{r+8}")
            A("v_add_f32 v80, v80, v81")
            A("v_add_f32 v82, v82, v83")
            A(f"v_cvt_pk_bf16_f32 v{96+8*h+2*k}, v80, v82")
            if k % 2 == 1:
                q = 2 * h + k // 2
                A(f"buffer_store_dwordx4 {vr(96+4*q,4)}, v16, s[{S_WS}:{S_WS+3}], s{SO_P} offen offset:{1024*q} {O.PST}")
    tss(A, 4, "t")
    A("s_waitcnt lgkmcnt(0)")

def s_tail(A):
    w = S_WAVE
    RT, CT, TT, DB = Q_EX, Q_EX + 1, Q_EX + 2, Q_EX + 3
    PK, AP, G, PP, T = 128, 136, 144, 148, 160
    SO_P, SO_PF, SO_A, SO_O = 76, 77, 78, 79
    A(f"s_lshl_b32 s80, s{Q_PAIR}, {FS}")
    A(f"s_lshl_b32 s{Q_T0}, s{w}, {8+FS}")
    A(f"s_add_u32 s80, s80, s{Q_T0}")
    A(f"s_add_u32 s80, s80, {F_A}")
    A(f"s_and_b32 s{RT}, s{S_XCD}, 6")
    A(f"s_lshl_b32 s{RT}, s{RT}, 1")
    A(f"s_and_b32 s{Q_T0}, s{S_J}, 3")
    A(f"s_add_u32 s{RT}, s{RT}, s{Q_T0}")
    A(f"s_lshl_b32 s{RT}, s{RT}, 1")
    A(f"s_and_b32 s{Q_T0}, s{S_XCD}, 1")
    A(f"s_add_u32 s{RT}, s{RT}, s{Q_T0}")
    A(f"s_lshr_b32 s{CT}, s{S_J}, 2")
    A(f"s_lshl_b32 s{TT}, s{RT}, 1")
    A(f"s_add_u32 s{TT}, s{TT}, s{Q_NH}")
    A(f"s_lshl_b32 s{DB}, s{CT}, 1")
    A(f"s_add_u32 s{DB}, s{DB}, s{Q_C}")
    A(f"s_bfe_u32 s{Q_T0}, s{RT}, 0x20002")
    A(f"s_lshl_b32 s{Q_T0}, s{Q_T0}, {8+FS}")
    A(f"s_lshl_b32 s{Q_T1}, s{DB}, {4+FS}")
    A(f"s_add_u32 s{Q_T0}, s{Q_T0}, s{Q_T1}")
    A(f"s_add_u32 s{Q_T0}, s{Q_T0}, {F_A}")
    A(f"v_lshl_add_u32 v2, v1, {FS}, s{Q_T0}")
    A(f"s_lshl_b32 s{Q_T0}, s{TT}, {1+FS}")
    A(f"s_add_u32 s{Q_T0}, s{Q_T0}, {F_G}")
    A("v_and_b32 v3, 1, v1")
    A(f"v_lshl_add_u32 v3, v3, {FS}, s{Q_T0}")
    A("v_cmp_gt_u32 vcc, 16, v1")
    A("v_and_b32 v10, 31, v1")
    A("v_lshrrev_b32 v11, 5, v1")
    A("v_cndmask_b32 v2, v3, v2, vcc")
    A("v_lshlrev_b32 v4, 14, v11")
    A("v_lshl_add_u32 v12, v10, 2, v4")
    A("v_add_u32 v13, 8192, v12")
    A(f"s_lshl_b32 s{Q_T0}, s{TT}, 8")
    A(f"s_add_u32 s{Q_T0}, s{Q_T0}, {WS_G}")
    A(f"v_lshl_add_u32 v14, v10, 3, s{Q_T0}")
    A(f"s_lshl_b32 s{SO_A}, s{DB}, 17")
    A(f"s_lshl_b32 s{Q_T1}, s{TT}, 7")
    A(f"s_add_u32 s{SO_A}, s{SO_A}, s{Q_T1}")
    A(f"s_add_u32 s{SO_A}, s{SO_A}, {WS_A}")
    A("v_lshlrev_b32 v16, 4, v1")
    A(f"s_lshl_b32 s{Q_T0}, s{w}, 12")
    A(f"s_add_u32 s{Q_T0}, s{Q_T0}, {L_T}")
    A(f"v_add_u32 v18, s{Q_T0}, v16")
    A(f"s_lshl_b32 s{Q_T0}, s{w}, 8")
    A(f"s_add_u32 s{Q_T0}, s{Q_T0}, {L_T+16384}")
    A(f"v_lshl_add_u32 v19, v1, 2, s{Q_T0}")
    A(f"s_lshl_b32 s{Q_T0}, s2, 2")
    A(f"s_add_u32 s{Q_T0}, s{Q_T0}, s{w}")
    A(f"s_lshl_b32 s{SO_P}, s{Q_T0}, 12")
    A(f"s_add_u32 s{SO_P}, s{SO_P}, {WS_P}")
    A(f"s_xor_b32 s{SO_O}, s{SO_P}, {4<<12}")
    if O.FK: A(f"s_xor_b32 s{Q_NH}, s{Q_NH}, 1")
    A(f"s_lshl_b32 s{Q_T0}, s{Q_NH}, 15")
    A(f"s_lshl_b32 s{Q_T1}, s{Q_C}, {12 if O.F32 else 11}")
    A(f"s_add_u32 s{Q_T0}, s{Q_T0}, s{Q_T1}")
    A(f"v_add_u32 v17, s{Q_T0}, v16")
    A(f"v_xor_b32 v15, {0x10000+(4096 if O.F32 else 2048)}, v17")
    A(f"s_lshl_b32 s{Q_T0}, s{Q_NH}, 2")
    A(f"s_add_u32 s{Q_T0}, s{Q_T0}, {L_GD}")
    A("v_and_b32 v5, 1, v1")
    A(f"v_lshl_add_u32 v5, v5, 3, s{Q_T0}")
    for k in range(8): A(f"v_mov_b32 v{97+2*k}, v{STOK}")
    A("s_waitcnt vmcnt(0)")
    flag_store(A, 80, 8, STOK)
    tss(A, 5, "au"); tss(A, 2, "t")
    def ag():
        if O.EPOL:
            A("s_waitcnt vmcnt(4)")
            A(f"v_cmp_ne_u32 vcc, v{STOK}, v9")
            A("s_cbranch_vccz S_EP")
        poll(A, 2, 9, STOK, "PA", slp=O.ASLP if O.FK else None)
        if O.EPOL: A.label("S_EP")
        for q in range(4):
            for i in range(2):
                A(f"buffer_load_dword v{AP+2*q+i}, v{12+i}, s[{S_WS}:{S_WS+3}], s{SO_A} offen sc1")
            if q < 3: A(f"s_add_u32 s{SO_A}, s{SO_A}, 32768")
        A(f"buffer_load_dwordx2 {vr(G,2)}, v14, s[{S_WS}:{S_WS+3}], 0 offen sc1")
    def ag2():
        for k in range(8):
            A(f"v_lshlrev_b32 v{T+2*k}, 16, v{AP+k}")
            A(f"v_and_b32 v{T+2*k+1}, 0xffff0000, v{AP+k}")
        for k in range(16):
            A(f"v_mul_f32 v{T+k}, v{G}, v{T+k}")
        A(f"ds_write_b32 v19, v{G+1}")
    def relay():
        for h in range(2):
            A(f"ds_read_b128 {vr(64+4*h,4)}, v17 offset:{1024*h}")
            A(f"ds_read_b128 {vr(72+4*h,4)}, v15 offset:{1024*h}")
        A(f"v_mov_b32 v{S_FT}, 50")
        for h in range(2):
            A(f"s_waitcnt lgkmcnt({2-2*h})")
            if h == 1: A(f"ds_write_b32 v{S_FOWN}, v{S_FT}")
            for k in range(4):
                r = 64 + 4 * h + k
                A(f"v_lshlrev_b32 v80, 16, v{r}")
                A(f"v_lshlrev_b32 v81, 16, v{r+8}")
                A(f"v_and_b32 v82, 0xffff0000, v{r}")
                A(f"v_and_b32 v83, 0xffff0000, v{r+8}")
                A("v_add_f32 v80, v80, v81")
                A("v_add_f32 v82, v82, v83")
                A(f"v_cvt_pk_bf16_f32 v{96+8*h+2*k}, v80, v82")
                if k % 2 == 1:
                    q = 2 * h + k // 2
                    A(f"buffer_store_dwordx4 {vr(96+4*q,4)}, v16, s[{S_WS}:{S_WS+3}], s{SO_P} offen offset:{1024*q} {O.PST}")
    if O.TL2:
        GOT, REL, POL = 33, 34, 35
        A(f"s_bfe_u32 s{Q_T0}, s{RT}, 0x20002")
        A(f"s_lshl_b32 s{Q_T0}, s{Q_T0}, {8+FS}")
        A(f"s_lshl_b32 s{Q_T1}, s{CT}, {5+FS}")
        A(f"s_add_u32 s{Q_T0}, s{Q_T0}, s{Q_T1}")
        A(f"s_add_u32 s{Q_T0}, s{Q_T0}, {F_A}")
        A(f"v_lshl_add_u32 v2, v1, {FS}, s{Q_T0}")
        A(f"s_lshl_b32 s{Q_T0}, s{RT}, {2+FS}")
        A(f"s_add_u32 s{Q_T0}, s{Q_T0}, {F_G}")
        A("v_and_b32 v3, 3, v1")
        A(f"v_lshl_add_u32 v3, v3, {FS}, s{Q_T0}")
        A("v_cmp_gt_u32 vcc, 32, v1")
        A(f"v_mov_b32 v6, {L_AOK}")
        A(f"s_mov_b32 s{GOT}, 0"); A(f"s_mov_b32 s{REL}, 0")
        A("v_cndmask_b32 v2, v3, v2, vcc")
        A(f"s_cmp_eq_u32 s{w}, {O.POLW}")
        A(f"s_cselect_b32 s{POL}, 1, 0")
        A(f"s_mov_b32 s{S_SPIN}, {O.SPIN}")
        A.label("T_L")
        A(f"s_cmp_eq_u32 s{POL}, 1")
        A("s_cbranch_scc0 T_NP")
        A(f"buffer_load_dword v9, v2, s[{S_WS}:{S_WS+3}], 0 offen sc1")
        A(f"s_sub_u32 s{S_SPIN}, s{S_SPIN}, 1")
        A("s_waitcnt vmcnt(0)")
        A("s_cbranch_scc1 T_OK")
        A(f"v_cmp_ne_u32 vcc, v{STOK}, v9")
        A("s_cbranch_vccnz T_NP")
        A.label("T_OK")
        A(f"ds_write_b32 v6, v{STOK+1}")
        A(f"s_mov_b32 s{POL}, 0")
        A.label("T_NP")
        A("ds_read_b32 v7, v6")
        A("ds_read_b32 v31, v5")
        A(f"s_cmp_eq_u32 s{GOT}, 0")
        A("s_waitcnt lgkmcnt(0)")
        A("s_cbranch_scc0 T_NA")
        A("v_cmp_eq_u32 vcc, 0, v7")
        A("s_cbranch_vccnz T_NA")
        tss(A, 4, "t")
        for q in range(4):
            for i in range(2):
                A(f"buffer_load_dword v{AP+2*q+i}, v{12+i}, s[{S_WS}:{S_WS+3}], s{SO_A} offen sc1")
            if q < 3: A(f"s_add_u32 s{SO_A}, s{SO_A}, 32768")
        A(f"buffer_load_dwordx2 {vr(G,2)}, v14, s[{S_WS}:{S_WS+3}], 0 offen sc1")
        A(f"s_mov_b32 s{GOT}, 1")
        A(f"s_cmp_eq_u32 s{REL}, 1")
        A("s_cbranch_scc1 T_W0")
        A.label("T_NA")
        A(f"s_cmp_eq_u32 s{REL}, 0")
        A("s_cbranch_scc0 T_SL")
        A("v_cmp_gt_u32 vcc, 9, v31")
        A("s_cbranch_vccnz T_SL")
        tss(A, 3, "t")
        relay()
        A(f"s_mov_b32 s{REL}, 1")
        A(f"s_cmp_eq_u32 s{GOT}, 1")
        A("s_cbranch_scc1 T_W4")
        A.label("T_SL")
        A(f"s_cmp_eq_u32 s{POL}, 1")
        A("s_cbranch_scc1 T_SP")
        A("s_sleep 1")
        A("s_branch T_L")
        A.label("T_SP")
        A(f"s_sleep {O.ASLP}")
        A("s_branch T_L")
        A.label("T_W0")
        A("s_waitcnt vmcnt(0)")
        A.label("T_W4")
        A("s_waitcnt vmcnt(4)")
        tss(A, 5, "t")
        ag2()
        for q in range(4):
            A(f"ds_write_b128 v18, {vr(T+4*q,4)} offset:{q*1024}")
        sw_arrive(A, S_FOWN, S_FT, 100)
        A("s_waitcnt lgkmcnt(0)")
        return
    if O.F32:
        lwait(A, 5, 0, 31, 9, sleep=2)
        ag()
        tss(A, 3, "t")
        def apart():
            A("s_waitcnt vmcnt(0)")
            A(f"ds_write_b32 v19, v{G+1}")
            for k in range(8):
                A(f"v_lshlrev_b32 v{T+2*k}, 16, v{AP+k}")
                A(f"v_and_b32 v{T+2*k+1}, 0xffff0000, v{AP+k}")
            for k in range(8):
                A(f"v_pk_mul_f32 {vr(T+2*k,2)}, {vr(T+2*k,2)}, {vr(G,2)} op_sel:[0,0] op_sel_hi:[1,0]")
        if O.F32 == 2: apart()
        tss(A, 4, "t")
        lwait(A, 5, 0, 31, 10, sleep=1)
        for q in range(4):
            A(f"ds_read_b128 {vr(64+4*q,4)}, v17 offset:{1024*q}")
            A(f"ds_read_b128 {vr(80+4*q,4)}, v15 offset:{1024*q}")
        if O.F32 == 1: apart()
        tss(A, 5, "t")
        for q in range(4):
            A(f"s_waitcnt lgkmcnt({(6-2*q+q) if O.F32 == 2 else (7-2*q+q)})")
            for k in (2*q, 2*q+1):
                A(f"v_pk_add_f32 {vr(64+2*k,2)}, {vr(64+2*k,2)}, {vr(80+2*k,2)}")
            for k in (2*q, 2*q+1):
                A(f"v_pk_fma_f32 {vr(T+2*k,2)}, {vr(64+2*k,2)}, {vr(G,2)}, {vr(T+2*k,2)} op_sel:[0,1,0] op_sel_hi:[1,1,1]")
            A(f"ds_write_b128 v18, {vr(T+4*q,4)} offset:{q*1024}")
        sw_arrive(A, S_FOWN, S_FT, 100)
        A("s_waitcnt lgkmcnt(0)")
        return
    if O.FK and O.TR2:
        lwait(A, 5, 0, 31, 9, sleep=2)
        ag()
        tss(A, 3, "t")
        lwait(A, 5, 0, 31, 10, sleep=1)
        for h in range(2):
            A(f"ds_read_b128 {vr(64+4*h,4)}, v17 offset:{1024*h}")
            A(f"ds_read_b128 {vr(72+4*h,4)}, v15 offset:{1024*h}")
        A(f"v_mov_b32 v{S_FT}, 50")
        for h in range(2):
            A(f"s_waitcnt lgkmcnt({2 if h == 0 else 0})")
            if h == 1: A(f"ds_write_b32 v{S_FOWN}, v{S_FT}")
            for k in range(4):
                r = 64 + 4 * h + k
                A(f"v_lshlrev_b32 v80, 16, v{r}")
                A(f"v_lshlrev_b32 v81, 16, v{r+8}")
                A(f"v_and_b32 v82, 0xffff0000, v{r}")
                A(f"v_and_b32 v83, 0xffff0000, v{r+8}")
                A(f"v_add_f32 v{T+8*h+2*k}, v80, v81")
                A(f"v_add_f32 v{T+8*h+2*k+1}, v82, v83")
        tss(A, 4, "t")
        A("s_waitcnt vmcnt(0)")
        tss(A, 5, "t")
        A(f"ds_write_b32 v19, v{G+1}")
        for q in range(4):
            for k in range(2):
                A(f"v_lshlrev_b32 v{80+2*k}, 16, v{AP+2*q+k}")
                A(f"v_and_b32 v{81+2*k}, 0xffff0000, v{AP+2*q+k}")
            for k in range(4): A(f"v_mul_f32 v{80+k}, v{G}, v{80+k}")
            for k in range(4): A(f"v_fma_f32 v{T+4*q+k}, v{G+1}, v{T+4*q+k}, v{80+k}")
            A(f"ds_write_b128 v18, {vr(T+4*q,4)} offset:{q*1024}")
        sw_arrive(A, S_FOWN, S_FT, 100)
        A("s_waitcnt lgkmcnt(0)")
        return
    if O.FK:
        if O.MID: lwait(A, 5, 0, 31, 9, sleep=2)
        ag(); A("s_waitcnt vmcnt(0)"); ag2()
        tss(A, 3, "t")
        lwait(A, 5, 0, 31, 10 if O.MID else 9, sleep=1)
        tss(A, 4, "t")
        for h in range(2):
            A(f"ds_read_b128 {vr(64+4*h,4)}, v17 offset:{1024*h}")
            A(f"ds_read_b128 {vr(72+4*h,4)}, v15 offset:{1024*h}")
        A(f"v_mov_b32 v{S_FT}, 50")
        for h in range(2):
            A(f"s_waitcnt lgkmcnt({2 if h == 0 else 2})")
            if h == 1: A(f"ds_write_b32 v{S_FOWN}, v{S_FT}")
            for k in range(4):
                r = 64 + 4 * h + k
                A(f"v_lshlrev_b32 v80, 16, v{r}")
                A(f"v_lshlrev_b32 v81, 16, v{r+8}")
                A(f"v_and_b32 v82, 0xffff0000, v{r}")
                A(f"v_and_b32 v83, 0xffff0000, v{r+8}")
                A("v_add_f32 v80, v80, v81")
                A("v_add_f32 v82, v82, v83")
                A(f"v_fmac_f32 v{T+8*h+2*k}, v{G+1}, v80")
                A(f"v_fmac_f32 v{T+8*h+2*k+1}, v{G+1}, v82")
                if k % 2 == 1:
                    q = 2 * h + k // 2
                    A(f"ds_write_b128 v18, {vr(T+4*q,4)} offset:{q*1024}")
        sw_arrive(A, S_FOWN, S_FT, 100)
        A("s_waitcnt lgkmcnt(0)")
        return
    if O.AFIRST:
        ag(); A("s_waitcnt vmcnt(0)"); ag2()
        tss(A, 3, "t")
    lwait(A, 5, 0, 31, 9, sleep=1)
    tss(A, 4 if O.AFIRST else 3, "t")
    if O.EPOL: A(f"buffer_load_dword v9, v2, s[{S_WS}:{S_WS+3}], 0 offen sc1")
    for h in range(2):
        A(f"ds_read_b128 {vr(64+4*h,4)}, v17 offset:{1024*h}")
        A(f"ds_read_b128 {vr(72+4*h,4)}, v15 offset:{1024*h}")
    A(f"v_mov_b32 v{S_FT}, 50")
    for h in range(2):
        A(f"s_waitcnt lgkmcnt({2-2*h})")
        if h == 1: A(f"ds_write_b32 v{S_FOWN}, v{S_FT}")
        for k in range(4):
            r = 64 + 4 * h + k
            A(f"v_lshlrev_b32 v80, 16, v{r}")
            A(f"v_lshlrev_b32 v81, 16, v{r+8}")
            A(f"v_and_b32 v82, 0xffff0000, v{r}")
            A(f"v_and_b32 v83, 0xffff0000, v{r+8}")
            A("v_add_f32 v80, v80, v81")
            A("v_add_f32 v82, v82, v83")
            A(f"v_cvt_pk_bf16_f32 v{96+8*h+2*k}, v80, v82")
            if k % 2 == 1:
                q = 2 * h + k // 2
                A(f"buffer_store_dwordx4 {vr(96+4*q,4)}, v16, s[{S_WS}:{S_WS+3}], s{SO_P} offen offset:{1024*q} {O.PST}")
    if not O.AFIRST:
        ag()
        tss(A, 4, "t")
    A(f"s_mov_b32 s{S_SPIN}, {O.SPIN}")
    A.label("S_PL")
    for q in range(4):
        A(f"buffer_load_dwordx4 {vr(112+4*q,4)}, v16, s[{S_WS}:{S_WS+3}], s{SO_O} offen offset:{1024*q} sc1")
    if not O.AFIRST:
        A(f"s_cmp_eq_u32 s{S_SPIN}, {O.SPIN}")
        A("s_cbranch_scc0 S_PM")
        A("s_waitcnt vmcnt(4)")
        ag2()
        A.label("S_PM")
    A("s_waitcnt vmcnt(0)")
    for k in range(4):
        A(f"v_xor_b32 v{80+k}, v{STOK}, v{113+4*k}")
        A(f"v_xor_b32 v{84+k}, v{STOK}, v{115+4*k}")
    A("v_or3_b32 v80, v80, v81, v82")
    A("v_or3_b32 v83, v83, v84, v85")
    A("v_or3_b32 v80, v80, v86, v87")
    A("v_or_b32 v80, v80, v83")
    A("v_cmp_ne_u32 vcc, 0, v80")
    A("s_cbranch_vccz S_PD")
    A("s_sleep 1")
    A(f"s_sub_u32 s{S_SPIN}, s{S_SPIN}, 1")
    A("s_cbranch_scc0 S_PL")
    A.label("S_PD")
    tss(A, 5, "t")
    for q in range(4):
        for k in range(2):
            r = 112 + 4 * q + 2 * k
            A(f"v_lshlrev_b32 v{80+2*k}, 16, v{r}")
            A(f"v_and_b32 v{81+2*k}, 0xffff0000, v{r}")
        for k in range(4):
            A(f"v_fmac_f32 v{T+4*q+k}, v{G+1}, v{80+k}")
        A(f"ds_write_b128 v18, {vr(T+4*q,4)} offset:{q*1024}")
    sw_arrive(A, S_FOWN, S_FT, 100)
    A("s_waitcnt lgkmcnt(0)")

def diag(A, k, role):
    A("s_waitcnt vmcnt(0) lgkmcnt(0)")
    A(f"s_memtime s[{S_TS+12}:{S_TS+13}]")
    A("s_waitcnt lgkmcnt(0)")
    A(f"s_sub_u32 s64, s{S_TS+2*k}, s{S_TS+2}")
    mx = len(O.DIAG) > 2
    if not mx or role == "G":
        A(f"s_cmp_ge_u32 s{S_J}, 28")
        A("s_cselect_b32 s64, 0, s64")
    A("v_mov_b32 v2, 128"); A("v_mov_b32 v3, s64")
    A("s_mov_b64 exec, 1")
    A(f"global_atomic_{'umax' if mx else 'add'} v2, v3, s[{P_DBG}:{P_DBG+1}] sc1")
    for lab, first in (("DG0", True), ("DG1", False)):
        A("s_mov_b32 s66, 1000000")
        if first: A("s_mov_b32 s67, 3200")
        A.label(lab)
        A("s_memrealtime s[64:65]")
        A("s_waitcnt lgkmcnt(0)")
        A(f"s_sub_u32 s64, s64, s{S_TS}")
        A("s_cmp_ge_u32 s64, s67")
        A(f"s_cbranch_scc1 {lab}X")
        A("s_sub_u32 s66, s66, 1")
        A(f"s_cbranch_scc0 {lab}")
        A.label(lab + "X")
        if first:
            A("s_waitcnt vmcnt(0)")
            A(f"global_load_dword v3, v2, s[{P_DBG}:{P_DBG+1}] sc1")
            A("s_waitcnt vmcnt(0)")
            A("v_readfirstlane_b32 s67, v3")
            A(f"s_lshr_b32 s67, s67, {1 if mx else 11}")
            A("s_add_u32 s67, s67, 3500")
def fin(A, role):
    if O.DIAG is None: ts_dump(A, 0, S_W8)
    elif O.DIAG[0] == role: diag(A, O.DIAG[1], role)

KN = "gated_mix__ssm_conv_s4d__dense_activation_silu__prompt_kernel"
A = Asm()
A.raw("; @launch grid=(256,1,1) block=(512,1,1) lds=163840")
A.raw('.amdgcn_target "amdgcn-amd-amdhsa--gfx950"')
kernel_header(A, KN)
ts_real(A, 0); parts_ts(A, 1)
if O.ECP > 0:
    A(f"s_cmp_ge_u32 s2, 256")
    A(f"s_cbranch_scc1 K_END")
    A("s_getpc_b64 s[72:73]")
    A.label("K_PC0")
    A("s_load_dwordx16 s[36:51], s[0:1], 0")
    A(f"s_lshr_b32 s{S_J}, s2, 3")
    if O.ECP == 1:
        A("v_lshrrev_b32 v255, 5, v0")
        A(f"v_lshl_add_u32 v255, s{S_J}, 4, v255")
        A("v_lshlrev_b32 v255, 6, v255")
    else:
        A(f"s_and_b32 s74, s{S_J}, {32//O.ECP-1}")
        A(f"v_lshrrev_b32 v255, {5-int(math.log2(O.ECP))}, v0")
        A(f"v_lshl_add_u32 v255, s74, {4+int(math.log2(O.ECP))}, v255")
        A("v_lshlrev_b32 v255, 6, v255")
    A(f"v_min_u32 v255, K_END-K_PC0, v255")
    A("global_load_dword v255, v255, s[72:73]")
    A("s_load_dwordx8 s[52:59], s[0:1], 64")
    A("s_load_dwordx4 s[60:63], s[0:1], 96")
    A("v_lshrrev_b32 v2, 6, v0")
    A("v_and_b32 v1, 63, v0")
    A(f"v_readfirstlane_b32 s{S_WAVE}, v2")
    A(f"s_and_b32 s{S_XCD}, s2, 7")
else:
    prologue(A, "K_END")
A(f"s_mov_b32 s{S_W8}, s{S_WAVE}")
A("v_and_b32 v2, 31, v1")
A("v_lshlrev_b32 v2, 2, v2")
A(f"v_add_u32 v2, {LF}, v2")
A("v_mov_b32 v3, 0")
A("ds_write_b32 v2, v3")
A(f"s_cmp_ge_u32 s{S_WAVE}, 4")
A("s_cbranch_scc1 K_SSM")
if O.GPRIO: A(f"s_setprio {O.GPRIO}")
if O.ECP < 0:
    A(f"s_cmp_lt_u32 s{S_J}, 28")
    A("s_cbranch_scc1 K_GM")
    A("s_getpc_b64 s[72:73]")
    A.label("K_PC0")
    A(f"s_and_b32 s74, s{S_J}, 3")
    A(f"v_lshrrev_b32 v255, 1, v0")
    A(f"v_lshl_add_u32 v255, s74, 7, v255")
    A("v_lshlrev_b32 v255, 6, v255")
    A(f"v_min_u32 v255, K_END-K_PC0, v255")
    A("global_load_dword v255, v255, s[72:73]")
    A("s_branch K_IDLE")
    A.label("K_GM")
else:
    A(f"s_cmp_ge_u32 s{S_J}, 28")
    A("s_cbranch_scc1 K_IDLE")
g1_setup(A)
if O.HAB: hab_setup(A)
rot_c0(A, S_C0, S_T0)
A("s_waitcnt lgkmcnt(0)")
srd(A, S_X, P_U, L*D*2); srd(A, S_W1, P_W1, D*F*2)
vm = Vm(A); cid = {}
for x in g_chunk_dma(0): vm.op(x)
cid[0] = vm.n
if O.GPRE == 1: A("s_barrier")
if O.LOOK > 1:
    for x in g_chunk_dma(1): vm.op(x)
    cid[1] = vm.n
if O.GPRE == 2: A("s_barrier")
srd(A, S_WS, P_WS, WS_BYTES); srd(A, S_OUT, P_OUT, L*D*2)
g1_setup2(A); g_flags_setup(A); g2_setup(A)
if O.HAB: hab_setup2(A)
if O.GW2: gw2_setup(A)
if O.LOOK > 2:
    for x in g_chunk_dma(2): vm.op(x)
    cid[2] = vm.n
if O.LOOK >= 4 and O.L3 == "u":
    for x in g_chunk_dma(3): vm.op(x)
    cid[3] = vm.n
if "L" in O.X2:
    parts_ts(A, 2)
    for k in sorted(cid)[:3]:
        vm.wait(cid[k]); parts_ts(A, 3 + k)
if O.GHOLD: lwait(A, GRD, 32, GT, 1, sleep=4)
(g1_main if O.LA == 1 else g1_main2)(A, vm, cid)
tsg(A, 2, "aeh")
g1_epi(A)
tsg(A, 3, "ae")
A.label("K_G2")
if O.GW2:
    A(f"v_mov_b32 v{GT}, 12")
    A("s_waitcnt vmcnt(0)")
    A(f"ds_write_b32 v{GOWN}, v{GT}")
    lwait(A, GRD, 0, GT + 1, 12)
else: lwait(A, GRD, 48, GT, 12)
if O.FK:
    fk_x(A)
    A.label("K_G3")
else:
    for i in range(O.PFD):
        for x in w2_read(i): A(x)
tsg(A, 4, "h")
if O.PW:
    poll(A, FV, GT, VTOK, "PH", slp=O.HSLP)
    A("s_waitcnt lgkmcnt(0)")
else:
    A(f"v_mov_b32 v{GX}, {L_HOK}")
    A(f"s_cmp_eq_u32 s{S_WAVE}, 0")
    A("s_cbranch_scc0 K_HW")
    poll(A, FV, GT, VTOK, "PH", slp=O.HSLP)
    A(f"ds_write_b32 v{GX}, v{VTOK+1}")
    A("s_waitcnt lgkmcnt(1)")
    A("s_branch K_HD")
    A.label("K_HW")
    lwait(A, GX, 0, GT, 1)
A.label("K_HD")
if O.G2P is not None: A(f"s_setprio {O.G2P}")
tsg(A, 5, "h")
tsg(A, 4, "ae"); tsg(A, 1, "sf")
g2_main(A)
A("s_waitcnt lgkmcnt(0)")
fin(A, "G")
A("s_endpgm")
A.label("K_IDLE")
if O.IPRIO != O.GPRIO: A(f"s_setprio {O.IPRIO}")
idle_tr_issue(A)
if O.CODEPF:
    A("s_getpc_b64 s[72:73]")
    A.label("K_PC")
    A(f"s_sub_u32 s72, s72, K_PC-{KN}")
    A("s_subb_u32 s73, s73, 0")
    A(f"v_lshl_add_u32 v20, s64, 5, v1")
    A("v_lshlrev_b32 v20, 7, v20")
    A(f"v_min_u32 v20, K_END-{KN}, v20")
    A("s_mov_b64 exec, 0xffffffff")
    A("global_load_dword v21, v20, s[72:73]")
    A("s_mov_b64 exec, -1")
A("s_waitcnt lgkmcnt(0)")
srd(A, S_X, P_U, L*D*2)
if any(O.W2P): srd(A, S_W2, P_W2, D*F*2); w2_touch_setup(A)
w2_touch(A, O.W2P[0], 26)
idle_tr_dma(A)
A("s_barrier")
w2_touch(A, O.W2P[1], 26)
srd(A, S_WS, P_WS, WS_BYTES); srd(A, S_OUT, P_OUT, L*D*2)
idle_tr_finish(A, 2 * len(O.W2P[1]))
g_flags_setup(A); g2_setup(A)
tsg(A, 2, "ae")
token_get(A, GX, VTOK)
A(f"s_lshl_b32 s68, s34, 4")
A(f"s_add_u32 s68, s68, s33")
A(f"s_lshl_b32 s65, s68, {FS}")
A(f"s_add_u32 s65, s65, {F_UT}")
A("s_waitcnt vmcnt(0)")
flag_store(A, 65, GT, VTOK)
tsg(A, 3, "ae")
A(f"v_mov_b32 v{GT}, 8")
A(f"ds_write_b32 v{GOWN}, v{GT} offset:16")
if O.IPRIO != O.GPRIO: A(f"s_setprio {O.GPRIO}")
w2_touch(A, O.W2P[2], 26)
idle_gate_issue(A)
w2_touch(A, O.W2P[3], 26)
if O.GW2:
    gw2_setup(A)
    lwait(A, GRD, 16, GT, 8)
    for sl in range(4):
        for x in gw2_dma(sl): A(x)
idle_gate_finish(A, 2 * len(O.W2P[3]) + (28 if O.GW2 else 0))
if not O.TL3:
    A(f"s_lshl_b32 s65, s68, {FS}")
    A(f"s_add_u32 s65, s65, {F_G}")
    A("s_waitcnt vmcnt(0)")
    flag_store(A, 65, GT, VTOK)
A("s_branch K_G2")
A.label("K_SSM")
if O.SPRIO: A(f"s_setprio {O.SPRIO}")
A(f"s_sub_u32 s{S_WAVE}, s{S_WAVE}, 4")
s_setup(A)
carry_zero(A)
A("s_getreg_b32 s31, hwreg(HW_REG_XCC_ID)")
def w2s():
    if O.W2S is None: return
    srd(A, S_W2, P_W2, D*F*2)
    A(f"s_lshr_b32 s{Q_T0}, s{S_XCD}, 1")
    A(f"s_and_b32 s{Q_T1}, s{S_XCD}, 1")
    A(f"s_lshl_b32 s{Q_T1}, s{Q_T1}, 2")
    A(f"s_add_u32 s{Q_T0}, s{Q_T0}, s{Q_T1}")
    A(f"s_lshl_b32 s{Q_T0}, s{Q_T0}, 5")
    A(f"s_add_u32 s{Q_T0}, s{Q_T0}, s{S_J}")
    A(f"s_lshl_b32 s{Q_T0}, s{Q_T0}, 1")
    A(f"s_add_u32 s{Q_T0}, s{Q_T0}, s{Q_NH}")
    A(f"s_mul_i32 s{Q_T0}, s{Q_T0}, 3584")
    A("v_min_u32 v39, 27, v1")
    A("v_lshlrev_b32 v39, 7, v39")
    A(f"buffer_load_dword v39, v39, s[{S_W2}:{S_W2+3}], s{Q_T0} offen {O.PFL2}")
def flow2():
    A(f"s_cmp_eq_u32 s{Q_C}, 1")
    A("s_cbranch_scc1 S_LD")
    A(f"s_lshl_b32 s{Q_T0}, s{Q_PAIR}, 9")
    A(f"s_lshl_b32 s{Q_T1}, s{S_WAVE}, 8")
    A(f"s_add_u32 s{Q_T0}, s{Q_T0}, s{Q_T1}")
    A(f"v_lshl_add_u32 v6, v1, 2, s{Q_T0}")
    A(f"s_lshl_b32 s{Q_T0}, s{Q_PAIR}, 2")
    A("s_waitcnt lgkmcnt(0)")
    for i, p in enumerate((P_LA, P_AI, P_CR, P_CI)):
        A(f"global_load_dword v{14+i}, v6, s[{p}:{p+1}]")
    A(f"s_load_dword s{Q_LDT}, s[{P_LDT}:{P_LDT+1}], s{Q_T0}")
    A(f"s_load_dword s{Q_DSK}, s[{P_DSK}:{P_DSK+1}], s{Q_T0}")
    A(f"s_add_u32 s28, s{P_WS}, {F_EP}")
    A(f"s_addc_u32 s29, s{P_WS+1}, 0")
    A(f"s_cmp_eq_u32 s{S_WAVE}, 1")
    A("s_cbranch_scc0 S_NT")
    A("s_load_dword s30, s[28:29], 0")
    A.label("S_NT")
    A("s_barrier")
    if O.W2S == 0: w2s()
    def tokpub():
        A(f"s_cmp_eq_u32 s{S_WAVE}, 1")
        A("s_cbranch_scc0 S_NP")
        A("s_mul_i32 s30, s30, 0x9e3779a1")
        A("s_add_u32 s30, s30, 0x7f4a7c10")
        A("s_and_b32 s30, s30, -16")
        A(f"v_mov_b32 v{STOK}, s30")
        A(f"v_mov_b32 v{STOK+1}, 1")
        A(f"v_mov_b32 v34, {L_RDY}")
        A(f"ds_write_b64 v34, {vr(STOK,2)}")
        A(f"s_waitcnt vmcnt({1 if O.W2S == 0 else 0})")
        A(f"s_lshl_b32 s28, s2, {FS}")
        A(f"s_add_u32 s28, s28, {F_HERE}")
        flag_store(A, 28, 36, STOK)
        A("s_branch S_NQ")
        A.label("S_NP")
        A(f"s_waitcnt vmcnt({1 if O.W2S == 0 else 0})")
        A.label("S_NQ")
    kgen2(A, 2, tokpub)
    tss(A, 5, "k")
    A("s_cmp_eq_u32 s2, 0")
    A("s_cbranch_scc0 S_UW")
    A(f"s_cmp_eq_u32 s{S_WAVE}, 1")
    A("s_cbranch_scc0 S_UW")
    for i in range(4):
        A(f"v_lshlrev_b32 v8, {FS}, v1")
        A(f"v_add_u32 v8, {F_HERE+(64<<FS)*i}, v8")
        poll(A, 8, 9, STOK, "PE")
    A(f"s_mov_b32 s{Q_T0}, {F_EP}")
    flag_store(A, Q_T0, 8, STOK)
    A.label("S_UW")
    A("s_branch S_CV")
    A.label("S_LD")
    if O.LPRIO != O.SPRIO: A(f"s_setprio {O.LPRIO}")
    loader_setup(A)
    A("s_waitcnt lgkmcnt(0)")
    srd(A, S_X, P_U, L*D*2); srd(A, S_W1, P_W1, D*F*2); srd(A, S_W2, P_W2, D*F*2)
    srd(A, S_WS, P_WS, WS_BYTES)
    A("s_barrier")
    if O.W2S == 1: w2s()
    if O.LDLY: A(f"s_sleep {O.LDLY}")
    loader2(A)
def flow1():
    A(f"s_lshl_b32 s{Q_T0}, s{Q_PAIR}, 9")
    A(f"s_lshl_b32 s{Q_T1}, s{S_WAVE}, 7")
    A(f"s_add_u32 s{Q_T0}, s{Q_T0}, s{Q_T1}")
    A(f"v_lshl_add_u32 v6, v1, 1, s{Q_T0}")
    A(f"s_lshl_b32 s{Q_T0}, s{Q_PAIR}, 2")
    A("s_waitcnt lgkmcnt(0)")
    for i, p in enumerate((P_LA, P_AI, P_CR, P_CI)):
        A(f"global_load_ushort v{2+i}, v6, s[{p}:{p+1}]")
    A(f"s_load_dword s{Q_LDT}, s[{P_LDT}:{P_LDT+1}], s{Q_T0}")
    A(f"s_load_dword s{Q_DSK}, s[{P_DSK}:{P_DSK+1}], s{Q_T0}")
    A(f"s_add_u32 s28, s{P_WS}, {F_EP}")
    A(f"s_addc_u32 s29, s{P_WS+1}, 0")
    A(f"s_cmp_eq_u32 s{S_WAVE}, 1")
    A("s_cbranch_scc0 S_NT")
    A("s_load_dword s30, s[28:29], 0")
    A.label("S_NT")
    A("s_barrier")
    if O.TCH:
        A(f"s_cmp_eq_u32 s{Q_C}, 1")
        A("s_cbranch_scc1 S_T2")
        A(f"s_cmp_eq_u32 s{Q_NH}, 1")
        A("s_cbranch_scc1 S_T1")
        srd(A, S_X, P_U, L*D*2)
        A(f"s_lshl_b32 s{Q_T0}, s{Q_PAIR}, 13")
        A("v_lshlrev_b32 v39, 7, v1" if "x" in O.TCH else "v_mov_b32 v39, 0")
        A(f"buffer_load_dword v39, v39, s[{S_X}:{S_X+3}], s{Q_T0} offen")
        A("s_branch S_T3")
        A.label("S_T1")
        srd(A, S_W1, P_W1, D*F*2)
        A(f"s_add_u32 s{Q_T0}, s{S_XCD}, {2*O.TR}")
        A(f"s_bfe_u32 s{Q_T0}, s{Q_T0}, 0x20001")
        A(f"s_lshl_b32 s{Q_T0}, s{Q_T0}, 5")
        A(f"s_add_u32 s{Q_T0}, s{Q_T0}, s{S_J}")
        A(f"s_mul_i32 s{Q_T0}, s{Q_T0}, {4*2*F}")
        A(f"s_and_b32 s{Q_T1}, s{S_XCD}, 1")
        A(f"s_mul_i32 s{Q_T1}, s{Q_T1}, {F}")
        A(f"s_add_u32 s{Q_T0}, s{Q_T0}, s{Q_T1}")
        A("v_and_b32 v38, 15, v1")
        A("v_min_u32 v38, 13, v38")
        A("v_lshrrev_b32 v39, 4, v1")
        A(f"v_mul_u32_u24 v39, {2*F}, v39")
        A("v_lshl_add_u32 v39, v38, 7, v39" if "w" in O.TCH else "v_mov_b32 v39, 0")
        A(f"buffer_load_dword v39, v39, s[{S_W1}:{S_W1+3}], s{Q_T0} offen")
        A("s_branch S_T3")
        A.label("S_T2")
        w2s()
        A.label("S_T3")
    elif O.W2H: pass
    elif O.W2S is not None:
        srd(A, S_W2, P_W2, D*F*2)
        A(f"s_lshr_b32 s{Q_T0}, s{S_XCD}, 1")
        A(f"s_and_b32 s{Q_T1}, s{S_XCD}, 1")
        A(f"s_lshl_b32 s{Q_T1}, s{Q_T1}, 2")
        A(f"s_add_u32 s{Q_T0}, s{Q_T0}, s{Q_T1}")
        A(f"s_lshl_b32 s{Q_T0}, s{Q_T0}, 5")
        A(f"s_add_u32 s{Q_T0}, s{Q_T0}, s{S_J}")
        A(f"s_mul_i32 s{Q_T0}, s{Q_T0}, 7168")
        A(f"s_mul_i32 s{Q_T1}, s{S_WAVE}, 1792")
        A(f"s_add_u32 s{Q_T0}, s{Q_T0}, s{Q_T1}")
        A("v_min_u32 v39, 13, v1")
        A("v_lshlrev_b32 v39, 7, v39")
        A(f"buffer_load_dword v39, v39, s[{S_W2}:{S_W2+3}], s{Q_T0} offen {O.PFL2}")
    def pre():
        if O.GW2: srd(A, S_WS, P_WS, WS_BYTES); return
        srd(A, S_X, P_U, L*D*2); srd(A, S_W1, P_W1, D*F*2); srd(A, S_W2, P_W2, D*F*2)
        srd(A, S_WS, P_WS, WS_BYTES)
        loader_setup(A)
    def tokpub():
        tss(A, 2, "ak")
        A(f"s_cmp_eq_u32 s{S_WAVE}, 1")
        A("s_cbranch_scc0 S_NP")
        A("s_mul_i32 s30, s30, 0x9e3779a1")
        A("s_add_u32 s30, s30, 0x7f4a7c10")
        A("s_and_b32 s30, s30, -16")
        A("s_and_b32 s31, s31, 15")
        A("s_or_b32 s31, s31, s30")
        A(f"v_mov_b32 v{STOK}, s30")
        A(f"v_mov_b32 v{STOK+1}, 1")
        A(f"v_mov_b32 v34, {L_RDY}")
        A(f"ds_write_b64 v34, {vr(STOK,2)}")
        A(f"v_mov_b32 v35, s31")
        A(f"s_lshl_b32 s28, s2, {FS}")
        A(f"s_add_u32 s28, s28, {F_HERE}")
        flag_store(A, 28, 36, 35)
        A.label("S_NP")
    def khook():
        tss(A, 3, "k")
        if O.W2H == 1:
            A(f"s_cmp_eq_u32 s{Q_C}, 1")
            A("s_cbranch_scc0 S_T4")
            w2s()
            A.label("S_T4")
    kgen(A, later=0 if (O.W2S is None or O.W2H) else 1, hookA=tokpub, pre=pre, hook=khook)
    tss(A, 4, "k")
    if O.W2H == 2:
        A(f"s_cmp_eq_u32 s{Q_C}, 0")
        A("s_cbranch_scc0 S_T4")
        w2s()
        A.label("S_T4")
    kgen_exchange_write(A)
    A("s_waitcnt lgkmcnt(0)")
    sw_arrive(A, S_FOWN, S_FT, 1)
    def kfin():
        sw_wait(A, S_FRD, S_FT, 1, sleep=1)
        kgen_final(A)
        token_get(A, 8, STOK)
    tss(A, 3, "a")
    if O.GW2:
        token_get(A, 16, STOK)
        A(f"s_cmp_eq_u32 s{S_WAVE}, {O.UW}")
        A("s_cbranch_scc0 S_K1")
        A(f"s_lshl_b32 s{Q_T0}, s{S_XCD}, {4+FS}")
        A(f"s_add_u32 s{Q_T0}, s{Q_T0}, {F_UT}")
        A("v_and_b32 v16, 15, v1")
        A(f"v_lshl_add_u32 v16, v16, {FS}, s{Q_T0}")
        poll(A, 16, 17, STOK, "PU")
        ut2(A, 0)
        A.label("S_K1")
        sw_wait(A, S_FRD, S_FT, 1, sleep=1)
        kgen_final(A)
        tss(A, 5, "k")
        A(f"s_cmp_eq_u32 s{S_WAVE}, {O.UW}")
        A("s_cbranch_scc0 S_K2")
        ut2(A, 1)
        A.label("S_K2")
        A("s_cmp_eq_u32 s2, 0")
        A("s_cbranch_scc0 S_CV")
        A(f"s_cmp_eq_u32 s{S_WAVE}, 1")
        A("s_cbranch_scc0 S_CV")
        for i in range(4):
            A(f"v_lshlrev_b32 v8, {FS}, v1")
            A(f"v_add_u32 v8, {F_HERE+(64<<FS)*i}, v8")
            poll(A, 8, 9, STOK, "PE", mask=True)
        A(f"s_mov_b32 s{Q_T0}, {F_EP}")
        flag_store(A, Q_T0, 8, STOK)
        return
    A(f"s_cmp_eq_u32 s{Q_C}, 1")
    A("s_cbranch_scc1 S_LD")
    kfin()
    tss(A, 5, "k")
    A(f"s_cmp_eq_u32 s{S_WAVE}, 1")
    A("s_cbranch_scc1 S_VD")
    A(f"s_lshl_b32 s{Q_T0}, s{S_XCD}, {4+FS}")
    A(f"s_add_u32 s{Q_T0}, s{Q_T0}, {F_UT}")
    A("v_and_b32 v8, 15, v1")
    A(f"v_lshl_add_u32 v8, v8, {FS}, s{Q_T0}")
    poll(A, 8, 9, STOK, "PU")
    ut2(A)
    A("s_branch S_CV")
    A.label("S_VD")
    if O.PT:
        A(f"s_lshr_b32 s{Q_T0}, s{S_J}, 2")
        A(f"s_lshl_b32 s{Q_T0}, s{Q_T0}, 18")
        A(f"s_xor_b32 s{Q_T1}, s{S_XCD}, 2")
        A(f"s_lshl_b32 s{Q_T1}, s{Q_T1}, 10")
        A(f"s_add_u32 s{Q_T0}, s{Q_T0}, s{Q_T1}")
        A(f"s_add_u32 s{Q_T0}, s{Q_T0}, {WS_A}")
        A(f"v_lshl_add_u32 v8, v1, 13, s{Q_T0}")
        A(f"s_lshl_b32 s{Q_T0}, s2, 14")
        A(f"s_add_u32 s{Q_T0}, s{Q_T0}, {WS_P}")
        A("v_and_b32 v9, 3, v1")
        A(f"v_lshl_add_u32 v9, v9, 12, s{Q_T0}")
        A("v_cmp_gt_u32 vcc, 32, v1")
        A(f"s_lshl_b32 s{Q_T0}, s{Q_PAIR}, 13")
        A(f"s_add_u32 s{Q_T0}, s{Q_T0}, s{Q_T1}")
        A("v_cndmask_b32 v8, v9, v8, vcc")
        A(f"s_add_u32 s{Q_T0}, s{Q_T0}, {WS_A}")
        A("v_and_b32 v9, 1, v1")
        A("v_lshlrev_b32 v9, 12, v9")
        A(f"v_xor_b32 v9, s{Q_T0}, v9")
        A("v_cmp_gt_u32 vcc, 48, v1")
        srd(A, S_OUT, P_OUT, L*D*2)
        A("v_cndmask_b32 v8, v9, v8, vcc")
        if "w" in O.PT: A(f"buffer_load_dword v38, v8, s[{S_WS}:{S_WS+3}], 0 offen")
        A(f"s_and_b32 s{Q_T0}, s{S_XCD}, 6")
        A(f"s_lshl_b32 s{Q_T0}, s{Q_T0}, 1")
        A(f"s_and_b32 s{Q_T1}, s{S_J}, 3")
        A(f"s_add_u32 s{Q_T0}, s{Q_T0}, s{Q_T1}")
        A(f"s_lshl_b32 s{Q_T0}, s{Q_T0}, 1")
        A(f"s_and_b32 s{Q_T1}, s{S_XCD}, 1")
        A(f"s_add_u32 s{Q_T0}, s{Q_T0}, s{Q_T1}")
        A(f"s_lshl_b32 s{Q_T0}, s{Q_T0}, 16")
        A(f"s_lshr_b32 s{Q_T1}, s{S_J}, 2")
        A(f"s_lshl_b32 s{Q_T1}, s{Q_T1}, 7")
        A(f"s_add_u32 s{Q_T0}, s{Q_T0}, s{Q_T1}")
        if "O" in O.PT: A("v_lshlrev_b32 v9, 10, v1")
        else:
            A("v_and_b32 v9, 15, v1")
            A("v_lshlrev_b32 v9, 12, v9")
        if "o" in O.PT.lower(): A(f"buffer_load_dword v37, v9, s[{S_OUT}:{S_OUT+3}], s{Q_T0} offen")
    if O.VERD:
        A(f"s_and_b32 s{Q_T0}, s2, 31")
        A(f"s_lshl_b32 s{Q_T0}, s{Q_T0}, {FS}")
        A(f"s_add_u32 s{Q_T0}, s{Q_T0}, {F_HERE}")
        A("v_and_b32 v8, 7, v1")
        A(f"v_lshl_add_u32 v8, v8, {5+FS}, s{Q_T0}")
        poll(A, 8, 9, STOK, "PV", mask=True)
        A("v_cmp_ne_u32 vcc, s31, v9")
        A("s_cmp_eq_u64 vcc, 0")
        A(f"s_cselect_b32 s{Q_T0}, 1, 2")
        A(f"v_mov_b32 v9, s{Q_T0}")
        A(f"v_mov_b32 v8, {L_VERD}")
        A("ds_write_b32 v8, v9")
    A("s_cmp_eq_u32 s2, 0")
    A("s_cbranch_scc0 S_CV")
    for i in range(4):
        A(f"v_lshlrev_b32 v8, {FS}, v1")
        A(f"v_add_u32 v8, {F_HERE+(64<<FS)*i}, v8")
        poll(A, 8, 9, STOK, "PE", mask=True)
    A(f"s_mov_b32 s{Q_T0}, {F_EP}")
    flag_store(A, Q_T0, 8, STOK)
    A("s_branch S_CV")
    A.label("S_LD")
    loader(A, kfin)

(flow2 if O.DL else flow1)()
A.label("S_CV")
conv_setup(A)
A(f"v_mov_b32 v{LV}, 12"); A(f"v_mov_b32 v{LV+1}, 12")
s_barrier(A, 2)
tss(A, 4, "a"); tss(A, 2, "u")
if O.CPRIO != O.SPRIO: A(f"s_setprio {O.CPRIO}")
conv(A, inj=None if O.GW2 else (O.PUBM, ["s_waitcnt vmcnt(0)", f"ds_write_b64 v{LSA}, {vr(LV,2)}"]))
if O.CPRIO != O.TPRIO: A(f"s_setprio {O.TPRIO}")
if O.TL3:
    conv_final3(A); s_tail3(A)
else:
    tss(A, 3, "u")
    s_barrier(A, 3)
    conv_final(A, "sc1")
    tss(A, 4, "u")
    s_tail(A)
fin(A, "S")
A.label("K_END")
A("s_endpgm")
kernel_desc(A, KN, 256)
open(sys.argv[1], "w").write(A.text())
```

```python
import sys; sys.path.insert(0, "gen")
import parts
from parts import *
import ssm
from ssm import *

class Opt: pass
O = Opt()
O.TS = False
O.ROT = (0, 0, 2, 1)
O.SPRIO = 3; O.CPRIO = 0; O.GPRIO = 1; O.TPRIO = 3
O.CODEPF = True
O.YPRIO = None; O.G2P = None; O.MID = 0; O.TR2 = False; O.F32 = 0; O.YT = None; O.YN = 14; O.YS = 0; O.YR = 1; O.YA = 0; O.FK = False; O.YP = 1; O.KROT = 0; O.ECP = 0; O.EPOL = 0
import math
O.SPIN = 100000
O.SLP = 4; O.HSLP = 1
O.TSC = None; O.TSG = "a"; O.TSS = "a"
O.ARR = 1
O.DEPTH = 14
O.PUBM = 12
O.SLOW = False
O.DIAG = None
O.HFS = 8
O.HLD = "sc1"; O.HST = "sc1"; O.GHOLD = False; O.VERD = False; O.NA = 4; O.PFD = 2; O.NOPK = True; O.KG2 = True; O.KLO = "pk"; O.KHI = "sc"; O.LFIN = 7; O.TOUCH = False; O.PST = "sc1"; O.AFIRST = False; O.XFL = ""; O.W1FL = ""; O.W2FL = ""; O.TFL = "nt"; O.UFL = ""; O.PDLY = 0; O.LOOK = 4; O.PFL = 99; O.L3 = "i"; O.IPRIO = 3; O.TAILK = 0
O.X2 = ""; O.ST = (1, 14, 28, 42)
O.HAB = False; O.BS = 8; O.FA = 6; O.PW = False; O.TCH = ""; O.TR = 2; O.W2H = False; O.PT = ""; O.APS = 3; O.XF = 0; O.RSLP = 0; O.XQ = None; O.XR = 2; O.TL3 = False; O.ASTEP = 48
O.GW2 = False; O.GW2N = 3; O.W2AF = 0; O.UW = 3
O.TL2 = False; O.PSTEP = 52; O.SPG = 3; O.POLW = 3; O.ASLP = 8
O.GPRE = 1
O.DL = False; O.LPRIO = 3; O.LSLP = 1; O.LDLY = 0
O.W2S = None
O.W2P = ((), (), (), ()); O.PFL2 = ""; O.UOWN = False
O.LA = 1; O.RSP = (2, 4, 6); O.PPOS = 0
O.DSL = (6, 7, 8, 10, 11, 12, 14, 15)
O.PAW = 2
for a in sys.argv[2:]: exec("O." + a)
parts.TS = O.TS
ssm.KG2 = O.KG2; ssm.KLO = O.KLO; ssm.KHI = O.KHI
parts.gflag_setup = lambda A: None

LF = LDS_SSM + 31744
L_GL, L_GD, L_SB, L_SL, L_RDY, L_HOK, L_VERD = LF, LF + 16, LF + 32, LF + 48, LF + 64, LF + 72, LF + 76
L_AOK = LF + 80
L_DUMMY = LF + 128
ssm.LDS_SFLAG = L_SB
FS = 8
F_HERE, F_UT, F_G, F_A, F_H, F_P, F_EP = [WS_FLAG + (x << FS) for x in (0, 256, 384, 512, 1536, 2560, 3584)]
assert F_EP + 256 <= (13 << 20)
WS_P = 16 << 20
WS_BYTES = (24 if O.TL3 else 20) << 20
WS_A2 = 20 << 20
STOK = 32
S_W8, S_SPIN, S_HF = 27, 85, 32

parts_ts = ts
def tsg(A, i, mode="a"):
    if O.TSC: return
    if O.TSG in mode: parts_ts(A, i)
def tss(A, i, mode="a"):
    if O.TSS in mode: parts_ts(A, i)

class Vm:
    def __init__(self, A): self.A = A; self.n = 0; self.done = 0
    def op(self, s):
        self.A(s)
        if s.startswith("buffer_") or s.startswith("global_"): self.n += 1
        return self.n
    def cnt(self, idn):
        k = min(self.n - idn, 63); self.done = max(self.done, self.n - k); return k
    def wait(self, idn, extra=""):
        if idn <= self.done:
            if extra: self.A(f"s_waitcnt {extra}")
            return
        self.A(f"s_waitcnt vmcnt({self.cnt(idn)}) {extra}")

def poll(A, vaddr, vt, tok, name, slp=None, mask=False):
    l = A.newlabel(name); d = A.newlabel(name)
    A(f"s_mov_b32 s{S_SPIN}, {O.SPIN}")
    A.label(l)
    A(f"buffer_load_dword v{vt}, v{vaddr}, s[{S_WS}:{S_WS+3}], 0 offen sc1")
    A("s_waitcnt vmcnt(0)")
    if mask:
        A(f"v_and_b32 v{vt+1}, -16, v{vt}")
        A(f"v_cmp_ne_u32 vcc, v{tok}, v{vt+1}")
    else:
        A(f"v_cmp_ne_u32 vcc, v{tok}, v{vt}")
    A(f"s_cbranch_vccz {d}")
    A(f"s_sleep {O.SLP if slp is None else slp}")
    A(f"s_sub_u32 s{S_SPIN}, s{S_SPIN}, 1")
    A(f"s_cbranch_scc0 {l}")
    A.label(d)

def lwait(A, vaddr, off, vt, val, issued=False, sleep=1):
    lab = A.newlabel("LW"); done = A.newlabel("LWD")
    if not issued: A(f"ds_read_b32 v{vt}, v{vaddr} offset:{off}")
    A("s_waitcnt lgkmcnt(0)")
    A(f"v_cmp_gt_u32 vcc, {val}, v{vt}")
    A(f"s_cbranch_vccz {done}")
    A.label(lab)
    if sleep: A(f"s_sleep {sleep}")
    A(f"ds_read_b32 v{vt}, v{vaddr} offset:{off}")
    A("s_waitcnt lgkmcnt(0)")
    A(f"v_cmp_gt_u32 vcc, {val}, v{vt}")
    A(f"s_cbranch_vccnz {lab}")
    A.label(done)

def token_get(A, va, tok):
    l = A.newlabel("RW"); d = A.newlabel("RW")
    A(f"v_mov_b32 v{va}, {L_RDY}")
    A.label(l)
    A(f"ds_read_b64 {vr(tok,2)}, v{va}")
    A("s_waitcnt lgkmcnt(0)")
    A(f"v_cmp_ne_u32 vcc, 1, v{tok+1}")
    A(f"s_cbranch_vccz {d}")
    A("s_sleep 1")
    A(f"s_branch {l}")
    A.label(d)

def flag_store(A, soff, va, vt, fl="sc1"):
    A(f"v_mov_b32 v{va}, 0")
    A("s_mov_b64 exec, 1")
    A(f"buffer_store_dword v{vt}, v{va}, s[{S_WS}:{S_WS+3}], s{soff} offen {fl}")
    A("s_mov_b64 exec, -1")

def rot_c0(A, dst, t0):
    a, b, c, d = O.ROT
    A(f"s_mov_b32 s{dst}, 0")
    if a: A(f"s_and_b32 s{t0}, s{S_J}, 3"); A(f"s_mul_i32 s{dst}, s{t0}, {a}")
    if b: A(f"s_lshr_b32 s{t0}, s{S_J}, 2"); A(f"s_mul_i32 s{t0}, s{t0}, {b}"); A(f"s_add_u32 s{dst}, s{dst}, s{t0}")
    if c: A(f"s_lshr_b32 s{t0}, s{S_XCD}, 1"); A(f"s_mul_i32 s{t0}, s{t0}, {c}"); A(f"s_add_u32 s{dst}, s{dst}, s{t0}")
    if d: A(f"s_and_b32 s{t0}, s{S_XCD}, 1"); A(f"s_mul_i32 s{t0}, s{t0}, {d}"); A(f"s_add_u32 s{dst}, s{dst}, s{t0}")

GOWN, GRD, GT, HV, AR, RW, FV, VTOK, GX = 50, 51, 52, 54, 56, 58, 59, 60, 62
ACCA, ACCB, AF, PK, HR0 = 64, 96, 128, 168, 184
OV, RX, TV = 55, 63, 49
FVB = 48
S_OO, S_PO, S_P1, S_PF = 76, 77, 78, 79
L_T = LDS_SSM
STMP = 160
S_HL, S_HR, S_C0 = 80, 81, 84

def g_flags_setup(A):
    A(f"s_lshl_b32 s{S_T0}, s{S_WAVE}, 2")
    A(f"s_add_u32 s{S_T0}, s{S_T0}, {LF}")
    A(f"v_mov_b32 v{GOWN}, s{S_T0}")
    A(f"v_and_b32 v{GRD}, 3, v1")
    A(f"v_lshlrev_b32 v{GRD}, 2, v{GRD}")
    A(f"v_add_u32 v{GRD}, {LF}, v{GRD}")

def krot(A, d, sh):
    A(f"s_lshr_b32 s{d}, s{S_J}, 2")
    if O.KROT == 1:
        A(f"s_cmp_eq_u32 s{d}, 7")
        A(f"s_cselect_b32 s{d}, 3, s{d}")
    elif O.KROT == 2:
        A(f"s_and_b32 s{d}, s{d}, 3")
        A(f"s_lshl_b32 s{d}, s{d}, 1")
    elif O.KROT == 3:
        A(f"s_and_b32 s{d}, s{d}, 1")
        A(f"s_mul_i32 s{d}, s{d}, 3")
    A(f"s_lshl_b32 s{d}, s{d}, {sh}")
def g2_setup(A):
    w = S_WAVE; T = 30
    if O.KROT: krot(A, 82, 12)
    A(f"s_and_b32 s{S_T0}, s{S_XCD}, 6")
    A(f"s_lshl_b32 s{S_T0}, s{S_T0}, 1")
    A(f"s_and_b32 s{S_T1}, s{S_J}, 3")
    A(f"s_add_u32 s{S_T0}, s{S_T0}, s{S_T1}")
    A(f"s_and_b32 s{S_T1}, s{S_XCD}, 1")
    A(f"s_lshl_b32 s{S_HF}, s{S_T0}, 1")
    A(f"s_add_u32 s{S_HF}, s{S_HF}, s{S_T1}")
    A(f"s_lshl_b32 s{S_HF}, s{S_HF}, {5+O.HFS}")
    A(f"s_add_u32 s{S_HF}, s{S_HF}, {F_H}")
    A(f"v_min_u32 v{T}, 27, v1")
    A(f"v_lshl_add_u32 v{FV}, v{T}, {O.HFS}, s{S_HF}")
    if O.FK:
        srd(A, S_W2, P_W2, D*F*2)
        A(f"s_mul_i32 s82, s{S_T1}, {(14-32) << O.HFS}")
        A(f"s_add_u32 s82, s82, s{S_HF}")
        if O.PW:
            A(f"s_lshr_b32 s83, s{w}, 1")
            A(f"s_lshl_b32 s83, s83, {5+O.HFS}")
            A(f"s_add_u32 s82, s82, s83")
            A(f"s_and_b32 s83, s{w}, 1")
            A(f"s_mul_i32 s83, s83, {7 << O.HFS}")
            A(f"s_add_u32 s82, s82, s83")
            A(f"v_min_u32 v{T}, 6, v1")
        else:
            A(f"v_and_b32 v{T}, 31, v1")
            A(f"v_min_u32 v{T}, 13, v{T}")
            A(f"v_and_or_b32 v{T}, v1, 32, v{T}")
        A(f"v_lshl_add_u32 v{FV}, v{T}, {O.HFS}, s82")
        A(f"s_mul_i32 s82, s{w}, {28*16384}")
        A(f"s_lshr_b32 s83, s{S_J}, 2")
        A(f"s_lshl_b32 s83, s83, 7")
        A(f"s_add_u32 s82, s82, s83")
        A(f"s_lshl_b32 s83, s{w}, 15")
    if O.HAB:
        A(f"s_and_b32 s{S_HR}, s{w}, 1")
        A(f"s_lshl_b32 s{S_HR}, s{S_HR}, 1")
        A(f"s_lshr_b32 s{S_HL}, s{w}, 1")
        A(f"s_add_u32 s{S_HR}, s{S_HR}, s{S_HL}")
        A(f"s_mul_i32 s{S_HR}, s{S_HR}, 7")
        A(f"v_min_u32 v{T}, 6, v1")
        A(f"v_add_u32 v{T}, s{S_HR}, v{T}")
        A(f"v_lshl_add_u32 v{FV if O.PW else FVB}, v{T}, {O.HFS}, s{S_HF}")
        A(f"v_add_u32 v{FVB}, {F_P-F_H}, v{FV if O.PW else FVB}")
    A(f"s_lshl_b32 s{S_T0}, s{S_T0}, 2")
    A(f"s_and_b32 s{S_HR}, s{w}, 1")
    A(f"s_add_u32 s{S_T0}, s{S_T0}, s{S_HR}")
    A(f"s_lshl_b32 s{S_OO}, s{S_T1}, 1")
    A(f"s_add_u32 s{S_OO}, s{S_OO}, s{S_T0}")
    A(f"s_xor_b32 s{S_HL}, s{S_OO}, {1 if O.FK else 2}")
    A(f"s_mul_i32 s{S_HL}, s{S_HL}, 112")
    A(f"s_mul_i32 s{S_HR}, s{S_OO}, 112")
    A(f"s_lshl_b32 s{S_T1}, s{S_T1}, 1")
    A(f"s_lshr_b32 s{S_T0}, s{w}, 1")
    A(f"s_add_u32 s{S_T1}, s{S_T1}, s{S_T0}")
    A(f"s_mul_i32 s{S_T1}, s{w if O.FK else S_T1}, 28")
    A(f"s_add_u32 s{S_HL}, s{S_HL}, s{S_T1}")
    A(f"s_add_u32 s{S_HR}, s{S_HR}, s{S_T1}")
    A(f"s_lshl_b32 s{S_HL}, s{S_HL}, 10")
    A(f"s_lshl_b32 s{S_HR}, s{S_HR}, 10")
    A(f"s_lshl_b32 s{S_OO}, s{S_OO}, 15")
    A(f"s_lshr_b32 s{S_T1}, s{S_J}, 2")
    A(f"s_lshl_b32 s{S_T1}, s{S_T1}, 1")
    A(f"s_add_u32 s{S_T1}, s{S_T1}, s{S_T0}")
    A(f"s_lshl_b32 s{S_T1}, s{S_T1}, 6")
    A(f"s_add_u32 s{S_OO}, s{S_OO}, s{S_T1}")
    A(f"v_lshlrev_b32 v{HV}, 4, v1")
    A(f"s_lshl_b32 s{S_T1}, s{w}, 15")
    A(f"v_add_u32 v{RW}, s{S_T1}, v{HV}")
    A(f"v_xor_b32 v{RX}, 0x10000, v{RW}")
    A(f"s_lshl_b32 s{S_T1}, s{w}, 12")
    A(f"s_add_u32 s{S_T1}, s{S_T1}, {L_T}")
    A(f"v_add_u32 v{TV}, s{S_T1}, v{HV}")
    A(f"v_lshrrev_b32 v{T+1}, 5, v1")
    A(f"v_and_b32 v{T}, 31, v1")
    A(f"v_lshlrev_b32 v{T}, 10, v{T}")
    A(f"v_lshl_add_u32 v{OV}, v{T+1}, 4, v{T}")
    A(f"v_bfe_u32 v{T+2}, v1, 2, 2")
    A(f"v_bfe_u32 v{T+3}, v1, 4, 1")
    A(f"v_bfe_u32 v{T+4}, v1, 1, 1")
    A(f"v_lshl_add_u32 v{T+3}, v{T+3}, 1, v{T+4}")
    A(f"v_bfe_u32 v{T+4}, v1, 3, 1")
    A(f"v_xor_b32 v{T+4}, s{S_T0}, v{T+4}")
    A(f"v_lshl_add_u32 v{T+3}, v{T+4}, 2, v{T+3}")
    A(f"v_lshl_add_u32 v{T+2}, v{T+1}, 2, v{T+2}")
    A(f"v_lshlrev_b32 v{T+2}, 7, v{T+2}")
    A(f"v_lshl_add_u32 v{T+2}, v{T+3}, 4, v{T+2}")
    A(f"v_and_b32 v{T+4}, 1, v1")
    A(f"v_lshl_add_u32 v{T+2}, v{T+4}, 3, v{T+2}")
    A(f"s_lshl_b32 s{S_T0}, s{S_T0}, 16")
    A(f"v_add_u32 v{AR}, s{83 if O.FK else S_T0}, v{T+2}")
    A(f"v_xor_b32 v{AR+1}, 64, v{AR}")

XR = [128 + 8 * r for r in range(7)] + [224 + 8 * r for r in range(4)] + [2 + 8 * r for r in range(3)]
def fk_x(A, part=False):
    if O.YPRIO is not None and not (part and O.YA == 0): A(f"s_setprio {O.YPRIO}")
    for r in range(14):
        for x in w2_read(r): A(x)
    A("v_lshrrev_b32 v28, 3, v1")
    A("v_and_b32 v29, 7, v1")
    A("v_bfe_u32 v27, v1, 4, 1")
    A("v_lshlrev_b32 v28, 10, v28")
    A("v_lshlrev_b32 v27, 2, v27")
    A("v_xor_b32 v27, v29, v27")
    A("v_lshl_add_u32 v26, v27, 4, v28")
    A(f"v_add_u32 v27, {8192-1024}, v26")
    for r in range(O.YN):
        if O.YP == 2 and r == O.YA:
            if part: return
            A.label("K_GY")
        if r in (0, 11): A(f"s_waitcnt lgkmcnt({12 if r == 0 else 0})")
        A(f"s_add_u32 m0, s83, {4096+r*2048}")
        A(f"s_add_u32 s{S_T0}, s82, {(14+r)*16384}")
        A(f"buffer_load_dwordx4 v26, s[{S_W2}:{S_W2+3}], s{S_T0} offen {O.W2FL} lds")
        A(f"buffer_load_dwordx4 v27, s[{S_W2}:{S_W2+3}], s{S_T0} offen offset:1024 {O.W2FL} lds")
    if O.YN < 12: A("s_waitcnt lgkmcnt(0)")
def w2_read(i):
    k = i % 28; dst = AF + 8 * (i % O.NA)
    if O.FK: k = i % 14; dst = XR[k]
    o = (k // 14) * 32768 + 4096 + (k % 14) * 2048
    return [f"ds_read_b64_tr_b16 {vr(dst+4*a+2*x,2)}, v{AR+a} offset:{o+x*1024}" for a in range(2) for x in range(2)]
HQ = {}
def h_load(i):
    base, k = (S_HL, i) if i < 28 else (S_HR, i - 28)
    if O.FK:
        r = i % 14; base = S_HR if (i // 14) % 2 else S_HL
        pre = [f"s_add_u32 s{S_T0}, s{base}, {(r + 14 * (i // 28)) * 1024}"] if r % 4 == 0 else []
        return pre + [f"buffer_load_dwordx4 {vr(HQ[i],4)}, v{HV}, s[{S_WS}:{S_WS+3}], s{S_T0} offen offset:{(r%4)*1024} {O.HLD}"]
    pre = [f"s_add_u32 s{S_T0}, s{base}, {k*1024}"] if k % 4 == 0 else []
    if O.KROT and k == 0:
        pre = [f"s_add_u32 s{S_T0}, s{base}, s82", f"s_add_u32 s83, s{base}, {28*1024}"]
    elif O.KROT and k % 4 == 0:
        pre = [f"s_add_u32 s{S_T0}, s{S_T0}, 4096", f"s_cmp_eq_u32 s{S_T0}, s83", f"s_cselect_b32 s{S_T0}, s{base}, s{S_T0}"]
    return pre + [f"buffer_load_dwordx4 {vr(HQ[i],4)}, v{HV}, s[{S_WS}:{S_WS+3}], s{S_T0} offen offset:{(k%4)*1024} {O.HLD}"]

def g_chunk_dma(cc):
    slot = cc % 4
    out = [f"s_add_u32 s{S_HO}, s{S_C0}, {cc}", f"s_and_b32 s{S_HO}, s{S_HO}, 7",
           f"s_lshl_b32 s{S_T1}, s{S_HO}, 7", f"s_add_u32 m0, s{S_M0X}, {slot*32768}", f"s_add_u32 s{S_T1}, s{S_T1}, s{S_XO}"]
    for i in range(4):
        out.append(f"buffer_load_dwordx4 v{G1_XD+i}, s[{S_X}:{S_X+3}], s{S_T1} offen offset:{i*1024} {O.XFL} lds")
    out += [f"s_mul_i32 s{S_T1}, s{S_HO}, {64*2*F}", f"s_add_u32 m0, s{S_M0X}, {slot*32768+16384}", f"s_add_u32 s{S_T1}, s{S_T1}, s{S_WO}"]
    for i in range(4):
        out.append(f"buffer_load_dwordx4 v{G1_WD+i}, s[{S_W1}:{S_W1+3}], s{S_T1} offen offset:{i*1024} {O.W1FL} lds")
    return out

VW2, S_W2O, S_W2M = 22, 78, 79
def gw2_setup(A):
    w = S_WAVE
    srd(A, S_W2, P_W2, D*F*2)
    A("v_lshrrev_b32 v30, 3, v1")
    A("v_and_b32 v31, 7, v1")
    A("v_bfe_u32 v32, v1, 4, 1")
    A("v_lshlrev_b32 v32, 2, v32")
    A("v_xor_b32 v31, v31, v32")
    A("v_lshlrev_b32 v30, 10, v30")
    A(f"v_lshl_add_u32 v{VW2}, v31, 4, v30")
    A(f"s_and_b32 s{S_T0}, s{S_XCD}, 1")
    A(f"s_lshl_b32 s{S_T0}, s{S_T0}, 3")
    A(f"s_and_b32 s{S_T1}, s{w}, 1")
    A(f"s_add_u32 s{S_T0}, s{S_T0}, s{S_T1}")
    A(f"s_mul_i32 s{S_W2O}, s{S_T0}, {7*16384}")
    A(f"s_mul_i32 s{S_W2M}, s{S_T1}, {7*2048}")
    A(f"s_lshr_b32 s{S_T0}, s{S_J}, 2")
    A(f"s_lshl_b32 s{S_T0}, s{S_T0}, 7")
    A(f"s_add_u32 s{S_W2O}, s{S_W2O}, s{S_T0}")
    A(f"s_lshr_b32 s{S_T0}, s{w}, 1")
    A(f"s_lshl_b32 s{S_T1}, s{S_T0}, 13")
    A(f"s_add_u32 s{S_W2O}, s{S_W2O}, s{S_T1}")
    A(f"s_lshl_b32 s{S_T1}, s{S_T0}, 10")
    A(f"s_add_u32 s{S_W2M}, s{S_W2M}, s{S_T1}")
def gw2_dma(sl):
    out = []
    for k in range(7):
        out += [f"s_add_u32 m0, s{S_W2M}, {sl*32768+4096+k*2048}", f"s_add_u32 s{S_T1}, s{S_W2O}, {(14*sl+k)*16384}",
                f"buffer_load_dwordx4 v{VW2}, s[{S_W2}:{S_W2+3}], s{S_T1} offen {O.W2FL} lds"]
    return out

def g1_main(A, vm, cid):
    vm.wait(cid[0])
    A(f"v_mov_b32 v{GT}, 1"); A(f"ds_write_b32 v{GOWN}, v{GT}")
    lwait(A, GRD, 0, GT + 1, 1, sleep=0)
    for r in g1_reads(0): A(r)
    for c in range(8):
        if O.TSC and c in O.TSC: parts_ts(A, 2 + O.TSC.index(c))
        off = 0 if c + 1 < O.LOOK else 48
        own = 4 <= c + 3 < O.LOOK
        units = [u for u in split_groups(g_chunk_dma(c + 3), 8)] if own else []
        slots = O.DSL
        for s in range(4):
            t = 4 * c + s
            mf = g1_mfmas(t)
            pre = []
            if s == 3:
                if c < 7: lwait(A, GRD, off, GT + 1, c + 2, issued=True, sleep=0)
                else: A("s_waitcnt lgkmcnt(0)")
                pre = [f"v_mov_b32 v{GT}, {c+1}", f"ds_write_b32 v{GOWN}, v{GT} offset:16"]
            elif s == O.ARR and c + 1 < O.LOOK:
                vm.wait(cid[c + 1], "lgkmcnt(0)")
                pre = [f"v_mov_b32 v{GT}, {c+2}", f"ds_write_b32 v{GOWN}, v{GT}"]
            else: A("s_waitcnt lgkmcnt(0)")
            if own and s == 1: lwait(A, GRD, 16, GX, c, issued=True, sleep=0)
            rd = g1_reads(t + 1) if t < 31 else []
            post = [f"ds_read_b32 v{GT+1}, v{GRD} offset:{off}"] if (s == 2 and c < 7) else []
            if own and s == 0: post.append(f"ds_read_b32 v{GX}, v{GRD} offset:16")
            def dm(g):
                if own:
                    for _ in range(slots.count(4 * s + g)):
                        for x in units.pop(0): vm.op(x)
                    if not units: cid[c + 3] = vm.n if c + 3 not in cid else cid[c + 3]
            A(mf[0])
            for x in rd[:3]: A(x)
            dm(0)
            A(mf[1])
            for x in rd[3:]: A(x)
            dm(1)
            A(mf[2])
            for x in pre + post: A(x)
            if c == 0 and O.LOOK >= 4 and O.L3 == "i":
                for x in split_groups(g_chunk_dma(3), 4)[s]: vm.op(x)
                cid[3] = vm.n
            dm(2)
            A(mf[3])
            dm(3)
        assert not units

_g1_reads = g1_reads
def g1_reads(t):
    out = _g1_reads(t)
    if O.HAB:
        c, s_ = divmod(t, 4); lo = ((c % 4) % 2) * 32768
        out[5] = out[5].replace(f"offset:{lo+4096}", f"offset:{lo+8192}")
    return out
def hab_setup(A):
    A(f"s_and_b32 s{S_T0}, s{S_XCD}, 1")
    A(f"s_xor_b32 s{S_T0}, s{S_T0}, 1")
    A(f"s_lshl_b32 s{S_T0}, s{S_T0}, 16")
    A(f"s_xor_b32 s{S_XO}, s{S_XO}, s{S_T0}")
def hab_setup2(A):
    A(f"s_lshr_b32 s{S_T0}, s{S_WAVE}, 1")
    A(f"s_lshl_b32 s{S_T0}, s{S_T0}, 12")
    for k in range(8): A(f"v_subrev_u32 v{G1_XR+k}, s{S_T0}, v{G1_XR+k}")

def g1_fr(lst, t, ns):
    import re
    o = G1_FR + (t % 2) * 16; n = G1_FR + (t % ns) * 16
    def f(m):
        a, b = int(m.group(1)), int(m.group(2))
        if o <= a < o + 16: return f"v[{a-o+n}:{b-o+n}]"
        return m.group(0)
    return [re.sub(r"v\[(\d+):(\d+)\]", f, x) for x in lst]

def lchk(A, vaddr, off, vt, val):
    lab = A.newlabel("LW"); done = A.newlabel("LWD")
    A(f"v_cmp_gt_u32 vcc, {val}, v{vt}")
    A(f"s_cbranch_vccz {done}")
    A.label(lab)
    A(f"ds_read_b32 v{vt}, v{vaddr} offset:{off}")
    A("s_waitcnt lgkmcnt(0)")
    A(f"v_cmp_gt_u32 vcc, {val}, v{vt}")
    A(f"s_cbranch_vccnz {lab}")
    A.label(done)

def g1_main2(A, vm, cid):
    LA = O.LA; NS = LA + 1
    lg = Lg(A); rid = {}
    vm.wait(cid[0])
    A(f"v_mov_b32 v{GT}, 1"); A(f"ds_write_b32 v{GOWN}, v{GT}")
    lwait(A, GRD, 0, GT + 1, 1, sleep=0)
    for t in range(LA):
        for r in g1_fr(g1_reads(t), t, NS): rid[t] = lg.op(r)
    sc = 4 - LA
    for c in range(8):
        if O.TSC and c in O.TSC: parts_ts(A, 2 + O.TSC.index(c))
        off = 0 if c + 1 < O.LOOK else 48
        own = 4 <= c + 3 < O.LOOK
        units = [u for u in split_groups(g_chunk_dma(c + 3), 8)] if own else []
        if O.GW2 and c >= 5 and c - 5 < O.GW2N:
            own = True; units = split_groups(gw2_dma(c - 5), 7) + [[]]
        for s in range(4):
            t = 4 * c + s
            mf = g1_fr(g1_mfmas(t), t, NS)
            need = rid[t]
            if s == sc and c < 7: need = max(need, pid)
            if own and s == 1: need = max(need, did)
            first = []; pre = []
            if s == O.ARR and c + 1 < O.LOOK:
                vm.wait(cid[c + 1])
                first += [f"ds_write_b32 v{GOWN}, v{GT}"]
                A(f"v_mov_b32 v{GT}, {c+2}")
            lg.wait(need)
            if s == sc and c < 7: lchk(A, GRD, off, GT + 1, c + 2)
            if own and s == 1: lchk(A, GRD, 16, GX, c)
            if s == 3: pre = [f"v_mov_b32 v{GT}, {c+1}", f"ds_write_b32 v{GOWN}, v{GT} offset:16"]
            rd = g1_fr(g1_reads(t + LA), t + LA, NS) if t + LA < 32 else []
            def dm(g):
                if own:
                    for _ in range(O.DSL.count(4 * s + g)):
                        for x in units.pop(0): vm.op(x)
                    if not units and c + 3 not in cid: cid[c + 3] = vm.n
            def em(x):
                if x.startswith("ds_"): return lg.op(x)
                A(x)
            sp = O.RSP
            A(mf[0])
            for x in first + pre: em(x)
            if s == sc - 1 and c < 7 and O.PPOS == 0: pid = lg.op(f"ds_read_b32 v{GT+1}, v{GRD} offset:{off}")
            if own and s == 0: did = lg.op(f"ds_read_b32 v{GX}, v{GRD} offset:16")
            for x in rd[:sp[0]]: rid[t + LA] = lg.op(x)
            dm(0)
            A(mf[1])
            for x in rd[sp[0]:sp[1]]: rid[t + LA] = lg.op(x)
            dm(1)
            A(mf[2])
            if s == sc - 1 and c < 7 and O.PPOS == 2: pid = lg.op(f"ds_read_b32 v{GT+1}, v{GRD} offset:{off}")
            for x in rd[sp[1]:sp[2]]: rid[t + LA] = lg.op(x)
            if c == 0 and O.LOOK >= 4 and O.L3 == "i":
                for x in split_groups(g_chunk_dma(3), 4)[s]: vm.op(x)
                cid[3] = vm.n
            dm(2)
            A(mf[3])
            for x in rd[sp[2]:]: rid[t + LA] = lg.op(x)
            dm(3)
        assert not units

def silu_np(A, regs, tmp):
    n = len(regs)
    for i, (s, d) in enumerate(regs):
        for e in range(2): A(f"v_mul_f32 v{tmp+2*i+e}, s{S_CL}, v{s+e}")
    for i in range(2 * n): A(f"v_exp_f32 v{tmp+i}, v{tmp+i}")
    for i in range(2 * n): A(f"v_add_f32 v{tmp+i}, 1.0, v{tmp+i}")
    for i in range(2 * n): A(f"v_rcp_f32 v{tmp+i}, v{tmp+i}")
    for i, (s, d) in enumerate(regs):
        for e in range(2): A(f"v_mul_f32 v{tmp+2*i+e}, v{tmp+2*i+e}, v{s+e}")
    for i, (s, d) in enumerate(regs):
        A(f"v_cvt_pk_bf16_f32 v{d}, v{tmp+2*i}, v{tmp+2*i+1}")

def split_groups(lst, n):
    units = []; cur = []
    for x in lst:
        cur.append(x)
        if x.startswith("buffer_"): units.append(cur); cur = []
    g = [[] for _ in range(n)]
    for i, u in enumerate(units): g[i * n // len(units)] += u
    return g

def g1_epi(A):
    w = S_WAVE
    if O.VERD:
        A(f"v_mov_b32 v{GX}, {L_RDY}")
        A(f"ds_read_b32 v{GT}, v{GX} offset:{L_VERD-L_RDY}")
    A(f"s_lshl_b32 s{S_HO}, s{S_RB}, 2")
    A(f"s_and_b32 s{S_T0}, s{w}, 2")
    A(f"s_add_u32 s{S_HO}, s{S_HO}, s{S_T0}")
    A(f"s_mul_i32 s{S_T1}, s{S_T0}, 7")
    A(f"s_mul_i32 s{S_HO}, s{S_HO}, 112")
    A(f"s_lshl_b32 s{S_T0}, s{S_CB}, 3")
    A(f"s_add_u32 s{S_HO}, s{S_HO}, s{S_T0}")
    A(f"s_and_b32 s{S_T0}, s{w}, 1")
    A(f"s_add_u32 s{S_T1}, s{S_T1}, s{S_T0}")
    A(f"s_lshl_b32 s{S_T0}, s{S_T0}, 2")
    A(f"s_add_u32 s{S_HO}, s{S_HO}, s{S_T0}")
    A(f"s_lshr_b32 s{S_T0}, s{S_J}, 2")
    A(f"s_lshl_b32 s{S_T0}, s{S_T0}, 1")
    A(f"s_add_u32 s{S_T1}, s{S_T1}, s{S_T0}")
    A(f"s_lshl_b32 s{S_T1}, s{S_T1}, {O.HFS}")
    A(f"s_add_u32 s{S_HF}, s{S_HF}, s{S_T1}")
    A(f"s_lshl_b32 s{S_HO}, s{S_HO}, 10")
    A(f"s_add_u32 s{S_XO}, s{S_HO}, {112*1024}")
    if O.HAB:
        A(f"s_lshr_b32 s{S_T0}, s{w}, 1")
        A(f"s_mul_i32 s{S_T0}, s{S_T0}, {112*1024}")
        A(f"s_sub_u32 s{S_XO}, s{S_HO}, s{S_T0}")
        A(f"s_and_b32 s{S_T0}, s{S_XCD}, 1")
        A(f"s_mul_i32 s{S_T0}, s{S_T0}, {224*1024}")
        A(f"s_add_u32 s{S_HO}, s{S_XO}, {224*1024}")
        A(f"s_sub_u32 s{S_HO}, s{S_HO}, s{S_T0}")
        A(f"s_add_u32 s{S_XO}, s{S_XO}, s{S_T0}")
        token_get(A, GX, VTOK)
    st = []
    p = 0
    for a, b in ([(0,0),(1,0),(0,1),(1,1)] if O.HAB else [(0,0),(0,1),(1,0),(1,1)]):
        if True:
            acc = G1_ACC + (2*a+b)*16
            for fh in range(2):
                dst = G1_FR + p * 4
                (silu_np if O.NOPK else silu_pairs)(A, [(acc + 8*fh + 2*i, dst + i) for i in range(4)], STMP)
                so = S_HO if b == 0 else S_XO
                st.append(f"buffer_store_dwordx4 {vr(dst,4)}, v{HV}, s[{S_WS}:{S_WS+3}], s{so} offen offset:{(2*a+fh)*1024}")
                if O.HAB and p == O.FA:
                    A(f"s_waitcnt vmcnt({p-4})")
                    flag_store(A, S_HF, GT, VTOK, O.HST)
                    tsg(A, 3, "h")
                    A(f"s_add_u32 s{S_HF}, s{S_HF}, {F_P-F_H}")
                A(st[-1] + " " + O.HST)
                p += 1
    tsg(A, 5, "e")
    if O.GW2:
        token_get(A, GX, VTOK)
        lwait(A, GRD, 16, GT, 8, sleep=0)
        n = 0
        if O.W2AF == 0:
            for sl in range(O.GW2N, 4):
                for x in gw2_dma(sl): A(x)
                n += 7
        A(f"s_waitcnt vmcnt({n})")
        flag_store(A, S_HF, GT, VTOK, O.HST)
        if O.W2AF == 1:
            for sl in range(O.GW2N, 4):
                for x in gw2_dma(sl): A(x)
        return
    if not O.VERD:
        if not O.HAB: token_get(A, GX, VTOK)
        if O.FK and O.YP == 2:
            A(f"ds_read_b32 v{GT}, v{GRD} offset:48")
            A("s_waitcnt lgkmcnt(0)")
            A(f"v_cmp_gt_u32 vcc, 12, v{GT}")
            A("s_cbranch_vccnz G_NX")
            fk_x(A, True)
            A(f"s_waitcnt vmcnt({2*O.YA})")
            flag_store(A, S_HF, GT, VTOK, O.HST)
            tsg(A, 3, "ae")
            if O.YA == 0: A(f"s_setprio {O.YPRIO}")
            A("s_branch K_GY")
            A.label("G_NX")
        if O.FK and O.YP == 0:
            lwait(A, GRD, 48, GT, 12)
            fk_x(A)
            A("s_waitcnt vmcnt(28)")
            flag_store(A, S_HF, GT, VTOK, O.HST)
            A("s_branch K_G3")
            return
        A("s_waitcnt vmcnt(0)")
        flag_store(A, S_HF, GT, VTOK, O.HST)
        return
    lwait(A, GX, L_VERD - L_RDY, GT, 1, issued=True)
    A(f"ds_read_b64 {vr(VTOK,2)}, v{GX}")
    A(f"v_cmp_eq_u32 vcc, {1 if not O.SLOW else 7}, v{GT}")
    A("s_waitcnt vmcnt(0) lgkmcnt(0)")
    A("s_cbranch_vccz G_SLOW")
    flag_store(A, S_HF, GT, VTOK, O.HST)
    A("s_branch G_FD")
    A.label("G_SLOW")
    for x in st: A(x + " sc1")
    A("s_waitcnt vmcnt(0)")
    flag_store(A, S_HF, GT, VTOK)
    A.label("G_FD")

def g2_main(A):
    vm = Vm(A); lg = Lg(A)
    hid = {}; wid = {}
    assert HR0 + 4 * O.DEPTH <= 256 and AF + 8 * O.NA <= PK
    sched = {}; free = [HR0 + 4 * k for k in range(O.DEPTH)]; nx = 0
    for stp in range(0, 56):
        if stp >= 1: free.append(HQ[stp - 1])
        if O.XQ and stp == O.XQ[0]: free += [2 + 4 * k for k in range(8)]
        if O.XQ and stp == O.XQ[1]: free += [ACCA + 4 * k for k in range(8)]
        sched[stp] = []
        while nx < 56 and free and len(sched[stp]) < (O.DEPTH if stp == 0 else O.XR):
            HQ[nx] = free.pop(0); sched[stp].append(nx); nx += 1; lasts = stp
    for i in sched[0]:
        for x in h_load(i): vm.op(x)
        hid[i] = vm.n
    for i in range(O.PFD): wid[i] = 0
    if O.FK:
        assert HR0 + 4 * O.DEPTH <= 224
        for i in range(56): wid[i] = 0
    send = []
    for t in range(2):
        for hf in range(2):
            pk = ACCA+16*t+8*hf if O.FK else PK+8*t+4*hf
            send += [f"v_cvt_pk_bf16_f32 v{pk+k}, v{ACCA+16*t+8*hf+2*k}, v{ACCA+16*t+8*hf+2*k+1}" for k in range(4)]
            send.append(f"ds_write_b128 v{RW}, {vr(pk,4)} offset:{2048*t+1024*hf}")
    MD = 1 if O.MID else 0
    yq = []; yid = {}
    for r in range(O.YN, 14):
        yq.append([f"s_add_u32 m0, s83, {4096+r*2048}", f"s_add_u32 s68, s82, {(14+r)*16384}", f"buffer_load_dwordx4 v26, s[{S_W2}:{S_W2+3}], s68 offen lds"])
        yq.append([f"buffer_load_dwordx4 v27, s[{S_W2}:{S_W2+3}], s68 offen offset:1024 lds  ; y{r}"])
    if O.F32: send = [f"ds_write_b128 v{RW}, {vr(ACCA+4*q,4)} offset:{1024*q}" for q in (4, 5, 6, 7, 0, 1, 2, 3)]
    XO = 8192 if O.F32 else 0
    send += [f"v_mov_b32 v{GT+1}, {9+MD}", f"ds_write_b32 v{GOWN}, v{GT+1} offset:16"]
    if O.TS and O.TSG == "a" and not O.TSC: send.append(f"s_memtime s[{S_TS+10}:{S_TS+11}]")
    st = O.ST
    PR = 224
    pld = [f"buffer_load_dwordx4 {vr(PR+4*q,4)}, v{HV}, s[{S_WS}:{S_WS+3}], s{S_PO} offen offset:{1024*q} sc1" for q in range(4)]
    AL, GL_, VA0, SA0, SG0 = 240, 36, 38, 64, 68
    ald = []
    if O.TL3:
        A(f"s_lshr_b32 s{SG0}, s{S_OO}, 15")
        A(f"s_lshl_b32 s{SG0}, s{SG0}, 8")
        A(f"s_bfe_u32 s{SA0}, s{S_OO}, 0x40006")
        A(f"s_lshl_b32 s{SA0}, s{SA0}, 18")
        A(f"s_add_u32 s{SA0}, s{SA0}, s{SG0}")
        A(f"s_add_u32 s{SA0}, s{SA0}, {WS_A2}")
        A(f"s_add_u32 s{SG0}, s{SG0}, {WS_G}")
        for q in range(1, 4): A(f"s_add_u32 s{SA0+q}, s{SA0}, {q*65536}")
        A(f"v_and_b32 v{VA0+2}, 31, v1")
        A(f"v_lshlrev_b32 v{VA0+2}, 3, v{VA0+2}")
        A(f"v_lshrrev_b32 v{VA0}, 5, v1")
        A(f"v_lshl_add_u32 v{VA0}, v{VA0}, 15, v{VA0+2}")
        A(f"v_add_u32 v{VA0+1}, 16384, v{VA0}")
        ald = [f"buffer_load_dwordx2 {vr(GL_,2)}, v{VA0+2}, s[{S_WS}:{S_WS+3}], s{SG0} offen sc1"]
        ald += [f"buffer_load_dwordx2 {vr(AL+4*q+2*e,2)}, v{VA0+e}, s[{S_WS}:{S_WS+3}], s{SA0+q} offen sc1" for q in range(4) for e in range(2)]
    if O.TL2 or O.TL3:
        assert HR0 + 4 * O.DEPTH <= PR and O.PSTEP > lasts
        A(f"s_xor_b32 s{S_PO}, s2, 1")
        A(f"s_lshl_b32 s{S_PO}, s{S_PO}, 2")
        A(f"s_add_u32 s{S_PO}, s{S_PO}, s{S_WAVE}")
        A(f"s_lshl_b32 s{S_PO}, s{S_PO}, 12")
        A(f"s_add_u32 s{S_PO}, s{S_PO}, {WS_P}")
    for i in range(56):
        if O.TS and O.TSG == "s" and i in st: parts_ts(A, 2 + st.index(i))
        k = min(lg.n - wid[i], 15)
        need_l = wid[i] > lg.done
        if need_l: lg.done = lg.n - k
        vm.wait(hid[i], f"lgkmcnt({k})" if need_l else "")
        if O.HAB and 28 in sched[i]:
            vm.wait(bid)
            A(f"v_cmp_ne_u32 vcc, v{VTOK}, v{GT}")
            A("s_cbranch_vccz G_BD")
            poll(A, FVB, GT, VTOK, "PB", slp=O.HSLP)
            A.label("G_BD")
        fr = AF + 8 * (i % O.NA); hr = HQ[i]
        acc0 = ACCA if i < 28 else ACCB
        if O.FK: fr = XR[i % 14]; acc0 = ACCB if (i // 14) % 2 else ACCA
        g = [[], []]
        rdn = (28 <= i + O.PFD < 42) if O.FK else (i + O.PFD < 56)
        SB = 43 if O.FK else 29
        if rdn:
            rd = w2_read(i + O.PFD); g[0] += rd[:2]; g[1] += rd[2:]
        own = {}
        for q, nl in enumerate(sched[i] if i else []):
            hl = h_load(nl); own[hl[-1]] = nl
            g[min(q, 1)] += hl
        if i >= SB:
            for gi in range(2):
                for _ in range(O.SPG):
                    if send and not (O.XQ and O.XF and send[0].startswith("ds_write_b32") and (i, gi) < (lasts, 1)): g[gi].append(send.pop(0))
        if O.FK and i >= O.YS:
            for gi in range(O.YR):
                if yq: g[1 if O.YR == 1 else gi] += yq.pop(0)
        if O.FK and rdn and (i + O.PFD - 28) >= O.YN: assert yid[i + O.PFD - 28] <= vm.done, (i, yid, vm.done)
        if O.MID and i == O.MID:
            g[0].append(f"v_mov_b32 v{GT+1}, 9"); g[1].append(f"ds_write_b32 v{GOWN}, v{GT+1} offset:16")
        if (O.TL2 or O.TL3) and i == O.PSTEP:
            g[1] += pld
        if O.TL3 and O.ASTEP <= i:
            q = i - O.ASTEP
            if O.APS == 3: g[0] += ald[3*q:3*q+2]; g[1] += ald[3*q+2:3*q+3]
            else: g[1] += ald[q:q+1]
        for m, t in enumerate((1, 0)):
            acc = acc0 + 16 * t
            c = "0" if (i in (0, 14) if O.FK else i % 28 == 0) else vr(acc, 16)
            A(f"v_mfma_f32_32x32x16_bf16 {vr(acc,16)}, {vr(fr+4*t,4)}, {vr(hr,4)}, {c}" if "m" not in O.X2 else "s_nop 0")
            if i == SB and m == 0: A("s_nop 1")
            for x in g[m]:
                if x.startswith("ds_"): lg.op(x)
                else:
                    vm.op(x)
                    if x in own: hid[own[x]] = vm.n
                    if "; y" in x: yid[int(x.split("; y")[1])] = vm.n
        if O.HAB and i == O.BS: bid = vm.op(f"buffer_load_dword v{GT}, v{FVB}, s[{S_WS}:{S_WS+3}], 0 offen sc1")
        if rdn: wid[i + O.PFD] = lg.n
    T, R, GM = 2, 18, 34
    if not O.F32: A(f"ds_read_b32 v{GT+1}, v{GRD} offset:32")
    A(f"v_mov_b32 v{GT}, {10+MD}")
    A(f"v_xor_b32 v{GX}, 8, v{GOWN}")
    A(f"s_lshl_b32 s{S_T0}, s{S_WAVE}, 8")
    A(f"s_add_u32 s{S_T0}, s{S_T0}, {L_T+16384}")
    A(f"v_lshl_add_u32 v{GM+1}, v1, 2, s{S_T0}")
    if O.F32: A("s_nop 6")
    else: lwait(A, GRD, 32, GT + 1, 50, issued=True)
    A("s_nop 1")
    for q in range(4):
        A(f"ds_write_b128 v{RW}, {vr(ACCB+16+4*q,4)} offset:{XO+q*1024}")
    A(f"ds_write_b32 v{GOWN}, v{GT} offset:16")
    if O.TL3:
        if O.PSTEP >= 56:
            for x in pld: A(x)
        tsg(A, 2, "f")
        lwait(A, GX, 16, GT + 1, 10, sleep=0)
        for q in range(4):
            A(f"ds_read_b128 {vr(R+4*q,4)}, v{RX} offset:{q*1024}")
        A(f"s_mov_b32 s{S_SPIN}, {O.SPIN}")
        def chk(name, tg, lds_, first):
            A(f"s_waitcnt vmcnt({first})")
            A.label(name + "L")
            acc = None
            tg = list(tg)
            if len(tg) % 2: A(f"v_xor_b32 v{GM}, v{VTOK}, v{tg.pop()}"); acc = GM
            for k in range(0, len(tg), 2):
                A(f"v_xor_b32 v{44+(k&2)}, v{VTOK}, v{tg[k]}")
                A(f"v_xor_b32 v{45+(k&2)}, v{VTOK}, v{tg[k+1]}")
                if acc: A(f"v_or3_b32 v{GM}, v{GM}, v{44+(k&2)}, v{45+(k&2)}")
                else: A(f"v_or_b32 v{GM}, v{44+(k&2)}, v{45+(k&2)}"); acc = GM
            A(f"v_cmp_ne_u32 vcc, 0, v{GM}")
            A(f"s_cbranch_vccz {name}D")
            for x in lds_: A(x)
            A(f"s_sub_u32 s{S_SPIN}, s{S_SPIN}, 1")
            A("s_waitcnt vmcnt(0)")
            A(f"s_cbranch_scc0 {name}L")
            A.label(name + "D")
        assert O.PSTEP >= O.ASTEP + 9 // O.APS
        chk("G_A", [AL + 1 + 2 * k for k in range(8)] + [GL_ + 1], ald, 4)
        for k in range(8):
            A(f"v_and_b32 v{AL+2*k+1}, 0xffff0000, v{AL+2*k}")
            A(f"v_lshlrev_b32 v{AL+2*k}, 16, v{AL+2*k}")
        for k in range(8):
            A(f"v_pk_mul_f32 {vr(T+2*k,2)}, {vr(AL+2*k,2)}, {vr(GL_,2)} op_sel:[0,0] op_sel_hi:[1,0]")
        A(f"v_sub_f32 v{GL_}, 1.0, v{GL_}")
        A(f"v_cvt_pk_bf16_f32 v{GL_}, v{GL_}, v{GL_}")
        A(f"v_lshlrev_b32 v{GL_}, 16, v{GL_}")
        A("s_waitcnt lgkmcnt(0)")
        for k in range(8):
            A(f"v_pk_add_f32 {vr(ACCB+2*k,2)}, {vr(ACCB+2*k,2)}, {vr(R+2*k,2)}")
        for k in range(8):
            A(f"v_pk_fma_f32 {vr(T+2*k,2)}, {vr(ACCB+2*k,2)}, {vr(GL_,2)}, {vr(T+2*k,2)} op_sel:[0,0,0] op_sel_hi:[1,0,1]")
        tsg(A, 3, "f")
        chk("G_P", [PR + 1 + 2 * k for k in range(8)], pld, 0)
        tsg(A, 4, "f")
        for k in range(8):
            A(f"v_and_b32 v{PR+2*k+1}, 0xffff0000, v{PR+2*k}")
            A(f"v_lshlrev_b32 v{PR+2*k}, 16, v{PR+2*k}")
        for k in range(8):
            A(f"v_pk_fma_f32 {vr(T+2*k,2)}, {vr(PR+2*k,2)}, {vr(GL_,2)}, {vr(T+2*k,2)} op_sel:[0,0,0] op_sel_hi:[1,0,1]")
        g2_out(A, T)
        tsg(A, 5, "f")
        return
    if O.TL2:
        if O.PSTEP >= 56:
            for x in pld: A(x)
        tsg(A, 2, "f")
        lwait(A, GX, 16, GT + 1, 10, sleep=0)
        for q in range(4):
            A(f"ds_read_b128 {vr(R+4*q,4)}, v{RX} offset:{q*1024}")
        A(f"ds_read_b32 v{GT+1}, v{GOWN} offset:32")
        for q in range(4):
            A(f"s_waitcnt lgkmcnt({4-q})")
            for k in (2*q, 2*q+1):
                A(f"v_pk_add_f32 {vr(ACCB+2*k,2)}, {vr(ACCB+2*k,2)}, {vr(R+2*k,2)}")
        lwait(A, GOWN, 32, GT + 1, 100, issued=True)
        tsg(A, 3, "f")
        A(f"ds_read_b32 v{GM}, v{GM+1}")
        for q in range(4):
            A(f"ds_read_b128 {vr(T+4*q,4)}, v{TV} offset:{q*1024}")
        A(f"s_mov_b32 s{S_SPIN}, {O.SPIN}")
        A.label("G_PL")
        A("s_waitcnt vmcnt(0)")
        for k in range(4):
            A(f"v_xor_b32 v{R+k}, v{VTOK}, v{PR+1+4*k}")
            A(f"v_xor_b32 v{R+4+k}, v{VTOK}, v{PR+3+4*k}")
        A(f"v_or3_b32 v{R}, v{R}, v{R+1}, v{R+2}")
        A(f"v_or3_b32 v{R+3}, v{R+3}, v{R+4}, v{R+5}")
        A(f"v_or3_b32 v{R}, v{R}, v{R+6}, v{R+7}")
        A(f"v_or_b32 v{R}, v{R}, v{R+3}")
        A(f"v_cmp_ne_u32 vcc, 0, v{R}")
        A("s_cbranch_vccz G_PD")
        for x in pld: A(x)
        A(f"s_sub_u32 s{S_SPIN}, s{S_SPIN}, 1")
        A("s_cbranch_scc0 G_PL")
        A("s_waitcnt vmcnt(0)")
        A.label("G_PD")
        tsg(A, 4, "f")
        for k in range(8):
            A(f"v_and_b32 v{PR+2*k+1}, 0xffff0000, v{PR+2*k}")
            A(f"v_lshlrev_b32 v{PR+2*k}, 16, v{PR+2*k}")
        for k in range(8):
            A(f"v_pk_add_f32 {vr(ACCB+2*k,2)}, {vr(ACCB+2*k,2)}, {vr(PR+2*k,2)}")
        A("s_waitcnt lgkmcnt(0)")
        for k in range(8):
            A(f"v_pk_fma_f32 {vr(T+2*k,2)}, {vr(ACCB+2*k,2)}, {vr(GM,2)}, {vr(T+2*k,2)} op_sel:[0,0,0] op_sel_hi:[1,0,1]")
        g2_out(A, T)
        tsg(A, 5, "f")
        return
    if O.TR2:
        lwait(A, GX, 16, GT + 1, 10 + MD, sleep=0)
        for q in range(4):
            A(f"ds_read_b128 {vr(R+4*q,4)}, v{RX} offset:{XO+q*1024}")
        A(f"ds_read_b32 v{GT+1}, v{GOWN} offset:32")
        for q in range(4):
            A(f"s_waitcnt lgkmcnt({4-q})")
            for k in (2*q, 2*q+1):
                A(f"v_pk_add_f32 {vr(ACCB+2*k,2)}, {vr(ACCB+2*k,2)}, {vr(R+2*k,2)}")
        lwait(A, GOWN, 32, GT + 1, 100, issued=True, sleep=0)
        A(f"ds_read_b32 v{GM}, v{GM+1}")
        for q in range(4):
            A(f"ds_read_b128 {vr(T+4*q,4)}, v{TV} offset:{q*1024}")
        for q in range(4):
            A(f"s_waitcnt lgkmcnt({3-q})")
            for k in (2*q, 2*q+1):
                A(f"v_pk_fma_f32 {vr(T+2*k,2)}, {vr(ACCB+2*k,2)}, {vr(GM,2)}, {vr(T+2*k,2)} op_sel:[0,0,0] op_sel_hi:[1,0,1]")
        g2_out(A, T)
        return
    lwait(A, GOWN, 32, GT + 1, 100)
    A(f"ds_read_b32 v{GM}, v{GM+1}")
    for q in range(4):
        A(f"ds_read_b128 {vr(T+4*q,4)}, v{TV} offset:{q*1024}")
    lwait(A, GX, 16, GT + 1, 10 + MD, sleep=0)
    for q in range(4):
        A(f"ds_read_b128 {vr(R+4*q,4)}, v{RX} offset:{q*1024}")
    for k in range(8):
        A(f"v_pk_fma_f32 {vr(T+2*k,2)}, {vr(ACCB+2*k,2)}, {vr(GM,2)}, {vr(T+2*k,2)} op_sel:[0,0,0] op_sel_hi:[1,0,1]")
    for q in range(4):
        A(f"s_waitcnt lgkmcnt({3-q})")
        for k in (2*q, 2*q+1):
            A(f"v_pk_fma_f32 {vr(T+2*k,2)}, {vr(R+2*k,2)}, {vr(GM,2)}, {vr(T+2*k,2)} op_sel:[0,0,0] op_sel_hi:[1,0,1]")
    g2_out(A, T)
def g2_out(A, T):
    for k in range(8):
        A(f"v_cvt_pk_bf16_f32 v{PK+k}, v{T+2*k}, v{T+2*k+1}")
    A("s_nop 1")
    for h in range(2):
        A(f"v_permlane32_swap_b32 v{PK+4*h}, v{PK+4*h+2}")
        A(f"v_permlane32_swap_b32 v{PK+4*h+1}, v{PK+4*h+3}")
    A("s_nop 1")
    for h in range(2):
        A(f"buffer_store_dwordx4 {vr(PK+4*h,4)}, v{OV}, s[{S_OUT}:{S_OUT+3}], s{S_OO} offen offset:{32*h}")

def idle_tr_issue(A):
    A("v_lshrrev_b32 v8, 3, v1")
    A("v_and_b32 v9, 7, v1")
    A("v_lshlrev_b32 v10, 10, v8")
    A("v_lshl_add_u32 v10, v9, 4, v10")
    A(f"s_sub_u32 s64, s{S_J}, 28")
    A(f"s_lshl_b32 s64, s64, 2")
    A(f"s_add_u32 s64, s64, s{S_WAVE}")
    if O.UOWN:
        A(f"s_and_b32 s33, s64, 1")
        A(f"s_lshl_b32 s{S_T1}, s{S_XCD}, 1")
        A(f"s_add_u32 s33, s33, s{S_T1}")
        A(f"s_lshr_b32 s34, s64, 1")
    else:
        A(f"s_mov_b32 s33, s64")
        A(f"s_mov_b32 s34, s{S_XCD}")
    A(f"s_lshl_b32 s65, s33, 17")
    A(f"s_lshl_b32 s{S_T1}, s34, 7")
    A(f"s_add_u32 s65, s65, s{S_T1}")
    A(f"s_lshl_b32 s66, s{S_WAVE}, 15")
def idle_tr_dma(A):
    for i in range(16):
        A(f"s_add_u32 m0, s66, {i*1024}")
        A(f"s_add_u32 s{S_T1}, s65, {i*8192}")
        A(f"buffer_load_dwordx4 v10, s[{S_X}:{S_X+3}], s{S_T1} offen {O.UFL} lds")
def w2_touch(A, qs, dst):
    for q in qs:
        if O.FK:
            A(f"s_add_u32 s{S_T1}, s{S_XCD}, {q}")
            A(f"s_and_b32 s{S_T1}, s{S_T1}, 3")
            A(f"s_mul_i32 s{S_T1}, s{S_T1}, {2*229376}")
            if q < 4: A(f"s_add_u32 s{S_T1}, s{S_T1}, 229376")
            for i in range(2):
                A(f"buffer_load_dword v{dst}, v{24+i}, s[{S_W2}:{S_W2+3}], s{S_T1} offen {O.PFL2}")
            continue
        A(f"s_lshr_b32 s{S_T1}, s{S_XCD}, 1")
        A(f"s_add_u32 s{S_T1}, s{S_T1}, {q}")
        A(f"s_and_b32 s{S_T1}, s{S_T1}, 3")
        A(f"s_and_b32 s{S_T0}, s{S_XCD}, 1")
        A(f"s_lshl_b32 s{S_T0}, s{S_T0}, 2")
        A(f"s_add_u32 s{S_T1}, s{S_T1}, s{S_T0}")
        A(f"s_mul_i32 s{S_T1}, s{S_T1}, 229376")
        for i in range(2):
            A(f"buffer_load_dword v{dst}, v{24+i}, s[{S_W2}:{S_W2+3}], s{S_T1} offen {O.PFL2}")
def w2_touch_setup(A):
    A("s_mul_i32 s67, s64, 112")
    A("v_add_u32 v24, s67, v1")
    A("v_min_u32 v25, 47, v1")
    A("v_add3_u32 v25, v25, s67, 64")
    A("v_lshlrev_b32 v24, 7, v24")
    A("v_lshlrev_b32 v25, 7, v25")
def idle_tr_finish(A, extra=0):
    R = 128
    A("v_lshrrev_b32 v11, 4, v1")
    A("v_bfe_u32 v12, v1, 2, 2")
    A("v_lshl_add_u32 v12, v11, 3, v12")
    A("v_lshlrev_b32 v12, 7, v12")
    A("v_and_b32 v13, 3, v1")
    A("v_lshl_add_u32 v12, v13, 3, v12")
    A(f"v_add_u32 v12, s66, v12")
    A("v_bfe_u32 v13, v1, 1, 3")
    A("v_lshlrev_b32 v13, 13, v13")
    A("v_and_b32 v14, 1, v1")
    A("v_lshl_add_u32 v13, v14, 6, v13")
    A("v_lshl_add_u32 v16, v11, 4, v13")
    A(f"s_lshl_b32 s67, s34, 18")
    A(f"s_lshl_b32 s{S_T1}, s33, 9")
    A(f"s_add_u32 s67, s67, s{S_T1}")
    A(f"s_add_u32 s67, s67, {WS_UT}")
    for p in range(4):
        Rk = R + 16 * p
        A(f"s_waitcnt vmcnt({12+extra})")
        for a in range(4):
            for x in range(2):
                A(f"ds_read_b64_tr_b16 {vr(Rk+4*a+2*x,2)}, v12 offset:{p*4096+x*512+a*32}")
        for a in range(4):
            A(f"s_waitcnt lgkmcnt({6-2*a})")
            A(f"s_add_u32 s{S_T1}, s67, {a*65536}")
            A(f"buffer_store_dwordx4 {vr(Rk+4*a,4)}, v16, s[{S_WS}:{S_WS+3}], s{S_T1} offen offset:{p*128} sc1")
def ut2(A, part=None):
    R = 128
    if part == 1:
        for i in range(8):
            A(f"s_waitcnt vmcnt({7-i})")
            A(f"ds_write_b128 v16, {vr(R+4*i,4)} offset:{i*512}")
        return
    A(f"s_lshl_b32 s{Q_T0}, s{Q_PAIR}, 13")
    A(f"s_add_u32 s{Q_T0}, s{Q_T0}, {WS_UT}")
    A(f"s_add_u32 s{Q_T1}, s{Q_T0}, 4096")
    A("v_lshlrev_b32 v16, 4, v1")
    for i in range(8):
        A(f"buffer_load_dwordx4 {vr(R+4*i,4)}, v16, s[{S_WS}:{S_WS+3}], s{Q_T0+i//4} offen offset:{(i%4)*1024} sc1")
    A("v_bfe_u32 v16, v1, 2, 1")
    A(f"v_mul_u32_u24 v16, {U_STRIDE}, v16")
    A("v_lshrrev_b32 v17, 3, v1")
    A("v_lshl_add_u32 v16, v17, 6, v16")
    A("v_and_b32 v17, 3, v1")
    A("v_lshl_add_u32 v16, v17, 4, v16")
    A(f"v_add_u32 v16, {LDS_U+64}, v16")
    if part == 0: return
    for i in range(8):
        A(f"s_waitcnt vmcnt({7-i})")
        A(f"ds_write_b128 v16, {vr(R+4*i,4)} offset:{i*512}")
def idle_gate_issue(A):
    R = 64
    A(f"global_load_dwordx4 {vr(44,4)}, v{HV}, s[{P_GW}:{P_GW+1}]")
    A(f"s_lshl_b32 s68, s{S_XCD}, 4")
    A(f"s_add_u32 s68, s68, s64")
    A(f"s_lshl_b32 s65, s68, 14")
    for i in range(16):
        if i % 4 == 0: A(f"s_add_u32 s{S_T1}, s65, {i*1024}")
        A(f"buffer_load_dwordx4 {vr(R+4*i,4)}, v{HV}, s[{S_X}:{S_X+3}], s{S_T1} offen offset:{(i%4)*1024}")
def idle_gate_finish(A, extra=0):
    R = 64; S = 2
    A(f"s_waitcnt vmcnt({extra})")
    for k in range(4):
        for i in range(16):
            c = "0" if k == 0 else f"v{S+i}"
            A(f"v_dot2_f32_bf16 v{S+i}, v{R+4*i+k}, v{44+k}, {c}")
    for sh in ("row_shr:1", "row_shr:2", "row_shr:4", "row_shr:8"):
        for i in range(16):
            A(f"v_add_f32_dpp v{S+i}, v{S+i}, v{S+i} {sh} row_mask:0xf bank_mask:0xf bound_ctrl:1")
    for sh in ("row_bcast:15 row_mask:0xa", "row_bcast:31 row_mask:0xc"):
        for i in range(16):
            A(f"v_add_f32_dpp v{S+i}, v{S+i}, v{S+i} {sh} bank_mask:0xf")
    A("v_mov_b32 v20, 0")
    for h in range(2):
        for i in range(8): A(f"v_readlane_b32 s{38+i}, v{S+8*h+i}, 63")
        A("s_nop 3")
        for i in range(8): A(f"v_writelane_b32 v20, s{38+i}, {8*h+i}")
    A("v_cvt_pk_bf16_f32 v20, v20, v20")
    A("v_lshlrev_b32 v20, 16, v20")
    A("v_mul_f32 v20, 0xbfb8aa3b, v20")
    A("v_exp_f32 v20, v20")
    A("s_nop 0")
    A("v_add_f32 v20, 1.0, v20")
    A("v_rcp_f32 v20, v20")
    A("s_nop 0")
    A("v_cvt_pk_bf16_f32 v22, v20, v20")
    A("v_lshlrev_b32 v22, 16, v22")
    if O.TL3: A(f"v_mov_b32 v23, v{VTOK}")
    else:
        A("v_sub_f32 v23, 1.0, v22")
        A("v_cvt_pk_bf16_f32 v23, v23, v23")
        A("v_lshlrev_b32 v23, 16, v23")
    A("v_lshlrev_b32 v21, 3, v1")
    A(f"s_lshl_b32 s65, s68, 7")
    A(f"s_add_u32 s65, s65, {WS_G}")
    A("s_mov_b64 exec, 0xffff")
    A(f"buffer_store_dwordx2 v[22:23], v21, s[{S_WS}:{S_WS+3}], s65 offen sc1")
    A("s_mov_b64 exec, -1")

LX, LW, L2D, LSA, LGD, LV = 16, 56, 60, 62, 63, 20
K_XO, K_WO, K_M0, K_C0, K_W2, K_M2, K_T0, K_T1 = 76, 77, 78, 79, 80, 81, 82, 83
def loader_setup(A):
    lw = Q_NH
    A(f"s_and_b32 s{K_XO}, s{S_J}, 3")
    A(f"s_and_b32 s{K_T0}, s{S_XCD}, 6")
    A(f"s_lshl_b32 s{K_T0}, s{K_T0}, 1")
    A(f"s_add_u32 s{K_XO}, s{K_XO}, s{K_T0}")
    A(f"s_lshl_b32 s{K_XO}, s{K_XO}, 1")
    A(f"s_add_u32 s{K_XO}, s{K_XO}, s{lw}")
    A(f"s_and_b32 s{K_T0}, s{S_XCD}, 1")
    if O.HAB:
        A(f"s_xor_b32 s{K_XO}, s{K_XO}, s{K_T0}")
        A(f"s_xor_b32 s{K_XO}, s{K_XO}, 1")
    A(f"s_lshl_b32 s{K_XO}, s{K_XO}, 16")
    A(f"s_mul_i32 s{K_WO}, s{K_T0}, 7")
    A(f"s_lshr_b32 s{K_T1}, s{S_J}, 2")
    A(f"s_add_u32 s{K_WO}, s{K_WO}, s{K_T1}")
    A(f"s_lshl_b32 s{K_WO}, s{K_WO}, 8")
    A(f"s_lshl_b32 s{K_W2}, s{K_T1}, 7")
    A(f"s_mul_i32 s{K_T1}, s{lw}, {32*2*F}")
    A(f"s_add_u32 s{K_WO}, s{K_WO}, s{K_T1}")
    A(f"s_lshl_b32 s{K_M0}, s{lw}, 13")
    A(f"s_mul_i32 s{K_T0}, s{K_T0}, {0 if O.FK else 56*16384}")
    A(f"s_add_u32 s{K_W2}, s{K_W2}, s{K_T0}")
    if O.KROT:
        A(f"s_add_u32 s84, s{K_W2}, {28*16384}")
        krot(A, K_T0, 16)
        A(f"s_add_u32 s{K_W2}, s{K_W2}, s{K_T0}")
    A(f"s_mul_i32 s{K_T0}, s{lw}, {7*16384}")
    A(f"s_add_u32 s{K_W2}, s{K_W2}, s{K_T0}")
    A(f"s_mul_i32 s{K_M2}, s{lw}, {7*2048}")
    rot_c0(A, K_C0, K_T0)
    A("v_lshrrev_b32 v34, 3, v1")
    A("v_and_b32 v35, 7, v1")
    A("v_lshrrev_b32 v36, 4, v1")
    A("v_xor_b32 v37, v35, v36")
    A("v_xor_b32 v38, 4, v37")
    A("v_lshlrev_b32 v34, 10, v34")
    A(f"v_lshl_add_u32 v{LX}, v37, 4, v34")
    A(f"v_lshl_add_u32 v{LX+1}, v38, 4, v34")
    A(f"v_add_u32 v{LX+1}, {8192-1024}, v{LX+1}")
    A(f"v_add_u32 v{LX+2}, {2*(8192-1024)}, v{LX}")
    A(f"v_add_u32 v{LX+3}, {2*(8192-1024)}, v{LX+1}")
    A("v_and_b32 v37, 1, v36")
    A("v_lshlrev_b32 v37, 2, v37")
    A("v_xor_b32 v37, v35, v37")
    A(f"v_lshl_add_u32 v{L2D}, v37, 4, v34")
    A(f"v_add_u32 v{L2D+1}, {8192-1024}, v{L2D}")
    A("v_and_b32 v35, 15, v1")
    A("v_lshlrev_b32 v37, 2, v36")
    A("v_xor_b32 v35, v35, v37")
    A(f"v_mul_u32_u24 v37, {2*F}, v36")
    A(f"v_lshl_add_u32 v{LW}, v35, 4, v37")
    for i in range(1, 4):
        A(f"v_add_u32 v{LW+i}, {i*(4*2*F-1024)}, v{LW}")
    A(f"s_lshl_b32 s{K_T0}, s{lw}, 3")
    A(f"s_add_u32 s{K_T0}, s{K_T0}, {L_SL}")
    A(f"s_cmp_eq_u32 s{Q_C}, 1")
    A(f"s_cselect_b32 s{K_T0}, s{K_T0}, {L_DUMMY}")
    A(f"v_mov_b32 v{LSA}, s{K_T0}")
    A(f"v_subrev_u32 v{LGD}, {L_SB-L_GD}, v{S_FRD}")
def l_chunk(A, cc):
    slot = cc % 4
    if "d" in O.X2: return
    A(f"s_add_u32 s{K_T0}, s{K_C0}, {cc}"); A(f"s_and_b32 s{K_T0}, s{K_T0}, 7")
    A(f"s_lshl_b32 s{K_T1}, s{K_T0}, 7"); A(f"s_add_u32 s{K_T1}, s{K_T1}, s{K_XO}")
    A(f"s_mul_i32 s{K_T0}, s{K_T0}, {64*2*F}"); A(f"s_add_u32 s{K_T0}, s{K_T0}, s{K_WO}")
    for q in range(2):
        A(f"s_add_u32 m0, s{K_M0}, {slot*32768+q*4096}")
        if q: A(f"s_add_u32 s{K_T1}, s{K_T1}, 32768")
        else: A("s_nop 0")
        for i in range(4):
            if "x" in O.X2: continue
            A(f"buffer_load_dwordx4 v{LX+i}, s[{S_X}:{S_X+3}], s{K_T1} offen offset:{i*1024} {O.XFL} lds")
        A(f"s_add_u32 m0, s{K_M0}, {slot*32768+16384+q*4096}")
        if q: A(f"s_add_u32 s{K_T0}, s{K_T0}, {16*2*F}")
        else: A("s_nop 0")
        for i in range(4):
            if "w" in O.X2: continue
            A(f"buffer_load_dwordx4 v{LW+i}, s[{S_W1}:{S_W1+3}], s{K_T0} offen offset:{i*1024} {O.W1FL} lds")
def l_pub(A, n, val):
    A(f"v_mov_b32 v{LV}, {val}"); A(f"v_mov_b32 v{LV+1}, {val}")
    A(f"s_waitcnt vmcnt({n})")
    A(f"ds_write_b64 v{LSA}, {vr(LV,2)}")
def loader(A, fin):
    A(f"s_cmp_ge_u32 s{S_J}, 28")
    A("s_cbranch_scc1 S_LW1")
    if O.LOOK == 3: l_chunk(A, 3)
    if O.LOOK == 8:
        A.label("S_LW1")
        fin()
    for c in range(max(4, O.LOOK), 8):
        lwait(A, LGD, 0, 31, c - 3)
        l_chunk(A, c)
        if c > O.LOOK: l_pub(A, 0 if "d" in O.X2 else 8 if ("x" in O.X2 or "w" in O.X2) else 16, c)
        if c == 7 and O.TOUCH:
            A(f"s_lshr_b32 s{K_T0}, s{K_XO}, 16")
            A(f"s_mul_i32 s{K_T0}, s{K_T0}, 224")
            A(f"s_and_b32 s{K_T1}, s{S_XCD}, 1")
            A(f"s_mul_i32 s{K_T1}, s{K_T1}, 56")
            A(f"s_add_u32 s{K_T0}, s{K_T0}, s{K_T1}")
            A(f"s_lshr_b32 s{K_T1}, s{S_J}, 2")
            A(f"s_lshl_b32 s{K_T1}, s{K_T1}, 3")
            A(f"s_add_u32 s{K_T0}, s{K_T0}, s{K_T1}")
            A(f"s_lshl_b32 s{K_T0}, s{K_T0}, 10")
            A(f"v_lshlrev_b32 v{LX}, 7, v1")
            A(f"s_add_u32 s{K_T1}, s{K_T0}, {112*1024}")
            A(f"buffer_load_dword v{LX+1}, v{LX}, s[{S_WS}:{S_WS+3}], s{K_T0} offen {O.TFL}")
            A(f"buffer_load_dword v{LX+2}, v{LX}, s[{S_WS}:{S_WS+3}], s{K_T1} offen {O.TFL}")
        if c == O.LFIN:
            A.label("S_LW1")
            fin()
            A(f"s_cmp_ge_u32 s{S_J}, 28")
            A("s_cbranch_scc1 S_LW2")
    A.label("S_LW2")
    if "v" in O.X2: l_pub(A, 0, 8)
    for s in range(4):
        lwait(A, LGD, 0, 31, 5 + s if "v" not in O.X2 else 8)
        if s == 2 and O.KROT: A(f"s_add_u32 s84, s84, {28*16384}")
        for k in range(7):
            A(f"s_add_u32 m0, s{K_M2}, {s*32768+4096+k*2048}")
            A(f"s_add_u32 s{K_T0}, s{K_W2}, {((28 if O.FK else 14)*s+k)*16384}")
            if O.KROT:
                A(f"s_sub_u32 s{K_T1}, s{K_T0}, {28*16384}")
                A(f"s_cmp_ge_u32 s{K_T0}, s84")
                A(f"s_cselect_b32 s{K_T0}, s{K_T1}, s{K_T0}")
            A(f"buffer_load_dwordx4 v{L2D}, s[{S_W2}:{S_W2+3}], s{K_T0} offen {O.W2FL} lds")
            A(f"buffer_load_dwordx4 v{L2D+1}, s[{S_W2}:{S_W2+3}], s{K_T0} offen offset:1024 {O.W2FL} lds")
        if s == 0: l_pub(A, 16 if O.TOUCH else 14, 8)

TAB2 = LDS_SSM + 17408
S_PASS, S_UOK = 33, 34
U_SO, U_M0, UF, UD = 28, 29, 12, 13
def u_dma(A):
    for i in range(4):
        A(f"s_add_u32 m0, s{U_M0}, {i*1024}")
        A(f"s_add_u32 s{Q_T1}, s{U_SO}, {i*2048}")
        A(f"buffer_load_dwordx4 v{UD}, s[{S_WS}:{S_WS+3}], s{Q_T1} offen sc1 lds")
def u_setup(A):
    A(f"s_lshl_b32 s{Q_T0}, s{S_XCD}, {4+FS}")
    A(f"s_add_u32 s{Q_T0}, s{Q_T0}, {F_UT}")
    A("v_and_b32 v8, 15, v1")
    A(f"v_lshl_add_u32 v{UF}, v8, {FS}, s{Q_T0}")
    A(f"v_lshrrev_b32 v{UD}, 2, v1")
    A(f"v_lshlrev_b32 v{UD}, 3, v{UD}")
    A("v_and_b32 v8, 3, v1")
    A(f"v_add_lshl_u32 v{UD}, v{UD}, v8, 4")
    A(f"s_lshl_b32 s{U_SO}, s{Q_PAIR}, 7")
    A(f"s_add_u32 s{U_SO}, s{U_SO}, s{Q_NH}")
    A(f"s_lshl_b32 s{U_SO}, s{U_SO}, 6")
    A(f"s_add_u32 s{U_SO}, s{U_SO}, {WS_UT}")
    A(f"s_mul_i32 s{U_M0}, s{Q_NH}, {U_STRIDE}")
    A(f"s_add_u32 s{U_M0}, s{U_M0}, {LDS_U+64}")
    A(f"s_mov_b32 s{S_UOK}, 0")
def kgen2(A, later, hookA):
    w = S_WAVE; KC = Q_NH
    VW, VB, VA = 26, 27, 28
    E1, E8, E256, C0, E2, E4 = 128, 130, 132, 134, 136, 138
    LO = 140; E32 = 156; G = 160; CV = 200
    A(f"s_mul_i32 s{Q_TAB}, s{w}, {TAB_STRIDE}")
    A(f"s_add_u32 s{Q_TAB}, s{Q_TAB}, {TAB2}")
    A(f"v_lshl_add_u32 v{VW}, v1, 2, s{Q_TAB}")
    A("v_and_b32 v8, 15, v1")
    A("v_lshrrev_b32 v9, 5, v1")
    A(f"v_lshl_add_u32 v9, v9, 4, s{Q_TAB}")
    A("v_mov_b32 v10, 272")
    A(f"v_mad_u32_u24 v{VB}, v8, v10, v9")
    A("v_and_b32 v11, 7, v1")
    A("v_lshlrev_b32 v11, 2, v11")
    A("v_mov_b32 v12, 0xcbaaa988")
    A("v_lshrrev_b32 v11, v11, v12")
    A("v_and_b32 v11, 15, v11")
    A("v_and_b32 v12, 24, v1")
    A("v_cmp_eq_u32 vcc, 8, v12")
    A(f"s_mov_b32 s{Q_EX}, 0x0000ffff")
    A(f"s_mov_b32 s{Q_EX+1}, 0x0000ffff")
    A(f"s_mov_b32 s{Q_EX+2}, 0xffff0000")
    A(f"s_mov_b32 s{Q_EX+3}, 0xffff0000")
    A("v_cndmask_b32 v11, v8, v11, vcc")
    A(f"v_mad_u32_u24 v{VA}, v11, v10, v9")
    srd(A, S_WS, P_WS, WS_BYTES)
    A(f"v_mov_b32 v{LSA}, {L_DUMMY}")
    for k in range(16): A(f"v_mov_b32 v{KD+k}, 0")
    A(f"s_mov_b32 s{S_PASS}, 16")
    A("s_waitcnt lgkmcnt(0)")
    A(f"s_lshl_b32 s{Q_T0}, s{KC}, 4")
    A(f"s_lshr_b32 s{Q_LDT}, s{Q_LDT}, s{Q_T0}")
    A(f"s_lshl_b32 s{Q_LDT}, s{Q_LDT}, 16")
    A(f"s_lshr_b32 s{Q_DSK}, s{Q_DSK}, s{Q_T0}")
    A(f"s_lshl_b32 s{Q_DSK}, s{Q_DSK}, 16")
    A(f"v_mov_b32 v6, {LOG2E}")
    A(f"v_mul_f32 v7, s{Q_LDT}, v6")
    A("v_exp_f32 v7, v7")
    hookA()
    A("v_cvt_pk_bf16_f32 v7, v7, v7")
    A("v_lshlrev_b32 v7, 16, v7")
    A(f"s_waitcnt vmcnt({later})")
    tss(A, 2, "ak")
    A.label("KG_LOOP")
    for i in range(4): A(f"v_lshlrev_b32 v{2+i}, s{S_PASS}, v{14+i}")
    for i in range(4): A(f"v_and_b32 v{2+i}, 0xffff0000, v{2+i}")
    A("v_mul_f32 v2, v6, v2")
    A("v_exp_f32 v2, v2")
    A("v_add_f32 v8, v7, v7")
    A("v_cvt_pk_bf16_f32 v2, v2, v2")
    A("v_lshlrev_b32 v2, 16, v2")
    A("v_mul_f32 v2, v2, v7")
    A("v_mul_f32 v3, v3, v7")
    A("v_mul_f32 v2, 0xbfb8aa3b, v2")
    A(f"v_mul_f32 v3, {INV2PI}, v3")
    A(f"v_mul_f32 v{C0}, v4, v8")
    A(f"v_mul_f32 v{C0+1}, v5, v8")
    A("v_mul_f32 v10, 0x41000000, v2")
    A("v_mul_f32 v11, 0x41000000, v3")
    A("v_mul_f32 v12, 0x43800000, v2")
    A("v_mul_f32 v13, 0x43800000, v3")
    for r in (11, 3, 13): A(f"v_fract_f32 v{r}, v{r}")
    for (m, f, e) in ((10, 11, E8), (2, 3, E1), (12, 13, E256)):
        A(f"v_exp_f32 v{m}, v{m}")
        A(f"v_cos_f32 v{e}, v{f}")
        A(f"v_sin_f32 v{e+1}, v{f}")
    for (m, e) in ((10, E8), (2, E1), (12, E256)):
        A(f"v_pk_mul_f32 {vr(e,2)}, {vr(e,2)}, {vr(m,2)} op_sel:[0,0] op_sel_hi:[1,0]")
    hook = None
    kgen_tables2(A, hook, VW, VB, VA, E1, E8, E256, C0, E2, E4, LO, E32, G, CV)
    for ks in range(8):
        A(f"s_waitcnt lgkmcnt({7-ks})")
        A(f"v_mfma_f32_32x32x16_bf16 {vr(KD,16)}, {vr(KA+4*ks,4)}, {vr(KB+4*ks,4)}, {vr(KD,16)}")
    A(f"s_cmp_eq_u32 s{S_PASS}, 0")
    A("s_cbranch_scc1 KG_DONE")
    tss(A, 3, "k")
    A(f"s_mov_b32 s{S_PASS}, 0")
    A("s_branch KG_LOOP")
    A.label("KG_DONE")
    tss(A, 4, "k"); tss(A, 3, "a")
    token_get(A, 8, STOK)
    X = 64
    A(f"s_mul_i32 s{Q_T0}, s{KC}, {K_STRIDE}")
    A(f"s_add_u32 s{Q_T0}, s{Q_T0}, {LDS_K}")
    A("v_and_b32 v8, 31, v1")
    A("v_lshrrev_b32 v9, 5, v1")
    A(f"v_lshl_add_u32 v8, v8, 4, s{Q_T0}")
    A(f"v_lshl_add_u32 v10, v1, 3, s{Q_T0}")
    A("v_mov_b32 v12, 0"); A("v_mov_b32 v13, 0")
    A("ds_write_b64 v10, v[12:13]")
    A("v_and_b32 v11, 15, v1")
    A(f"s_mul_i32 s{Q_T0}, s{KC}, {U_STRIDE}")
    A(f"s_add_u32 s{Q_T0}, s{Q_T0}, {LDS_U}")
    A(f"v_lshl_add_u32 v11, v11, 2, s{Q_T0}")
    A("ds_write_b32 v11, v12")
    A("v_cmp_eq_u32 vcc, 0, v1")
    A(f"v_mov_b32 v11, s{Q_DSK}")
    A("v_lshl_add_u32 v14, v9, 3, v8")
    A("v_lshl_add_u32 v15, v9, 9, v8")
    A("v_cndmask_b32 v11, 0, v11, vcc")
    A("v_lshl_add_u32 v16, v9, 10, v8")
    A("s_nop 4")
    A(f"v_add_f32 v{KD}, v{KD}, v11")
    A("v_and_b32 v11, 1, v1")
    A("v_cmp_eq_u32 vcc, 1, v11")
    for k in range(4): A(f"v_cvt_pk_bf16_f32 v{X+k}, v{KD+2*k}, v{KD+2*k+1}")
    a, b, c = KD + 8, KD + 9, KD + 10
    for k, (p, q) in enumerate(((a, a), (a, b), (b, b), (c, c))): A(f"v_cvt_pk_bf16_f32 v{X+4+k}, v{p}, v{q}")
    A(f"ds_write_b64 v14, {vr(X,2)} offset:448")
    A(f"ds_write_b64 v14, {vr(X+2,2)} offset:960")
    A(f"ds_write_b128 v15, {vr(X+4,4)} offset:1472")
    X = 72
    for k in range(2):
        a, b = KD + 12 + 2 * k, KD + 13 + 2 * k
        A(f"v_cndmask_b32 v11, v{a}, v{b}, vcc")
        A(f"v_cvt_pk_bf16_f32 v{X+4*k}, v{a}, v{a}")
        A(f"v_cvt_pk_bf16_f32 v{X+4*k+1}, v{a}, v{a}")
        A(f"v_cvt_pk_bf16_f32 v{X+4*k+2}, v11, v{b}")
        A(f"v_cvt_pk_bf16_f32 v{X+4*k+3}, v{b}, v{b}")
        A(f"ds_write_b128 v16, {vr(X+4*k,4)} offset:{2496+512*k}")

def loader2(A):
    A(f"s_cmp_ge_u32 s{S_J}, 28")
    A("s_cbranch_scc1 S_LW2")
    for c in range(O.LOOK, 8):
        if c >= 4: lwait(A, LGD, 0, 31, c - 3, sleep=O.LSLP)
        l_chunk(A, c)
        if c > O.LOOK: l_pub(A, 16, c)
        if c in (3, 5, 7): tss(A, 2 + (c - 3) // 2, "k")
    A.label("S_LW2")
    u_setup(A)
    token_get(A, 8, STOK)
    for s in range(4):
        lwait(A, LGD, 0, 31, 5 + s, sleep=O.LSLP)
        if s < 3:
            if s: A(f"s_cmp_eq_u32 s{S_UOK}, 1"); A(f"s_cbranch_scc1 S_U{s}")
            A(f"buffer_load_dword v9, v{UF}, s[{S_WS}:{S_WS+3}], 0 offen sc1")
            if s: A.label(f"S_U{s}")
        for k in range(7):
            A(f"s_add_u32 m0, s{K_M2}, {s*32768+4096+k*2048}")
            A(f"s_add_u32 s{K_T0}, s{K_W2}, {(14*s+k)*16384}")
            A(f"buffer_load_dwordx4 v{L2D}, s[{S_W2}:{S_W2+3}], s{K_T0} offen {O.W2FL} lds")
            A(f"buffer_load_dwordx4 v{L2D+1}, s[{S_W2}:{S_W2+3}], s{K_T0} offen offset:1024 {O.W2FL} lds")
        if s == 0: l_pub(A, 15, 8)
        if s < 3:
            if s: A(f"s_cmp_eq_u32 s{S_UOK}, 1"); A(f"s_cbranch_scc1 S_V{s}")
            A("s_waitcnt vmcnt(14)")
            A(f"v_cmp_ne_u32 vcc, v{STOK}, v9")
            A(f"s_cbranch_vccnz S_V{s}")
            u_dma(A)
            A(f"s_mov_b32 s{S_UOK}, 1")
            A.label(f"S_V{s}")
    tss(A, 5, "k")
    A("s_waitcnt vmcnt(14)")
    A(f"s_cmp_eq_u32 s{S_UOK}, 1"); A(f"s_cbranch_scc1 S_CV")
    poll(A, UF, 9, STOK, "PU")
    u_dma(A)
    A("s_waitcnt vmcnt(0)")

def conv_final3(A):
    w = S_WAVE
    A("v_bfe_u32 v8, v1, 3, 1")
    A("v_bfe_u32 v9, v1, 2, 1")
    A("v_and_b32 v10, 3, v1")
    A(f"v_lshl_add_u32 v8, v8, 2, s{w}")
    A("v_lshl_add_u32 v11, v8, 2, v10")
    A("v_lshlrev_b32 v11, 2, v11")
    A("v_lshl_add_u32 v12, v9, 7, v11")
    A("v_mul_u32_u24 v13, 144, v9")
    A("v_add_u32 v13, v13, v11")
    A(f"v_add_u32 v12, {LDS_HEAD}, v12")
    A(f"v_add_u32 v13, {LDS_CARR}, v13")
    A("v_lshl_add_u32 v8, v8, 8, v10")
    A("v_lshl_add_u32 v8, v8, 1, v9")
    A("v_lshlrev_b32 v8, 1, v8")
    A(f"v_add_u32 v8, {LDS_STG}, v8")
    A(f"s_lshl_b32 s{Q_T1}, s{w}, 10")
    A(f"s_add_u32 s{Q_T0}, s{Q_T1}, {LDS_STG}")
    A(f"v_lshl_add_u32 v9, v1, 3, s{Q_T0}")
    A("v_lshlrev_b32 v16, 4, v1")
    A(f"s_lshl_b32 s{Q_T0}, s{Q_PAIR}, 13")
    A(f"s_add_u32 s{Q_T0}, s{Q_T0}, s{Q_T1}")
    A(f"s_lshl_b32 s{Q_T0}, s{Q_T0}, 1")
    A(f"s_add_u32 s{Q_T0}, s{Q_T0}, {WS_A2}")
    A(f"s_add_u32 s{Q_T1}, s{Q_T0}, 8192")
    for k in range(4): A(f"v_mov_b32 v{67+4*k}, v{STOK}")
    s_barrier(A, 3)
    A("ds_read_b32 v12, v12")
    A("ds_read_b32 v13, v13")
    A("s_waitcnt lgkmcnt(0)")
    A("v_add_f32 v12, v12, v13")
    A("v_cvt_pk_bf16_f32 v12, v12, v12")
    A("ds_write_b16 v8, v12")
    for k in range(4): A(f"ds_read_b64 {vr(64+4*k,2)}, v9 offset:{(k//2)*4096+(k%2)*512}")
    for k in range(4):
        A(f"s_waitcnt lgkmcnt({3-k})")
        A(f"v_mov_b32 v{66+4*k}, v{65+4*k}")
        A(f"v_mov_b32 v{65+4*k}, v{STOK}")
        A(f"buffer_store_dwordx4 {vr(64+4*k,4)}, v16, s[{S_WS}:{S_WS+3}], s{Q_T0+k//2} offen offset:{(k%2)*1024} sc1")
def s_tail3(A):
    w = S_WAVE; SO_P = 76
    tss(A, 5, "a"); tss(A, 2, "t")
    A(f"s_lshl_b32 s{Q_T0}, s2, 2")
    A(f"s_add_u32 s{Q_T0}, s{Q_T0}, s{w}")
    A(f"s_lshl_b32 s{SO_P}, s{Q_T0}, 12")
    A(f"s_add_u32 s{SO_P}, s{SO_P}, {WS_P}")
    A(f"s_lshl_b32 s{Q_T0}, s{Q_NH}, 15")
    A(f"s_lshl_b32 s{Q_T1}, s{Q_C}, 11")
    A(f"s_add_u32 s{Q_T0}, s{Q_T0}, s{Q_T1}")
    A(f"v_add_u32 v17, s{Q_T0}, v16")
    A(f"v_xor_b32 v15, {0x10000+2048}, v17")
    A(f"s_lshl_b32 s{Q_T0}, s{Q_NH}, 2")
    A(f"s_add_u32 s{Q_T0}, s{Q_T0}, {L_GD}")
    A("v_and_b32 v5, 1, v1")
    A(f"v_lshl_add_u32 v5, v5, 3, s{Q_T0}")
    for k in range(8): A(f"v_mov_b32 v{97+2*k}, v{STOK}")
    lwait(A, 5, 0, 31, 9, sleep=1 - O.RSLP)
    tss(A, 3, "t")
    X = 112
    for h in range(2):
        A(f"ds_read_b128 {vr(X+4*h,4)}, v17 offset:{1024*h}")
        A(f"ds_read_b128 {vr(X+8+4*h,4)}, v15 offset:{1024*h}")
    A(f"v_mov_b32 v{S_FT}, 50")
    for h in range(2):
        A(f"s_waitcnt lgkmcnt({2-2*h})")
        if h == 1: A(f"ds_write_b32 v{S_FOWN}, v{S_FT}")
        for k in range(4):
            r = X + 4 * h + k
            A(f"v_lshlrev_b32 v80, 16, v{r}")
            A(f"v_lshlrev_b32 v81, 16, v{r+8}")
            A(f"v_and_b32 v82, 0xffff0000, v{r}")
            A(f"v_and_b32 v83, 0xffff0000, v{r+8}")
            A("v_add_f32 v80, v80, v81")
            A("v_add_f32 v82, v82, v83")
            A(f"v_cvt_pk_bf16_f32 v{96+8*h+2*k}, v80, v82")
            if k % 2 == 1:
                q = 2 * h + k // 2
                A(f"buffer_store_dwordx4 {vr(96+4*q,4)}, v16, s[{S_WS}:{S_WS+3}], s{SO_P} offen offset:{1024*q} {O.PST}")
    tss(A, 4, "t")
    A("s_waitcnt lgkmcnt(0)")

def s_tail(A):
    w = S_WAVE
    RT, CT, TT, DB = Q_EX, Q_EX + 1, Q_EX + 2, Q_EX + 3
    PK, AP, G, PP, T = 128, 136, 144, 148, 160
    SO_P, SO_PF, SO_A, SO_O = 76, 77, 78, 79
    A(f"s_lshl_b32 s80, s{Q_PAIR}, {FS}")
    A(f"s_lshl_b32 s{Q_T0}, s{w}, {8+FS}")
    A(f"s_add_u32 s80, s80, s{Q_T0}")
    A(f"s_add_u32 s80, s80, {F_A}")
    A(f"s_and_b32 s{RT}, s{S_XCD}, 6")
    A(f"s_lshl_b32 s{RT}, s{RT}, 1")
    A(f"s_and_b32 s{Q_T0}, s{S_J}, 3")
    A(f"s_add_u32 s{RT}, s{RT}, s{Q_T0}")
    A(f"s_lshl_b32 s{RT}, s{RT}, 1")
    A(f"s_and_b32 s{Q_T0}, s{S_XCD}, 1")
    A(f"s_add_u32 s{RT}, s{RT}, s{Q_T0}")
    A(f"s_lshr_b32 s{CT}, s{S_J}, 2")
    A(f"s_lshl_b32 s{TT}, s{RT}, 1")
    A(f"s_add_u32 s{TT}, s{TT}, s{Q_NH}")
    A(f"s_lshl_b32 s{DB}, s{CT}, 1")
    A(f"s_add_u32 s{DB}, s{DB}, s{Q_C}")
    A(f"s_bfe_u32 s{Q_T0}, s{RT}, 0x20002")
    A(f"s_lshl_b32 s{Q_T0}, s{Q_T0}, {8+FS}")
    A(f"s_lshl_b32 s{Q_T1}, s{DB}, {4+FS}")
    A(f"s_add_u32 s{Q_T0}, s{Q_T0}, s{Q_T1}")
    A(f"s_add_u32 s{Q_T0}, s{Q_T0}, {F_A}")
    A(f"v_lshl_add_u32 v2, v1, {FS}, s{Q_T0}")
    A(f"s_lshl_b32 s{Q_T0}, s{TT}, {1+FS}")
    A(f"s_add_u32 s{Q_T0}, s{Q_T0}, {F_G}")
    A("v_and_b32 v3, 1, v1")
    A(f"v_lshl_add_u32 v3, v3, {FS}, s{Q_T0}")
    A("v_cmp_gt_u32 vcc, 16, v1")
    A("v_and_b32 v10, 31, v1")
    A("v_lshrrev_b32 v11, 5, v1")
    A("v_cndmask_b32 v2, v3, v2, vcc")
    A("v_lshlrev_b32 v4, 14, v11")
    A("v_lshl_add_u32 v12, v10, 2, v4")
    A("v_add_u32 v13, 8192, v12")
    A(f"s_lshl_b32 s{Q_T0}, s{TT}, 8")
    A(f"s_add_u32 s{Q_T0}, s{Q_T0}, {WS_G}")
    A(f"v_lshl_add_u32 v14, v10, 3, s{Q_T0}")
    A(f"s_lshl_b32 s{SO_A}, s{DB}, 17")
    A(f"s_lshl_b32 s{Q_T1}, s{TT}, 7")
    A(f"s_add_u32 s{SO_A}, s{SO_A}, s{Q_T1}")
    A(f"s_add_u32 s{SO_A}, s{SO_A}, {WS_A}")
    A("v_lshlrev_b32 v16, 4, v1")
    A(f"s_lshl_b32 s{Q_T0}, s{w}, 12")
    A(f"s_add_u32 s{Q_T0}, s{Q_T0}, {L_T}")
    A(f"v_add_u32 v18, s{Q_T0}, v16")
    A(f"s_lshl_b32 s{Q_T0}, s{w}, 8")
    A(f"s_add_u32 s{Q_T0}, s{Q_T0}, {L_T+16384}")
    A(f"v_lshl_add_u32 v19, v1, 2, s{Q_T0}")
    A(f"s_lshl_b32 s{Q_T0}, s2, 2")
    A(f"s_add_u32 s{Q_T0}, s{Q_T0}, s{w}")
    A(f"s_lshl_b32 s{SO_P}, s{Q_T0}, 12")
    A(f"s_add_u32 s{SO_P}, s{SO_P}, {WS_P}")
    A(f"s_xor_b32 s{SO_O}, s{SO_P}, {4<<12}")
    if O.FK: A(f"s_xor_b32 s{Q_NH}, s{Q_NH}, 1")
    A(f"s_lshl_b32 s{Q_T0}, s{Q_NH}, 15")
    A(f"s_lshl_b32 s{Q_T1}, s{Q_C}, {12 if O.F32 else 11}")
    A(f"s_add_u32 s{Q_T0}, s{Q_T0}, s{Q_T1}")
    A(f"v_add_u32 v17, s{Q_T0}, v16")
    A(f"v_xor_b32 v15, {0x10000+(4096 if O.F32 else 2048)}, v17")
    A(f"s_lshl_b32 s{Q_T0}, s{Q_NH}, 2")
    A(f"s_add_u32 s{Q_T0}, s{Q_T0}, {L_GD}")
    A("v_and_b32 v5, 1, v1")
    A(f"v_lshl_add_u32 v5, v5, 3, s{Q_T0}")
    for k in range(8): A(f"v_mov_b32 v{97+2*k}, v{STOK}")
    A("s_waitcnt vmcnt(0)")
    flag_store(A, 80, 8, STOK)
    tss(A, 5, "au"); tss(A, 2, "t")
    def ag():
        if O.EPOL:
            A("s_waitcnt vmcnt(4)")
            A(f"v_cmp_ne_u32 vcc, v{STOK}, v9")
            A("s_cbranch_vccz S_EP")
        poll(A, 2, 9, STOK, "PA", slp=O.ASLP if O.FK else None)
        if O.EPOL: A.label("S_EP")
        for q in range(4):
            for i in range(2):
                A(f"buffer_load_dword v{AP+2*q+i}, v{12+i}, s[{S_WS}:{S_WS+3}], s{SO_A} offen sc1")
            if q < 3: A(f"s_add_u32 s{SO_A}, s{SO_A}, 32768")
        A(f"buffer_load_dwordx2 {vr(G,2)}, v14, s[{S_WS}:{S_WS+3}], 0 offen sc1")
    def ag2():
        for k in range(8):
            A(f"v_lshlrev_b32 v{T+2*k}, 16, v{AP+k}")
            A(f"v_and_b32 v{T+2*k+1}, 0xffff0000, v{AP+k}")
        for k in range(16):
            A(f"v_mul_f32 v{T+k}, v{G}, v{T+k}")
        A(f"ds_write_b32 v19, v{G+1}")
    def relay():
        for h in range(2):
            A(f"ds_read_b128 {vr(64+4*h,4)}, v17 offset:{1024*h}")
            A(f"ds_read_b128 {vr(72+4*h,4)}, v15 offset:{1024*h}")
        A(f"v_mov_b32 v{S_FT}, 50")
        for h in range(2):
            A(f"s_waitcnt lgkmcnt({2-2*h})")
            if h == 1: A(f"ds_write_b32 v{S_FOWN}, v{S_FT}")
            for k in range(4):
                r = 64 + 4 * h + k
                A(f"v_lshlrev_b32 v80, 16, v{r}")
                A(f"v_lshlrev_b32 v81, 16, v{r+8}")
                A(f"v_and_b32 v82, 0xffff0000, v{r}")
                A(f"v_and_b32 v83, 0xffff0000, v{r+8}")
                A("v_add_f32 v80, v80, v81")
                A("v_add_f32 v82, v82, v83")
                A(f"v_cvt_pk_bf16_f32 v{96+8*h+2*k}, v80, v82")
                if k % 2 == 1:
                    q = 2 * h + k // 2
                    A(f"buffer_store_dwordx4 {vr(96+4*q,4)}, v16, s[{S_WS}:{S_WS+3}], s{SO_P} offen offset:{1024*q} {O.PST}")
    if O.TL2:
        GOT, REL, POL = 33, 34, 35
        A(f"s_bfe_u32 s{Q_T0}, s{RT}, 0x20002")
        A(f"s_lshl_b32 s{Q_T0}, s{Q_T0}, {8+FS}")
        A(f"s_lshl_b32 s{Q_T1}, s{CT}, {5+FS}")
        A(f"s_add_u32 s{Q_T0}, s{Q_T0}, s{Q_T1}")
        A(f"s_add_u32 s{Q_T0}, s{Q_T0}, {F_A}")
        A(f"v_lshl_add_u32 v2, v1, {FS}, s{Q_T0}")
        A(f"s_lshl_b32 s{Q_T0}, s{RT}, {2+FS}")
        A(f"s_add_u32 s{Q_T0}, s{Q_T0}, {F_G}")
        A("v_and_b32 v3, 3, v1")
        A(f"v_lshl_add_u32 v3, v3, {FS}, s{Q_T0}")
        A("v_cmp_gt_u32 vcc, 32, v1")
        A(f"v_mov_b32 v6, {L_AOK}")
        A(f"s_mov_b32 s{GOT}, 0"); A(f"s_mov_b32 s{REL}, 0")
        A("v_cndmask_b32 v2, v3, v2, vcc")
        A(f"s_cmp_eq_u32 s{w}, {O.POLW}")
        A(f"s_cselect_b32 s{POL}, 1, 0")
        A(f"s_mov_b32 s{S_SPIN}, {O.SPIN}")
        A.label("T_L")
        A(f"s_cmp_eq_u32 s{POL}, 1")
        A("s_cbranch_scc0 T_NP")
        A(f"buffer_load_dword v9, v2, s[{S_WS}:{S_WS+3}], 0 offen sc1")
        A(f"s_sub_u32 s{S_SPIN}, s{S_SPIN}, 1")
        A("s_waitcnt vmcnt(0)")
        A("s_cbranch_scc1 T_OK")
        A(f"v_cmp_ne_u32 vcc, v{STOK}, v9")
        A("s_cbranch_vccnz T_NP")
        A.label("T_OK")
        A(f"ds_write_b32 v6, v{STOK+1}")
        A(f"s_mov_b32 s{POL}, 0")
        A.label("T_NP")
        A("ds_read_b32 v7, v6")
        A("ds_read_b32 v31, v5")
        A(f"s_cmp_eq_u32 s{GOT}, 0")
        A("s_waitcnt lgkmcnt(0)")
        A("s_cbranch_scc0 T_NA")
        A("v_cmp_eq_u32 vcc, 0, v7")
        A("s_cbranch_vccnz T_NA")
        tss(A, 4, "t")
        for q in range(4):
            for i in range(2):
                A(f"buffer_load_dword v{AP+2*q+i}, v{12+i}, s[{S_WS}:{S_WS+3}], s{SO_A} offen sc1")
            if q < 3: A(f"s_add_u32 s{SO_A}, s{SO_A}, 32768")
        A(f"buffer_load_dwordx2 {vr(G,2)}, v14, s[{S_WS}:{S_WS+3}], 0 offen sc1")
        A(f"s_mov_b32 s{GOT}, 1")
        A(f"s_cmp_eq_u32 s{REL}, 1")
        A("s_cbranch_scc1 T_W0")
        A.label("T_NA")
        A(f"s_cmp_eq_u32 s{REL}, 0")
        A("s_cbranch_scc0 T_SL")
        A("v_cmp_gt_u32 vcc, 9, v31")
        A("s_cbranch_vccnz T_SL")
        tss(A, 3, "t")
        relay()
        A(f"s_mov_b32 s{REL}, 1")
        A(f"s_cmp_eq_u32 s{GOT}, 1")
        A("s_cbranch_scc1 T_W4")
        A.label("T_SL")
        A(f"s_cmp_eq_u32 s{POL}, 1")
        A("s_cbranch_scc1 T_SP")
        A("s_sleep 1")
        A("s_branch T_L")
        A.label("T_SP")
        A(f"s_sleep {O.ASLP}")
        A("s_branch T_L")
        A.label("T_W0")
        A("s_waitcnt vmcnt(0)")
        A.label("T_W4")
        A("s_waitcnt vmcnt(4)")
        tss(A, 5, "t")
        ag2()
        for q in range(4):
            A(f"ds_write_b128 v18, {vr(T+4*q,4)} offset:{q*1024}")
        sw_arrive(A, S_FOWN, S_FT, 100)
        A("s_waitcnt lgkmcnt(0)")
        return
    if O.F32:
        lwait(A, 5, 0, 31, 9, sleep=2)
        ag()
        tss(A, 3, "t")
        def apart():
            A("s_waitcnt vmcnt(0)")
            A(f"ds_write_b32 v19, v{G+1}")
            for k in range(8):
                A(f"v_lshlrev_b32 v{T+2*k}, 16, v{AP+k}")
                A(f"v_and_b32 v{T+2*k+1}, 0xffff0000, v{AP+k}")
            for k in range(8):
                A(f"v_pk_mul_f32 {vr(T+2*k,2)}, {vr(T+2*k,2)}, {vr(G,2)} op_sel:[0,0] op_sel_hi:[1,0]")
        if O.F32 == 2: apart()
        tss(A, 4, "t")
        lwait(A, 5, 0, 31, 10, sleep=1)
        for q in range(4):
            A(f"ds_read_b128 {vr(64+4*q,4)}, v17 offset:{1024*q}")
            A(f"ds_read_b128 {vr(80+4*q,4)}, v15 offset:{1024*q}")
        if O.F32 == 1: apart()
        tss(A, 5, "t")
        for q in range(4):
            A(f"s_waitcnt lgkmcnt({(6-2*q+q) if O.F32 == 2 else (7-2*q+q)})")
            for k in (2*q, 2*q+1):
                A(f"v_pk_add_f32 {vr(64+2*k,2)}, {vr(64+2*k,2)}, {vr(80+2*k,2)}")
            for k in (2*q, 2*q+1):
                A(f"v_pk_fma_f32 {vr(T+2*k,2)}, {vr(64+2*k,2)}, {vr(G,2)}, {vr(T+2*k,2)} op_sel:[0,1,0] op_sel_hi:[1,1,1]")
            A(f"ds_write_b128 v18, {vr(T+4*q,4)} offset:{q*1024}")
        sw_arrive(A, S_FOWN, S_FT, 100)
        A("s_waitcnt lgkmcnt(0)")
        return
    if O.FK and O.TR2:
        lwait(A, 5, 0, 31, 9, sleep=2)
        ag()
        tss(A, 3, "t")
        lwait(A, 5, 0, 31, 10, sleep=1)
        for h in range(2):
            A(f"ds_read_b128 {vr(64+4*h,4)}, v17 offset:{1024*h}")
            A(f"ds_read_b128 {vr(72+4*h,4)}, v15 offset:{1024*h}")
        A(f"v_mov_b32 v{S_FT}, 50")
        for h in range(2):
            A(f"s_waitcnt lgkmcnt({2 if h == 0 else 0})")
            if h == 1: A(f"ds_write_b32 v{S_FOWN}, v{S_FT}")
            for k in range(4):
                r = 64 + 4 * h + k
                A(f"v_lshlrev_b32 v80, 16, v{r}")
                A(f"v_lshlrev_b32 v81, 16, v{r+8}")
                A(f"v_and_b32 v82, 0xffff0000, v{r}")
                A(f"v_and_b32 v83, 0xffff0000, v{r+8}")
                A(f"v_add_f32 v{T+8*h+2*k}, v80, v81")
                A(f"v_add_f32 v{T+8*h+2*k+1}, v82, v83")
        tss(A, 4, "t")
        A("s_waitcnt vmcnt(0)")
        tss(A, 5, "t")
        A(f"ds_write_b32 v19, v{G+1}")
        for q in range(4):
            for k in range(2):
                A(f"v_lshlrev_b32 v{80+2*k}, 16, v{AP+2*q+k}")
                A(f"v_and_b32 v{81+2*k}, 0xffff0000, v{AP+2*q+k}")
            for k in range(4): A(f"v_mul_f32 v{80+k}, v{G}, v{80+k}")
            for k in range(4): A(f"v_fma_f32 v{T+4*q+k}, v{G+1}, v{T+4*q+k}, v{80+k}")
            A(f"ds_write_b128 v18, {vr(T+4*q,4)} offset:{q*1024}")
        sw_arrive(A, S_FOWN, S_FT, 100)
        A("s_waitcnt lgkmcnt(0)")
        return
    if O.FK:
        if O.MID: lwait(A, 5, 0, 31, 9, sleep=2)
        ag(); A("s_waitcnt vmcnt(0)"); ag2()
        tss(A, 3, "t")
        lwait(A, 5, 0, 31, 10 if O.MID else 9, sleep=1)
        tss(A, 4, "t")
        for h in range(2):
            A(f"ds_read_b128 {vr(64+4*h,4)}, v17 offset:{1024*h}")
            A(f"ds_read_b128 {vr(72+4*h,4)}, v15 offset:{1024*h}")
        A(f"v_mov_b32 v{S_FT}, 50")
        for h in range(2):
            A(f"s_waitcnt lgkmcnt({2 if h == 0 else 2})")
            if h == 1: A(f"ds_write_b32 v{S_FOWN}, v{S_FT}")
            for k in range(4):
                r = 64 + 4 * h + k
                A(f"v_lshlrev_b32 v80, 16, v{r}")
                A(f"v_lshlrev_b32 v81, 16, v{r+8}")
                A(f"v_and_b32 v82, 0xffff0000, v{r}")
                A(f"v_and_b32 v83, 0xffff0000, v{r+8}")
                A("v_add_f32 v80, v80, v81")
                A("v_add_f32 v82, v82, v83")
                A(f"v_fmac_f32 v{T+8*h+2*k}, v{G+1}, v80")
                A(f"v_fmac_f32 v{T+8*h+2*k+1}, v{G+1}, v82")
                if k % 2 == 1:
                    q = 2 * h + k // 2
                    A(f"ds_write_b128 v18, {vr(T+4*q,4)} offset:{q*1024}")
        sw_arrive(A, S_FOWN, S_FT, 100)
        A("s_waitcnt lgkmcnt(0)")
        return
    if O.AFIRST:
        ag(); A("s_waitcnt vmcnt(0)"); ag2()
        tss(A, 3, "t")
    lwait(A, 5, 0, 31, 9, sleep=1)
    tss(A, 4 if O.AFIRST else 3, "t")
    if O.EPOL: A(f"buffer_load_dword v9, v2, s[{S_WS}:{S_WS+3}], 0 offen sc1")
    for h in range(2):
        A(f"ds_read_b128 {vr(64+4*h,4)}, v17 offset:{1024*h}")
        A(f"ds_read_b128 {vr(72+4*h,4)}, v15 offset:{1024*h}")
    A(f"v_mov_b32 v{S_FT}, 50")
    for h in range(2):
        A(f"s_waitcnt lgkmcnt({2-2*h})")
        if h == 1: A(f"ds_write_b32 v{S_FOWN}, v{S_FT}")
        for k in range(4):
            r = 64 + 4 * h + k
            A(f"v_lshlrev_b32 v80, 16, v{r}")
            A(f"v_lshlrev_b32 v81, 16, v{r+8}")
            A(f"v_and_b32 v82, 0xffff0000, v{r}")
            A(f"v_and_b32 v83, 0xffff0000, v{r+8}")
            A("v_add_f32 v80, v80, v81")
            A("v_add_f32 v82, v82, v83")
            A(f"v_cvt_pk_bf16_f32 v{96+8*h+2*k}, v80, v82")
            if k % 2 == 1:
                q = 2 * h + k // 2
                A(f"buffer_store_dwordx4 {vr(96+4*q,4)}, v16, s[{S_WS}:{S_WS+3}], s{SO_P} offen offset:{1024*q} {O.PST}")
    if not O.AFIRST:
        ag()
        tss(A, 4, "t")
    A(f"s_mov_b32 s{S_SPIN}, {O.SPIN}")
    A.label("S_PL")
    for q in range(4):
        A(f"buffer_load_dwordx4 {vr(112+4*q,4)}, v16, s[{S_WS}:{S_WS+3}], s{SO_O} offen offset:{1024*q} sc1")
    if not O.AFIRST:
        A(f"s_cmp_eq_u32 s{S_SPIN}, {O.SPIN}")
        A("s_cbranch_scc0 S_PM")
        A("s_waitcnt vmcnt(4)")
        ag2()
        A.label("S_PM")
    A("s_waitcnt vmcnt(0)")
    for k in range(4):
        A(f"v_xor_b32 v{80+k}, v{STOK}, v{113+4*k}")
        A(f"v_xor_b32 v{84+k}, v{STOK}, v{115+4*k}")
    A("v_or3_b32 v80, v80, v81, v82")
    A("v_or3_b32 v83, v83, v84, v85")
    A("v_or3_b32 v80, v80, v86, v87")
    A("v_or_b32 v80, v80, v83")
    A("v_cmp_ne_u32 vcc, 0, v80")
    A("s_cbranch_vccz S_PD")
    A("s_sleep 1")
    A(f"s_sub_u32 s{S_SPIN}, s{S_SPIN}, 1")
    A("s_cbranch_scc0 S_PL")
    A.label("S_PD")
    tss(A, 5, "t")
    for q in range(4):
        for k in range(2):
            r = 112 + 4 * q + 2 * k
            A(f"v_lshlrev_b32 v{80+2*k}, 16, v{r}")
            A(f"v_and_b32 v{81+2*k}, 0xffff0000, v{r}")
        for k in range(4):
            A(f"v_fmac_f32 v{T+4*q+k}, v{G+1}, v{80+k}")
        A(f"ds_write_b128 v18, {vr(T+4*q,4)} offset:{q*1024}")
    sw_arrive(A, S_FOWN, S_FT, 100)
    A("s_waitcnt lgkmcnt(0)")

def diag(A, k, role):
    A("s_waitcnt vmcnt(0) lgkmcnt(0)")
    A(f"s_memtime s[{S_TS+12}:{S_TS+13}]")
    A("s_waitcnt lgkmcnt(0)")
    A(f"s_sub_u32 s64, s{S_TS+2*k}, s{S_TS+2}")
    mx = len(O.DIAG) > 2
    if not mx or role == "G":
        A(f"s_cmp_ge_u32 s{S_J}, 28")
        A("s_cselect_b32 s64, 0, s64")
    A("v_mov_b32 v2, 128"); A("v_mov_b32 v3, s64")
    A("s_mov_b64 exec, 1")
    A(f"global_atomic_{'umax' if mx else 'add'} v2, v3, s[{P_DBG}:{P_DBG+1}] sc1")
    for lab, first in (("DG0", True), ("DG1", False)):
        A("s_mov_b32 s66, 1000000")
        if first: A("s_mov_b32 s67, 3200")
        A.label(lab)
        A("s_memrealtime s[64:65]")
        A("s_waitcnt lgkmcnt(0)")
        A(f"s_sub_u32 s64, s64, s{S_TS}")
        A("s_cmp_ge_u32 s64, s67")
        A(f"s_cbranch_scc1 {lab}X")
        A("s_sub_u32 s66, s66, 1")
        A(f"s_cbranch_scc0 {lab}")
        A.label(lab + "X")
        if first:
            A("s_waitcnt vmcnt(0)")
            A(f"global_load_dword v3, v2, s[{P_DBG}:{P_DBG+1}] sc1")
            A("s_waitcnt vmcnt(0)")
            A("v_readfirstlane_b32 s67, v3")
            A(f"s_lshr_b32 s67, s67, {1 if mx else 11}")
            A("s_add_u32 s67, s67, 3500")
def fin(A, role):
    if O.DIAG is None: ts_dump(A, 0, S_W8)
    elif O.DIAG[0] == role: diag(A, O.DIAG[1], role)

KN = "gated_mix__ssm_conv_s4d__dense_activation_silu__prompt_kernel"
A = Asm()
A.raw("; @launch grid=(256,1,1) block=(512,1,1) lds=163840")
A.raw('.amdgcn_target "amdgcn-amd-amdhsa--gfx950"')
kernel_header(A, KN)
ts_real(A, 0); parts_ts(A, 1)
if O.ECP > 0:
    A(f"s_cmp_ge_u32 s2, 256")
    A(f"s_cbranch_scc1 K_END")
    A("s_getpc_b64 s[72:73]")
    A.label("K_PC0")
    A("s_load_dwordx16 s[36:51], s[0:1], 0")
    A(f"s_lshr_b32 s{S_J}, s2, 3")
    if O.ECP == 1:
        A("v_lshrrev_b32 v255, 5, v0")
        A(f"v_lshl_add_u32 v255, s{S_J}, 4, v255")
        A("v_lshlrev_b32 v255, 6, v255")
    else:
        A(f"s_and_b32 s74, s{S_J}, {32//O.ECP-1}")
        A(f"v_lshrrev_b32 v255, {5-int(math.log2(O.ECP))}, v0")
        A(f"v_lshl_add_u32 v255, s74, {4+int(math.log2(O.ECP))}, v255")
        A("v_lshlrev_b32 v255, 6, v255")
    A(f"v_min_u32 v255, K_END-K_PC0, v255")
    A("global_load_dword v255, v255, s[72:73]")
    A("s_load_dwordx8 s[52:59], s[0:1], 64")
    A("s_load_dwordx4 s[60:63], s[0:1], 96")
    A("v_lshrrev_b32 v2, 6, v0")
    A("v_and_b32 v1, 63, v0")
    A(f"v_readfirstlane_b32 s{S_WAVE}, v2")
    A(f"s_and_b32 s{S_XCD}, s2, 7")
else:
    prologue(A, "K_END")
A(f"s_mov_b32 s{S_W8}, s{S_WAVE}")
A("v_and_b32 v2, 31, v1")
A("v_lshlrev_b32 v2, 2, v2")
A(f"v_add_u32 v2, {LF}, v2")
A("v_mov_b32 v3, 0")
A("ds_write_b32 v2, v3")
A(f"s_cmp_ge_u32 s{S_WAVE}, 4")
A("s_cbranch_scc1 K_SSM")
if O.GPRIO: A(f"s_setprio {O.GPRIO}")
if O.ECP < 0:
    A(f"s_cmp_lt_u32 s{S_J}, 28")
    A("s_cbranch_scc1 K_GM")
    A("s_getpc_b64 s[72:73]")
    A.label("K_PC0")
    A(f"s_and_b32 s74, s{S_J}, 3")
    A(f"v_lshrrev_b32 v255, 1, v0")
    A(f"v_lshl_add_u32 v255, s74, 7, v255")
    A("v_lshlrev_b32 v255, 6, v255")
    A(f"v_min_u32 v255, K_END-K_PC0, v255")
    A("global_load_dword v255, v255, s[72:73]")
    A("s_branch K_IDLE")
    A.label("K_GM")
else:
    A(f"s_cmp_ge_u32 s{S_J}, 28")
    A("s_cbranch_scc1 K_IDLE")
g1_setup(A)
if O.HAB: hab_setup(A)
rot_c0(A, S_C0, S_T0)
A("s_waitcnt lgkmcnt(0)")
srd(A, S_X, P_U, L*D*2); srd(A, S_W1, P_W1, D*F*2)
vm = Vm(A); cid = {}
for x in g_chunk_dma(0): vm.op(x)
cid[0] = vm.n
if O.GPRE == 1: A("s_barrier")
if O.LOOK > 1:
    for x in g_chunk_dma(1): vm.op(x)
    cid[1] = vm.n
if O.GPRE == 2: A("s_barrier")
srd(A, S_WS, P_WS, WS_BYTES); srd(A, S_OUT, P_OUT, L*D*2)
g1_setup2(A); g_flags_setup(A); g2_setup(A)
if O.HAB: hab_setup2(A)
if O.GW2: gw2_setup(A)
if O.LOOK > 2:
    for x in g_chunk_dma(2): vm.op(x)
    cid[2] = vm.n
if O.LOOK >= 4 and O.L3 == "u":
    for x in g_chunk_dma(3): vm.op(x)
    cid[3] = vm.n
if "L" in O.X2:
    parts_ts(A, 2)
    for k in sorted(cid)[:3]:
        vm.wait(cid[k]); parts_ts(A, 3 + k)
if O.GHOLD: lwait(A, GRD, 32, GT, 1, sleep=4)
(g1_main if O.LA == 1 else g1_main2)(A, vm, cid)
tsg(A, 2, "aeh")
g1_epi(A)
tsg(A, 3, "ae")
A.label("K_G2")
if O.GW2:
    A(f"v_mov_b32 v{GT}, 12")
    A("s_waitcnt vmcnt(0)")
    A(f"ds_write_b32 v{GOWN}, v{GT}")
    lwait(A, GRD, 0, GT + 1, 12)
else: lwait(A, GRD, 48, GT, 12)
if O.FK:
    fk_x(A)
    A.label("K_G3")
else:
    for i in range(O.PFD):
        for x in w2_read(i): A(x)
tsg(A, 4, "h")
if O.PW:
    poll(A, FV, GT, VTOK, "PH", slp=O.HSLP)
    A("s_waitcnt lgkmcnt(0)")
else:
    A(f"v_mov_b32 v{GX}, {L_HOK}")
    A(f"s_cmp_eq_u32 s{S_WAVE}, 0")
    A("s_cbranch_scc0 K_HW")
    poll(A, FV, GT, VTOK, "PH", slp=O.HSLP)
    A(f"ds_write_b32 v{GX}, v{VTOK+1}")
    A("s_waitcnt lgkmcnt(1)")
    A("s_branch K_HD")
    A.label("K_HW")
    lwait(A, GX, 0, GT, 1)
A.label("K_HD")
if O.G2P is not None: A(f"s_setprio {O.G2P}")
tsg(A, 5, "h")
tsg(A, 4, "ae"); tsg(A, 1, "sf")
g2_main(A)
A("s_waitcnt lgkmcnt(0)")
fin(A, "G")
A("s_endpgm")
A.label("K_IDLE")
if O.IPRIO != O.GPRIO: A(f"s_setprio {O.IPRIO}")
idle_tr_issue(A)
if O.CODEPF:
    A("s_getpc_b64 s[72:73]")
    A.label("K_PC")
    A(f"s_sub_u32 s72, s72, K_PC-{KN}")
    A("s_subb_u32 s73, s73, 0")
    A(f"v_lshl_add_u32 v20, s64, 5, v1")
    A("v_lshlrev_b32 v20, 7, v20")
    A(f"v_min_u32 v20, K_END-{KN}, v20")
    A("s_mov_b64 exec, 0xffffffff")
    A("global_load_dword v21, v20, s[72:73]")
    A("s_mov_b64 exec, -1")
A("s_waitcnt lgkmcnt(0)")
srd(A, S_X, P_U, L*D*2)
if any(O.W2P): srd(A, S_W2, P_W2, D*F*2); w2_touch_setup(A)
w2_touch(A, O.W2P[0], 26)
idle_tr_dma(A)
A("s_barrier")
w2_touch(A, O.W2P[1], 26)
srd(A, S_WS, P_WS, WS_BYTES); srd(A, S_OUT, P_OUT, L*D*2)
idle_tr_finish(A, 2 * len(O.W2P[1]))
g_flags_setup(A); g2_setup(A)
tsg(A, 2, "ae")
token_get(A, GX, VTOK)
A(f"s_lshl_b32 s68, s34, 4")
A(f"s_add_u32 s68, s68, s33")
A(f"s_lshl_b32 s65, s68, {FS}")
A(f"s_add_u32 s65, s65, {F_UT}")
A("s_waitcnt vmcnt(0)")
flag_store(A, 65, GT, VTOK)
tsg(A, 3, "ae")
A(f"v_mov_b32 v{GT}, 8")
A(f"ds_write_b32 v{GOWN}, v{GT} offset:16")
if O.IPRIO != O.GPRIO: A(f"s_setprio {O.GPRIO}")
w2_touch(A, O.W2P[2], 26)
idle_gate_issue(A)
w2_touch(A, O.W2P[3], 26)
if O.GW2:
    gw2_setup(A)
    lwait(A, GRD, 16, GT, 8)
    for sl in range(4):
        for x in gw2_dma(sl): A(x)
idle_gate_finish(A, 2 * len(O.W2P[3]) + (28 if O.GW2 else 0))
if not O.TL3:
    A(f"s_lshl_b32 s65, s68, {FS}")
    A(f"s_add_u32 s65, s65, {F_G}")
    A("s_waitcnt vmcnt(0)")
    flag_store(A, 65, GT, VTOK)
A("s_branch K_G2")
A.label("K_SSM")
if O.SPRIO: A(f"s_setprio {O.SPRIO}")
A(f"s_sub_u32 s{S_WAVE}, s{S_WAVE}, 4")
s_setup(A)
carry_zero(A)
A("s_getreg_b32 s31, hwreg(HW_REG_XCC_ID)")
def w2s():
    if O.W2S is None: return
    srd(A, S_W2, P_W2, D*F*2)
    A(f"s_lshr_b32 s{Q_T0}, s{S_XCD}, 1")
    A(f"s_and_b32 s{Q_T1}, s{S_XCD}, 1")
    A(f"s_lshl_b32 s{Q_T1}, s{Q_T1}, 2")
    A(f"s_add_u32 s{Q_T0}, s{Q_T0}, s{Q_T1}")
    A(f"s_lshl_b32 s{Q_T0}, s{Q_T0}, 5")
    A(f"s_add_u32 s{Q_T0}, s{Q_T0}, s{S_J}")
    A(f"s_lshl_b32 s{Q_T0}, s{Q_T0}, 1")
    A(f"s_add_u32 s{Q_T0}, s{Q_T0}, s{Q_NH}")
    A(f"s_mul_i32 s{Q_T0}, s{Q_T0}, 3584")
    A("v_min_u32 v39, 27, v1")
    A("v_lshlrev_b32 v39, 7, v39")
    A(f"buffer_load_dword v39, v39, s[{S_W2}:{S_W2+3}], s{Q_T0} offen {O.PFL2}")
def flow2():
    A(f"s_cmp_eq_u32 s{Q_C}, 1")
    A("s_cbranch_scc1 S_LD")
    A(f"s_lshl_b32 s{Q_T0}, s{Q_PAIR}, 9")
    A(f"s_lshl_b32 s{Q_T1}, s{S_WAVE}, 8")
    A(f"s_add_u32 s{Q_T0}, s{Q_T0}, s{Q_T1}")
    A(f"v_lshl_add_u32 v6, v1, 2, s{Q_T0}")
    A(f"s_lshl_b32 s{Q_T0}, s{Q_PAIR}, 2")
    A("s_waitcnt lgkmcnt(0)")
    for i, p in enumerate((P_LA, P_AI, P_CR, P_CI)):
        A(f"global_load_dword v{14+i}, v6, s[{p}:{p+1}]")
    A(f"s_load_dword s{Q_LDT}, s[{P_LDT}:{P_LDT+1}], s{Q_T0}")
    A(f"s_load_dword s{Q_DSK}, s[{P_DSK}:{P_DSK+1}], s{Q_T0}")
    A(f"s_add_u32 s28, s{P_WS}, {F_EP}")
    A(f"s_addc_u32 s29, s{P_WS+1}, 0")
    A(f"s_cmp_eq_u32 s{S_WAVE}, 1")
    A("s_cbranch_scc0 S_NT")
    A("s_load_dword s30, s[28:29], 0")
    A.label("S_NT")
    A("s_barrier")
    if O.W2S == 0: w2s()
    def tokpub():
        A(f"s_cmp_eq_u32 s{S_WAVE}, 1")
        A("s_cbranch_scc0 S_NP")
        A("s_mul_i32 s30, s30, 0x9e3779a1")
        A("s_add_u32 s30, s30, 0x7f4a7c10")
        A("s_and_b32 s30, s30, -16")
        A(f"v_mov_b32 v{STOK}, s30")
        A(f"v_mov_b32 v{STOK+1}, 1")
        A(f"v_mov_b32 v34, {L_RDY}")
        A(f"ds_write_b64 v34, {vr(STOK,2)}")
        A(f"s_waitcnt vmcnt({1 if O.W2S == 0 else 0})")
        A(f"s_lshl_b32 s28, s2, {FS}")
        A(f"s_add_u32 s28, s28, {F_HERE}")
        flag_store(A, 28, 36, STOK)
        A("s_branch S_NQ")
        A.label("S_NP")
        A(f"s_waitcnt vmcnt({1 if O.W2S == 0 else 0})")
        A.label("S_NQ")
    kgen2(A, 2, tokpub)
    tss(A, 5, "k")
    A("s_cmp_eq_u32 s2, 0")
    A("s_cbranch_scc0 S_UW")
    A(f"s_cmp_eq_u32 s{S_WAVE}, 1")
    A("s_cbranch_scc0 S_UW")
    for i in range(4):
        A(f"v_lshlrev_b32 v8, {FS}, v1")
        A(f"v_add_u32 v8, {F_HERE+(64<<FS)*i}, v8")
        poll(A, 8, 9, STOK, "PE")
    A(f"s_mov_b32 s{Q_T0}, {F_EP}")
    flag_store(A, Q_T0, 8, STOK)
    A.label("S_UW")
    A("s_branch S_CV")
    A.label("S_LD")
    if O.LPRIO != O.SPRIO: A(f"s_setprio {O.LPRIO}")
    loader_setup(A)
    A("s_waitcnt lgkmcnt(0)")
    srd(A, S_X, P_U, L*D*2); srd(A, S_W1, P_W1, D*F*2); srd(A, S_W2, P_W2, D*F*2)
    srd(A, S_WS, P_WS, WS_BYTES)
    A("s_barrier")
    if O.W2S == 1: w2s()
    if O.LDLY: A(f"s_sleep {O.LDLY}")
    loader2(A)
def flow1():
    A(f"s_lshl_b32 s{Q_T0}, s{Q_PAIR}, 9")
    A(f"s_lshl_b32 s{Q_T1}, s{S_WAVE}, 7")
    A(f"s_add_u32 s{Q_T0}, s{Q_T0}, s{Q_T1}")
    A(f"v_lshl_add_u32 v6, v1, 1, s{Q_T0}")
    A(f"s_lshl_b32 s{Q_T0}, s{Q_PAIR}, 2")
    A("s_waitcnt lgkmcnt(0)")
    for i, p in enumerate((P_LA, P_AI, P_CR, P_CI)):
        A(f"global_load_ushort v{2+i}, v6, s[{p}:{p+1}]")
    A(f"s_load_dword s{Q_LDT}, s[{P_LDT}:{P_LDT+1}], s{Q_T0}")
    A(f"s_load_dword s{Q_DSK}, s[{P_DSK}:{P_DSK+1}], s{Q_T0}")
    A(f"s_add_u32 s28, s{P_WS}, {F_EP}")
    A(f"s_addc_u32 s29, s{P_WS+1}, 0")
    A(f"s_cmp_eq_u32 s{S_WAVE}, 1")
    A("s_cbranch_scc0 S_NT")
    A("s_load_dword s30, s[28:29], 0")
    A.label("S_NT")
    A("s_barrier")
    if O.TCH:
        A(f"s_cmp_eq_u32 s{Q_C}, 1")
        A("s_cbranch_scc1 S_T2")
        A(f"s_cmp_eq_u32 s{Q_NH}, 1")
        A("s_cbranch_scc1 S_T1")
        srd(A, S_X, P_U, L*D*2)
        A(f"s_lshl_b32 s{Q_T0}, s{Q_PAIR}, 13")
        A("v_lshlrev_b32 v39, 7, v1" if "x" in O.TCH else "v_mov_b32 v39, 0")
        A(f"buffer_load_dword v39, v39, s[{S_X}:{S_X+3}], s{Q_T0} offen")
        A("s_branch S_T3")
        A.label("S_T1")
        srd(A, S_W1, P_W1, D*F*2)
        A(f"s_add_u32 s{Q_T0}, s{S_XCD}, {2*O.TR}")
        A(f"s_bfe_u32 s{Q_T0}, s{Q_T0}, 0x20001")
        A(f"s_lshl_b32 s{Q_T0}, s{Q_T0}, 5")
        A(f"s_add_u32 s{Q_T0}, s{Q_T0}, s{S_J}")
        A(f"s_mul_i32 s{Q_T0}, s{Q_T0}, {4*2*F}")
        A(f"s_and_b32 s{Q_T1}, s{S_XCD}, 1")
        A(f"s_mul_i32 s{Q_T1}, s{Q_T1}, {F}")
        A(f"s_add_u32 s{Q_T0}, s{Q_T0}, s{Q_T1}")
        A("v_and_b32 v38, 15, v1")
        A("v_min_u32 v38, 13, v38")
        A("v_lshrrev_b32 v39, 4, v1")
        A(f"v_mul_u32_u24 v39, {2*F}, v39")
        A("v_lshl_add_u32 v39, v38, 7, v39" if "w" in O.TCH else "v_mov_b32 v39, 0")
        A(f"buffer_load_dword v39, v39, s[{S_W1}:{S_W1+3}], s{Q_T0} offen")
        A("s_branch S_T3")
        A.label("S_T2")
        w2s()
        A.label("S_T3")
    elif O.W2H: pass
    elif O.W2S is not None:
        srd(A, S_W2, P_W2, D*F*2)
        A(f"s_lshr_b32 s{Q_T0}, s{S_XCD}, 1")
        A(f"s_and_b32 s{Q_T1}, s{S_XCD}, 1")
        A(f"s_lshl_b32 s{Q_T1}, s{Q_T1}, 2")
        A(f"s_add_u32 s{Q_T0}, s{Q_T0}, s{Q_T1}")
        A(f"s_lshl_b32 s{Q_T0}, s{Q_T0}, 5")
        A(f"s_add_u32 s{Q_T0}, s{Q_T0}, s{S_J}")
        A(f"s_mul_i32 s{Q_T0}, s{Q_T0}, 7168")
        A(f"s_mul_i32 s{Q_T1}, s{S_WAVE}, 1792")
        A(f"s_add_u32 s{Q_T0}, s{Q_T0}, s{Q_T1}")
        A("v_min_u32 v39, 13, v1")
        A("v_lshlrev_b32 v39, 7, v39")
        A(f"buffer_load_dword v39, v39, s[{S_W2}:{S_W2+3}], s{Q_T0} offen {O.PFL2}")
    def pre():
        if O.GW2: srd(A, S_WS, P_WS, WS_BYTES); return
        srd(A, S_X, P_U, L*D*2); srd(A, S_W1, P_W1, D*F*2); srd(A, S_W2, P_W2, D*F*2)
        srd(A, S_WS, P_WS, WS_BYTES)
        loader_setup(A)
    def tokpub():
        tss(A, 2, "ak")
        A(f"s_cmp_eq_u32 s{S_WAVE}, 1")
        A("s_cbranch_scc0 S_NP")
        A("s_mul_i32 s30, s30, 0x9e3779a1")
        A("s_add_u32 s30, s30, 0x7f4a7c10")
        A("s_and_b32 s30, s30, -16")
        A("s_and_b32 s31, s31, 15")
        A("s_or_b32 s31, s31, s30")
        A(f"v_mov_b32 v{STOK}, s30")
        A(f"v_mov_b32 v{STOK+1}, 1")
        A(f"v_mov_b32 v34, {L_RDY}")
        A(f"ds_write_b64 v34, {vr(STOK,2)}")
        A(f"v_mov_b32 v35, s31")
        A(f"s_lshl_b32 s28, s2, {FS}")
        A(f"s_add_u32 s28, s28, {F_HERE}")
        flag_store(A, 28, 36, 35)
        A.label("S_NP")
    def khook():
        tss(A, 3, "k")
        if O.W2H == 1:
            A(f"s_cmp_eq_u32 s{Q_C}, 1")
            A("s_cbranch_scc0 S_T4")
            w2s()
            A.label("S_T4")
    kgen(A, later=0 if (O.W2S is None or O.W2H) else 1, hookA=tokpub, pre=pre, hook=khook)
    tss(A, 4, "k")
    if O.W2H == 2:
        A(f"s_cmp_eq_u32 s{Q_C}, 0")
        A("s_cbranch_scc0 S_T4")
        w2s()
        A.label("S_T4")
    kgen_exchange_write(A)
    A("s_waitcnt lgkmcnt(0)")
    sw_arrive(A, S_FOWN, S_FT, 1)
    def kfin():
        sw_wait(A, S_FRD, S_FT, 1, sleep=1)
        kgen_final(A)
        token_get(A, 8, STOK)
    tss(A, 3, "a")
    if O.GW2:
        token_get(A, 16, STOK)
        A(f"s_cmp_eq_u32 s{S_WAVE}, {O.UW}")
        A("s_cbranch_scc0 S_K1")
        A(f"s_lshl_b32 s{Q_T0}, s{S_XCD}, {4+FS}")
        A(f"s_add_u32 s{Q_T0}, s{Q_T0}, {F_UT}")
        A("v_and_b32 v16, 15, v1")
        A(f"v_lshl_add_u32 v16, v16, {FS}, s{Q_T0}")
        poll(A, 16, 17, STOK, "PU")
        ut2(A, 0)
        A.label("S_K1")
        sw_wait(A, S_FRD, S_FT, 1, sleep=1)
        kgen_final(A)
        tss(A, 5, "k")
        A(f"s_cmp_eq_u32 s{S_WAVE}, {O.UW}")
        A("s_cbranch_scc0 S_K2")
        ut2(A, 1)
        A.label("S_K2")
        A("s_cmp_eq_u32 s2, 0")
        A("s_cbranch_scc0 S_CV")
        A(f"s_cmp_eq_u32 s{S_WAVE}, 1")
        A("s_cbranch_scc0 S_CV")
        for i in range(4):
            A(f"v_lshlrev_b32 v8, {FS}, v1")
            A(f"v_add_u32 v8, {F_HERE+(64<<FS)*i}, v8")
            poll(A, 8, 9, STOK, "PE", mask=True)
        A(f"s_mov_b32 s{Q_T0}, {F_EP}")
        flag_store(A, Q_T0, 8, STOK)
        return
    A(f"s_cmp_eq_u32 s{Q_C}, 1")
    A("s_cbranch_scc1 S_LD")
    kfin()
    tss(A, 5, "k")
    A(f"s_cmp_eq_u32 s{S_WAVE}, 1")
    A("s_cbranch_scc1 S_VD")
    A(f"s_lshl_b32 s{Q_T0}, s{S_XCD}, {4+FS}")
    A(f"s_add_u32 s{Q_T0}, s{Q_T0}, {F_UT}")
    A("v_and_b32 v8, 15, v1")
    A(f"v_lshl_add_u32 v8, v8, {FS}, s{Q_T0}")
    poll(A, 8, 9, STOK, "PU")
    ut2(A)
    A("s_branch S_CV")
    A.label("S_VD")
    if O.YT is not None:
        A("v_min_u32 v56, 55, v1")
        A("v_lshlrev_b32 v56, 7, v56")
        for ph, (thr, odd) in enumerate(O.YT):
            if thr: lwait(A, LGD, 0, 31, thr, sleep=4)
            for q in range(4):
                A(f"s_add_u32 s{Q_T0}, s{S_XCD}, {q}")
                A(f"s_and_b32 s{Q_T0}, s{Q_T0}, 3")
                A(f"s_lshl_b32 s{Q_T0}, s{Q_T0}, 6")
                A(f"s_add_u32 s{Q_T0}, s{Q_T0}, s{S_J}")
                if odd: A(f"s_add_u32 s{Q_T0}, s{Q_T0}, 32")
                A(f"s_mul_i32 s{Q_T0}, s{Q_T0}, 7168")
                A(f"buffer_load_dword v57, v56, s[{S_W2}:{S_W2+3}], s{Q_T0} offen")
    if O.PT:
        A(f"s_lshr_b32 s{Q_T0}, s{S_J}, 2")
        A(f"s_lshl_b32 s{Q_T0}, s{Q_T0}, 18")
        A(f"s_xor_b32 s{Q_T1}, s{S_XCD}, 2")
        A(f"s_lshl_b32 s{Q_T1}, s{Q_T1}, 10")
        A(f"s_add_u32 s{Q_T0}, s{Q_T0}, s{Q_T1}")
        A(f"s_add_u32 s{Q_T0}, s{Q_T0}, {WS_A}")
        A(f"v_lshl_add_u32 v8, v1, 13, s{Q_T0}")
        A(f"s_lshl_b32 s{Q_T0}, s2, 14")
        A(f"s_add_u32 s{Q_T0}, s{Q_T0}, {WS_P}")
        A("v_and_b32 v9, 3, v1")
        A(f"v_lshl_add_u32 v9, v9, 12, s{Q_T0}")
        A("v_cmp_gt_u32 vcc, 32, v1")
        A(f"s_lshl_b32 s{Q_T0}, s{Q_PAIR}, 13")
        A(f"s_add_u32 s{Q_T0}, s{Q_T0}, s{Q_T1}")
        A("v_cndmask_b32 v8, v9, v8, vcc")
        A(f"s_add_u32 s{Q_T0}, s{Q_T0}, {WS_A}")
        A("v_and_b32 v9, 1, v1")
        A("v_lshlrev_b32 v9, 12, v9")
        A(f"v_xor_b32 v9, s{Q_T0}, v9")
        A("v_cmp_gt_u32 vcc, 48, v1")
        srd(A, S_OUT, P_OUT, L*D*2)
        A("v_cndmask_b32 v8, v9, v8, vcc")
        if "w" in O.PT: A(f"buffer_load_dword v38, v8, s[{S_WS}:{S_WS+3}], 0 offen")
        A(f"s_and_b32 s{Q_T0}, s{S_XCD}, 6")
        A(f"s_lshl_b32 s{Q_T0}, s{Q_T0}, 1")
        A(f"s_and_b32 s{Q_T1}, s{S_J}, 3")
        A(f"s_add_u32 s{Q_T0}, s{Q_T0}, s{Q_T1}")
        A(f"s_lshl_b32 s{Q_T0}, s{Q_T0}, 1")
        A(f"s_and_b32 s{Q_T1}, s{S_XCD}, 1")
        A(f"s_add_u32 s{Q_T0}, s{Q_T0}, s{Q_T1}")
        A(f"s_lshl_b32 s{Q_T0}, s{Q_T0}, 16")
        A(f"s_lshr_b32 s{Q_T1}, s{S_J}, 2")
        A(f"s_lshl_b32 s{Q_T1}, s{Q_T1}, 7")
        A(f"s_add_u32 s{Q_T0}, s{Q_T0}, s{Q_T1}")
        if "O" in O.PT: A("v_lshlrev_b32 v9, 10, v1")
        else:
            A("v_and_b32 v9, 15, v1")
            A("v_lshlrev_b32 v9, 12, v9")
        if "o" in O.PT.lower(): A(f"buffer_load_dword v37, v9, s[{S_OUT}:{S_OUT+3}], s{Q_T0} offen")
    if O.VERD:
        A(f"s_and_b32 s{Q_T0}, s2, 31")
        A(f"s_lshl_b32 s{Q_T0}, s{Q_T0}, {FS}")
        A(f"s_add_u32 s{Q_T0}, s{Q_T0}, {F_HERE}")
        A("v_and_b32 v8, 7, v1")
        A(f"v_lshl_add_u32 v8, v8, {5+FS}, s{Q_T0}")
        poll(A, 8, 9, STOK, "PV", mask=True)
        A("v_cmp_ne_u32 vcc, s31, v9")
        A("s_cmp_eq_u64 vcc, 0")
        A(f"s_cselect_b32 s{Q_T0}, 1, 2")
        A(f"v_mov_b32 v9, s{Q_T0}")
        A(f"v_mov_b32 v8, {L_VERD}")
        A("ds_write_b32 v8, v9")
    A("s_cmp_eq_u32 s2, 0")
    A("s_cbranch_scc0 S_CV")
    for i in range(4):
        A(f"v_lshlrev_b32 v8, {FS}, v1")
        A(f"v_add_u32 v8, {F_HERE+(64<<FS)*i}, v8")
        poll(A, 8, 9, STOK, "PE", mask=True)
    A(f"s_mov_b32 s{Q_T0}, {F_EP}")
    flag_store(A, Q_T0, 8, STOK)
    A("s_branch S_CV")
    A.label("S_LD")
    loader(A, kfin)

(flow2 if O.DL else flow1)()
A.label("S_CV")
conv_setup(A)
A(f"v_mov_b32 v{LV}, 12"); A(f"v_mov_b32 v{LV+1}, 12")
s_barrier(A, 2)
tss(A, 4, "a"); tss(A, 2, "u")
if O.CPRIO != O.SPRIO: A(f"s_setprio {O.CPRIO}")
conv(A, inj=None if O.GW2 else (O.PUBM, ["s_waitcnt vmcnt(0)", f"ds_write_b64 v{LSA}, {vr(LV,2)}"]))
if O.CPRIO != O.TPRIO: A(f"s_setprio {O.TPRIO}")
if O.TL3:
    conv_final3(A); s_tail3(A)
else:
    tss(A, 3, "u")
    s_barrier(A, 3)
    conv_final(A, "sc1")
    tss(A, 4, "u")
    s_tail(A)
fin(A, "S")
A.label("K_END")
A("s_endpgm")
kernel_desc(A, KN, 256)
open(sys.argv[1], "w").write(A.text())
```

```python
import sys; sys.path.insert(0, "gen")
import parts
from parts import *
import ssm
from ssm import *

class Opt: pass
O = Opt()
O.TS = False
O.ROT = (0, 0, 2, 1)
O.SPRIO = 3; O.CPRIO = 0; O.GPRIO = 1; O.TPRIO = 3
O.CODEPF = True
O.YPRIO = None; O.G2P = None; O.MID = 0; O.TR2 = False; O.F32 = 0; O.YT = None; O.YN = 14; O.YS = 0; O.YR = 1; O.YA = 0; O.YROT = False; O.XE = 0; O.FK = False; O.YP = 1; O.KROT = 0; O.ECP = 0; O.EPOL = 0
import math
O.SPIN = 100000
O.SLP = 4; O.HSLP = 1
O.TSC = None; O.TSG = "a"; O.TSS = "a"
O.ARR = 1
O.DEPTH = 14
O.PUBM = 12
O.SLOW = False
O.DIAG = None
O.HFS = 8
O.HLD = "sc1"; O.HST = "sc1"; O.GHOLD = False; O.VERD = False; O.NA = 4; O.PFD = 2; O.NOPK = True; O.KG2 = True; O.KLO = "pk"; O.KHI = "sc"; O.LFIN = 7; O.TOUCH = False; O.PST = "sc1"; O.AFIRST = False; O.XFL = ""; O.W1FL = ""; O.W2FL = ""; O.TFL = "nt"; O.UFL = ""; O.PDLY = 0; O.LOOK = 4; O.PFL = 99; O.L3 = "i"; O.IPRIO = 3; O.TAILK = 0
O.X2 = ""; O.ST = (1, 14, 28, 42)
O.HAB = False; O.BS = 8; O.FA = 6; O.PW = False; O.TCH = ""; O.TR = 2; O.W2H = False; O.PT = ""; O.APS = 3; O.XF = 0; O.RSLP = 0; O.XQ = None; O.XR = 2; O.TL3 = False; O.ASTEP = 48
O.GW2 = False; O.GW2N = 3; O.W2AF = 0; O.UW = 3
O.TL2 = False; O.PSTEP = 52; O.SPG = 3; O.POLW = 3; O.ASLP = 8
O.GPRE = 1
O.DL = False; O.LPRIO = 3; O.LSLP = 1; O.LDLY = 0
O.W2S = None
O.W2P = ((), (), (), ()); O.PFL2 = ""; O.UOWN = False
O.LA = 1; O.RSP = (2, 4, 6); O.PPOS = 0
O.DSL = (6, 7, 8, 10, 11, 12, 14, 15)
O.PAW = 2
for a in sys.argv[2:]: exec("O." + a)
parts.TS = O.TS
ssm.KG2 = O.KG2; ssm.KLO = O.KLO; ssm.KHI = O.KHI
parts.gflag_setup = lambda A: None

LF = LDS_SSM + 31744
L_GL, L_GD, L_SB, L_SL, L_RDY, L_HOK, L_VERD = LF, LF + 16, LF + 32, LF + 48, LF + 64, LF + 72, LF + 76
L_AOK = LF + 80
L_DUMMY = LF + 128
ssm.LDS_SFLAG = L_SB
FS = 8
F_HERE, F_UT, F_G, F_A, F_H, F_P, F_EP = [WS_FLAG + (x << FS) for x in (0, 256, 384, 512, 1536, 2560, 3584)]
assert F_EP + 256 <= (13 << 20)
WS_P = 16 << 20
WS_BYTES = (24 if O.TL3 else 20) << 20
WS_A2 = 20 << 20
STOK = 32
S_W8, S_SPIN, S_HF = 27, 85, 32

parts_ts = ts
def tsg(A, i, mode="a"):
    if O.TSC: return
    if O.TSG in mode: parts_ts(A, i)
def tss(A, i, mode="a"):
    if O.TSS in mode: parts_ts(A, i)

class Vm:
    def __init__(self, A): self.A = A; self.n = 0; self.done = 0
    def op(self, s):
        self.A(s)
        if s.startswith("buffer_") or s.startswith("global_"): self.n += 1
        return self.n
    def cnt(self, idn):
        k = min(self.n - idn, 63); self.done = max(self.done, self.n - k); return k
    def wait(self, idn, extra=""):
        if idn <= self.done:
            if extra: self.A(f"s_waitcnt {extra}")
            return
        self.A(f"s_waitcnt vmcnt({self.cnt(idn)}) {extra}")

def poll(A, vaddr, vt, tok, name, slp=None, mask=False):
    l = A.newlabel(name); d = A.newlabel(name)
    A(f"s_mov_b32 s{S_SPIN}, {O.SPIN}")
    A.label(l)
    A(f"buffer_load_dword v{vt}, v{vaddr}, s[{S_WS}:{S_WS+3}], 0 offen sc1")
    A("s_waitcnt vmcnt(0)")
    if mask:
        A(f"v_and_b32 v{vt+1}, -16, v{vt}")
        A(f"v_cmp_ne_u32 vcc, v{tok}, v{vt+1}")
    else:
        A(f"v_cmp_ne_u32 vcc, v{tok}, v{vt}")
    A(f"s_cbranch_vccz {d}")
    A(f"s_sleep {O.SLP if slp is None else slp}")
    A(f"s_sub_u32 s{S_SPIN}, s{S_SPIN}, 1")
    A(f"s_cbranch_scc0 {l}")
    A.label(d)

def lwait(A, vaddr, off, vt, val, issued=False, sleep=1):
    lab = A.newlabel("LW"); done = A.newlabel("LWD")
    if not issued: A(f"ds_read_b32 v{vt}, v{vaddr} offset:{off}")
    A("s_waitcnt lgkmcnt(0)")
    A(f"v_cmp_gt_u32 vcc, {val}, v{vt}")
    A(f"s_cbranch_vccz {done}")
    A.label(lab)
    if sleep: A(f"s_sleep {sleep}")
    A(f"ds_read_b32 v{vt}, v{vaddr} offset:{off}")
    A("s_waitcnt lgkmcnt(0)")
    A(f"v_cmp_gt_u32 vcc, {val}, v{vt}")
    A(f"s_cbranch_vccnz {lab}")
    A.label(done)

def token_get(A, va, tok):
    l = A.newlabel("RW"); d = A.newlabel("RW")
    A(f"v_mov_b32 v{va}, {L_RDY}")
    A.label(l)
    A(f"ds_read_b64 {vr(tok,2)}, v{va}")
    A("s_waitcnt lgkmcnt(0)")
    A(f"v_cmp_ne_u32 vcc, 1, v{tok+1}")
    A(f"s_cbranch_vccz {d}")
    A("s_sleep 1")
    A(f"s_branch {l}")
    A.label(d)

def flag_store(A, soff, va, vt, fl="sc1"):
    A(f"v_mov_b32 v{va}, 0")
    A("s_mov_b64 exec, 1")
    A(f"buffer_store_dword v{vt}, v{va}, s[{S_WS}:{S_WS+3}], s{soff} offen {fl}")
    A("s_mov_b64 exec, -1")

def rot_c0(A, dst, t0):
    a, b, c, d = O.ROT
    A(f"s_mov_b32 s{dst}, 0")
    if a: A(f"s_and_b32 s{t0}, s{S_J}, 3"); A(f"s_mul_i32 s{dst}, s{t0}, {a}")
    if b: A(f"s_lshr_b32 s{t0}, s{S_J}, 2"); A(f"s_mul_i32 s{t0}, s{t0}, {b}"); A(f"s_add_u32 s{dst}, s{dst}, s{t0}")
    if c: A(f"s_lshr_b32 s{t0}, s{S_XCD}, 1"); A(f"s_mul_i32 s{t0}, s{t0}, {c}"); A(f"s_add_u32 s{dst}, s{dst}, s{t0}")
    if d: A(f"s_and_b32 s{t0}, s{S_XCD}, 1"); A(f"s_mul_i32 s{t0}, s{t0}, {d}"); A(f"s_add_u32 s{dst}, s{dst}, s{t0}")

GOWN, GRD, GT, HV, AR, RW, FV, VTOK, GX = 50, 51, 52, 54, 56, 58, 59, 60, 62
ACCA, ACCB, AF, PK, HR0 = 64, 96, 128, 168, 184
OV, RX, TV = 55, 63, 49
FVB = 48
S_OO, S_PO, S_P1, S_PF = 76, 77, 78, 79
L_T = LDS_SSM
STMP = 160
S_HL, S_HR, S_C0 = 80, 81, 84

def g_flags_setup(A):
    A(f"s_lshl_b32 s{S_T0}, s{S_WAVE}, 2")
    A(f"s_add_u32 s{S_T0}, s{S_T0}, {LF}")
    A(f"v_mov_b32 v{GOWN}, s{S_T0}")
    A(f"v_and_b32 v{GRD}, 3, v1")
    A(f"v_lshlrev_b32 v{GRD}, 2, v{GRD}")
    A(f"v_add_u32 v{GRD}, {LF}, v{GRD}")

def krot(A, d, sh):
    A(f"s_lshr_b32 s{d}, s{S_J}, 2")
    if O.KROT == 1:
        A(f"s_cmp_eq_u32 s{d}, 7")
        A(f"s_cselect_b32 s{d}, 3, s{d}")
    elif O.KROT == 2:
        A(f"s_and_b32 s{d}, s{d}, 3")
        A(f"s_lshl_b32 s{d}, s{d}, 1")
    elif O.KROT == 3:
        A(f"s_and_b32 s{d}, s{d}, 1")
        A(f"s_mul_i32 s{d}, s{d}, 3")
    A(f"s_lshl_b32 s{d}, s{d}, {sh}")
def g2_setup(A):
    w = S_WAVE; T = 30
    if O.KROT: krot(A, 82, 12)
    A(f"s_and_b32 s{S_T0}, s{S_XCD}, 6")
    A(f"s_lshl_b32 s{S_T0}, s{S_T0}, 1")
    A(f"s_and_b32 s{S_T1}, s{S_J}, 3")
    A(f"s_add_u32 s{S_T0}, s{S_T0}, s{S_T1}")
    A(f"s_and_b32 s{S_T1}, s{S_XCD}, 1")
    A(f"s_lshl_b32 s{S_HF}, s{S_T0}, 1")
    A(f"s_add_u32 s{S_HF}, s{S_HF}, s{S_T1}")
    A(f"s_lshl_b32 s{S_HF}, s{S_HF}, {5+O.HFS}")
    A(f"s_add_u32 s{S_HF}, s{S_HF}, {F_H}")
    A(f"v_min_u32 v{T}, 27, v1")
    A(f"v_lshl_add_u32 v{FV}, v{T}, {O.HFS}, s{S_HF}")
    if O.FK:
        srd(A, S_W2, P_W2, D*F*2)
        A(f"s_mul_i32 s82, s{S_T1}, {(14-32) << O.HFS}")
        A(f"s_add_u32 s82, s82, s{S_HF}")
        if O.PW:
            A(f"s_lshr_b32 s83, s{w}, 1")
            A(f"s_lshl_b32 s83, s83, {5+O.HFS}")
            A(f"s_add_u32 s82, s82, s83")
            A(f"s_and_b32 s83, s{w}, 1")
            A(f"s_mul_i32 s83, s83, {7 << O.HFS}")
            A(f"s_add_u32 s82, s82, s83")
            A(f"v_min_u32 v{T}, 6, v1")
        else:
            A(f"v_and_b32 v{T}, 31, v1")
            A(f"v_min_u32 v{T}, 13, v{T}")
            A(f"v_and_or_b32 v{T}, v1, 32, v{T}")
        A(f"v_lshl_add_u32 v{FV}, v{T}, {O.HFS}, s82")
        A(f"s_mul_i32 s82, s{w}, {28*16384}")
        A(f"s_lshr_b32 s83, s{S_J}, 2")
        A(f"s_lshl_b32 s83, s83, 7")
        A(f"s_add_u32 s82, s82, s83")
        A(f"s_lshl_b32 s83, s{w}, 15")
    if O.HAB:
        A(f"s_and_b32 s{S_HR}, s{w}, 1")
        A(f"s_lshl_b32 s{S_HR}, s{S_HR}, 1")
        A(f"s_lshr_b32 s{S_HL}, s{w}, 1")
        A(f"s_add_u32 s{S_HR}, s{S_HR}, s{S_HL}")
        A(f"s_mul_i32 s{S_HR}, s{S_HR}, 7")
        A(f"v_min_u32 v{T}, 6, v1")
        A(f"v_add_u32 v{T}, s{S_HR}, v{T}")
        A(f"v_lshl_add_u32 v{FV if O.PW else FVB}, v{T}, {O.HFS}, s{S_HF}")
        A(f"v_add_u32 v{FVB}, {F_P-F_H}, v{FV if O.PW else FVB}")
    A(f"s_lshl_b32 s{S_T0}, s{S_T0}, 2")
    A(f"s_and_b32 s{S_HR}, s{w}, 1")
    A(f"s_add_u32 s{S_T0}, s{S_T0}, s{S_HR}")
    A(f"s_lshl_b32 s{S_OO}, s{S_T1}, 1")
    A(f"s_add_u32 s{S_OO}, s{S_OO}, s{S_T0}")
    A(f"s_xor_b32 s{S_HL}, s{S_OO}, {1 if O.FK else 2}")
    A(f"s_mul_i32 s{S_HL}, s{S_HL}, 112")
    A(f"s_mul_i32 s{S_HR}, s{S_OO}, 112")
    A(f"s_lshl_b32 s{S_T1}, s{S_T1}, 1")
    A(f"s_lshr_b32 s{S_T0}, s{w}, 1")
    A(f"s_add_u32 s{S_T1}, s{S_T1}, s{S_T0}")
    A(f"s_mul_i32 s{S_T1}, s{w if O.FK else S_T1}, 28")
    A(f"s_add_u32 s{S_HL}, s{S_HL}, s{S_T1}")
    A(f"s_add_u32 s{S_HR}, s{S_HR}, s{S_T1}")
    A(f"s_lshl_b32 s{S_HL}, s{S_HL}, 10")
    A(f"s_lshl_b32 s{S_HR}, s{S_HR}, 10")
    A(f"s_lshl_b32 s{S_OO}, s{S_OO}, 15")
    A(f"s_lshr_b32 s{S_T1}, s{S_J}, 2")
    A(f"s_lshl_b32 s{S_T1}, s{S_T1}, 1")
    A(f"s_add_u32 s{S_T1}, s{S_T1}, s{S_T0}")
    A(f"s_lshl_b32 s{S_T1}, s{S_T1}, 6")
    A(f"s_add_u32 s{S_OO}, s{S_OO}, s{S_T1}")
    A(f"v_lshlrev_b32 v{HV}, 4, v1")
    A(f"s_lshl_b32 s{S_T1}, s{w}, 15")
    A(f"v_add_u32 v{RW}, s{S_T1}, v{HV}")
    A(f"v_xor_b32 v{RX}, 0x10000, v{RW}")
    A(f"s_lshl_b32 s{S_T1}, s{w}, 12")
    A(f"s_add_u32 s{S_T1}, s{S_T1}, {L_T}")
    A(f"v_add_u32 v{TV}, s{S_T1}, v{HV}")
    A(f"v_lshrrev_b32 v{T+1}, 5, v1")
    A(f"v_and_b32 v{T}, 31, v1")
    A(f"v_lshlrev_b32 v{T}, 10, v{T}")
    A(f"v_lshl_add_u32 v{OV}, v{T+1}, 4, v{T}")
    A(f"v_bfe_u32 v{T+2}, v1, 2, 2")
    A(f"v_bfe_u32 v{T+3}, v1, 4, 1")
    A(f"v_bfe_u32 v{T+4}, v1, 1, 1")
    A(f"v_lshl_add_u32 v{T+3}, v{T+3}, 1, v{T+4}")
    A(f"v_bfe_u32 v{T+4}, v1, 3, 1")
    A(f"v_xor_b32 v{T+4}, s{S_T0}, v{T+4}")
    A(f"v_lshl_add_u32 v{T+3}, v{T+4}, 2, v{T+3}")
    A(f"v_lshl_add_u32 v{T+2}, v{T+1}, 2, v{T+2}")
    A(f"v_lshlrev_b32 v{T+2}, 7, v{T+2}")
    A(f"v_lshl_add_u32 v{T+2}, v{T+3}, 4, v{T+2}")
    A(f"v_and_b32 v{T+4}, 1, v1")
    A(f"v_lshl_add_u32 v{T+2}, v{T+4}, 3, v{T+2}")
    A(f"s_lshl_b32 s{S_T0}, s{S_T0}, 16")
    A(f"v_add_u32 v{AR}, s{83 if O.FK else S_T0}, v{T+2}")
    A(f"v_xor_b32 v{AR+1}, 64, v{AR}")

XR = [128 + 8 * r for r in range(7)] + [224 + 8 * r for r in range(4)] + [2 + 8 * r for r in range(3)]
def fk_x(A, part=False):
    if O.YPRIO is not None and not (part and O.YA == 0): A(f"s_setprio {O.YPRIO}")
    for r in range(14):
        for x in w2_read(r): A(x)
    A("v_lshrrev_b32 v28, 3, v1")
    A("v_and_b32 v29, 7, v1")
    A("v_bfe_u32 v27, v1, 4, 1")
    A("v_lshlrev_b32 v28, 10, v28")
    A("v_lshlrev_b32 v27, 2, v27")
    A("v_xor_b32 v27, v29, v27")
    A("v_lshl_add_u32 v26, v27, 4, v28")
    A(f"v_add_u32 v27, {8192-1024}, v26")
    if O.YROT:
        A(f"s_and_b32 s68, s{S_J}, 3")
        A(f"s_mul_i32 s68, s68, 7")
        A(f"s_lshr_b32 s68, s68, 1")
        A(f"s_lshl_b32 s68, s68, 11")
        A(f"s_add_u32 s71, s83, 4096")
        A(f"s_add_u32 s70, s82, {14*16384}")
        A("s_waitcnt lgkmcnt(0)")
        for r in range(14):
            A(f"s_add_u32 m0, s71, s68")
            A(f"s_lshl_b32 s69, s68, 3")
            A(f"s_add_u32 s69, s69, s70")
            A(f"buffer_load_dwordx4 v26, s[{S_W2}:{S_W2+3}], s69 offen lds")
            A(f"buffer_load_dwordx4 v27, s[{S_W2}:{S_W2+3}], s69 offen offset:1024 lds")
            if r < 13:
                A("s_add_u32 s68, s68, 2048")
                A("s_cmp_eq_u32 s68, 28672")
                A("s_cselect_b32 s68, 0, s68")
        return
    for r in range(O.YN):
        if O.YP == 2 and r == O.YA:
            if part: return
            A.label("K_GY")
        if r in (0, 11): A(f"s_waitcnt lgkmcnt({12 if r == 0 else 0})")
        A(f"s_add_u32 m0, s83, {4096+r*2048}")
        A(f"s_add_u32 s{S_T0}, s82, {(14+r)*16384}")
        A(f"buffer_load_dwordx4 v26, s[{S_W2}:{S_W2+3}], s{S_T0} offen {O.W2FL} lds")
        A(f"buffer_load_dwordx4 v27, s[{S_W2}:{S_W2+3}], s{S_T0} offen offset:1024 {O.W2FL} lds")
    if O.YN < 12: A("s_waitcnt lgkmcnt(0)")
def w2_read(i):
    k = i % 28; dst = AF + 8 * (i % O.NA)
    if O.FK: k = i % 14; dst = XR[k]
    o = (k // 14) * 32768 + 4096 + (k % 14) * 2048
    return [f"ds_read_b64_tr_b16 {vr(dst+4*a+2*x,2)}, v{AR+a} offset:{o+x*1024}" for a in range(2) for x in range(2)]
HQ = {}
def h_load(i):
    base, k = (S_HL, i) if i < 28 else (S_HR, i - 28)
    if O.FK:
        r = i % 14; base = S_HR if (i // 14) % 2 else S_HL
        pre = [f"s_add_u32 s{S_T0}, s{base}, {(r + 14 * (i // 28)) * 1024}"] if r % 4 == 0 else []
        return pre + [f"buffer_load_dwordx4 {vr(HQ[i],4)}, v{HV}, s[{S_WS}:{S_WS+3}], s{S_T0} offen offset:{(r%4)*1024} {O.HLD}"]
    pre = [f"s_add_u32 s{S_T0}, s{base}, {k*1024}"] if k % 4 == 0 else []
    if O.KROT and k == 0:
        pre = [f"s_add_u32 s{S_T0}, s{base}, s82", f"s_add_u32 s83, s{base}, {28*1024}"]
    elif O.KROT and k % 4 == 0:
        pre = [f"s_add_u32 s{S_T0}, s{S_T0}, 4096", f"s_cmp_eq_u32 s{S_T0}, s83", f"s_cselect_b32 s{S_T0}, s{base}, s{S_T0}"]
    return pre + [f"buffer_load_dwordx4 {vr(HQ[i],4)}, v{HV}, s[{S_WS}:{S_WS+3}], s{S_T0} offen offset:{(k%4)*1024} {O.HLD}"]

def g_chunk_dma(cc):
    slot = cc % 4
    out = [f"s_add_u32 s{S_HO}, s{S_C0}, {cc}", f"s_and_b32 s{S_HO}, s{S_HO}, 7",
           f"s_lshl_b32 s{S_T1}, s{S_HO}, 7", f"s_add_u32 m0, s{S_M0X}, {slot*32768}", f"s_add_u32 s{S_T1}, s{S_T1}, s{S_XO}"]
    for i in range(4):
        out.append(f"buffer_load_dwordx4 v{G1_XD+i}, s[{S_X}:{S_X+3}], s{S_T1} offen offset:{i*1024} {O.XFL} lds")
    out += [f"s_mul_i32 s{S_T1}, s{S_HO}, {64*2*F}", f"s_add_u32 m0, s{S_M0X}, {slot*32768+16384}", f"s_add_u32 s{S_T1}, s{S_T1}, s{S_WO}"]
    for i in range(4):
        out.append(f"buffer_load_dwordx4 v{G1_WD+i}, s[{S_W1}:{S_W1+3}], s{S_T1} offen offset:{i*1024} {O.W1FL} lds")
    return out

VW2, S_W2O, S_W2M = 22, 78, 79
def gw2_setup(A):
    w = S_WAVE
    srd(A, S_W2, P_W2, D*F*2)
    A("v_lshrrev_b32 v30, 3, v1")
    A("v_and_b32 v31, 7, v1")
    A("v_bfe_u32 v32, v1, 4, 1")
    A("v_lshlrev_b32 v32, 2, v32")
    A("v_xor_b32 v31, v31, v32")
    A("v_lshlrev_b32 v30, 10, v30")
    A(f"v_lshl_add_u32 v{VW2}, v31, 4, v30")
    A(f"s_and_b32 s{S_T0}, s{S_XCD}, 1")
    A(f"s_lshl_b32 s{S_T0}, s{S_T0}, 3")
    A(f"s_and_b32 s{S_T1}, s{w}, 1")
    A(f"s_add_u32 s{S_T0}, s{S_T0}, s{S_T1}")
    A(f"s_mul_i32 s{S_W2O}, s{S_T0}, {7*16384}")
    A(f"s_mul_i32 s{S_W2M}, s{S_T1}, {7*2048}")
    A(f"s_lshr_b32 s{S_T0}, s{S_J}, 2")
    A(f"s_lshl_b32 s{S_T0}, s{S_T0}, 7")
    A(f"s_add_u32 s{S_W2O}, s{S_W2O}, s{S_T0}")
    A(f"s_lshr_b32 s{S_T0}, s{w}, 1")
    A(f"s_lshl_b32 s{S_T1}, s{S_T0}, 13")
    A(f"s_add_u32 s{S_W2O}, s{S_W2O}, s{S_T1}")
    A(f"s_lshl_b32 s{S_T1}, s{S_T0}, 10")
    A(f"s_add_u32 s{S_W2M}, s{S_W2M}, s{S_T1}")
def gw2_dma(sl):
    out = []
    for k in range(7):
        out += [f"s_add_u32 m0, s{S_W2M}, {sl*32768+4096+k*2048}", f"s_add_u32 s{S_T1}, s{S_W2O}, {(14*sl+k)*16384}",
                f"buffer_load_dwordx4 v{VW2}, s[{S_W2}:{S_W2+3}], s{S_T1} offen {O.W2FL} lds"]
    return out

def g1_main(A, vm, cid):
    vm.wait(cid[0])
    A(f"v_mov_b32 v{GT}, 1"); A(f"ds_write_b32 v{GOWN}, v{GT}")
    lwait(A, GRD, 0, GT + 1, 1, sleep=0)
    for r in g1_reads(0): A(r)
    for c in range(8):
        if O.TSC and c in O.TSC: parts_ts(A, 2 + O.TSC.index(c))
        off = 0 if c + 1 < O.LOOK else 48
        own = 4 <= c + 3 < O.LOOK
        units = [u for u in split_groups(g_chunk_dma(c + 3), 8)] if own else []
        slots = O.DSL
        for s in range(4):
            t = 4 * c + s
            mf = g1_mfmas(t)
            pre = []
            if s == 3:
                if c < 7: lwait(A, GRD, off, GT + 1, c + 2, issued=True, sleep=0)
                else: A("s_waitcnt lgkmcnt(0)")
                pre = [f"v_mov_b32 v{GT}, {c+1}", f"ds_write_b32 v{GOWN}, v{GT} offset:16"]
            elif s == O.ARR and c + 1 < O.LOOK:
                vm.wait(cid[c + 1], "lgkmcnt(0)")
                pre = [f"v_mov_b32 v{GT}, {c+2}", f"ds_write_b32 v{GOWN}, v{GT}"]
            else: A("s_waitcnt lgkmcnt(0)")
            if own and s == 1: lwait(A, GRD, 16, GX, c, issued=True, sleep=0)
            rd = g1_reads(t + 1) if t < 31 else []
            post = [f"ds_read_b32 v{GT+1}, v{GRD} offset:{off}"] if (s == 2 and c < 7) else []
            if own and s == 0: post.append(f"ds_read_b32 v{GX}, v{GRD} offset:16")
            def dm(g):
                if own:
                    for _ in range(slots.count(4 * s + g)):
                        for x in units.pop(0): vm.op(x)
                    if not units: cid[c + 3] = vm.n if c + 3 not in cid else cid[c + 3]
            A(mf[0])
            for x in rd[:3]: A(x)
            dm(0)
            A(mf[1])
            for x in rd[3:]: A(x)
            dm(1)
            A(mf[2])
            for x in pre + post: A(x)
            if c == 0 and O.LOOK >= 4 and O.L3 == "i":
                for x in split_groups(g_chunk_dma(3), 4)[s]: vm.op(x)
                cid[3] = vm.n
            dm(2)
            A(mf[3])
            dm(3)
        assert not units

_g1_reads = g1_reads
def g1_reads(t):
    out = _g1_reads(t)
    if O.HAB:
        c, s_ = divmod(t, 4); lo = ((c % 4) % 2) * 32768
        out[5] = out[5].replace(f"offset:{lo+4096}", f"offset:{lo+8192}")
    return out
def hab_setup(A):
    A(f"s_and_b32 s{S_T0}, s{S_XCD}, 1")
    A(f"s_xor_b32 s{S_T0}, s{S_T0}, 1")
    A(f"s_lshl_b32 s{S_T0}, s{S_T0}, 16")
    A(f"s_xor_b32 s{S_XO}, s{S_XO}, s{S_T0}")
def hab_setup2(A):
    A(f"s_lshr_b32 s{S_T0}, s{S_WAVE}, 1")
    A(f"s_lshl_b32 s{S_T0}, s{S_T0}, 12")
    for k in range(8): A(f"v_subrev_u32 v{G1_XR+k}, s{S_T0}, v{G1_XR+k}")

def g1_fr(lst, t, ns):
    import re
    o = G1_FR + (t % 2) * 16; n = G1_FR + (t % ns) * 16
    def f(m):
        a, b = int(m.group(1)), int(m.group(2))
        if o <= a < o + 16: return f"v[{a-o+n}:{b-o+n}]"
        return m.group(0)
    return [re.sub(r"v\[(\d+):(\d+)\]", f, x) for x in lst]

def lchk(A, vaddr, off, vt, val):
    lab = A.newlabel("LW"); done = A.newlabel("LWD")
    A(f"v_cmp_gt_u32 vcc, {val}, v{vt}")
    A(f"s_cbranch_vccz {done}")
    A.label(lab)
    A(f"ds_read_b32 v{vt}, v{vaddr} offset:{off}")
    A("s_waitcnt lgkmcnt(0)")
    A(f"v_cmp_gt_u32 vcc, {val}, v{vt}")
    A(f"s_cbranch_vccnz {lab}")
    A.label(done)

def g1_main2(A, vm, cid):
    LA = O.LA; NS = LA + 1
    lg = Lg(A); rid = {}
    vm.wait(cid[0])
    A(f"v_mov_b32 v{GT}, 1"); A(f"ds_write_b32 v{GOWN}, v{GT}")
    lwait(A, GRD, 0, GT + 1, 1, sleep=0)
    for t in range(LA):
        for r in g1_fr(g1_reads(t), t, NS): rid[t] = lg.op(r)
    sc = 4 - LA
    for c in range(8):
        if O.TSC and c in O.TSC: parts_ts(A, 2 + O.TSC.index(c))
        off = 0 if c + 1 < O.LOOK else 48
        own = 4 <= c + 3 < O.LOOK
        units = [u for u in split_groups(g_chunk_dma(c + 3), 8)] if own else []
        if O.GW2 and c >= 5 and c - 5 < O.GW2N:
            own = True; units = split_groups(gw2_dma(c - 5), 7) + [[]]
        for s in range(4):
            t = 4 * c + s
            mf = g1_fr(g1_mfmas(t), t, NS)
            need = rid[t]
            if s == sc and c < 7: need = max(need, pid)
            if own and s == 1: need = max(need, did)
            first = []; pre = []
            if s == O.ARR and c + 1 < O.LOOK:
                vm.wait(cid[c + 1])
                first += [f"ds_write_b32 v{GOWN}, v{GT}"]
                A(f"v_mov_b32 v{GT}, {c+2}")
            lg.wait(need)
            if s == sc and c < 7: lchk(A, GRD, off, GT + 1, c + 2)
            if own and s == 1: lchk(A, GRD, 16, GX, c)
            if s == 3: pre = [f"v_mov_b32 v{GT}, {c+1}", f"ds_write_b32 v{GOWN}, v{GT} offset:16"]
            rd = g1_fr(g1_reads(t + LA), t + LA, NS) if t + LA < 32 else []
            def dm(g):
                if own:
                    for _ in range(O.DSL.count(4 * s + g)):
                        for x in units.pop(0): vm.op(x)
                    if not units and c + 3 not in cid: cid[c + 3] = vm.n
            def em(x):
                if x.startswith("ds_"): return lg.op(x)
                A(x)
            sp = O.RSP
            A(mf[0])
            for x in first + pre: em(x)
            if s == sc - 1 and c < 7 and O.PPOS == 0: pid = lg.op(f"ds_read_b32 v{GT+1}, v{GRD} offset:{off}")
            if own and s == 0: did = lg.op(f"ds_read_b32 v{GX}, v{GRD} offset:16")
            for x in rd[:sp[0]]: rid[t + LA] = lg.op(x)
            dm(0)
            A(mf[1])
            for x in rd[sp[0]:sp[1]]: rid[t + LA] = lg.op(x)
            dm(1)
            A(mf[2])
            if s == sc - 1 and c < 7 and O.PPOS == 2: pid = lg.op(f"ds_read_b32 v{GT+1}, v{GRD} offset:{off}")
            for x in rd[sp[1]:sp[2]]: rid[t + LA] = lg.op(x)
            if c == 0 and O.LOOK >= 4 and O.L3 == "i":
                for x in split_groups(g_chunk_dma(3), 4)[s]: vm.op(x)
                cid[3] = vm.n
            dm(2)
            A(mf[3])
            for x in rd[sp[2]:]: rid[t + LA] = lg.op(x)
            dm(3)
        assert not units

def silu_np(A, regs, tmp):
    n = len(regs)
    for i, (s, d) in enumerate(regs):
        for e in range(2): A(f"v_mul_f32 v{tmp+2*i+e}, s{S_CL}, v{s+e}")
    for i in range(2 * n): A(f"v_exp_f32 v{tmp+i}, v{tmp+i}")
    for i in range(2 * n): A(f"v_add_f32 v{tmp+i}, 1.0, v{tmp+i}")
    for i in range(2 * n): A(f"v_rcp_f32 v{tmp+i}, v{tmp+i}")
    for i, (s, d) in enumerate(regs):
        for e in range(2): A(f"v_mul_f32 v{tmp+2*i+e}, v{tmp+2*i+e}, v{s+e}")
    for i, (s, d) in enumerate(regs):
        A(f"v_cvt_pk_bf16_f32 v{d}, v{tmp+2*i}, v{tmp+2*i+1}")

def split_groups(lst, n):
    units = []; cur = []
    for x in lst:
        cur.append(x)
        if x.startswith("buffer_"): units.append(cur); cur = []
    g = [[] for _ in range(n)]
    for i, u in enumerate(units): g[i * n // len(units)] += u
    return g

def g1_epi(A):
    w = S_WAVE
    if O.VERD:
        A(f"v_mov_b32 v{GX}, {L_RDY}")
        A(f"ds_read_b32 v{GT}, v{GX} offset:{L_VERD-L_RDY}")
    A(f"s_lshl_b32 s{S_HO}, s{S_RB}, 2")
    A(f"s_and_b32 s{S_T0}, s{w}, 2")
    A(f"s_add_u32 s{S_HO}, s{S_HO}, s{S_T0}")
    A(f"s_mul_i32 s{S_T1}, s{S_T0}, 7")
    A(f"s_mul_i32 s{S_HO}, s{S_HO}, 112")
    A(f"s_lshl_b32 s{S_T0}, s{S_CB}, 3")
    A(f"s_add_u32 s{S_HO}, s{S_HO}, s{S_T0}")
    A(f"s_and_b32 s{S_T0}, s{w}, 1")
    A(f"s_add_u32 s{S_T1}, s{S_T1}, s{S_T0}")
    A(f"s_lshl_b32 s{S_T0}, s{S_T0}, 2")
    A(f"s_add_u32 s{S_HO}, s{S_HO}, s{S_T0}")
    A(f"s_lshr_b32 s{S_T0}, s{S_J}, 2")
    A(f"s_lshl_b32 s{S_T0}, s{S_T0}, 1")
    A(f"s_add_u32 s{S_T1}, s{S_T1}, s{S_T0}")
    A(f"s_lshl_b32 s{S_T1}, s{S_T1}, {O.HFS}")
    A(f"s_add_u32 s{S_HF}, s{S_HF}, s{S_T1}")
    A(f"s_lshl_b32 s{S_HO}, s{S_HO}, 10")
    A(f"s_add_u32 s{S_XO}, s{S_HO}, {112*1024}")
    if O.HAB:
        A(f"s_lshr_b32 s{S_T0}, s{w}, 1")
        A(f"s_mul_i32 s{S_T0}, s{S_T0}, {112*1024}")
        A(f"s_sub_u32 s{S_XO}, s{S_HO}, s{S_T0}")
        A(f"s_and_b32 s{S_T0}, s{S_XCD}, 1")
        A(f"s_mul_i32 s{S_T0}, s{S_T0}, {224*1024}")
        A(f"s_add_u32 s{S_HO}, s{S_XO}, {224*1024}")
        A(f"s_sub_u32 s{S_HO}, s{S_HO}, s{S_T0}")
        A(f"s_add_u32 s{S_XO}, s{S_XO}, s{S_T0}")
        token_get(A, GX, VTOK)
    st = []
    p = 0
    for a, b in ([(0,0),(1,0),(0,1),(1,1)] if O.HAB else [(0,0),(0,1),(1,0),(1,1)]):
        if True:
            acc = G1_ACC + (2*a+b)*16
            for fh in range(2):
                dst = G1_FR + p * 4
                (silu_np if O.NOPK else silu_pairs)(A, [(acc + 8*fh + 2*i, dst + i) for i in range(4)], STMP)
                so = S_HO if b == 0 else S_XO
                st.append(f"buffer_store_dwordx4 {vr(dst,4)}, v{HV}, s[{S_WS}:{S_WS+3}], s{so} offen offset:{(2*a+fh)*1024}")
                if O.HAB and p == O.FA:
                    A(f"s_waitcnt vmcnt({p-4})")
                    flag_store(A, S_HF, GT, VTOK, O.HST)
                    tsg(A, 3, "h")
                    A(f"s_add_u32 s{S_HF}, s{S_HF}, {F_P-F_H}")
                A(st[-1] + " " + O.HST)
                p += 1
    tsg(A, 5, "e")
    if O.GW2:
        token_get(A, GX, VTOK)
        lwait(A, GRD, 16, GT, 8, sleep=0)
        n = 0
        if O.W2AF == 0:
            for sl in range(O.GW2N, 4):
                for x in gw2_dma(sl): A(x)
                n += 7
        A(f"s_waitcnt vmcnt({n})")
        flag_store(A, S_HF, GT, VTOK, O.HST)
        if O.W2AF == 1:
            for sl in range(O.GW2N, 4):
                for x in gw2_dma(sl): A(x)
        return
    if not O.VERD:
        if not O.HAB: token_get(A, GX, VTOK)
        if O.FK and O.YP == 2:
            A(f"ds_read_b32 v{GT}, v{GRD} offset:48")
            A("s_waitcnt lgkmcnt(0)")
            A(f"v_cmp_gt_u32 vcc, 12, v{GT}")
            A("s_cbranch_vccnz G_NX")
            fk_x(A, True)
            A(f"s_waitcnt vmcnt({2*O.YA})")
            flag_store(A, S_HF, GT, VTOK, O.HST)
            tsg(A, 3, "ae")
            if O.YA == 0: A(f"s_setprio {O.YPRIO}")
            A("s_branch K_GY")
            A.label("G_NX")
        if O.FK and O.YP == 0:
            lwait(A, GRD, 48, GT, 12)
            fk_x(A)
            A("s_waitcnt vmcnt(28)")
            flag_store(A, S_HF, GT, VTOK, O.HST)
            A("s_branch K_G3")
            return
        A("s_waitcnt vmcnt(0)")
        flag_store(A, S_HF, GT, VTOK, O.HST)
        return
    lwait(A, GX, L_VERD - L_RDY, GT, 1, issued=True)
    A(f"ds_read_b64 {vr(VTOK,2)}, v{GX}")
    A(f"v_cmp_eq_u32 vcc, {1 if not O.SLOW else 7}, v{GT}")
    A("s_waitcnt vmcnt(0) lgkmcnt(0)")
    A("s_cbranch_vccz G_SLOW")
    flag_store(A, S_HF, GT, VTOK, O.HST)
    A("s_branch G_FD")
    A.label("G_SLOW")
    for x in st: A(x + " sc1")
    A("s_waitcnt vmcnt(0)")
    flag_store(A, S_HF, GT, VTOK)
    A.label("G_FD")

def g2_main(A):
    vm = Vm(A); lg = Lg(A)
    hid = {}; wid = {}
    assert HR0 + 4 * O.DEPTH <= 256 and AF + 8 * O.NA <= PK
    sched = {}; free = [HR0 + 4 * k for k in range(O.DEPTH)] + [28 + 4 * k for k in range(O.XE)]; nx = 0
    for stp in range(0, 56):
        if stp >= 1: free.append(HQ[stp - 1])
        if O.XQ and stp == O.XQ[0]: free += [2 + 4 * k for k in range(8)]
        if O.XQ and stp == O.XQ[1]: free += [ACCA + 4 * k for k in range(8)]
        sched[stp] = []
        while nx < 56 and free and len(sched[stp]) < (O.DEPTH + O.XE if stp == 0 else O.XR):
            HQ[nx] = free.pop(0); sched[stp].append(nx); nx += 1; lasts = stp
    for i in sched[0]:
        for x in h_load(i): vm.op(x)
        hid[i] = vm.n
    for i in range(O.PFD): wid[i] = 0
    if O.FK:
        assert HR0 + 4 * O.DEPTH <= 224
        for i in range(56): wid[i] = 0
    send = []
    for t in range(2):
        for hf in range(2):
            pk = ACCA+16*t+8*hf if O.FK else PK+8*t+4*hf
            send += [f"v_cvt_pk_bf16_f32 v{pk+k}, v{ACCA+16*t+8*hf+2*k}, v{ACCA+16*t+8*hf+2*k+1}" for k in range(4)]
            send.append(f"ds_write_b128 v{RW}, {vr(pk,4)} offset:{2048*t+1024*hf}")
    MD = 1 if O.MID else 0
    yq = []; yid = {}
    for r in range(O.YN, 14):
        yq.append([f"s_add_u32 m0, s83, {4096+r*2048}", f"s_add_u32 s68, s82, {(14+r)*16384}", f"buffer_load_dwordx4 v26, s[{S_W2}:{S_W2+3}], s68 offen lds"])
        yq.append([f"buffer_load_dwordx4 v27, s[{S_W2}:{S_W2+3}], s68 offen offset:1024 lds  ; y{r}"])
    if O.F32: send = [f"ds_write_b128 v{RW}, {vr(ACCA+4*q,4)} offset:{1024*q}" for q in (4, 5, 6, 7, 0, 1, 2, 3)]
    XO = 8192 if O.F32 else 0
    send += [f"v_mov_b32 v{GT+1}, {9+MD}", f"ds_write_b32 v{GOWN}, v{GT+1} offset:16"]
    if O.TS and O.TSG == "a" and not O.TSC: send.append(f"s_memtime s[{S_TS+10}:{S_TS+11}]")
    st = O.ST
    PR = 224
    pld = [f"buffer_load_dwordx4 {vr(PR+4*q,4)}, v{HV}, s[{S_WS}:{S_WS+3}], s{S_PO} offen offset:{1024*q} sc1" for q in range(4)]
    AL, GL_, VA0, SA0, SG0 = 240, 36, 38, 64, 68
    ald = []
    if O.TL3:
        A(f"s_lshr_b32 s{SG0}, s{S_OO}, 15")
        A(f"s_lshl_b32 s{SG0}, s{SG0}, 8")
        A(f"s_bfe_u32 s{SA0}, s{S_OO}, 0x40006")
        A(f"s_lshl_b32 s{SA0}, s{SA0}, 18")
        A(f"s_add_u32 s{SA0}, s{SA0}, s{SG0}")
        A(f"s_add_u32 s{SA0}, s{SA0}, {WS_A2}")
        A(f"s_add_u32 s{SG0}, s{SG0}, {WS_G}")
        for q in range(1, 4): A(f"s_add_u32 s{SA0+q}, s{SA0}, {q*65536}")
        A(f"v_and_b32 v{VA0+2}, 31, v1")
        A(f"v_lshlrev_b32 v{VA0+2}, 3, v{VA0+2}")
        A(f"v_lshrrev_b32 v{VA0}, 5, v1")
        A(f"v_lshl_add_u32 v{VA0}, v{VA0}, 15, v{VA0+2}")
        A(f"v_add_u32 v{VA0+1}, 16384, v{VA0}")
        ald = [f"buffer_load_dwordx2 {vr(GL_,2)}, v{VA0+2}, s[{S_WS}:{S_WS+3}], s{SG0} offen sc1"]
        ald += [f"buffer_load_dwordx2 {vr(AL+4*q+2*e,2)}, v{VA0+e}, s[{S_WS}:{S_WS+3}], s{SA0+q} offen sc1" for q in range(4) for e in range(2)]
    if O.TL2 or O.TL3:
        assert HR0 + 4 * O.DEPTH <= PR and O.PSTEP > lasts
        A(f"s_xor_b32 s{S_PO}, s2, 1")
        A(f"s_lshl_b32 s{S_PO}, s{S_PO}, 2")
        A(f"s_add_u32 s{S_PO}, s{S_PO}, s{S_WAVE}")
        A(f"s_lshl_b32 s{S_PO}, s{S_PO}, 12")
        A(f"s_add_u32 s{S_PO}, s{S_PO}, {WS_P}")
    for i in range(56):
        if O.TS and O.TSG == "s" and i in st: parts_ts(A, 2 + st.index(i))
        k = min(lg.n - wid[i], 15)
        need_l = wid[i] > lg.done
        if need_l: lg.done = lg.n - k
        vm.wait(hid[i], f"lgkmcnt({k})" if need_l else "")
        if O.HAB and 28 in sched[i]:
            vm.wait(bid)
            A(f"v_cmp_ne_u32 vcc, v{VTOK}, v{GT}")
            A("s_cbranch_vccz G_BD")
            poll(A, FVB, GT, VTOK, "PB", slp=O.HSLP)
            A.label("G_BD")
        fr = AF + 8 * (i % O.NA); hr = HQ[i]
        acc0 = ACCA if i < 28 else ACCB
        if O.FK: fr = XR[i % 14]; acc0 = ACCB if (i // 14) % 2 else ACCA
        g = [[], []]
        rdn = (28 <= i + O.PFD < 42) if O.FK else (i + O.PFD < 56)
        SB = 43 if O.FK else 29
        if rdn:
            rd = w2_read(i + O.PFD); g[0] += rd[:2]; g[1] += rd[2:]
        own = {}
        for q, nl in enumerate(sched[i] if i else []):
            hl = h_load(nl); own[hl[-1]] = nl
            g[min(q, 1)] += hl
        if i >= SB:
            for gi in range(2):
                for _ in range(O.SPG):
                    if send and not (O.XQ and O.XF and send[0].startswith("ds_write_b32") and (i, gi) < (lasts, 1)): g[gi].append(send.pop(0))
        if O.FK and i >= O.YS:
            for gi in range(O.YR):
                if yq: g[1 if O.YR == 1 else gi] += yq.pop(0)
        if O.FK and rdn and (i + O.PFD - 28) >= O.YN: assert yid[i + O.PFD - 28] <= vm.done, (i, yid, vm.done)
        if O.MID and i == O.MID:
            g[0].append(f"v_mov_b32 v{GT+1}, 9"); g[1].append(f"ds_write_b32 v{GOWN}, v{GT+1} offset:16")
        if (O.TL2 or O.TL3) and i == O.PSTEP:
            g[1] += pld
        if O.TL3 and O.ASTEP <= i:
            q = i - O.ASTEP
            if O.APS == 3: g[0] += ald[3*q:3*q+2]; g[1] += ald[3*q+2:3*q+3]
            else: g[1] += ald[q:q+1]
        for m, t in enumerate((1, 0)):
            acc = acc0 + 16 * t
            c = "0" if (i in (0, 14) if O.FK else i % 28 == 0) else vr(acc, 16)
            A(f"v_mfma_f32_32x32x16_bf16 {vr(acc,16)}, {vr(fr+4*t,4)}, {vr(hr,4)}, {c}" if "m" not in O.X2 else "s_nop 0")
            if i == SB and m == 0: A("s_nop 1")
            for x in g[m]:
                if x.startswith("ds_"): lg.op(x)
                else:
                    vm.op(x)
                    if x in own: hid[own[x]] = vm.n
                    if "; y" in x: yid[int(x.split("; y")[1])] = vm.n
        if O.HAB and i == O.BS: bid = vm.op(f"buffer_load_dword v{GT}, v{FVB}, s[{S_WS}:{S_WS+3}], 0 offen sc1")
        if rdn: wid[i + O.PFD] = lg.n
    T, R, GM = 2, 18, 34
    if not O.F32: A(f"ds_read_b32 v{GT+1}, v{GRD} offset:32")
    A(f"v_mov_b32 v{GT}, {10+MD}")
    A(f"v_xor_b32 v{GX}, 8, v{GOWN}")
    A(f"s_lshl_b32 s{S_T0}, s{S_WAVE}, 8")
    A(f"s_add_u32 s{S_T0}, s{S_T0}, {L_T+16384}")
    A(f"v_lshl_add_u32 v{GM+1}, v1, 2, s{S_T0}")
    if O.F32: A("s_nop 6")
    else: lwait(A, GRD, 32, GT + 1, 50, issued=True)
    A("s_nop 1")
    for q in range(4):
        A(f"ds_write_b128 v{RW}, {vr(ACCB+16+4*q,4)} offset:{XO+q*1024}")
    A(f"ds_write_b32 v{GOWN}, v{GT} offset:16")
    if O.TL3:
        if O.PSTEP >= 56:
            for x in pld: A(x)
        tsg(A, 2, "f")
        lwait(A, GX, 16, GT + 1, 10, sleep=0)
        for q in range(4):
            A(f"ds_read_b128 {vr(R+4*q,4)}, v{RX} offset:{q*1024}")
        A(f"s_mov_b32 s{S_SPIN}, {O.SPIN}")
        def chk(name, tg, lds_, first):
            A(f"s_waitcnt vmcnt({first})")
            A.label(name + "L")
            acc = None
            tg = list(tg)
            if len(tg) % 2: A(f"v_xor_b32 v{GM}, v{VTOK}, v{tg.pop()}"); acc = GM
            for k in range(0, len(tg), 2):
                A(f"v_xor_b32 v{44+(k&2)}, v{VTOK}, v{tg[k]}")
                A(f"v_xor_b32 v{45+(k&2)}, v{VTOK}, v{tg[k+1]}")
                if acc: A(f"v_or3_b32 v{GM}, v{GM}, v{44+(k&2)}, v{45+(k&2)}")
                else: A(f"v_or_b32 v{GM}, v{44+(k&2)}, v{45+(k&2)}"); acc = GM
            A(f"v_cmp_ne_u32 vcc, 0, v{GM}")
            A(f"s_cbranch_vccz {name}D")
            for x in lds_: A(x)
            A(f"s_sub_u32 s{S_SPIN}, s{S_SPIN}, 1")
            A("s_waitcnt vmcnt(0)")
            A(f"s_cbranch_scc0 {name}L")
            A.label(name + "D")
        assert O.PSTEP >= O.ASTEP + 9 // O.APS
        chk("G_A", [AL + 1 + 2 * k for k in range(8)] + [GL_ + 1], ald, 4)
        for k in range(8):
            A(f"v_and_b32 v{AL+2*k+1}, 0xffff0000, v{AL+2*k}")
            A(f"v_lshlrev_b32 v{AL+2*k}, 16, v{AL+2*k}")
        for k in range(8):
            A(f"v_pk_mul_f32 {vr(T+2*k,2)}, {vr(AL+2*k,2)}, {vr(GL_,2)} op_sel:[0,0] op_sel_hi:[1,0]")
        A(f"v_sub_f32 v{GL_}, 1.0, v{GL_}")
        A(f"v_cvt_pk_bf16_f32 v{GL_}, v{GL_}, v{GL_}")
        A(f"v_lshlrev_b32 v{GL_}, 16, v{GL_}")
        A("s_waitcnt lgkmcnt(0)")
        for k in range(8):
            A(f"v_pk_add_f32 {vr(ACCB+2*k,2)}, {vr(ACCB+2*k,2)}, {vr(R+2*k,2)}")
        for k in range(8):
            A(f"v_pk_fma_f32 {vr(T+2*k,2)}, {vr(ACCB+2*k,2)}, {vr(GL_,2)}, {vr(T+2*k,2)} op_sel:[0,0,0] op_sel_hi:[1,0,1]")
        tsg(A, 3, "f")
        chk("G_P", [PR + 1 + 2 * k for k in range(8)], pld, 0)
        tsg(A, 4, "f")
        for k in range(8):
            A(f"v_and_b32 v{PR+2*k+1}, 0xffff0000, v{PR+2*k}")
            A(f"v_lshlrev_b32 v{PR+2*k}, 16, v{PR+2*k}")
        for k in range(8):
            A(f"v_pk_fma_f32 {vr(T+2*k,2)}, {vr(PR+2*k,2)}, {vr(GL_,2)}, {vr(T+2*k,2)} op_sel:[0,0,0] op_sel_hi:[1,0,1]")
        g2_out(A, T)
        tsg(A, 5, "f")
        return
    if O.TL2:
        if O.PSTEP >= 56:
            for x in pld: A(x)
        tsg(A, 2, "f")
        lwait(A, GX, 16, GT + 1, 10, sleep=0)
        for q in range(4):
            A(f"ds_read_b128 {vr(R+4*q,4)}, v{RX} offset:{q*1024}")
        A(f"ds_read_b32 v{GT+1}, v{GOWN} offset:32")
        for q in range(4):
            A(f"s_waitcnt lgkmcnt({4-q})")
            for k in (2*q, 2*q+1):
                A(f"v_pk_add_f32 {vr(ACCB+2*k,2)}, {vr(ACCB+2*k,2)}, {vr(R+2*k,2)}")
        lwait(A, GOWN, 32, GT + 1, 100, issued=True)
        tsg(A, 3, "f")
        A(f"ds_read_b32 v{GM}, v{GM+1}")
        for q in range(4):
            A(f"ds_read_b128 {vr(T+4*q,4)}, v{TV} offset:{q*1024}")
        A(f"s_mov_b32 s{S_SPIN}, {O.SPIN}")
        A.label("G_PL")
        A("s_waitcnt vmcnt(0)")
        for k in range(4):
            A(f"v_xor_b32 v{R+k}, v{VTOK}, v{PR+1+4*k}")
            A(f"v_xor_b32 v{R+4+k}, v{VTOK}, v{PR+3+4*k}")
        A(f"v_or3_b32 v{R}, v{R}, v{R+1}, v{R+2}")
        A(f"v_or3_b32 v{R+3}, v{R+3}, v{R+4}, v{R+5}")
        A(f"v_or3_b32 v{R}, v{R}, v{R+6}, v{R+7}")
        A(f"v_or_b32 v{R}, v{R}, v{R+3}")
        A(f"v_cmp_ne_u32 vcc, 0, v{R}")
        A("s_cbranch_vccz G_PD")
        for x in pld: A(x)
        A(f"s_sub_u32 s{S_SPIN}, s{S_SPIN}, 1")
        A("s_cbranch_scc0 G_PL")
        A("s_waitcnt vmcnt(0)")
        A.label("G_PD")
        tsg(A, 4, "f")
        for k in range(8):
            A(f"v_and_b32 v{PR+2*k+1}, 0xffff0000, v{PR+2*k}")
            A(f"v_lshlrev_b32 v{PR+2*k}, 16, v{PR+2*k}")
        for k in range(8):
            A(f"v_pk_add_f32 {vr(ACCB+2*k,2)}, {vr(ACCB+2*k,2)}, {vr(PR+2*k,2)}")
        A("s_waitcnt lgkmcnt(0)")
        for k in range(8):
            A(f"v_pk_fma_f32 {vr(T+2*k,2)}, {vr(ACCB+2*k,2)}, {vr(GM,2)}, {vr(T+2*k,2)} op_sel:[0,0,0] op_sel_hi:[1,0,1]")
        g2_out(A, T)
        tsg(A, 5, "f")
        return
    if O.TR2:
        lwait(A, GX, 16, GT + 1, 10 + MD, sleep=0)
        for q in range(4):
            A(f"ds_read_b128 {vr(R+4*q,4)}, v{RX} offset:{XO+q*1024}")
        A(f"ds_read_b32 v{GT+1}, v{GOWN} offset:32")
        for q in range(4):
            A(f"s_waitcnt lgkmcnt({4-q})")
            for k in (2*q, 2*q+1):
                A(f"v_pk_add_f32 {vr(ACCB+2*k,2)}, {vr(ACCB+2*k,2)}, {vr(R+2*k,2)}")
        lwait(A, GOWN, 32, GT + 1, 100, issued=True, sleep=0)
        A(f"ds_read_b32 v{GM}, v{GM+1}")
        for q in range(4):
            A(f"ds_read_b128 {vr(T+4*q,4)}, v{TV} offset:{q*1024}")
        for q in range(4):
            A(f"s_waitcnt lgkmcnt({3-q})")
            for k in (2*q, 2*q+1):
                A(f"v_pk_fma_f32 {vr(T+2*k,2)}, {vr(ACCB+2*k,2)}, {vr(GM,2)}, {vr(T+2*k,2)} op_sel:[0,0,0] op_sel_hi:[1,0,1]")
        g2_out(A, T)
        return
    lwait(A, GOWN, 32, GT + 1, 100)
    A(f"ds_read_b32 v{GM}, v{GM+1}")
    for q in range(4):
        A(f"ds_read_b128 {vr(T+4*q,4)}, v{TV} offset:{q*1024}")
    lwait(A, GX, 16, GT + 1, 10 + MD, sleep=0)
    for q in range(4):
        A(f"ds_read_b128 {vr(R+4*q,4)}, v{RX} offset:{q*1024}")
    for k in range(8):
        A(f"v_pk_fma_f32 {vr(T+2*k,2)}, {vr(ACCB+2*k,2)}, {vr(GM,2)}, {vr(T+2*k,2)} op_sel:[0,0,0] op_sel_hi:[1,0,1]")
    for q in range(4):
        A(f"s_waitcnt lgkmcnt({3-q})")
        for k in (2*q, 2*q+1):
            A(f"v_pk_fma_f32 {vr(T+2*k,2)}, {vr(R+2*k,2)}, {vr(GM,2)}, {vr(T+2*k,2)} op_sel:[0,0,0] op_sel_hi:[1,0,1]")
    g2_out(A, T)
def g2_out(A, T):
    for k in range(8):
        A(f"v_cvt_pk_bf16_f32 v{PK+k}, v{T+2*k}, v{T+2*k+1}")
    A("s_nop 1")
    for h in range(2):
        A(f"v_permlane32_swap_b32 v{PK+4*h}, v{PK+4*h+2}")
        A(f"v_permlane32_swap_b32 v{PK+4*h+1}, v{PK+4*h+3}")
    A("s_nop 1")
    for h in range(2):
        A(f"buffer_store_dwordx4 {vr(PK+4*h,4)}, v{OV}, s[{S_OUT}:{S_OUT+3}], s{S_OO} offen offset:{32*h}")

def idle_tr_issue(A):
    A("v_lshrrev_b32 v8, 3, v1")
    A("v_and_b32 v9, 7, v1")
    A("v_lshlrev_b32 v10, 10, v8")
    A("v_lshl_add_u32 v10, v9, 4, v10")
    A(f"s_sub_u32 s64, s{S_J}, 28")
    A(f"s_lshl_b32 s64, s64, 2")
    A(f"s_add_u32 s64, s64, s{S_WAVE}")
    if O.UOWN:
        A(f"s_and_b32 s33, s64, 1")
        A(f"s_lshl_b32 s{S_T1}, s{S_XCD}, 1")
        A(f"s_add_u32 s33, s33, s{S_T1}")
        A(f"s_lshr_b32 s34, s64, 1")
    else:
        A(f"s_mov_b32 s33, s64")
        A(f"s_mov_b32 s34, s{S_XCD}")
    A(f"s_lshl_b32 s65, s33, 17")
    A(f"s_lshl_b32 s{S_T1}, s34, 7")
    A(f"s_add_u32 s65, s65, s{S_T1}")
    A(f"s_lshl_b32 s66, s{S_WAVE}, 15")
def idle_tr_dma(A):
    for i in range(16):
        A(f"s_add_u32 m0, s66, {i*1024}")
        A(f"s_add_u32 s{S_T1}, s65, {i*8192}")
        A(f"buffer_load_dwordx4 v10, s[{S_X}:{S_X+3}], s{S_T1} offen {O.UFL} lds")
def w2_touch(A, qs, dst):
    for q in qs:
        if O.FK:
            A(f"s_add_u32 s{S_T1}, s{S_XCD}, {q}")
            A(f"s_and_b32 s{S_T1}, s{S_T1}, 3")
            A(f"s_mul_i32 s{S_T1}, s{S_T1}, {2*229376}")
            if q < 4: A(f"s_add_u32 s{S_T1}, s{S_T1}, 229376")
            for i in range(2):
                A(f"buffer_load_dword v{dst}, v{24+i}, s[{S_W2}:{S_W2+3}], s{S_T1} offen {O.PFL2}")
            continue
        A(f"s_lshr_b32 s{S_T1}, s{S_XCD}, 1")
        A(f"s_add_u32 s{S_T1}, s{S_T1}, {q}")
        A(f"s_and_b32 s{S_T1}, s{S_T1}, 3")
        A(f"s_and_b32 s{S_T0}, s{S_XCD}, 1")
        A(f"s_lshl_b32 s{S_T0}, s{S_T0}, 2")
        A(f"s_add_u32 s{S_T1}, s{S_T1}, s{S_T0}")
        A(f"s_mul_i32 s{S_T1}, s{S_T1}, 229376")
        for i in range(2):
            A(f"buffer_load_dword v{dst}, v{24+i}, s[{S_W2}:{S_W2+3}], s{S_T1} offen {O.PFL2}")
def w2_touch_setup(A):
    A("s_mul_i32 s67, s64, 112")
    A("v_add_u32 v24, s67, v1")
    A("v_min_u32 v25, 47, v1")
    A("v_add3_u32 v25, v25, s67, 64")
    A("v_lshlrev_b32 v24, 7, v24")
    A("v_lshlrev_b32 v25, 7, v25")
def idle_tr_finish(A, extra=0):
    R = 128
    A("v_lshrrev_b32 v11, 4, v1")
    A("v_bfe_u32 v12, v1, 2, 2")
    A("v_lshl_add_u32 v12, v11, 3, v12")
    A("v_lshlrev_b32 v12, 7, v12")
    A("v_and_b32 v13, 3, v1")
    A("v_lshl_add_u32 v12, v13, 3, v12")
    A(f"v_add_u32 v12, s66, v12")
    A("v_bfe_u32 v13, v1, 1, 3")
    A("v_lshlrev_b32 v13, 13, v13")
    A("v_and_b32 v14, 1, v1")
    A("v_lshl_add_u32 v13, v14, 6, v13")
    A("v_lshl_add_u32 v16, v11, 4, v13")
    A(f"s_lshl_b32 s67, s34, 18")
    A(f"s_lshl_b32 s{S_T1}, s33, 9")
    A(f"s_add_u32 s67, s67, s{S_T1}")
    A(f"s_add_u32 s67, s67, {WS_UT}")
    for p in range(4):
        Rk = R + 16 * p
        A(f"s_waitcnt vmcnt({12+extra})")
        for a in range(4):
            for x in range(2):
                A(f"ds_read_b64_tr_b16 {vr(Rk+4*a+2*x,2)}, v12 offset:{p*4096+x*512+a*32}")
        for a in range(4):
            A(f"s_waitcnt lgkmcnt({6-2*a})")
            A(f"s_add_u32 s{S_T1}, s67, {a*65536}")
            A(f"buffer_store_dwordx4 {vr(Rk+4*a,4)}, v16, s[{S_WS}:{S_WS+3}], s{S_T1} offen offset:{p*128} sc1")
def ut2(A, part=None):
    R = 128
    if part == 1:
        for i in range(8):
            A(f"s_waitcnt vmcnt({7-i})")
            A(f"ds_write_b128 v16, {vr(R+4*i,4)} offset:{i*512}")
        return
    A(f"s_lshl_b32 s{Q_T0}, s{Q_PAIR}, 13")
    A(f"s_add_u32 s{Q_T0}, s{Q_T0}, {WS_UT}")
    A(f"s_add_u32 s{Q_T1}, s{Q_T0}, 4096")
    A("v_lshlrev_b32 v16, 4, v1")
    for i in range(8):
        A(f"buffer_load_dwordx4 {vr(R+4*i,4)}, v16, s[{S_WS}:{S_WS+3}], s{Q_T0+i//4} offen offset:{(i%4)*1024} sc1")
    A("v_bfe_u32 v16, v1, 2, 1")
    A(f"v_mul_u32_u24 v16, {U_STRIDE}, v16")
    A("v_lshrrev_b32 v17, 3, v1")
    A("v_lshl_add_u32 v16, v17, 6, v16")
    A("v_and_b32 v17, 3, v1")
    A("v_lshl_add_u32 v16, v17, 4, v16")
    A(f"v_add_u32 v16, {LDS_U+64}, v16")
    if part == 0: return
    for i in range(8):
        A(f"s_waitcnt vmcnt({7-i})")
        A(f"ds_write_b128 v16, {vr(R+4*i,4)} offset:{i*512}")
def idle_gate_issue(A):
    R = 64
    A(f"global_load_dwordx4 {vr(44,4)}, v{HV}, s[{P_GW}:{P_GW+1}]")
    A(f"s_lshl_b32 s68, s{S_XCD}, 4")
    A(f"s_add_u32 s68, s68, s64")
    A(f"s_lshl_b32 s65, s68, 14")
    for i in range(16):
        if i % 4 == 0: A(f"s_add_u32 s{S_T1}, s65, {i*1024}")
        A(f"buffer_load_dwordx4 {vr(R+4*i,4)}, v{HV}, s[{S_X}:{S_X+3}], s{S_T1} offen offset:{(i%4)*1024}")
def idle_gate_finish(A, extra=0):
    R = 64; S = 2
    A(f"s_waitcnt vmcnt({extra})")
    for k in range(4):
        for i in range(16):
            c = "0" if k == 0 else f"v{S+i}"
            A(f"v_dot2_f32_bf16 v{S+i}, v{R+4*i+k}, v{44+k}, {c}")
    for sh in ("row_shr:1", "row_shr:2", "row_shr:4", "row_shr:8"):
        for i in range(16):
            A(f"v_add_f32_dpp v{S+i}, v{S+i}, v{S+i} {sh} row_mask:0xf bank_mask:0xf bound_ctrl:1")
    for sh in ("row_bcast:15 row_mask:0xa", "row_bcast:31 row_mask:0xc"):
        for i in range(16):
            A(f"v_add_f32_dpp v{S+i}, v{S+i}, v{S+i} {sh} bank_mask:0xf")
    A("v_mov_b32 v20, 0")
    for h in range(2):
        for i in range(8): A(f"v_readlane_b32 s{38+i}, v{S+8*h+i}, 63")
        A("s_nop 3")
        for i in range(8): A(f"v_writelane_b32 v20, s{38+i}, {8*h+i}")
    A("v_cvt_pk_bf16_f32 v20, v20, v20")
    A("v_lshlrev_b32 v20, 16, v20")
    A("v_mul_f32 v20, 0xbfb8aa3b, v20")
    A("v_exp_f32 v20, v20")
    A("s_nop 0")
    A("v_add_f32 v20, 1.0, v20")
    A("v_rcp_f32 v20, v20")
    A("s_nop 0")
    A("v_cvt_pk_bf16_f32 v22, v20, v20")
    A("v_lshlrev_b32 v22, 16, v22")
    if O.TL3: A(f"v_mov_b32 v23, v{VTOK}")
    else:
        A("v_sub_f32 v23, 1.0, v22")
        A("v_cvt_pk_bf16_f32 v23, v23, v23")
        A("v_lshlrev_b32 v23, 16, v23")
    A("v_lshlrev_b32 v21, 3, v1")
    A(f"s_lshl_b32 s65, s68, 7")
    A(f"s_add_u32 s65, s65, {WS_G}")
    A("s_mov_b64 exec, 0xffff")
    A(f"buffer_store_dwordx2 v[22:23], v21, s[{S_WS}:{S_WS+3}], s65 offen sc1")
    A("s_mov_b64 exec, -1")

LX, LW, L2D, LSA, LGD, LV = 16, 56, 60, 62, 63, 20
K_XO, K_WO, K_M0, K_C0, K_W2, K_M2, K_T0, K_T1 = 76, 77, 78, 79, 80, 81, 82, 83
def loader_setup(A):
    lw = Q_NH
    A(f"s_and_b32 s{K_XO}, s{S_J}, 3")
    A(f"s_and_b32 s{K_T0}, s{S_XCD}, 6")
    A(f"s_lshl_b32 s{K_T0}, s{K_T0}, 1")
    A(f"s_add_u32 s{K_XO}, s{K_XO}, s{K_T0}")
    A(f"s_lshl_b32 s{K_XO}, s{K_XO}, 1")
    A(f"s_add_u32 s{K_XO}, s{K_XO}, s{lw}")
    A(f"s_and_b32 s{K_T0}, s{S_XCD}, 1")
    if O.HAB:
        A(f"s_xor_b32 s{K_XO}, s{K_XO}, s{K_T0}")
        A(f"s_xor_b32 s{K_XO}, s{K_XO}, 1")
    A(f"s_lshl_b32 s{K_XO}, s{K_XO}, 16")
    A(f"s_mul_i32 s{K_WO}, s{K_T0}, 7")
    A(f"s_lshr_b32 s{K_T1}, s{S_J}, 2")
    A(f"s_add_u32 s{K_WO}, s{K_WO}, s{K_T1}")
    A(f"s_lshl_b32 s{K_WO}, s{K_WO}, 8")
    A(f"s_lshl_b32 s{K_W2}, s{K_T1}, 7")
    A(f"s_mul_i32 s{K_T1}, s{lw}, {32*2*F}")
    A(f"s_add_u32 s{K_WO}, s{K_WO}, s{K_T1}")
    A(f"s_lshl_b32 s{K_M0}, s{lw}, 13")
    A(f"s_mul_i32 s{K_T0}, s{K_T0}, {0 if O.FK else 56*16384}")
    A(f"s_add_u32 s{K_W2}, s{K_W2}, s{K_T0}")
    if O.KROT:
        A(f"s_add_u32 s84, s{K_W2}, {28*16384}")
        krot(A, K_T0, 16)
        A(f"s_add_u32 s{K_W2}, s{K_W2}, s{K_T0}")
    A(f"s_mul_i32 s{K_T0}, s{lw}, {7*16384}")
    A(f"s_add_u32 s{K_W2}, s{K_W2}, s{K_T0}")
    A(f"s_mul_i32 s{K_M2}, s{lw}, {7*2048}")
    rot_c0(A, K_C0, K_T0)
    A("v_lshrrev_b32 v34, 3, v1")
    A("v_and_b32 v35, 7, v1")
    A("v_lshrrev_b32 v36, 4, v1")
    A("v_xor_b32 v37, v35, v36")
    A("v_xor_b32 v38, 4, v37")
    A("v_lshlrev_b32 v34, 10, v34")
    A(f"v_lshl_add_u32 v{LX}, v37, 4, v34")
    A(f"v_lshl_add_u32 v{LX+1}, v38, 4, v34")
    A(f"v_add_u32 v{LX+1}, {8192-1024}, v{LX+1}")
    A(f"v_add_u32 v{LX+2}, {2*(8192-1024)}, v{LX}")
    A(f"v_add_u32 v{LX+3}, {2*(8192-1024)}, v{LX+1}")
    A("v_and_b32 v37, 1, v36")
    A("v_lshlrev_b32 v37, 2, v37")
    A("v_xor_b32 v37, v35, v37")
    A(f"v_lshl_add_u32 v{L2D}, v37, 4, v34")
    A(f"v_add_u32 v{L2D+1}, {8192-1024}, v{L2D}")
    A("v_and_b32 v35, 15, v1")
    A("v_lshlrev_b32 v37, 2, v36")
    A("v_xor_b32 v35, v35, v37")
    A(f"v_mul_u32_u24 v37, {2*F}, v36")
    A(f"v_lshl_add_u32 v{LW}, v35, 4, v37")
    for i in range(1, 4):
        A(f"v_add_u32 v{LW+i}, {i*(4*2*F-1024)}, v{LW}")
    A(f"s_lshl_b32 s{K_T0}, s{lw}, 3")
    A(f"s_add_u32 s{K_T0}, s{K_T0}, {L_SL}")
    A(f"s_cmp_eq_u32 s{Q_C}, 1")
    A(f"s_cselect_b32 s{K_T0}, s{K_T0}, {L_DUMMY}")
    A(f"v_mov_b32 v{LSA}, s{K_T0}")
    A(f"v_subrev_u32 v{LGD}, {L_SB-L_GD}, v{S_FRD}")
def l_chunk(A, cc):
    slot = cc % 4
    if "d" in O.X2: return
    A(f"s_add_u32 s{K_T0}, s{K_C0}, {cc}"); A(f"s_and_b32 s{K_T0}, s{K_T0}, 7")
    A(f"s_lshl_b32 s{K_T1}, s{K_T0}, 7"); A(f"s_add_u32 s{K_T1}, s{K_T1}, s{K_XO}")
    A(f"s_mul_i32 s{K_T0}, s{K_T0}, {64*2*F}"); A(f"s_add_u32 s{K_T0}, s{K_T0}, s{K_WO}")
    for q in range(2):
        A(f"s_add_u32 m0, s{K_M0}, {slot*32768+q*4096}")
        if q: A(f"s_add_u32 s{K_T1}, s{K_T1}, 32768")
        else: A("s_nop 0")
        for i in range(4):
            if "x" in O.X2: continue
            A(f"buffer_load_dwordx4 v{LX+i}, s[{S_X}:{S_X+3}], s{K_T1} offen offset:{i*1024} {O.XFL} lds")
        A(f"s_add_u32 m0, s{K_M0}, {slot*32768+16384+q*4096}")
        if q: A(f"s_add_u32 s{K_T0}, s{K_T0}, {16*2*F}")
        else: A("s_nop 0")
        for i in range(4):
            if "w" in O.X2: continue
            A(f"buffer_load_dwordx4 v{LW+i}, s[{S_W1}:{S_W1+3}], s{K_T0} offen offset:{i*1024} {O.W1FL} lds")
def l_pub(A, n, val):
    A(f"v_mov_b32 v{LV}, {val}"); A(f"v_mov_b32 v{LV+1}, {val}")
    A(f"s_waitcnt vmcnt({n})")
    A(f"ds_write_b64 v{LSA}, {vr(LV,2)}")
def loader(A, fin):
    A(f"s_cmp_ge_u32 s{S_J}, 28")
    A("s_cbranch_scc1 S_LW1")
    if O.LOOK == 3: l_chunk(A, 3)
    if O.LOOK == 8:
        A.label("S_LW1")
        fin()
    for c in range(max(4, O.LOOK), 8):
        lwait(A, LGD, 0, 31, c - 3)
        l_chunk(A, c)
        if c > O.LOOK: l_pub(A, 0 if "d" in O.X2 else 8 if ("x" in O.X2 or "w" in O.X2) else 16, c)
        if c == 7 and O.TOUCH:
            A(f"s_lshr_b32 s{K_T0}, s{K_XO}, 16")
            A(f"s_mul_i32 s{K_T0}, s{K_T0}, 224")
            A(f"s_and_b32 s{K_T1}, s{S_XCD}, 1")
            A(f"s_mul_i32 s{K_T1}, s{K_T1}, 56")
            A(f"s_add_u32 s{K_T0}, s{K_T0}, s{K_T1}")
            A(f"s_lshr_b32 s{K_T1}, s{S_J}, 2")
            A(f"s_lshl_b32 s{K_T1}, s{K_T1}, 3")
            A(f"s_add_u32 s{K_T0}, s{K_T0}, s{K_T1}")
            A(f"s_lshl_b32 s{K_T0}, s{K_T0}, 10")
            A(f"v_lshlrev_b32 v{LX}, 7, v1")
            A(f"s_add_u32 s{K_T1}, s{K_T0}, {112*1024}")
            A(f"buffer_load_dword v{LX+1}, v{LX}, s[{S_WS}:{S_WS+3}], s{K_T0} offen {O.TFL}")
            A(f"buffer_load_dword v{LX+2}, v{LX}, s[{S_WS}:{S_WS+3}], s{K_T1} offen {O.TFL}")
        if c == O.LFIN:
            A.label("S_LW1")
            fin()
            A(f"s_cmp_ge_u32 s{S_J}, 28")
            A("s_cbranch_scc1 S_LW2")
    A.label("S_LW2")
    if "v" in O.X2: l_pub(A, 0, 8)
    for s in range(4):
        lwait(A, LGD, 0, 31, 5 + s if "v" not in O.X2 else 8)
        if s == 2 and O.KROT: A(f"s_add_u32 s84, s84, {28*16384}")
        for k in range(7):
            A(f"s_add_u32 m0, s{K_M2}, {s*32768+4096+k*2048}")
            A(f"s_add_u32 s{K_T0}, s{K_W2}, {((28 if O.FK else 14)*s+k)*16384}")
            if O.KROT:
                A(f"s_sub_u32 s{K_T1}, s{K_T0}, {28*16384}")
                A(f"s_cmp_ge_u32 s{K_T0}, s84")
                A(f"s_cselect_b32 s{K_T0}, s{K_T1}, s{K_T0}")
            A(f"buffer_load_dwordx4 v{L2D}, s[{S_W2}:{S_W2+3}], s{K_T0} offen {O.W2FL} lds")
            A(f"buffer_load_dwordx4 v{L2D+1}, s[{S_W2}:{S_W2+3}], s{K_T0} offen offset:1024 {O.W2FL} lds")
        if s == 0: l_pub(A, 16 if O.TOUCH else 14, 8)

TAB2 = LDS_SSM + 17408
S_PASS, S_UOK = 33, 34
U_SO, U_M0, UF, UD = 28, 29, 12, 13
def u_dma(A):
    for i in range(4):
        A(f"s_add_u32 m0, s{U_M0}, {i*1024}")
        A(f"s_add_u32 s{Q_T1}, s{U_SO}, {i*2048}")
        A(f"buffer_load_dwordx4 v{UD}, s[{S_WS}:{S_WS+3}], s{Q_T1} offen sc1 lds")
def u_setup(A):
    A(f"s_lshl_b32 s{Q_T0}, s{S_XCD}, {4+FS}")
    A(f"s_add_u32 s{Q_T0}, s{Q_T0}, {F_UT}")
    A("v_and_b32 v8, 15, v1")
    A(f"v_lshl_add_u32 v{UF}, v8, {FS}, s{Q_T0}")
    A(f"v_lshrrev_b32 v{UD}, 2, v1")
    A(f"v_lshlrev_b32 v{UD}, 3, v{UD}")
    A("v_and_b32 v8, 3, v1")
    A(f"v_add_lshl_u32 v{UD}, v{UD}, v8, 4")
    A(f"s_lshl_b32 s{U_SO}, s{Q_PAIR}, 7")
    A(f"s_add_u32 s{U_SO}, s{U_SO}, s{Q_NH}")
    A(f"s_lshl_b32 s{U_SO}, s{U_SO}, 6")
    A(f"s_add_u32 s{U_SO}, s{U_SO}, {WS_UT}")
    A(f"s_mul_i32 s{U_M0}, s{Q_NH}, {U_STRIDE}")
    A(f"s_add_u32 s{U_M0}, s{U_M0}, {LDS_U+64}")
    A(f"s_mov_b32 s{S_UOK}, 0")
def kgen2(A, later, hookA):
    w = S_WAVE; KC = Q_NH
    VW, VB, VA = 26, 27, 28
    E1, E8, E256, C0, E2, E4 = 128, 130, 132, 134, 136, 138
    LO = 140; E32 = 156; G = 160; CV = 200
    A(f"s_mul_i32 s{Q_TAB}, s{w}, {TAB_STRIDE}")
    A(f"s_add_u32 s{Q_TAB}, s{Q_TAB}, {TAB2}")
    A(f"v_lshl_add_u32 v{VW}, v1, 2, s{Q_TAB}")
    A("v_and_b32 v8, 15, v1")
    A("v_lshrrev_b32 v9, 5, v1")
    A(f"v_lshl_add_u32 v9, v9, 4, s{Q_TAB}")
    A("v_mov_b32 v10, 272")
    A(f"v_mad_u32_u24 v{VB}, v8, v10, v9")
    A("v_and_b32 v11, 7, v1")
    A("v_lshlrev_b32 v11, 2, v11")
    A("v_mov_b32 v12, 0xcbaaa988")
    A("v_lshrrev_b32 v11, v11, v12")
    A("v_and_b32 v11, 15, v11")
    A("v_and_b32 v12, 24, v1")
    A("v_cmp_eq_u32 vcc, 8, v12")
    A(f"s_mov_b32 s{Q_EX}, 0x0000ffff")
    A(f"s_mov_b32 s{Q_EX+1}, 0x0000ffff")
    A(f"s_mov_b32 s{Q_EX+2}, 0xffff0000")
    A(f"s_mov_b32 s{Q_EX+3}, 0xffff0000")
    A("v_cndmask_b32 v11, v8, v11, vcc")
    A(f"v_mad_u32_u24 v{VA}, v11, v10, v9")
    srd(A, S_WS, P_WS, WS_BYTES)
    A(f"v_mov_b32 v{LSA}, {L_DUMMY}")
    for k in range(16): A(f"v_mov_b32 v{KD+k}, 0")
    A(f"s_mov_b32 s{S_PASS}, 16")
    A("s_waitcnt lgkmcnt(0)")
    A(f"s_lshl_b32 s{Q_T0}, s{KC}, 4")
    A(f"s_lshr_b32 s{Q_LDT}, s{Q_LDT}, s{Q_T0}")
    A(f"s_lshl_b32 s{Q_LDT}, s{Q_LDT}, 16")
    A(f"s_lshr_b32 s{Q_DSK}, s{Q_DSK}, s{Q_T0}")
    A(f"s_lshl_b32 s{Q_DSK}, s{Q_DSK}, 16")
    A(f"v_mov_b32 v6, {LOG2E}")
    A(f"v_mul_f32 v7, s{Q_LDT}, v6")
    A("v_exp_f32 v7, v7")
    hookA()
    A("v_cvt_pk_bf16_f32 v7, v7, v7")
    A("v_lshlrev_b32 v7, 16, v7")
    A(f"s_waitcnt vmcnt({later})")
    tss(A, 2, "ak")
    A.label("KG_LOOP")
    for i in range(4): A(f"v_lshlrev_b32 v{2+i}, s{S_PASS}, v{14+i}")
    for i in range(4): A(f"v_and_b32 v{2+i}, 0xffff0000, v{2+i}")
    A("v_mul_f32 v2, v6, v2")
    A("v_exp_f32 v2, v2")
    A("v_add_f32 v8, v7, v7")
    A("v_cvt_pk_bf16_f32 v2, v2, v2")
    A("v_lshlrev_b32 v2, 16, v2")
    A("v_mul_f32 v2, v2, v7")
    A("v_mul_f32 v3, v3, v7")
    A("v_mul_f32 v2, 0xbfb8aa3b, v2")
    A(f"v_mul_f32 v3, {INV2PI}, v3")
    A(f"v_mul_f32 v{C0}, v4, v8")
    A(f"v_mul_f32 v{C0+1}, v5, v8")
    A("v_mul_f32 v10, 0x41000000, v2")
    A("v_mul_f32 v11, 0x41000000, v3")
    A("v_mul_f32 v12, 0x43800000, v2")
    A("v_mul_f32 v13, 0x43800000, v3")
    for r in (11, 3, 13): A(f"v_fract_f32 v{r}, v{r}")
    for (m, f, e) in ((10, 11, E8), (2, 3, E1), (12, 13, E256)):
        A(f"v_exp_f32 v{m}, v{m}")
        A(f"v_cos_f32 v{e}, v{f}")
        A(f"v_sin_f32 v{e+1}, v{f}")
    for (m, e) in ((10, E8), (2, E1), (12, E256)):
        A(f"v_pk_mul_f32 {vr(e,2)}, {vr(e,2)}, {vr(m,2)} op_sel:[0,0] op_sel_hi:[1,0]")
    hook = None
    kgen_tables2(A, hook, VW, VB, VA, E1, E8, E256, C0, E2, E4, LO, E32, G, CV)
    for ks in range(8):
        A(f"s_waitcnt lgkmcnt({7-ks})")
        A(f"v_mfma_f32_32x32x16_bf16 {vr(KD,16)}, {vr(KA+4*ks,4)}, {vr(KB+4*ks,4)}, {vr(KD,16)}")
    A(f"s_cmp_eq_u32 s{S_PASS}, 0")
    A("s_cbranch_scc1 KG_DONE")
    tss(A, 3, "k")
    A(f"s_mov_b32 s{S_PASS}, 0")
    A("s_branch KG_LOOP")
    A.label("KG_DONE")
    tss(A, 4, "k"); tss(A, 3, "a")
    token_get(A, 8, STOK)
    X = 64
    A(f"s_mul_i32 s{Q_T0}, s{KC}, {K_STRIDE}")
    A(f"s_add_u32 s{Q_T0}, s{Q_T0}, {LDS_K}")
    A("v_and_b32 v8, 31, v1")
    A("v_lshrrev_b32 v9, 5, v1")
    A(f"v_lshl_add_u32 v8, v8, 4, s{Q_T0}")
    A(f"v_lshl_add_u32 v10, v1, 3, s{Q_T0}")
    A("v_mov_b32 v12, 0"); A("v_mov_b32 v13, 0")
    A("ds_write_b64 v10, v[12:13]")
    A("v_and_b32 v11, 15, v1")
    A(f"s_mul_i32 s{Q_T0}, s{KC}, {U_STRIDE}")
    A(f"s_add_u32 s{Q_T0}, s{Q_T0}, {LDS_U}")
    A(f"v_lshl_add_u32 v11, v11, 2, s{Q_T0}")
    A("ds_write_b32 v11, v12")
    A("v_cmp_eq_u32 vcc, 0, v1")
    A(f"v_mov_b32 v11, s{Q_DSK}")
    A("v_lshl_add_u32 v14, v9, 3, v8")
    A("v_lshl_add_u32 v15, v9, 9, v8")
    A("v_cndmask_b32 v11, 0, v11, vcc")
    A("v_lshl_add_u32 v16, v9, 10, v8")
    A("s_nop 4")
    A(f"v_add_f32 v{KD}, v{KD}, v11")
    A("v_and_b32 v11, 1, v1")
    A("v_cmp_eq_u32 vcc, 1, v11")
    for k in range(4): A(f"v_cvt_pk_bf16_f32 v{X+k}, v{KD+2*k}, v{KD+2*k+1}")
    a, b, c = KD + 8, KD + 9, KD + 10
    for k, (p, q) in enumerate(((a, a), (a, b), (b, b), (c, c))): A(f"v_cvt_pk_bf16_f32 v{X+4+k}, v{p}, v{q}")
    A(f"ds_write_b64 v14, {vr(X,2)} offset:448")
    A(f"ds_write_b64 v14, {vr(X+2,2)} offset:960")
    A(f"ds_write_b128 v15, {vr(X+4,4)} offset:1472")
    X = 72
    for k in range(2):
        a, b = KD + 12 + 2 * k, KD + 13 + 2 * k
        A(f"v_cndmask_b32 v11, v{a}, v{b}, vcc")
        A(f"v_cvt_pk_bf16_f32 v{X+4*k}, v{a}, v{a}")
        A(f"v_cvt_pk_bf16_f32 v{X+4*k+1}, v{a}, v{a}")
        A(f"v_cvt_pk_bf16_f32 v{X+4*k+2}, v11, v{b}")
        A(f"v_cvt_pk_bf16_f32 v{X+4*k+3}, v{b}, v{b}")
        A(f"ds_write_b128 v16, {vr(X+4*k,4)} offset:{2496+512*k}")

def loader2(A):
    A(f"s_cmp_ge_u32 s{S_J}, 28")
    A("s_cbranch_scc1 S_LW2")
    for c in range(O.LOOK, 8):
        if c >= 4: lwait(A, LGD, 0, 31, c - 3, sleep=O.LSLP)
        l_chunk(A, c)
        if c > O.LOOK: l_pub(A, 16, c)
        if c in (3, 5, 7): tss(A, 2 + (c - 3) // 2, "k")
    A.label("S_LW2")
    u_setup(A)
    token_get(A, 8, STOK)
    for s in range(4):
        lwait(A, LGD, 0, 31, 5 + s, sleep=O.LSLP)
        if s < 3:
            if s: A(f"s_cmp_eq_u32 s{S_UOK}, 1"); A(f"s_cbranch_scc1 S_U{s}")
            A(f"buffer_load_dword v9, v{UF}, s[{S_WS}:{S_WS+3}], 0 offen sc1")
            if s: A.label(f"S_U{s}")
        for k in range(7):
            A(f"s_add_u32 m0, s{K_M2}, {s*32768+4096+k*2048}")
            A(f"s_add_u32 s{K_T0}, s{K_W2}, {(14*s+k)*16384}")
            A(f"buffer_load_dwordx4 v{L2D}, s[{S_W2}:{S_W2+3}], s{K_T0} offen {O.W2FL} lds")
            A(f"buffer_load_dwordx4 v{L2D+1}, s[{S_W2}:{S_W2+3}], s{K_T0} offen offset:1024 {O.W2FL} lds")
        if s == 0: l_pub(A, 15, 8)
        if s < 3:
            if s: A(f"s_cmp_eq_u32 s{S_UOK}, 1"); A(f"s_cbranch_scc1 S_V{s}")
            A("s_waitcnt vmcnt(14)")
            A(f"v_cmp_ne_u32 vcc, v{STOK}, v9")
            A(f"s_cbranch_vccnz S_V{s}")
            u_dma(A)
            A(f"s_mov_b32 s{S_UOK}, 1")
            A.label(f"S_V{s}")
    tss(A, 5, "k")
    A("s_waitcnt vmcnt(14)")
    A(f"s_cmp_eq_u32 s{S_UOK}, 1"); A(f"s_cbranch_scc1 S_CV")
    poll(A, UF, 9, STOK, "PU")
    u_dma(A)
    A("s_waitcnt vmcnt(0)")

def conv_final3(A):
    w = S_WAVE
    A("v_bfe_u32 v8, v1, 3, 1")
    A("v_bfe_u32 v9, v1, 2, 1")
    A("v_and_b32 v10, 3, v1")
    A(f"v_lshl_add_u32 v8, v8, 2, s{w}")
    A("v_lshl_add_u32 v11, v8, 2, v10")
    A("v_lshlrev_b32 v11, 2, v11")
    A("v_lshl_add_u32 v12, v9, 7, v11")
    A("v_mul_u32_u24 v13, 144, v9")
    A("v_add_u32 v13, v13, v11")
    A(f"v_add_u32 v12, {LDS_HEAD}, v12")
    A(f"v_add_u32 v13, {LDS_CARR}, v13")
    A("v_lshl_add_u32 v8, v8, 8, v10")
    A("v_lshl_add_u32 v8, v8, 1, v9")
    A("v_lshlrev_b32 v8, 1, v8")
    A(f"v_add_u32 v8, {LDS_STG}, v8")
    A(f"s_lshl_b32 s{Q_T1}, s{w}, 10")
    A(f"s_add_u32 s{Q_T0}, s{Q_T1}, {LDS_STG}")
    A(f"v_lshl_add_u32 v9, v1, 3, s{Q_T0}")
    A("v_lshlrev_b32 v16, 4, v1")
    A(f"s_lshl_b32 s{Q_T0}, s{Q_PAIR}, 13")
    A(f"s_add_u32 s{Q_T0}, s{Q_T0}, s{Q_T1}")
    A(f"s_lshl_b32 s{Q_T0}, s{Q_T0}, 1")
    A(f"s_add_u32 s{Q_T0}, s{Q_T0}, {WS_A2}")
    A(f"s_add_u32 s{Q_T1}, s{Q_T0}, 8192")
    for k in range(4): A(f"v_mov_b32 v{67+4*k}, v{STOK}")
    s_barrier(A, 3)
    A("ds_read_b32 v12, v12")
    A("ds_read_b32 v13, v13")
    A("s_waitcnt lgkmcnt(0)")
    A("v_add_f32 v12, v12, v13")
    A("v_cvt_pk_bf16_f32 v12, v12, v12")
    A("ds_write_b16 v8, v12")
    for k in range(4): A(f"ds_read_b64 {vr(64+4*k,2)}, v9 offset:{(k//2)*4096+(k%2)*512}")
    for k in range(4):
        A(f"s_waitcnt lgkmcnt({3-k})")
        A(f"v_mov_b32 v{66+4*k}, v{65+4*k}")
        A(f"v_mov_b32 v{65+4*k}, v{STOK}")
        A(f"buffer_store_dwordx4 {vr(64+4*k,4)}, v16, s[{S_WS}:{S_WS+3}], s{Q_T0+k//2} offen offset:{(k%2)*1024} sc1")
def s_tail3(A):
    w = S_WAVE; SO_P = 76
    tss(A, 5, "a"); tss(A, 2, "t")
    A(f"s_lshl_b32 s{Q_T0}, s2, 2")
    A(f"s_add_u32 s{Q_T0}, s{Q_T0}, s{w}")
    A(f"s_lshl_b32 s{SO_P}, s{Q_T0}, 12")
    A(f"s_add_u32 s{SO_P}, s{SO_P}, {WS_P}")
    A(f"s_lshl_b32 s{Q_T0}, s{Q_NH}, 15")
    A(f"s_lshl_b32 s{Q_T1}, s{Q_C}, 11")
    A(f"s_add_u32 s{Q_T0}, s{Q_T0}, s{Q_T1}")
    A(f"v_add_u32 v17, s{Q_T0}, v16")
    A(f"v_xor_b32 v15, {0x10000+2048}, v17")
    A(f"s_lshl_b32 s{Q_T0}, s{Q_NH}, 2")
    A(f"s_add_u32 s{Q_T0}, s{Q_T0}, {L_GD}")
    A("v_and_b32 v5, 1, v1")
    A(f"v_lshl_add_u32 v5, v5, 3, s{Q_T0}")
    for k in range(8): A(f"v_mov_b32 v{97+2*k}, v{STOK}")
    lwait(A, 5, 0, 31, 9, sleep=1 - O.RSLP)
    tss(A, 3, "t")
    X = 112
    for h in range(2):
        A(f"ds_read_b128 {vr(X+4*h,4)}, v17 offset:{1024*h}")
        A(f"ds_read_b128 {vr(X+8+4*h,4)}, v15 offset:{1024*h}")
    A(f"v_mov_b32 v{S_FT}, 50")
    for h in range(2):
        A(f"s_waitcnt lgkmcnt({2-2*h})")
        if h == 1: A(f"ds_write_b32 v{S_FOWN}, v{S_FT}")
        for k in range(4):
            r = X + 4 * h + k
            A(f"v_lshlrev_b32 v80, 16, v{r}")
            A(f"v_lshlrev_b32 v81, 16, v{r+8}")
            A(f"v_and_b32 v82, 0xffff0000, v{r}")
            A(f"v_and_b32 v83, 0xffff0000, v{r+8}")
            A("v_add_f32 v80, v80, v81")
            A("v_add_f32 v82, v82, v83")
            A(f"v_cvt_pk_bf16_f32 v{96+8*h+2*k}, v80, v82")
            if k % 2 == 1:
                q = 2 * h + k // 2
                A(f"buffer_store_dwordx4 {vr(96+4*q,4)}, v16, s[{S_WS}:{S_WS+3}], s{SO_P} offen offset:{1024*q} {O.PST}")
    tss(A, 4, "t")
    A("s_waitcnt lgkmcnt(0)")

def s_tail(A):
    w = S_WAVE
    RT, CT, TT, DB = Q_EX, Q_EX + 1, Q_EX + 2, Q_EX + 3
    PK, AP, G, PP, T = 128, 136, 144, 148, 160
    SO_P, SO_PF, SO_A, SO_O = 76, 77, 78, 79
    A(f"s_lshl_b32 s80, s{Q_PAIR}, {FS}")
    A(f"s_lshl_b32 s{Q_T0}, s{w}, {8+FS}")
    A(f"s_add_u32 s80, s80, s{Q_T0}")
    A(f"s_add_u32 s80, s80, {F_A}")
    A(f"s_and_b32 s{RT}, s{S_XCD}, 6")
    A(f"s_lshl_b32 s{RT}, s{RT}, 1")
    A(f"s_and_b32 s{Q_T0}, s{S_J}, 3")
    A(f"s_add_u32 s{RT}, s{RT}, s{Q_T0}")
    A(f"s_lshl_b32 s{RT}, s{RT}, 1")
    A(f"s_and_b32 s{Q_T0}, s{S_XCD}, 1")
    A(f"s_add_u32 s{RT}, s{RT}, s{Q_T0}")
    A(f"s_lshr_b32 s{CT}, s{S_J}, 2")
    A(f"s_lshl_b32 s{TT}, s{RT}, 1")
    A(f"s_add_u32 s{TT}, s{TT}, s{Q_NH}")
    A(f"s_lshl_b32 s{DB}, s{CT}, 1")
    A(f"s_add_u32 s{DB}, s{DB}, s{Q_C}")
    A(f"s_bfe_u32 s{Q_T0}, s{RT}, 0x20002")
    A(f"s_lshl_b32 s{Q_T0}, s{Q_T0}, {8+FS}")
    A(f"s_lshl_b32 s{Q_T1}, s{DB}, {4+FS}")
    A(f"s_add_u32 s{Q_T0}, s{Q_T0}, s{Q_T1}")
    A(f"s_add_u32 s{Q_T0}, s{Q_T0}, {F_A}")
    A(f"v_lshl_add_u32 v2, v1, {FS}, s{Q_T0}")
    A(f"s_lshl_b32 s{Q_T0}, s{TT}, {1+FS}")
    A(f"s_add_u32 s{Q_T0}, s{Q_T0}, {F_G}")
    A("v_and_b32 v3, 1, v1")
    A(f"v_lshl_add_u32 v3, v3, {FS}, s{Q_T0}")
    A("v_cmp_gt_u32 vcc, 16, v1")
    A("v_and_b32 v10, 31, v1")
    A("v_lshrrev_b32 v11, 5, v1")
    A("v_cndmask_b32 v2, v3, v2, vcc")
    A("v_lshlrev_b32 v4, 14, v11")
    A("v_lshl_add_u32 v12, v10, 2, v4")
    A("v_add_u32 v13, 8192, v12")
    A(f"s_lshl_b32 s{Q_T0}, s{TT}, 8")
    A(f"s_add_u32 s{Q_T0}, s{Q_T0}, {WS_G}")
    A(f"v_lshl_add_u32 v14, v10, 3, s{Q_T0}")
    A(f"s_lshl_b32 s{SO_A}, s{DB}, 17")
    A(f"s_lshl_b32 s{Q_T1}, s{TT}, 7")
    A(f"s_add_u32 s{SO_A}, s{SO_A}, s{Q_T1}")
    A(f"s_add_u32 s{SO_A}, s{SO_A}, {WS_A}")
    A("v_lshlrev_b32 v16, 4, v1")
    A(f"s_lshl_b32 s{Q_T0}, s{w}, 12")
    A(f"s_add_u32 s{Q_T0}, s{Q_T0}, {L_T}")
    A(f"v_add_u32 v18, s{Q_T0}, v16")
    A(f"s_lshl_b32 s{Q_T0}, s{w}, 8")
    A(f"s_add_u32 s{Q_T0}, s{Q_T0}, {L_T+16384}")
    A(f"v_lshl_add_u32 v19, v1, 2, s{Q_T0}")
    A(f"s_lshl_b32 s{Q_T0}, s2, 2")
    A(f"s_add_u32 s{Q_T0}, s{Q_T0}, s{w}")
    A(f"s_lshl_b32 s{SO_P}, s{Q_T0}, 12")
    A(f"s_add_u32 s{SO_P}, s{SO_P}, {WS_P}")
    A(f"s_xor_b32 s{SO_O}, s{SO_P}, {4<<12}")
    if O.FK: A(f"s_xor_b32 s{Q_NH}, s{Q_NH}, 1")
    A(f"s_lshl_b32 s{Q_T0}, s{Q_NH}, 15")
    A(f"s_lshl_b32 s{Q_T1}, s{Q_C}, {12 if O.F32 else 11}")
    A(f"s_add_u32 s{Q_T0}, s{Q_T0}, s{Q_T1}")
    A(f"v_add_u32 v17, s{Q_T0}, v16")
    A(f"v_xor_b32 v15, {0x10000+(4096 if O.F32 else 2048)}, v17")
    A(f"s_lshl_b32 s{Q_T0}, s{Q_NH}, 2")
    A(f"s_add_u32 s{Q_T0}, s{Q_T0}, {L_GD}")
    A("v_and_b32 v5, 1, v1")
    A(f"v_lshl_add_u32 v5, v5, 3, s{Q_T0}")
    for k in range(8): A(f"v_mov_b32 v{97+2*k}, v{STOK}")
    A("s_waitcnt vmcnt(0)")
    flag_store(A, 80, 8, STOK)
    tss(A, 5, "au"); tss(A, 2, "t")
    def ag():
        if O.EPOL:
            A("s_waitcnt vmcnt(4)")
            A(f"v_cmp_ne_u32 vcc, v{STOK}, v9")
            A("s_cbranch_vccz S_EP")
        poll(A, 2, 9, STOK, "PA", slp=O.ASLP if O.FK else None)
        if O.EPOL: A.label("S_EP")
        for q in range(4):
            for i in range(2):
                A(f"buffer_load_dword v{AP+2*q+i}, v{12+i}, s[{S_WS}:{S_WS+3}], s{SO_A} offen sc1")
            if q < 3: A(f"s_add_u32 s{SO_A}, s{SO_A}, 32768")
        A(f"buffer_load_dwordx2 {vr(G,2)}, v14, s[{S_WS}:{S_WS+3}], 0 offen sc1")
    def ag2():
        for k in range(8):
            A(f"v_lshlrev_b32 v{T+2*k}, 16, v{AP+k}")
            A(f"v_and_b32 v{T+2*k+1}, 0xffff0000, v{AP+k}")
        for k in range(16):
            A(f"v_mul_f32 v{T+k}, v{G}, v{T+k}")
        A(f"ds_write_b32 v19, v{G+1}")
    def relay():
        for h in range(2):
            A(f"ds_read_b128 {vr(64+4*h,4)}, v17 offset:{1024*h}")
            A(f"ds_read_b128 {vr(72+4*h,4)}, v15 offset:{1024*h}")
        A(f"v_mov_b32 v{S_FT}, 50")
        for h in range(2):
            A(f"s_waitcnt lgkmcnt({2-2*h})")
            if h == 1: A(f"ds_write_b32 v{S_FOWN}, v{S_FT}")
            for k in range(4):
                r = 64 + 4 * h + k
                A(f"v_lshlrev_b32 v80, 16, v{r}")
                A(f"v_lshlrev_b32 v81, 16, v{r+8}")
                A(f"v_and_b32 v82, 0xffff0000, v{r}")
                A(f"v_and_b32 v83, 0xffff0000, v{r+8}")
                A("v_add_f32 v80, v80, v81")
                A("v_add_f32 v82, v82, v83")
                A(f"v_cvt_pk_bf16_f32 v{96+8*h+2*k}, v80, v82")
                if k % 2 == 1:
                    q = 2 * h + k // 2
                    A(f"buffer_store_dwordx4 {vr(96+4*q,4)}, v16, s[{S_WS}:{S_WS+3}], s{SO_P} offen offset:{1024*q} {O.PST}")
    if O.TL2:
        GOT, REL, POL = 33, 34, 35
        A(f"s_bfe_u32 s{Q_T0}, s{RT}, 0x20002")
        A(f"s_lshl_b32 s{Q_T0}, s{Q_T0}, {8+FS}")
        A(f"s_lshl_b32 s{Q_T1}, s{CT}, {5+FS}")
        A(f"s_add_u32 s{Q_T0}, s{Q_T0}, s{Q_T1}")
        A(f"s_add_u32 s{Q_T0}, s{Q_T0}, {F_A}")
        A(f"v_lshl_add_u32 v2, v1, {FS}, s{Q_T0}")
        A(f"s_lshl_b32 s{Q_T0}, s{RT}, {2+FS}")
        A(f"s_add_u32 s{Q_T0}, s{Q_T0}, {F_G}")
        A("v_and_b32 v3, 3, v1")
        A(f"v_lshl_add_u32 v3, v3, {FS}, s{Q_T0}")
        A("v_cmp_gt_u32 vcc, 32, v1")
        A(f"v_mov_b32 v6, {L_AOK}")
        A(f"s_mov_b32 s{GOT}, 0"); A(f"s_mov_b32 s{REL}, 0")
        A("v_cndmask_b32 v2, v3, v2, vcc")
        A(f"s_cmp_eq_u32 s{w}, {O.POLW}")
        A(f"s_cselect_b32 s{POL}, 1, 0")
        A(f"s_mov_b32 s{S_SPIN}, {O.SPIN}")
        A.label("T_L")
        A(f"s_cmp_eq_u32 s{POL}, 1")
        A("s_cbranch_scc0 T_NP")
        A(f"buffer_load_dword v9, v2, s[{S_WS}:{S_WS+3}], 0 offen sc1")
        A(f"s_sub_u32 s{S_SPIN}, s{S_SPIN}, 1")
        A("s_waitcnt vmcnt(0)")
        A("s_cbranch_scc1 T_OK")
        A(f"v_cmp_ne_u32 vcc, v{STOK}, v9")
        A("s_cbranch_vccnz T_NP")
        A.label("T_OK")
        A(f"ds_write_b32 v6, v{STOK+1}")
        A(f"s_mov_b32 s{POL}, 0")
        A.label("T_NP")
        A("ds_read_b32 v7, v6")
        A("ds_read_b32 v31, v5")
        A(f"s_cmp_eq_u32 s{GOT}, 0")
        A("s_waitcnt lgkmcnt(0)")
        A("s_cbranch_scc0 T_NA")
        A("v_cmp_eq_u32 vcc, 0, v7")
        A("s_cbranch_vccnz T_NA")
        tss(A, 4, "t")
        for q in range(4):
            for i in range(2):
                A(f"buffer_load_dword v{AP+2*q+i}, v{12+i}, s[{S_WS}:{S_WS+3}], s{SO_A} offen sc1")
            if q < 3: A(f"s_add_u32 s{SO_A}, s{SO_A}, 32768")
        A(f"buffer_load_dwordx2 {vr(G,2)}, v14, s[{S_WS}:{S_WS+3}], 0 offen sc1")
        A(f"s_mov_b32 s{GOT}, 1")
        A(f"s_cmp_eq_u32 s{REL}, 1")
        A("s_cbranch_scc1 T_W0")
        A.label("T_NA")
        A(f"s_cmp_eq_u32 s{REL}, 0")
        A("s_cbranch_scc0 T_SL")
        A("v_cmp_gt_u32 vcc, 9, v31")
        A("s_cbranch_vccnz T_SL")
        tss(A, 3, "t")
        relay()
        A(f"s_mov_b32 s{REL}, 1")
        A(f"s_cmp_eq_u32 s{GOT}, 1")
        A("s_cbranch_scc1 T_W4")
        A.label("T_SL")
        A(f"s_cmp_eq_u32 s{POL}, 1")
        A("s_cbranch_scc1 T_SP")
        A("s_sleep 1")
        A("s_branch T_L")
        A.label("T_SP")
        A(f"s_sleep {O.ASLP}")
        A("s_branch T_L")
        A.label("T_W0")
        A("s_waitcnt vmcnt(0)")
        A.label("T_W4")
        A("s_waitcnt vmcnt(4)")
        tss(A, 5, "t")
        ag2()
        for q in range(4):
            A(f"ds_write_b128 v18, {vr(T+4*q,4)} offset:{q*1024}")
        sw_arrive(A, S_FOWN, S_FT, 100)
        A("s_waitcnt lgkmcnt(0)")
        return
    if O.F32:
        lwait(A, 5, 0, 31, 9, sleep=2)
        ag()
        tss(A, 3, "t")
        def apart():
            A("s_waitcnt vmcnt(0)")
            A(f"ds_write_b32 v19, v{G+1}")
            for k in range(8):
                A(f"v_lshlrev_b32 v{T+2*k}, 16, v{AP+k}")
                A(f"v_and_b32 v{T+2*k+1}, 0xffff0000, v{AP+k}")
            for k in range(8):
                A(f"v_pk_mul_f32 {vr(T+2*k,2)}, {vr(T+2*k,2)}, {vr(G,2)} op_sel:[0,0] op_sel_hi:[1,0]")
        if O.F32 == 2: apart()
        tss(A, 4, "t")
        lwait(A, 5, 0, 31, 10, sleep=1)
        for q in range(4):
            A(f"ds_read_b128 {vr(64+4*q,4)}, v17 offset:{1024*q}")
            A(f"ds_read_b128 {vr(80+4*q,4)}, v15 offset:{1024*q}")
        if O.F32 == 1: apart()
        tss(A, 5, "t")
        for q in range(4):
            A(f"s_waitcnt lgkmcnt({(6-2*q+q) if O.F32 == 2 else (7-2*q+q)})")
            for k in (2*q, 2*q+1):
                A(f"v_pk_add_f32 {vr(64+2*k,2)}, {vr(64+2*k,2)}, {vr(80+2*k,2)}")
            for k in (2*q, 2*q+1):
                A(f"v_pk_fma_f32 {vr(T+2*k,2)}, {vr(64+2*k,2)}, {vr(G,2)}, {vr(T+2*k,2)} op_sel:[0,1,0] op_sel_hi:[1,1,1]")
            A(f"ds_write_b128 v18, {vr(T+4*q,4)} offset:{q*1024}")
        sw_arrive(A, S_FOWN, S_FT, 100)
        A("s_waitcnt lgkmcnt(0)")
        return
    if O.FK and O.TR2:
        lwait(A, 5, 0, 31, 9, sleep=2)
        ag()
        tss(A, 3, "t")
        lwait(A, 5, 0, 31, 10, sleep=1)
        for h in range(2):
            A(f"ds_read_b128 {vr(64+4*h,4)}, v17 offset:{1024*h}")
            A(f"ds_read_b128 {vr(72+4*h,4)}, v15 offset:{1024*h}")
        A(f"v_mov_b32 v{S_FT}, 50")
        for h in range(2):
            A(f"s_waitcnt lgkmcnt({2 if h == 0 else 0})")
            if h == 1: A(f"ds_write_b32 v{S_FOWN}, v{S_FT}")
            for k in range(4):
                r = 64 + 4 * h + k
                A(f"v_lshlrev_b32 v80, 16, v{r}")
                A(f"v_lshlrev_b32 v81, 16, v{r+8}")
                A(f"v_and_b32 v82, 0xffff0000, v{r}")
                A(f"v_and_b32 v83, 0xffff0000, v{r+8}")
                A(f"v_add_f32 v{T+8*h+2*k}, v80, v81")
                A(f"v_add_f32 v{T+8*h+2*k+1}, v82, v83")
        tss(A, 4, "t")
        A("s_waitcnt vmcnt(0)")
        tss(A, 5, "t")
        A(f"ds_write_b32 v19, v{G+1}")
        for q in range(4):
            for k in range(2):
                A(f"v_lshlrev_b32 v{80+2*k}, 16, v{AP+2*q+k}")
                A(f"v_and_b32 v{81+2*k}, 0xffff0000, v{AP+2*q+k}")
            for k in range(4): A(f"v_mul_f32 v{80+k}, v{G}, v{80+k}")
            for k in range(4): A(f"v_fma_f32 v{T+4*q+k}, v{G+1}, v{T+4*q+k}, v{80+k}")
            A(f"ds_write_b128 v18, {vr(T+4*q,4)} offset:{q*1024}")
        sw_arrive(A, S_FOWN, S_FT, 100)
        A("s_waitcnt lgkmcnt(0)")
        return
    if O.FK:
        if O.MID: lwait(A, 5, 0, 31, 9, sleep=2)
        ag(); A("s_waitcnt vmcnt(0)"); ag2()
        tss(A, 3, "t")
        lwait(A, 5, 0, 31, 10 if O.MID else 9, sleep=1)
        tss(A, 4, "t")
        for h in range(2):
            A(f"ds_read_b128 {vr(64+4*h,4)}, v17 offset:{1024*h}")
            A(f"ds_read_b128 {vr(72+4*h,4)}, v15 offset:{1024*h}")
        A(f"v_mov_b32 v{S_FT}, 50")
        for h in range(2):
            A(f"s_waitcnt lgkmcnt({2 if h == 0 else 2})")
            if h == 1: A(f"ds_write_b32 v{S_FOWN}, v{S_FT}")
            for k in range(4):
                r = 64 + 4 * h + k
                A(f"v_lshlrev_b32 v80, 16, v{r}")
                A(f"v_lshlrev_b32 v81, 16, v{r+8}")
                A(f"v_and_b32 v82, 0xffff0000, v{r}")
                A(f"v_and_b32 v83, 0xffff0000, v{r+8}")
                A("v_add_f32 v80, v80, v81")
                A("v_add_f32 v82, v82, v83")
                A(f"v_fmac_f32 v{T+8*h+2*k}, v{G+1}, v80")
                A(f"v_fmac_f32 v{T+8*h+2*k+1}, v{G+1}, v82")
                if k % 2 == 1:
                    q = 2 * h + k // 2
                    A(f"ds_write_b128 v18, {vr(T+4*q,4)} offset:{q*1024}")
        sw_arrive(A, S_FOWN, S_FT, 100)
        A("s_waitcnt lgkmcnt(0)")
        return
    if O.AFIRST:
        ag(); A("s_waitcnt vmcnt(0)"); ag2()
        tss(A, 3, "t")
    lwait(A, 5, 0, 31, 9, sleep=1)
    tss(A, 4 if O.AFIRST else 3, "t")
    if O.EPOL: A(f"buffer_load_dword v9, v2, s[{S_WS}:{S_WS+3}], 0 offen sc1")
    for h in range(2):
        A(f"ds_read_b128 {vr(64+4*h,4)}, v17 offset:{1024*h}")
        A(f"ds_read_b128 {vr(72+4*h,4)}, v15 offset:{1024*h}")
    A(f"v_mov_b32 v{S_FT}, 50")
    for h in range(2):
        A(f"s_waitcnt lgkmcnt({2-2*h})")
        if h == 1: A(f"ds_write_b32 v{S_FOWN}, v{S_FT}")
        for k in range(4):
            r = 64 + 4 * h + k
            A(f"v_lshlrev_b32 v80, 16, v{r}")
            A(f"v_lshlrev_b32 v81, 16, v{r+8}")
            A(f"v_and_b32 v82, 0xffff0000, v{r}")
            A(f"v_and_b32 v83, 0xffff0000, v{r+8}")
            A("v_add_f32 v80, v80, v81")
            A("v_add_f32 v82, v82, v83")
            A(f"v_cvt_pk_bf16_f32 v{96+8*h+2*k}, v80, v82")
            if k % 2 == 1:
                q = 2 * h + k // 2
                A(f"buffer_store_dwordx4 {vr(96+4*q,4)}, v16, s[{S_WS}:{S_WS+3}], s{SO_P} offen offset:{1024*q} {O.PST}")
    if not O.AFIRST:
        ag()
        tss(A, 4, "t")
    A(f"s_mov_b32 s{S_SPIN}, {O.SPIN}")
    A.label("S_PL")
    for q in range(4):
        A(f"buffer_load_dwordx4 {vr(112+4*q,4)}, v16, s[{S_WS}:{S_WS+3}], s{SO_O} offen offset:{1024*q} sc1")
    if not O.AFIRST:
        A(f"s_cmp_eq_u32 s{S_SPIN}, {O.SPIN}")
        A("s_cbranch_scc0 S_PM")
        A("s_waitcnt vmcnt(4)")
        ag2()
        A.label("S_PM")
    A("s_waitcnt vmcnt(0)")
    for k in range(4):
        A(f"v_xor_b32 v{80+k}, v{STOK}, v{113+4*k}")
        A(f"v_xor_b32 v{84+k}, v{STOK}, v{115+4*k}")
    A("v_or3_b32 v80, v80, v81, v82")
    A("v_or3_b32 v83, v83, v84, v85")
    A("v_or3_b32 v80, v80, v86, v87")
    A("v_or_b32 v80, v80, v83")
    A("v_cmp_ne_u32 vcc, 0, v80")
    A("s_cbranch_vccz S_PD")
    A("s_sleep 1")
    A(f"s_sub_u32 s{S_SPIN}, s{S_SPIN}, 1")
    A("s_cbranch_scc0 S_PL")
    A.label("S_PD")
    tss(A, 5, "t")
    for q in range(4):
        for k in range(2):
            r = 112 + 4 * q + 2 * k
            A(f"v_lshlrev_b32 v{80+2*k}, 16, v{r}")
            A(f"v_and_b32 v{81+2*k}, 0xffff0000, v{r}")
        for k in range(4):
            A(f"v_fmac_f32 v{T+4*q+k}, v{G+1}, v{80+k}")
        A(f"ds_write_b128 v18, {vr(T+4*q,4)} offset:{q*1024}")
    sw_arrive(A, S_FOWN, S_FT, 100)
    A("s_waitcnt lgkmcnt(0)")

def diag(A, k, role):
    A("s_waitcnt vmcnt(0) lgkmcnt(0)")
    A(f"s_memtime s[{S_TS+12}:{S_TS+13}]")
    A("s_waitcnt lgkmcnt(0)")
    A(f"s_sub_u32 s64, s{S_TS+2*k}, s{S_TS+2}")
    mx = len(O.DIAG) > 2
    if not mx or role == "G":
        A(f"s_cmp_ge_u32 s{S_J}, 28")
        A("s_cselect_b32 s64, 0, s64")
    A("v_mov_b32 v2, 128"); A("v_mov_b32 v3, s64")
    A("s_mov_b64 exec, 1")
    A(f"global_atomic_{'umax' if mx else 'add'} v2, v3, s[{P_DBG}:{P_DBG+1}] sc1")
    for lab, first in (("DG0", True), ("DG1", False)):
        A("s_mov_b32 s66, 1000000")
        if first: A("s_mov_b32 s67, 3200")
        A.label(lab)
        A("s_memrealtime s[64:65]")
        A("s_waitcnt lgkmcnt(0)")
        A(f"s_sub_u32 s64, s64, s{S_TS}")
        A("s_cmp_ge_u32 s64, s67")
        A(f"s_cbranch_scc1 {lab}X")
        A("s_sub_u32 s66, s66, 1")
        A(f"s_cbranch_scc0 {lab}")
        A.label(lab + "X")
        if first:
            A("s_waitcnt vmcnt(0)")
            A(f"global_load_dword v3, v2, s[{P_DBG}:{P_DBG+1}] sc1")
            A("s_waitcnt vmcnt(0)")
            A("v_readfirstlane_b32 s67, v3")
            A(f"s_lshr_b32 s67, s67, {1 if mx else 11}")
            A("s_add_u32 s67, s67, 3500")
def fin(A, role):
    if O.DIAG is None: ts_dump(A, 0, S_W8)
    elif O.DIAG[0] == role: diag(A, O.DIAG[1], role)

KN = "gated_mix__ssm_conv_s4d__dense_activation_silu__prompt_kernel"
A = Asm()
A.raw("; @launch grid=(256,1,1) block=(512,1,1) lds=163840")
A.raw('.amdgcn_target "amdgcn-amd-amdhsa--gfx950"')
kernel_header(A, KN)
ts_real(A, 0); parts_ts(A, 1)
if O.ECP > 0:
    A(f"s_cmp_ge_u32 s2, 256")
    A(f"s_cbranch_scc1 K_END")
    A("s_getpc_b64 s[72:73]")
    A.label("K_PC0")
    A("s_load_dwordx16 s[36:51], s[0:1], 0")
    A(f"s_lshr_b32 s{S_J}, s2, 3")
    if O.ECP == 1:
        A("v_lshrrev_b32 v255, 5, v0")
        A(f"v_lshl_add_u32 v255, s{S_J}, 4, v255")
        A("v_lshlrev_b32 v255, 6, v255")
    else:
        A(f"s_and_b32 s74, s{S_J}, {32//O.ECP-1}")
        A(f"v_lshrrev_b32 v255, {5-int(math.log2(O.ECP))}, v0")
        A(f"v_lshl_add_u32 v255, s74, {4+int(math.log2(O.ECP))}, v255")
        A("v_lshlrev_b32 v255, 6, v255")
    A(f"v_min_u32 v255, K_END-K_PC0, v255")
    A("global_load_dword v255, v255, s[72:73]")
    A("s_load_dwordx8 s[52:59], s[0:1], 64")
    A("s_load_dwordx4 s[60:63], s[0:1], 96")
    A("v_lshrrev_b32 v2, 6, v0")
    A("v_and_b32 v1, 63, v0")
    A(f"v_readfirstlane_b32 s{S_WAVE}, v2")
    A(f"s_and_b32 s{S_XCD}, s2, 7")
else:
    prologue(A, "K_END")
A(f"s_mov_b32 s{S_W8}, s{S_WAVE}")
A("v_and_b32 v2, 31, v1")
A("v_lshlrev_b32 v2, 2, v2")
A(f"v_add_u32 v2, {LF}, v2")
A("v_mov_b32 v3, 0")
A("ds_write_b32 v2, v3")
A(f"s_cmp_ge_u32 s{S_WAVE}, 4")
A("s_cbranch_scc1 K_SSM")
if O.GPRIO: A(f"s_setprio {O.GPRIO}")
if O.ECP < 0:
    A(f"s_cmp_lt_u32 s{S_J}, 28")
    A("s_cbranch_scc1 K_GM")
    A("s_getpc_b64 s[72:73]")
    A.label("K_PC0")
    A(f"s_and_b32 s74, s{S_J}, 3")
    A(f"v_lshrrev_b32 v255, 1, v0")
    A(f"v_lshl_add_u32 v255, s74, 7, v255")
    A("v_lshlrev_b32 v255, 6, v255")
    A(f"v_min_u32 v255, K_END-K_PC0, v255")
    A("global_load_dword v255, v255, s[72:73]")
    A("s_branch K_IDLE")
    A.label("K_GM")
else:
    A(f"s_cmp_ge_u32 s{S_J}, 28")
    A("s_cbranch_scc1 K_IDLE")
g1_setup(A)
if O.HAB: hab_setup(A)
rot_c0(A, S_C0, S_T0)
A("s_waitcnt lgkmcnt(0)")
srd(A, S_X, P_U, L*D*2); srd(A, S_W1, P_W1, D*F*2)
vm = Vm(A); cid = {}
for x in g_chunk_dma(0): vm.op(x)
cid[0] = vm.n
if O.GPRE == 1: A("s_barrier")
if O.LOOK > 1:
    for x in g_chunk_dma(1): vm.op(x)
    cid[1] = vm.n
if O.GPRE == 2: A("s_barrier")
srd(A, S_WS, P_WS, WS_BYTES); srd(A, S_OUT, P_OUT, L*D*2)
g1_setup2(A); g_flags_setup(A); g2_setup(A)
if O.HAB: hab_setup2(A)
if O.GW2: gw2_setup(A)
if O.LOOK > 2:
    for x in g_chunk_dma(2): vm.op(x)
    cid[2] = vm.n
if O.LOOK >= 4 and O.L3 == "u":
    for x in g_chunk_dma(3): vm.op(x)
    cid[3] = vm.n
if "L" in O.X2:
    parts_ts(A, 2)
    for k in sorted(cid)[:3]:
        vm.wait(cid[k]); parts_ts(A, 3 + k)
if O.GHOLD: lwait(A, GRD, 32, GT, 1, sleep=4)
(g1_main if O.LA == 1 else g1_main2)(A, vm, cid)
tsg(A, 2, "aeh")
g1_epi(A)
tsg(A, 3, "ae")
A.label("K_G2")
if O.GW2:
    A(f"v_mov_b32 v{GT}, 12")
    A("s_waitcnt vmcnt(0)")
    A(f"ds_write_b32 v{GOWN}, v{GT}")
    lwait(A, GRD, 0, GT + 1, 12)
else: lwait(A, GRD, 48, GT, 12)
if O.FK:
    fk_x(A)
    A.label("K_G3")
else:
    for i in range(O.PFD):
        for x in w2_read(i): A(x)
tsg(A, 4, "h")
if O.PW:
    poll(A, FV, GT, VTOK, "PH", slp=O.HSLP)
    A("s_waitcnt lgkmcnt(0)")
else:
    A(f"v_mov_b32 v{GX}, {L_HOK}")
    A(f"s_cmp_eq_u32 s{S_WAVE}, 0")
    A("s_cbranch_scc0 K_HW")
    poll(A, FV, GT, VTOK, "PH", slp=O.HSLP)
    A(f"ds_write_b32 v{GX}, v{VTOK+1}")
    A("s_waitcnt lgkmcnt(1)")
    A("s_branch K_HD")
    A.label("K_HW")
    lwait(A, GX, 0, GT, 1)
A.label("K_HD")
if O.G2P is not None: A(f"s_setprio {O.G2P}")
tsg(A, 5, "h")
tsg(A, 4, "ae"); tsg(A, 1, "sf")
g2_main(A)
A("s_waitcnt lgkmcnt(0)")
fin(A, "G")
A("s_endpgm")
A.label("K_IDLE")
if O.IPRIO != O.GPRIO: A(f"s_setprio {O.IPRIO}")
idle_tr_issue(A)
if O.CODEPF:
    A("s_getpc_b64 s[72:73]")
    A.label("K_PC")
    A(f"s_sub_u32 s72, s72, K_PC-{KN}")
    A("s_subb_u32 s73, s73, 0")
    A(f"v_lshl_add_u32 v20, s64, 5, v1")
    A("v_lshlrev_b32 v20, 7, v20")
    A(f"v_min_u32 v20, K_END-{KN}, v20")
    A("s_mov_b64 exec, 0xffffffff")
    A("global_load_dword v21, v20, s[72:73]")
    A("s_mov_b64 exec, -1")
A("s_waitcnt lgkmcnt(0)")
srd(A, S_X, P_U, L*D*2)
if any(O.W2P): srd(A, S_W2, P_W2, D*F*2); w2_touch_setup(A)
w2_touch(A, O.W2P[0], 26)
idle_tr_dma(A)
A("s_barrier")
w2_touch(A, O.W2P[1], 26)
srd(A, S_WS, P_WS, WS_BYTES); srd(A, S_OUT, P_OUT, L*D*2)
idle_tr_finish(A, 2 * len(O.W2P[1]))
g_flags_setup(A); g2_setup(A)
tsg(A, 2, "ae")
token_get(A, GX, VTOK)
A(f"s_lshl_b32 s68, s34, 4")
A(f"s_add_u32 s68, s68, s33")
A(f"s_lshl_b32 s65, s68, {FS}")
A(f"s_add_u32 s65, s65, {F_UT}")
A("s_waitcnt vmcnt(0)")
flag_store(A, 65, GT, VTOK)
tsg(A, 3, "ae")
A(f"v_mov_b32 v{GT}, 8")
A(f"ds_write_b32 v{GOWN}, v{GT} offset:16")
if O.IPRIO != O.GPRIO: A(f"s_setprio {O.GPRIO}")
w2_touch(A, O.W2P[2], 26)
idle_gate_issue(A)
w2_touch(A, O.W2P[3], 26)
if O.GW2:
    gw2_setup(A)
    lwait(A, GRD, 16, GT, 8)
    for sl in range(4):
        for x in gw2_dma(sl): A(x)
idle_gate_finish(A, 2 * len(O.W2P[3]) + (28 if O.GW2 else 0))
if not O.TL3:
    A(f"s_lshl_b32 s65, s68, {FS}")
    A(f"s_add_u32 s65, s65, {F_G}")
    A("s_waitcnt vmcnt(0)")
    flag_store(A, 65, GT, VTOK)
A("s_branch K_G2")
A.label("K_SSM")
if O.SPRIO: A(f"s_setprio {O.SPRIO}")
A(f"s_sub_u32 s{S_WAVE}, s{S_WAVE}, 4")
s_setup(A)
carry_zero(A)
A("s_getreg_b32 s31, hwreg(HW_REG_XCC_ID)")
def w2s():
    if O.W2S is None: return
    srd(A, S_W2, P_W2, D*F*2)
    A(f"s_lshr_b32 s{Q_T0}, s{S_XCD}, 1")
    A(f"s_and_b32 s{Q_T1}, s{S_XCD}, 1")
    A(f"s_lshl_b32 s{Q_T1}, s{Q_T1}, 2")
    A(f"s_add_u32 s{Q_T0}, s{Q_T0}, s{Q_T1}")
    A(f"s_lshl_b32 s{Q_T0}, s{Q_T0}, 5")
    A(f"s_add_u32 s{Q_T0}, s{Q_T0}, s{S_J}")
    A(f"s_lshl_b32 s{Q_T0}, s{Q_T0}, 1")
    A(f"s_add_u32 s{Q_T0}, s{Q_T0}, s{Q_NH}")
    A(f"s_mul_i32 s{Q_T0}, s{Q_T0}, 3584")
    A("v_min_u32 v39, 27, v1")
    A("v_lshlrev_b32 v39, 7, v39")
    A(f"buffer_load_dword v39, v39, s[{S_W2}:{S_W2+3}], s{Q_T0} offen {O.PFL2}")
def flow2():
    A(f"s_cmp_eq_u32 s{Q_C}, 1")
    A("s_cbranch_scc1 S_LD")
    A(f"s_lshl_b32 s{Q_T0}, s{Q_PAIR}, 9")
    A(f"s_lshl_b32 s{Q_T1}, s{S_WAVE}, 8")
    A(f"s_add_u32 s{Q_T0}, s{Q_T0}, s{Q_T1}")
    A(f"v_lshl_add_u32 v6, v1, 2, s{Q_T0}")
    A(f"s_lshl_b32 s{Q_T0}, s{Q_PAIR}, 2")
    A("s_waitcnt lgkmcnt(0)")
    for i, p in enumerate((P_LA, P_AI, P_CR, P_CI)):
        A(f"global_load_dword v{14+i}, v6, s[{p}:{p+1}]")
    A(f"s_load_dword s{Q_LDT}, s[{P_LDT}:{P_LDT+1}], s{Q_T0}")
    A(f"s_load_dword s{Q_DSK}, s[{P_DSK}:{P_DSK+1}], s{Q_T0}")
    A(f"s_add_u32 s28, s{P_WS}, {F_EP}")
    A(f"s_addc_u32 s29, s{P_WS+1}, 0")
    A(f"s_cmp_eq_u32 s{S_WAVE}, 1")
    A("s_cbranch_scc0 S_NT")
    A("s_load_dword s30, s[28:29], 0")
    A.label("S_NT")
    A("s_barrier")
    if O.W2S == 0: w2s()
    def tokpub():
        A(f"s_cmp_eq_u32 s{S_WAVE}, 1")
        A("s_cbranch_scc0 S_NP")
        A("s_mul_i32 s30, s30, 0x9e3779a1")
        A("s_add_u32 s30, s30, 0x7f4a7c10")
        A("s_and_b32 s30, s30, -16")
        A(f"v_mov_b32 v{STOK}, s30")
        A(f"v_mov_b32 v{STOK+1}, 1")
        A(f"v_mov_b32 v34, {L_RDY}")
        A(f"ds_write_b64 v34, {vr(STOK,2)}")
        A(f"s_waitcnt vmcnt({1 if O.W2S == 0 else 0})")
        A(f"s_lshl_b32 s28, s2, {FS}")
        A(f"s_add_u32 s28, s28, {F_HERE}")
        flag_store(A, 28, 36, STOK)
        A("s_branch S_NQ")
        A.label("S_NP")
        A(f"s_waitcnt vmcnt({1 if O.W2S == 0 else 0})")
        A.label("S_NQ")
    kgen2(A, 2, tokpub)
    tss(A, 5, "k")
    A("s_cmp_eq_u32 s2, 0")
    A("s_cbranch_scc0 S_UW")
    A(f"s_cmp_eq_u32 s{S_WAVE}, 1")
    A("s_cbranch_scc0 S_UW")
    for i in range(4):
        A(f"v_lshlrev_b32 v8, {FS}, v1")
        A(f"v_add_u32 v8, {F_HERE+(64<<FS)*i}, v8")
        poll(A, 8, 9, STOK, "PE")
    A(f"s_mov_b32 s{Q_T0}, {F_EP}")
    flag_store(A, Q_T0, 8, STOK)
    A.label("S_UW")
    A("s_branch S_CV")
    A.label("S_LD")
    if O.LPRIO != O.SPRIO: A(f"s_setprio {O.LPRIO}")
    loader_setup(A)
    A("s_waitcnt lgkmcnt(0)")
    srd(A, S_X, P_U, L*D*2); srd(A, S_W1, P_W1, D*F*2); srd(A, S_W2, P_W2, D*F*2)
    srd(A, S_WS, P_WS, WS_BYTES)
    A("s_barrier")
    if O.W2S == 1: w2s()
    if O.LDLY: A(f"s_sleep {O.LDLY}")
    loader2(A)
def flow1():
    A(f"s_lshl_b32 s{Q_T0}, s{Q_PAIR}, 9")
    A(f"s_lshl_b32 s{Q_T1}, s{S_WAVE}, 7")
    A(f"s_add_u32 s{Q_T0}, s{Q_T0}, s{Q_T1}")
    A(f"v_lshl_add_u32 v6, v1, 1, s{Q_T0}")
    A(f"s_lshl_b32 s{Q_T0}, s{Q_PAIR}, 2")
    A("s_waitcnt lgkmcnt(0)")
    for i, p in enumerate((P_LA, P_AI, P_CR, P_CI)):
        A(f"global_load_ushort v{2+i}, v6, s[{p}:{p+1}]")
    A(f"s_load_dword s{Q_LDT}, s[{P_LDT}:{P_LDT+1}], s{Q_T0}")
    A(f"s_load_dword s{Q_DSK}, s[{P_DSK}:{P_DSK+1}], s{Q_T0}")
    A(f"s_add_u32 s28, s{P_WS}, {F_EP}")
    A(f"s_addc_u32 s29, s{P_WS+1}, 0")
    A(f"s_cmp_eq_u32 s{S_WAVE}, 1")
    A("s_cbranch_scc0 S_NT")
    A("s_load_dword s30, s[28:29], 0")
    A.label("S_NT")
    A("s_barrier")
    if O.TCH:
        A(f"s_cmp_eq_u32 s{Q_C}, 1")
        A("s_cbranch_scc1 S_T2")
        A(f"s_cmp_eq_u32 s{Q_NH}, 1")
        A("s_cbranch_scc1 S_T1")
        srd(A, S_X, P_U, L*D*2)
        A(f"s_lshl_b32 s{Q_T0}, s{Q_PAIR}, 13")
        A("v_lshlrev_b32 v39, 7, v1" if "x" in O.TCH else "v_mov_b32 v39, 0")
        A(f"buffer_load_dword v39, v39, s[{S_X}:{S_X+3}], s{Q_T0} offen")
        A("s_branch S_T3")
        A.label("S_T1")
        srd(A, S_W1, P_W1, D*F*2)
        A(f"s_add_u32 s{Q_T0}, s{S_XCD}, {2*O.TR}")
        A(f"s_bfe_u32 s{Q_T0}, s{Q_T0}, 0x20001")
        A(f"s_lshl_b32 s{Q_T0}, s{Q_T0}, 5")
        A(f"s_add_u32 s{Q_T0}, s{Q_T0}, s{S_J}")
        A(f"s_mul_i32 s{Q_T0}, s{Q_T0}, {4*2*F}")
        A(f"s_and_b32 s{Q_T1}, s{S_XCD}, 1")
        A(f"s_mul_i32 s{Q_T1}, s{Q_T1}, {F}")
        A(f"s_add_u32 s{Q_T0}, s{Q_T0}, s{Q_T1}")
        A("v_and_b32 v38, 15, v1")
        A("v_min_u32 v38, 13, v38")
        A("v_lshrrev_b32 v39, 4, v1")
        A(f"v_mul_u32_u24 v39, {2*F}, v39")
        A("v_lshl_add_u32 v39, v38, 7, v39" if "w" in O.TCH else "v_mov_b32 v39, 0")
        A(f"buffer_load_dword v39, v39, s[{S_W1}:{S_W1+3}], s{Q_T0} offen")
        A("s_branch S_T3")
        A.label("S_T2")
        w2s()
        A.label("S_T3")
    elif O.W2H: pass
    elif O.W2S is not None:
        srd(A, S_W2, P_W2, D*F*2)
        A(f"s_lshr_b32 s{Q_T0}, s{S_XCD}, 1")
        A(f"s_and_b32 s{Q_T1}, s{S_XCD}, 1")
        A(f"s_lshl_b32 s{Q_T1}, s{Q_T1}, 2")
        A(f"s_add_u32 s{Q_T0}, s{Q_T0}, s{Q_T1}")
        A(f"s_lshl_b32 s{Q_T0}, s{Q_T0}, 5")
        A(f"s_add_u32 s{Q_T0}, s{Q_T0}, s{S_J}")
        A(f"s_mul_i32 s{Q_T0}, s{Q_T0}, 7168")
        A(f"s_mul_i32 s{Q_T1}, s{S_WAVE}, 1792")
        A(f"s_add_u32 s{Q_T0}, s{Q_T0}, s{Q_T1}")
        A("v_min_u32 v39, 13, v1")
        A("v_lshlrev_b32 v39, 7, v39")
        A(f"buffer_load_dword v39, v39, s[{S_W2}:{S_W2+3}], s{Q_T0} offen {O.PFL2}")
    def pre():
        if O.GW2: srd(A, S_WS, P_WS, WS_BYTES); return
        srd(A, S_X, P_U, L*D*2); srd(A, S_W1, P_W1, D*F*2); srd(A, S_W2, P_W2, D*F*2)
        srd(A, S_WS, P_WS, WS_BYTES)
        loader_setup(A)
    def tokpub():
        tss(A, 2, "ak")
        A(f"s_cmp_eq_u32 s{S_WAVE}, 1")
        A("s_cbranch_scc0 S_NP")
        A("s_mul_i32 s30, s30, 0x9e3779a1")
        A("s_add_u32 s30, s30, 0x7f4a7c10")
        A("s_and_b32 s30, s30, -16")
        A("s_and_b32 s31, s31, 15")
        A("s_or_b32 s31, s31, s30")
        A(f"v_mov_b32 v{STOK}, s30")
        A(f"v_mov_b32 v{STOK+1}, 1")
        A(f"v_mov_b32 v34, {L_RDY}")
        A(f"ds_write_b64 v34, {vr(STOK,2)}")
        A(f"v_mov_b32 v35, s31")
        A(f"s_lshl_b32 s28, s2, {FS}")
        A(f"s_add_u32 s28, s28, {F_HERE}")
        flag_store(A, 28, 36, 35)
        A.label("S_NP")
    def khook():
        tss(A, 3, "k")
        if O.W2H == 1:
            A(f"s_cmp_eq_u32 s{Q_C}, 1")
            A("s_cbranch_scc0 S_T4")
            w2s()
            A.label("S_T4")
    kgen(A, later=0 if (O.W2S is None or O.W2H) else 1, hookA=tokpub, pre=pre, hook=khook)
    tss(A, 4, "k")
    if O.W2H == 2:
        A(f"s_cmp_eq_u32 s{Q_C}, 0")
        A("s_cbranch_scc0 S_T4")
        w2s()
        A.label("S_T4")
    kgen_exchange_write(A)
    A("s_waitcnt lgkmcnt(0)")
    sw_arrive(A, S_FOWN, S_FT, 1)
    def kfin():
        sw_wait(A, S_FRD, S_FT, 1, sleep=1)
        kgen_final(A)
        token_get(A, 8, STOK)
    tss(A, 3, "a")
    if O.GW2:
        token_get(A, 16, STOK)
        A(f"s_cmp_eq_u32 s{S_WAVE}, {O.UW}")
        A("s_cbranch_scc0 S_K1")
        A(f"s_lshl_b32 s{Q_T0}, s{S_XCD}, {4+FS}")
        A(f"s_add_u32 s{Q_T0}, s{Q_T0}, {F_UT}")
        A("v_and_b32 v16, 15, v1")
        A(f"v_lshl_add_u32 v16, v16, {FS}, s{Q_T0}")
        poll(A, 16, 17, STOK, "PU")
        ut2(A, 0)
        A.label("S_K1")
        sw_wait(A, S_FRD, S_FT, 1, sleep=1)
        kgen_final(A)
        tss(A, 5, "k")
        A(f"s_cmp_eq_u32 s{S_WAVE}, {O.UW}")
        A("s_cbranch_scc0 S_K2")
        ut2(A, 1)
        A.label("S_K2")
        A("s_cmp_eq_u32 s2, 0")
        A("s_cbranch_scc0 S_CV")
        A(f"s_cmp_eq_u32 s{S_WAVE}, 1")
        A("s_cbranch_scc0 S_CV")
        for i in range(4):
            A(f"v_lshlrev_b32 v8, {FS}, v1")
            A(f"v_add_u32 v8, {F_HERE+(64<<FS)*i}, v8")
            poll(A, 8, 9, STOK, "PE", mask=True)
        A(f"s_mov_b32 s{Q_T0}, {F_EP}")
        flag_store(A, Q_T0, 8, STOK)
        return
    A(f"s_cmp_eq_u32 s{Q_C}, 1")
    A("s_cbranch_scc1 S_LD")
    kfin()
    tss(A, 5, "k")
    A(f"s_cmp_eq_u32 s{S_WAVE}, 1")
    A("s_cbranch_scc1 S_VD")
    A(f"s_lshl_b32 s{Q_T0}, s{S_XCD}, {4+FS}")
    A(f"s_add_u32 s{Q_T0}, s{Q_T0}, {F_UT}")
    A("v_and_b32 v8, 15, v1")
    A(f"v_lshl_add_u32 v8, v8, {FS}, s{Q_T0}")
    poll(A, 8, 9, STOK, "PU")
    ut2(A)
    A("s_branch S_CV")
    A.label("S_VD")
    if O.YT is not None:
        A("v_min_u32 v56, 55, v1")
        A("v_lshlrev_b32 v56, 7, v56")
        for ph, (thr, odd) in enumerate(O.YT):
            if thr: lwait(A, LGD, 0, 31, thr, sleep=4)
            for q in range(4):
                A(f"s_add_u32 s{Q_T0}, s{S_XCD}, {q}")
                A(f"s_and_b32 s{Q_T0}, s{Q_T0}, 3")
                A(f"s_lshl_b32 s{Q_T0}, s{Q_T0}, 6")
                A(f"s_add_u32 s{Q_T0}, s{Q_T0}, s{S_J}")
                if odd: A(f"s_add_u32 s{Q_T0}, s{Q_T0}, 32")
                A(f"s_mul_i32 s{Q_T0}, s{Q_T0}, 7168")
                A(f"buffer_load_dword v57, v56, s[{S_W2}:{S_W2+3}], s{Q_T0} offen")
    if O.PT:
        A(f"s_lshr_b32 s{Q_T0}, s{S_J}, 2")
        A(f"s_lshl_b32 s{Q_T0}, s{Q_T0}, 18")
        A(f"s_xor_b32 s{Q_T1}, s{S_XCD}, 2")
        A(f"s_lshl_b32 s{Q_T1}, s{Q_T1}, 10")
        A(f"s_add_u32 s{Q_T0}, s{Q_T0}, s{Q_T1}")
        A(f"s_add_u32 s{Q_T0}, s{Q_T0}, {WS_A}")
        A(f"v_lshl_add_u32 v8, v1, 13, s{Q_T0}")
        A(f"s_lshl_b32 s{Q_T0}, s2, 14")
        A(f"s_add_u32 s{Q_T0}, s{Q_T0}, {WS_P}")
        A("v_and_b32 v9, 3, v1")
        A(f"v_lshl_add_u32 v9, v9, 12, s{Q_T0}")
        A("v_cmp_gt_u32 vcc, 32, v1")
        A(f"s_lshl_b32 s{Q_T0}, s{Q_PAIR}, 13")
        A(f"s_add_u32 s{Q_T0}, s{Q_T0}, s{Q_T1}")
        A("v_cndmask_b32 v8, v9, v8, vcc")
        A(f"s_add_u32 s{Q_T0}, s{Q_T0}, {WS_A}")
        A("v_and_b32 v9, 1, v1")
        A("v_lshlrev_b32 v9, 12, v9")
        A(f"v_xor_b32 v9, s{Q_T0}, v9")
        A("v_cmp_gt_u32 vcc, 48, v1")
        srd(A, S_OUT, P_OUT, L*D*2)
        A("v_cndmask_b32 v8, v9, v8, vcc")
        if "w" in O.PT: A(f"buffer_load_dword v38, v8, s[{S_WS}:{S_WS+3}], 0 offen")
        A(f"s_and_b32 s{Q_T0}, s{S_XCD}, 6")
        A(f"s_lshl_b32 s{Q_T0}, s{Q_T0}, 1")
        A(f"s_and_b32 s{Q_T1}, s{S_J}, 3")
        A(f"s_add_u32 s{Q_T0}, s{Q_T0}, s{Q_T1}")
        A(f"s_lshl_b32 s{Q_T0}, s{Q_T0}, 1")
        A(f"s_and_b32 s{Q_T1}, s{S_XCD}, 1")
        A(f"s_add_u32 s{Q_T0}, s{Q_T0}, s{Q_T1}")
        A(f"s_lshl_b32 s{Q_T0}, s{Q_T0}, 16")
        A(f"s_lshr_b32 s{Q_T1}, s{S_J}, 2")
        A(f"s_lshl_b32 s{Q_T1}, s{Q_T1}, 7")
        A(f"s_add_u32 s{Q_T0}, s{Q_T0}, s{Q_T1}")
        if "O" in O.PT: A("v_lshlrev_b32 v9, 10, v1")
        else:
            A("v_and_b32 v9, 15, v1")
            A("v_lshlrev_b32 v9, 12, v9")
        if "o" in O.PT.lower(): A(f"buffer_load_dword v37, v9, s[{S_OUT}:{S_OUT+3}], s{Q_T0} offen")
    if O.VERD:
        A(f"s_and_b32 s{Q_T0}, s2, 31")
        A(f"s_lshl_b32 s{Q_T0}, s{Q_T0}, {FS}")
        A(f"s_add_u32 s{Q_T0}, s{Q_T0}, {F_HERE}")
        A("v_and_b32 v8, 7, v1")
        A(f"v_lshl_add_u32 v8, v8, {5+FS}, s{Q_T0}")
        poll(A, 8, 9, STOK, "PV", mask=True)
        A("v_cmp_ne_u32 vcc, s31, v9")
        A("s_cmp_eq_u64 vcc, 0")
        A(f"s_cselect_b32 s{Q_T0}, 1, 2")
        A(f"v_mov_b32 v9, s{Q_T0}")
        A(f"v_mov_b32 v8, {L_VERD}")
        A("ds_write_b32 v8, v9")
    A("s_cmp_eq_u32 s2, 0")
    A("s_cbranch_scc0 S_CV")
    for i in range(4):
        A(f"v_lshlrev_b32 v8, {FS}, v1")
        A(f"v_add_u32 v8, {F_HERE+(64<<FS)*i}, v8")
        poll(A, 8, 9, STOK, "PE", mask=True)
    A(f"s_mov_b32 s{Q_T0}, {F_EP}")
    flag_store(A, Q_T0, 8, STOK)
    A("s_branch S_CV")
    A.label("S_LD")
    loader(A, kfin)

(flow2 if O.DL else flow1)()
A.label("S_CV")
conv_setup(A)
A(f"v_mov_b32 v{LV}, 12"); A(f"v_mov_b32 v{LV+1}, 12")
s_barrier(A, 2)
tss(A, 4, "a"); tss(A, 2, "u")
if O.CPRIO != O.SPRIO: A(f"s_setprio {O.CPRIO}")
conv(A, inj=None if O.GW2 else (O.PUBM, ["s_waitcnt vmcnt(0)", f"ds_write_b64 v{LSA}, {vr(LV,2)}"]))
if O.CPRIO != O.TPRIO: A(f"s_setprio {O.TPRIO}")
if O.TL3:
    conv_final3(A); s_tail3(A)
else:
    tss(A, 3, "u")
    s_barrier(A, 3)
    conv_final(A, "sc1")
    tss(A, 4, "u")
    s_tail(A)
fin(A, "S")
A.label("K_END")
A("s_endpgm")
kernel_desc(A, KN, 256)
open(sys.argv[1], "w").write(A.text())
```

```python
import sys; sys.path.insert(0, "gen")
import parts
from parts import *
import ssm
from ssm import *

class Opt: pass
O = Opt()
O.TS = False
O.ROT = (0, 0, 2, 1)
O.SPRIO = 3; O.CPRIO = 0; O.GPRIO = 1; O.TPRIO = 3
O.CODEPF = True
O.YPRIO = None; O.G2P = None; O.MID = 0; O.TR2 = False; O.F32 = 0; O.YT = None; O.YN = 14; O.YS = 0; O.YR = 1; O.YA = 0; O.YROT = False; O.XE = 0; O.X3G = 4; O.X3P = 1; O.YTG = -1; O.MAP2 = False; O.FK = False; O.YP = 1; O.KROT = 0; O.ECP = 0; O.EPOL = 0
import math
O.SPIN = 100000
O.SLP = 4; O.HSLP = 1
O.TSC = None; O.TSG = "a"; O.TSS = "a"
O.ARR = 1
O.DEPTH = 14
O.PUBM = 12
O.SLOW = False
O.DIAG = None
O.HFS = 8
O.HLD = "sc1"; O.HST = "sc1"; O.GHOLD = False; O.VERD = False; O.NA = 4; O.PFD = 2; O.NOPK = True; O.KG2 = True; O.KLO = "pk"; O.KHI = "sc"; O.LFIN = 7; O.TOUCH = False; O.PST = "sc1"; O.AFIRST = False; O.XFL = ""; O.W1FL = ""; O.W2FL = ""; O.TFL = "nt"; O.UFL = ""; O.PDLY = 0; O.LOOK = 4; O.PFL = 99; O.L3 = "i"; O.IPRIO = 3; O.TAILK = 0
O.X2 = ""; O.ST = (1, 14, 28, 42)
O.HAB = False; O.BS = 8; O.FA = 6; O.PW = False; O.TCH = ""; O.TR = 2; O.W2H = False; O.PT = ""; O.APS = 3; O.XF = 0; O.RSLP = 0; O.XQ = None; O.XR = 2; O.TL3 = False; O.ASTEP = 48
O.GW2 = False; O.GW2N = 3; O.W2AF = 0; O.UW = 3
O.TL2 = False; O.PSTEP = 52; O.SPG = 3; O.POLW = 3; O.ASLP = 8
O.GPRE = 1
O.DL = False; O.LPRIO = 3; O.LSLP = 1; O.LDLY = 0
O.W2S = None
O.W2P = ((), (), (), ()); O.PFL2 = ""; O.UOWN = False
O.LA = 1; O.RSP = (2, 4, 6); O.PPOS = 0
O.DSL = (6, 7, 8, 10, 11, 12, 14, 15)
O.PAW = 2
for a in sys.argv[2:]: exec("O." + a)
parts.TS = O.TS
ssm.KG2 = O.KG2; ssm.KLO = O.KLO; ssm.KHI = O.KHI
parts.gflag_setup = lambda A: None

LF = LDS_SSM + 31744
L_GL, L_GD, L_SB, L_SL, L_RDY, L_HOK, L_VERD = LF, LF + 16, LF + 32, LF + 48, LF + 64, LF + 72, LF + 76
L_AOK = LF + 80
L_DUMMY = LF + 128
ssm.LDS_SFLAG = L_SB
FS = 8
F_HERE, F_UT, F_G, F_A, F_H, F_P, F_EP = [WS_FLAG + (x << FS) for x in (0, 256, 384, 512, 1536, 2560, 3584)]
assert F_EP + 256 <= (13 << 20)
WS_P = 16 << 20
WS_BYTES = (24 if O.TL3 else 20) << 20
WS_A2 = 20 << 20
STOK = 32
S_W8, S_SPIN, S_HF = 27, 85, 32

parts_ts = ts
def tsg(A, i, mode="a"):
    if O.TSC: return
    if O.TSG in mode: parts_ts(A, i)
def tss(A, i, mode="a"):
    if O.TSS in mode: parts_ts(A, i)

class Vm:
    def __init__(self, A): self.A = A; self.n = 0; self.done = 0
    def op(self, s):
        self.A(s)
        if s.startswith("buffer_") or s.startswith("global_"): self.n += 1
        return self.n
    def cnt(self, idn):
        k = min(self.n - idn, 63); self.done = max(self.done, self.n - k); return k
    def wait(self, idn, extra=""):
        if idn <= self.done:
            if extra: self.A(f"s_waitcnt {extra}")
            return
        self.A(f"s_waitcnt vmcnt({self.cnt(idn)}) {extra}")

def poll(A, vaddr, vt, tok, name, slp=None, mask=False):
    l = A.newlabel(name); d = A.newlabel(name)
    A(f"s_mov_b32 s{S_SPIN}, {O.SPIN}")
    A.label(l)
    A(f"buffer_load_dword v{vt}, v{vaddr}, s[{S_WS}:{S_WS+3}], 0 offen sc1")
    A("s_waitcnt vmcnt(0)")
    if mask:
        A(f"v_and_b32 v{vt+1}, -16, v{vt}")
        A(f"v_cmp_ne_u32 vcc, v{tok}, v{vt+1}")
    else:
        A(f"v_cmp_ne_u32 vcc, v{tok}, v{vt}")
    A(f"s_cbranch_vccz {d}")
    A(f"s_sleep {O.SLP if slp is None else slp}")
    A(f"s_sub_u32 s{S_SPIN}, s{S_SPIN}, 1")
    A(f"s_cbranch_scc0 {l}")
    A.label(d)

def lwait(A, vaddr, off, vt, val, issued=False, sleep=1):
    lab = A.newlabel("LW"); done = A.newlabel("LWD")
    if not issued: A(f"ds_read_b32 v{vt}, v{vaddr} offset:{off}")
    A("s_waitcnt lgkmcnt(0)")
    A(f"v_cmp_gt_u32 vcc, {val}, v{vt}")
    A(f"s_cbranch_vccz {done}")
    A.label(lab)
    if sleep: A(f"s_sleep {sleep}")
    A(f"ds_read_b32 v{vt}, v{vaddr} offset:{off}")
    A("s_waitcnt lgkmcnt(0)")
    A(f"v_cmp_gt_u32 vcc, {val}, v{vt}")
    A(f"s_cbranch_vccnz {lab}")
    A.label(done)

def token_get(A, va, tok):
    l = A.newlabel("RW"); d = A.newlabel("RW")
    A(f"v_mov_b32 v{va}, {L_RDY}")
    A.label(l)
    A(f"ds_read_b64 {vr(tok,2)}, v{va}")
    A("s_waitcnt lgkmcnt(0)")
    A(f"v_cmp_ne_u32 vcc, 1, v{tok+1}")
    A(f"s_cbranch_vccz {d}")
    A("s_sleep 1")
    A(f"s_branch {l}")
    A.label(d)

def flag_store(A, soff, va, vt, fl="sc1"):
    A(f"v_mov_b32 v{va}, 0")
    A("s_mov_b64 exec, 1")
    A(f"buffer_store_dword v{vt}, v{va}, s[{S_WS}:{S_WS+3}], s{soff} offen {fl}")
    A("s_mov_b64 exec, -1")

def rot_c0(A, dst, t0):
    a, b, c, d = O.ROT
    A(f"s_mov_b32 s{dst}, 0")
    if a: A(f"s_and_b32 s{t0}, s{S_J}, 3"); A(f"s_mul_i32 s{dst}, s{t0}, {a}")
    if b: A(f"s_lshr_b32 s{t0}, s{S_J}, 2"); A(f"s_mul_i32 s{t0}, s{t0}, {b}"); A(f"s_add_u32 s{dst}, s{dst}, s{t0}")
    if c: A(f"s_lshr_b32 s{t0}, s{S_XCD}, 1"); A(f"s_mul_i32 s{t0}, s{t0}, {c}"); A(f"s_add_u32 s{dst}, s{dst}, s{t0}")
    if d: A(f"s_and_b32 s{t0}, s{S_XCD}, 1"); A(f"s_mul_i32 s{t0}, s{t0}, {d}"); A(f"s_add_u32 s{dst}, s{dst}, s{t0}")

GOWN, GRD, GT, HV, AR, RW, FV, VTOK, GX = 50, 51, 52, 54, 56, 58, 59, 60, 62
ACCA, ACCB, AF, PK, HR0 = 64, 96, 128, 168, 184
OV, RX, TV = 55, 63, 49
FVB = 48
S_OO, S_PO, S_P1, S_PF = 76, 77, 78, 79
L_T = LDS_SSM
STMP = 160
S_HL, S_HR, S_C0 = 80, 81, 84

def g_flags_setup(A):
    A(f"s_lshl_b32 s{S_T0}, s{S_WAVE}, 2")
    A(f"s_add_u32 s{S_T0}, s{S_T0}, {LF}")
    A(f"v_mov_b32 v{GOWN}, s{S_T0}")
    A(f"v_and_b32 v{GRD}, 3, v1")
    A(f"v_lshlrev_b32 v{GRD}, 2, v{GRD}")
    A(f"v_add_u32 v{GRD}, {LF}, v{GRD}")

def ctv(A, d):
    if not O.MAP2: A(f"s_lshr_b32 s{d}, s{S_J}, 2"); return
    A(f"s_and_b32 s{d}, s{S_XCD}, 1")
    A(f"s_lshl_b32 s{d}, s{d}, 5")
    A(f"s_add_u32 s{d}, s{d}, s{S_J}")
    A(f"s_lshr_b32 s{d}, s{d}, 3")
def krot(A, d, sh):
    A(f"s_lshr_b32 s{d}, s{S_J}, 2")
    if O.KROT == 1:
        A(f"s_cmp_eq_u32 s{d}, 7")
        A(f"s_cselect_b32 s{d}, 3, s{d}")
    elif O.KROT == 2:
        A(f"s_and_b32 s{d}, s{d}, 3")
        A(f"s_lshl_b32 s{d}, s{d}, 1")
    elif O.KROT == 3:
        A(f"s_and_b32 s{d}, s{d}, 1")
        A(f"s_mul_i32 s{d}, s{d}, 3")
    A(f"s_lshl_b32 s{d}, s{d}, {sh}")
def g2_setup(A):
    w = S_WAVE; T = 30
    if O.KROT: krot(A, 82, 12)
    A(f"s_and_b32 s{S_T0}, s{S_XCD}, 6")
    A(f"s_lshl_b32 s{S_T0}, s{S_T0}, 1")
    A(f"s_and_b32 s{S_T1}, s{S_J}, 3")
    A(f"s_add_u32 s{S_T0}, s{S_T0}, s{S_T1}")
    A(f"s_and_b32 s{S_T1}, s{S_XCD}, 1")
    A(f"s_lshl_b32 s{S_HF}, s{S_T0}, 1")
    A(f"s_add_u32 s{S_HF}, s{S_HF}, s{S_T1}")
    A(f"s_lshl_b32 s{S_HF}, s{S_HF}, {5+O.HFS}")
    A(f"s_add_u32 s{S_HF}, s{S_HF}, {F_H}")
    A(f"v_min_u32 v{T}, 27, v1")
    A(f"v_lshl_add_u32 v{FV}, v{T}, {O.HFS}, s{S_HF}")
    if O.FK:
        srd(A, S_W2, P_W2, D*F*2)
        if O.MAP2:
            A(f"s_mul_i32 s82, s{S_T1}, {-32 << O.HFS}")
            A(f"s_bfe_u32 s{S_T1}, s{S_J}, 0x10002")
            A(f"s_mul_i32 s83, s{S_T1}, {14 << O.HFS}")
            A(f"s_add_u32 s82, s82, s83")
        else: A(f"s_mul_i32 s82, s{S_T1}, {(14-32) << O.HFS}")
        A(f"s_add_u32 s82, s82, s{S_HF}")
        if O.PW:
            A(f"s_lshr_b32 s83, s{w}, 1")
            A(f"s_lshl_b32 s83, s83, {5+O.HFS}")
            A(f"s_add_u32 s82, s82, s83")
            A(f"s_and_b32 s83, s{w}, 1")
            A(f"s_mul_i32 s83, s83, {7 << O.HFS}")
            A(f"s_add_u32 s82, s82, s83")
            A(f"v_min_u32 v{T}, 6, v1")
        else:
            A(f"v_and_b32 v{T}, 31, v1")
            A(f"v_min_u32 v{T}, 13, v{T}")
            A(f"v_and_or_b32 v{T}, v1, 32, v{T}")
        A(f"v_lshl_add_u32 v{FV}, v{T}, {O.HFS}, s82")
        A(f"s_mul_i32 s82, s{w}, {28*16384}")
        ctv(A, 83)
        A(f"s_lshl_b32 s83, s83, 7")
        A(f"s_add_u32 s82, s82, s83")
        A(f"s_lshl_b32 s83, s{w}, 15")
    if O.HAB:
        A(f"s_and_b32 s{S_HR}, s{w}, 1")
        A(f"s_lshl_b32 s{S_HR}, s{S_HR}, 1")
        A(f"s_lshr_b32 s{S_HL}, s{w}, 1")
        A(f"s_add_u32 s{S_HR}, s{S_HR}, s{S_HL}")
        A(f"s_mul_i32 s{S_HR}, s{S_HR}, 7")
        A(f"v_min_u32 v{T}, 6, v1")
        A(f"v_add_u32 v{T}, s{S_HR}, v{T}")
        A(f"v_lshl_add_u32 v{FV if O.PW else FVB}, v{T}, {O.HFS}, s{S_HF}")
        A(f"v_add_u32 v{FVB}, {F_P-F_H}, v{FV if O.PW else FVB}")
    A(f"s_lshl_b32 s{S_T0}, s{S_T0}, 2")
    A(f"s_and_b32 s{S_HR}, s{w}, 1")
    A(f"s_add_u32 s{S_T0}, s{S_T0}, s{S_HR}")
    A(f"s_lshl_b32 s{S_OO}, s{S_T1}, 1")
    A(f"s_add_u32 s{S_OO}, s{S_OO}, s{S_T0}")
    A(f"s_xor_b32 s{S_HL}, s{S_OO}, {1 if O.FK else 2}")
    A(f"s_mul_i32 s{S_HL}, s{S_HL}, 112")
    A(f"s_mul_i32 s{S_HR}, s{S_OO}, 112")
    A(f"s_lshl_b32 s{S_T1}, s{S_T1}, 1")
    A(f"s_lshr_b32 s{S_T0}, s{w}, 1")
    A(f"s_add_u32 s{S_T1}, s{S_T1}, s{S_T0}")
    A(f"s_mul_i32 s{S_T1}, s{w if O.FK else S_T1}, 28")
    A(f"s_add_u32 s{S_HL}, s{S_HL}, s{S_T1}")
    A(f"s_add_u32 s{S_HR}, s{S_HR}, s{S_T1}")
    A(f"s_lshl_b32 s{S_HL}, s{S_HL}, 10")
    A(f"s_lshl_b32 s{S_HR}, s{S_HR}, 10")
    A(f"s_lshl_b32 s{S_OO}, s{S_OO}, 15")
    ctv(A, S_T1)
    A(f"s_lshl_b32 s{S_T1}, s{S_T1}, 1")
    A(f"s_add_u32 s{S_T1}, s{S_T1}, s{S_T0}")
    A(f"s_lshl_b32 s{S_T1}, s{S_T1}, 6")
    A(f"s_add_u32 s{S_OO}, s{S_OO}, s{S_T1}")
    A(f"v_lshlrev_b32 v{HV}, 4, v1")
    A(f"s_lshl_b32 s{S_T1}, s{w}, 15")
    A(f"v_add_u32 v{RW}, s{S_T1}, v{HV}")
    A(f"v_xor_b32 v{RX}, 0x10000, v{RW}")
    A(f"s_lshl_b32 s{S_T1}, s{w}, 12")
    A(f"s_add_u32 s{S_T1}, s{S_T1}, {L_T}")
    A(f"v_add_u32 v{TV}, s{S_T1}, v{HV}")
    A(f"v_lshrrev_b32 v{T+1}, 5, v1")
    A(f"v_and_b32 v{T}, 31, v1")
    A(f"v_lshlrev_b32 v{T}, 10, v{T}")
    A(f"v_lshl_add_u32 v{OV}, v{T+1}, 4, v{T}")
    A(f"v_bfe_u32 v{T+2}, v1, 2, 2")
    A(f"v_bfe_u32 v{T+3}, v1, 4, 1")
    A(f"v_bfe_u32 v{T+4}, v1, 1, 1")
    A(f"v_lshl_add_u32 v{T+3}, v{T+3}, 1, v{T+4}")
    A(f"v_bfe_u32 v{T+4}, v1, 3, 1")
    A(f"v_xor_b32 v{T+4}, s{S_T0}, v{T+4}")
    A(f"v_lshl_add_u32 v{T+3}, v{T+4}, 2, v{T+3}")
    A(f"v_lshl_add_u32 v{T+2}, v{T+1}, 2, v{T+2}")
    A(f"v_lshlrev_b32 v{T+2}, 7, v{T+2}")
    A(f"v_lshl_add_u32 v{T+2}, v{T+3}, 4, v{T+2}")
    A(f"v_and_b32 v{T+4}, 1, v1")
    A(f"v_lshl_add_u32 v{T+2}, v{T+4}, 3, v{T+2}")
    A(f"s_lshl_b32 s{S_T0}, s{S_T0}, 16")
    A(f"v_add_u32 v{AR}, s{83 if O.FK else S_T0}, v{T+2}")
    A(f"v_xor_b32 v{AR+1}, 64, v{AR}")

XR = [128 + 8 * r for r in range(7)] + [224 + 8 * r for r in range(4)] + [2 + 8 * r for r in range(3)]
def ytg(A):
    A("v_min_u32 v28, 55, v1")
    A(f"s_and_b32 s35, s{S_J}, 3")
    A("v_lshlrev_b32 v28, 10, v28")
    A(f"s_mul_i32 s35, s35, {56*1024}")
    A(f"s_add_u32 s35, s35, s82")
    A(f"s_add_u32 s35, s35, 229376")
    A(f"buffer_load_dword v29, v28, s[{S_W2}:{S_W2+3}], s35 offen")
def x3g(A):
    A(f"ds_read_b32 v{GT}, v{GRD} offset:16")
    A("v_lshrrev_b32 v28, 3, v1")
    A("v_and_b32 v29, 7, v1")
    A("v_bfe_u32 v27, v1, 4, 1")
    A("v_lshlrev_b32 v28, 10, v28")
    A("v_lshlrev_b32 v27, 2, v27")
    A("v_xor_b32 v27, v29, v27")
    A("v_lshl_add_u32 v26, v27, 4, v28")
    A(f"s_mul_i32 s35, s{S_WAVE}, {7*8192-28*16384}")
    A(f"s_add_u32 s35, s35, s82")
    A(f"s_mul_i32 s84, s{S_WAVE}, 7168")
    lwait(A, GRD, 16, GT, 8, issued=True, sleep=0)
    for sl in range(O.X3G, 4):
        for i in range(7):
            A(f"s_add_u32 m0, s84, {sl*32768+4096+i*1024}")
            A(f"s_add_u32 s{S_T0}, s35, {28*sl*16384+i*8192}")
            A(f"buffer_load_dwordx4 v26, s[{S_W2}:{S_W2+3}], s{S_T0} offen lds")
def fk_x(A, part=False):
    if O.YPRIO is not None and not (part and O.YA == 0): A(f"s_setprio {O.YPRIO}")
    for r in range(14):
        for x in w2_read(r): A(x)
    A("v_lshrrev_b32 v28, 3, v1")
    A("v_and_b32 v29, 7, v1")
    A("v_bfe_u32 v27, v1, 4, 1")
    A("v_lshlrev_b32 v28, 10, v28")
    A("v_lshlrev_b32 v27, 2, v27")
    A("v_xor_b32 v27, v29, v27")
    A("v_lshl_add_u32 v26, v27, 4, v28")
    A(f"v_add_u32 v27, {8192-1024}, v26")
    if O.YROT:
        A(f"s_and_b32 s68, s{S_J}, 3")
        A(f"s_mul_i32 s68, s68, 7")
        A(f"s_lshr_b32 s68, s68, 1")
        A(f"s_lshl_b32 s68, s68, 11")
        A(f"s_add_u32 s71, s83, 4096")
        A(f"s_add_u32 s70, s82, {14*16384}")
        A("s_waitcnt lgkmcnt(0)")
        for r in range(14):
            A(f"s_add_u32 m0, s71, s68")
            A(f"s_lshl_b32 s69, s68, 3")
            A(f"s_add_u32 s69, s69, s70")
            A(f"buffer_load_dwordx4 v26, s[{S_W2}:{S_W2+3}], s69 offen lds")
            A(f"buffer_load_dwordx4 v27, s[{S_W2}:{S_W2+3}], s69 offen offset:1024 lds")
            if r < 13:
                A("s_add_u32 s68, s68, 2048")
                A("s_cmp_eq_u32 s68, 28672")
                A("s_cselect_b32 s68, 0, s68")
        return
    for r in range(O.YN):
        if O.YP == 2 and r == O.YA:
            if part: return
            A.label("K_GY")
        if r in (0, 11): A(f"s_waitcnt lgkmcnt({12 if r == 0 else 0})")
        A(f"s_add_u32 m0, s83, {4096+r*2048}")
        A(f"s_add_u32 s{S_T0}, s82, {(14+r)*16384}")
        A(f"buffer_load_dwordx4 v26, s[{S_W2}:{S_W2+3}], s{S_T0} offen {O.W2FL} lds")
        A(f"buffer_load_dwordx4 v27, s[{S_W2}:{S_W2+3}], s{S_T0} offen offset:1024 {O.W2FL} lds")
    if O.YN < 12: A("s_waitcnt lgkmcnt(0)")
def w2_read(i):
    k = i % 28; dst = AF + 8 * (i % O.NA)
    if O.FK: k = i % 14; dst = XR[k]
    o = (k // 14) * 32768 + 4096 + (k % 14) * 2048
    return [f"ds_read_b64_tr_b16 {vr(dst+4*a+2*x,2)}, v{AR+a} offset:{o+x*1024}" for a in range(2) for x in range(2)]
HQ = {}
def h_load(i):
    base, k = (S_HL, i) if i < 28 else (S_HR, i - 28)
    if O.FK:
        r = i % 14; base = S_HR if (i // 14) % 2 else S_HL
        pre = [f"s_add_u32 s{S_T0}, s{base}, {(r + 14 * (i // 28)) * 1024}"] if r % 4 == 0 else []
        return pre + [f"buffer_load_dwordx4 {vr(HQ[i],4)}, v{HV}, s[{S_WS}:{S_WS+3}], s{S_T0} offen offset:{(r%4)*1024} {O.HLD}"]
    pre = [f"s_add_u32 s{S_T0}, s{base}, {k*1024}"] if k % 4 == 0 else []
    if O.KROT and k == 0:
        pre = [f"s_add_u32 s{S_T0}, s{base}, s82", f"s_add_u32 s83, s{base}, {28*1024}"]
    elif O.KROT and k % 4 == 0:
        pre = [f"s_add_u32 s{S_T0}, s{S_T0}, 4096", f"s_cmp_eq_u32 s{S_T0}, s83", f"s_cselect_b32 s{S_T0}, s{base}, s{S_T0}"]
    return pre + [f"buffer_load_dwordx4 {vr(HQ[i],4)}, v{HV}, s[{S_WS}:{S_WS+3}], s{S_T0} offen offset:{(k%4)*1024} {O.HLD}"]

def g_chunk_dma(cc):
    slot = cc % 4
    out = [f"s_add_u32 s{S_HO}, s{S_C0}, {cc}", f"s_and_b32 s{S_HO}, s{S_HO}, 7",
           f"s_lshl_b32 s{S_T1}, s{S_HO}, 7", f"s_add_u32 m0, s{S_M0X}, {slot*32768}", f"s_add_u32 s{S_T1}, s{S_T1}, s{S_XO}"]
    for i in range(4):
        out.append(f"buffer_load_dwordx4 v{G1_XD+i}, s[{S_X}:{S_X+3}], s{S_T1} offen offset:{i*1024} {O.XFL} lds")
    out += [f"s_mul_i32 s{S_T1}, s{S_HO}, {64*2*F}", f"s_add_u32 m0, s{S_M0X}, {slot*32768+16384}", f"s_add_u32 s{S_T1}, s{S_T1}, s{S_WO}"]
    for i in range(4):
        out.append(f"buffer_load_dwordx4 v{G1_WD+i}, s[{S_W1}:{S_W1+3}], s{S_T1} offen offset:{i*1024} {O.W1FL} lds")
    return out

VW2, S_W2O, S_W2M = 22, 78, 79
def gw2_setup(A):
    w = S_WAVE
    srd(A, S_W2, P_W2, D*F*2)
    A("v_lshrrev_b32 v30, 3, v1")
    A("v_and_b32 v31, 7, v1")
    A("v_bfe_u32 v32, v1, 4, 1")
    A("v_lshlrev_b32 v32, 2, v32")
    A("v_xor_b32 v31, v31, v32")
    A("v_lshlrev_b32 v30, 10, v30")
    A(f"v_lshl_add_u32 v{VW2}, v31, 4, v30")
    A(f"s_and_b32 s{S_T0}, s{S_XCD}, 1")
    A(f"s_lshl_b32 s{S_T0}, s{S_T0}, 3")
    A(f"s_and_b32 s{S_T1}, s{w}, 1")
    A(f"s_add_u32 s{S_T0}, s{S_T0}, s{S_T1}")
    A(f"s_mul_i32 s{S_W2O}, s{S_T0}, {7*16384}")
    A(f"s_mul_i32 s{S_W2M}, s{S_T1}, {7*2048}")
    A(f"s_lshr_b32 s{S_T0}, s{S_J}, 2")
    A(f"s_lshl_b32 s{S_T0}, s{S_T0}, 7")
    A(f"s_add_u32 s{S_W2O}, s{S_W2O}, s{S_T0}")
    A(f"s_lshr_b32 s{S_T0}, s{w}, 1")
    A(f"s_lshl_b32 s{S_T1}, s{S_T0}, 13")
    A(f"s_add_u32 s{S_W2O}, s{S_W2O}, s{S_T1}")
    A(f"s_lshl_b32 s{S_T1}, s{S_T0}, 10")
    A(f"s_add_u32 s{S_W2M}, s{S_W2M}, s{S_T1}")
def gw2_dma(sl):
    out = []
    for k in range(7):
        out += [f"s_add_u32 m0, s{S_W2M}, {sl*32768+4096+k*2048}", f"s_add_u32 s{S_T1}, s{S_W2O}, {(14*sl+k)*16384}",
                f"buffer_load_dwordx4 v{VW2}, s[{S_W2}:{S_W2+3}], s{S_T1} offen {O.W2FL} lds"]
    return out

def g1_main(A, vm, cid):
    vm.wait(cid[0])
    A(f"v_mov_b32 v{GT}, 1"); A(f"ds_write_b32 v{GOWN}, v{GT}")
    lwait(A, GRD, 0, GT + 1, 1, sleep=0)
    for r in g1_reads(0): A(r)
    for c in range(8):
        if O.TSC and c in O.TSC: parts_ts(A, 2 + O.TSC.index(c))
        off = 0 if c + 1 < O.LOOK else 48
        own = 4 <= c + 3 < O.LOOK
        units = [u for u in split_groups(g_chunk_dma(c + 3), 8)] if own else []
        slots = O.DSL
        for s in range(4):
            t = 4 * c + s
            mf = g1_mfmas(t)
            pre = []
            if s == 3:
                if c < 7: lwait(A, GRD, off, GT + 1, c + 2, issued=True, sleep=0)
                else: A("s_waitcnt lgkmcnt(0)")
                pre = [f"v_mov_b32 v{GT}, {c+1}", f"ds_write_b32 v{GOWN}, v{GT} offset:16"]
            elif s == O.ARR and c + 1 < O.LOOK:
                vm.wait(cid[c + 1], "lgkmcnt(0)")
                pre = [f"v_mov_b32 v{GT}, {c+2}", f"ds_write_b32 v{GOWN}, v{GT}"]
            else: A("s_waitcnt lgkmcnt(0)")
            if own and s == 1: lwait(A, GRD, 16, GX, c, issued=True, sleep=0)
            rd = g1_reads(t + 1) if t < 31 else []
            post = [f"ds_read_b32 v{GT+1}, v{GRD} offset:{off}"] if (s == 2 and c < 7) else []
            if own and s == 0: post.append(f"ds_read_b32 v{GX}, v{GRD} offset:16")
            def dm(g):
                if own:
                    for _ in range(slots.count(4 * s + g)):
                        for x in units.pop(0): vm.op(x)
                    if not units: cid[c + 3] = vm.n if c + 3 not in cid else cid[c + 3]
            A(mf[0])
            for x in rd[:3]: A(x)
            dm(0)
            A(mf[1])
            for x in rd[3:]: A(x)
            dm(1)
            A(mf[2])
            for x in pre + post: A(x)
            if c == 0 and O.LOOK >= 4 and O.L3 == "i":
                for x in split_groups(g_chunk_dma(3), 4)[s]: vm.op(x)
                cid[3] = vm.n
            dm(2)
            A(mf[3])
            dm(3)
        assert not units

_g1_reads = g1_reads
def g1_reads(t):
    out = _g1_reads(t)
    if O.HAB:
        c, s_ = divmod(t, 4); lo = ((c % 4) % 2) * 32768
        out[5] = out[5].replace(f"offset:{lo+4096}", f"offset:{lo+8192}")
    return out
def hab_setup(A):
    A(f"s_and_b32 s{S_T0}, s{S_XCD}, 1")
    A(f"s_xor_b32 s{S_T0}, s{S_T0}, 1")
    A(f"s_lshl_b32 s{S_T0}, s{S_T0}, 16")
    A(f"s_xor_b32 s{S_XO}, s{S_XO}, s{S_T0}")
def hab_setup2(A):
    A(f"s_lshr_b32 s{S_T0}, s{S_WAVE}, 1")
    A(f"s_lshl_b32 s{S_T0}, s{S_T0}, 12")
    for k in range(8): A(f"v_subrev_u32 v{G1_XR+k}, s{S_T0}, v{G1_XR+k}")

def g1_fr(lst, t, ns):
    import re
    o = G1_FR + (t % 2) * 16; n = G1_FR + (t % ns) * 16
    def f(m):
        a, b = int(m.group(1)), int(m.group(2))
        if o <= a < o + 16: return f"v[{a-o+n}:{b-o+n}]"
        return m.group(0)
    return [re.sub(r"v\[(\d+):(\d+)\]", f, x) for x in lst]

def lchk(A, vaddr, off, vt, val):
    lab = A.newlabel("LW"); done = A.newlabel("LWD")
    A(f"v_cmp_gt_u32 vcc, {val}, v{vt}")
    A(f"s_cbranch_vccz {done}")
    A.label(lab)
    A(f"ds_read_b32 v{vt}, v{vaddr} offset:{off}")
    A("s_waitcnt lgkmcnt(0)")
    A(f"v_cmp_gt_u32 vcc, {val}, v{vt}")
    A(f"s_cbranch_vccnz {lab}")
    A.label(done)

def g1_main2(A, vm, cid):
    LA = O.LA; NS = LA + 1
    lg = Lg(A); rid = {}
    vm.wait(cid[0])
    A(f"v_mov_b32 v{GT}, 1"); A(f"ds_write_b32 v{GOWN}, v{GT}")
    lwait(A, GRD, 0, GT + 1, 1, sleep=0)
    for t in range(LA):
        for r in g1_fr(g1_reads(t), t, NS): rid[t] = lg.op(r)
    sc = 4 - LA
    for c in range(8):
        if O.TSC and c in O.TSC: parts_ts(A, 2 + O.TSC.index(c))
        off = 0 if c + 1 < O.LOOK else 48
        own = 4 <= c + 3 < O.LOOK
        units = [u for u in split_groups(g_chunk_dma(c + 3), 8)] if own else []
        if O.GW2 and c >= 5 and c - 5 < O.GW2N:
            own = True; units = split_groups(gw2_dma(c - 5), 7) + [[]]
        for s in range(4):
            t = 4 * c + s
            mf = g1_fr(g1_mfmas(t), t, NS)
            need = rid[t]
            if s == sc and c < 7: need = max(need, pid)
            if own and s == 1: need = max(need, did)
            first = []; pre = []
            if s == O.ARR and c + 1 < O.LOOK:
                vm.wait(cid[c + 1])
                first += [f"ds_write_b32 v{GOWN}, v{GT}"]
                A(f"v_mov_b32 v{GT}, {c+2}")
            lg.wait(need)
            if s == sc and c < 7: lchk(A, GRD, off, GT + 1, c + 2)
            if own and s == 1: lchk(A, GRD, 16, GX, c)
            if s == 3: pre = [f"v_mov_b32 v{GT}, {c+1}", f"ds_write_b32 v{GOWN}, v{GT} offset:16"]
            rd = g1_fr(g1_reads(t + LA), t + LA, NS) if t + LA < 32 else []
            def dm(g):
                if own:
                    for _ in range(O.DSL.count(4 * s + g)):
                        for x in units.pop(0): vm.op(x)
                    if not units and c + 3 not in cid: cid[c + 3] = vm.n
            def em(x):
                if x.startswith("ds_"): return lg.op(x)
                A(x)
            sp = O.RSP
            A(mf[0])
            for x in first + pre: em(x)
            if s == sc - 1 and c < 7 and O.PPOS == 0: pid = lg.op(f"ds_read_b32 v{GT+1}, v{GRD} offset:{off}")
            if own and s == 0: did = lg.op(f"ds_read_b32 v{GX}, v{GRD} offset:16")
            for x in rd[:sp[0]]: rid[t + LA] = lg.op(x)
            dm(0)
            A(mf[1])
            for x in rd[sp[0]:sp[1]]: rid[t + LA] = lg.op(x)
            dm(1)
            A(mf[2])
            if s == sc - 1 and c < 7 and O.PPOS == 2: pid = lg.op(f"ds_read_b32 v{GT+1}, v{GRD} offset:{off}")
            for x in rd[sp[1]:sp[2]]: rid[t + LA] = lg.op(x)
            if c == 0 and O.LOOK >= 4 and O.L3 == "i":
                for x in split_groups(g_chunk_dma(3), 4)[s]: vm.op(x)
                cid[3] = vm.n
            dm(2)
            A(mf[3])
            for x in rd[sp[2]:]: rid[t + LA] = lg.op(x)
            dm(3)
        assert not units

def silu_np(A, regs, tmp):
    n = len(regs)
    for i, (s, d) in enumerate(regs):
        for e in range(2): A(f"v_mul_f32 v{tmp+2*i+e}, s{S_CL}, v{s+e}")
    for i in range(2 * n): A(f"v_exp_f32 v{tmp+i}, v{tmp+i}")
    for i in range(2 * n): A(f"v_add_f32 v{tmp+i}, 1.0, v{tmp+i}")
    for i in range(2 * n): A(f"v_rcp_f32 v{tmp+i}, v{tmp+i}")
    for i, (s, d) in enumerate(regs):
        for e in range(2): A(f"v_mul_f32 v{tmp+2*i+e}, v{tmp+2*i+e}, v{s+e}")
    for i, (s, d) in enumerate(regs):
        A(f"v_cvt_pk_bf16_f32 v{d}, v{tmp+2*i}, v{tmp+2*i+1}")

def split_groups(lst, n):
    units = []; cur = []
    for x in lst:
        cur.append(x)
        if x.startswith("buffer_"): units.append(cur); cur = []
    g = [[] for _ in range(n)]
    for i, u in enumerate(units): g[i * n // len(units)] += u
    return g

def g1_epi(A):
    w = S_WAVE
    if O.VERD:
        A(f"v_mov_b32 v{GX}, {L_RDY}")
        A(f"ds_read_b32 v{GT}, v{GX} offset:{L_VERD-L_RDY}")
    A(f"s_lshl_b32 s{S_HO}, s{S_RB}, 2")
    A(f"s_and_b32 s{S_T0}, s{w}, 2")
    A(f"s_add_u32 s{S_HO}, s{S_HO}, s{S_T0}")
    A(f"s_mul_i32 s{S_T1}, s{S_T0}, 7")
    A(f"s_mul_i32 s{S_HO}, s{S_HO}, 112")
    A(f"s_lshl_b32 s{S_T0}, s{S_CB}, 3")
    A(f"s_add_u32 s{S_HO}, s{S_HO}, s{S_T0}")
    A(f"s_and_b32 s{S_T0}, s{w}, 1")
    A(f"s_add_u32 s{S_T1}, s{S_T1}, s{S_T0}")
    A(f"s_lshl_b32 s{S_T0}, s{S_T0}, 2")
    A(f"s_add_u32 s{S_HO}, s{S_HO}, s{S_T0}")
    A(f"s_lshr_b32 s{S_T0}, s{S_J}, 2")
    A(f"s_lshl_b32 s{S_T0}, s{S_T0}, 1")
    A(f"s_add_u32 s{S_T1}, s{S_T1}, s{S_T0}")
    A(f"s_lshl_b32 s{S_T1}, s{S_T1}, {O.HFS}")
    A(f"s_add_u32 s{S_HF}, s{S_HF}, s{S_T1}")
    A(f"s_lshl_b32 s{S_HO}, s{S_HO}, 10")
    A(f"s_add_u32 s{S_XO}, s{S_HO}, {112*1024}")
    if O.HAB:
        A(f"s_lshr_b32 s{S_T0}, s{w}, 1")
        A(f"s_mul_i32 s{S_T0}, s{S_T0}, {112*1024}")
        A(f"s_sub_u32 s{S_XO}, s{S_HO}, s{S_T0}")
        A(f"s_and_b32 s{S_T0}, s{S_XCD}, 1")
        A(f"s_mul_i32 s{S_T0}, s{S_T0}, {224*1024}")
        A(f"s_add_u32 s{S_HO}, s{S_XO}, {224*1024}")
        A(f"s_sub_u32 s{S_HO}, s{S_HO}, s{S_T0}")
        A(f"s_add_u32 s{S_XO}, s{S_XO}, s{S_T0}")
        token_get(A, GX, VTOK)
    st = []
    p = 0
    if O.X3G < 4 and O.X3P == 0: x3g(A)
    if O.YTG == 0: ytg(A)
    for a, b in ([(0,0),(1,0),(0,1),(1,1)] if O.HAB else [(0,0),(0,1),(1,0),(1,1)]):
        if True:
            acc = G1_ACC + (2*a+b)*16
            for fh in range(2):
                dst = G1_FR + p * 4
                (silu_np if O.NOPK else silu_pairs)(A, [(acc + 8*fh + 2*i, dst + i) for i in range(4)], STMP)
                so = S_HO if b == 0 else S_XO
                st.append(f"buffer_store_dwordx4 {vr(dst,4)}, v{HV}, s[{S_WS}:{S_WS+3}], s{so} offen offset:{(2*a+fh)*1024}")
                if O.HAB and p == O.FA:
                    A(f"s_waitcnt vmcnt({p-4})")
                    flag_store(A, S_HF, GT, VTOK, O.HST)
                    tsg(A, 3, "h")
                    A(f"s_add_u32 s{S_HF}, s{S_HF}, {F_P-F_H}")
                A(st[-1] + " " + O.HST)
                p += 1
                if O.X3G < 4 and p == O.X3P: x3g(A)
                if p == O.YTG: ytg(A)
    tsg(A, 5, "e")
    if O.GW2:
        token_get(A, GX, VTOK)
        lwait(A, GRD, 16, GT, 8, sleep=0)
        n = 0
        if O.W2AF == 0:
            for sl in range(O.GW2N, 4):
                for x in gw2_dma(sl): A(x)
                n += 7
        A(f"s_waitcnt vmcnt({n})")
        flag_store(A, S_HF, GT, VTOK, O.HST)
        if O.W2AF == 1:
            for sl in range(O.GW2N, 4):
                for x in gw2_dma(sl): A(x)
        return
    if not O.VERD:
        if not O.HAB: token_get(A, GX, VTOK)
        if O.FK and O.YP == 2:
            A(f"ds_read_b32 v{GT}, v{GRD} offset:48")
            A("s_waitcnt lgkmcnt(0)")
            A(f"v_cmp_gt_u32 vcc, 12, v{GT}")
            A("s_cbranch_vccnz G_NX")
            fk_x(A, True)
            A(f"s_waitcnt vmcnt({2*O.YA})")
            flag_store(A, S_HF, GT, VTOK, O.HST)
            tsg(A, 3, "ae")
            if O.YA == 0: A(f"s_setprio {O.YPRIO}")
            A("s_branch K_GY")
            A.label("G_NX")
        if O.FK and O.YP == 0:
            lwait(A, GRD, 48, GT, 12)
            fk_x(A)
            A("s_waitcnt vmcnt(28)")
            flag_store(A, S_HF, GT, VTOK, O.HST)
            A("s_branch K_G3")
            return
        A("s_waitcnt vmcnt(0)")
        flag_store(A, S_HF, GT, VTOK, O.HST)
        return
    lwait(A, GX, L_VERD - L_RDY, GT, 1, issued=True)
    A(f"ds_read_b64 {vr(VTOK,2)}, v{GX}")
    A(f"v_cmp_eq_u32 vcc, {1 if not O.SLOW else 7}, v{GT}")
    A("s_waitcnt vmcnt(0) lgkmcnt(0)")
    A("s_cbranch_vccz G_SLOW")
    flag_store(A, S_HF, GT, VTOK, O.HST)
    A("s_branch G_FD")
    A.label("G_SLOW")
    for x in st: A(x + " sc1")
    A("s_waitcnt vmcnt(0)")
    flag_store(A, S_HF, GT, VTOK)
    A.label("G_FD")

def g2_main(A):
    vm = Vm(A); lg = Lg(A)
    hid = {}; wid = {}
    assert HR0 + 4 * O.DEPTH <= 256 and AF + 8 * O.NA <= PK
    sched = {}; free = [HR0 + 4 * k for k in range(O.DEPTH)] + [28 + 4 * k for k in range(O.XE)]; nx = 0
    for stp in range(0, 56):
        if stp >= 1: free.append(HQ[stp - 1])
        if O.XQ and stp == O.XQ[0]: free += [2 + 4 * k for k in range(8)]
        if O.XQ and stp == O.XQ[1]: free += [ACCA + 4 * k for k in range(8)]
        sched[stp] = []
        while nx < 56 and free and len(sched[stp]) < (O.DEPTH + O.XE if stp == 0 else O.XR):
            HQ[nx] = free.pop(0); sched[stp].append(nx); nx += 1; lasts = stp
    for i in sched[0]:
        for x in h_load(i): vm.op(x)
        hid[i] = vm.n
    for i in range(O.PFD): wid[i] = 0
    if O.FK:
        assert HR0 + 4 * O.DEPTH <= 224
        for i in range(56): wid[i] = 0
    send = []
    for t in range(2):
        for hf in range(2):
            pk = ACCA+16*t+8*hf if O.FK else PK+8*t+4*hf
            send += [f"v_cvt_pk_bf16_f32 v{pk+k}, v{ACCA+16*t+8*hf+2*k}, v{ACCA+16*t+8*hf+2*k+1}" for k in range(4)]
            send.append(f"ds_write_b128 v{RW}, {vr(pk,4)} offset:{2048*t+1024*hf}")
    MD = 1 if O.MID else 0
    yq = []; yid = {}
    for r in range(O.YN, 14):
        yq.append([f"s_add_u32 m0, s83, {4096+r*2048}", f"s_add_u32 s68, s82, {(14+r)*16384}", f"buffer_load_dwordx4 v26, s[{S_W2}:{S_W2+3}], s68 offen lds"])
        yq.append([f"buffer_load_dwordx4 v27, s[{S_W2}:{S_W2+3}], s68 offen offset:1024 lds  ; y{r}"])
    if O.F32: send = [f"ds_write_b128 v{RW}, {vr(ACCA+4*q,4)} offset:{1024*q}" for q in (4, 5, 6, 7, 0, 1, 2, 3)]
    XO = 8192 if O.F32 else 0
    send += [f"v_mov_b32 v{GT+1}, {9+MD}", f"ds_write_b32 v{GOWN}, v{GT+1} offset:16"]
    if O.TS and O.TSG == "a" and not O.TSC: send.append(f"s_memtime s[{S_TS+10}:{S_TS+11}]")
    st = O.ST
    PR = 224
    pld = [f"buffer_load_dwordx4 {vr(PR+4*q,4)}, v{HV}, s[{S_WS}:{S_WS+3}], s{S_PO} offen offset:{1024*q} sc1" for q in range(4)]
    AL, GL_, VA0, SA0, SG0 = 240, 36, 38, 64, 68
    ald = []
    if O.TL3:
        A(f"s_lshr_b32 s{SG0}, s{S_OO}, 15")
        A(f"s_lshl_b32 s{SG0}, s{SG0}, 8")
        A(f"s_bfe_u32 s{SA0}, s{S_OO}, 0x40006")
        A(f"s_lshl_b32 s{SA0}, s{SA0}, 18")
        A(f"s_add_u32 s{SA0}, s{SA0}, s{SG0}")
        A(f"s_add_u32 s{SA0}, s{SA0}, {WS_A2}")
        A(f"s_add_u32 s{SG0}, s{SG0}, {WS_G}")
        for q in range(1, 4): A(f"s_add_u32 s{SA0+q}, s{SA0}, {q*65536}")
        A(f"v_and_b32 v{VA0+2}, 31, v1")
        A(f"v_lshlrev_b32 v{VA0+2}, 3, v{VA0+2}")
        A(f"v_lshrrev_b32 v{VA0}, 5, v1")
        A(f"v_lshl_add_u32 v{VA0}, v{VA0}, 15, v{VA0+2}")
        A(f"v_add_u32 v{VA0+1}, 16384, v{VA0}")
        ald = [f"buffer_load_dwordx2 {vr(GL_,2)}, v{VA0+2}, s[{S_WS}:{S_WS+3}], s{SG0} offen sc1"]
        ald += [f"buffer_load_dwordx2 {vr(AL+4*q+2*e,2)}, v{VA0+e}, s[{S_WS}:{S_WS+3}], s{SA0+q} offen sc1" for q in range(4) for e in range(2)]
    if O.TL2 or O.TL3:
        assert HR0 + 4 * O.DEPTH <= PR and O.PSTEP > lasts
        A(f"s_xor_b32 s{S_PO}, s2, 1")
        A(f"s_lshl_b32 s{S_PO}, s{S_PO}, 2")
        A(f"s_add_u32 s{S_PO}, s{S_PO}, s{S_WAVE}")
        A(f"s_lshl_b32 s{S_PO}, s{S_PO}, 12")
        A(f"s_add_u32 s{S_PO}, s{S_PO}, {WS_P}")
    for i in range(56):
        if O.TS and O.TSG == "s" and i in st: parts_ts(A, 2 + st.index(i))
        k = min(lg.n - wid[i], 15)
        need_l = wid[i] > lg.done
        if need_l: lg.done = lg.n - k
        vm.wait(hid[i], f"lgkmcnt({k})" if need_l else "")
        if O.HAB and 28 in sched[i]:
            vm.wait(bid)
            A(f"v_cmp_ne_u32 vcc, v{VTOK}, v{GT}")
            A("s_cbranch_vccz G_BD")
            poll(A, FVB, GT, VTOK, "PB", slp=O.HSLP)
            A.label("G_BD")
        fr = AF + 8 * (i % O.NA); hr = HQ[i]
        acc0 = ACCA if i < 28 else ACCB
        if O.FK: fr = XR[i % 14]; acc0 = ACCB if (i // 14) % 2 else ACCA
        g = [[], []]
        rdn = (28 <= i + O.PFD < 42) if O.FK else (i + O.PFD < 56)
        SB = 43 if O.FK else 29
        if rdn:
            rd = w2_read(i + O.PFD); g[0] += rd[:2]; g[1] += rd[2:]
        own = {}
        for q, nl in enumerate(sched[i] if i else []):
            hl = h_load(nl); own[hl[-1]] = nl
            g[min(q, 1)] += hl
        if i >= SB:
            for gi in range(2):
                for _ in range(O.SPG):
                    if send and not (O.XQ and O.XF and send[0].startswith("ds_write_b32") and (i, gi) < (lasts, 1)): g[gi].append(send.pop(0))
        if O.FK and i >= O.YS:
            for gi in range(O.YR):
                if yq: g[1 if O.YR == 1 else gi] += yq.pop(0)
        if O.FK and rdn and (i + O.PFD - 28) >= O.YN: assert yid[i + O.PFD - 28] <= vm.done, (i, yid, vm.done)
        if O.MID and i == O.MID:
            g[0].append(f"v_mov_b32 v{GT+1}, 9"); g[1].append(f"ds_write_b32 v{GOWN}, v{GT+1} offset:16")
        if (O.TL2 or O.TL3) and i == O.PSTEP:
            g[1] += pld
        if O.TL3 and O.ASTEP <= i:
            q = i - O.ASTEP
            if O.APS == 3: g[0] += ald[3*q:3*q+2]; g[1] += ald[3*q+2:3*q+3]
            else: g[1] += ald[q:q+1]
        for m, t in enumerate((1, 0)):
            acc = acc0 + 16 * t
            c = "0" if (i in (0, 14) if O.FK else i % 28 == 0) else vr(acc, 16)
            A(f"v_mfma_f32_32x32x16_bf16 {vr(acc,16)}, {vr(fr+4*t,4)}, {vr(hr,4)}, {c}" if "m" not in O.X2 else "s_nop 0")
            if i == SB and m == 0: A("s_nop 1")
            for x in g[m]:
                if x.startswith("ds_"): lg.op(x)
                else:
                    vm.op(x)
                    if x in own: hid[own[x]] = vm.n
                    if "; y" in x: yid[int(x.split("; y")[1])] = vm.n
        if O.HAB and i == O.BS: bid = vm.op(f"buffer_load_dword v{GT}, v{FVB}, s[{S_WS}:{S_WS+3}], 0 offen sc1")
        if rdn: wid[i + O.PFD] = lg.n
    T, R, GM = 2, 18, 34
    if not O.F32: A(f"ds_read_b32 v{GT+1}, v{GRD} offset:32")
    A(f"v_mov_b32 v{GT}, {10+MD}")
    A(f"v_xor_b32 v{GX}, 8, v{GOWN}")
    A(f"s_lshl_b32 s{S_T0}, s{S_WAVE}, 8")
    A(f"s_add_u32 s{S_T0}, s{S_T0}, {L_T+16384}")
    A(f"v_lshl_add_u32 v{GM+1}, v1, 2, s{S_T0}")
    if O.F32: A("s_nop 6")
    else: lwait(A, GRD, 32, GT + 1, 50, issued=True)
    A("s_nop 1")
    for q in range(4):
        A(f"ds_write_b128 v{RW}, {vr(ACCB+16+4*q,4)} offset:{XO+q*1024}")
    A(f"ds_write_b32 v{GOWN}, v{GT} offset:16")
    if O.TL3:
        if O.PSTEP >= 56:
            for x in pld: A(x)
        tsg(A, 2, "f")
        lwait(A, GX, 16, GT + 1, 10, sleep=0)
        for q in range(4):
            A(f"ds_read_b128 {vr(R+4*q,4)}, v{RX} offset:{q*1024}")
        A(f"s_mov_b32 s{S_SPIN}, {O.SPIN}")
        def chk(name, tg, lds_, first):
            A(f"s_waitcnt vmcnt({first})")
            A.label(name + "L")
            acc = None
            tg = list(tg)
            if len(tg) % 2: A(f"v_xor_b32 v{GM}, v{VTOK}, v{tg.pop()}"); acc = GM
            for k in range(0, len(tg), 2):
                A(f"v_xor_b32 v{44+(k&2)}, v{VTOK}, v{tg[k]}")
                A(f"v_xor_b32 v{45+(k&2)}, v{VTOK}, v{tg[k+1]}")
                if acc: A(f"v_or3_b32 v{GM}, v{GM}, v{44+(k&2)}, v{45+(k&2)}")
                else: A(f"v_or_b32 v{GM}, v{44+(k&2)}, v{45+(k&2)}"); acc = GM
            A(f"v_cmp_ne_u32 vcc, 0, v{GM}")
            A(f"s_cbranch_vccz {name}D")
            for x in lds_: A(x)
            A(f"s_sub_u32 s{S_SPIN}, s{S_SPIN}, 1")
            A("s_waitcnt vmcnt(0)")
            A(f"s_cbranch_scc0 {name}L")
            A.label(name + "D")
        assert O.PSTEP >= O.ASTEP + 9 // O.APS
        chk("G_A", [AL + 1 + 2 * k for k in range(8)] + [GL_ + 1], ald, 4)
        for k in range(8):
            A(f"v_and_b32 v{AL+2*k+1}, 0xffff0000, v{AL+2*k}")
            A(f"v_lshlrev_b32 v{AL+2*k}, 16, v{AL+2*k}")
        for k in range(8):
            A(f"v_pk_mul_f32 {vr(T+2*k,2)}, {vr(AL+2*k,2)}, {vr(GL_,2)} op_sel:[0,0] op_sel_hi:[1,0]")
        A(f"v_sub_f32 v{GL_}, 1.0, v{GL_}")
        A(f"v_cvt_pk_bf16_f32 v{GL_}, v{GL_}, v{GL_}")
        A(f"v_lshlrev_b32 v{GL_}, 16, v{GL_}")
        A("s_waitcnt lgkmcnt(0)")
        for k in range(8):
            A(f"v_pk_add_f32 {vr(ACCB+2*k,2)}, {vr(ACCB+2*k,2)}, {vr(R+2*k,2)}")
        for k in range(8):
            A(f"v_pk_fma_f32 {vr(T+2*k,2)}, {vr(ACCB+2*k,2)}, {vr(GL_,2)}, {vr(T+2*k,2)} op_sel:[0,0,0] op_sel_hi:[1,0,1]")
        tsg(A, 3, "f")
        chk("G_P", [PR + 1 + 2 * k for k in range(8)], pld, 0)
        tsg(A, 4, "f")
        for k in range(8):
            A(f"v_and_b32 v{PR+2*k+1}, 0xffff0000, v{PR+2*k}")
            A(f"v_lshlrev_b32 v{PR+2*k}, 16, v{PR+2*k}")
        for k in range(8):
            A(f"v_pk_fma_f32 {vr(T+2*k,2)}, {vr(PR+2*k,2)}, {vr(GL_,2)}, {vr(T+2*k,2)} op_sel:[0,0,0] op_sel_hi:[1,0,1]")
        g2_out(A, T)
        tsg(A, 5, "f")
        return
    if O.TL2:
        if O.PSTEP >= 56:
            for x in pld: A(x)
        tsg(A, 2, "f")
        lwait(A, GX, 16, GT + 1, 10, sleep=0)
        for q in range(4):
            A(f"ds_read_b128 {vr(R+4*q,4)}, v{RX} offset:{q*1024}")
        A(f"ds_read_b32 v{GT+1}, v{GOWN} offset:32")
        for q in range(4):
            A(f"s_waitcnt lgkmcnt({4-q})")
            for k in (2*q, 2*q+1):
                A(f"v_pk_add_f32 {vr(ACCB+2*k,2)}, {vr(ACCB+2*k,2)}, {vr(R+2*k,2)}")
        lwait(A, GOWN, 32, GT + 1, 100, issued=True)
        tsg(A, 3, "f")
        A(f"ds_read_b32 v{GM}, v{GM+1}")
        for q in range(4):
            A(f"ds_read_b128 {vr(T+4*q,4)}, v{TV} offset:{q*1024}")
        A(f"s_mov_b32 s{S_SPIN}, {O.SPIN}")
        A.label("G_PL")
        A("s_waitcnt vmcnt(0)")
        for k in range(4):
            A(f"v_xor_b32 v{R+k}, v{VTOK}, v{PR+1+4*k}")
            A(f"v_xor_b32 v{R+4+k}, v{VTOK}, v{PR+3+4*k}")
        A(f"v_or3_b32 v{R}, v{R}, v{R+1}, v{R+2}")
        A(f"v_or3_b32 v{R+3}, v{R+3}, v{R+4}, v{R+5}")
        A(f"v_or3_b32 v{R}, v{R}, v{R+6}, v{R+7}")
        A(f"v_or_b32 v{R}, v{R}, v{R+3}")
        A(f"v_cmp_ne_u32 vcc, 0, v{R}")
        A("s_cbranch_vccz G_PD")
        for x in pld: A(x)
        A(f"s_sub_u32 s{S_SPIN}, s{S_SPIN}, 1")
        A("s_cbranch_scc0 G_PL")
        A("s_waitcnt vmcnt(0)")
        A.label("G_PD")
        tsg(A, 4, "f")
        for k in range(8):
            A(f"v_and_b32 v{PR+2*k+1}, 0xffff0000, v{PR+2*k}")
            A(f"v_lshlrev_b32 v{PR+2*k}, 16, v{PR+2*k}")
        for k in range(8):
            A(f"v_pk_add_f32 {vr(ACCB+2*k,2)}, {vr(ACCB+2*k,2)}, {vr(PR+2*k,2)}")
        A("s_waitcnt lgkmcnt(0)")
        for k in range(8):
            A(f"v_pk_fma_f32 {vr(T+2*k,2)}, {vr(ACCB+2*k,2)}, {vr(GM,2)}, {vr(T+2*k,2)} op_sel:[0,0,0] op_sel_hi:[1,0,1]")
        g2_out(A, T)
        tsg(A, 5, "f")
        return
    if O.TR2:
        lwait(A, GX, 16, GT + 1, 10 + MD, sleep=0)
        for q in range(4):
            A(f"ds_read_b128 {vr(R+4*q,4)}, v{RX} offset:{XO+q*1024}")
        A(f"ds_read_b32 v{GT+1}, v{GOWN} offset:32")
        for q in range(4):
            A(f"s_waitcnt lgkmcnt({4-q})")
            for k in (2*q, 2*q+1):
                A(f"v_pk_add_f32 {vr(ACCB+2*k,2)}, {vr(ACCB+2*k,2)}, {vr(R+2*k,2)}")
        lwait(A, GOWN, 32, GT + 1, 100, issued=True, sleep=0)
        A(f"ds_read_b32 v{GM}, v{GM+1}")
        for q in range(4):
            A(f"ds_read_b128 {vr(T+4*q,4)}, v{TV} offset:{q*1024}")
        for q in range(4):
            A(f"s_waitcnt lgkmcnt({3-q})")
            for k in (2*q, 2*q+1):
                A(f"v_pk_fma_f32 {vr(T+2*k,2)}, {vr(ACCB+2*k,2)}, {vr(GM,2)}, {vr(T+2*k,2)} op_sel:[0,0,0] op_sel_hi:[1,0,1]")
        g2_out(A, T)
        return
    lwait(A, GOWN, 32, GT + 1, 100)
    A(f"ds_read_b32 v{GM}, v{GM+1}")
    for q in range(4):
        A(f"ds_read_b128 {vr(T+4*q,4)}, v{TV} offset:{q*1024}")
    lwait(A, GX, 16, GT + 1, 10 + MD, sleep=0)
    for q in range(4):
        A(f"ds_read_b128 {vr(R+4*q,4)}, v{RX} offset:{q*1024}")
    for k in range(8):
        A(f"v_pk_fma_f32 {vr(T+2*k,2)}, {vr(ACCB+2*k,2)}, {vr(GM,2)}, {vr(T+2*k,2)} op_sel:[0,0,0] op_sel_hi:[1,0,1]")
    for q in range(4):
        A(f"s_waitcnt lgkmcnt({3-q})")
        for k in (2*q, 2*q+1):
            A(f"v_pk_fma_f32 {vr(T+2*k,2)}, {vr(R+2*k,2)}, {vr(GM,2)}, {vr(T+2*k,2)} op_sel:[0,0,0] op_sel_hi:[1,0,1]")
    g2_out(A, T)
def g2_out(A, T):
    for k in range(8):
        A(f"v_cvt_pk_bf16_f32 v{PK+k}, v{T+2*k}, v{T+2*k+1}")
    A("s_nop 1")
    for h in range(2):
        A(f"v_permlane32_swap_b32 v{PK+4*h}, v{PK+4*h+2}")
        A(f"v_permlane32_swap_b32 v{PK+4*h+1}, v{PK+4*h+3}")
    A("s_nop 1")
    for h in range(2):
        A(f"buffer_store_dwordx4 {vr(PK+4*h,4)}, v{OV}, s[{S_OUT}:{S_OUT+3}], s{S_OO} offen offset:{32*h}")

def idle_tr_issue(A):
    A("v_lshrrev_b32 v8, 3, v1")
    A("v_and_b32 v9, 7, v1")
    A("v_lshlrev_b32 v10, 10, v8")
    A("v_lshl_add_u32 v10, v9, 4, v10")
    A(f"s_sub_u32 s64, s{S_J}, 28")
    A(f"s_lshl_b32 s64, s64, 2")
    A(f"s_add_u32 s64, s64, s{S_WAVE}")
    if O.UOWN:
        A(f"s_and_b32 s33, s64, 1")
        A(f"s_lshl_b32 s{S_T1}, s{S_XCD}, 1")
        A(f"s_add_u32 s33, s33, s{S_T1}")
        A(f"s_lshr_b32 s34, s64, 1")
    else:
        A(f"s_mov_b32 s33, s64")
        A(f"s_mov_b32 s34, s{S_XCD}")
    A(f"s_lshl_b32 s65, s33, 17")
    A(f"s_lshl_b32 s{S_T1}, s34, 7")
    A(f"s_add_u32 s65, s65, s{S_T1}")
    A(f"s_lshl_b32 s66, s{S_WAVE}, 15")
def idle_tr_dma(A):
    for i in range(16):
        A(f"s_add_u32 m0, s66, {i*1024}")
        A(f"s_add_u32 s{S_T1}, s65, {i*8192}")
        A(f"buffer_load_dwordx4 v10, s[{S_X}:{S_X+3}], s{S_T1} offen {O.UFL} lds")
def w2_touch(A, qs, dst):
    for q in qs:
        if O.FK:
            A(f"s_add_u32 s{S_T1}, s{S_XCD}, {q}")
            A(f"s_and_b32 s{S_T1}, s{S_T1}, 3")
            A(f"s_mul_i32 s{S_T1}, s{S_T1}, {2*229376}")
            if q < 4: A(f"s_add_u32 s{S_T1}, s{S_T1}, 229376")
            for i in range(2):
                A(f"buffer_load_dword v{dst}, v{24+i}, s[{S_W2}:{S_W2+3}], s{S_T1} offen {O.PFL2}")
            continue
        A(f"s_lshr_b32 s{S_T1}, s{S_XCD}, 1")
        A(f"s_add_u32 s{S_T1}, s{S_T1}, {q}")
        A(f"s_and_b32 s{S_T1}, s{S_T1}, 3")
        A(f"s_and_b32 s{S_T0}, s{S_XCD}, 1")
        A(f"s_lshl_b32 s{S_T0}, s{S_T0}, 2")
        A(f"s_add_u32 s{S_T1}, s{S_T1}, s{S_T0}")
        A(f"s_mul_i32 s{S_T1}, s{S_T1}, 229376")
        for i in range(2):
            A(f"buffer_load_dword v{dst}, v{24+i}, s[{S_W2}:{S_W2+3}], s{S_T1} offen {O.PFL2}")
def w2_touch_setup(A):
    A("s_mul_i32 s67, s64, 112")
    A("v_add_u32 v24, s67, v1")
    A("v_min_u32 v25, 47, v1")
    A("v_add3_u32 v25, v25, s67, 64")
    A("v_lshlrev_b32 v24, 7, v24")
    A("v_lshlrev_b32 v25, 7, v25")
def idle_tr_finish(A, extra=0):
    R = 128
    A("v_lshrrev_b32 v11, 4, v1")
    A("v_bfe_u32 v12, v1, 2, 2")
    A("v_lshl_add_u32 v12, v11, 3, v12")
    A("v_lshlrev_b32 v12, 7, v12")
    A("v_and_b32 v13, 3, v1")
    A("v_lshl_add_u32 v12, v13, 3, v12")
    A(f"v_add_u32 v12, s66, v12")
    A("v_bfe_u32 v13, v1, 1, 3")
    A("v_lshlrev_b32 v13, 13, v13")
    A("v_and_b32 v14, 1, v1")
    A("v_lshl_add_u32 v13, v14, 6, v13")
    A("v_lshl_add_u32 v16, v11, 4, v13")
    A(f"s_lshl_b32 s67, s34, 18")
    A(f"s_lshl_b32 s{S_T1}, s33, 9")
    A(f"s_add_u32 s67, s67, s{S_T1}")
    A(f"s_add_u32 s67, s67, {WS_UT}")
    for p in range(4):
        Rk = R + 16 * p
        A(f"s_waitcnt vmcnt({12+extra})")
        for a in range(4):
            for x in range(2):
                A(f"ds_read_b64_tr_b16 {vr(Rk+4*a+2*x,2)}, v12 offset:{p*4096+x*512+a*32}")
        for a in range(4):
            A(f"s_waitcnt lgkmcnt({6-2*a})")
            A(f"s_add_u32 s{S_T1}, s67, {a*65536}")
            A(f"buffer_store_dwordx4 {vr(Rk+4*a,4)}, v16, s[{S_WS}:{S_WS+3}], s{S_T1} offen offset:{p*128} sc1")
def ut2(A, part=None):
    R = 128
    if part == 1:
        for i in range(8):
            A(f"s_waitcnt vmcnt({7-i})")
            A(f"ds_write_b128 v16, {vr(R+4*i,4)} offset:{i*512}")
        return
    A(f"s_lshl_b32 s{Q_T0}, s{Q_PAIR}, 13")
    A(f"s_add_u32 s{Q_T0}, s{Q_T0}, {WS_UT}")
    A(f"s_add_u32 s{Q_T1}, s{Q_T0}, 4096")
    A("v_lshlrev_b32 v16, 4, v1")
    for i in range(8):
        A(f"buffer_load_dwordx4 {vr(R+4*i,4)}, v16, s[{S_WS}:{S_WS+3}], s{Q_T0+i//4} offen offset:{(i%4)*1024} sc1")
    A("v_bfe_u32 v16, v1, 2, 1")
    A(f"v_mul_u32_u24 v16, {U_STRIDE}, v16")
    A("v_lshrrev_b32 v17, 3, v1")
    A("v_lshl_add_u32 v16, v17, 6, v16")
    A("v_and_b32 v17, 3, v1")
    A("v_lshl_add_u32 v16, v17, 4, v16")
    A(f"v_add_u32 v16, {LDS_U+64}, v16")
    if part == 0: return
    for i in range(8):
        A(f"s_waitcnt vmcnt({7-i})")
        A(f"ds_write_b128 v16, {vr(R+4*i,4)} offset:{i*512}")
def idle_gate_issue(A):
    R = 64
    A(f"global_load_dwordx4 {vr(44,4)}, v{HV}, s[{P_GW}:{P_GW+1}]")
    A(f"s_lshl_b32 s68, s{S_XCD}, 4")
    A(f"s_add_u32 s68, s68, s64")
    A(f"s_lshl_b32 s65, s68, 14")
    for i in range(16):
        if i % 4 == 0: A(f"s_add_u32 s{S_T1}, s65, {i*1024}")
        A(f"buffer_load_dwordx4 {vr(R+4*i,4)}, v{HV}, s[{S_X}:{S_X+3}], s{S_T1} offen offset:{(i%4)*1024}")
def idle_gate_finish(A, extra=0):
    R = 64; S = 2
    A(f"s_waitcnt vmcnt({extra})")
    for k in range(4):
        for i in range(16):
            c = "0" if k == 0 else f"v{S+i}"
            A(f"v_dot2_f32_bf16 v{S+i}, v{R+4*i+k}, v{44+k}, {c}")
    for sh in ("row_shr:1", "row_shr:2", "row_shr:4", "row_shr:8"):
        for i in range(16):
            A(f"v_add_f32_dpp v{S+i}, v{S+i}, v{S+i} {sh} row_mask:0xf bank_mask:0xf bound_ctrl:1")
    for sh in ("row_bcast:15 row_mask:0xa", "row_bcast:31 row_mask:0xc"):
        for i in range(16):
            A(f"v_add_f32_dpp v{S+i}, v{S+i}, v{S+i} {sh} bank_mask:0xf")
    A("v_mov_b32 v20, 0")
    for h in range(2):
        for i in range(8): A(f"v_readlane_b32 s{38+i}, v{S+8*h+i}, 63")
        A("s_nop 3")
        for i in range(8): A(f"v_writelane_b32 v20, s{38+i}, {8*h+i}")
    A("v_cvt_pk_bf16_f32 v20, v20, v20")
    A("v_lshlrev_b32 v20, 16, v20")
    A("v_mul_f32 v20, 0xbfb8aa3b, v20")
    A("v_exp_f32 v20, v20")
    A("s_nop 0")
    A("v_add_f32 v20, 1.0, v20")
    A("v_rcp_f32 v20, v20")
    A("s_nop 0")
    A("v_cvt_pk_bf16_f32 v22, v20, v20")
    A("v_lshlrev_b32 v22, 16, v22")
    if O.TL3: A(f"v_mov_b32 v23, v{VTOK}")
    else:
        A("v_sub_f32 v23, 1.0, v22")
        A("v_cvt_pk_bf16_f32 v23, v23, v23")
        A("v_lshlrev_b32 v23, 16, v23")
    A("v_lshlrev_b32 v21, 3, v1")
    A(f"s_lshl_b32 s65, s68, 7")
    A(f"s_add_u32 s65, s65, {WS_G}")
    A("s_mov_b64 exec, 0xffff")
    A(f"buffer_store_dwordx2 v[22:23], v21, s[{S_WS}:{S_WS+3}], s65 offen sc1")
    A("s_mov_b64 exec, -1")

LX, LW, L2D, LSA, LGD, LV = 16, 56, 60, 62, 63, 20
K_XO, K_WO, K_M0, K_C0, K_W2, K_M2, K_T0, K_T1 = 76, 77, 78, 79, 80, 81, 82, 83
def loader_setup(A):
    lw = Q_NH
    A(f"s_and_b32 s{K_XO}, s{S_J}, 3")
    A(f"s_and_b32 s{K_T0}, s{S_XCD}, 6")
    A(f"s_lshl_b32 s{K_T0}, s{K_T0}, 1")
    A(f"s_add_u32 s{K_XO}, s{K_XO}, s{K_T0}")
    A(f"s_lshl_b32 s{K_XO}, s{K_XO}, 1")
    A(f"s_add_u32 s{K_XO}, s{K_XO}, s{lw}")
    A(f"s_and_b32 s{K_T0}, s{S_XCD}, 1")
    if O.HAB:
        A(f"s_xor_b32 s{K_XO}, s{K_XO}, s{K_T0}")
        A(f"s_xor_b32 s{K_XO}, s{K_XO}, 1")
    A(f"s_lshl_b32 s{K_XO}, s{K_XO}, 16")
    A(f"s_mul_i32 s{K_WO}, s{K_T0}, 7")
    A(f"s_lshr_b32 s{K_T1}, s{S_J}, 2")
    A(f"s_add_u32 s{K_WO}, s{K_WO}, s{K_T1}")
    A(f"s_lshl_b32 s{K_WO}, s{K_WO}, 8")
    ctv(A, K_W2)
    A(f"s_lshl_b32 s{K_W2}, s{K_W2}, 7")
    A(f"s_mul_i32 s{K_T1}, s{lw}, {32*2*F}")
    A(f"s_add_u32 s{K_WO}, s{K_WO}, s{K_T1}")
    A(f"s_lshl_b32 s{K_M0}, s{lw}, 13")
    A(f"s_mul_i32 s{K_T0}, s{K_T0}, {0 if O.FK else 56*16384}")
    A(f"s_add_u32 s{K_W2}, s{K_W2}, s{K_T0}")
    if O.KROT:
        A(f"s_add_u32 s84, s{K_W2}, {28*16384}")
        krot(A, K_T0, 16)
        A(f"s_add_u32 s{K_W2}, s{K_W2}, s{K_T0}")
    A(f"s_mul_i32 s{K_T0}, s{lw}, {7*16384}")
    A(f"s_add_u32 s{K_W2}, s{K_W2}, s{K_T0}")
    A(f"s_mul_i32 s{K_M2}, s{lw}, {7*2048}")
    rot_c0(A, K_C0, K_T0)
    A("v_lshrrev_b32 v34, 3, v1")
    A("v_and_b32 v35, 7, v1")
    A("v_lshrrev_b32 v36, 4, v1")
    A("v_xor_b32 v37, v35, v36")
    A("v_xor_b32 v38, 4, v37")
    A("v_lshlrev_b32 v34, 10, v34")
    A(f"v_lshl_add_u32 v{LX}, v37, 4, v34")
    A(f"v_lshl_add_u32 v{LX+1}, v38, 4, v34")
    A(f"v_add_u32 v{LX+1}, {8192-1024}, v{LX+1}")
    A(f"v_add_u32 v{LX+2}, {2*(8192-1024)}, v{LX}")
    A(f"v_add_u32 v{LX+3}, {2*(8192-1024)}, v{LX+1}")
    A("v_and_b32 v37, 1, v36")
    A("v_lshlrev_b32 v37, 2, v37")
    A("v_xor_b32 v37, v35, v37")
    A(f"v_lshl_add_u32 v{L2D}, v37, 4, v34")
    A(f"v_add_u32 v{L2D+1}, {8192-1024}, v{L2D}")
    A("v_and_b32 v35, 15, v1")
    A("v_lshlrev_b32 v37, 2, v36")
    A("v_xor_b32 v35, v35, v37")
    A(f"v_mul_u32_u24 v37, {2*F}, v36")
    A(f"v_lshl_add_u32 v{LW}, v35, 4, v37")
    for i in range(1, 4):
        A(f"v_add_u32 v{LW+i}, {i*(4*2*F-1024)}, v{LW}")
    A(f"s_lshl_b32 s{K_T0}, s{lw}, 3")
    A(f"s_add_u32 s{K_T0}, s{K_T0}, {L_SL}")
    A(f"s_cmp_eq_u32 s{Q_C}, 1")
    A(f"s_cselect_b32 s{K_T0}, s{K_T0}, {L_DUMMY}")
    A(f"v_mov_b32 v{LSA}, s{K_T0}")
    A(f"v_subrev_u32 v{LGD}, {L_SB-L_GD}, v{S_FRD}")
def l_chunk(A, cc):
    slot = cc % 4
    if "d" in O.X2: return
    A(f"s_add_u32 s{K_T0}, s{K_C0}, {cc}"); A(f"s_and_b32 s{K_T0}, s{K_T0}, 7")
    A(f"s_lshl_b32 s{K_T1}, s{K_T0}, 7"); A(f"s_add_u32 s{K_T1}, s{K_T1}, s{K_XO}")
    A(f"s_mul_i32 s{K_T0}, s{K_T0}, {64*2*F}"); A(f"s_add_u32 s{K_T0}, s{K_T0}, s{K_WO}")
    for q in range(2):
        A(f"s_add_u32 m0, s{K_M0}, {slot*32768+q*4096}")
        if q: A(f"s_add_u32 s{K_T1}, s{K_T1}, 32768")
        else: A("s_nop 0")
        for i in range(4):
            if "x" in O.X2: continue
            A(f"buffer_load_dwordx4 v{LX+i}, s[{S_X}:{S_X+3}], s{K_T1} offen offset:{i*1024} {O.XFL} lds")
        A(f"s_add_u32 m0, s{K_M0}, {slot*32768+16384+q*4096}")
        if q: A(f"s_add_u32 s{K_T0}, s{K_T0}, {16*2*F}")
        else: A("s_nop 0")
        for i in range(4):
            if "w" in O.X2: continue
            A(f"buffer_load_dwordx4 v{LW+i}, s[{S_W1}:{S_W1+3}], s{K_T0} offen offset:{i*1024} {O.W1FL} lds")
def l_pub(A, n, val):
    A(f"v_mov_b32 v{LV}, {val}"); A(f"v_mov_b32 v{LV+1}, {val}")
    A(f"s_waitcnt vmcnt({n})")
    A(f"ds_write_b64 v{LSA}, {vr(LV,2)}")
def loader(A, fin):
    A(f"s_cmp_ge_u32 s{S_J}, 28")
    A("s_cbranch_scc1 S_LW1")
    if O.LOOK == 3: l_chunk(A, 3)
    if O.LOOK == 8:
        A.label("S_LW1")
        fin()
    for c in range(max(4, O.LOOK), 8):
        lwait(A, LGD, 0, 31, c - 3)
        l_chunk(A, c)
        if c > O.LOOK: l_pub(A, 0 if "d" in O.X2 else 8 if ("x" in O.X2 or "w" in O.X2) else 16, c)
        if c == 7 and O.TOUCH:
            A(f"s_lshr_b32 s{K_T0}, s{K_XO}, 16")
            A(f"s_mul_i32 s{K_T0}, s{K_T0}, 224")
            A(f"s_and_b32 s{K_T1}, s{S_XCD}, 1")
            A(f"s_mul_i32 s{K_T1}, s{K_T1}, 56")
            A(f"s_add_u32 s{K_T0}, s{K_T0}, s{K_T1}")
            A(f"s_lshr_b32 s{K_T1}, s{S_J}, 2")
            A(f"s_lshl_b32 s{K_T1}, s{K_T1}, 3")
            A(f"s_add_u32 s{K_T0}, s{K_T0}, s{K_T1}")
            A(f"s_lshl_b32 s{K_T0}, s{K_T0}, 10")
            A(f"v_lshlrev_b32 v{LX}, 7, v1")
            A(f"s_add_u32 s{K_T1}, s{K_T0}, {112*1024}")
            A(f"buffer_load_dword v{LX+1}, v{LX}, s[{S_WS}:{S_WS+3}], s{K_T0} offen {O.TFL}")
            A(f"buffer_load_dword v{LX+2}, v{LX}, s[{S_WS}:{S_WS+3}], s{K_T1} offen {O.TFL}")
        if c == O.LFIN:
            A.label("S_LW1")
            fin()
            A(f"s_cmp_ge_u32 s{S_J}, 28")
            A("s_cbranch_scc1 S_LW2")
    A.label("S_LW2")
    if "v" in O.X2: l_pub(A, 0, 8)
    for s in range(O.X3G):
        lwait(A, LGD, 0, 31, 5 + s if "v" not in O.X2 else 8)
        if s == 2 and O.KROT: A(f"s_add_u32 s84, s84, {28*16384}")
        for k in range(7):
            A(f"s_add_u32 m0, s{K_M2}, {s*32768+4096+k*2048}")
            A(f"s_add_u32 s{K_T0}, s{K_W2}, {((28 if O.FK else 14)*s+k)*16384}")
            if O.KROT:
                A(f"s_sub_u32 s{K_T1}, s{K_T0}, {28*16384}")
                A(f"s_cmp_ge_u32 s{K_T0}, s84")
                A(f"s_cselect_b32 s{K_T0}, s{K_T1}, s{K_T0}")
            A(f"buffer_load_dwordx4 v{L2D}, s[{S_W2}:{S_W2+3}], s{K_T0} offen {O.W2FL} lds")
            A(f"buffer_load_dwordx4 v{L2D+1}, s[{S_W2}:{S_W2+3}], s{K_T0} offen offset:1024 {O.W2FL} lds")
        if s == 0: l_pub(A, 16 if O.TOUCH else 14, 8)

TAB2 = LDS_SSM + 17408
S_PASS, S_UOK = 33, 34
U_SO, U_M0, UF, UD = 28, 29, 12, 13
def u_dma(A):
    for i in range(4):
        A(f"s_add_u32 m0, s{U_M0}, {i*1024}")
        A(f"s_add_u32 s{Q_T1}, s{U_SO}, {i*2048}")
        A(f"buffer_load_dwordx4 v{UD}, s[{S_WS}:{S_WS+3}], s{Q_T1} offen sc1 lds")
def u_setup(A):
    A(f"s_lshl_b32 s{Q_T0}, s{S_XCD}, {4+FS}")
    A(f"s_add_u32 s{Q_T0}, s{Q_T0}, {F_UT}")
    A("v_and_b32 v8, 15, v1")
    A(f"v_lshl_add_u32 v{UF}, v8, {FS}, s{Q_T0}")
    A(f"v_lshrrev_b32 v{UD}, 2, v1")
    A(f"v_lshlrev_b32 v{UD}, 3, v{UD}")
    A("v_and_b32 v8, 3, v1")
    A(f"v_add_lshl_u32 v{UD}, v{UD}, v8, 4")
    A(f"s_lshl_b32 s{U_SO}, s{Q_PAIR}, 7")
    A(f"s_add_u32 s{U_SO}, s{U_SO}, s{Q_NH}")
    A(f"s_lshl_b32 s{U_SO}, s{U_SO}, 6")
    A(f"s_add_u32 s{U_SO}, s{U_SO}, {WS_UT}")
    A(f"s_mul_i32 s{U_M0}, s{Q_NH}, {U_STRIDE}")
    A(f"s_add_u32 s{U_M0}, s{U_M0}, {LDS_U+64}")
    A(f"s_mov_b32 s{S_UOK}, 0")
def kgen2(A, later, hookA):
    w = S_WAVE; KC = Q_NH
    VW, VB, VA = 26, 27, 28
    E1, E8, E256, C0, E2, E4 = 128, 130, 132, 134, 136, 138
    LO = 140; E32 = 156; G = 160; CV = 200
    A(f"s_mul_i32 s{Q_TAB}, s{w}, {TAB_STRIDE}")
    A(f"s_add_u32 s{Q_TAB}, s{Q_TAB}, {TAB2}")
    A(f"v_lshl_add_u32 v{VW}, v1, 2, s{Q_TAB}")
    A("v_and_b32 v8, 15, v1")
    A("v_lshrrev_b32 v9, 5, v1")
    A(f"v_lshl_add_u32 v9, v9, 4, s{Q_TAB}")
    A("v_mov_b32 v10, 272")
    A(f"v_mad_u32_u24 v{VB}, v8, v10, v9")
    A("v_and_b32 v11, 7, v1")
    A("v_lshlrev_b32 v11, 2, v11")
    A("v_mov_b32 v12, 0xcbaaa988")
    A("v_lshrrev_b32 v11, v11, v12")
    A("v_and_b32 v11, 15, v11")
    A("v_and_b32 v12, 24, v1")
    A("v_cmp_eq_u32 vcc, 8, v12")
    A(f"s_mov_b32 s{Q_EX}, 0x0000ffff")
    A(f"s_mov_b32 s{Q_EX+1}, 0x0000ffff")
    A(f"s_mov_b32 s{Q_EX+2}, 0xffff0000")
    A(f"s_mov_b32 s{Q_EX+3}, 0xffff0000")
    A("v_cndmask_b32 v11, v8, v11, vcc")
    A(f"v_mad_u32_u24 v{VA}, v11, v10, v9")
    srd(A, S_WS, P_WS, WS_BYTES)
    A(f"v_mov_b32 v{LSA}, {L_DUMMY}")
    for k in range(16): A(f"v_mov_b32 v{KD+k}, 0")
    A(f"s_mov_b32 s{S_PASS}, 16")
    A("s_waitcnt lgkmcnt(0)")
    A(f"s_lshl_b32 s{Q_T0}, s{KC}, 4")
    A(f"s_lshr_b32 s{Q_LDT}, s{Q_LDT}, s{Q_T0}")
    A(f"s_lshl_b32 s{Q_LDT}, s{Q_LDT}, 16")
    A(f"s_lshr_b32 s{Q_DSK}, s{Q_DSK}, s{Q_T0}")
    A(f"s_lshl_b32 s{Q_DSK}, s{Q_DSK}, 16")
    A(f"v_mov_b32 v6, {LOG2E}")
    A(f"v_mul_f32 v7, s{Q_LDT}, v6")
    A("v_exp_f32 v7, v7")
    hookA()
    A("v_cvt_pk_bf16_f32 v7, v7, v7")
    A("v_lshlrev_b32 v7, 16, v7")
    A(f"s_waitcnt vmcnt({later})")
    tss(A, 2, "ak")
    A.label("KG_LOOP")
    for i in range(4): A(f"v_lshlrev_b32 v{2+i}, s{S_PASS}, v{14+i}")
    for i in range(4): A(f"v_and_b32 v{2+i}, 0xffff0000, v{2+i}")
    A("v_mul_f32 v2, v6, v2")
    A("v_exp_f32 v2, v2")
    A("v_add_f32 v8, v7, v7")
    A("v_cvt_pk_bf16_f32 v2, v2, v2")
    A("v_lshlrev_b32 v2, 16, v2")
    A("v_mul_f32 v2, v2, v7")
    A("v_mul_f32 v3, v3, v7")
    A("v_mul_f32 v2, 0xbfb8aa3b, v2")
    A(f"v_mul_f32 v3, {INV2PI}, v3")
    A(f"v_mul_f32 v{C0}, v4, v8")
    A(f"v_mul_f32 v{C0+1}, v5, v8")
    A("v_mul_f32 v10, 0x41000000, v2")
    A("v_mul_f32 v11, 0x41000000, v3")
    A("v_mul_f32 v12, 0x43800000, v2")
    A("v_mul_f32 v13, 0x43800000, v3")
    for r in (11, 3, 13): A(f"v_fract_f32 v{r}, v{r}")
    for (m, f, e) in ((10, 11, E8), (2, 3, E1), (12, 13, E256)):
        A(f"v_exp_f32 v{m}, v{m}")
        A(f"v_cos_f32 v{e}, v{f}")
        A(f"v_sin_f32 v{e+1}, v{f}")
    for (m, e) in ((10, E8), (2, E1), (12, E256)):
        A(f"v_pk_mul_f32 {vr(e,2)}, {vr(e,2)}, {vr(m,2)} op_sel:[0,0] op_sel_hi:[1,0]")
    hook = None
    kgen_tables2(A, hook, VW, VB, VA, E1, E8, E256, C0, E2, E4, LO, E32, G, CV)
    for ks in range(8):
        A(f"s_waitcnt lgkmcnt({7-ks})")
        A(f"v_mfma_f32_32x32x16_bf16 {vr(KD,16)}, {vr(KA+4*ks,4)}, {vr(KB+4*ks,4)}, {vr(KD,16)}")
    A(f"s_cmp_eq_u32 s{S_PASS}, 0")
    A("s_cbranch_scc1 KG_DONE")
    tss(A, 3, "k")
    A(f"s_mov_b32 s{S_PASS}, 0")
    A("s_branch KG_LOOP")
    A.label("KG_DONE")
    tss(A, 4, "k"); tss(A, 3, "a")
    token_get(A, 8, STOK)
    X = 64
    A(f"s_mul_i32 s{Q_T0}, s{KC}, {K_STRIDE}")
    A(f"s_add_u32 s{Q_T0}, s{Q_T0}, {LDS_K}")
    A("v_and_b32 v8, 31, v1")
    A("v_lshrrev_b32 v9, 5, v1")
    A(f"v_lshl_add_u32 v8, v8, 4, s{Q_T0}")
    A(f"v_lshl_add_u32 v10, v1, 3, s{Q_T0}")
    A("v_mov_b32 v12, 0"); A("v_mov_b32 v13, 0")
    A("ds_write_b64 v10, v[12:13]")
    A("v_and_b32 v11, 15, v1")
    A(f"s_mul_i32 s{Q_T0}, s{KC}, {U_STRIDE}")
    A(f"s_add_u32 s{Q_T0}, s{Q_T0}, {LDS_U}")
    A(f"v_lshl_add_u32 v11, v11, 2, s{Q_T0}")
    A("ds_write_b32 v11, v12")
    A("v_cmp_eq_u32 vcc, 0, v1")
    A(f"v_mov_b32 v11, s{Q_DSK}")
    A("v_lshl_add_u32 v14, v9, 3, v8")
    A("v_lshl_add_u32 v15, v9, 9, v8")
    A("v_cndmask_b32 v11, 0, v11, vcc")
    A("v_lshl_add_u32 v16, v9, 10, v8")
    A("s_nop 4")
    A(f"v_add_f32 v{KD}, v{KD}, v11")
    A("v_and_b32 v11, 1, v1")
    A("v_cmp_eq_u32 vcc, 1, v11")
    for k in range(4): A(f"v_cvt_pk_bf16_f32 v{X+k}, v{KD+2*k}, v{KD+2*k+1}")
    a, b, c = KD + 8, KD + 9, KD + 10
    for k, (p, q) in enumerate(((a, a), (a, b), (b, b), (c, c))): A(f"v_cvt_pk_bf16_f32 v{X+4+k}, v{p}, v{q}")
    A(f"ds_write_b64 v14, {vr(X,2)} offset:448")
    A(f"ds_write_b64 v14, {vr(X+2,2)} offset:960")
    A(f"ds_write_b128 v15, {vr(X+4,4)} offset:1472")
    X = 72
    for k in range(2):
        a, b = KD + 12 + 2 * k, KD + 13 + 2 * k
        A(f"v_cndmask_b32 v11, v{a}, v{b}, vcc")
        A(f"v_cvt_pk_bf16_f32 v{X+4*k}, v{a}, v{a}")
        A(f"v_cvt_pk_bf16_f32 v{X+4*k+1}, v{a}, v{a}")
        A(f"v_cvt_pk_bf16_f32 v{X+4*k+2}, v11, v{b}")
        A(f"v_cvt_pk_bf16_f32 v{X+4*k+3}, v{b}, v{b}")
        A(f"ds_write_b128 v16, {vr(X+4*k,4)} offset:{2496+512*k}")

def loader2(A):
    A(f"s_cmp_ge_u32 s{S_J}, 28")
    A("s_cbranch_scc1 S_LW2")
    for c in range(O.LOOK, 8):
        if c >= 4: lwait(A, LGD, 0, 31, c - 3, sleep=O.LSLP)
        l_chunk(A, c)
        if c > O.LOOK: l_pub(A, 16, c)
        if c in (3, 5, 7): tss(A, 2 + (c - 3) // 2, "k")
    A.label("S_LW2")
    u_setup(A)
    token_get(A, 8, STOK)
    for s in range(4):
        lwait(A, LGD, 0, 31, 5 + s, sleep=O.LSLP)
        if s < 3:
            if s: A(f"s_cmp_eq_u32 s{S_UOK}, 1"); A(f"s_cbranch_scc1 S_U{s}")
            A(f"buffer_load_dword v9, v{UF}, s[{S_WS}:{S_WS+3}], 0 offen sc1")
            if s: A.label(f"S_U{s}")
        for k in range(7):
            A(f"s_add_u32 m0, s{K_M2}, {s*32768+4096+k*2048}")
            A(f"s_add_u32 s{K_T0}, s{K_W2}, {(14*s+k)*16384}")
            A(f"buffer_load_dwordx4 v{L2D}, s[{S_W2}:{S_W2+3}], s{K_T0} offen {O.W2FL} lds")
            A(f"buffer_load_dwordx4 v{L2D+1}, s[{S_W2}:{S_W2+3}], s{K_T0} offen offset:1024 {O.W2FL} lds")
        if s == 0: l_pub(A, 15, 8)
        if s < 3:
            if s: A(f"s_cmp_eq_u32 s{S_UOK}, 1"); A(f"s_cbranch_scc1 S_V{s}")
            A("s_waitcnt vmcnt(14)")
            A(f"v_cmp_ne_u32 vcc, v{STOK}, v9")
            A(f"s_cbranch_vccnz S_V{s}")
            u_dma(A)
            A(f"s_mov_b32 s{S_UOK}, 1")
            A.label(f"S_V{s}")
    tss(A, 5, "k")
    A("s_waitcnt vmcnt(14)")
    A(f"s_cmp_eq_u32 s{S_UOK}, 1"); A(f"s_cbranch_scc1 S_CV")
    poll(A, UF, 9, STOK, "PU")
    u_dma(A)
    A("s_waitcnt vmcnt(0)")

def conv_final3(A):
    w = S_WAVE
    A("v_bfe_u32 v8, v1, 3, 1")
    A("v_bfe_u32 v9, v1, 2, 1")
    A("v_and_b32 v10, 3, v1")
    A(f"v_lshl_add_u32 v8, v8, 2, s{w}")
    A("v_lshl_add_u32 v11, v8, 2, v10")
    A("v_lshlrev_b32 v11, 2, v11")
    A("v_lshl_add_u32 v12, v9, 7, v11")
    A("v_mul_u32_u24 v13, 144, v9")
    A("v_add_u32 v13, v13, v11")
    A(f"v_add_u32 v12, {LDS_HEAD}, v12")
    A(f"v_add_u32 v13, {LDS_CARR}, v13")
    A("v_lshl_add_u32 v8, v8, 8, v10")
    A("v_lshl_add_u32 v8, v8, 1, v9")
    A("v_lshlrev_b32 v8, 1, v8")
    A(f"v_add_u32 v8, {LDS_STG}, v8")
    A(f"s_lshl_b32 s{Q_T1}, s{w}, 10")
    A(f"s_add_u32 s{Q_T0}, s{Q_T1}, {LDS_STG}")
    A(f"v_lshl_add_u32 v9, v1, 3, s{Q_T0}")
    A("v_lshlrev_b32 v16, 4, v1")
    A(f"s_lshl_b32 s{Q_T0}, s{Q_PAIR}, 13")
    A(f"s_add_u32 s{Q_T0}, s{Q_T0}, s{Q_T1}")
    A(f"s_lshl_b32 s{Q_T0}, s{Q_T0}, 1")
    A(f"s_add_u32 s{Q_T0}, s{Q_T0}, {WS_A2}")
    A(f"s_add_u32 s{Q_T1}, s{Q_T0}, 8192")
    for k in range(4): A(f"v_mov_b32 v{67+4*k}, v{STOK}")
    s_barrier(A, 3)
    A("ds_read_b32 v12, v12")
    A("ds_read_b32 v13, v13")
    A("s_waitcnt lgkmcnt(0)")
    A("v_add_f32 v12, v12, v13")
    A("v_cvt_pk_bf16_f32 v12, v12, v12")
    A("ds_write_b16 v8, v12")
    for k in range(4): A(f"ds_read_b64 {vr(64+4*k,2)}, v9 offset:{(k//2)*4096+(k%2)*512}")
    for k in range(4):
        A(f"s_waitcnt lgkmcnt({3-k})")
        A(f"v_mov_b32 v{66+4*k}, v{65+4*k}")
        A(f"v_mov_b32 v{65+4*k}, v{STOK}")
        A(f"buffer_store_dwordx4 {vr(64+4*k,4)}, v16, s[{S_WS}:{S_WS+3}], s{Q_T0+k//2} offen offset:{(k%2)*1024} sc1")
def s_tail3(A):
    w = S_WAVE; SO_P = 76
    tss(A, 5, "a"); tss(A, 2, "t")
    A(f"s_lshl_b32 s{Q_T0}, s2, 2")
    A(f"s_add_u32 s{Q_T0}, s{Q_T0}, s{w}")
    A(f"s_lshl_b32 s{SO_P}, s{Q_T0}, 12")
    A(f"s_add_u32 s{SO_P}, s{SO_P}, {WS_P}")
    A(f"s_lshl_b32 s{Q_T0}, s{Q_NH}, 15")
    A(f"s_lshl_b32 s{Q_T1}, s{Q_C}, 11")
    A(f"s_add_u32 s{Q_T0}, s{Q_T0}, s{Q_T1}")
    A(f"v_add_u32 v17, s{Q_T0}, v16")
    A(f"v_xor_b32 v15, {0x10000+2048}, v17")
    A(f"s_lshl_b32 s{Q_T0}, s{Q_NH}, 2")
    A(f"s_add_u32 s{Q_T0}, s{Q_T0}, {L_GD}")
    A("v_and_b32 v5, 1, v1")
    A(f"v_lshl_add_u32 v5, v5, 3, s{Q_T0}")
    for k in range(8): A(f"v_mov_b32 v{97+2*k}, v{STOK}")
    lwait(A, 5, 0, 31, 9, sleep=1 - O.RSLP)
    tss(A, 3, "t")
    X = 112
    for h in range(2):
        A(f"ds_read_b128 {vr(X+4*h,4)}, v17 offset:{1024*h}")
        A(f"ds_read_b128 {vr(X+8+4*h,4)}, v15 offset:{1024*h}")
    A(f"v_mov_b32 v{S_FT}, 50")
    for h in range(2):
        A(f"s_waitcnt lgkmcnt({2-2*h})")
        if h == 1: A(f"ds_write_b32 v{S_FOWN}, v{S_FT}")
        for k in range(4):
            r = X + 4 * h + k
            A(f"v_lshlrev_b32 v80, 16, v{r}")
            A(f"v_lshlrev_b32 v81, 16, v{r+8}")
            A(f"v_and_b32 v82, 0xffff0000, v{r}")
            A(f"v_and_b32 v83, 0xffff0000, v{r+8}")
            A("v_add_f32 v80, v80, v81")
            A("v_add_f32 v82, v82, v83")
            A(f"v_cvt_pk_bf16_f32 v{96+8*h+2*k}, v80, v82")
            if k % 2 == 1:
                q = 2 * h + k // 2
                A(f"buffer_store_dwordx4 {vr(96+4*q,4)}, v16, s[{S_WS}:{S_WS+3}], s{SO_P} offen offset:{1024*q} {O.PST}")
    tss(A, 4, "t")
    A("s_waitcnt lgkmcnt(0)")

def s_tail(A):
    w = S_WAVE
    RT, CT, TT, DB = Q_EX, Q_EX + 1, Q_EX + 2, Q_EX + 3
    PK, AP, G, PP, T = 128, 136, 144, 148, 160
    SO_P, SO_PF, SO_A, SO_O = 76, 77, 78, 79
    A(f"s_lshl_b32 s80, s{Q_PAIR}, {FS}")
    A(f"s_lshl_b32 s{Q_T0}, s{w}, {8+FS}")
    A(f"s_add_u32 s80, s80, s{Q_T0}")
    A(f"s_add_u32 s80, s80, {F_A}")
    A(f"s_and_b32 s{RT}, s{S_XCD}, 6")
    A(f"s_lshl_b32 s{RT}, s{RT}, 1")
    A(f"s_and_b32 s{Q_T0}, s{S_J}, 3")
    A(f"s_add_u32 s{RT}, s{RT}, s{Q_T0}")
    A(f"s_lshl_b32 s{RT}, s{RT}, 1")
    A(f"s_bfe_u32 s{Q_T0}, s{S_J}, 0x10002" if O.MAP2 else f"s_and_b32 s{Q_T0}, s{S_XCD}, 1")
    A(f"s_add_u32 s{RT}, s{RT}, s{Q_T0}")
    ctv(A, CT)
    A(f"s_lshl_b32 s{TT}, s{RT}, 1")
    A(f"s_add_u32 s{TT}, s{TT}, s{Q_NH}")
    A(f"s_lshl_b32 s{DB}, s{CT}, 1")
    A(f"s_add_u32 s{DB}, s{DB}, s{Q_C}")
    A(f"s_bfe_u32 s{Q_T0}, s{RT}, 0x20002")
    A(f"s_lshl_b32 s{Q_T0}, s{Q_T0}, {8+FS}")
    A(f"s_lshl_b32 s{Q_T1}, s{DB}, {4+FS}")
    A(f"s_add_u32 s{Q_T0}, s{Q_T0}, s{Q_T1}")
    A(f"s_add_u32 s{Q_T0}, s{Q_T0}, {F_A}")
    A(f"v_lshl_add_u32 v2, v1, {FS}, s{Q_T0}")
    A(f"s_lshl_b32 s{Q_T0}, s{TT}, {1+FS}")
    A(f"s_add_u32 s{Q_T0}, s{Q_T0}, {F_G}")
    A("v_and_b32 v3, 1, v1")
    A(f"v_lshl_add_u32 v3, v3, {FS}, s{Q_T0}")
    A("v_cmp_gt_u32 vcc, 16, v1")
    A("v_and_b32 v10, 31, v1")
    A("v_lshrrev_b32 v11, 5, v1")
    A("v_cndmask_b32 v2, v3, v2, vcc")
    A("v_lshlrev_b32 v4, 14, v11")
    A("v_lshl_add_u32 v12, v10, 2, v4")
    A("v_add_u32 v13, 8192, v12")
    A(f"s_lshl_b32 s{Q_T0}, s{TT}, 8")
    A(f"s_add_u32 s{Q_T0}, s{Q_T0}, {WS_G}")
    A(f"v_lshl_add_u32 v14, v10, 3, s{Q_T0}")
    A(f"s_lshl_b32 s{SO_A}, s{DB}, 17")
    A(f"s_lshl_b32 s{Q_T1}, s{TT}, 7")
    A(f"s_add_u32 s{SO_A}, s{SO_A}, s{Q_T1}")
    A(f"s_add_u32 s{SO_A}, s{SO_A}, {WS_A}")
    A("v_lshlrev_b32 v16, 4, v1")
    A(f"s_lshl_b32 s{Q_T0}, s{w}, 12")
    A(f"s_add_u32 s{Q_T0}, s{Q_T0}, {L_T}")
    A(f"v_add_u32 v18, s{Q_T0}, v16")
    A(f"s_lshl_b32 s{Q_T0}, s{w}, 8")
    A(f"s_add_u32 s{Q_T0}, s{Q_T0}, {L_T+16384}")
    A(f"v_lshl_add_u32 v19, v1, 2, s{Q_T0}")
    A(f"s_lshl_b32 s{Q_T0}, s2, 2")
    A(f"s_add_u32 s{Q_T0}, s{Q_T0}, s{w}")
    A(f"s_lshl_b32 s{SO_P}, s{Q_T0}, 12")
    A(f"s_add_u32 s{SO_P}, s{SO_P}, {WS_P}")
    A(f"s_xor_b32 s{SO_O}, s{SO_P}, {4<<12}")
    if O.FK: A(f"s_xor_b32 s{Q_NH}, s{Q_NH}, 1")
    A(f"s_lshl_b32 s{Q_T0}, s{Q_NH}, 15")
    A(f"s_lshl_b32 s{Q_T1}, s{Q_C}, {12 if O.F32 else 11}")
    A(f"s_add_u32 s{Q_T0}, s{Q_T0}, s{Q_T1}")
    A(f"v_add_u32 v17, s{Q_T0}, v16")
    A(f"v_xor_b32 v15, {0x10000+(4096 if O.F32 else 2048)}, v17")
    A(f"s_lshl_b32 s{Q_T0}, s{Q_NH}, 2")
    A(f"s_add_u32 s{Q_T0}, s{Q_T0}, {L_GD}")
    A("v_and_b32 v5, 1, v1")
    A(f"v_lshl_add_u32 v5, v5, 3, s{Q_T0}")
    for k in range(8): A(f"v_mov_b32 v{97+2*k}, v{STOK}")
    A("s_waitcnt vmcnt(0)")
    flag_store(A, 80, 8, STOK)
    tss(A, 5, "au"); tss(A, 2, "t")
    def ag():
        if O.EPOL:
            A("s_waitcnt vmcnt(4)")
            A(f"v_cmp_ne_u32 vcc, v{STOK}, v9")
            A("s_cbranch_vccz S_EP")
        poll(A, 2, 9, STOK, "PA", slp=O.ASLP if O.FK else None)
        if O.EPOL: A.label("S_EP")
        for q in range(4):
            for i in range(2):
                A(f"buffer_load_dword v{AP+2*q+i}, v{12+i}, s[{S_WS}:{S_WS+3}], s{SO_A} offen sc1")
            if q < 3: A(f"s_add_u32 s{SO_A}, s{SO_A}, 32768")
        A(f"buffer_load_dwordx2 {vr(G,2)}, v14, s[{S_WS}:{S_WS+3}], 0 offen sc1")
    def ag2():
        for k in range(8):
            A(f"v_lshlrev_b32 v{T+2*k}, 16, v{AP+k}")
            A(f"v_and_b32 v{T+2*k+1}, 0xffff0000, v{AP+k}")
        for k in range(16):
            A(f"v_mul_f32 v{T+k}, v{G}, v{T+k}")
        A(f"ds_write_b32 v19, v{G+1}")
    def relay():
        for h in range(2):
            A(f"ds_read_b128 {vr(64+4*h,4)}, v17 offset:{1024*h}")
            A(f"ds_read_b128 {vr(72+4*h,4)}, v15 offset:{1024*h}")
        A(f"v_mov_b32 v{S_FT}, 50")
        for h in range(2):
            A(f"s_waitcnt lgkmcnt({2-2*h})")
            if h == 1: A(f"ds_write_b32 v{S_FOWN}, v{S_FT}")
            for k in range(4):
                r = 64 + 4 * h + k
                A(f"v_lshlrev_b32 v80, 16, v{r}")
                A(f"v_lshlrev_b32 v81, 16, v{r+8}")
                A(f"v_and_b32 v82, 0xffff0000, v{r}")
                A(f"v_and_b32 v83, 0xffff0000, v{r+8}")
                A("v_add_f32 v80, v80, v81")
                A("v_add_f32 v82, v82, v83")
                A(f"v_cvt_pk_bf16_f32 v{96+8*h+2*k}, v80, v82")
                if k % 2 == 1:
                    q = 2 * h + k // 2
                    A(f"buffer_store_dwordx4 {vr(96+4*q,4)}, v16, s[{S_WS}:{S_WS+3}], s{SO_P} offen offset:{1024*q} {O.PST}")
    if O.TL2:
        GOT, REL, POL = 33, 34, 35
        A(f"s_bfe_u32 s{Q_T0}, s{RT}, 0x20002")
        A(f"s_lshl_b32 s{Q_T0}, s{Q_T0}, {8+FS}")
        A(f"s_lshl_b32 s{Q_T1}, s{CT}, {5+FS}")
        A(f"s_add_u32 s{Q_T0}, s{Q_T0}, s{Q_T1}")
        A(f"s_add_u32 s{Q_T0}, s{Q_T0}, {F_A}")
        A(f"v_lshl_add_u32 v2, v1, {FS}, s{Q_T0}")
        A(f"s_lshl_b32 s{Q_T0}, s{RT}, {2+FS}")
        A(f"s_add_u32 s{Q_T0}, s{Q_T0}, {F_G}")
        A("v_and_b32 v3, 3, v1")
        A(f"v_lshl_add_u32 v3, v3, {FS}, s{Q_T0}")
        A("v_cmp_gt_u32 vcc, 32, v1")
        A(f"v_mov_b32 v6, {L_AOK}")
        A(f"s_mov_b32 s{GOT}, 0"); A(f"s_mov_b32 s{REL}, 0")
        A("v_cndmask_b32 v2, v3, v2, vcc")
        A(f"s_cmp_eq_u32 s{w}, {O.POLW}")
        A(f"s_cselect_b32 s{POL}, 1, 0")
        A(f"s_mov_b32 s{S_SPIN}, {O.SPIN}")
        A.label("T_L")
        A(f"s_cmp_eq_u32 s{POL}, 1")
        A("s_cbranch_scc0 T_NP")
        A(f"buffer_load_dword v9, v2, s[{S_WS}:{S_WS+3}], 0 offen sc1")
        A(f"s_sub_u32 s{S_SPIN}, s{S_SPIN}, 1")
        A("s_waitcnt vmcnt(0)")
        A("s_cbranch_scc1 T_OK")
        A(f"v_cmp_ne_u32 vcc, v{STOK}, v9")
        A("s_cbranch_vccnz T_NP")
        A.label("T_OK")
        A(f"ds_write_b32 v6, v{STOK+1}")
        A(f"s_mov_b32 s{POL}, 0")
        A.label("T_NP")
        A("ds_read_b32 v7, v6")
        A("ds_read_b32 v31, v5")
        A(f"s_cmp_eq_u32 s{GOT}, 0")
        A("s_waitcnt lgkmcnt(0)")
        A("s_cbranch_scc0 T_NA")
        A("v_cmp_eq_u32 vcc, 0, v7")
        A("s_cbranch_vccnz T_NA")
        tss(A, 4, "t")
        for q in range(4):
            for i in range(2):
                A(f"buffer_load_dword v{AP+2*q+i}, v{12+i}, s[{S_WS}:{S_WS+3}], s{SO_A} offen sc1")
            if q < 3: A(f"s_add_u32 s{SO_A}, s{SO_A}, 32768")
        A(f"buffer_load_dwordx2 {vr(G,2)}, v14, s[{S_WS}:{S_WS+3}], 0 offen sc1")
        A(f"s_mov_b32 s{GOT}, 1")
        A(f"s_cmp_eq_u32 s{REL}, 1")
        A("s_cbranch_scc1 T_W0")
        A.label("T_NA")
        A(f"s_cmp_eq_u32 s{REL}, 0")
        A("s_cbranch_scc0 T_SL")
        A("v_cmp_gt_u32 vcc, 9, v31")
        A("s_cbranch_vccnz T_SL")
        tss(A, 3, "t")
        relay()
        A(f"s_mov_b32 s{REL}, 1")
        A(f"s_cmp_eq_u32 s{GOT}, 1")
        A("s_cbranch_scc1 T_W4")
        A.label("T_SL")
        A(f"s_cmp_eq_u32 s{POL}, 1")
        A("s_cbranch_scc1 T_SP")
        A("s_sleep 1")
        A("s_branch T_L")
        A.label("T_SP")
        A(f"s_sleep {O.ASLP}")
        A("s_branch T_L")
        A.label("T_W0")
        A("s_waitcnt vmcnt(0)")
        A.label("T_W4")
        A("s_waitcnt vmcnt(4)")
        tss(A, 5, "t")
        ag2()
        for q in range(4):
            A(f"ds_write_b128 v18, {vr(T+4*q,4)} offset:{q*1024}")
        sw_arrive(A, S_FOWN, S_FT, 100)
        A("s_waitcnt lgkmcnt(0)")
        return
    if O.F32:
        lwait(A, 5, 0, 31, 9, sleep=2)
        ag()
        tss(A, 3, "t")
        def apart():
            A("s_waitcnt vmcnt(0)")
            A(f"ds_write_b32 v19, v{G+1}")
            for k in range(8):
                A(f"v_lshlrev_b32 v{T+2*k}, 16, v{AP+k}")
                A(f"v_and_b32 v{T+2*k+1}, 0xffff0000, v{AP+k}")
            for k in range(8):
                A(f"v_pk_mul_f32 {vr(T+2*k,2)}, {vr(T+2*k,2)}, {vr(G,2)} op_sel:[0,0] op_sel_hi:[1,0]")
        if O.F32 == 2: apart()
        tss(A, 4, "t")
        lwait(A, 5, 0, 31, 10, sleep=1)
        for q in range(4):
            A(f"ds_read_b128 {vr(64+4*q,4)}, v17 offset:{1024*q}")
            A(f"ds_read_b128 {vr(80+4*q,4)}, v15 offset:{1024*q}")
        if O.F32 == 1: apart()
        tss(A, 5, "t")
        for q in range(4):
            A(f"s_waitcnt lgkmcnt({(6-2*q+q) if O.F32 == 2 else (7-2*q+q)})")
            for k in (2*q, 2*q+1):
                A(f"v_pk_add_f32 {vr(64+2*k,2)}, {vr(64+2*k,2)}, {vr(80+2*k,2)}")
            for k in (2*q, 2*q+1):
                A(f"v_pk_fma_f32 {vr(T+2*k,2)}, {vr(64+2*k,2)}, {vr(G,2)}, {vr(T+2*k,2)} op_sel:[0,1,0] op_sel_hi:[1,1,1]")
            A(f"ds_write_b128 v18, {vr(T+4*q,4)} offset:{q*1024}")
        sw_arrive(A, S_FOWN, S_FT, 100)
        A("s_waitcnt lgkmcnt(0)")
        return
    if O.FK and O.TR2:
        lwait(A, 5, 0, 31, 9, sleep=2)
        ag()
        tss(A, 3, "t")
        lwait(A, 5, 0, 31, 10, sleep=1)
        for h in range(2):
            A(f"ds_read_b128 {vr(64+4*h,4)}, v17 offset:{1024*h}")
            A(f"ds_read_b128 {vr(72+4*h,4)}, v15 offset:{1024*h}")
        A(f"v_mov_b32 v{S_FT}, 50")
        for h in range(2):
            A(f"s_waitcnt lgkmcnt({2 if h == 0 else 0})")
            if h == 1: A(f"ds_write_b32 v{S_FOWN}, v{S_FT}")
            for k in range(4):
                r = 64 + 4 * h + k
                A(f"v_lshlrev_b32 v80, 16, v{r}")
                A(f"v_lshlrev_b32 v81, 16, v{r+8}")
                A(f"v_and_b32 v82, 0xffff0000, v{r}")
                A(f"v_and_b32 v83, 0xffff0000, v{r+8}")
                A(f"v_add_f32 v{T+8*h+2*k}, v80, v81")
                A(f"v_add_f32 v{T+8*h+2*k+1}, v82, v83")
        tss(A, 4, "t")
        A("s_waitcnt vmcnt(0)")
        tss(A, 5, "t")
        A(f"ds_write_b32 v19, v{G+1}")
        for q in range(4):
            for k in range(2):
                A(f"v_lshlrev_b32 v{80+2*k}, 16, v{AP+2*q+k}")
                A(f"v_and_b32 v{81+2*k}, 0xffff0000, v{AP+2*q+k}")
            for k in range(4): A(f"v_mul_f32 v{80+k}, v{G}, v{80+k}")
            for k in range(4): A(f"v_fma_f32 v{T+4*q+k}, v{G+1}, v{T+4*q+k}, v{80+k}")
            A(f"ds_write_b128 v18, {vr(T+4*q,4)} offset:{q*1024}")
        sw_arrive(A, S_FOWN, S_FT, 100)
        A("s_waitcnt lgkmcnt(0)")
        return
    if O.FK:
        if O.MID: lwait(A, 5, 0, 31, 9, sleep=2)
        ag(); A("s_waitcnt vmcnt(0)"); ag2()
        tss(A, 3, "t")
        lwait(A, 5, 0, 31, 10 if O.MID else 9, sleep=1)
        tss(A, 4, "t")
        for h in range(2):
            A(f"ds_read_b128 {vr(64+4*h,4)}, v17 offset:{1024*h}")
            A(f"ds_read_b128 {vr(72+4*h,4)}, v15 offset:{1024*h}")
        A(f"v_mov_b32 v{S_FT}, 50")
        for h in range(2):
            A(f"s_waitcnt lgkmcnt({2 if h == 0 else 2})")
            if h == 1: A(f"ds_write_b32 v{S_FOWN}, v{S_FT}")
            for k in range(4):
                r = 64 + 4 * h + k
                A(f"v_lshlrev_b32 v80, 16, v{r}")
                A(f"v_lshlrev_b32 v81, 16, v{r+8}")
                A(f"v_and_b32 v82, 0xffff0000, v{r}")
                A(f"v_and_b32 v83, 0xffff0000, v{r+8}")
                A("v_add_f32 v80, v80, v81")
                A("v_add_f32 v82, v82, v83")
                A(f"v_fmac_f32 v{T+8*h+2*k}, v{G+1}, v80")
                A(f"v_fmac_f32 v{T+8*h+2*k+1}, v{G+1}, v82")
                if k % 2 == 1:
                    q = 2 * h + k // 2
                    A(f"ds_write_b128 v18, {vr(T+4*q,4)} offset:{q*1024}")
        sw_arrive(A, S_FOWN, S_FT, 100)
        A("s_waitcnt lgkmcnt(0)")
        return
    if O.AFIRST:
        ag(); A("s_waitcnt vmcnt(0)"); ag2()
        tss(A, 3, "t")
    lwait(A, 5, 0, 31, 9, sleep=1)
    tss(A, 4 if O.AFIRST else 3, "t")
    if O.EPOL: A(f"buffer_load_dword v9, v2, s[{S_WS}:{S_WS+3}], 0 offen sc1")
    for h in range(2):
        A(f"ds_read_b128 {vr(64+4*h,4)}, v17 offset:{1024*h}")
        A(f"ds_read_b128 {vr(72+4*h,4)}, v15 offset:{1024*h}")
    A(f"v_mov_b32 v{S_FT}, 50")
    for h in range(2):
        A(f"s_waitcnt lgkmcnt({2-2*h})")
        if h == 1: A(f"ds_write_b32 v{S_FOWN}, v{S_FT}")
        for k in range(4):
            r = 64 + 4 * h + k
            A(f"v_lshlrev_b32 v80, 16, v{r}")
            A(f"v_lshlrev_b32 v81, 16, v{r+8}")
            A(f"v_and_b32 v82, 0xffff0000, v{r}")
            A(f"v_and_b32 v83, 0xffff0000, v{r+8}")
            A("v_add_f32 v80, v80, v81")
            A("v_add_f32 v82, v82, v83")
            A(f"v_cvt_pk_bf16_f32 v{96+8*h+2*k}, v80, v82")
            if k % 2 == 1:
                q = 2 * h + k // 2
                A(f"buffer_store_dwordx4 {vr(96+4*q,4)}, v16, s[{S_WS}:{S_WS+3}], s{SO_P} offen offset:{1024*q} {O.PST}")
    if not O.AFIRST:
        ag()
        tss(A, 4, "t")
    A(f"s_mov_b32 s{S_SPIN}, {O.SPIN}")
    A.label("S_PL")
    for q in range(4):
        A(f"buffer_load_dwordx4 {vr(112+4*q,4)}, v16, s[{S_WS}:{S_WS+3}], s{SO_O} offen offset:{1024*q} sc1")
    if not O.AFIRST:
        A(f"s_cmp_eq_u32 s{S_SPIN}, {O.SPIN}")
        A("s_cbranch_scc0 S_PM")
        A("s_waitcnt vmcnt(4)")
        ag2()
        A.label("S_PM")
    A("s_waitcnt vmcnt(0)")
    for k in range(4):
        A(f"v_xor_b32 v{80+k}, v{STOK}, v{113+4*k}")
        A(f"v_xor_b32 v{84+k}, v{STOK}, v{115+4*k}")
    A("v_or3_b32 v80, v80, v81, v82")
    A("v_or3_b32 v83, v83, v84, v85")
    A("v_or3_b32 v80, v80, v86, v87")
    A("v_or_b32 v80, v80, v83")
    A("v_cmp_ne_u32 vcc, 0, v80")
    A("s_cbranch_vccz S_PD")
    A("s_sleep 1")
    A(f"s_sub_u32 s{S_SPIN}, s{S_SPIN}, 1")
    A("s_cbranch_scc0 S_PL")
    A.label("S_PD")
    tss(A, 5, "t")
    for q in range(4):
        for k in range(2):
            r = 112 + 4 * q + 2 * k
            A(f"v_lshlrev_b32 v{80+2*k}, 16, v{r}")
            A(f"v_and_b32 v{81+2*k}, 0xffff0000, v{r}")
        for k in range(4):
            A(f"v_fmac_f32 v{T+4*q+k}, v{G+1}, v{80+k}")
        A(f"ds_write_b128 v18, {vr(T+4*q,4)} offset:{q*1024}")
    sw_arrive(A, S_FOWN, S_FT, 100)
    A("s_waitcnt lgkmcnt(0)")

def diag(A, k, role):
    A("s_waitcnt vmcnt(0) lgkmcnt(0)")
    A(f"s_memtime s[{S_TS+12}:{S_TS+13}]")
    A("s_waitcnt lgkmcnt(0)")
    A(f"s_sub_u32 s64, s{S_TS+2*k}, s{S_TS+2}")
    mx = len(O.DIAG) > 2
    if not mx or role == "G":
        A(f"s_cmp_ge_u32 s{S_J}, 28")
        A("s_cselect_b32 s64, 0, s64")
    A("v_mov_b32 v2, 128"); A("v_mov_b32 v3, s64")
    A("s_mov_b64 exec, 1")
    A(f"global_atomic_{'umax' if mx else 'add'} v2, v3, s[{P_DBG}:{P_DBG+1}] sc1")
    for lab, first in (("DG0", True), ("DG1", False)):
        A("s_mov_b32 s66, 1000000")
        if first: A("s_mov_b32 s67, 3200")
        A.label(lab)
        A("s_memrealtime s[64:65]")
        A("s_waitcnt lgkmcnt(0)")
        A(f"s_sub_u32 s64, s64, s{S_TS}")
        A("s_cmp_ge_u32 s64, s67")
        A(f"s_cbranch_scc1 {lab}X")
        A("s_sub_u32 s66, s66, 1")
        A(f"s_cbranch_scc0 {lab}")
        A.label(lab + "X")
        if first:
            A("s_waitcnt vmcnt(0)")
            A(f"global_load_dword v3, v2, s[{P_DBG}:{P_DBG+1}] sc1")
            A("s_waitcnt vmcnt(0)")
            A("v_readfirstlane_b32 s67, v3")
            A(f"s_lshr_b32 s67, s67, {1 if mx else 11}")
            A("s_add_u32 s67, s67, 3500")
def fin(A, role):
    if O.DIAG is None: ts_dump(A, 0, S_W8)
    elif O.DIAG[0] == role: diag(A, O.DIAG[1], role)

KN = "gated_mix__ssm_conv_s4d__dense_activation_silu__prompt_kernel"
A = Asm()
A.raw("; @launch grid=(256,1,1) block=(512,1,1) lds=163840")
A.raw('.amdgcn_target "amdgcn-amd-amdhsa--gfx950"')
kernel_header(A, KN)
ts_real(A, 0); parts_ts(A, 1)
if O.ECP > 0:
    A(f"s_cmp_ge_u32 s2, 256")
    A(f"s_cbranch_scc1 K_END")
    A("s_getpc_b64 s[72:73]")
    A.label("K_PC0")
    A("s_load_dwordx16 s[36:51], s[0:1], 0")
    A(f"s_lshr_b32 s{S_J}, s2, 3")
    if O.ECP == 1:
        A("v_lshrrev_b32 v255, 5, v0")
        A(f"v_lshl_add_u32 v255, s{S_J}, 4, v255")
        A("v_lshlrev_b32 v255, 6, v255")
    else:
        A(f"s_and_b32 s74, s{S_J}, {32//O.ECP-1}")
        A(f"v_lshrrev_b32 v255, {5-int(math.log2(O.ECP))}, v0")
        A(f"v_lshl_add_u32 v255, s74, {4+int(math.log2(O.ECP))}, v255")
        A("v_lshlrev_b32 v255, 6, v255")
    A(f"v_min_u32 v255, K_END-K_PC0, v255")
    A("global_load_dword v255, v255, s[72:73]")
    A("s_load_dwordx8 s[52:59], s[0:1], 64")
    A("s_load_dwordx4 s[60:63], s[0:1], 96")
    A("v_lshrrev_b32 v2, 6, v0")
    A("v_and_b32 v1, 63, v0")
    A(f"v_readfirstlane_b32 s{S_WAVE}, v2")
    A(f"s_and_b32 s{S_XCD}, s2, 7")
else:
    prologue(A, "K_END")
A(f"s_mov_b32 s{S_W8}, s{S_WAVE}")
A("v_and_b32 v2, 31, v1")
A("v_lshlrev_b32 v2, 2, v2")
A(f"v_add_u32 v2, {LF}, v2")
A("v_mov_b32 v3, 0")
A("ds_write_b32 v2, v3")
A(f"s_cmp_ge_u32 s{S_WAVE}, 4")
A("s_cbranch_scc1 K_SSM")
if O.GPRIO: A(f"s_setprio {O.GPRIO}")
if O.ECP < 0:
    A(f"s_cmp_lt_u32 s{S_J}, 28")
    A("s_cbranch_scc1 K_GM")
    A("s_getpc_b64 s[72:73]")
    A.label("K_PC0")
    A(f"s_and_b32 s74, s{S_J}, 3")
    A(f"v_lshrrev_b32 v255, 1, v0")
    A(f"v_lshl_add_u32 v255, s74, 7, v255")
    A("v_lshlrev_b32 v255, 6, v255")
    A(f"v_min_u32 v255, K_END-K_PC0, v255")
    A("global_load_dword v255, v255, s[72:73]")
    A("s_branch K_IDLE")
    A.label("K_GM")
else:
    A(f"s_cmp_ge_u32 s{S_J}, 28")
    A("s_cbranch_scc1 K_IDLE")
g1_setup(A)
if O.HAB: hab_setup(A)
rot_c0(A, S_C0, S_T0)
A("s_waitcnt lgkmcnt(0)")
srd(A, S_X, P_U, L*D*2); srd(A, S_W1, P_W1, D*F*2)
vm = Vm(A); cid = {}
for x in g_chunk_dma(0): vm.op(x)
cid[0] = vm.n
if O.GPRE == 1: A("s_barrier")
if O.LOOK > 1:
    for x in g_chunk_dma(1): vm.op(x)
    cid[1] = vm.n
if O.GPRE == 2: A("s_barrier")
srd(A, S_WS, P_WS, WS_BYTES); srd(A, S_OUT, P_OUT, L*D*2)
g1_setup2(A); g_flags_setup(A); g2_setup(A)
if O.HAB: hab_setup2(A)
if O.GW2: gw2_setup(A)
if O.LOOK > 2:
    for x in g_chunk_dma(2): vm.op(x)
    cid[2] = vm.n
if O.LOOK >= 4 and O.L3 == "u":
    for x in g_chunk_dma(3): vm.op(x)
    cid[3] = vm.n
if "L" in O.X2:
    parts_ts(A, 2)
    for k in sorted(cid)[:3]:
        vm.wait(cid[k]); parts_ts(A, 3 + k)
if O.GHOLD: lwait(A, GRD, 32, GT, 1, sleep=4)
(g1_main if O.LA == 1 else g1_main2)(A, vm, cid)
tsg(A, 2, "aeh")
g1_epi(A)
tsg(A, 3, "ae")
A.label("K_G2")
if O.GW2:
    A(f"v_mov_b32 v{GT}, 12")
    A("s_waitcnt vmcnt(0)")
    A(f"ds_write_b32 v{GOWN}, v{GT}")
    lwait(A, GRD, 0, GT + 1, 12)
else:
    if O.X3G < 4:
        A(f"v_mov_b32 v{GT}, 12")
        A(f"ds_write_b32 v{GOWN}, v{GT}")
        lwait(A, GRD, 0, GT + 1, 12)
    lwait(A, GRD, 48, GT, 12)
if O.FK:
    fk_x(A)
    A.label("K_G3")
else:
    for i in range(O.PFD):
        for x in w2_read(i): A(x)
tsg(A, 4, "h")
if O.PW:
    poll(A, FV, GT, VTOK, "PH", slp=O.HSLP)
    A("s_waitcnt lgkmcnt(0)")
else:
    A(f"v_mov_b32 v{GX}, {L_HOK}")
    A(f"s_cmp_eq_u32 s{S_WAVE}, 0")
    A("s_cbranch_scc0 K_HW")
    poll(A, FV, GT, VTOK, "PH", slp=O.HSLP)
    A(f"ds_write_b32 v{GX}, v{VTOK+1}")
    A("s_waitcnt lgkmcnt(1)")
    A("s_branch K_HD")
    A.label("K_HW")
    lwait(A, GX, 0, GT, 1)
A.label("K_HD")
if O.G2P is not None: A(f"s_setprio {O.G2P}")
tsg(A, 5, "h")
tsg(A, 4, "ae"); tsg(A, 1, "sf")
g2_main(A)
A("s_waitcnt lgkmcnt(0)")
fin(A, "G")
A("s_endpgm")
A.label("K_IDLE")
if O.IPRIO != O.GPRIO: A(f"s_setprio {O.IPRIO}")
idle_tr_issue(A)
if O.CODEPF:
    A("s_getpc_b64 s[72:73]")
    A.label("K_PC")
    A(f"s_sub_u32 s72, s72, K_PC-{KN}")
    A("s_subb_u32 s73, s73, 0")
    A(f"v_lshl_add_u32 v20, s64, 5, v1")
    A("v_lshlrev_b32 v20, 7, v20")
    A(f"v_min_u32 v20, K_END-{KN}, v20")
    A("s_mov_b64 exec, 0xffffffff")
    A("global_load_dword v21, v20, s[72:73]")
    A("s_mov_b64 exec, -1")
A("s_waitcnt lgkmcnt(0)")
srd(A, S_X, P_U, L*D*2)
if any(O.W2P): srd(A, S_W2, P_W2, D*F*2); w2_touch_setup(A)
w2_touch(A, O.W2P[0], 26)
idle_tr_dma(A)
A("s_barrier")
w2_touch(A, O.W2P[1], 26)
srd(A, S_WS, P_WS, WS_BYTES); srd(A, S_OUT, P_OUT, L*D*2)
idle_tr_finish(A, 2 * len(O.W2P[1]))
g_flags_setup(A); g2_setup(A)
tsg(A, 2, "ae")
token_get(A, GX, VTOK)
A(f"s_lshl_b32 s68, s34, 4")
A(f"s_add_u32 s68, s68, s33")
A(f"s_lshl_b32 s65, s68, {FS}")
A(f"s_add_u32 s65, s65, {F_UT}")
A("s_waitcnt vmcnt(0)")
flag_store(A, 65, GT, VTOK)
tsg(A, 3, "ae")
A(f"v_mov_b32 v{GT}, 8")
A(f"ds_write_b32 v{GOWN}, v{GT} offset:16")
if O.IPRIO != O.GPRIO: A(f"s_setprio {O.GPRIO}")
w2_touch(A, O.W2P[2], 26)
idle_gate_issue(A)
w2_touch(A, O.W2P[3], 26)
if O.GW2:
    gw2_setup(A)
    lwait(A, GRD, 16, GT, 8)
    for sl in range(4):
        for x in gw2_dma(sl): A(x)
idle_gate_finish(A, 2 * len(O.W2P[3]) + (28 if O.GW2 else 0))
if not O.TL3:
    A(f"s_lshl_b32 s65, s68, {FS}")
    A(f"s_add_u32 s65, s65, {F_G}")
    A("s_waitcnt vmcnt(0)")
    flag_store(A, 65, GT, VTOK)
if O.X3G < 4:
    x3g(A)
    A("s_waitcnt vmcnt(0)")
A("s_branch K_G2")
A.label("K_SSM")
if O.SPRIO: A(f"s_setprio {O.SPRIO}")
A(f"s_sub_u32 s{S_WAVE}, s{S_WAVE}, 4")
s_setup(A)
carry_zero(A)
A("s_getreg_b32 s31, hwreg(HW_REG_XCC_ID)")
def w2s():
    if O.W2S is None: return
    srd(A, S_W2, P_W2, D*F*2)
    A(f"s_lshr_b32 s{Q_T0}, s{S_XCD}, 1")
    A(f"s_and_b32 s{Q_T1}, s{S_XCD}, 1")
    A(f"s_lshl_b32 s{Q_T1}, s{Q_T1}, 2")
    A(f"s_add_u32 s{Q_T0}, s{Q_T0}, s{Q_T1}")
    A(f"s_lshl_b32 s{Q_T0}, s{Q_T0}, 5")
    A(f"s_add_u32 s{Q_T0}, s{Q_T0}, s{S_J}")
    A(f"s_lshl_b32 s{Q_T0}, s{Q_T0}, 1")
    A(f"s_add_u32 s{Q_T0}, s{Q_T0}, s{Q_NH}")
    A(f"s_mul_i32 s{Q_T0}, s{Q_T0}, 3584")
    A("v_min_u32 v39, 27, v1")
    A("v_lshlrev_b32 v39, 7, v39")
    A(f"buffer_load_dword v39, v39, s[{S_W2}:{S_W2+3}], s{Q_T0} offen {O.PFL2}")
def flow2():
    A(f"s_cmp_eq_u32 s{Q_C}, 1")
    A("s_cbranch_scc1 S_LD")
    A(f"s_lshl_b32 s{Q_T0}, s{Q_PAIR}, 9")
    A(f"s_lshl_b32 s{Q_T1}, s{S_WAVE}, 8")
    A(f"s_add_u32 s{Q_T0}, s{Q_T0}, s{Q_T1}")
    A(f"v_lshl_add_u32 v6, v1, 2, s{Q_T0}")
    A(f"s_lshl_b32 s{Q_T0}, s{Q_PAIR}, 2")
    A("s_waitcnt lgkmcnt(0)")
    for i, p in enumerate((P_LA, P_AI, P_CR, P_CI)):
        A(f"global_load_dword v{14+i}, v6, s[{p}:{p+1}]")
    A(f"s_load_dword s{Q_LDT}, s[{P_LDT}:{P_LDT+1}], s{Q_T0}")
    A(f"s_load_dword s{Q_DSK}, s[{P_DSK}:{P_DSK+1}], s{Q_T0}")
    A(f"s_add_u32 s28, s{P_WS}, {F_EP}")
    A(f"s_addc_u32 s29, s{P_WS+1}, 0")
    A(f"s_cmp_eq_u32 s{S_WAVE}, 1")
    A("s_cbranch_scc0 S_NT")
    A("s_load_dword s30, s[28:29], 0")
    A.label("S_NT")
    A("s_barrier")
    if O.W2S == 0: w2s()
    def tokpub():
        A(f"s_cmp_eq_u32 s{S_WAVE}, 1")
        A("s_cbranch_scc0 S_NP")
        A("s_mul_i32 s30, s30, 0x9e3779a1")
        A("s_add_u32 s30, s30, 0x7f4a7c10")
        A("s_and_b32 s30, s30, -16")
        A(f"v_mov_b32 v{STOK}, s30")
        A(f"v_mov_b32 v{STOK+1}, 1")
        A(f"v_mov_b32 v34, {L_RDY}")
        A(f"ds_write_b64 v34, {vr(STOK,2)}")
        A(f"s_waitcnt vmcnt({1 if O.W2S == 0 else 0})")
        A(f"s_lshl_b32 s28, s2, {FS}")
        A(f"s_add_u32 s28, s28, {F_HERE}")
        flag_store(A, 28, 36, STOK)
        A("s_branch S_NQ")
        A.label("S_NP")
        A(f"s_waitcnt vmcnt({1 if O.W2S == 0 else 0})")
        A.label("S_NQ")
    kgen2(A, 2, tokpub)
    tss(A, 5, "k")
    A("s_cmp_eq_u32 s2, 0")
    A("s_cbranch_scc0 S_UW")
    A(f"s_cmp_eq_u32 s{S_WAVE}, 1")
    A("s_cbranch_scc0 S_UW")
    for i in range(4):
        A(f"v_lshlrev_b32 v8, {FS}, v1")
        A(f"v_add_u32 v8, {F_HERE+(64<<FS)*i}, v8")
        poll(A, 8, 9, STOK, "PE")
    A(f"s_mov_b32 s{Q_T0}, {F_EP}")
    flag_store(A, Q_T0, 8, STOK)
    A.label("S_UW")
    A("s_branch S_CV")
    A.label("S_LD")
    if O.LPRIO != O.SPRIO: A(f"s_setprio {O.LPRIO}")
    loader_setup(A)
    A("s_waitcnt lgkmcnt(0)")
    srd(A, S_X, P_U, L*D*2); srd(A, S_W1, P_W1, D*F*2); srd(A, S_W2, P_W2, D*F*2)
    srd(A, S_WS, P_WS, WS_BYTES)
    A("s_barrier")
    if O.W2S == 1: w2s()
    if O.LDLY: A(f"s_sleep {O.LDLY}")
    loader2(A)
def flow1():
    A(f"s_lshl_b32 s{Q_T0}, s{Q_PAIR}, 9")
    A(f"s_lshl_b32 s{Q_T1}, s{S_WAVE}, 7")
    A(f"s_add_u32 s{Q_T0}, s{Q_T0}, s{Q_T1}")
    A(f"v_lshl_add_u32 v6, v1, 1, s{Q_T0}")
    A(f"s_lshl_b32 s{Q_T0}, s{Q_PAIR}, 2")
    A("s_waitcnt lgkmcnt(0)")
    for i, p in enumerate((P_LA, P_AI, P_CR, P_CI)):
        A(f"global_load_ushort v{2+i}, v6, s[{p}:{p+1}]")
    A(f"s_load_dword s{Q_LDT}, s[{P_LDT}:{P_LDT+1}], s{Q_T0}")
    A(f"s_load_dword s{Q_DSK}, s[{P_DSK}:{P_DSK+1}], s{Q_T0}")
    A(f"s_add_u32 s28, s{P_WS}, {F_EP}")
    A(f"s_addc_u32 s29, s{P_WS+1}, 0")
    A(f"s_cmp_eq_u32 s{S_WAVE}, 1")
    A("s_cbranch_scc0 S_NT")
    A("s_load_dword s30, s[28:29], 0")
    A.label("S_NT")
    A("s_barrier")
    if O.TCH:
        A(f"s_cmp_eq_u32 s{Q_C}, 1")
        A("s_cbranch_scc1 S_T2")
        A(f"s_cmp_eq_u32 s{Q_NH}, 1")
        A("s_cbranch_scc1 S_T1")
        srd(A, S_X, P_U, L*D*2)
        A(f"s_lshl_b32 s{Q_T0}, s{Q_PAIR}, 13")
        A("v_lshlrev_b32 v39, 7, v1" if "x" in O.TCH else "v_mov_b32 v39, 0")
        A(f"buffer_load_dword v39, v39, s[{S_X}:{S_X+3}], s{Q_T0} offen")
        A("s_branch S_T3")
        A.label("S_T1")
        srd(A, S_W1, P_W1, D*F*2)
        A(f"s_add_u32 s{Q_T0}, s{S_XCD}, {2*O.TR}")
        A(f"s_bfe_u32 s{Q_T0}, s{Q_T0}, 0x20001")
        A(f"s_lshl_b32 s{Q_T0}, s{Q_T0}, 5")
        A(f"s_add_u32 s{Q_T0}, s{Q_T0}, s{S_J}")
        A(f"s_mul_i32 s{Q_T0}, s{Q_T0}, {4*2*F}")
        A(f"s_and_b32 s{Q_T1}, s{S_XCD}, 1")
        A(f"s_mul_i32 s{Q_T1}, s{Q_T1}, {F}")
        A(f"s_add_u32 s{Q_T0}, s{Q_T0}, s{Q_T1}")
        A("v_and_b32 v38, 15, v1")
        A("v_min_u32 v38, 13, v38")
        A("v_lshrrev_b32 v39, 4, v1")
        A(f"v_mul_u32_u24 v39, {2*F}, v39")
        A("v_lshl_add_u32 v39, v38, 7, v39" if "w" in O.TCH else "v_mov_b32 v39, 0")
        A(f"buffer_load_dword v39, v39, s[{S_W1}:{S_W1+3}], s{Q_T0} offen")
        A("s_branch S_T3")
        A.label("S_T2")
        w2s()
        A.label("S_T3")
    elif O.W2H: pass
    elif O.W2S is not None:
        srd(A, S_W2, P_W2, D*F*2)
        A(f"s_lshr_b32 s{Q_T0}, s{S_XCD}, 1")
        A(f"s_and_b32 s{Q_T1}, s{S_XCD}, 1")
        A(f"s_lshl_b32 s{Q_T1}, s{Q_T1}, 2")
        A(f"s_add_u32 s{Q_T0}, s{Q_T0}, s{Q_T1}")
        A(f"s_lshl_b32 s{Q_T0}, s{Q_T0}, 5")
        A(f"s_add_u32 s{Q_T0}, s{Q_T0}, s{S_J}")
        A(f"s_mul_i32 s{Q_T0}, s{Q_T0}, 7168")
        A(f"s_mul_i32 s{Q_T1}, s{S_WAVE}, 1792")
        A(f"s_add_u32 s{Q_T0}, s{Q_T0}, s{Q_T1}")
        A("v_min_u32 v39, 13, v1")
        A("v_lshlrev_b32 v39, 7, v39")
        A(f"buffer_load_dword v39, v39, s[{S_W2}:{S_W2+3}], s{Q_T0} offen {O.PFL2}")
    def pre():
        if O.GW2: srd(A, S_WS, P_WS, WS_BYTES); return
        srd(A, S_X, P_U, L*D*2); srd(A, S_W1, P_W1, D*F*2); srd(A, S_W2, P_W2, D*F*2)
        srd(A, S_WS, P_WS, WS_BYTES)
        loader_setup(A)
    def tokpub():
        tss(A, 2, "ak")
        A(f"s_cmp_eq_u32 s{S_WAVE}, 1")
        A("s_cbranch_scc0 S_NP")
        A("s_mul_i32 s30, s30, 0x9e3779a1")
        A("s_add_u32 s30, s30, 0x7f4a7c10")
        A("s_and_b32 s30, s30, -16")
        A("s_and_b32 s31, s31, 15")
        A("s_or_b32 s31, s31, s30")
        A(f"v_mov_b32 v{STOK}, s30")
        A(f"v_mov_b32 v{STOK+1}, 1")
        A(f"v_mov_b32 v34, {L_RDY}")
        A(f"ds_write_b64 v34, {vr(STOK,2)}")
        A(f"v_mov_b32 v35, s31")
        A(f"s_lshl_b32 s28, s2, {FS}")
        A(f"s_add_u32 s28, s28, {F_HERE}")
        flag_store(A, 28, 36, 35)
        A.label("S_NP")
    def khook():
        tss(A, 3, "k")
        if O.W2H == 1:
            A(f"s_cmp_eq_u32 s{Q_C}, 1")
            A("s_cbranch_scc0 S_T4")
            w2s()
            A.label("S_T4")
    kgen(A, later=0 if (O.W2S is None or O.W2H) else 1, hookA=tokpub, pre=pre, hook=khook)
    tss(A, 4, "k")
    if O.W2H == 2:
        A(f"s_cmp_eq_u32 s{Q_C}, 0")
        A("s_cbranch_scc0 S_T4")
        w2s()
        A.label("S_T4")
    kgen_exchange_write(A)
    A("s_waitcnt lgkmcnt(0)")
    sw_arrive(A, S_FOWN, S_FT, 1)
    def kfin():
        sw_wait(A, S_FRD, S_FT, 1, sleep=1)
        kgen_final(A)
        token_get(A, 8, STOK)
    tss(A, 3, "a")
    if O.GW2:
        token_get(A, 16, STOK)
        A(f"s_cmp_eq_u32 s{S_WAVE}, {O.UW}")
        A("s_cbranch_scc0 S_K1")
        A(f"s_lshl_b32 s{Q_T0}, s{S_XCD}, {4+FS}")
        A(f"s_add_u32 s{Q_T0}, s{Q_T0}, {F_UT}")
        A("v_and_b32 v16, 15, v1")
        A(f"v_lshl_add_u32 v16, v16, {FS}, s{Q_T0}")
        poll(A, 16, 17, STOK, "PU")
        ut2(A, 0)
        A.label("S_K1")
        sw_wait(A, S_FRD, S_FT, 1, sleep=1)
        kgen_final(A)
        tss(A, 5, "k")
        A(f"s_cmp_eq_u32 s{S_WAVE}, {O.UW}")
        A("s_cbranch_scc0 S_K2")
        ut2(A, 1)
        A.label("S_K2")
        A("s_cmp_eq_u32 s2, 0")
        A("s_cbranch_scc0 S_CV")
        A(f"s_cmp_eq_u32 s{S_WAVE}, 1")
        A("s_cbranch_scc0 S_CV")
        for i in range(4):
            A(f"v_lshlrev_b32 v8, {FS}, v1")
            A(f"v_add_u32 v8, {F_HERE+(64<<FS)*i}, v8")
            poll(A, 8, 9, STOK, "PE", mask=True)
        A(f"s_mov_b32 s{Q_T0}, {F_EP}")
        flag_store(A, Q_T0, 8, STOK)
        return
    A(f"s_cmp_eq_u32 s{Q_C}, 1")
    A("s_cbranch_scc1 S_LD")
    kfin()
    tss(A, 5, "k")
    A(f"s_cmp_eq_u32 s{S_WAVE}, 1")
    A("s_cbranch_scc1 S_VD")
    A(f"s_lshl_b32 s{Q_T0}, s{S_XCD}, {4+FS}")
    A(f"s_add_u32 s{Q_T0}, s{Q_T0}, {F_UT}")
    A("v_and_b32 v8, 15, v1")
    A(f"v_lshl_add_u32 v8, v8, {FS}, s{Q_T0}")
    poll(A, 8, 9, STOK, "PU")
    ut2(A)
    A("s_branch S_CV")
    A.label("S_VD")
    if O.YT is not None:
        A("v_min_u32 v56, 55, v1")
        A("v_lshlrev_b32 v56, 7, v56")
        for ph, (thr, odd) in enumerate(O.YT):
            if thr: lwait(A, LGD, 0, 31, thr, sleep=4)
            for q in range(4):
                A(f"s_add_u32 s{Q_T0}, s{S_XCD}, {q}")
                A(f"s_and_b32 s{Q_T0}, s{Q_T0}, 3")
                A(f"s_lshl_b32 s{Q_T0}, s{Q_T0}, 6")
                A(f"s_add_u32 s{Q_T0}, s{Q_T0}, s{S_J}")
                if odd: A(f"s_add_u32 s{Q_T0}, s{Q_T0}, 32")
                A(f"s_mul_i32 s{Q_T0}, s{Q_T0}, 7168")
                A(f"buffer_load_dword v57, v56, s[{S_W2}:{S_W2+3}], s{Q_T0} offen")
    if O.PT:
        A(f"s_lshr_b32 s{Q_T0}, s{S_J}, 2")
        A(f"s_lshl_b32 s{Q_T0}, s{Q_T0}, 18")
        A(f"s_xor_b32 s{Q_T1}, s{S_XCD}, 2")
        A(f"s_lshl_b32 s{Q_T1}, s{Q_T1}, 10")
        A(f"s_add_u32 s{Q_T0}, s{Q_T0}, s{Q_T1}")
        A(f"s_add_u32 s{Q_T0}, s{Q_T0}, {WS_A}")
        A(f"v_lshl_add_u32 v8, v1, 13, s{Q_T0}")
        A(f"s_lshl_b32 s{Q_T0}, s2, 14")
        A(f"s_add_u32 s{Q_T0}, s{Q_T0}, {WS_P}")
        A("v_and_b32 v9, 3, v1")
        A(f"v_lshl_add_u32 v9, v9, 12, s{Q_T0}")
        A("v_cmp_gt_u32 vcc, 32, v1")
        A(f"s_lshl_b32 s{Q_T0}, s{Q_PAIR}, 13")
        A(f"s_add_u32 s{Q_T0}, s{Q_T0}, s{Q_T1}")
        A("v_cndmask_b32 v8, v9, v8, vcc")
        A(f"s_add_u32 s{Q_T0}, s{Q_T0}, {WS_A}")
        A("v_and_b32 v9, 1, v1")
        A("v_lshlrev_b32 v9, 12, v9")
        A(f"v_xor_b32 v9, s{Q_T0}, v9")
        A("v_cmp_gt_u32 vcc, 48, v1")
        srd(A, S_OUT, P_OUT, L*D*2)
        A("v_cndmask_b32 v8, v9, v8, vcc")
        if "w" in O.PT: A(f"buffer_load_dword v38, v8, s[{S_WS}:{S_WS+3}], 0 offen")
        A(f"s_and_b32 s{Q_T0}, s{S_XCD}, 6")
        A(f"s_lshl_b32 s{Q_T0}, s{Q_T0}, 1")
        A(f"s_and_b32 s{Q_T1}, s{S_J}, 3")
        A(f"s_add_u32 s{Q_T0}, s{Q_T0}, s{Q_T1}")
        A(f"s_lshl_b32 s{Q_T0}, s{Q_T0}, 1")
        A(f"s_and_b32 s{Q_T1}, s{S_XCD}, 1")
        A(f"s_add_u32 s{Q_T0}, s{Q_T0}, s{Q_T1}")
        A(f"s_lshl_b32 s{Q_T0}, s{Q_T0}, 16")
        A(f"s_lshr_b32 s{Q_T1}, s{S_J}, 2")
        A(f"s_lshl_b32 s{Q_T1}, s{Q_T1}, 7")
        A(f"s_add_u32 s{Q_T0}, s{Q_T0}, s{Q_T1}")
        if "O" in O.PT: A("v_lshlrev_b32 v9, 10, v1")
        else:
            A("v_and_b32 v9, 15, v1")
            A("v_lshlrev_b32 v9, 12, v9")
        if "o" in O.PT.lower(): A(f"buffer_load_dword v37, v9, s[{S_OUT}:{S_OUT+3}], s{Q_T0} offen")
    if O.VERD:
        A(f"s_and_b32 s{Q_T0}, s2, 31")
        A(f"s_lshl_b32 s{Q_T0}, s{Q_T0}, {FS}")
        A(f"s_add_u32 s{Q_T0}, s{Q_T0}, {F_HERE}")
        A("v_and_b32 v8, 7, v1")
        A(f"v_lshl_add_u32 v8, v8, {5+FS}, s{Q_T0}")
        poll(A, 8, 9, STOK, "PV", mask=True)
        A("v_cmp_ne_u32 vcc, s31, v9")
        A("s_cmp_eq_u64 vcc, 0")
        A(f"s_cselect_b32 s{Q_T0}, 1, 2")
        A(f"v_mov_b32 v9, s{Q_T0}")
        A(f"v_mov_b32 v8, {L_VERD}")
        A("ds_write_b32 v8, v9")
    A("s_cmp_eq_u32 s2, 0")
    A("s_cbranch_scc0 S_CV")
    for i in range(4):
        A(f"v_lshlrev_b32 v8, {FS}, v1")
        A(f"v_add_u32 v8, {F_HERE+(64<<FS)*i}, v8")
        poll(A, 8, 9, STOK, "PE", mask=True)
    A(f"s_mov_b32 s{Q_T0}, {F_EP}")
    flag_store(A, Q_T0, 8, STOK)
    A("s_branch S_CV")
    A.label("S_LD")
    loader(A, kfin)

(flow2 if O.DL else flow1)()
A.label("S_CV")
conv_setup(A)
A(f"v_mov_b32 v{LV}, 12"); A(f"v_mov_b32 v{LV+1}, 12")
s_barrier(A, 2)
tss(A, 4, "a"); tss(A, 2, "u")
if O.CPRIO != O.SPRIO: A(f"s_setprio {O.CPRIO}")
conv(A, inj=None if O.GW2 else (O.PUBM, ["s_waitcnt vmcnt(0)", f"ds_write_b64 v{LSA}, {vr(LV,2)}"]))
if O.CPRIO != O.TPRIO: A(f"s_setprio {O.TPRIO}")
if O.TL3:
    conv_final3(A); s_tail3(A)
else:
    tss(A, 3, "u")
    s_barrier(A, 3)
    conv_final(A, "sc1")
    tss(A, 4, "u")
    s_tail(A)
fin(A, "S")
A.label("K_END")
A("s_endpgm")
kernel_desc(A, KN, 256)
open(sys.argv[1], "w").write(A.text())
```
